```python
import torch

def _softmax(x, axis=-1):
    return torch.softmax(x, dim=axis)
def _gelu(x):
    return torch.nn.functional.gelu(x, approximate="tanh")
def _silu(x):
    return torch.nn.functional.silu(x)
def _sigmoid(x):
    return torch.sigmoid(x)
def _layernorm(x, axis=-1, eps=1e-5):
    m = x.mean(dim=axis, keepdim=True)
    v = x.var(dim=axis, keepdim=True, unbiased=False)
    return (x - m) / torch.sqrt(v + eps)
def _scatter_add(tgt, idx, src, axis=0):
    return tgt.clone().index_add_(axis, idx, src)
def _segment_sum(src, seg, n):
    out = torch.zeros((n,) + src.shape[1:], dtype=src.dtype)
    return out.index_add_(0, seg, src)
def _pad(x, pw):
    flat = tuple(v for pair in reversed(pw) for v in pair)
    return torch.nn.functional.pad(x, flat)

kernel_name = 'sequential_preLN__gqa_block_cached__glu_gated_bilinear__decode'

def setup_inputs():

    _w = (lambda a: (lambda t: t.to(torch.bfloat16) if t.is_floating_point() else t)(torch.as_tensor(a)))
    def _A_setup():
        B, Sq, D = 1, 1, 512
        Hq, Hkv, Sk, Dh = 32, 8, 65536, 128
        assert Hq % Hkv == 0, (Hq, Hkv)
        return {
            "x": _w((lambda *s: torch.randn(*s, dtype=torch.bfloat16) * 0.05)(B, Sq, D)),
            "k_cache": _w((lambda *s: torch.randn(*s, dtype=torch.bfloat16) * 3.2)(B, Hkv, Sk, Dh)),
            "v_cache": _w((lambda *s: torch.randn(*s, dtype=torch.bfloat16) * 1.6)(B, Hkv, Sk, Dh)),
            "wq": _w((lambda *s: torch.randn(*s, dtype=torch.bfloat16) * 3.2)(D, Hq * Dh) * (D ** -0.5)),
            "wo": _w((lambda *s: torch.randn(*s, dtype=torch.bfloat16) * 1.6)(Hq * Dh, D) * ((Hq * Dh) ** -0.5)),
        }
    _A_in = _A_setup()

    def _B_setup():
        B, S, D, F = 1, 1, 512, 1792
        return {
            "x": _w((lambda *s: torch.randn(*s, dtype=torch.bfloat16) * 0.05)(B, S, D)),
            "w_gate": _w((lambda *s: torch.randn(*s, dtype=torch.bfloat16) * 1.6)(D, F) * (D ** -0.5)),
            "w_up": _w((lambda *s: torch.randn(*s, dtype=torch.bfloat16) * 1.6)(D, F) * (D ** -0.5)),
            "w_down": _w((lambda *s: torch.randn(*s, dtype=torch.bfloat16) * 1.6)(F, D) * (F ** -0.5)),
        }
    _B_in = _B_setup()

    return {
        "A_x": _A_in["x"],
        "A_k_cache": _A_in["k_cache"],
        "A_v_cache": _A_in["v_cache"],
        "A_wq": _A_in["wq"],
        "A_wo": _A_in["wo"],
        "B_x": _B_in["x"],
        "B_w_gate": _B_in["w_gate"],
        "B_w_up": _B_in["w_up"],
        "B_w_down": _B_in["w_down"],
    }

def reference(A_x, A_k_cache, A_v_cache, A_wq, A_wo, B_x, B_w_gate, B_w_up, B_w_down):
    def _A_ref(x, k_cache, v_cache, wq, wo):
        B, Sq, D = x.shape
        Hq, Dh = 32, 128
        Hkv = k_cache.shape[1]
        rep = Hq // Hkv
        q = (lambda x, *d: x.permute(*d))((x @ wq).reshape(B, Sq, Hq, Dh), 0, 2, 1, 3)
        k = (lambda x, n, axis: torch.repeat_interleave(x, n, dim=axis))(k_cache, rep, axis=1)
        v = (lambda x, n, axis: torch.repeat_interleave(x, n, dim=axis))(v_cache, rep, axis=1)
        scores = torch.einsum("bhqd,bhkd->bhqk", q, k) * (Dh ** -0.5)
        p = _softmax(scores, axis=-1)
        o = torch.einsum("bhqk,bhkd->bhqd", p, v)
        return (lambda x, *d: x.permute(*d))(o, 0, 2, 1, 3).reshape(B, Sq, Hq * Dh) @ wo

    def _B_ref(x, w_gate, w_up, w_down):
        g = torch.einsum("bsd,df->bsf", x, w_gate)
        u = torch.einsum("bsd,df->bsf", x, w_up)
        h = g * u
        return torch.einsum("bsf,fd->bsd", h, w_down)

    x = A_x
    h = x + _A_ref(_layernorm(x, axis=-1), A_k_cache, A_v_cache, A_wq, A_wo)
    h2 = h + _B_ref(_layernorm(h, axis=-1), B_w_gate, B_w_up, B_w_down)
    return h2
```

```python
import re

TRANS = ("v_exp_f32", "v_log_f32", "v_rcp_f32", "v_rsq_f32", "v_sqrt_f32", "v_sin_f32", "v_cos_f32")

def regs_of(tok):
    t = tok.strip()
    t = re.sub(r"^(neg|abs)\((.*)\)$", r"\2", t).lstrip("-").strip("|")
    if t == "vcc": return {("s", 106), ("s", 107)}
    if t == "vcc_lo": return {("s", 106)}
    if t == "vcc_hi": return {("s", 107)}
    if t == "exec": return {("s", 126), ("s", 127)}
    if t == "m0": return {("s", 124)}
    m = re.match(r"^([vsa])(\d+)$", t)
    if m: return {(m.group(1), int(m.group(2)))}
    m = re.match(r"^([vsa])\[(\d+):(\d+)\]$", t)
    if m: return {(m.group(1), i) for i in range(int(m.group(2)), int(m.group(3)) + 1)}
    return set()

class Ins:
    def __init__(self, text):
        self.text = text
        body = text.split(";")[0].strip()
        self.is_label = body.endswith(":")
        self.is_dir = body.startswith(".") or body == ""
        self.op = ""; self.dst = set(); self.src = set(); self.ops = []
        self.kind = "none"; self.dpp = False; self.dppsrc = set(); self.srcC = set(); self.srcAB = set()
        self.states = 0; self.sdata = set()
        if self.is_label or self.is_dir: return
        parts = body.split(None, 1)
        self.op = op = parts[0]
        rest = parts[1] if len(parts) > 1 else ""
        ops = []; cur = ""; depth = 0
        for ch in rest:
            if ch == "[": depth += 1
            if ch == "]": depth -= 1
            if ch == "," and depth == 0: ops.append(cur.strip()); cur = ""
            else: cur += ch
        if cur.strip(): ops.append(cur.strip())
        mods = ""
        if ops:
            last = ops[-1].split(None, 1)
            ops[-1] = last[0]
            mods = last[1] if len(last) > 1 else ""
        self.ops = ops; self.mods = mods
        self.states = 1
        R = [regs_of(o) for o in ops]
        if op == "s_nop":
            self.kind = "salu"; self.states = int(ops[0], 0) + 1; return
        if op.startswith("v_mfma"):
            self.kind = "mfma"; self.dst = R[0]; self.srcAB = R[1] | R[2]; self.srcC = R[3]; self.src = self.srcAB | self.srcC
            self.passes = 8 if "32x32" in op else 4
            return
        if op.startswith("v_"):
            self.kind = "valu"
            self.dpp = "_dpp" in op
            if op.startswith("v_permlane"):
                self.dst = R[0] | R[1]; self.src = R[0] | R[1]; return
            if op.startswith("v_cmp"):
                self.dst = R[0]; self.src = set().union(*R[1:]); return
            if op in ("v_add_co_u32", "v_sub_co_u32", "v_addc_co_u32", "v_subb_co_u32", "v_mad_u64_u32"):
                self.dst = R[0] | R[1]; self.src = set().union(*R[2:]); return
            self.dst = R[0]; self.src = set().union(*R[1:]) if len(R) > 1 else set()
            if op.startswith(("v_fmac", "v_dot2c", "v_writelane")) or self.dpp: self.src |= R[0]
            if self.dpp: self.dppsrc = R[1]
            return
        if op.startswith(("buffer_", "global_")):
            self.kind = "vmem"
            if "load" in op:
                self.dst = R[0]; self.src = set().union(*R[1:])
                if "d16" in op: self.src |= R[0]
            elif "store" in op:
                self.src = set().union(*R)
                d = R[0] if op.startswith("buffer_") else R[1]
                if "x3" in op or "x4" in op: self.sdata = d
            else:
                self.src = set().union(*R)
                if "sc0" in mods: self.dst = R[0]
            return
        if op.startswith("ds_"):
            self.kind = "ds"
            if op.startswith(("ds_read", "ds_bpermute", "ds_permute", "ds_swizzle")) or "_rtn" in op:
                self.dst = R[0]; self.src = set().union(*R[1:])
            else:
                self.src = set().union(*R)
            return
        if op.startswith("s_"):
            self.kind = "salu"
            if op.startswith(("s_cmp", "s_cbranch", "s_branch", "s_waitcnt", "s_barrier", "s_endpgm", "s_sleep", "s_setprio", "s_bitcmp")):
                self.src = set().union(*R) if R else set()
            else:
                self.dst = R[0] if R else set(); self.src = set().union(*R[1:]) if len(R) > 1 else set()
                if "saveexec" in op: self.dst |= regs_of("exec")
            return
        raise ValueError("unknown instr " + text)

def need(p, c):
    n = 0
    pv = {r for r in p.dst if r[0] in "va"}
    ps = {r for r in p.dst if r[0] == "s"}
    if p.kind == "valu":
        if c.kind == "valu":
            if c.dpp and (pv & c.dppsrc): n = max(n, 2)
            if c.op.startswith("v_permlane") and (pv & c.src): n = max(n, 2)
            if c.op.startswith(("v_readlane", "v_readfirstlane")) and (pv & c.src): n = max(n, 1)
            if p.op.replace("_e32", "").replace("_e64", "") in TRANS and (pv & c.src): n = max(n, 1)
            if "sdwa" in p.op and (pv & (c.src | c.dst)): n = max(n, 1)
            cs = set(c.src)
            if c.op.startswith("v_cndmask") and len(c.ops) == 4: cs |= regs_of(c.ops[3])
            if ps & cs:
                n = max(n, 4 if c.op.startswith(("v_readlane", "v_writelane")) else 2)
            if (ps & regs_of("exec")):
                n = max(n, 5 if c.dpp else (4 if c.op.startswith(("v_readlane", "v_readfirstlane", "v_writelane", "v_permlane")) else 0))
        if c.kind == "mfma":
            if pv & c.src: n = max(n, 2)
            if ps & regs_of("exec"): n = max(n, 4)
        if c.kind == "vmem" and (ps & c.src): n = max(n, 5)
        if c.kind == "salu" and (ps & c.src) and not c.op.startswith("s_cbranch"): n = max(n, 1)
    if p.kind == "mfma":
        big = {4: 8, 8: 12}[p.passes]
        if c.kind == "mfma":
            if pv & c.srcAB: n = max(n, big)
            if pv & c.srcC and not (c.srcC == p.dst and c.passes == p.passes): n = max(n, {4: 6, 8: 10}[p.passes])
            elif (pv & c.dst) and not (pv & c.srcC): n = max(n, big)
        elif c.kind in ("valu", "vmem", "ds"):
            if pv & (c.src | c.dst): n = max(n, big)
            if c.kind == "valu" and (p.srcC & c.dst): n = max(n, {4: 3, 8: 7}[p.passes])
    if p.kind == "vmem" and p.sdata:
        if c.kind in ("valu", "mfma") and (p.sdata & c.dst): n = max(n, 2)
        elif p.sdata & c.dst: n = max(n, 1)
    return n

class Asm:
    def __init__(self):
        self.lines = []
    def __call__(self, text):
        for t in text.strip("\n").split("\n"):
            t = t.strip()
            if t: self.lines.append(t)
    def label(self, name): self.lines.append(name + ":")
    def finish(self):
        ins = [Ins(t) for t in self.lines]
        out = []
        W = 14
        for c in ins:
            if c.kind != "none":
                dist = 0; req = 0
                for p in reversed(out):
                    if p.kind == "none": continue
                    if p.op in ("s_branch", "s_endpgm", "s_setpc_b64"): break
                    r = need(p, c) - dist
                    req = max(req, r)
                    dist += p.states
                    if dist >= W: break
                if req > 0:
                    out.append(Ins(f"s_nop {req - 1}"))
            out.append(c)
        labels = {o.text.split(":")[0]: i for i, o in enumerate(out) if o.is_label}
        errs = []
        for i, b in enumerate(out):
            if b.op.startswith(("s_cbranch", "s_branch")):
                tgt = labels[b.ops[0]]
                pre = [o for o in out[max(0, i - 2 * W): i + 1] if o.kind != "none"]
                for k in range(len(pre) - 2, -1, -1):
                    if pre[k].op in ("s_branch", "s_endpgm"): pre = pre[k + 1:]; break
                post = []
                for o in out[tgt: tgt + 2 * W]:
                    if o.kind == "none": continue
                    post.append(o)
                    if o.op in ("s_branch", "s_endpgm"): break
                d0 = 0
                for c in post:
                    dist = d0
                    for p in reversed(pre):
                        if need(p, c) > dist: errs.append(f"branch hazard: [{p.text}] -> {b.text} -> [{c.text}] need {need(p, c)} have {dist}")
                        dist += p.states
                        if dist >= W: break
                    d0 += c.states
                    if d0 >= W: break
        if errs: raise RuntimeError("\n".join(errs))
        self.maxv = max([r[1] for o in out for r in (o.dst | o.src) if r[0] == "v"] + [0])
        self.maxs = max([r[1] for o in out for r in (o.dst | o.src) if r[0] == "s" and r[1] < 102] + [0])
        return "\n".join(("" if (o.is_label or o.is_dir) else "    ") + o.text for o in out) + "\n"
```

```python
import sys
sys.path.insert(0, "gen")
from asmlib import Asm

KNAME = "sequential_preLN__gqa_block_cached__glu_gated_bilinear__decode_kernel"
HEADER = open("sequential_preLN__gqa_block_cached__glu_gated_bilinear__decode.s.ref").read().split("; Override launch")[0]

QBUF, OBUF, MLBUF, HBUF, YBUF, WS_END = 0x1000, 0x10000, 0x90000, 0xA0000, 0xB0000, 0xD0000
PROF = 0x100000
L_OM, L_ML, L_QRED, L_QF, L_TK, L_RED, L_HL, L_END = 0, 0x4000, 0x4200, 0x4A00, 0x4E00, 0x5000, 0x7000, 0x7800
DPPF = "row_mask:0xf bank_mask:0xf"
SPIN = 1 << 20

def gen(R=3, prof=False, wq_nt=True):
    A = Asm()
    RING = 56
    nst = [0]
    def stamp(i):
        if prof: A(f"s_memrealtime s[{80+2*i}:{81+2*i}]")
    def rr4(a, b, c, d):
        A(f"v_permlane32_swap_b32 v{a}, v{b}")
        A(f"v_permlane32_swap_b32 v{c}, v{d}")
        A(f"v_add_f32 v{a}, v{a}, v{b}")
        A(f"v_add_f32 v{c}, v{c}, v{d}")
        A(f"v_permlane16_swap_b32 v{a}, v{c}")
        A(f"v_add_f32 v{a}, v{a}, v{c}")
    def rows_all(x, t, op):
        A(f"v_mov_b32 v{t}, v{x}")
        A(f"v_permlane32_swap_b32 v{x}, v{t}")
        A(f"{op} v{x}, v{x}, v{t}")
        A(f"v_mov_b32 v{t}, v{x}")
        A(f"v_permlane16_swap_b32 v{x}, v{t}")
        A(f"{op} v{x}, v{x}, v{t}")
    def dpp(op, d, s, o, ctl): A(f"{op}_dpp v{d}, v{s}, v{o} {ctl} {DPPF}")
    def quad_all(x, op):
        dpp(op, x, x, x, "quad_perm:[1,0,3,2]"); dpp(op, x, x, x, "quad_perm:[2,3,0,1]")
    def wave_all(x, t, op):
        quad_all(x, op); dpp(op, x, x, x, "row_ror:8"); dpp(op, x, x, x, "row_ror:4"); rows_all(x, t, op)
    def rbf(d, s): A(f"v_cvt_pk_bf16_f32 v{d}, 0, v{s}")
    def ln_stats(vals, mean, rinv, t):
        A(f"v_add_f32 v{mean}, v{vals[0]}, v{vals[1]}")
        A(f"v_add_f32 v{t}, v{vals[2]}, v{vals[3]}")
        A(f"v_add_f32 v{rinv}, v{vals[4]}, v{vals[5]}")
        A(f"v_add_f32 v{mean}, v{mean}, v{t}")
        A(f"v_add_f32 v{t}, v{vals[6]}, v{vals[7]}")
        A(f"v_add_f32 v{rinv}, v{rinv}, v{t}")
        A(f"v_add_f32 v{mean}, v{mean}, v{rinv}")
        wave_all(mean, t, "v_add_f32")
        A(f"v_mul_f32 v{mean}, 0x3b000000, v{mean}")
        for v in vals: A(f"v_sub_f32 v{v}, v{v}, v{mean}")
        A(f"v_mul_f32 v{rinv}, v{vals[0]}, v{vals[0]}")
        A(f"v_mul_f32 v{t}, v{vals[1]}, v{vals[1]}")
        for k in range(2, 8, 2):
            A(f"v_fmac_f32 v{rinv}, v{vals[k]}, v{vals[k]}")
            A(f"v_fmac_f32 v{t}, v{vals[k+1]}, v{vals[k+1]}")
        A(f"v_add_f32 v{rinv}, v{rinv}, v{t}")
        wave_all(rinv, t, "v_add_f32")
        A(f"v_mul_f32 v{rinv}, 0x3b000000, v{rinv}")
        rbf(mean, mean)
        rbf(rinv, rinv)
        A(f"v_add_f32 v{rinv}, 0x37280000, v{rinv}")
        rbf(rinv, rinv)
        A(f"v_sqrt_f32 v{rinv}, v{rinv}")
        rbf(rinv, rinv)
        A(f"v_rcp_f32 v{rinv}, v{rinv}")
    def norm_frags(vals, mean, rinv, F):
        for v in vals: A(f"v_sub_f32 v{v}, v{v}, v{mean}")
        for v in vals: rbf(v, v)
        for v in vals: A(f"v_mul_f32 v{v}, v{v}, v{rinv}")
        for v in vals: A(f"v_cvt_pk_bf16_f32 v{v}, v{v}, v{v}")
        for i, v in enumerate(vals):
            A(f"v_and_b32 v{F+2*i}, v{v}, v4")
            A(f"v_and_b32 v{F+2*i+1}, v{v}, v5")
    def srd(d, lo, hi, n):
        A(f"s_mov_b32 s{d}, s{lo}"); A(f"s_mov_b32 s{d+1}, s{hi}"); A(f"s_mov_b32 s{d+2}, {hex(n)}"); A(f"s_mov_b32 s{d+3}, 0x20000")
    def untag_check(regs, acc, retry_label, name, mask=0xff, tagof=lambda k: 53 + (k & 3)):
        for k, r in enumerate(regs): A(f"v_xor_b32 v{r}, s{tagof(k)}, v{r}")
        A(f"v_or3_b32 v{acc}, v{regs[0]}, v{regs[1]}, v{regs[2]}")
        rest = regs[3:]
        while len(rest) >= 2:
            A(f"v_or3_b32 v{acc}, v{acc}, v{rest[0]}, v{rest[1]}"); rest = rest[2:]
        if rest: A(f"v_or_b32 v{acc}, v{acc}, v{rest[0]}")
        A(f"v_and_b32 v{acc}, {hex(mask)}, v{acc}")
        A(f"v_cmp_ne_u32 vcc, 0, v{acc}")
        A(f"s_cbranch_vccz {name}_ok")
        A("s_sub_u32 s72, s72, 1")
        A("s_cbranch_scc1 L_end")
        A("s_sleep 1")
        A(f"s_branch {retry_label}")
        A.label(f"{name}_ok")

    A("s_cmp_ge_u32 s2, 256")
    A("s_cbranch_scc1 L_exit")
    A("s_load_dwordx16 s[4:19], s[0:1], 0")
    A("s_load_dwordx8 s[20:27], s[0:1], 64")
    stamp(0)
    A("v_and_b32 v1, 63, v0")
    A("v_lshrrev_b32 v44, 6, v0")
    A("v_lshlrev_b32 v3, 4, v1")
    A("v_readfirstlane_b32 s3, v44")
    A("v_bfe_u32 v45, v1, 2, 2")
    A("v_lshrrev_b32 v46, 4, v1")
    A("v_and_b32 v47, 3, v1")
    A("v_lshlrev_b32 v2, 8, v45")
    A("v_lshl_add_u32 v2, v46, 6, v2")
    A("v_lshl_add_u32 v2, v47, 4, v2")
    A("v_lshrrev_b32 v48, 2, v1")
    A("v_lshlrev_b32 v50, 15, v48")
    A("v_lshl_add_u32 v50, v47, 3, v50")
    A("v_lshlrev_b32 v51, 3, v48")
    A("s_mov_b32 s60, 0x22222222"); A("s_mov_b32 s61, 0x22222222")
    A("s_mov_b32 s62, 0x44444444"); A("s_mov_b32 s63, 0x44444444")
    A("s_mov_b32 s64, 0x88888888"); A("s_mov_b32 s65, 0x88888888")
    A("s_mov_b32 s74, 0x3db504f3"); A("s_mov_b32 s75, 0x3fb8aa3b")
    A(f"s_mov_b32 s72, {SPIN}")
    A("s_mov_b32 s70, 0x80000")
    A("s_lshr_b32 s76, s2, 5"); A("s_lshl_b32 s76, s76, 9")
    A("s_and_b32 s71, s2, 7"); A("s_lshl_b32 s71, s71, 6"); A("s_add_u32 s76, s76, s71")
    A("s_bfe_u32 s71, s2, 0x20003"); A("s_lshl_b32 s71, s71, 4"); A("s_add_u32 s76, s76, s71")
    A("s_lshl_b32 s77, s3, 19"); A("s_lshl_b32 s71, s76, 1"); A("s_add_u32 s77, s77, s71")
    A("s_lshl_b32 s78, s3, 7")
    for s in range(R):
        A(f"s_lshl_b32 s{66+s}, s3, 12")
        if s: A(f"s_add_u32 s{66+s}, s{66+s}, {s*8*4096}")
    A("s_lshl_b32 s71, s2, 19")
    A("s_waitcnt lgkmcnt(0)")
    A("s_load_dword s52, s[26:27], 0")
    srd(48, 4, 5, 1024)
    srd(40, 10, 11, 4 << 20)
    A("buffer_load_dwordx4 v[52:55], v3, s[48:51], 0 offen")
    A("buffer_load_dwordx2 v[48:49], v51, s[48:51], s78 offen")
    nt = " nt" if wq_nt else ""
    for i in range(4):
        A(f"buffer_load_dwordx2 v[{20+2*i}:{21+2*i}], v50, s[40:43], s77 offen{nt}")
        if i < 3: A("s_add_u32 s77, s77, 8192")
    A("s_add_u32 s28, s6, s71"); A("s_addc_u32 s29, s7, 0"); A("s_mov_b32 s30, 0x80000"); A("s_mov_b32 s31, 0x20000")
    A("s_add_u32 s32, s8, s71"); A("s_addc_u32 s33, s9, 0"); A("s_mov_b32 s34, 0x80000"); A("s_mov_b32 s35, 0x20000")
    srd(36, 26, 27, WS_END if not prof else PROF + 0x20000)
    def issueK(s):
        for j in range(4):
            r = RING + 32 * s + 4 * j
            A(f"buffer_load_dwordx4 v[{r}:{r+3}], v2, s[28:31], s{66+s} offen offset:{1024*j} nt")
    def issueV(s):
        for j in range(4):
            r = RING + 32 * s + 16 + 4 * j
            A(f"buffer_load_dwordx4 v[{r}:{r+3}], v3, s[32:35], s{66+s} offen offset:{1024*j} nt")
    A("s_cmp_eq_u32 s3, 7")
    A("s_cbranch_scc1 L_p7")
    issueK(0); issueV(0)
    A("s_waitcnt vmcnt(12)")
    A("s_branch L_pj")
    A.label("L_p7")
    A("s_setprio 3")
    A(f"v_mov_b32 v44, {L_TK}")
    A(f"v_mov_b32 v45, {8*R*4096}")
    A("ds_write_b32 v44, v45")
    A("s_waitcnt vmcnt(4)")
    A.label("L_pj")
    A("v_mov_b32 v44, 0xffff"); A("v_mov_b32 v45, 0xffff0000")
    A("v_mov_b32 v4, 0"); A("v_mov_b32 v5, 0")
    A("v_cmp_eq_u32 vcc, 0, v47")
    A("v_cndmask_b32 v4, v4, v44, vcc")
    A("v_cndmask_b32 v4, v4, v45, s[60:61]")
    A("v_cndmask_b32 v5, v5, v44, s[62:63]")
    A("v_cndmask_b32 v5, v5, v45, s[64:65]")
    for k in range(4):
        A(f"v_lshlrev_b32 v{36+2*k}, 16, v{52+k}")
        A(f"v_and_b32 v{37+2*k}, 0xffff0000, v{52+k}")
    ln_stats(list(range(36, 44)), 44, 45, 51)
    A("v_lshlrev_b32 v52, 16, v48"); A("v_and_b32 v53, 0xffff0000, v48")
    A("v_lshlrev_b32 v54, 16, v49"); A("v_and_b32 v55, 0xffff0000, v49")
    norm_frags([52, 53, 54, 55], 44, 45, 36)
    for r in range(10, 18): A(f"v_mov_b32 v{r}, 0")
    A("v_mov_b32 v18, 0xff7fffff"); A("v_mov_b32 v19, 0")
    A("s_cmp_eq_u32 s3, 7")
    A("s_cbranch_scc1 L_p7b")
    A("s_waitcnt vmcnt(8)")
    A("s_branch L_pjb")
    A.label("L_p7b")
    A("s_waitcnt vmcnt(0)")
    A.label("L_pjb")
    for i in range(4):
        c = "0" if i == 0 else "v[28:31]"
        A(f"v_mfma_f32_16x16x16_bf16 v[28:31], v[{36+2*i}:{37+2*i}], v[{20+2*i}:{21+2*i}], {c}")
    A("s_lshl_b32 s71, s3, 8"); A(f"s_add_u32 s71, s71, {L_QRED}")
    A("v_lshlrev_b32 v44, 6, v46"); A("v_lshl_add_u32 v44, v47, 4, v44"); A("v_add_u32 v44, s71, v44")
    A("s_mov_b32 exec_lo, 0x00f0000f"); A("s_mov_b32 exec_hi, 0xf0000f00")
    A("ds_write_b128 v44, v[28:31]")
    A("s_mov_b64 exec, -1")
    A("s_waitcnt lgkmcnt(0)")
    A("s_add_u32 s52, s52, 0x9e3779b9")
    A("s_and_b32 s53, s52, 0xff"); A("s_bfe_u32 s54, s52, 0x80008"); A("s_bfe_u32 s55, s52, 0x80010"); A("s_lshr_b32 s56, s52, 24")
    A("s_and_b32 s57, s52, 0xffff"); A("s_lshr_b32 s58, s52, 16")
    A("s_barrier")
    stamp(1)
    A("s_cmp_eq_u32 s3, 7")
    A("s_cbranch_scc1 L_q7")
    for s in range(1, R): issueK(s); issueV(s)
    A("s_barrier")
    A("s_branch L_qj")
    A.label("L_q7")
    A("v_lshrrev_b32 v44, 2, v1"); A("v_lshlrev_b32 v44, 7, v44"); A("v_lshl_add_u32 v44, v47, 4, v44")
    A(f"ds_read_b128 v[20:23], v44 offset:{L_QRED}")
    A(f"ds_read_b128 v[24:27], v44 offset:{L_QRED+64}")
    A("v_and_b32 v45, 1, v46"); A("v_lshlrev_b32 v45, 1, v45"); A("v_lshrrev_b32 v48, 1, v46"); A("v_or_b32 v45, v45, v48")
    A("v_lshl_add_u32 v45, v47, 2, v45"); A("v_lshlrev_b32 v45, 2, v45")
    A("v_mov_b32 v49, s57"); A("v_mov_b32 v51, s58")
    A("v_cmp_eq_u32 vcc, 0, v48")
    A("v_cndmask_b32 v49, v51, v49, vcc")
    A("s_lshl_b32 s71, s76, 2"); A(f"s_add_u32 s71, s71, {QBUF}")
    A("s_waitcnt lgkmcnt(0)")
    for k in range(4): A(f"v_add_f32 v{20+k}, v{20+k}, v{24+k}")
    rr4(20, 21, 22, 23)
    dpp("v_add_f32", 20, 20, 20, "row_ror:8"); dpp("v_add_f32", 20, 20, 20, "row_ror:4")
    rbf(20, 20)
    A("v_or_b32 v20, v20, v49")
    A("s_mov_b32 exec_lo, 0x000f000f"); A("s_mov_b32 exec_hi, 0x000f000f")
    A("buffer_store_dword v20, v45, s[36:39], s71 offen sc1")
    A("s_mov_b64 exec, -1")
    stamp(2)
    A("v_lshlrev_b32 v44, 1, v2")
    A("s_lshr_b32 s71, s2, 5"); A("s_lshl_b32 s71, s71, 11"); A(f"s_add_u32 s71, s71, {QBUF}")
    A("s_mov_b32 s73, 0x07060302")
    A.label("L_qpoll")
    A("buffer_load_dwordx4 v[20:23], v44, s[36:39], s71 offen sc1")
    A("buffer_load_dwordx4 v[24:27], v44, s[36:39], s71 offen offset:16 sc1")
    A("s_waitcnt vmcnt(0)")
    untag_check(list(range(20, 28)), 45, "L_qpoll", "L_q", mask=0xffff, tagof=lambda k: 57 + (k & 1))
    for k in range(4): A(f"v_perm_b32 v{6+k}, v{21+2*k}, v{20+2*k}, s73")
    A(f"ds_write_b128 v3, v[6:9] offset:{L_QF}")
    A("s_waitcnt lgkmcnt(0)")
    A("s_barrier")
    A("s_setprio 0")
    for s in range(R): issueK(s); issueV(s)
    A.label("L_qj")
    A(f"ds_read_b128 v[6:9], v3 offset:{L_QF}")
    A(f"v_mov_b32 v52, {L_TK}"); A("v_mov_b32 v53, 4096")
    stamp(3)
    NW = (2 * R - 1) * 4
    A.label("L_loop")
    for s in range(R):
        KB = RING + 32 * s; VB = KB + 16
        A(f"s_cmp_ge_u32 s{66+s}, s70")
        A("s_cbranch_scc1 L_done")
        A("s_mov_b64 exec, 1")
        A("ds_add_rtn_u32 v54, v52, v53")
        A("s_mov_b64 exec, -1")
        A(f"s_waitcnt vmcnt({NW}) lgkmcnt(0)")
        A(f"v_readfirstlane_b32 s{66+s}, v54")
        for j in range(4):
            A(f"v_mfma_f32_16x16x32_bf16 v[{20+4*j}:{23+4*j}], v[{KB+4*j}:{KB+4*j+3}], v[6:9], 0")
        A(f"s_min_u32 s{66+s}, s{66+s}, s70")
        issueK(s)
        D = lambda j, r: 20 + 4 * (j & 3) + r
        for rho in range(4): A(f"v_cndmask_b32 v{44+rho}, v{D(rho,0)}, v{D(rho+1,1)}, s[60:61]")
        for rho in range(4): A(f"v_cndmask_b32 v{44+rho}, v{44+rho}, v{D(rho+2,2)}, s[62:63]")
        for rho in (1, 2, 3, 0): A(f"v_cndmask_b32 v{44+rho}, v{44+rho}, v{D(rho+3,3)}, s[64:65]")
        for rho in range(1, 4):
            qp = ",".join(str((u - rho) & 3) for u in range(4))
            dpp("v_add_f32", 44, 44 + rho, 44, f"quad_perm:[{qp}]")
        rbf(44, 44)
        A("v_mul_f32 v44, s74, v44")
        rbf(44, 44)
        A("v_mul_f32 v44, s75, v44")
        A("v_cmp_gt_f32 vcc, v44, v18")
        A(f"s_cbranch_vccz L_nors{s}")
        A("v_max_f32 v45, v44, v18")
        quad_all(45, "v_max_f32")
        rows_all(45, 46, "v_max_f32")
        A("v_sub_f32 v46, v18, v45")
        A("v_exp_f32 v46, v46")
        A("v_mov_b32 v18, v45")
        A("v_mul_f32 v19, v19, v46")
        for h in range(4): A(f"v_mov_b32_dpp v47, v46 row_newbcast:{4*h} row_mask:{hex(1<<h)} bank_mask:0xf")
        for r in range(10, 18): A(f"v_mul_f32 v{r}, v{r}, v47")
        A.label(f"L_nors{s}")
        A("v_sub_f32 v44, v44, v18")
        A("v_exp_f32 v44, v44")
        A("v_cvt_pk_bf16_f32 v45, v44, v44")
        A("v_add_f32 v19, v19, v44")
        for j in range(4):
            dpp("v_and_b32", 36 + 2 * j, 45, 4, f"quad_perm:[{j},{j},{j},{j}]")
            dpp("v_and_b32", 37 + 2 * j, 45, 5, f"quad_perm:[{j},{j},{j},{j}]")
        A(f"s_waitcnt vmcnt({NW})")
        for j in range(4):
            A(f"v_mfma_f32_16x16x16_bf16 v[10:13], v[{36+2*j}:{37+2*j}], v[{VB+4*j}:{VB+4*j+1}], v[10:13]")
            A(f"v_mfma_f32_16x16x16_bf16 v[14:17], v[{36+2*j}:{37+2*j}], v[{VB+4*j+2}:{VB+4*j+3}], v[14:17]")
        issueV(s)
    A("s_branch L_loop")
    A.label("L_done")
    stamp(4)
    A("v_lshrrev_b32 v46, 4, v1"); A("v_and_b32 v47, 3, v1"); A("v_bfe_u32 v45, v1, 2, 2")
    A("v_and_b32 v48, 1, v46"); A("v_lshlrev_b32 v48, 1, v48"); A("v_lshrrev_b32 v49, 1, v46"); A("v_or_b32 v48, v48, v49")
    A("s_cmp_ge_u32 s2, 128")
    A("s_cbranch_scc1 L_w2")
    srd(40, 12, 13, 4 << 20)
    A("s_and_b32 s76, s2, 15"); A("s_lshr_b32 s77, s2, 4")
    A("s_lshl_b32 s71, s76, 18"); A("s_lshl_b32 s73, s3, 15"); A("s_add_u32 s71, s71, s73")
    A("s_lshl_b32 s73, s77, 7"); A("s_add_u32 s71, s71, s73")
    A("v_bfe_u32 v49, v1, 3, 1"); A("v_lshl_add_u32 v49, v49, 4, v48"); A("v_lshlrev_b32 v49, 10, v49")
    A("v_and_b32 v50, 7, v1"); A("v_lshl_add_u32 v49, v50, 4, v49")
    for i in range(4):
        A(f"buffer_load_dwordx4 v[{RING+4*i}:{RING+4*i+3}], v49, s[40:43], s71 offen nt")
        if i < 3: A("s_add_u32 s71, s71, 4096")
    A("s_branch L_wj")
    A.label("L_w2")
    A("s_cmp_ge_u32 s2, 184")
    A("s_cbranch_scc1 L_wj")
    A("s_sub_u32 s71, s2, 128"); A("s_and_b32 s76, s71, 7"); A("s_mul_i32 s76, s76, 7"); A("s_lshr_b32 s71, s71, 3"); A("s_add_u32 s76, s76, s71")
    srd(40, 16, 17, 512 * 3584); srd(44, 18, 19, 512 * 3584)
    A("v_and_b32 v50, 15, v1"); A("v_lshl_add_u32 v50, v50, 2, v48"); A("v_lshlrev_b32 v51, 1, v50")
    A("s_lshl_b32 s71, s3, 7")
    A("buffer_load_ushort v120, v51, s[48:51], s71 offen")
    A("v_lshrrev_b32 v49, 2, v1"); A(f"v_mul_u32_u24 v49, {4*3584}, v49"); A("v_lshl_add_u32 v49, v47, 4, v49")
    A(f"s_mul_i32 s71, s3, {64*3584}"); A("s_lshl_b32 s73, s76, 6"); A("s_add_u32 s71, s71, s73")
    for i in range(4):
        A(f"buffer_load_dwordx4 v[{RING+4*i}:{RING+4*i+3}], v49, s[40:43], s71 offen nt")
        A(f"buffer_load_dwordx4 v[{RING+16+4*i}:{RING+16+4*i+3}], v49, s[44:47], s71 offen nt")
        if i < 3: A("s_add_u32 s71, s71, 3584")
    A("s_cmp_ge_u32 s3, 4")
    A("s_cbranch_scc1 L_wj")
    srd(28, 20, 21, 1792 * 1024)
    A("v_and_b32 v49, 15, v1"); A("v_lshlrev_b32 v49, 4, v49"); A("v_lshl_add_u32 v49, v48, 10, v49")
    A("s_lshl_b32 s71, s76, 15"); A("s_lshl_b32 s73, s3, 8"); A("s_add_u32 s71, s71, s73")
    for i in range(8):
        A(f"buffer_load_dwordx4 v[{RING+32+4*i}:{RING+32+4*i+3}], v49, s[28:31], s71 offen nt")
        if i < 7: A("s_add_u32 s71, s71, 4096")
    A.label("L_wj")
    quad_all(19, "v_add_f32")
    rows_all(19, 49, "v_add_f32")
    A("s_lshl_b32 s71, s3, 11")
    A("v_lshlrev_b32 v49, 5, v1"); A("v_add_u32 v49, s71, v49")
    A(f"ds_write_b128 v49, v[10:13] offset:{L_OM}")
    A(f"ds_write_b128 v49, v[14:17] offset:{L_OM+16}")
    A("s_lshl_b32 s71, s3, 3")
    A("v_lshlrev_b32 v49, 6, v45"); A("v_add_u32 v49, s71, v49")
    A(f"ds_write_b64 v49, v[18:19] offset:{L_ML}")
    A("s_waitcnt lgkmcnt(0)")
    A("s_barrier")
    stamp(5)
    A("s_cmp_ge_u32 s3, 2")
    A("s_cbranch_scc1 L_mj")
    A("v_lshrrev_b32 v49, 5, v0"); A("v_lshlrev_b32 v49, 6, v49")
    for k in range(4): A(f"ds_read_b128 v[{20+4*k}:{23+4*k}], v49 offset:{L_ML+16*k}")
    A("v_lshlrev_b32 v50, 4, v0")
    MO = max(124, RING + 32 * R)
    for w in range(8): A(f"ds_read_b128 v[{MO+4*w}:{MO+3+4*w}], v50 offset:{L_OM+2048*w}")
    A("s_waitcnt lgkmcnt(8)")
    A("v_max3_f32 v36, v20, v22, v24"); A("v_max3_f32 v36, v36, v26, v28"); A("v_max3_f32 v36, v36, v30, v32"); A("v_max_f32 v36, v36, v34")
    A("v_and_b32 v36, 0xffffff00, v36")
    for w in range(8): A(f"v_sub_f32 v{20+2*w}, v{20+2*w}, v36")
    for w in range(8): A(f"v_exp_f32 v{20+2*w}, v{20+2*w}")
    A("v_mul_f32 v37, v20, v21")
    for w in range(1, 8): A(f"v_fmac_f32 v37, v{20+2*w}, v{21+2*w}")
    A("s_waitcnt lgkmcnt(0)")
    for r in range(4): A(f"v_mul_f32 v{40+r}, v{MO+r}, v20")
    for w in range(1, 8):
        for r in range(4): A(f"v_fmac_f32 v{40+r}, v{MO+4*w+r}, v{20+2*w}")
    A("v_mov_b32 v51, 0xffffff00")
    for r in range(4): A(f"v_and_or_b32 v{40+r}, v{40+r}, v51, s{53+r}")
    A("v_or_b32 v36, s53, v36"); A("v_and_or_b32 v37, v37, v51, s54"); A("v_mov_b32 v38, s55"); A("v_mov_b32 v39, s56")
    A("s_lshr_b32 s71, s2, 5"); A("s_lshl_b32 s71, s71, 1"); A("s_add_u32 s71, s71, s3")
    A("s_and_b32 s73, s2, 31")
    A("s_lshl_b32 s78, s71, 15"); A("s_lshl_b32 s79, s73, 10"); A("s_add_u32 s78, s78, s79"); A(f"s_add_u32 s78, s78, {OBUF}")
    A("buffer_store_dwordx4 v[40:43], v3, s[36:39], s78 offen sc1")
    A("s_lshl_b32 s78, s71, 10"); A("s_lshl_b32 s79, s73, 4"); A("s_add_u32 s78, s78, s79"); A(f"s_add_u32 s78, s78, {MLBUF}")
    A("s_mov_b32 exec_lo, 1"); A("s_mov_b32 exec_hi, 1")
    A("buffer_store_dwordx4 v[36:39], v3, s[36:39], s78 offen sc1")
    A("s_mov_b64 exec, -1")
    A.label("L_mj")
    stamp(6)
    A("s_cmp_ge_u32 s2, 128")
    A("s_cbranch_scc1 L_role2")
    A("v_lshrrev_b32 v49, 3, v1"); A("v_and_b32 v50, 7, v1")
    A("v_lshlrev_b32 v51, 10, v49"); A("v_lshl_add_u32 v51, v50, 4, v51")
    A("v_lshlrev_b32 v52, 4, v49")
    A("s_lshl_b32 s78, s76, 15"); A("s_lshl_b32 s71, s3, 7"); A("s_add_u32 s78, s78, s71"); A(f"s_add_u32 s78, s78, {OBUF}")
    A("s_add_u32 s66, s78, 8192"); A("s_add_u32 s67, s78, 16384"); A("s_add_u32 s68, s78, 24576")
    A("s_lshl_b32 s79, s76, 10"); A("s_lshr_b32 s71, s3, 2"); A("s_lshl_b32 s71, s71, 9"); A("s_add_u32 s79, s79, s71"); A(f"s_add_u32 s79, s79, {MLBUF}")
    OB = 72; MB = 88
    A.label("L_h1poll")
    for j in range(4): A(f"buffer_load_dwordx4 v[{MB+4*j}:{MB+3+4*j}], v52, s[36:39], s79 offen offset:{128*j} sc1")
    for j, so in enumerate([78, 66, 67, 68]): A(f"buffer_load_dwordx4 v[{OB+4*j}:{OB+3+4*j}], v51, s[36:39], s{so} offen sc1")
    A("s_waitcnt vmcnt(0)")
    untag_check(list(range(OB, OB + 32)), 53, "L_h1poll", "L_h1")
    stamp(7)
    A(f"v_max3_f32 v20, v{MB}, v{MB+4}, v{MB+8}"); A(f"v_max_f32 v20, v20, v{MB+12}")
    dpp("v_max_f32", 20, 20, 20, "row_ror:8")
    rows_all(20, 21, "v_max_f32")
    for j in range(4): A(f"v_sub_f32 v{MB+4*j}, v{MB+4*j}, v20")
    for j in range(4): A(f"v_exp_f32 v{MB+4*j}, v{MB+4*j}")
    A(f"v_mul_f32 v21, v{MB}, v{MB+1}")
    for j in range(1, 4): A(f"v_fmac_f32 v21, v{MB+4*j}, v{MB+4*j+1}")
    for r in range(4): A(f"v_mul_f32 v{24+r}, v{OB+r}, v{MB}")
    for j in range(1, 4):
        for r in range(4): A(f"v_fmac_f32 v{24+r}, v{OB+4*j+r}, v{MB+4*j}")
    dpp("v_add_f32", 21, 21, 21, "row_ror:8")
    rows_all(21, 22, "v_add_f32")
    rr4(24, 25, 26, 27)
    A("v_rcp_f32 v21, v21")
    dpp("v_add_f32", 24, 24, 24, "row_ror:8")
    A("v_mul_f32 v24, v24, v21")
    A("v_cvt_pk_bf16_f32 v24, v24, v24")
    for i in range(4):
        dpp("v_and_b32", 36 + 2 * i, 24, 4, f"quad_perm:[{i},{i},{i},{i}]")
        dpp("v_and_b32", 37 + 2 * i, 24, 5, f"quad_perm:[{i},{i},{i},{i}]")
    for i in range(4):
        c0 = "0" if i == 0 else "v[10:13]"; c1 = "0" if i == 0 else "v[14:17]"
        A(f"v_mfma_f32_16x16x16_bf16 v[10:13], v[{36+2*i}:{37+2*i}], v[{RING+4*i}:{RING+4*i+1}], {c0}")
        A(f"v_mfma_f32_16x16x16_bf16 v[14:17], v[{36+2*i}:{37+2*i}], v[{RING+4*i+2}:{RING+4*i+3}], {c1}")
    A("v_bfe_u32 v49, v1, 3, 1"); A("v_lshlrev_b32 v49, 8, v49"); A("v_lshl_add_u32 v49, v50, 5, v49")
    A("s_lshl_b32 s71, s3, 9"); A("v_add_u32 v49, s71, v49")
    A("s_mov_b32 exec_lo, 0xff0000ff"); A("s_mov_b32 exec_hi, 0")
    A(f"ds_write_b128 v49, v[10:13] offset:{L_RED}")
    A(f"ds_write_b128 v49, v[14:17] offset:{L_RED+16}")
    A("s_mov_b64 exec, -1")
    A("s_waitcnt lgkmcnt(0)")
    A("s_barrier")
    A("s_cmp_lg_u32 s3, 0")
    A("s_cbranch_scc1 L_end")
    A("v_and_b32 v50, 15, v1"); A("v_lshlrev_b32 v49, 10, v46"); A("v_lshl_add_u32 v49, v50, 4, v49")
    for k in range(4): A(f"ds_read_b128 v[{20+4*k}:{23+4*k}], v49 offset:{L_RED+256*k}")
    A("v_lshlrev_b32 v51, 3, v48"); A("v_lshrrev_b32 v51, v51, s52"); A("v_and_b32 v51, 0xff, v51")
    A("v_lshl_add_u32 v50, v50, 2, v48"); A("v_lshlrev_b32 v50, 2, v50")
    A("s_lshl_b32 s71, s76, 11"); A("s_lshl_b32 s73, s77, 8"); A("s_add_u32 s71, s71, s73"); A(f"s_add_u32 s71, s71, {HBUF}")
    A("s_mov_b32 s73, 0xffffff00")
    A("s_waitcnt lgkmcnt(0)")
    for r in range(4): A(f"v_add_f32 v{20+r}, v{20+r}, v{24+r}")
    for r in range(4): A(f"v_add_f32 v{28+r}, v{28+r}, v{32+r}")
    for r in range(4): A(f"v_add_f32 v{20+r}, v{20+r}, v{28+r}")
    rr4(20, 21, 22, 23)
    A("v_and_or_b32 v20, v20, s73, v51")
    A("buffer_store_dword v20, v50, s[36:39], s71 offen sc1")
    stamp(8)
    A("s_branch L_end")
    A.label("L_role2")
    A("s_cmp_ge_u32 s2, 184")
    A("s_cbranch_scc1 L_end")
    A("v_and_b32 v50, 15, v1"); A("v_lshlrev_b32 v51, 11, v46"); A("v_lshl_add_u32 v51, v50, 4, v51")
    A("s_lshl_b32 s78, s3, 8"); A(f"s_add_u32 s78, s78, {HBUF}")
    A("s_add_u32 s66, s78, 8192"); A("s_add_u32 s67, s78, 16384"); A("s_add_u32 s68, s78, 24576")
    A("v_lshl_add_u32 v52, v50, 2, v48"); A("v_lshlrev_b32 v52, 2, v52"); A("s_lshl_b32 s71, s3, 8"); A("v_add_u32 v52, s71, v52")
    A.label("L_h2poll")
    for j, so in enumerate([78, 66, 67, 68]): A(f"buffer_load_dwordx4 v[{20+4*j}:{23+4*j}], v51, s[36:39], s{so} offen sc1")
    A("s_waitcnt vmcnt(0)")
    untag_check(list(range(20, 36)), 53, "L_h2poll", "L_h2")
    stamp(7)
    for r in range(4): A(f"v_add_f32 v{20+r}, v{20+r}, v{24+r}")
    for r in range(4): A(f"v_add_f32 v{28+r}, v{28+r}, v{32+r}")
    for r in range(4): A(f"v_add_f32 v{20+r}, v{20+r}, v{28+r}")
    rr4(20, 21, 22, 23)
    A("v_lshlrev_b32 v120, 16, v120")
    rbf(20, 20)
    A("v_add_f32 v20, v20, v120")
    rbf(20, 20)
    A(f"ds_write_b32 v52, v20 offset:{L_HL}")
    A("v_lshlrev_b32 v49, 5, v1")
    A("v_lshrrev_b32 v51, 2, v1"); A("v_lshlrev_b32 v51, 4, v51"); A("v_add_u32 v51, s71, v51")
    A("s_waitcnt lgkmcnt(0)")
    A("s_barrier")
    A(f"ds_read_b128 v[20:23], v49 offset:{L_HL}")
    A(f"ds_read_b128 v[24:27], v49 offset:{L_HL+16}")
    A(f"ds_read_b128 v[28:31], v51 offset:{L_HL}")
    A("s_waitcnt lgkmcnt(1)")
    ln_stats(list(range(20, 28)), 32, 33, 34)
    A("s_waitcnt lgkmcnt(0)")
    norm_frags([28, 29, 30, 31], 32, 33, 36)
    for i in range(4):
        for m in range(2):
            for hl in range(2):
                acc = 20 + 8 * m + 4 * hl
                b = RING + 16 * m + 4 * i + 2 * hl
                c = "0" if i == 0 else f"v[{acc}:{acc+3}]"
                A(f"v_mfma_f32_16x16x16_bf16 v[{acc}:{acc+3}], v[{36+2*i}:{37+2*i}], v[{b}:{b+1}], {c}")
    A("v_lshlrev_b32 v49, 8, v46"); A("v_lshl_add_u32 v49, v47, 5, v49"); A("s_lshl_b32 s71, s3, 10"); A("v_add_u32 v49, s71, v49")
    A("s_mov_b32 exec_lo, 0x00f0000f"); A("s_mov_b32 exec_hi, 0xf0000f00")
    for m in range(2):
        for hl in range(2):
            acc = 20 + 8 * m + 4 * hl
            A(f"ds_write_b128 v49, v[{acc}:{acc+3}] offset:{L_RED+128*m+16*hl}")
    A("s_mov_b64 exec, -1")
    A("s_waitcnt lgkmcnt(0)")
    A("s_barrier")
    stamp(8)
    A("s_cmp_ge_u32 s3, 4")
    A("s_cbranch_scc1 L_fin")
    A("v_lshlrev_b32 v49, 11, v46"); A("v_lshl_add_u32 v49, v50, 4, v49")
    for k in range(8): A(f"ds_read_b128 v[{MO+4*k}:{MO+3+4*k}], v49 offset:{L_RED+256*k}")
    A("v_bfe_u32 v51, v1, 2, 1")
    A("v_cmp_eq_u32 vcc, 0, v51")
    A("v_cndmask_b32 v6, 0, v4, vcc"); A("v_cndmask_b32 v7, 0, v5, vcc")
    A("v_cndmask_b32 v8, v4, 0, vcc"); A("v_cndmask_b32 v9, v5, 0, vcc")
    A("v_and_b32 v51, 1, v46"); A("v_lshlrev_b32 v51, 4, v51"); A("v_lshl_add_u32 v51, v50, 5, v51")
    A("s_lshl_b32 s71, s76, 11"); A("s_lshl_b32 s73, s3, 9"); A("s_add_u32 s71, s71, s73"); A(f"s_add_u32 s71, s71, {YBUF}")
    A("v_mov_b32 v52, 0xffffff00")
    A("s_waitcnt lgkmcnt(0)")
    for st in (4, 2, 1):
        for k in range(st):
            for r in range(4): A(f"v_add_f32 v{MO+4*k+r}, v{MO+4*k+r}, v{MO+4*(k+st)+r}")
    rr4(MO, MO + 1, MO + 2, MO + 3)
    rbf(MO, MO)
    dpp("v_mul_f32", MO + 1, MO, MO, "row_ror:8")
    A(f"v_cvt_pk_bf16_f32 v{MO+1}, v{MO+1}, v{MO+1}")
    for i in range(8):
        F = 20 + 4 * (i & 3)
        for r in range(4): dpp("v_and_b32", F + r, MO + 1, 6 + r, f"row_newbcast:{i}")
        c = "0" if i == 0 else "v[10:13]"
        b = RING + 32 + 4 * i
        A(f"v_mfma_f32_16x16x32_bf16 v[10:13], v[{F}:{F+3}], v[{b}:{b+3}], {c}")
    for r in range(4): A(f"v_and_or_b32 v{10+r}, v{10+r}, v52, s{53+r}")
    A("s_mov_b32 exec_hi, 0")
    A("buffer_store_dwordx4 v[10:13], v51, s[36:39], s71 offen sc1")
    A("s_mov_b64 exec, -1")
    stamp(9)
    A("s_branch L_end")
    A.label("L_fin")
    A("s_cmp_lg_u32 s3, 4")
    A("s_cbranch_scc1 L_end")
    A("s_cmp_ge_u32 s76, 32")
    A("s_cbranch_scc1 L_end")
    A("v_lshrrev_b32 v51, 2, v1"); A("v_lshlrev_b32 v51, 11, v51"); A("v_lshl_add_u32 v51, v47, 4, v51")
    A("s_lshl_b32 s78, s76, 6"); A(f"s_add_u32 s78, s78, {YBUF}")
    A("s_add_u32 s66, s78, 32768"); A("s_add_u32 s67, s78, 65536"); A("s_add_u32 s68, s78, 98304")
    A("v_lshl_add_u32 v52, v47, 2, v48"); A("s_lshl_b32 s71, s76, 4"); A("v_add_u32 v52, s71, v52")
    A("v_lshlrev_b32 v49, 2, v52"); A("v_lshlrev_b32 v52, 1, v52")
    A(f"ds_read_b32 v50, v49 offset:{L_HL}")
    srd(40, 22, 23, 1024)
    A.label("L_h3poll")
    for r in range(4): A(f"v_mov_b32 v{32+r}, s{53+r}")
    for j, so in enumerate([78, 66, 67]): A(f"buffer_load_dwordx4 v[{20+4*j}:{23+4*j}], v51, s[36:39], s{so} offen sc1")
    A("s_mov_b32 exec_hi, 0")
    A("buffer_load_dwordx4 v[32:35], v51, s[36:39], s68 offen sc1")
    A("s_mov_b64 exec, -1")
    A("s_waitcnt vmcnt(0) lgkmcnt(0)")
    untag_check(list(range(20, 36)), 53, "L_h3poll", "L_h3")
    stamp(9)
    for r in range(4): A(f"v_add_f32 v{20+r}, v{20+r}, v{24+r}")
    for r in range(4): A(f"v_add_f32 v{28+r}, v{28+r}, v{32+r}")
    for r in range(4): A(f"v_add_f32 v{20+r}, v{20+r}, v{28+r}")
    rr4(20, 21, 22, 23)
    dpp("v_add_f32", 20, 20, 20, "row_ror:8"); dpp("v_add_f32", 20, 20, 20, "row_ror:4")
    rbf(20, 20)
    A("v_add_f32 v20, v20, v50")
    rbf(20, 20)
    A("s_mov_b32 exec_lo, 0x000f000f"); A("s_mov_b32 exec_hi, 0x000f000f")
    A("buffer_store_short_d16_hi v20, v52, s[40:43], 0 offen")
    A("s_mov_b64 exec, -1")
    A("s_cmp_lg_u32 s76, 0")
    A("s_cbranch_scc1 L_end")
    A("v_mov_b32 v21, s52"); A("v_mov_b32 v22, 0")
    A("s_mov_b64 exec, 1")
    A("buffer_store_dword v21, v22, s[36:39], 0 offen sc1")
    A("s_mov_b64 exec, -1")
    A.label("L_end")
    if prof:
        stamp(10)
        A("s_waitcnt lgkmcnt(0)")
        for i in range(11): A(f"v_writelane_b32 v20, s{80+2*i}, {i}")
        A("s_lshl_b32 s71, s2, 3"); A("s_add_u32 s71, s71, s3"); A("s_lshl_b32 s71, s71, 6"); A(f"s_add_u32 s71, s71, {PROF}")
        A("v_lshlrev_b32 v21, 2, v1")
        A("s_mov_b64 exec, 0xffff")
        A("buffer_store_dword v20, v21, s[36:39], s71 offen")
    A.label("L_exit")
    A("s_endpgm")
    body = A.finish()
    nv = max(A.maxv + 1, 136)
    txt = HEADER + f"; @launch grid=(256,1,1) block=(512,1,1) lds={L_END}\n"
    txt += f'.amdgcn_target "amdgcn-amd-amdhsa--gfx950"\n.text\n.globl {KNAME}\n.p2align 8\n.type {KNAME},@function\n{KNAME}:\n'
    txt += body
    txt += f'.section .rodata,"a"\n.p2align 6\n.amdhsa_kernel {KNAME}\n  .amdhsa_next_free_vgpr {nv}\n  .amdhsa_next_free_sgpr 102\n'
    txt += f"  .amdhsa_accum_offset {(nv+3)//4*4}\n  .amdhsa_group_segment_fixed_size 0\n  .amdhsa_kernarg_size 96\n  .amdhsa_user_sgpr_count 2\n"
    txt += "  .amdhsa_user_sgpr_kernarg_segment_ptr 1\n  .amdhsa_system_sgpr_workgroup_id_x 1\n  .amdhsa_float_denorm_mode_32 3\n.end_amdhsa_kernel\n"
    return txt

if __name__ == "__main__":
    import argparse
    p = argparse.ArgumentParser(); p.add_argument("-o"); p.add_argument("--prof", action="store_true"); p.add_argument("-R", type=int, default=3)
    a = p.parse_args()
    open(a.o, "w").write(gen(R=a.R, prof=a.prof))
```

```python
import sys, struct
sys.path.insert(0, "gen")
from asmlib import Asm

KNAME = "sequential_preLN__gqa_block_cached__glu_gated_bilinear__decode_kernel"
HEADER = open("sequential_preLN__gqa_block_cached__glu_gated_bilinear__decode.s.ref").read().split("; Override launch")[0]

QBUF, OBUF, MLBUF, HBUF, YBUF, CBUF, WS_END = 0x1000, 0x10000, 0x90000, 0xA0000, 0xB0000, 0xD0000, 0x100000
PROF = 0x100000
L_OM, L_ML, L_MX, L_QRED, L_QF, L_TK, L_ST, L_RED, L_HL, L_TB, L_END = 0, 0x4000, 0x4100, 0x4200, 0x4600, 0x4A00, 0x4B00, 0x5000, 0x6000, 0x6800, 0x7000
DPPF = "row_mask:0xf bank_mask:0xf"
SPIN = 1 << 20
fb = lambda x: hex(struct.unpack("<I", struct.pack("<f", float(x)))[0])

def gen(NX=3, prof=False, wq_nt=True, off1=4, off2=20, off3=8, wo_early=True, wd_early=True, thr1=24, slp1=4, qslp=4, pretouch=True, dyn=True, DP=192, LA=2, t8=96, t4=32, b0=8, cstride=4352, RS=2, remap=True):
    A = Asm()
    RA, RB, RX = 56, 88, 56 + 32 * RS
    ST = [(RA, 66), (RB, 67)][:RS]
    WGU, WD, WO = 120, 152, 120
    MO = 184
    TC = 216
    OOB = 0x1000000
    if not dyn: DP = 0
    TOT = 4096 - 4 * DP
    n0 = (TOT + 16 * off1 + 7 * off2 + 8 * off3) / 32
    import itertools
    best = None
    for d1, d2, d3 in itertools.product((0, 1), repeat=3):
        a1, a2, a3 = int(n0) - off1 + d1, int(n0) - off2 + d2, int(n0) - off3 + d3
        a4 = TOT - 16 * a1 - 7 * a2 - 8 * a3
        cost = (max(int(n0) + max(d1, d2, d3), a4), -a4)
        if best is None or cost < best[0]: best = (cost, a1, a2, a3, a4)
    _, n1, n2, n3, n4 = best
    def stamp(i):
        if prof: A(f"s_memrealtime s[{80+2*i}:{81+2*i}]")
    def rr4(a, b, c, d):
        A(f"v_permlane32_swap_b32 v{a}, v{b}")
        A(f"v_permlane32_swap_b32 v{c}, v{d}")
        A(f"v_add_f32 v{a}, v{a}, v{b}")
        A(f"v_add_f32 v{c}, v{c}, v{d}")
        A(f"v_permlane16_swap_b32 v{a}, v{c}")
        A(f"v_add_f32 v{a}, v{a}, v{c}")
    def rows_all(x, t, op):
        A(f"v_mov_b32 v{t}, v{x}")
        A(f"v_permlane32_swap_b32 v{x}, v{t}")
        A(f"{op} v{x}, v{x}, v{t}")
        A(f"v_mov_b32 v{t}, v{x}")
        A(f"v_permlane16_swap_b32 v{x}, v{t}")
        A(f"{op} v{x}, v{x}, v{t}")
    def dpp(op, d, s, o, ctl): A(f"{op}_dpp v{d}, v{s}, v{o} {ctl} {DPPF}")
    def quad_all(x, op):
        dpp(op, x, x, x, "quad_perm:[1,0,3,2]"); dpp(op, x, x, x, "quad_perm:[2,3,0,1]")
    def wave_all(x, t, op):
        quad_all(x, op); dpp(op, x, x, x, "row_ror:8"); dpp(op, x, x, x, "row_ror:4"); rows_all(x, t, op)
    def rbf(d, s): A(f"v_cvt_pk_bf16_f32 v{d}, 0, v{s}")
    def ln_fin(mean, var):
        rbf(var, var)
        rbf(mean, mean)
        A(f"v_add_f32 v{var}, 0x37280000, v{var}")
        rbf(var, var)
        A(f"v_sqrt_f32 v{var}, v{var}")
        rbf(var, var)
        A(f"v_rcp_f32 v{var}, v{var}")
    def ln_stats(vals, mean, rinv, t):
        A(f"v_add_f32 v{mean}, v{vals[0]}, v{vals[1]}")
        A(f"v_add_f32 v{t}, v{vals[2]}, v{vals[3]}")
        A(f"v_add_f32 v{rinv}, v{vals[4]}, v{vals[5]}")
        A(f"v_add_f32 v{mean}, v{mean}, v{t}")
        A(f"v_add_f32 v{t}, v{vals[6]}, v{vals[7]}")
        A(f"v_add_f32 v{rinv}, v{rinv}, v{t}")
        A(f"v_add_f32 v{mean}, v{mean}, v{rinv}")
        wave_all(mean, t, "v_add_f32")
        A(f"v_mul_f32 v{mean}, 0x3b000000, v{mean}")
        for v in vals: A(f"v_sub_f32 v{v}, v{v}, v{mean}")
        A(f"v_mul_f32 v{rinv}, v{vals[0]}, v{vals[0]}")
        A(f"v_mul_f32 v{t}, v{vals[1]}, v{vals[1]}")
        for k in range(2, 8, 2):
            A(f"v_fmac_f32 v{rinv}, v{vals[k]}, v{vals[k]}")
            A(f"v_fmac_f32 v{t}, v{vals[k+1]}, v{vals[k+1]}")
        A(f"v_add_f32 v{rinv}, v{rinv}, v{t}")
        wave_all(rinv, t, "v_add_f32")
        A(f"v_mul_f32 v{rinv}, 0x3b000000, v{rinv}")
        ln_fin(mean, rinv)
    def srd(d, lo, hi, n):
        A(f"s_mov_b32 s{d}, s{lo}"); A(f"s_mov_b32 s{d+1}, s{hi}"); A(f"s_mov_b32 s{d+2}, {hex(n)}"); A(f"s_mov_b32 s{d+3}, 0x20000")
    def spin(label, slp=0):
        A("s_sub_u32 s72, s72, 1")
        A("s_cbranch_scc1 L_end")
        if slp: A(f"s_sleep {slp}")
        A(f"s_branch {label}")
    def gather(name, groups, init_masks=None):
        for j in range(len(groups)):
            m = -1 if init_masks is None else init_masks[j]
            if m == -1: A(f"s_mov_b64 s[{4+2*j}:{5+2*j}], -1")
            else: A(f"s_mov_b32 s{4+2*j}, {hex(m & 0xffffffff)}"); A(f"s_mov_b32 s{5+2*j}, {hex(m >> 32)}")
        A.label(f"{name}_rnd")
        for j, g in enumerate(groups):
            A(f"s_mov_b64 exec, s[{4+2*j}:{5+2*j}]")
            A(f"s_cbranch_execz {name}_i{j}")
            for (r, va, so, imm) in g:
                A(f"buffer_load_dwordx4 v[{r}:{r+3}], v{va}, s[36:39], s{so} offen offset:{imm} sc1")
            A.label(f"{name}_i{j}")
        A("s_waitcnt vmcnt(0)")
        for j, g in enumerate(groups):
            A(f"s_mov_b64 exec, s[{4+2*j}:{5+2*j}]")
            A(f"s_cbranch_execz {name}_c{j}")
            regs = [r + k for (r, _, _, _) in g for k in range(4)]
            for k, r in enumerate(regs): A(f"v_xor_b32 v{r}, s{53+(k&3)}, v{r}")
            A(f"v_or3_b32 v55, v{regs[0]}, v{regs[1]}, v{regs[2]}")
            rest = regs[3:]
            while len(rest) >= 2:
                A(f"v_or3_b32 v55, v55, v{rest[0]}, v{rest[1]}"); rest = rest[2:]
            A(f"v_or_b32 v55, v55, v{rest[0]}")
            A("v_and_b32 v55, 0xff, v55")
            A(f"v_cmp_ne_u32 s[{4+2*j}:{5+2*j}], 0, v55")
            A.label(f"{name}_c{j}")
        A("s_or_b64 s[12:13], s[4:5], s[6:7]")
        A("s_or_b64 s[14:15], s[8:9], s[10:11]")
        A("s_mov_b64 exec, -1")
        A("s_or_b64 s[12:13], s[12:13], s[14:15]")
        A(f"s_cbranch_scc0 {name}_ok")
        spin(f"{name}_rnd")
        A.label(f"{name}_ok")
    def issueK(base, so):
        for j in range(4):
            r = base + 4 * j
            A(f"buffer_load_dwordx4 v[{r}:{r+3}], v2, s[28:31], s{so} offen offset:{1024*j} nt")
    def issueV(base, so):
        for j in range(4):
            r = base + 16 + 4 * j
            A(f"buffer_load_dwordx4 v[{r}:{r+3}], v3, s[32:35], s{so} offen offset:{1024*j} nt")
    def common_setup():
        A("s_mov_b32 s60, 0x22222222"); A("s_mov_b32 s61, 0x22222222")
        A("s_mov_b32 s62, 0x44444444"); A("s_mov_b32 s63, 0x44444444")
        A("s_mov_b32 s64, 0x88888888"); A("s_mov_b32 s65, 0x88888888")
        A("s_mov_b32 s74, 0x3db504f3"); A("s_mov_b32 s75, 0x3fb8aa3b")
        A(f"s_mov_b32 s72, {SPIN}")
        A("v_mov_b32 v44, 0xffff"); A("v_mov_b32 v45, 0xffff0000")
        A("v_mov_b32 v4, 0"); A("v_mov_b32 v5, 0")
        A("v_cmp_eq_u32 vcc, 0, v47")
        A("v_cndmask_b32 v4, v4, v44, vcc")
        A("v_cndmask_b32 v4, v4, v45, s[60:61]")
        A("v_cndmask_b32 v5, v5, v44, s[62:63]")
        A("v_cndmask_b32 v5, v5, v45, s[64:65]")
        for r in range(10, 18): A(f"v_mov_b32 v{r}, 0")
        A("v_mov_b32 v18, 0xff7fffff"); A("v_mov_b32 v19, 0")
    def tags():
        A("s_add_u32 s52, s52, 0x9e3779b9")
        A("s_and_b32 s53, s52, 0xff"); A("s_bfe_u32 s54, s52, 0x80008"); A("s_bfe_u32 s55, s52, 0x80010"); A("s_lshr_b32 s56, s52, 24")
        A("s_and_b32 s57, s52, 0xffff"); A("s_lshr_b32 s58, s52, 16")
    WSN = WS_END if not prof else PROF + 0x20000
    uid = [0]
    def chunk(base, so, refill, wait):
        KB, VB = base, base + 16
        uid[0] += 1; u = uid[0]
        if refill:
            A(f"s_cmp_ge_u32 s{so}, s30")
            A("s_cbranch_scc1 L_done")
            A("s_mov_b64 exec, 1")
            A("ds_add_rtn_u32 v54, v52, v53")
            A("s_mov_b64 exec, -1")
            A(f"s_waitcnt vmcnt({wait}) lgkmcnt(0)")
            A("v_readfirstlane_b32 s71, v54")
        for j in range(4):
            A(f"v_mfma_f32_16x16x32_bf16 v[{20+4*j}:{23+4*j}], v[{KB+4*j}:{KB+4*j+3}], v[6:9], 0")
        if refill:
            A(f"s_add_u32 s{so}, s71, s59")
            A("s_cmp_ge_u32 s71, s70")
            if dyn:
                A(f"s_cbranch_scc0 L_go{so}")
                A("s_getpc_b64 s[46:47]") if False else None
                A(f"s_mov_b32 s68, {so}")
                A("s_branch L_dyn")
                A.label(f"L_ret{so}")
                A(f"s_mov_b32 s{so}, s71")
                A.label(f"L_go{so}")
            else:
                A(f"s_cselect_b32 s{so}, s30, s{so}")
            issueK(base, so)
        D = lambda j, r: 20 + 4 * (j & 3) + r
        for rho in range(4): A(f"v_cndmask_b32 v{44+rho}, v{D(rho,0)}, v{D(rho+1,1)}, s[60:61]")
        for rho in range(4): A(f"v_cndmask_b32 v{44+rho}, v{44+rho}, v{D(rho+2,2)}, s[62:63]")
        for rho in (1, 2, 3, 0): A(f"v_cndmask_b32 v{44+rho}, v{44+rho}, v{D(rho+3,3)}, s[64:65]")
        for rho in range(1, 4):
            qp = ",".join(str((q - rho) & 3) for q in range(4))
            dpp("v_add_f32", 44, 44 + rho, 44, f"quad_perm:[{qp}]")
        rbf(44, 44)
        A("v_mul_f32 v44, s74, v44")
        rbf(44, 44)
        A("v_mul_f32 v44, s75, v44")
        A("v_cmp_gt_f32 vcc, v44, v18")
        A(f"s_cbranch_vccz L_nors{u}")
        A("v_max_f32 v45, v44, v18")
        quad_all(45, "v_max_f32")
        rows_all(45, 46, "v_max_f32")
        A("v_sub_f32 v46, v18, v45")
        A("v_exp_f32 v46, v46")
        A("v_mov_b32 v18, v45")
        A("v_mul_f32 v19, v19, v46")
        for h in range(4): A(f"v_mov_b32_dpp v47, v46 row_newbcast:{4*h} row_mask:{hex(1<<h)} bank_mask:0xf")
        for r in range(10, 18): A(f"v_mul_f32 v{r}, v{r}, v47")
        A.label(f"L_nors{u}")
        A("v_sub_f32 v44, v44, v18")
        A("v_exp_f32 v44, v44")
        A("v_cvt_pk_bf16_f32 v45, v44, v44")
        A("v_add_f32 v19, v19, v44")
        for j in range(4):
            dpp("v_and_b32", 36 + 2 * j, 45, 4, f"quad_perm:[{j},{j},{j},{j}]")
            dpp("v_and_b32", 37 + 2 * j, 45, 5, f"quad_perm:[{j},{j},{j},{j}]")
        if refill: A(f"s_waitcnt vmcnt({wait})")
        for j in range(4):
            A(f"v_mfma_f32_16x16x16_bf16 v[10:13], v[{36+2*j}:{37+2*j}], v[{VB+4*j}:{VB+4*j+1}], v[10:13]")
            A(f"v_mfma_f32_16x16x16_bf16 v[14:17], v[{36+2*j}:{37+2*j}], v[{VB+4*j+2}:{VB+4*j+3}], v[14:17]")
        if refill: issueV(base, so)
    def sum4x4():
        A("v_pk_add_f32 v[20:21], v[20:21], v[24:25]"); A("v_pk_add_f32 v[22:23], v[22:23], v[26:27]")
        A("v_pk_add_f32 v[28:29], v[28:29], v[32:33]"); A("v_pk_add_f32 v[30:31], v[30:31], v[34:35]")
        A("v_pk_add_f32 v[20:21], v[20:21], v[28:29]"); A("v_pk_add_f32 v[22:23], v[22:23], v[30:31]")
        rr4(20, 21, 22, 23)
    def load_wo():
        for i in range(4):
            A(f"buffer_load_dwordx4 v[{WO+4*i}:{WO+4*i+3}], v{TC+8}, s[40:43], s78 offen nt")
            if i < 3: A("s_add_u32 s78, s78, 4096")
    def load_wd():
        for i in range(8):
            A(f"buffer_load_dwordx4 v[{WD+4*i}:{WD+4*i+3}], v{TC+8}, s[40:43], s78 offen nt")
            if i < 7: A("s_add_u32 s78, s78, 4096")

    A("s_cmp_ge_u32 s2, 256")
    A("s_cbranch_scc1 L_exit")
    A("s_load_dwordx16 s[4:19], s[0:1], 0")
    A("s_load_dwordx8 s[20:27], s[0:1], 64")
    stamp(0)
    if remap:
        A("s_bfe_u32 s71, s2, 0x30003"); A("s_lshr_b32 s73, s2, 6"); A("s_sub_u32 s73, 3, s73"); A("s_and_b32 s2, s2, 7")
        A("s_lshl_b32 s71, s71, 5"); A("s_lshl_b32 s73, s73, 3"); A("s_or_b32 s2, s2, s71"); A("s_or_b32 s2, s2, s73")
    A("v_and_b32 v1, 63, v0")
    A("v_lshrrev_b32 v44, 6, v0")
    A("v_lshlrev_b32 v3, 4, v1")
    A("v_readfirstlane_b32 s3, v44")
    A("v_bfe_u32 v45, v1, 2, 2")
    A("v_lshrrev_b32 v46, 4, v1")
    A("v_and_b32 v47, 3, v1")
    A("v_lshlrev_b32 v2, 8, v45")
    A("v_lshl_add_u32 v2, v46, 6, v2")
    A("v_lshl_add_u32 v2, v47, 4, v2")
    A("s_and_b32 s79, s2, 31")
    A(f"s_mul_i32 s59, s79, {n1*4096}"); A(f"s_mov_b32 s70, {n1*4096}")
    A("s_cmp_lt_u32 s79, 16"); A("s_cbranch_scc1 L_rng")
    A(f"s_mul_i32 s59, s79, {n2*4096}"); A(f"s_add_u32 s59, s59, {16*(n1-n2)*4096}"); A(f"s_mov_b32 s70, {n2*4096}")
    A("s_cmp_lt_u32 s79, 23"); A("s_cbranch_scc1 L_rng")
    A(f"s_mov_b32 s59, {(16*n1+7*n2)*4096}"); A(f"s_mov_b32 s70, {n4*4096}")
    A("s_cmp_eq_u32 s79, 23"); A("s_cbranch_scc1 L_rng")
    A(f"s_mul_i32 s59, s79, {n3*4096}"); A(f"s_add_u32 s59, s59, {hex(((16*n1+7*n2+n4-24*n3)*4096) & 0xffffffff)}"); A(f"s_mov_b32 s70, {n3*4096}")
    A.label("L_rng")
    if dyn: A(f"s_sub_u32 s70, s70, {LA*4096}")
    A("s_lshl_b32 s66, s3, 12"); A("s_add_u32 s66, s66, s59"); A(f"s_add_u32 s67, s66, {8*4096}")
    A("s_lshr_b32 s71, s2, 5"); A("s_lshl_b32 s71, s71, 24")
    A(f"s_mov_b32 s30, {OOB}"); A("s_mov_b32 s31, 0x20000"); A(f"s_mov_b32 s34, {OOB}"); A("s_mov_b32 s35, 0x20000")
    A(f"v_mov_b32 v52, {L_TK}"); A(f"v_mov_b32 v48, {(8*RS+7*NX)*4096}"); A("v_mov_b32 v49, 0")
    A("s_cmp_lg_u32 s3, 0")
    A("s_cbranch_scc1 L_noinit")
    A("ds_write_b64 v52, v[48:49]")
    if dyn:
        for r in range(4): A(f"v_mov_b32 v{20+r}, -1")
        A(f"ds_write_b128 v3, v[20:23] offset:{L_TB}")
        A(f"ds_write_b128 v3, v[20:23] offset:{L_TB+1024}")
        A("s_add_u32 s73, s59, s70")
        A("v_lshlrev_b32 v24, 12, v1"); A("v_add_u32 v24, s73, v24"); A("v_lshlrev_b32 v25, 2, v1")
        A("v_cmp_eq_u32 vcc, 0, v1"); A("v_addc_co_u32 v24, vcc, 0, v24, vcc")
        A(f"s_mov_b64 exec, {(1 << LA) - 1}")
        A(f"ds_write_b32 v25, v24 offset:{L_TB}")
        A("s_mov_b64 exec, -1")
    A.label("L_noinit")
    A("s_cmp_ge_u32 s79, 24")
    A("s_cbranch_scc1 L_qprod")
    A("s_waitcnt lgkmcnt(0)")
    A("s_add_u32 s28, s6, s71"); A("s_addc_u32 s29, s7, 0")
    A("s_add_u32 s32, s8, s71"); A("s_addc_u32 s33, s9, 0")
    A("s_load_dword s52, s[26:27], 0")
    A("s_cmp_eq_u32 s3, 0")
    A("s_cbranch_scc1 L_w0")
    A.label("L_ring")
    for bs, so in ST: issueK(bs, so); issueV(bs, so)
    A(f"s_add_u32 s68, s66, {(8*RS-1)*4096}")
    for k in range(NX):
        issueK(RX + 32 * k, 68); issueV(RX + 32 * k, 68)
        if k < NX - 1: A(f"s_add_u32 s68, s68, {7*4096}")
    srd(48, 4, 5, 1024)
    srd(36, 26, 27, WSN)
    common_setup()
    A("s_waitcnt lgkmcnt(0)")
    tags()
    stamp(1)
    A("s_barrier")
    A("s_branch L_qj")
    A.label("L_qprod")
    A("v_lshrrev_b32 v44, 3, v1"); A("v_and_b32 v45, 7, v1")
    A("v_lshlrev_b32 v50, 16, v44")
    A("v_lshl_add_u32 v50, v45, 4, v50")
    A("v_lshlrev_b32 v51, 4, v44")
    A("s_lshr_b32 s76, s2, 5"); A("s_lshl_b32 s76, s76, 9")
    A("s_and_b32 s73, s2, 7"); A("s_lshl_b32 s73, s73, 6"); A("s_add_u32 s76, s76, s73")
    A("s_lshl_b32 s77, s76, 1"); A("s_lshl_b32 s73, s3, 19"); A("s_add_u32 s77, s77, s73")
    A("s_lshl_b32 s73, s3, 7")
    A("s_mov_b32 s50, 1024"); A("s_mov_b32 s51, 0x20000"); A(f"s_mov_b32 s42, {4<<20}"); A("s_mov_b32 s43, 0x20000")
    for i in range(1, 8): A(f"v_add_u32 v{35+i}, {8192*i}, v50")
    A("s_waitcnt lgkmcnt(0)")
    A("s_mov_b32 s48, s4"); A("s_mov_b32 s49, s5"); A("s_mov_b32 s40, s10"); A("s_mov_b32 s41, s11")
    A("buffer_load_dwordx4 v[52:55], v3, s[48:51], 0 offen")
    A("buffer_load_dwordx4 v[32:35], v51, s[48:51], s73 offen")
    nt = " nt" if wq_nt else ""
    for i in range(8):
        va = 50 if i == 0 else 35 + i
        A(f"buffer_load_dwordx4 v[{RA+4*i}:{RA+4*i+3}], v{va}, s[40:43], s77 offen{nt}")
    A("s_load_dword s52, s[26:27], 0")
    A("s_add_u32 s28, s6, s71"); A("s_addc_u32 s29, s7, 0")
    A("s_add_u32 s32, s8, s71"); A("s_addc_u32 s33, s9, 0")
    if dyn:
        A("s_cmp_lg_u32 s3, 0"); A("s_cbranch_scc1 L_nz")
        A("s_cmp_ge_u32 s79, 28"); A("s_cbranch_scc1 L_nz")
        A("s_lshr_b32 s73, s2, 5"); A("s_lshl_b32 s73, s73, 2"); A("s_add_u32 s73, s73, s79"); A("s_sub_u32 s73, s73, 24")
        A(f"s_mul_i32 s73, s73, {cstride}"); A(f"s_add_u32 s73, s73, {CBUF}")
        A("v_mov_b32 v49, s73"); A("v_mov_b32 v48, 0")
        A("s_mov_b64 exec, 1")
        A("global_store_dword v49, v48, s[26:27] sc1")
        A("s_mov_b64 exec, -1")
        A.label("L_nz")
    A("v_lshrrev_b32 v49, 5, v1"); A("v_and_b32 v44, 1, v46")
    A("v_lshlrev_b32 v48, 8, v49"); A("v_lshl_add_u32 v48, v45, 5, v48"); A("v_lshl_add_u32 v48, v44, 4, v48")
    A("s_lshl_b32 s73, s3, 9"); A("v_add_u32 v48, s73, v48")
    common_setup()
    A("v_bfe_u32 v51, v1, 2, 1"); A("v_cmp_eq_u32 vcc, 0, v51")
    A("v_cndmask_b32 v6, 0, v4, vcc"); A("v_cndmask_b32 v7, 0, v5, vcc")
    A("v_cndmask_b32 v8, v4, 0, vcc"); A("v_cndmask_b32 v9, v5, 0, vcc")
    A("s_waitcnt vmcnt(8)")
    for k in range(4):
        A(f"v_lshlrev_b32 v{36+2*k}, 16, v{52+k}")
        A(f"v_and_b32 v{37+2*k}, 0xffff0000, v{52+k}")
    for k in range(4):
        A(f"v_lshlrev_b32 v{20+2*k}, 16, v{32+k}")
        A(f"v_and_b32 v{21+2*k}, 0xffff0000, v{32+k}")
    ln_stats(list(range(36, 44)), 44, 45, 51)
    for k in range(8): A(f"v_sub_f32 v{20+k}, v{20+k}, v44")
    for k in range(8): rbf(20 + k, 20 + k)
    for k in range(8): A(f"v_mul_f32 v{20+k}, v{20+k}, v45")
    for k in range(8): A(f"v_cvt_pk_bf16_f32 v{20+k}, v{20+k}, v{20+k}")
    for i in range(8):
        for r in range(4): A(f"v_and_b32 v{RB+4*i+r}, v{20+i}, v{6+r}")
    A("s_waitcnt vmcnt(0)")
    for i in range(8):
        c = "0" if i == 0 else "v[28:31]"
        A(f"v_mfma_f32_16x16x32_bf16 v[28:31], v[{RB+4*i}:{RB+4*i+3}], v[{RA+4*i}:{RA+4*i+3}], {c}")
    A("s_mov_b32 exec_lo, 0x00ff00ff"); A("s_mov_b32 exec_hi, 0xff00ff00")
    A(f"ds_write_b128 v48, v[28:31] offset:{L_RED}")
    A("s_mov_b64 exec, -1")
    A("s_waitcnt lgkmcnt(0)")
    A("s_barrier")
    A("s_cmp_lg_u32 s3, 0")
    A("s_cbranch_scc1 L_ring")
    A("s_setprio 3")
    A("v_and_b32 v50, 15, v1"); A("v_lshlrev_b32 v49, 10, v46"); A("v_lshl_add_u32 v49, v50, 4, v49")
    for k in range(4): A(f"ds_read_b128 v[{20+4*k}:{23+4*k}], v49 offset:{L_RED+256*k}")
    srd(36, 26, 27, WSN)
    tags()
    A("v_and_b32 v45, 1, v46"); A("v_lshlrev_b32 v45, 1, v45"); A("v_lshrrev_b32 v44, 1, v46"); A("v_or_b32 v45, v45, v44")
    A("v_lshl_add_u32 v45, v50, 2, v45"); A("v_lshlrev_b32 v45, 2, v45")
    A("v_mov_b32 v49, s57"); A("v_mov_b32 v51, s58")
    A("v_cmp_eq_u32 vcc, 0, v44")
    A("v_cndmask_b32 v49, v51, v49, vcc")
    A("s_lshl_b32 s71, s76, 2"); A(f"s_add_u32 s71, s71, {QBUF}")
    A("s_waitcnt lgkmcnt(0)")
    sum4x4()
    rbf(20, 20)
    A("v_or_b32 v20, v20, v49")
    A("buffer_store_dword v20, v45, s[36:39], s71 offen sc1")
    stamp(2)
    A("s_branch L_w0b")
    A.label("L_w0")
    A("s_setprio 3")
    srd(48, 4, 5, 1024)
    srd(36, 26, 27, WSN)
    common_setup()
    A("s_waitcnt lgkmcnt(0)")
    tags()
    A.label("L_w0b")
    A("v_lshlrev_b32 v44, 1, v2")
    A("s_lshr_b32 s71, s2, 5"); A("s_lshl_b32 s71, s71, 11"); A(f"s_add_u32 s71, s71, {QBUF}")
    A("s_add_u32 s76, s26, s71"); A("s_addc_u32 s77, s27, 0")
    A.label("L_qhint")
    QS = [40, 41, 42, 43, 44, 45, 46, 47]
    for k in range(8): A(f"s_load_dword s{QS[k]}, s[76:77], {256*k} glc")
    A("s_waitcnt lgkmcnt(0)")
    for k in range(8): A(f"s_xor_b32 s{QS[k]}, s{QS[k]}, s57")
    for k in range(1, 8): A(f"s_or_b32 s40, s40, s{QS[k]}")
    A("s_and_b32 s40, s40, 0xffff")
    A("s_cbranch_scc0 L_qpoll")
    spin("L_qhint", qslp)
    A.label("L_qpoll")
    stamp(9)
    A("buffer_load_dwordx4 v[20:23], v44, s[36:39], s71 offen sc1")
    A("buffer_load_dwordx4 v[24:27], v44, s[36:39], s71 offen offset:16 sc1")
    A("s_mov_b32 s73, 0x07060302")
    A("s_waitcnt vmcnt(0)")
    for e in range(8): A(f"v_xor_b32 v{20+e}, s{57+(e&1)}, v{20+e}")
    A("v_or3_b32 v45, v20, v21, v22"); A("v_or3_b32 v45, v45, v23, v24"); A("v_or3_b32 v45, v45, v25, v26"); A("v_or_b32 v45, v45, v27")
    A("v_and_b32 v45, 0xffff, v45")
    A("v_cmp_ne_u32 vcc, 0, v45")
    A("s_cbranch_vccz L_q_ok")
    spin("L_qpoll")
    A.label("L_q_ok")
    for k in range(4): A(f"v_perm_b32 v{6+k}, v{21+2*k}, v{20+2*k}, s73")
    A(f"ds_write_b128 v3, v[6:9] offset:{L_QF}")
    A("s_waitcnt lgkmcnt(0)")
    stamp(1)
    A("s_barrier")
    for bs, so in ST: issueK(bs, so); issueV(bs, so)
    A("s_setprio 0")
    A.label("L_qj")
    A(f"ds_read_b128 v[6:9], v3 offset:{L_QF}")
    A(f"v_mov_b32 v52, {L_TK}"); A("v_mov_b32 v53, 4096")
    A("s_mov_b32 s69, 3")
    if dyn:
        A("s_lshr_b32 s58, s2, 3"); A("s_and_b32 s57, s58, 3")
        A(f"s_mul_i32 s58, s58, {cstride}"); A(f"s_add_u32 s58, s58, {CBUF}")
        A(f"s_mul_i32 s57, s57, {DP*4096}"); A(f"s_add_u32 s57, s57, {TOT*4096}")
    stamp(3)
    A.label("L_loop")
    for bs, so in ST: chunk(bs, so, True, 8 * RS - 4)
    A("s_cmp_lg_u32 s69, 3")
    A("s_cbranch_scc1 L_loop")
    A("s_mov_b32 s69, 0")
    A("s_cmp_eq_u32 s3, 0")
    A("s_cbranch_scc1 L_setup")
    A(f"s_waitcnt vmcnt({8*RS})")
    for k in range(NX): chunk(RX + 32 * k, None, False, None)
    A.label("L_setup")
    A("v_lshrrev_b32 v46, 4, v1"); A("v_and_b32 v47, 3, v1"); A("v_bfe_u32 v45, v1, 2, 2"); A("v_and_b32 v50, 15, v1")
    A("v_and_b32 v48, 1, v46"); A("v_lshlrev_b32 v48, 1, v48"); A("v_lshrrev_b32 v49, 1, v46"); A("v_or_b32 v48, v48, v49")
    A("s_lshl_b32 s71, s3, 11"); A(f"v_lshlrev_b32 v{TC}, 5, v1"); A(f"v_add_u32 v{TC}, s71, v{TC}")
    A("s_lshl_b32 s71, s3, 3"); A(f"v_lshlrev_b32 v{TC+1}, 6, v45"); A(f"v_add_u32 v{TC+1}, s71, v{TC+1}")
    A(f"v_lshrrev_b32 v{TC+2}, 1, v{TC+1}")
    A("s_lshl_b32 s71, s3, 8"); A(f"v_lshlrev_b32 v{TC+3}, 12, v46"); A(f"v_lshl_add_u32 v{TC+3}, v50, 4, v{TC+3}"); A(f"v_add_u32 v{TC+3}, s71, v{TC+3}")
    A("s_lshr_b32 s71, s3, 1"); A("s_lshl_b32 s73, s71, 6"); A(f"v_lshlrev_b32 v{TC+4}, 4, v46"); A(f"v_add_u32 v{TC+4}, s73, v{TC+4}")
    A("s_lshl_b32 s73, s71, 5"); A(f"v_mov_b32 v{TC+5}, s73")
    A(f"v_lshl_add_u32 v{TC+6}, v50, 2, v48"); A(f"v_lshlrev_b32 v{TC+6}, 2, v{TC+6}")
    A(f"v_lshlrev_b32 v{TC+7}, 3, v48"); A(f"v_lshrrev_b32 v{TC+7}, v{TC+7}, s52"); A(f"v_and_b32 v{TC+7}, 0xff, v{TC+7}")
    A("s_lshr_b32 s71, s2, 5"); A("s_lshl_b32 s71, s71, 1"); A("s_lshr_b32 s73, s3, 2"); A("s_add_u32 s71, s71, s73")
    A("s_lshl_b32 s0, s71, 15"); A("s_lshl_b32 s73, s79, 10"); A("s_add_u32 s0, s0, s73")
    A("s_and_b32 s73, s3, 3"); A("s_lshl_b32 s73, s73, 8"); A("s_add_u32 s0, s0, s73"); A(f"s_add_u32 s0, s0, {OBUF}")
    A("s_lshl_b32 s1, s71, 10"); A("s_bfe_u32 s73, s3, 0x10001"); A("s_lshl_b32 s73, s73, 9"); A("s_add_u32 s1, s1, s73")
    A("s_lshl_b32 s73, s79, 4"); A("s_add_u32 s1, s1, s73"); A(f"s_add_u32 s1, s1, {MLBUF}")
    A("s_cmp_ge_u32 s79, 16")
    A("s_cbranch_scc1 L_su2")
    A("s_mov_b32 s69, 1")
    srd(40, 12, 13, 4 << 20)
    A("s_lshr_b32 s77, s2, 5")
    A("s_lshl_b32 s78, s79, 18"); A("s_lshl_b32 s73, s3, 15"); A("s_add_u32 s78, s78, s73")
    A("s_lshl_b32 s73, s77, 7"); A("s_add_u32 s78, s78, s73")
    A("v_bfe_u32 v49, v1, 3, 1"); A("v_and_b32 v51, 7, v1")
    A(f"v_lshl_add_u32 v{TC+8}, v49, 4, v48"); A(f"v_lshlrev_b32 v{TC+8}, 10, v{TC+8}"); A(f"v_lshl_add_u32 v{TC+8}, v51, 4, v{TC+8}")
    A("v_lshrrev_b32 v44, 3, v1")
    A(f"v_lshlrev_b32 v{TC+9}, 10, v44"); A(f"v_lshl_add_u32 v{TC+9}, v51, 4, v{TC+9}")
    A(f"v_lshlrev_b32 v{TC+10}, 4, v44")
    A(f"v_lshlrev_b32 v{TC+11}, 8, v49"); A(f"v_lshl_add_u32 v{TC+11}, v51, 5, v{TC+11}"); A("s_lshl_b32 s71, s3, 9"); A(f"v_add_u32 v{TC+11}, s71, v{TC+11}")
    A(f"v_lshlrev_b32 v{TC+12}, 10, v46"); A(f"v_lshl_add_u32 v{TC+12}, v50, 4, v{TC+12}")
    A("s_lshl_b32 s16, s79, 15"); A("s_lshl_b32 s71, s3, 7"); A("s_add_u32 s16, s16, s71"); A(f"s_add_u32 s16, s16, {OBUF}")
    A("s_add_u32 s17, s16, 8192"); A("s_add_u32 s18, s16, 16384"); A("s_add_u32 s19, s16, 24576")
    A("s_lshl_b32 s20, s79, 10"); A("s_lshr_b32 s71, s3, 2"); A("s_lshl_b32 s71, s71, 9"); A("s_add_u32 s20, s20, s71"); A(f"s_add_u32 s20, s20, {MLBUF}")
    A("s_lshl_b32 s21, s79, 11"); A("s_lshl_b32 s73, s77, 8"); A("s_add_u32 s21, s21, s73"); A(f"s_add_u32 s21, s21, {HBUF}")
    if wo_early: load_wo()
    A("s_branch L_loop")
    A.label("L_su2")
    A("s_cmp_ge_u32 s79, 23")
    A("s_cbranch_scc1 L_loop")
    A("s_mov_b32 s69, 2")
    A("s_and_b32 s76, s2, 7"); A("s_lshl_b32 s76, s76, 3"); A("s_lshr_b32 s71, s2, 5"); A("s_add_u32 s76, s76, s71")
    A(f"v_lshrrev_b32 v51, 1, v{TC+6}"); A("s_lshl_b32 s71, s3, 7")
    A(f"buffer_load_ushort v{TC+13}, v51, s[48:51], s71 offen")
    A("v_bfe_u32 v49, v1, 3, 1"); A("v_lshl_add_u32 v49, v49, 5, v48"); A("s_lshl_b32 s71, s3, 6"); A("v_add_u32 v49, s71, v49")
    A("v_mul_u32_u24 v49, 3584, v49"); A("v_lshl_add_u32 v49, v47, 4, v49"); A("s_lshl_b32 s71, s76, 6"); A("v_add_u32 v49, s71, v49")
    A("v_bfe_u32 v51, v1, 2, 1"); A("v_cmp_eq_u32 vcc, 0, v51")
    A("v_mov_b32 v44, s16"); A("v_mov_b32 v45, s18"); A("v_cndmask_b32 v44, v45, v44, vcc")
    A("v_mov_b32 v45, s17"); A("v_mov_b32 v51, s19"); A("v_cndmask_b32 v45, v51, v45, vcc")
    A(f"v_cndmask_b32 v{TC+16}, 0, v4, vcc"); A(f"v_cndmask_b32 v{TC+17}, 0, v5, vcc")
    A(f"v_cndmask_b32 v{TC+18}, v4, 0, vcc"); A(f"v_cndmask_b32 v{TC+19}, v5, 0, vcc")
    A("v_add_co_u32 v44, vcc, v44, v49"); A("v_addc_co_u32 v45, vcc, 0, v45, vcc")
    for i in range(8):
        A(f"global_load_dwordx4 v[{WGU+4*i}:{WGU+4*i+3}], v[44:45], off nt")
        if i < 7: A(f"v_add_co_u32 v44, vcc, {4*3584}, v44"); A("v_addc_co_u32 v45, vcc, 0, v45, vcc")
    srd(40, 20, 21, 1792 * 1024)
    srd(44, 22, 23, 1024)
    A(f"v_lshlrev_b32 v{TC+8}, 4, v50"); A(f"v_lshl_add_u32 v{TC+8}, v48, 10, v{TC+8}")
    A("s_lshl_b32 s78, s76, 15"); A("s_and_b32 s73, s3, 3"); A("s_lshl_b32 s73, s73, 8"); A("s_add_u32 s78, s78, s73")
    A(f"v_lshlrev_b32 v{TC+9}, 11, v46"); A(f"v_lshl_add_u32 v{TC+9}, v50, 4, v{TC+9}")
    A("s_lshl_b32 s71, s3, 8"); A(f"v_add_u32 v{TC+10}, s71, v{TC+6}")
    A("v_lshrrev_b32 v49, 5, v1"); A("v_and_b32 v51, 7, v1"); A("v_and_b32 v44, 1, v46")
    A(f"v_lshlrev_b32 v{TC+11}, 8, v49"); A(f"v_lshl_add_u32 v{TC+11}, v51, 5, v{TC+11}"); A(f"v_lshl_add_u32 v{TC+11}, v44, 4, v{TC+11}")
    A("s_lshl_b32 s71, s3, 9"); A(f"v_add_u32 v{TC+11}, s71, v{TC+11}")
    A(f"v_lshlrev_b32 v{TC+12}, 10, v46"); A(f"v_lshl_add_u32 v{TC+12}, v50, 4, v{TC+12}")
    A(f"v_lshlrev_b32 v{TC+14}, 4, v51")
    A(f"v_lshlrev_b32 v{TC+15}, 4, v44"); A(f"v_lshl_add_u32 v{TC+15}, v50, 5, v{TC+15}")
    A("s_lshl_b32 s71, s3, 4"); A(f"v_mov_b32 v{TC+20}, s71")
    A(f"v_lshrrev_b32 v{TC+21}, 2, v1"); A(f"v_lshlrev_b32 v{TC+21}, 11, v{TC+21}"); A(f"v_lshl_add_u32 v{TC+21}, v47, 4, v{TC+21}")
    A(f"v_lshl_add_u32 v{TC+22}, v47, 2, v48"); A("s_lshl_b32 s71, s76, 4"); A(f"v_add_u32 v{TC+22}, s71, v{TC+22}"); A(f"v_lshlrev_b32 v{TC+22}, 1, v{TC+22}")
    A("s_lshl_b32 s16, s3, 8"); A(f"s_add_u32 s16, s16, {HBUF}")
    A("s_add_u32 s17, s16, 8192"); A("s_add_u32 s18, s16, 16384"); A("s_add_u32 s19, s16, 24576")
    A("s_lshl_b32 s21, s76, 11"); A("s_lshl_b32 s73, s3, 9"); A("s_add_u32 s21, s21, s73"); A(f"s_add_u32 s21, s21, {YBUF}")
    A("s_lshl_b32 s22, s76, 6"); A(f"s_add_u32 s22, s22, {YBUF}")
    A("s_add_u32 s23, s22, 32768"); A("s_add_u32 s24, s22, 65536"); A("s_add_u32 s25, s22, 98304")
    if wd_early:
        A("s_cmp_ge_u32 s3, 4"); A("s_cbranch_scc1 L_loop")
        load_wd()
    A("s_branch L_loop")

    if dyn:
        A.label("L_dyn")
        A("s_sub_u32 s73, s71, s70"); A("s_lshr_b32 s73, s73, 10")
        A("v_mov_b32 v48, s73")
        A.label("L_dynw")
        A(f"ds_read_b32 v49, v48 offset:{L_TB}")
        A("s_waitcnt lgkmcnt(0)")
        A("v_readfirstlane_b32 s71, v49")
        A("s_cmp_lg_u32 s71, -1")
        A("s_cbranch_scc1 L_dyng")
        spin("L_dynw")
        A.label("L_dyng")
        A("s_bitcmp1_b32 s71, 0")
        A("s_cbranch_scc0 L_dynr")
        A("s_and_b32 s71, s71, -2")
        A("s_max_u32 vcc_lo, s71, s57"); A("s_sub_u32 vcc_lo, vcc_lo, s57")
        A(f"s_cmp_lt_u32 vcc_lo, {(DP-t4)*4096}"); A("s_cselect_b32 vcc_hi, 4, 2")
        A(f"s_cmp_lt_u32 vcc_lo, {(DP-t8)*4096}"); A(f"s_cselect_b32 vcc_hi, {b0}, vcc_hi")
        A("s_mov_b32 s14, vcc_hi"); A("s_mov_b32 s15, vcc_hi")
        A("s_atomic_add s14, s[26:27], s58 glc")
        A(f"v_lshl_add_u32 v48, v1, 2, v48")
        A(f"s_sub_u32 s73, s15, {LA}")
        A("s_waitcnt lgkmcnt(0)")
        A("v_add_u32 v49, s14, v1")
        A("v_lshlrev_b32 v50, 12, v49"); A("v_add_u32 v50, s57, v50")
        A("s_add_u32 s14, s14, s15")
        A(f"s_cmp_ge_u32 s14, {DP}")
        A("s_cbranch_scc1 L_dynx")
        A("v_cmp_eq_u32 vcc, s73, v1"); A("v_addc_co_u32 v50, vcc, 0, v50, vcc")
        A("v_cmp_gt_u32 vcc, s15, v1")
        A("s_mov_b64 exec, vcc")
        A(f"ds_write_b32 v48, v50 offset:{L_TB+4*LA}")
        A("s_mov_b64 exec, -1")
        A("s_branch L_dynr")
        A.label("L_dynx")
        A("v_mov_b32 v51, s30")
        A(f"v_cmp_gt_u32 vcc, {DP}, v49")
        A("v_cndmask_b32 v50, v51, v50, vcc")
        A(f"ds_write_b32 v48, v50 offset:{L_TB+4*LA}")
        A.label("L_dynr")
        if RS == 2:
            A("s_cmp_eq_u32 s68, 67")
            A("s_cbranch_scc1 L_ret67")
        A("s_branch L_ret66")
    A.label("L_done")
    A("s_cmp_eq_u32 s69, 3")
    A("s_cbranch_scc1 L_end")
    stamp(4)
    quad_all(19, "v_add_f32")
    A(f"ds_write_b32 v{TC+2}, v18 offset:{L_MX}")
    rows_all(19, 49, "v_add_f32")
    A(f"ds_write_b128 v{TC}, v[10:13] offset:{L_OM}")
    A(f"ds_write_b128 v{TC}, v[14:17] offset:{L_OM+16}")
    A(f"ds_write_b64 v{TC+1}, v[18:19] offset:{L_ML}")
    A("s_mov_b32 s73, 0xffffff00")
    A("s_waitcnt lgkmcnt(0)")
    A("s_barrier")
    stamp(5)
    A(f"ds_read_b128 v[20:23], v{TC+5} offset:{L_MX}")
    A(f"ds_read_b128 v[24:27], v{TC+5} offset:{L_MX+16}")
    A(f"ds_read_b128 v[28:31], v{TC+4} offset:{L_ML}")
    A(f"ds_read_b128 v[10:13], v{TC+3} offset:{L_OM}")
    A(f"ds_read_b128 v[14:17], v{TC+3} offset:{L_OM+2048}")
    A("v_mov_b32 v38, s55"); A("v_mov_b32 v39, s56")
    A("s_waitcnt lgkmcnt(3)")
    A("v_max3_f32 v36, v20, v21, v22"); A("v_max3_f32 v37, v23, v24, v25"); A("v_max3_f32 v36, v36, v26, v27"); A("v_max_f32 v36, v36, v37")
    A("v_and_b32 v36, s73, v36")
    A("s_waitcnt lgkmcnt(2)")
    A("v_sub_f32 v28, v28, v36"); A("v_sub_f32 v30, v30, v36")
    A("v_exp_f32 v28, v28"); A("v_exp_f32 v30, v30")
    A("v_or_b32 v36, s53, v36")
    A("s_waitcnt lgkmcnt(0)")
    for r in range(4): A(f"v_mul_f32 v{10+r}, v{10+r}, v28")
    for r in range(4): A(f"v_fmac_f32 v{10+r}, v{14+r}, v30")
    A("v_mul_f32 v37, v28, v29")
    A("v_fmac_f32 v37, v30, v31")
    rr4(10, 11, 12, 13)
    A(f"v_and_or_b32 v10, v10, s73, v{TC+7}")
    A(f"buffer_store_dword v10, v{TC+6}, s[36:39], s0 offen sc1")
    A("s_bitcmp1_b32 s3, 0")
    A("s_cbranch_scc1 L_mj")
    rows_all(37, 49, "v_add_f32")
    A("v_and_b32 v37, s73, v37"); A("v_or_b32 v37, s54, v37")
    A("s_mov_b64 exec, 1")
    A("buffer_store_dwordx4 v[36:39], v3, s[36:39], s1 offen sc1")
    A("s_mov_b64 exec, -1")
    A.label("L_mj")
    stamp(6)
    A("s_cmp_lg_u32 s69, 1")
    A("s_cbranch_scc1 L_role2")
    if not wo_early: load_wo()
    OB, MB = MO, MO + 16
    A("s_mov_b32 exec_hi, 0")
    A.label("L_h1pre")
    A("buffer_load_dword v53, v3, s[36:39], s20 offen offset:12 sc1")
    A("s_waitcnt vmcnt(0)")
    A("v_cmp_eq_u32 vcc, s56, v53")
    A("s_bcnt1_i32_b64 s71, vcc")
    A(f"s_cmp_ge_u32 s71, {thr1}")
    A("s_cbranch_scc1 L_h1go")
    spin("L_h1pre", slp1)
    A.label("L_h1go")
    gather("L_h1", [[(MB + 4 * j, TC + 10, 20, 128 * j), (OB + 4 * j, TC + 9, 16 + j, 0)] for j in range(4)])
    stamp(7)
    A(f"v_max3_f32 v20, v{MB}, v{MB+4}, v{MB+8}"); A(f"v_max_f32 v20, v20, v{MB+12}")
    dpp("v_max_f32", 20, 20, 20, "row_ror:8")
    rows_all(20, 21, "v_max_f32")
    for j in range(4): A(f"v_sub_f32 v{MB+4*j}, v{MB+4*j}, v20")
    for j in range(4): A(f"v_exp_f32 v{MB+4*j}, v{MB+4*j}")
    A(f"v_mul_f32 v21, v{MB}, v{MB+1}")
    for j in range(1, 4): A(f"v_fmac_f32 v21, v{MB+4*j}, v{MB+4*j+1}")
    for r in range(4): A(f"v_mul_f32 v{24+r}, v{OB+r}, v{MB}")
    dpp("v_add_f32", 21, 21, 21, "row_ror:8")
    for r in range(4): A(f"v_fmac_f32 v{24+r}, v{OB+4+r}, v{MB+4}")
    A("v_mov_b32 v22, v21")
    for r in range(2): A(f"v_fmac_f32 v{24+r}, v{OB+8+r}, v{MB+8}")
    A("v_permlane32_swap_b32 v21, v22")
    for r in range(2, 4): A(f"v_fmac_f32 v{24+r}, v{OB+8+r}, v{MB+8}")
    A("v_add_f32 v21, v21, v22")
    A("v_mov_b32 v22, v21")
    for r in range(4): A(f"v_fmac_f32 v{24+r}, v{OB+12+r}, v{MB+12}")
    A("v_permlane16_swap_b32 v21, v22")
    A("v_add_f32 v21, v21, v22")
    A("v_permlane32_swap_b32 v24, v25")
    A("v_permlane32_swap_b32 v26, v27")
    A("v_add_f32 v24, v24, v25")
    A("v_add_f32 v26, v26, v27")
    A("v_rcp_f32 v21, v21")
    A("v_permlane16_swap_b32 v24, v26")
    A("v_add_f32 v24, v24, v26")
    dpp("v_add_f32", 24, 24, 24, "row_ror:8")
    A("v_mul_f32 v24, v24, v21")
    A("v_cvt_pk_bf16_f32 v24, v24, v24")
    for i in range(4):
        dpp("v_and_b32", 36 + 2 * i, 24, 4, f"quad_perm:[{i},{i},{i},{i}]")
        dpp("v_and_b32", 37 + 2 * i, 24, 5, f"quad_perm:[{i},{i},{i},{i}]")
    for i in range(4):
        c0 = "0" if i == 0 else "v[10:13]"; c1 = "0" if i == 0 else "v[14:17]"
        A(f"v_mfma_f32_16x16x16_bf16 v[10:13], v[{36+2*i}:{37+2*i}], v[{WO+4*i}:{WO+4*i+1}], {c0}")
        A(f"v_mfma_f32_16x16x16_bf16 v[14:17], v[{36+2*i}:{37+2*i}], v[{WO+4*i+2}:{WO+4*i+3}], {c1}")
    A("s_mov_b32 exec_lo, 0xff0000ff"); A("s_mov_b32 exec_hi, 0")
    A(f"ds_write_b128 v{TC+11}, v[10:13] offset:{L_RED}")
    A(f"ds_write_b128 v{TC+11}, v[14:17] offset:{L_RED+16}")
    A("s_mov_b64 exec, -1")
    A("s_waitcnt lgkmcnt(0)")
    A("s_barrier")
    A("s_cmp_lg_u32 s3, 0")
    A("s_cbranch_scc1 L_end")
    for k in range(4): A(f"ds_read_b128 v[{20+4*k}:{23+4*k}], v{TC+12} offset:{L_RED+256*k}")
    A("s_waitcnt lgkmcnt(0)")
    sum4x4()
    A(f"v_and_or_b32 v20, v20, s73, v{TC+7}")
    A(f"buffer_store_dword v20, v{TC+6}, s[36:39], s21 offen sc1")
    stamp(8)
    A("s_branch L_end")
    A.label("L_role2")
    A("s_cmp_lg_u32 s69, 2")
    A("s_cbranch_scc1 L_end")
    if not wd_early:
        A("s_cmp_ge_u32 s3, 4"); A("s_cbranch_scc1 L_nowd")
        load_wd()
        A.label("L_nowd")
    if pretouch:
        for j in range(4): A(f"buffer_load_dwordx4 v[{20+4*j}:{23+4*j}], v{TC+9}, s[36:39], s{16+j} offen sc1")
        A("s_cmp_lg_u32 s3, 4"); A("s_cbranch_scc1 L_nopt")
        for j in range(4): A(f"buffer_load_dwordx4 v[{20+4*j}:{23+4*j}], v{TC+21}, s[36:39], s{22+j} offen sc1")
        A.label("L_nopt")
    A("s_mov_b32 exec_lo, 0x00010001"); A("s_mov_b32 exec_hi, 0x00010001")
    A.label("L_h2pre")
    A(f"buffer_load_dword v53, v{TC+9}, s[36:39], s16 offen sc1")
    A("s_waitcnt vmcnt(0)")
    A("v_and_b32 v53, 0xff, v53")
    A("v_cmp_eq_u32 vcc, s53, v53")
    A("s_cbranch_vccnz L_h2go")
    spin("L_h2pre", slp1)
    A.label("L_h2go")
    A("s_mov_b64 exec, -1")
    A(f"v_lshlrev_b32 v{TC+13}, 16, v{TC+13}")
    gather("L_h2", [[(20 + 4 * j, TC + 9, 16 + j, 0)] for j in range(4)])
    stamp(7)
    sum4x4()
    rbf(20, 20)
    A(f"v_add_f32 v20, v20, v{TC+13}")
    rbf(20, 20)
    A("v_readfirstlane_b32 s71, v20")
    A(f"ds_write_b32 v{TC+10}, v20 offset:{L_HL}")
    A("v_subrev_f32 v25, s71, v20")
    A("v_mov_b32 v24, s71")
    A("v_mul_f32 v26, v25, v25")
    for ctl in ("quad_perm:[1,0,3,2]", "quad_perm:[2,3,0,1]", "row_ror:8", "row_ror:4"):
        dpp("v_add_f32", 25, 25, 25, ctl); dpp("v_add_f32", 26, 26, 26, ctl)
    A("v_permlane32_swap_b32 v25, v26")
    A("v_add_f32 v25, v25, v26")
    A("v_mov_b32 v26, v25")
    A("v_permlane16_swap_b32 v25, v26")
    A("v_add_f32 v25, v25, v26")
    A("s_mov_b64 exec, 1")
    A(f"ds_write_b64 v{TC+20}, v[24:25] offset:{L_ST}")
    A("s_mov_b32 exec_lo, 0"); A("s_mov_b32 exec_hi, 1")
    A(f"ds_write_b32 v{TC+20}, v25 offset:{L_ST+8}")
    A("s_mov_b64 exec, -1")
    A("s_waitcnt lgkmcnt(0)")
    A("s_barrier")
    A(f"ds_read_b128 v[24:27], v{TC+14} offset:{L_ST}")
    A("s_waitcnt lgkmcnt(0)")
    A("v_readfirstlane_b32 s71, v24")
    A("v_subrev_f32 v24, s71, v24")
    A(f"v_fma_f32 v27, v24, {'s68'}, v25") if False else None
    A("v_mul_f32 v27, 0x42800000, v24")
    A("v_add_f32 v28, v25, v27")
    A("v_add_f32 v25, v25, v28")
    A("v_fmac_f32 v26, v24, v25")
    for ctl in ("quad_perm:[1,0,3,2]", "quad_perm:[2,3,0,1]", "row_half_mirror"):
        dpp("v_add_f32", 28, 28, 28, ctl); dpp("v_add_f32", 26, 26, 26, ctl)
    A("v_mul_f32 v28, 0x3b000000, v28")
    A("v_mul_f32 v26, 0x3b000000, v26")
    A("v_fma_f32 v26, -v28, v28, v26")
    A("v_add_f32 v28, s71, v28")
    A("v_max_f32 v26, 0, v26")
    ln_fin(28, 26)
    A("v_sub_f32 v20, v20, v28")
    rbf(20, 20)
    A("v_mul_f32 v20, v20, v26")
    A("v_cvt_pk_bf16_f32 v20, v20, v20")
    A(f"v_mov_b32_dpp v21, v20 row_half_mirror {DPPF}")
    for i in range(8):
        F = 24 + 4 * (i & 3)
        p = i & 3
        own, oth = (20, 21) if i < 4 else (21, 20)
        pa, pb = (p, 3 - p) if i < 4 else (3 - p, p)
        for r in range(2): dpp("v_and_b32", F + r, own, TC + 16 + r, f"quad_perm:[{pa},{pa},{pa},{pa}]")
        for r in range(2, 4): dpp("v_and_b32", F + r, oth, TC + 16 + r, f"quad_perm:[{pb},{pb},{pb},{pb}]")
        c = "0" if i == 0 else "v[10:13]"
        A(f"v_mfma_f32_16x16x32_bf16 v[10:13], v[{F}:{F+3}], v[{WGU+4*i}:{WGU+4*i+3}], {c}")
    A("s_mov_b32 exec_lo, 0x00ff00ff"); A("s_mov_b32 exec_hi, 0xff00ff00")
    A(f"ds_write_b128 v{TC+11}, v[10:13] offset:{L_RED}")
    A("s_mov_b64 exec, -1")
    A("s_waitcnt lgkmcnt(0)")
    A("s_barrier")
    stamp(8)
    A("s_cmp_ge_u32 s3, 4")
    A("s_cbranch_scc1 L_fin")
    for k in range(4): A(f"ds_read_b128 v[{20+4*k}:{23+4*k}], v{TC+12} offset:{L_RED+256*k}")
    A("v_mov_b32 v52, s73")
    A("s_waitcnt lgkmcnt(0)")
    sum4x4()
    rbf(20, 20)
    dpp("v_mul_f32", 21, 20, 20, "row_ror:8")
    A("v_cvt_pk_bf16_f32 v21, v21, v21")
    for i in range(8):
        F = 24 + 4 * (i & 3)
        for r in range(4): dpp("v_and_b32", F + r, 21, TC + 16 + r, f"row_newbcast:{i}")
        c = "0" if i == 0 else "v[10:13]"
        A(f"v_mfma_f32_16x16x32_bf16 v[10:13], v[{F}:{F+3}], v[{WD+4*i}:{WD+4*i+3}], {c}")
    A("s_mov_b32 exec_hi, 0")
    for r in range(4): A(f"v_and_or_b32 v{10+r}, v{10+r}, v52, s{53+r}")
    A(f"buffer_store_dwordx4 v[10:13], v{TC+15}, s[36:39], s21 offen sc1")
    stamp(9)
    A("s_branch L_end")
    A.label("L_fin")
    A("s_cmp_lg_u32 s3, 4")
    A("s_cbranch_scc1 L_end")
    A("s_cmp_ge_u32 s76, 32")
    A("s_cbranch_scc1 L_end")
    A(f"v_lshlrev_b32 v49, 1, v{TC+22}")
    A(f"ds_read_b32 v50, v49 offset:{L_HL}")
    for r in range(4): A(f"v_mov_b32 v{32+r}, 0")
    gather("L_h3", [[(20 + 4 * j, TC + 21, 22 + j, 0)] for j in range(4)], [-1, -1, -1, 0xffffffff])
    stamp(9)
    sum4x4()
    dpp("v_add_f32", 20, 20, 20, "row_ror:8"); dpp("v_add_f32", 20, 20, 20, "row_ror:4")
    A("s_waitcnt lgkmcnt(0)")
    rbf(20, 20)
    A("v_add_f32 v20, v20, v50")
    rbf(20, 20)
    A("s_mov_b32 exec_lo, 0x000f000f"); A("s_mov_b32 exec_hi, 0x000f000f")
    A(f"buffer_store_short_d16_hi v20, v{TC+22}, s[44:47], 0 offen")
    A("s_cmp_lg_u32 s76, 0")
    A("s_cbranch_scc1 L_end")
    A("s_mov_b64 exec, 1")
    A("v_mov_b32 v21, s52")
    A("buffer_store_dword v21, v3, s[36:39], 0 offen sc1")
    A.label("L_end")
    if prof:
        stamp(10)
        A("s_mov_b64 exec, -1")
        A("s_waitcnt lgkmcnt(0)")
        for i in range(11): A(f"v_writelane_b32 v20, s{80+2*i}, {i}")
        A("v_writelane_b32 v20, s71, 11")
        A("s_getreg_b32 s71, hwreg(HW_REG_XCC_ID)"); A("v_writelane_b32 v20, s71, 12")
        A("s_lshl_b32 s71, s2, 3"); A("s_add_u32 s71, s71, s3"); A("s_lshl_b32 s71, s71, 6"); A(f"s_add_u32 s71, s71, {PROF}")
        A("v_lshlrev_b32 v21, 2, v1")
        A("s_mov_b64 exec, 0xffff")
        A("buffer_store_dword v20, v21, s[36:39], s71 offen")
    A.label("L_exit")
    A("s_endpgm")
    body = A.finish()
    nv = max(A.maxv + 1, 136)
    txt = HEADER + f"; @launch grid=(256,1,1) block=(512,1,1) lds={L_END}\n"
    txt += f'.amdgcn_target "amdgcn-amd-amdhsa--gfx950"\n.text\n.globl {KNAME}\n.p2align 8\n.type {KNAME},@function\n{KNAME}:\n'
    txt += body
    txt += f'.section .rodata,"a"\n.p2align 6\n.amdhsa_kernel {KNAME}\n  .amdhsa_next_free_vgpr {nv}\n  .amdhsa_next_free_sgpr 102\n'
    txt += f"  .amdhsa_accum_offset {(nv+3)//4*4}\n  .amdhsa_group_segment_fixed_size 0\n  .amdhsa_kernarg_size 96\n  .amdhsa_user_sgpr_count 2\n"
    txt += "  .amdhsa_user_sgpr_kernarg_segment_ptr 1\n  .amdhsa_system_sgpr_workgroup_id_x 1\n  .amdhsa_float_denorm_mode_32 3\n.end_amdhsa_kernel\n"
    return txt

if __name__ == "__main__":
    import argparse
    p = argparse.ArgumentParser(); p.add_argument("-o"); p.add_argument("kv", nargs="*")
    a = p.parse_args()
    kw = {k: eval(v) for k, v in (x.split("=") for x in a.kv)}
    open(a.o, "w").write(gen(**kw))
```

```python
import sys, struct
sys.path.insert(0, "gen")
from asmlib import Asm

KNAME = "sequential_preLN__gqa_block_cached__glu_gated_bilinear__decode_kernel"
HEADER = open("sequential_preLN__gqa_block_cached__glu_gated_bilinear__decode.s.ref").read().split("; Override launch")[0]

QBUF, OBUF, MLBUF, HBUF, YBUF, CBUF, WS_END = 0x1000, 0x10000, 0x90000, 0xA0000, 0xB0000, 0xD0000, 0x100000
PROF = 0x100000
L_OM, L_ML, L_MX, L_QRED, L_QF, L_TK, L_ST, L_RED, L_HL, L_TB, L_END = 0, 0x4000, 0x4100, 0x4200, 0x4600, 0x4A00, 0x4B00, 0x5000, 0x6000, 0x6800, 0x7000
DPPF = "row_mask:0xf bank_mask:0xf"
SPIN = 1 << 20
fb = lambda x: hex(struct.unpack("<I", struct.pack("<f", float(x)))[0])

def gen(NX=3, prof=False, wq_nt=True, off1=4, off2=20, off3=8, wo_early=True, wd_early=True, thr1=24, slp1=4, qslp=4, pretouch=True, dyn=True, DP=192, LA=2, t8=96, t4=32, b0=8, cstride=4352, RS=2, remap=True, kf='nt', vf='nt', wf='nt'):
    A = Asm()
    RA, RB, RX = 56, 88, 56 + 32 * RS
    ST = [(RA, 66), (RB, 67)][:RS]
    WGU, WD, WO = 120, 152, 120
    MO = 184
    TC = 216
    OOB = 0x1000000
    if not dyn: DP = 0
    TOT = 4096 - 4 * DP
    n0 = (TOT + 16 * off1 + 7 * off2 + 8 * off3) / 32
    import itertools
    best = None
    for d1, d2, d3 in itertools.product((0, 1), repeat=3):
        a1, a2, a3 = int(n0) - off1 + d1, int(n0) - off2 + d2, int(n0) - off3 + d3
        a4 = TOT - 16 * a1 - 7 * a2 - 8 * a3
        cost = (max(int(n0) + max(d1, d2, d3), a4), -a4)
        if best is None or cost < best[0]: best = (cost, a1, a2, a3, a4)
    _, n1, n2, n3, n4 = best
    def stamp(i):
        if prof: A(f"s_memrealtime s[{80+2*i}:{81+2*i}]")
    def rr4(a, b, c, d):
        A(f"v_permlane32_swap_b32 v{a}, v{b}")
        A(f"v_permlane32_swap_b32 v{c}, v{d}")
        A(f"v_add_f32 v{a}, v{a}, v{b}")
        A(f"v_add_f32 v{c}, v{c}, v{d}")
        A(f"v_permlane16_swap_b32 v{a}, v{c}")
        A(f"v_add_f32 v{a}, v{a}, v{c}")
    def rows_all(x, t, op):
        A(f"v_mov_b32 v{t}, v{x}")
        A(f"v_permlane32_swap_b32 v{x}, v{t}")
        A(f"{op} v{x}, v{x}, v{t}")
        A(f"v_mov_b32 v{t}, v{x}")
        A(f"v_permlane16_swap_b32 v{x}, v{t}")
        A(f"{op} v{x}, v{x}, v{t}")
    def dpp(op, d, s, o, ctl): A(f"{op}_dpp v{d}, v{s}, v{o} {ctl} {DPPF}")
    def quad_all(x, op):
        dpp(op, x, x, x, "quad_perm:[1,0,3,2]"); dpp(op, x, x, x, "quad_perm:[2,3,0,1]")
    def wave_all(x, t, op):
        quad_all(x, op); dpp(op, x, x, x, "row_ror:8"); dpp(op, x, x, x, "row_ror:4"); rows_all(x, t, op)
    def rbf(d, s): A(f"v_cvt_pk_bf16_f32 v{d}, 0, v{s}")
    def ln_fin(mean, var):
        rbf(var, var)
        rbf(mean, mean)
        A(f"v_add_f32 v{var}, 0x37280000, v{var}")
        rbf(var, var)
        A(f"v_sqrt_f32 v{var}, v{var}")
        rbf(var, var)
        A(f"v_rcp_f32 v{var}, v{var}")
    def ln_stats(vals, mean, rinv, t):
        A(f"v_add_f32 v{mean}, v{vals[0]}, v{vals[1]}")
        A(f"v_add_f32 v{t}, v{vals[2]}, v{vals[3]}")
        A(f"v_add_f32 v{rinv}, v{vals[4]}, v{vals[5]}")
        A(f"v_add_f32 v{mean}, v{mean}, v{t}")
        A(f"v_add_f32 v{t}, v{vals[6]}, v{vals[7]}")
        A(f"v_add_f32 v{rinv}, v{rinv}, v{t}")
        A(f"v_add_f32 v{mean}, v{mean}, v{rinv}")
        wave_all(mean, t, "v_add_f32")
        A(f"v_mul_f32 v{mean}, 0x3b000000, v{mean}")
        for v in vals: A(f"v_sub_f32 v{v}, v{v}, v{mean}")
        A(f"v_mul_f32 v{rinv}, v{vals[0]}, v{vals[0]}")
        A(f"v_mul_f32 v{t}, v{vals[1]}, v{vals[1]}")
        for k in range(2, 8, 2):
            A(f"v_fmac_f32 v{rinv}, v{vals[k]}, v{vals[k]}")
            A(f"v_fmac_f32 v{t}, v{vals[k+1]}, v{vals[k+1]}")
        A(f"v_add_f32 v{rinv}, v{rinv}, v{t}")
        wave_all(rinv, t, "v_add_f32")
        A(f"v_mul_f32 v{rinv}, 0x3b000000, v{rinv}")
        ln_fin(mean, rinv)
    def srd(d, lo, hi, n):
        A(f"s_mov_b32 s{d}, s{lo}"); A(f"s_mov_b32 s{d+1}, s{hi}"); A(f"s_mov_b32 s{d+2}, {hex(n)}"); A(f"s_mov_b32 s{d+3}, 0x20000")
    def spin(label, slp=0):
        A("s_sub_u32 s72, s72, 1")
        A("s_cbranch_scc1 L_end")
        if slp: A(f"s_sleep {slp}")
        A(f"s_branch {label}")
    def gather(name, groups, init_masks=None):
        for j in range(len(groups)):
            m = -1 if init_masks is None else init_masks[j]
            if m == -1: A(f"s_mov_b64 s[{4+2*j}:{5+2*j}], -1")
            else: A(f"s_mov_b32 s{4+2*j}, {hex(m & 0xffffffff)}"); A(f"s_mov_b32 s{5+2*j}, {hex(m >> 32)}")
        A.label(f"{name}_rnd")
        for j, g in enumerate(groups):
            A(f"s_mov_b64 exec, s[{4+2*j}:{5+2*j}]")
            A(f"s_cbranch_execz {name}_i{j}")
            for (r, va, so, imm) in g:
                A(f"buffer_load_dwordx4 v[{r}:{r+3}], v{va}, s[36:39], s{so} offen offset:{imm} sc1")
            A.label(f"{name}_i{j}")
        A("s_waitcnt vmcnt(0)")
        for j, g in enumerate(groups):
            A(f"s_mov_b64 exec, s[{4+2*j}:{5+2*j}]")
            A(f"s_cbranch_execz {name}_c{j}")
            regs = [r + k for (r, _, _, _) in g for k in range(4)]
            for k, r in enumerate(regs): A(f"v_xor_b32 v{r}, s{53+(k&3)}, v{r}")
            A(f"v_or3_b32 v55, v{regs[0]}, v{regs[1]}, v{regs[2]}")
            rest = regs[3:]
            while len(rest) >= 2:
                A(f"v_or3_b32 v55, v55, v{rest[0]}, v{rest[1]}"); rest = rest[2:]
            A(f"v_or_b32 v55, v55, v{rest[0]}")
            A("v_and_b32 v55, 0xff, v55")
            A(f"v_cmp_ne_u32 s[{4+2*j}:{5+2*j}], 0, v55")
            A.label(f"{name}_c{j}")
        A("s_or_b64 s[12:13], s[4:5], s[6:7]")
        A("s_or_b64 s[14:15], s[8:9], s[10:11]")
        A("s_mov_b64 exec, -1")
        A("s_or_b64 s[12:13], s[12:13], s[14:15]")
        A(f"s_cbranch_scc0 {name}_ok")
        spin(f"{name}_rnd")
        A.label(f"{name}_ok")
    def issueK(base, so):
        for j in range(4):
            r = base + 4 * j
            A(f"buffer_load_dwordx4 v[{r}:{r+3}], v2, s[28:31], s{so} offen offset:{1024*j} {kf}")
    def issueV(base, so):
        for j in range(4):
            r = base + 16 + 4 * j
            A(f"buffer_load_dwordx4 v[{r}:{r+3}], v3, s[32:35], s{so} offen offset:{1024*j} {vf}")
    def common_setup():
        A("s_mov_b32 s60, 0x22222222"); A("s_mov_b32 s61, 0x22222222")
        A("s_mov_b32 s62, 0x44444444"); A("s_mov_b32 s63, 0x44444444")
        A("s_mov_b32 s64, 0x88888888"); A("s_mov_b32 s65, 0x88888888")
        A("s_mov_b32 s74, 0x3db504f3"); A("s_mov_b32 s75, 0x3fb8aa3b")
        A(f"s_mov_b32 s72, {SPIN}")
        A("v_mov_b32 v44, 0xffff"); A("v_mov_b32 v45, 0xffff0000")
        A("v_mov_b32 v4, 0"); A("v_mov_b32 v5, 0")
        A("v_cmp_eq_u32 vcc, 0, v47")
        A("v_cndmask_b32 v4, v4, v44, vcc")
        A("v_cndmask_b32 v4, v4, v45, s[60:61]")
        A("v_cndmask_b32 v5, v5, v44, s[62:63]")
        A("v_cndmask_b32 v5, v5, v45, s[64:65]")
        for r in range(10, 18): A(f"v_mov_b32 v{r}, 0")
        A("v_mov_b32 v18, 0xff7fffff"); A("v_mov_b32 v19, 0")
    def tags():
        A("s_add_u32 s52, s52, 0x9e3779b9")
        A("s_and_b32 s53, s52, 0xff"); A("s_bfe_u32 s54, s52, 0x80008"); A("s_bfe_u32 s55, s52, 0x80010"); A("s_lshr_b32 s56, s52, 24")
        A("s_and_b32 s57, s52, 0xffff"); A("s_lshr_b32 s58, s52, 16")
    WSN = WS_END if not prof else PROF + 0x20000
    uid = [0]
    def chunk(base, so, refill, wait):
        KB, VB = base, base + 16
        uid[0] += 1; u = uid[0]
        if refill:
            A(f"s_cmp_ge_u32 s{so}, s30")
            A("s_cbranch_scc1 L_done")
            A("s_mov_b64 exec, 1")
            A("ds_add_rtn_u32 v54, v52, v53")
            A("s_mov_b64 exec, -1")
            A(f"s_waitcnt vmcnt({wait}) lgkmcnt(0)")
            A("v_readfirstlane_b32 s71, v54")
        for j in range(4):
            A(f"v_mfma_f32_16x16x32_bf16 v[{20+4*j}:{23+4*j}], v[{KB+4*j}:{KB+4*j+3}], v[6:9], 0")
        if refill:
            A(f"s_add_u32 s{so}, s71, s59")
            A("s_cmp_ge_u32 s71, s70")
            if dyn:
                A(f"s_cbranch_scc0 L_go{so}")
                A("s_getpc_b64 s[46:47]") if False else None
                A(f"s_mov_b32 s68, {so}")
                A("s_branch L_dyn")
                A.label(f"L_ret{so}")
                A(f"s_mov_b32 s{so}, s71")
                A.label(f"L_go{so}")
            else:
                A(f"s_cselect_b32 s{so}, s30, s{so}")
            issueK(base, so)
        D = lambda j, r: 20 + 4 * (j & 3) + r
        for rho in range(4): A(f"v_cndmask_b32 v{44+rho}, v{D(rho,0)}, v{D(rho+1,1)}, s[60:61]")
        for rho in range(4): A(f"v_cndmask_b32 v{44+rho}, v{44+rho}, v{D(rho+2,2)}, s[62:63]")
        for rho in (1, 2, 3, 0): A(f"v_cndmask_b32 v{44+rho}, v{44+rho}, v{D(rho+3,3)}, s[64:65]")
        for rho in range(1, 4):
            qp = ",".join(str((q - rho) & 3) for q in range(4))
            dpp("v_add_f32", 44, 44 + rho, 44, f"quad_perm:[{qp}]")
        rbf(44, 44)
        A("v_mul_f32 v44, s74, v44")
        rbf(44, 44)
        A("v_mul_f32 v44, s75, v44")
        A("v_cmp_gt_f32 vcc, v44, v18")
        A(f"s_cbranch_vccz L_nors{u}")
        A("v_max_f32 v45, v44, v18")
        quad_all(45, "v_max_f32")
        rows_all(45, 46, "v_max_f32")
        A("v_sub_f32 v46, v18, v45")
        A("v_exp_f32 v46, v46")
        A("v_mov_b32 v18, v45")
        A("v_mul_f32 v19, v19, v46")
        for h in range(4): A(f"v_mov_b32_dpp v47, v46 row_newbcast:{4*h} row_mask:{hex(1<<h)} bank_mask:0xf")
        for r in range(10, 18): A(f"v_mul_f32 v{r}, v{r}, v47")
        A.label(f"L_nors{u}")
        A("v_sub_f32 v44, v44, v18")
        A("v_exp_f32 v44, v44")
        A("v_cvt_pk_bf16_f32 v45, v44, v44")
        A("v_add_f32 v19, v19, v44")
        for j in range(4):
            dpp("v_and_b32", 36 + 2 * j, 45, 4, f"quad_perm:[{j},{j},{j},{j}]")
            dpp("v_and_b32", 37 + 2 * j, 45, 5, f"quad_perm:[{j},{j},{j},{j}]")
        if refill: A(f"s_waitcnt vmcnt({wait})")
        for j in range(4):
            A(f"v_mfma_f32_16x16x16_bf16 v[10:13], v[{36+2*j}:{37+2*j}], v[{VB+4*j}:{VB+4*j+1}], v[10:13]")
            A(f"v_mfma_f32_16x16x16_bf16 v[14:17], v[{36+2*j}:{37+2*j}], v[{VB+4*j+2}:{VB+4*j+3}], v[14:17]")
        if refill: issueV(base, so)
    def sum4x4():
        A("v_pk_add_f32 v[20:21], v[20:21], v[24:25]"); A("v_pk_add_f32 v[22:23], v[22:23], v[26:27]")
        A("v_pk_add_f32 v[28:29], v[28:29], v[32:33]"); A("v_pk_add_f32 v[30:31], v[30:31], v[34:35]")
        A("v_pk_add_f32 v[20:21], v[20:21], v[28:29]"); A("v_pk_add_f32 v[22:23], v[22:23], v[30:31]")
        rr4(20, 21, 22, 23)
    def load_wo():
        for i in range(4):
            A(f"buffer_load_dwordx4 v[{WO+4*i}:{WO+4*i+3}], v{TC+8}, s[40:43], s78 offen {wf}")
            if i < 3: A("s_add_u32 s78, s78, 4096")
    def load_wd():
        for i in range(8):
            A(f"buffer_load_dwordx4 v[{WD+4*i}:{WD+4*i+3}], v{TC+8}, s[40:43], s78 offen {wf}")
            if i < 7: A("s_add_u32 s78, s78, 4096")

    A("s_cmp_ge_u32 s2, 256")
    A("s_cbranch_scc1 L_exit")
    A("s_load_dwordx16 s[4:19], s[0:1], 0")
    A("s_load_dwordx8 s[20:27], s[0:1], 64")
    stamp(0)
    if remap:
        A("s_bfe_u32 s71, s2, 0x30003"); A("s_lshr_b32 s73, s2, 6"); A("s_sub_u32 s73, 3, s73"); A("s_and_b32 s2, s2, 7")
        A("s_lshl_b32 s71, s71, 5"); A("s_lshl_b32 s73, s73, 3"); A("s_or_b32 s2, s2, s71"); A("s_or_b32 s2, s2, s73")
    A("v_and_b32 v1, 63, v0")
    A("v_lshrrev_b32 v44, 6, v0")
    A("v_lshlrev_b32 v3, 4, v1")
    A("v_readfirstlane_b32 s3, v44")
    A("v_bfe_u32 v45, v1, 2, 2")
    A("v_lshrrev_b32 v46, 4, v1")
    A("v_and_b32 v47, 3, v1")
    A("v_lshlrev_b32 v2, 8, v45")
    A("v_lshl_add_u32 v2, v46, 6, v2")
    A("v_lshl_add_u32 v2, v47, 4, v2")
    A("s_and_b32 s79, s2, 31")
    A(f"s_mul_i32 s59, s79, {n1*4096}"); A(f"s_mov_b32 s70, {n1*4096}")
    A("s_cmp_lt_u32 s79, 16"); A("s_cbranch_scc1 L_rng")
    A(f"s_mul_i32 s59, s79, {n2*4096}"); A(f"s_add_u32 s59, s59, {16*(n1-n2)*4096}"); A(f"s_mov_b32 s70, {n2*4096}")
    A("s_cmp_lt_u32 s79, 23"); A("s_cbranch_scc1 L_rng")
    A(f"s_mov_b32 s59, {(16*n1+7*n2)*4096}"); A(f"s_mov_b32 s70, {n4*4096}")
    A("s_cmp_eq_u32 s79, 23"); A("s_cbranch_scc1 L_rng")
    A(f"s_mul_i32 s59, s79, {n3*4096}"); A(f"s_add_u32 s59, s59, {hex(((16*n1+7*n2+n4-24*n3)*4096) & 0xffffffff)}"); A(f"s_mov_b32 s70, {n3*4096}")
    A.label("L_rng")
    if dyn: A(f"s_sub_u32 s70, s70, {LA*4096}")
    A("s_lshl_b32 s66, s3, 12"); A("s_add_u32 s66, s66, s59"); A(f"s_add_u32 s67, s66, {8*4096}")
    A("s_lshr_b32 s71, s2, 5"); A("s_lshl_b32 s71, s71, 24")
    A(f"s_mov_b32 s30, {OOB}"); A("s_mov_b32 s31, 0x20000"); A(f"s_mov_b32 s34, {OOB}"); A("s_mov_b32 s35, 0x20000")
    A(f"v_mov_b32 v52, {L_TK}"); A(f"v_mov_b32 v48, {(8*RS+7*NX)*4096}"); A("v_mov_b32 v49, 0")
    A("s_cmp_lg_u32 s3, 0")
    A("s_cbranch_scc1 L_noinit")
    A("ds_write_b64 v52, v[48:49]")
    if dyn:
        for r in range(4): A(f"v_mov_b32 v{20+r}, -1")
        A(f"ds_write_b128 v3, v[20:23] offset:{L_TB}")
        A(f"ds_write_b128 v3, v[20:23] offset:{L_TB+1024}")
        A("s_add_u32 s73, s59, s70")
        A("v_lshlrev_b32 v24, 12, v1"); A("v_add_u32 v24, s73, v24"); A("v_lshlrev_b32 v25, 2, v1")
        A("v_cmp_eq_u32 vcc, 0, v1"); A("v_addc_co_u32 v24, vcc, 0, v24, vcc")
        A(f"s_mov_b64 exec, {(1 << LA) - 1}")
        A(f"ds_write_b32 v25, v24 offset:{L_TB}")
        A("s_mov_b64 exec, -1")
    A.label("L_noinit")
    A("s_cmp_ge_u32 s79, 24")
    A("s_cbranch_scc1 L_qprod")
    A("s_waitcnt lgkmcnt(0)")
    A("s_add_u32 s28, s6, s71"); A("s_addc_u32 s29, s7, 0")
    A("s_add_u32 s32, s8, s71"); A("s_addc_u32 s33, s9, 0")
    A("s_load_dword s52, s[26:27], 0")
    A("s_cmp_eq_u32 s3, 0")
    A("s_cbranch_scc1 L_w0")
    A.label("L_ring")
    for bs, so in ST: issueK(bs, so); issueV(bs, so)
    A(f"s_add_u32 s68, s66, {(8*RS-1)*4096}")
    for k in range(NX):
        issueK(RX + 32 * k, 68); issueV(RX + 32 * k, 68)
        if k < NX - 1: A(f"s_add_u32 s68, s68, {7*4096}")
    srd(48, 4, 5, 1024)
    srd(36, 26, 27, WSN)
    common_setup()
    A("s_waitcnt lgkmcnt(0)")
    tags()
    stamp(1)
    A("s_barrier")
    A("s_branch L_qj")
    A.label("L_qprod")
    A("v_lshrrev_b32 v44, 3, v1"); A("v_and_b32 v45, 7, v1")
    A("v_lshlrev_b32 v50, 16, v44")
    A("v_lshl_add_u32 v50, v45, 4, v50")
    A("v_lshlrev_b32 v51, 4, v44")
    A("s_lshr_b32 s76, s2, 5"); A("s_lshl_b32 s76, s76, 9")
    A("s_and_b32 s73, s2, 7"); A("s_lshl_b32 s73, s73, 6"); A("s_add_u32 s76, s76, s73")
    A("s_lshl_b32 s77, s76, 1"); A("s_lshl_b32 s73, s3, 19"); A("s_add_u32 s77, s77, s73")
    A("s_lshl_b32 s73, s3, 7")
    A("s_mov_b32 s50, 1024"); A("s_mov_b32 s51, 0x20000"); A(f"s_mov_b32 s42, {4<<20}"); A("s_mov_b32 s43, 0x20000")
    for i in range(1, 8): A(f"v_add_u32 v{35+i}, {8192*i}, v50")
    A("s_waitcnt lgkmcnt(0)")
    A("s_mov_b32 s48, s4"); A("s_mov_b32 s49, s5"); A("s_mov_b32 s40, s10"); A("s_mov_b32 s41, s11")
    A("buffer_load_dwordx4 v[52:55], v3, s[48:51], 0 offen")
    A("buffer_load_dwordx4 v[32:35], v51, s[48:51], s73 offen")
    nt = " " + wf
    for i in range(8):
        va = 50 if i == 0 else 35 + i
        A(f"buffer_load_dwordx4 v[{RA+4*i}:{RA+4*i+3}], v{va}, s[40:43], s77 offen{nt}")
    A("s_load_dword s52, s[26:27], 0")
    A("s_add_u32 s28, s6, s71"); A("s_addc_u32 s29, s7, 0")
    A("s_add_u32 s32, s8, s71"); A("s_addc_u32 s33, s9, 0")
    if dyn:
        A("s_cmp_lg_u32 s3, 0"); A("s_cbranch_scc1 L_nz")
        A("s_cmp_ge_u32 s79, 28"); A("s_cbranch_scc1 L_nz")
        A("s_lshr_b32 s73, s2, 5"); A("s_lshl_b32 s73, s73, 2"); A("s_add_u32 s73, s73, s79"); A("s_sub_u32 s73, s73, 24")
        A(f"s_mul_i32 s73, s73, {cstride}"); A(f"s_add_u32 s73, s73, {CBUF}")
        A("v_mov_b32 v49, s73"); A("v_mov_b32 v48, 0")
        A("s_mov_b64 exec, 1")
        A("global_store_dword v49, v48, s[26:27] sc1")
        A("s_mov_b64 exec, -1")
        A.label("L_nz")
    A("v_lshrrev_b32 v49, 5, v1"); A("v_and_b32 v44, 1, v46")
    A("v_lshlrev_b32 v48, 8, v49"); A("v_lshl_add_u32 v48, v45, 5, v48"); A("v_lshl_add_u32 v48, v44, 4, v48")
    A("s_lshl_b32 s73, s3, 9"); A("v_add_u32 v48, s73, v48")
    common_setup()
    A("v_bfe_u32 v51, v1, 2, 1"); A("v_cmp_eq_u32 vcc, 0, v51")
    A("v_cndmask_b32 v6, 0, v4, vcc"); A("v_cndmask_b32 v7, 0, v5, vcc")
    A("v_cndmask_b32 v8, v4, 0, vcc"); A("v_cndmask_b32 v9, v5, 0, vcc")
    A("s_waitcnt vmcnt(8)")
    for k in range(4):
        A(f"v_lshlrev_b32 v{36+2*k}, 16, v{52+k}")
        A(f"v_and_b32 v{37+2*k}, 0xffff0000, v{52+k}")
    for k in range(4):
        A(f"v_lshlrev_b32 v{20+2*k}, 16, v{32+k}")
        A(f"v_and_b32 v{21+2*k}, 0xffff0000, v{32+k}")
    ln_stats(list(range(36, 44)), 44, 45, 51)
    for k in range(8): A(f"v_sub_f32 v{20+k}, v{20+k}, v44")
    for k in range(8): rbf(20 + k, 20 + k)
    for k in range(8): A(f"v_mul_f32 v{20+k}, v{20+k}, v45")
    for k in range(8): A(f"v_cvt_pk_bf16_f32 v{20+k}, v{20+k}, v{20+k}")
    for i in range(8):
        for r in range(4): A(f"v_and_b32 v{RB+4*i+r}, v{20+i}, v{6+r}")
    A("s_waitcnt vmcnt(0)")
    for i in range(8):
        c = "0" if i == 0 else "v[28:31]"
        A(f"v_mfma_f32_16x16x32_bf16 v[28:31], v[{RB+4*i}:{RB+4*i+3}], v[{RA+4*i}:{RA+4*i+3}], {c}")
    A("s_mov_b32 exec_lo, 0x00ff00ff"); A("s_mov_b32 exec_hi, 0xff00ff00")
    A(f"ds_write_b128 v48, v[28:31] offset:{L_RED}")
    A("s_mov_b64 exec, -1")
    A("s_waitcnt lgkmcnt(0)")
    A("s_barrier")
    A("s_cmp_lg_u32 s3, 0")
    A("s_cbranch_scc1 L_ring")
    A("s_setprio 3")
    A("v_and_b32 v50, 15, v1"); A("v_lshlrev_b32 v49, 10, v46"); A("v_lshl_add_u32 v49, v50, 4, v49")
    for k in range(4): A(f"ds_read_b128 v[{20+4*k}:{23+4*k}], v49 offset:{L_RED+256*k}")
    srd(36, 26, 27, WSN)
    tags()
    A("v_and_b32 v45, 1, v46"); A("v_lshlrev_b32 v45, 1, v45"); A("v_lshrrev_b32 v44, 1, v46"); A("v_or_b32 v45, v45, v44")
    A("v_lshl_add_u32 v45, v50, 2, v45"); A("v_lshlrev_b32 v45, 2, v45")
    A("v_mov_b32 v49, s57"); A("v_mov_b32 v51, s58")
    A("v_cmp_eq_u32 vcc, 0, v44")
    A("v_cndmask_b32 v49, v51, v49, vcc")
    A("s_lshl_b32 s71, s76, 2"); A(f"s_add_u32 s71, s71, {QBUF}")
    A("s_waitcnt lgkmcnt(0)")
    sum4x4()
    rbf(20, 20)
    A("v_or_b32 v20, v20, v49")
    A("buffer_store_dword v20, v45, s[36:39], s71 offen sc1")
    stamp(2)
    A("s_branch L_w0b")
    A.label("L_w0")
    A("s_setprio 3")
    srd(48, 4, 5, 1024)
    srd(36, 26, 27, WSN)
    common_setup()
    A("s_waitcnt lgkmcnt(0)")
    tags()
    A.label("L_w0b")
    A("v_lshlrev_b32 v44, 1, v2")
    A("s_lshr_b32 s71, s2, 5"); A("s_lshl_b32 s71, s71, 11"); A(f"s_add_u32 s71, s71, {QBUF}")
    A("s_add_u32 s76, s26, s71"); A("s_addc_u32 s77, s27, 0")
    A.label("L_qhint")
    QS = [40, 41, 42, 43, 44, 45, 46, 47]
    for k in range(8): A(f"s_load_dword s{QS[k]}, s[76:77], {256*k} glc")
    A("s_waitcnt lgkmcnt(0)")
    for k in range(8): A(f"s_xor_b32 s{QS[k]}, s{QS[k]}, s57")
    for k in range(1, 8): A(f"s_or_b32 s40, s40, s{QS[k]}")
    A("s_and_b32 s40, s40, 0xffff")
    A("s_cbranch_scc0 L_qpoll")
    spin("L_qhint", qslp)
    A.label("L_qpoll")
    stamp(9)
    A("buffer_load_dwordx4 v[20:23], v44, s[36:39], s71 offen sc1")
    A("buffer_load_dwordx4 v[24:27], v44, s[36:39], s71 offen offset:16 sc1")
    A("s_mov_b32 s73, 0x07060302")
    A("s_waitcnt vmcnt(0)")
    for e in range(8): A(f"v_xor_b32 v{20+e}, s{57+(e&1)}, v{20+e}")
    A("v_or3_b32 v45, v20, v21, v22"); A("v_or3_b32 v45, v45, v23, v24"); A("v_or3_b32 v45, v45, v25, v26"); A("v_or_b32 v45, v45, v27")
    A("v_and_b32 v45, 0xffff, v45")
    A("v_cmp_ne_u32 vcc, 0, v45")
    A("s_cbranch_vccz L_q_ok")
    spin("L_qpoll")
    A.label("L_q_ok")
    for k in range(4): A(f"v_perm_b32 v{6+k}, v{21+2*k}, v{20+2*k}, s73")
    A(f"ds_write_b128 v3, v[6:9] offset:{L_QF}")
    A("s_waitcnt lgkmcnt(0)")
    stamp(1)
    A("s_barrier")
    for bs, so in ST: issueK(bs, so); issueV(bs, so)
    A("s_setprio 0")
    A.label("L_qj")
    A(f"ds_read_b128 v[6:9], v3 offset:{L_QF}")
    A(f"v_mov_b32 v52, {L_TK}"); A("v_mov_b32 v53, 4096")
    A("s_mov_b32 s69, 3")
    if dyn:
        A("s_lshr_b32 s58, s2, 3"); A("s_and_b32 s57, s58, 3")
        A(f"s_mul_i32 s58, s58, {cstride}"); A(f"s_add_u32 s58, s58, {CBUF}")
        A(f"s_mul_i32 s57, s57, {DP*4096}"); A(f"s_add_u32 s57, s57, {TOT*4096}")
    stamp(3)
    A.label("L_loop")
    for bs, so in ST: chunk(bs, so, True, 8 * RS - 4)
    A("s_cmp_lg_u32 s69, 3")
    A("s_cbranch_scc1 L_loop")
    A("s_mov_b32 s69, 0")
    A("s_cmp_eq_u32 s3, 0")
    A("s_cbranch_scc1 L_setup")
    A(f"s_waitcnt vmcnt({8*RS})")
    for k in range(NX): chunk(RX + 32 * k, None, False, None)
    A.label("L_setup")
    A("v_lshrrev_b32 v46, 4, v1"); A("v_and_b32 v47, 3, v1"); A("v_bfe_u32 v45, v1, 2, 2"); A("v_and_b32 v50, 15, v1")
    A("v_and_b32 v48, 1, v46"); A("v_lshlrev_b32 v48, 1, v48"); A("v_lshrrev_b32 v49, 1, v46"); A("v_or_b32 v48, v48, v49")
    A("s_lshl_b32 s71, s3, 11"); A(f"v_lshlrev_b32 v{TC}, 5, v1"); A(f"v_add_u32 v{TC}, s71, v{TC}")
    A("s_lshl_b32 s71, s3, 3"); A(f"v_lshlrev_b32 v{TC+1}, 6, v45"); A(f"v_add_u32 v{TC+1}, s71, v{TC+1}")
    A(f"v_lshrrev_b32 v{TC+2}, 1, v{TC+1}")
    A("s_lshl_b32 s71, s3, 8"); A(f"v_lshlrev_b32 v{TC+3}, 12, v46"); A(f"v_lshl_add_u32 v{TC+3}, v50, 4, v{TC+3}"); A(f"v_add_u32 v{TC+3}, s71, v{TC+3}")
    A("s_lshr_b32 s71, s3, 1"); A("s_lshl_b32 s73, s71, 6"); A(f"v_lshlrev_b32 v{TC+4}, 4, v46"); A(f"v_add_u32 v{TC+4}, s73, v{TC+4}")
    A("s_lshl_b32 s73, s71, 5"); A(f"v_mov_b32 v{TC+5}, s73")
    A(f"v_lshl_add_u32 v{TC+6}, v50, 2, v48"); A(f"v_lshlrev_b32 v{TC+6}, 2, v{TC+6}")
    A(f"v_lshlrev_b32 v{TC+7}, 3, v48"); A(f"v_lshrrev_b32 v{TC+7}, v{TC+7}, s52"); A(f"v_and_b32 v{TC+7}, 0xff, v{TC+7}")
    A("s_lshr_b32 s71, s2, 5"); A("s_lshl_b32 s71, s71, 1"); A("s_lshr_b32 s73, s3, 2"); A("s_add_u32 s71, s71, s73")
    A("s_lshl_b32 s0, s71, 15"); A("s_lshl_b32 s73, s79, 10"); A("s_add_u32 s0, s0, s73")
    A("s_and_b32 s73, s3, 3"); A("s_lshl_b32 s73, s73, 8"); A("s_add_u32 s0, s0, s73"); A(f"s_add_u32 s0, s0, {OBUF}")
    A("s_lshl_b32 s1, s71, 10"); A("s_bfe_u32 s73, s3, 0x10001"); A("s_lshl_b32 s73, s73, 9"); A("s_add_u32 s1, s1, s73")
    A("s_lshl_b32 s73, s79, 4"); A("s_add_u32 s1, s1, s73"); A(f"s_add_u32 s1, s1, {MLBUF}")
    A("s_cmp_ge_u32 s79, 16")
    A("s_cbranch_scc1 L_su2")
    A("s_mov_b32 s69, 1")
    srd(40, 12, 13, 4 << 20)
    A("s_lshr_b32 s77, s2, 5")
    A("s_lshl_b32 s78, s79, 18"); A("s_lshl_b32 s73, s3, 15"); A("s_add_u32 s78, s78, s73")
    A("s_lshl_b32 s73, s77, 7"); A("s_add_u32 s78, s78, s73")
    A("v_bfe_u32 v49, v1, 3, 1"); A("v_and_b32 v51, 7, v1")
    A(f"v_lshl_add_u32 v{TC+8}, v49, 4, v48"); A(f"v_lshlrev_b32 v{TC+8}, 10, v{TC+8}"); A(f"v_lshl_add_u32 v{TC+8}, v51, 4, v{TC+8}")
    A("v_lshrrev_b32 v44, 3, v1")
    A(f"v_lshlrev_b32 v{TC+9}, 10, v44"); A(f"v_lshl_add_u32 v{TC+9}, v51, 4, v{TC+9}")
    A(f"v_lshlrev_b32 v{TC+10}, 4, v44")
    A(f"v_lshlrev_b32 v{TC+11}, 8, v49"); A(f"v_lshl_add_u32 v{TC+11}, v51, 5, v{TC+11}"); A("s_lshl_b32 s71, s3, 9"); A(f"v_add_u32 v{TC+11}, s71, v{TC+11}")
    A(f"v_lshlrev_b32 v{TC+12}, 10, v46"); A(f"v_lshl_add_u32 v{TC+12}, v50, 4, v{TC+12}")
    A("s_lshl_b32 s16, s79, 15"); A("s_lshl_b32 s71, s3, 7"); A("s_add_u32 s16, s16, s71"); A(f"s_add_u32 s16, s16, {OBUF}")
    A("s_add_u32 s17, s16, 8192"); A("s_add_u32 s18, s16, 16384"); A("s_add_u32 s19, s16, 24576")
    A("s_lshl_b32 s20, s79, 10"); A("s_lshr_b32 s71, s3, 2"); A("s_lshl_b32 s71, s71, 9"); A("s_add_u32 s20, s20, s71"); A(f"s_add_u32 s20, s20, {MLBUF}")
    A("s_lshl_b32 s21, s79, 11"); A("s_lshl_b32 s73, s77, 8"); A("s_add_u32 s21, s21, s73"); A(f"s_add_u32 s21, s21, {HBUF}")
    if wo_early: load_wo()
    A("s_branch L_loop")
    A.label("L_su2")
    A("s_cmp_ge_u32 s79, 23")
    A("s_cbranch_scc1 L_loop")
    A("s_mov_b32 s69, 2")
    A("s_and_b32 s76, s2, 7"); A("s_lshl_b32 s76, s76, 3"); A("s_lshr_b32 s71, s2, 5"); A("s_add_u32 s76, s76, s71")
    A(f"v_lshrrev_b32 v51, 1, v{TC+6}"); A("s_lshl_b32 s71, s3, 7")
    A(f"buffer_load_ushort v{TC+13}, v51, s[48:51], s71 offen")
    A("v_bfe_u32 v49, v1, 3, 1"); A("v_lshl_add_u32 v49, v49, 5, v48"); A("s_lshl_b32 s71, s3, 6"); A("v_add_u32 v49, s71, v49")
    A("v_mul_u32_u24 v49, 3584, v49"); A("v_lshl_add_u32 v49, v47, 4, v49"); A("s_lshl_b32 s71, s76, 6"); A("v_add_u32 v49, s71, v49")
    A("v_bfe_u32 v51, v1, 2, 1"); A("v_cmp_eq_u32 vcc, 0, v51")
    A("v_mov_b32 v44, s16"); A("v_mov_b32 v45, s18"); A("v_cndmask_b32 v44, v45, v44, vcc")
    A("v_mov_b32 v45, s17"); A("v_mov_b32 v51, s19"); A("v_cndmask_b32 v45, v51, v45, vcc")
    A(f"v_cndmask_b32 v{TC+16}, 0, v4, vcc"); A(f"v_cndmask_b32 v{TC+17}, 0, v5, vcc")
    A(f"v_cndmask_b32 v{TC+18}, v4, 0, vcc"); A(f"v_cndmask_b32 v{TC+19}, v5, 0, vcc")
    A("v_add_co_u32 v44, vcc, v44, v49"); A("v_addc_co_u32 v45, vcc, 0, v45, vcc")
    for i in range(8):
        A(f"global_load_dwordx4 v[{WGU+4*i}:{WGU+4*i+3}], v[44:45], off {wf}")
        if i < 7: A(f"v_add_co_u32 v44, vcc, {4*3584}, v44"); A("v_addc_co_u32 v45, vcc, 0, v45, vcc")
    srd(40, 20, 21, 1792 * 1024)
    srd(44, 22, 23, 1024)
    A(f"v_lshlrev_b32 v{TC+8}, 4, v50"); A(f"v_lshl_add_u32 v{TC+8}, v48, 10, v{TC+8}")
    A("s_lshl_b32 s78, s76, 15"); A("s_and_b32 s73, s3, 3"); A("s_lshl_b32 s73, s73, 8"); A("s_add_u32 s78, s78, s73")
    A(f"v_lshlrev_b32 v{TC+9}, 11, v46"); A(f"v_lshl_add_u32 v{TC+9}, v50, 4, v{TC+9}")
    A("s_lshl_b32 s71, s3, 8"); A(f"v_add_u32 v{TC+10}, s71, v{TC+6}")
    A("v_lshrrev_b32 v49, 5, v1"); A("v_and_b32 v51, 7, v1"); A("v_and_b32 v44, 1, v46")
    A(f"v_lshlrev_b32 v{TC+11}, 8, v49"); A(f"v_lshl_add_u32 v{TC+11}, v51, 5, v{TC+11}"); A(f"v_lshl_add_u32 v{TC+11}, v44, 4, v{TC+11}")
    A("s_lshl_b32 s71, s3, 9"); A(f"v_add_u32 v{TC+11}, s71, v{TC+11}")
    A(f"v_lshlrev_b32 v{TC+12}, 10, v46"); A(f"v_lshl_add_u32 v{TC+12}, v50, 4, v{TC+12}")
    A(f"v_lshlrev_b32 v{TC+14}, 4, v51")
    A(f"v_lshlrev_b32 v{TC+15}, 4, v44"); A(f"v_lshl_add_u32 v{TC+15}, v50, 5, v{TC+15}")
    A("s_lshl_b32 s71, s3, 4"); A(f"v_mov_b32 v{TC+20}, s71")
    A(f"v_lshrrev_b32 v{TC+21}, 2, v1"); A(f"v_lshlrev_b32 v{TC+21}, 11, v{TC+21}"); A(f"v_lshl_add_u32 v{TC+21}, v47, 4, v{TC+21}")
    A(f"v_lshl_add_u32 v{TC+22}, v47, 2, v48"); A("s_lshl_b32 s71, s76, 4"); A(f"v_add_u32 v{TC+22}, s71, v{TC+22}"); A(f"v_lshlrev_b32 v{TC+22}, 1, v{TC+22}")
    A("s_lshl_b32 s16, s3, 8"); A(f"s_add_u32 s16, s16, {HBUF}")
    A("s_add_u32 s17, s16, 8192"); A("s_add_u32 s18, s16, 16384"); A("s_add_u32 s19, s16, 24576")
    A("s_lshl_b32 s21, s76, 11"); A("s_lshl_b32 s73, s3, 9"); A("s_add_u32 s21, s21, s73"); A(f"s_add_u32 s21, s21, {YBUF}")
    A("s_lshl_b32 s22, s76, 6"); A(f"s_add_u32 s22, s22, {YBUF}")
    A("s_add_u32 s23, s22, 32768"); A("s_add_u32 s24, s22, 65536"); A("s_add_u32 s25, s22, 98304")
    if wd_early:
        A("s_cmp_ge_u32 s3, 4"); A("s_cbranch_scc1 L_loop")
        load_wd()
    A("s_branch L_loop")

    if dyn:
        A.label("L_dyn")
        A("s_sub_u32 s73, s71, s70"); A("s_lshr_b32 s73, s73, 10")
        A("v_mov_b32 v48, s73")
        A.label("L_dynw")
        A(f"ds_read_b32 v49, v48 offset:{L_TB}")
        A("s_waitcnt lgkmcnt(0)")
        A("v_readfirstlane_b32 s71, v49")
        A("s_cmp_lg_u32 s71, -1")
        A("s_cbranch_scc1 L_dyng")
        spin("L_dynw")
        A.label("L_dyng")
        A("s_bitcmp1_b32 s71, 0")
        A("s_cbranch_scc0 L_dynr")
        A("s_and_b32 s71, s71, -2")
        A("s_max_u32 vcc_lo, s71, s57"); A("s_sub_u32 vcc_lo, vcc_lo, s57")
        A(f"s_cmp_lt_u32 vcc_lo, {(DP-t4)*4096}"); A("s_cselect_b32 vcc_hi, 4, 2")
        A(f"s_cmp_lt_u32 vcc_lo, {(DP-t8)*4096}"); A(f"s_cselect_b32 vcc_hi, {b0}, vcc_hi")
        A("s_mov_b32 s14, vcc_hi"); A("s_mov_b32 s15, vcc_hi")
        A("s_atomic_add s14, s[26:27], s58 glc")
        A(f"v_lshl_add_u32 v48, v1, 2, v48")
        A(f"s_sub_u32 s73, s15, {LA}")
        A("s_waitcnt lgkmcnt(0)")
        A("v_add_u32 v49, s14, v1")
        A("v_lshlrev_b32 v50, 12, v49"); A("v_add_u32 v50, s57, v50")
        A("s_add_u32 s14, s14, s15")
        A(f"s_cmp_ge_u32 s14, {DP}")
        A("s_cbranch_scc1 L_dynx")
        A("v_cmp_eq_u32 vcc, s73, v1"); A("v_addc_co_u32 v50, vcc, 0, v50, vcc")
        A("v_cmp_gt_u32 vcc, s15, v1")
        A("s_mov_b64 exec, vcc")
        A(f"ds_write_b32 v48, v50 offset:{L_TB+4*LA}")
        A("s_mov_b64 exec, -1")
        A("s_branch L_dynr")
        A.label("L_dynx")
        A("v_mov_b32 v51, s30")
        A(f"v_cmp_gt_u32 vcc, {DP}, v49")
        A("v_cndmask_b32 v50, v51, v50, vcc")
        A(f"ds_write_b32 v48, v50 offset:{L_TB+4*LA}")
        A.label("L_dynr")
        if RS == 2:
            A("s_cmp_eq_u32 s68, 67")
            A("s_cbranch_scc1 L_ret67")
        A("s_branch L_ret66")
    A.label("L_done")
    A("s_cmp_eq_u32 s69, 3")
    A("s_cbranch_scc1 L_end")
    stamp(4)
    quad_all(19, "v_add_f32")
    A(f"ds_write_b32 v{TC+2}, v18 offset:{L_MX}")
    rows_all(19, 49, "v_add_f32")
    A(f"ds_write_b128 v{TC}, v[10:13] offset:{L_OM}")
    A(f"ds_write_b128 v{TC}, v[14:17] offset:{L_OM+16}")
    A(f"ds_write_b64 v{TC+1}, v[18:19] offset:{L_ML}")
    A("s_mov_b32 s73, 0xffffff00")
    A("s_waitcnt lgkmcnt(0)")
    A("s_barrier")
    stamp(5)
    A(f"ds_read_b128 v[20:23], v{TC+5} offset:{L_MX}")
    A(f"ds_read_b128 v[24:27], v{TC+5} offset:{L_MX+16}")
    A(f"ds_read_b128 v[28:31], v{TC+4} offset:{L_ML}")
    A(f"ds_read_b128 v[10:13], v{TC+3} offset:{L_OM}")
    A(f"ds_read_b128 v[14:17], v{TC+3} offset:{L_OM+2048}")
    A("v_mov_b32 v38, s55"); A("v_mov_b32 v39, s56")
    A("s_waitcnt lgkmcnt(3)")
    A("v_max3_f32 v36, v20, v21, v22"); A("v_max3_f32 v37, v23, v24, v25"); A("v_max3_f32 v36, v36, v26, v27"); A("v_max_f32 v36, v36, v37")
    A("v_and_b32 v36, s73, v36")
    A("s_waitcnt lgkmcnt(2)")
    A("v_sub_f32 v28, v28, v36"); A("v_sub_f32 v30, v30, v36")
    A("v_exp_f32 v28, v28"); A("v_exp_f32 v30, v30")
    A("v_or_b32 v36, s53, v36")
    A("s_waitcnt lgkmcnt(0)")
    for r in range(4): A(f"v_mul_f32 v{10+r}, v{10+r}, v28")
    for r in range(4): A(f"v_fmac_f32 v{10+r}, v{14+r}, v30")
    A("v_mul_f32 v37, v28, v29")
    A("v_fmac_f32 v37, v30, v31")
    rr4(10, 11, 12, 13)
    A(f"v_and_or_b32 v10, v10, s73, v{TC+7}")
    A(f"buffer_store_dword v10, v{TC+6}, s[36:39], s0 offen sc1")
    A("s_bitcmp1_b32 s3, 0")
    A("s_cbranch_scc1 L_mj")
    rows_all(37, 49, "v_add_f32")
    A("v_and_b32 v37, s73, v37"); A("v_or_b32 v37, s54, v37")
    A("s_mov_b64 exec, 1")
    A("buffer_store_dwordx4 v[36:39], v3, s[36:39], s1 offen sc1")
    A("s_mov_b64 exec, -1")
    A.label("L_mj")
    stamp(6)
    A("s_cmp_lg_u32 s69, 1")
    A("s_cbranch_scc1 L_role2")
    if not wo_early: load_wo()
    OB, MB = MO, MO + 16
    A("s_mov_b32 exec_hi, 0")
    A.label("L_h1pre")
    A("buffer_load_dword v53, v3, s[36:39], s20 offen offset:12 sc1")
    A("s_waitcnt vmcnt(0)")
    A("v_cmp_eq_u32 vcc, s56, v53")
    A("s_bcnt1_i32_b64 s71, vcc")
    A(f"s_cmp_ge_u32 s71, {thr1}")
    A("s_cbranch_scc1 L_h1go")
    spin("L_h1pre", slp1)
    A.label("L_h1go")
    gather("L_h1", [[(MB + 4 * j, TC + 10, 20, 128 * j), (OB + 4 * j, TC + 9, 16 + j, 0)] for j in range(4)])
    stamp(7)
    A(f"v_max3_f32 v20, v{MB}, v{MB+4}, v{MB+8}"); A(f"v_max_f32 v20, v20, v{MB+12}")
    dpp("v_max_f32", 20, 20, 20, "row_ror:8")
    rows_all(20, 21, "v_max_f32")
    for j in range(4): A(f"v_sub_f32 v{MB+4*j}, v{MB+4*j}, v20")
    for j in range(4): A(f"v_exp_f32 v{MB+4*j}, v{MB+4*j}")
    A(f"v_mul_f32 v21, v{MB}, v{MB+1}")
    for j in range(1, 4): A(f"v_fmac_f32 v21, v{MB+4*j}, v{MB+4*j+1}")
    for r in range(4): A(f"v_mul_f32 v{24+r}, v{OB+r}, v{MB}")
    dpp("v_add_f32", 21, 21, 21, "row_ror:8")
    for r in range(4): A(f"v_fmac_f32 v{24+r}, v{OB+4+r}, v{MB+4}")
    A("v_mov_b32 v22, v21")
    for r in range(2): A(f"v_fmac_f32 v{24+r}, v{OB+8+r}, v{MB+8}")
    A("v_permlane32_swap_b32 v21, v22")
    for r in range(2, 4): A(f"v_fmac_f32 v{24+r}, v{OB+8+r}, v{MB+8}")
    A("v_add_f32 v21, v21, v22")
    A("v_mov_b32 v22, v21")
    for r in range(4): A(f"v_fmac_f32 v{24+r}, v{OB+12+r}, v{MB+12}")
    A("v_permlane16_swap_b32 v21, v22")
    A("v_add_f32 v21, v21, v22")
    A("v_permlane32_swap_b32 v24, v25")
    A("v_permlane32_swap_b32 v26, v27")
    A("v_add_f32 v24, v24, v25")
    A("v_add_f32 v26, v26, v27")
    A("v_rcp_f32 v21, v21")
    A("v_permlane16_swap_b32 v24, v26")
    A("v_add_f32 v24, v24, v26")
    dpp("v_add_f32", 24, 24, 24, "row_ror:8")
    A("v_mul_f32 v24, v24, v21")
    A("v_cvt_pk_bf16_f32 v24, v24, v24")
    for i in range(4):
        dpp("v_and_b32", 36 + 2 * i, 24, 4, f"quad_perm:[{i},{i},{i},{i}]")
        dpp("v_and_b32", 37 + 2 * i, 24, 5, f"quad_perm:[{i},{i},{i},{i}]")
    for i in range(4):
        c0 = "0" if i == 0 else "v[10:13]"; c1 = "0" if i == 0 else "v[14:17]"
        A(f"v_mfma_f32_16x16x16_bf16 v[10:13], v[{36+2*i}:{37+2*i}], v[{WO+4*i}:{WO+4*i+1}], {c0}")
        A(f"v_mfma_f32_16x16x16_bf16 v[14:17], v[{36+2*i}:{37+2*i}], v[{WO+4*i+2}:{WO+4*i+3}], {c1}")
    A("s_mov_b32 exec_lo, 0xff0000ff"); A("s_mov_b32 exec_hi, 0")
    A(f"ds_write_b128 v{TC+11}, v[10:13] offset:{L_RED}")
    A(f"ds_write_b128 v{TC+11}, v[14:17] offset:{L_RED+16}")
    A("s_mov_b64 exec, -1")
    A("s_waitcnt lgkmcnt(0)")
    A("s_barrier")
    A("s_cmp_lg_u32 s3, 0")
    A("s_cbranch_scc1 L_end")
    for k in range(4): A(f"ds_read_b128 v[{20+4*k}:{23+4*k}], v{TC+12} offset:{L_RED+256*k}")
    A("s_waitcnt lgkmcnt(0)")
    sum4x4()
    A(f"v_and_or_b32 v20, v20, s73, v{TC+7}")
    A(f"buffer_store_dword v20, v{TC+6}, s[36:39], s21 offen sc1")
    stamp(8)
    A("s_branch L_end")
    A.label("L_role2")
    A("s_cmp_lg_u32 s69, 2")
    A("s_cbranch_scc1 L_end")
    if not wd_early:
        A("s_cmp_ge_u32 s3, 4"); A("s_cbranch_scc1 L_nowd")
        load_wd()
        A.label("L_nowd")
    if pretouch:
        for j in range(4): A(f"buffer_load_dwordx4 v[{20+4*j}:{23+4*j}], v{TC+9}, s[36:39], s{16+j} offen sc1")
        A("s_cmp_lg_u32 s3, 4"); A("s_cbranch_scc1 L_nopt")
        for j in range(4): A(f"buffer_load_dwordx4 v[{20+4*j}:{23+4*j}], v{TC+21}, s[36:39], s{22+j} offen sc1")
        A.label("L_nopt")
    A("s_mov_b32 exec_lo, 0x00010001"); A("s_mov_b32 exec_hi, 0x00010001")
    A.label("L_h2pre")
    A(f"buffer_load_dword v53, v{TC+9}, s[36:39], s16 offen sc1")
    A("s_waitcnt vmcnt(0)")
    A("v_and_b32 v53, 0xff, v53")
    A("v_cmp_eq_u32 vcc, s53, v53")
    A("s_cbranch_vccnz L_h2go")
    spin("L_h2pre", slp1)
    A.label("L_h2go")
    A("s_mov_b64 exec, -1")
    A(f"v_lshlrev_b32 v{TC+13}, 16, v{TC+13}")
    gather("L_h2", [[(20 + 4 * j, TC + 9, 16 + j, 0)] for j in range(4)])
    stamp(7)
    sum4x4()
    rbf(20, 20)
    A(f"v_add_f32 v20, v20, v{TC+13}")
    rbf(20, 20)
    A("v_readfirstlane_b32 s71, v20")
    A(f"ds_write_b32 v{TC+10}, v20 offset:{L_HL}")
    A("v_subrev_f32 v25, s71, v20")
    A("v_mov_b32 v24, s71")
    A("v_mul_f32 v26, v25, v25")
    for ctl in ("quad_perm:[1,0,3,2]", "quad_perm:[2,3,0,1]", "row_ror:8", "row_ror:4"):
        dpp("v_add_f32", 25, 25, 25, ctl); dpp("v_add_f32", 26, 26, 26, ctl)
    A("v_permlane32_swap_b32 v25, v26")
    A("v_add_f32 v25, v25, v26")
    A("v_mov_b32 v26, v25")
    A("v_permlane16_swap_b32 v25, v26")
    A("v_add_f32 v25, v25, v26")
    A("s_mov_b64 exec, 1")
    A(f"ds_write_b64 v{TC+20}, v[24:25] offset:{L_ST}")
    A("s_mov_b32 exec_lo, 0"); A("s_mov_b32 exec_hi, 1")
    A(f"ds_write_b32 v{TC+20}, v25 offset:{L_ST+8}")
    A("s_mov_b64 exec, -1")
    A("s_waitcnt lgkmcnt(0)")
    A("s_barrier")
    A(f"ds_read_b128 v[24:27], v{TC+14} offset:{L_ST}")
    A("s_waitcnt lgkmcnt(0)")
    A("v_readfirstlane_b32 s71, v24")
    A("v_subrev_f32 v24, s71, v24")
    A(f"v_fma_f32 v27, v24, {'s68'}, v25") if False else None
    A("v_mul_f32 v27, 0x42800000, v24")
    A("v_add_f32 v28, v25, v27")
    A("v_add_f32 v25, v25, v28")
    A("v_fmac_f32 v26, v24, v25")
    for ctl in ("quad_perm:[1,0,3,2]", "quad_perm:[2,3,0,1]", "row_half_mirror"):
        dpp("v_add_f32", 28, 28, 28, ctl); dpp("v_add_f32", 26, 26, 26, ctl)
    A("v_mul_f32 v28, 0x3b000000, v28")
    A("v_mul_f32 v26, 0x3b000000, v26")
    A("v_fma_f32 v26, -v28, v28, v26")
    A("v_add_f32 v28, s71, v28")
    A("v_max_f32 v26, 0, v26")
    ln_fin(28, 26)
    A("v_sub_f32 v20, v20, v28")
    rbf(20, 20)
    A("v_mul_f32 v20, v20, v26")
    A("v_cvt_pk_bf16_f32 v20, v20, v20")
    A(f"v_mov_b32_dpp v21, v20 row_half_mirror {DPPF}")
    for i in range(8):
        F = 24 + 4 * (i & 3)
        p = i & 3
        own, oth = (20, 21) if i < 4 else (21, 20)
        pa, pb = (p, 3 - p) if i < 4 else (3 - p, p)
        for r in range(2): dpp("v_and_b32", F + r, own, TC + 16 + r, f"quad_perm:[{pa},{pa},{pa},{pa}]")
        for r in range(2, 4): dpp("v_and_b32", F + r, oth, TC + 16 + r, f"quad_perm:[{pb},{pb},{pb},{pb}]")
        c = "0" if i == 0 else "v[10:13]"
        A(f"v_mfma_f32_16x16x32_bf16 v[10:13], v[{F}:{F+3}], v[{WGU+4*i}:{WGU+4*i+3}], {c}")
    A("s_mov_b32 exec_lo, 0x00ff00ff"); A("s_mov_b32 exec_hi, 0xff00ff00")
    A(f"ds_write_b128 v{TC+11}, v[10:13] offset:{L_RED}")
    A("s_mov_b64 exec, -1")
    A("s_waitcnt lgkmcnt(0)")
    A("s_barrier")
    stamp(8)
    A("s_cmp_ge_u32 s3, 4")
    A("s_cbranch_scc1 L_fin")
    for k in range(4): A(f"ds_read_b128 v[{20+4*k}:{23+4*k}], v{TC+12} offset:{L_RED+256*k}")
    A("v_mov_b32 v52, s73")
    A("s_waitcnt lgkmcnt(0)")
    sum4x4()
    rbf(20, 20)
    dpp("v_mul_f32", 21, 20, 20, "row_ror:8")
    A("v_cvt_pk_bf16_f32 v21, v21, v21")
    for i in range(8):
        F = 24 + 4 * (i & 3)
        for r in range(4): dpp("v_and_b32", F + r, 21, TC + 16 + r, f"row_newbcast:{i}")
        c = "0" if i == 0 else "v[10:13]"
        A(f"v_mfma_f32_16x16x32_bf16 v[10:13], v[{F}:{F+3}], v[{WD+4*i}:{WD+4*i+3}], {c}")
    A("s_mov_b32 exec_hi, 0")
    for r in range(4): A(f"v_and_or_b32 v{10+r}, v{10+r}, v52, s{53+r}")
    A(f"buffer_store_dwordx4 v[10:13], v{TC+15}, s[36:39], s21 offen sc1")
    stamp(9)
    A("s_branch L_end")
    A.label("L_fin")
    A("s_cmp_lg_u32 s3, 4")
    A("s_cbranch_scc1 L_end")
    A("s_cmp_ge_u32 s76, 32")
    A("s_cbranch_scc1 L_end")
    A(f"v_lshlrev_b32 v49, 1, v{TC+22}")
    A(f"ds_read_b32 v50, v49 offset:{L_HL}")
    for r in range(4): A(f"v_mov_b32 v{32+r}, 0")
    gather("L_h3", [[(20 + 4 * j, TC + 21, 22 + j, 0)] for j in range(4)], [-1, -1, -1, 0xffffffff])
    stamp(9)
    sum4x4()
    dpp("v_add_f32", 20, 20, 20, "row_ror:8"); dpp("v_add_f32", 20, 20, 20, "row_ror:4")
    A("s_waitcnt lgkmcnt(0)")
    rbf(20, 20)
    A("v_add_f32 v20, v20, v50")
    rbf(20, 20)
    A("s_mov_b32 exec_lo, 0x000f000f"); A("s_mov_b32 exec_hi, 0x000f000f")
    A(f"buffer_store_short_d16_hi v20, v{TC+22}, s[44:47], 0 offen")
    A("s_cmp_lg_u32 s76, 0")
    A("s_cbranch_scc1 L_end")
    A("s_mov_b64 exec, 1")
    A("v_mov_b32 v21, s52")
    A("buffer_store_dword v21, v3, s[36:39], 0 offen sc1")
    A.label("L_end")
    if prof:
        stamp(10)
        A("s_mov_b64 exec, -1")
        A("s_waitcnt lgkmcnt(0)")
        for i in range(11): A(f"v_writelane_b32 v20, s{80+2*i}, {i}")
        A("v_writelane_b32 v20, s71, 11")
        A("s_getreg_b32 s71, hwreg(HW_REG_XCC_ID)"); A("v_writelane_b32 v20, s71, 12")
        A("s_lshl_b32 s71, s2, 3"); A("s_add_u32 s71, s71, s3"); A("s_lshl_b32 s71, s71, 6"); A(f"s_add_u32 s71, s71, {PROF}")
        A("v_lshlrev_b32 v21, 2, v1")
        A("s_mov_b64 exec, 0xffff")
        A("buffer_store_dword v20, v21, s[36:39], s71 offen")
    A.label("L_exit")
    A("s_endpgm")
    body = A.finish()
    nv = max(A.maxv + 1, 136)
    txt = HEADER + f"; @launch grid=(256,1,1) block=(512,1,1) lds={L_END}\n"
    txt += f'.amdgcn_target "amdgcn-amd-amdhsa--gfx950"\n.text\n.globl {KNAME}\n.p2align 8\n.type {KNAME},@function\n{KNAME}:\n'
    txt += body
    txt += f'.section .rodata,"a"\n.p2align 6\n.amdhsa_kernel {KNAME}\n  .amdhsa_next_free_vgpr {nv}\n  .amdhsa_next_free_sgpr 102\n'
    txt += f"  .amdhsa_accum_offset {(nv+3)//4*4}\n  .amdhsa_group_segment_fixed_size 0\n  .amdhsa_kernarg_size 96\n  .amdhsa_user_sgpr_count 2\n"
    txt += "  .amdhsa_user_sgpr_kernarg_segment_ptr 1\n  .amdhsa_system_sgpr_workgroup_id_x 1\n  .amdhsa_float_denorm_mode_32 3\n.end_amdhsa_kernel\n"
    return txt

if __name__ == "__main__":
    import argparse
    p = argparse.ArgumentParser(); p.add_argument("-o"); p.add_argument("kv", nargs="*")
    a = p.parse_args()
    kw = {k: eval(v) for k, v in (x.split("=") for x in a.kv)}
    open(a.o, "w").write(gen(**kw))
```

```python
import re

TRANS = ("v_exp_f32", "v_log_f32", "v_rcp_f32", "v_rsq_f32", "v_sqrt_f32", "v_sin_f32", "v_cos_f32")

def regs_of(tok):
    t = tok.strip()
    t = re.sub(r"^(neg|abs)\((.*)\)$", r"\2", t).lstrip("-").strip("|")
    if t == "vcc": return {("s", 106), ("s", 107)}
    if t == "vcc_lo": return {("s", 106)}
    if t == "vcc_hi": return {("s", 107)}
    if t == "exec": return {("s", 126), ("s", 127)}
    if t == "m0": return {("s", 124)}
    m = re.match(r"^([vsa])(\d+)$", t)
    if m: return {(m.group(1), int(m.group(2)))}
    m = re.match(r"^([vsa])\[(\d+):(\d+)\]$", t)
    if m: return {(m.group(1), i) for i in range(int(m.group(2)), int(m.group(3)) + 1)}
    return set()

class Ins:
    def __init__(self, text):
        self.text = text
        body = text.split(";")[0].strip()
        self.is_label = body.endswith(":")
        self.is_dir = body.startswith(".") or body == ""
        self.op = ""; self.dst = set(); self.src = set(); self.ops = []
        self.kind = "none"; self.dpp = False; self.dppsrc = set(); self.srcC = set(); self.srcAB = set()
        self.states = 0; self.sdata = set(); self.ldsdma = False
        if self.is_label or self.is_dir: return
        parts = body.split(None, 1)
        self.op = op = parts[0]
        rest = parts[1] if len(parts) > 1 else ""
        ops = []; cur = ""; depth = 0
        for ch in rest:
            if ch == "[": depth += 1
            if ch == "]": depth -= 1
            if ch == "," and depth == 0: ops.append(cur.strip()); cur = ""
            else: cur += ch
        if cur.strip(): ops.append(cur.strip())
        mods = ""
        if ops:
            last = ops[-1].split(None, 1)
            ops[-1] = last[0]
            mods = last[1] if len(last) > 1 else ""
        self.ops = ops; self.mods = mods
        self.states = 1
        R = [regs_of(o) for o in ops]
        if op == "s_nop":
            self.kind = "salu"; self.states = int(ops[0], 0) + 1; return
        if op.startswith("v_mfma"):
            self.kind = "mfma"; self.dst = R[0]; self.srcAB = R[1] | R[2]; self.srcC = R[3]; self.src = self.srcAB | self.srcC
            self.passes = 8 if "32x32" in op else 4
            return
        if op.startswith("v_"):
            self.kind = "valu"
            self.dpp = "_dpp" in op
            if op.startswith("v_permlane"):
                self.dst = R[0] | R[1]; self.src = R[0] | R[1]; return
            if op.startswith("v_cmp"):
                self.dst = R[0]; self.src = set().union(*R[1:]); return
            if op in ("v_add_co_u32", "v_sub_co_u32", "v_addc_co_u32", "v_subb_co_u32", "v_mad_u64_u32"):
                self.dst = R[0] | R[1]; self.src = set().union(*R[2:]); return
            self.dst = R[0]; self.src = set().union(*R[1:]) if len(R) > 1 else set()
            if op.startswith(("v_fmac", "v_dot2c", "v_writelane")) or self.dpp: self.src |= R[0]
            if self.dpp: self.dppsrc = R[1]
            return
        if op.startswith(("buffer_", "global_")):
            self.kind = "vmem"
            if "load" in op and re.search(r"\blds\b", mods):
                self.src = set().union(*R) | regs_of("m0"); self.ldsdma = True
            elif "load" in op:
                self.dst = R[0]; self.src = set().union(*R[1:])
                if "d16" in op: self.src |= R[0]
            elif "store" in op:
                self.src = set().union(*R)
                d = R[0] if op.startswith("buffer_") else R[1]
                if "x3" in op or "x4" in op: self.sdata = d
            else:
                self.src = set().union(*R)
                if "sc0" in mods: self.dst = R[0]
            return
        if op.startswith("ds_"):
            self.kind = "ds"
            if op.startswith(("ds_read", "ds_bpermute", "ds_permute", "ds_swizzle")) or "_rtn" in op:
                self.dst = R[0]; self.src = set().union(*R[1:])
            else:
                self.src = set().union(*R)
            return
        if op.startswith("s_"):
            self.kind = "salu"
            if op.startswith(("s_cmp", "s_cbranch", "s_branch", "s_waitcnt", "s_barrier", "s_endpgm", "s_sleep", "s_setprio", "s_bitcmp")):
                self.src = set().union(*R) if R else set()
            else:
                self.dst = R[0] if R else set(); self.src = set().union(*R[1:]) if len(R) > 1 else set()
                if "saveexec" in op: self.dst |= regs_of("exec")
            return
        raise ValueError("unknown instr " + text)

def need(p, c):
    n = 0
    pv = {r for r in p.dst if r[0] in "va"}
    ps = {r for r in p.dst if r[0] == "s"}
    if p.kind == "valu":
        if c.kind == "valu":
            if c.dpp and (pv & c.dppsrc): n = max(n, 2)
            if c.op.startswith("v_permlane") and (pv & c.src): n = max(n, 2)
            if c.op.startswith(("v_readlane", "v_readfirstlane")) and (pv & c.src): n = max(n, 1)
            if p.op.replace("_e32", "").replace("_e64", "") in TRANS and (pv & c.src): n = max(n, 1)
            if "sdwa" in p.op and (pv & (c.src | c.dst)): n = max(n, 1)
            cs = set(c.src)
            if c.op.startswith("v_cndmask") and len(c.ops) == 4: cs |= regs_of(c.ops[3])
            if ps & cs:
                n = max(n, 4 if c.op.startswith(("v_readlane", "v_writelane")) else 2)
            if (ps & regs_of("exec")):
                n = max(n, 5 if c.dpp else (4 if c.op.startswith(("v_readlane", "v_readfirstlane", "v_writelane", "v_permlane")) else 0))
        if c.kind == "mfma":
            if pv & c.src: n = max(n, 2)
            if ps & regs_of("exec"): n = max(n, 4)
        if c.kind == "vmem" and (ps & c.src): n = max(n, 5)
        if c.kind == "salu" and (ps & c.src) and not c.op.startswith("s_cbranch"): n = max(n, 1)
    if p.kind == "mfma":
        big = {4: 8, 8: 12}[p.passes]
        if c.kind == "mfma":
            if pv & c.srcAB: n = max(n, big)
            if pv & c.srcC and not (c.srcC == p.dst and c.passes == p.passes): n = max(n, {4: 6, 8: 10}[p.passes])
            elif (pv & c.dst) and not (pv & c.srcC): n = max(n, big)
        elif c.kind in ("valu", "vmem", "ds"):
            if pv & (c.src | c.dst): n = max(n, big)
            if c.kind == "valu" and (p.srcC & c.dst): n = max(n, {4: 3, 8: 7}[p.passes])
    if p.kind == "salu" and c.ldsdma and (ps & regs_of("m0")): n = max(n, 1)
    if p.kind == "vmem" and p.sdata:
        if c.kind in ("valu", "mfma") and (p.sdata & c.dst): n = max(n, 2)
        elif p.sdata & c.dst: n = max(n, 1)
    return n

class Asm:
    def __init__(self):
        self.lines = []
    def __call__(self, text):
        for t in text.strip("\n").split("\n"):
            t = t.strip()
            if t: self.lines.append(t)
    def label(self, name): self.lines.append(name + ":")
    def finish(self):
        ins = [Ins(t) for t in self.lines]
        out = []
        W = 14
        for c in ins:
            if c.kind != "none":
                dist = 0; req = 0
                for p in reversed(out):
                    if p.kind == "none": continue
                    if p.op in ("s_branch", "s_endpgm", "s_setpc_b64"): break
                    r = need(p, c) - dist
                    req = max(req, r)
                    dist += p.states
                    if dist >= W: break
                if req > 0:
                    out.append(Ins(f"s_nop {req - 1}"))
            out.append(c)
        labels = {o.text.split(":")[0]: i for i, o in enumerate(out) if o.is_label}
        errs = []
        for i, b in enumerate(out):
            if b.op.startswith(("s_cbranch", "s_branch")):
                tgt = labels[b.ops[0]]
                pre = [o for o in out[max(0, i - 2 * W): i + 1] if o.kind != "none"]
                for k in range(len(pre) - 2, -1, -1):
                    if pre[k].op in ("s_branch", "s_endpgm"): pre = pre[k + 1:]; break
                post = []
                for o in out[tgt: tgt + 2 * W]:
                    if o.kind == "none": continue
                    post.append(o)
                    if o.op in ("s_branch", "s_endpgm"): break
                d0 = 0
                for c in post:
                    dist = d0
                    for p in reversed(pre):
                        if need(p, c) > dist: errs.append(f"branch hazard: [{p.text}] -> {b.text} -> [{c.text}] need {need(p, c)} have {dist}")
                        dist += p.states
                        if dist >= W: break
                    d0 += c.states
                    if d0 >= W: break
        if errs: raise RuntimeError("\n".join(errs))
        self.maxv = max([r[1] for o in out for r in (o.dst | o.src) if r[0] == "v"] + [0])
        self.maxs = max([r[1] for o in out for r in (o.dst | o.src) if r[0] == "s" and r[1] < 102] + [0])
        return "\n".join(("" if (o.is_label or o.is_dir) else "    ") + o.text for o in out) + "\n"
```

```python
import sys, struct
sys.path.insert(0, "gen")
from asmlib import Asm

KNAME = "sequential_preLN__gqa_block_cached__glu_gated_bilinear__decode_kernel"
HEADER = open("sequential_preLN__gqa_block_cached__glu_gated_bilinear__decode.s.ref").read().split("; Override launch")[0]

QBUF, OBUF, MLBUF, HBUF, YBUF, CBUF, WS_END = 0x1000, 0x10000, 0x140000, 0xA0000, 0xB0000, 0xD0000, 0x180000
PROF = 0x100000
L_OM, L_ML, L_MX, L_QRED, L_QF, L_TK, L_ST, L_RED, L_HL, L_TB, L_END = 0, 0x4000, 0x4100, 0x4200, 0x4600, 0x4A00, 0x4B00, 0x5000, 0x6000, 0x6800, 0x7000
DPPF = "row_mask:0xf bank_mask:0xf"
SPIN = 1 << 20
fb = lambda x: hex(struct.unpack("<I", struct.pack("<f", float(x)))[0])

def gen(NX=3, prof=False, wq_nt=True, off1=4, off2=20, off3=8, wo_early=True, wd_early=True, thr1=24, slp1=4, qslp=4, pretouch=True, dyn=True, DP=192, LA=2, t8=96, t4=32, b0=8, cstride=4352, RS=2, remap=True, kf='nt', vf='nt', wf='nt', fakeq=False, now=False, cut=0, PS=3, gu_early=8, wd_e=8, wo_e=4, late_at=0, gslp=0, mlsh=4, lf='sc1'):
    A = Asm()
    RA, RB, RX = 56, 88, 56 + 32 * RS
    ST = [(RA, 66), (RB, 67)][:RS]
    WGU, WD, WO = 120, 152, 120
    MO = 184
    TC = 216
    OOB = 0x1000000
    if not dyn: DP = 0
    TOT = 4096 - 4 * DP
    n0 = (TOT + 16 * off1 + 7 * off2 + 8 * off3) / 32
    import itertools
    best = None
    for d1, d2, d3 in itertools.product((0, 1), repeat=3):
        a1, a2, a3 = int(n0) - off1 + d1, int(n0) - off2 + d2, int(n0) - off3 + d3
        a4 = TOT - 16 * a1 - 7 * a2 - 8 * a3
        cost = (max(int(n0) + max(d1, d2, d3), a4), -a4)
        if best is None or cost < best[0]: best = (cost, a1, a2, a3, a4)
    _, n1, n2, n3, n4 = best
    def stamp(i):
        if prof: A(f"s_memrealtime s[{80+2*i}:{81+2*i}]")
    def rr4(a, b, c, d):
        A(f"v_permlane32_swap_b32 v{a}, v{b}")
        A(f"v_permlane32_swap_b32 v{c}, v{d}")
        A(f"v_add_f32 v{a}, v{a}, v{b}")
        A(f"v_add_f32 v{c}, v{c}, v{d}")
        A(f"v_permlane16_swap_b32 v{a}, v{c}")
        A(f"v_add_f32 v{a}, v{a}, v{c}")
    def rows_all(x, t, op):
        A(f"v_mov_b32 v{t}, v{x}")
        A(f"v_permlane32_swap_b32 v{x}, v{t}")
        A(f"{op} v{x}, v{x}, v{t}")
        A(f"v_mov_b32 v{t}, v{x}")
        A(f"v_permlane16_swap_b32 v{x}, v{t}")
        A(f"{op} v{x}, v{x}, v{t}")
    def dpp(op, d, s, o, ctl): A(f"{op}_dpp v{d}, v{s}, v{o} {ctl} {DPPF}")
    def quad_all(x, op):
        dpp(op, x, x, x, "quad_perm:[1,0,3,2]"); dpp(op, x, x, x, "quad_perm:[2,3,0,1]")
    def wave_all(x, t, op):
        quad_all(x, op); dpp(op, x, x, x, "row_ror:8"); dpp(op, x, x, x, "row_ror:4"); rows_all(x, t, op)
    def rbf(d, s): A(f"v_cvt_pk_bf16_f32 v{d}, 0, v{s}")
    def ln_fin(mean, var):
        rbf(var, var)
        rbf(mean, mean)
        A(f"v_add_f32 v{var}, 0x37280000, v{var}")
        rbf(var, var)
        A(f"v_sqrt_f32 v{var}, v{var}")
        rbf(var, var)
        A(f"v_rcp_f32 v{var}, v{var}")
    def ln_stats(vals, mean, rinv, t):
        A(f"v_add_f32 v{mean}, v{vals[0]}, v{vals[1]}")
        A(f"v_add_f32 v{t}, v{vals[2]}, v{vals[3]}")
        A(f"v_add_f32 v{rinv}, v{vals[4]}, v{vals[5]}")
        A(f"v_add_f32 v{mean}, v{mean}, v{t}")
        A(f"v_add_f32 v{t}, v{vals[6]}, v{vals[7]}")
        A(f"v_add_f32 v{rinv}, v{rinv}, v{t}")
        A(f"v_add_f32 v{mean}, v{mean}, v{rinv}")
        wave_all(mean, t, "v_add_f32")
        A(f"v_mul_f32 v{mean}, 0x3b000000, v{mean}")
        for v in vals: A(f"v_sub_f32 v{v}, v{v}, v{mean}")
        A(f"v_mul_f32 v{rinv}, v{vals[0]}, v{vals[0]}")
        A(f"v_mul_f32 v{t}, v{vals[1]}, v{vals[1]}")
        for k in range(2, 8, 2):
            A(f"v_fmac_f32 v{rinv}, v{vals[k]}, v{vals[k]}")
            A(f"v_fmac_f32 v{t}, v{vals[k+1]}, v{vals[k+1]}")
        A(f"v_add_f32 v{rinv}, v{rinv}, v{t}")
        wave_all(rinv, t, "v_add_f32")
        A(f"v_mul_f32 v{rinv}, 0x3b000000, v{rinv}")
        ln_fin(mean, rinv)
    def srd(d, lo, hi, n):
        A(f"s_mov_b32 s{d}, s{lo}"); A(f"s_mov_b32 s{d+1}, s{hi}"); A(f"s_mov_b32 s{d+2}, {hex(n)}"); A(f"s_mov_b32 s{d+3}, 0x20000")
    def spin(label, slp=0):
        A("s_sub_u32 s72, s72, 1")
        A("s_cbranch_scc1 L_end")
        if slp: A(f"s_sleep {slp}")
        A(f"s_branch {label}")
    def gather(name, groups, raws, init_masks=None):
        for j in range(len(groups)):
            m = -1 if init_masks is None else init_masks[j]
            if m == -1: A(f"s_mov_b64 s[{4+2*j}:{5+2*j}], -1")
            else: A(f"s_mov_b32 s{4+2*j}, {hex(m & 0xffffffff)}"); A(f"s_mov_b32 s{5+2*j}, {hex(m >> 32)}")
        raws = raws[:PS]
        NL = sum(len(g) for g in groups)
        def issue(rb):
            n = 0
            for j, g in enumerate(groups):
                A(f"s_or_b64 exec, s[{4+2*j}:{5+2*j}], 1")
                for (r, va, so, imm) in g:
                    A(f"buffer_load_dwordx4 v[{rb+4*n}:{rb+4*n+3}], v{va}, s[36:39], s{so} offen offset:{imm} {lf}")
                    n += 1
        for rb in raws: issue(rb)
        A.label(f"{name}_rnd")
        for k, rb in enumerate(raws):
            A(f"s_waitcnt vmcnt({(len(raws)-1)*NL})")
            n = 0
            for j, g in enumerate(groups):
                A(f"s_mov_b64 exec, s[{4+2*j}:{5+2*j}]")
                A(f"s_cbranch_execz {name}_c{k}_{j}")
                regs = []
                for (r, _, _, _) in g:
                    for e in range(4):
                        A(f"v_xor_b32 v{r+e}, s{53+e}, v{rb+4*n+e}"); regs.append(r + e)
                    n += 1
                A(f"v_or3_b32 v55, v{regs[0]}, v{regs[1]}, v{regs[2]}")
                rest = regs[3:]
                while len(rest) >= 2:
                    A(f"v_or3_b32 v55, v55, v{rest[0]}, v{rest[1]}"); rest = rest[2:]
                A(f"v_or_b32 v55, v55, v{rest[0]}")
                A("v_and_b32 v55, 0xff, v55")
                A(f"v_cmp_ne_u32 s[{4+2*j}:{5+2*j}], 0, v55")
                A.label(f"{name}_c{k}_{j}")
            A("s_or_b64 s[12:13], s[4:5], s[6:7]")
            A("s_or_b64 s[14:15], s[8:9], s[10:11]")
            A("s_or_b64 s[12:13], s[12:13], s[14:15]")
            A(f"s_cbranch_scc0 {name}_ok")
            if gslp: A(f"s_sleep {gslp}")
            issue(rb)
        spin(f"{name}_rnd")
        A.label(f"{name}_ok")
        A("s_mov_b64 exec, -1")
    def issueK(base, so):
        for j in range(4):
            r = base + 4 * j
            A(f"buffer_load_dwordx4 v[{r}:{r+3}], v2, s[28:31], s{so} offen offset:{1024*j} {kf}")
    def issueV(base, so):
        for j in range(4):
            r = base + 16 + 4 * j
            A(f"buffer_load_dwordx4 v[{r}:{r+3}], v3, s[32:35], s{so} offen offset:{1024*j} {vf}")
    def common_setup():
        A("s_mov_b32 s60, 0x22222222"); A("s_mov_b32 s61, 0x22222222")
        A("s_mov_b32 s62, 0x44444444"); A("s_mov_b32 s63, 0x44444444")
        A("s_mov_b32 s64, 0x88888888"); A("s_mov_b32 s65, 0x88888888")
        A("s_mov_b32 s74, 0x3db504f3"); A("s_mov_b32 s75, 0x3fb8aa3b")
        A(f"s_mov_b32 s72, {SPIN}")
        A("v_mov_b32 v44, 0xffff"); A("v_mov_b32 v45, 0xffff0000")
        A("v_mov_b32 v4, 0"); A("v_mov_b32 v5, 0")
        A("v_cmp_eq_u32 vcc, 0, v47")
        A("v_cndmask_b32 v4, v4, v44, vcc")
        A("v_cndmask_b32 v4, v4, v45, s[60:61]")
        A("v_cndmask_b32 v5, v5, v44, s[62:63]")
        A("v_cndmask_b32 v5, v5, v45, s[64:65]")
        for r in range(10, 18): A(f"v_mov_b32 v{r}, 0")
        A("v_mov_b32 v18, 0xff7fffff"); A("v_mov_b32 v19, 0")
    def tags():
        A("s_add_u32 s52, s52, 0x9e3779b9")
        A("s_and_b32 s53, s52, 0xff"); A("s_bfe_u32 s54, s52, 0x80008"); A("s_bfe_u32 s55, s52, 0x80010"); A("s_lshr_b32 s56, s52, 24")
        A("s_and_b32 s57, s52, 0xffff"); A("s_lshr_b32 s58, s52, 16")
    WSN = WS_END
    uid = [0]
    def chunk(base, so, refill, wait):
        KB, VB = base, base + 16
        uid[0] += 1; u = uid[0]
        if refill:
            A(f"s_cmp_ge_u32 s{so}, s30")
            A("s_cbranch_scc1 L_done")
            A("s_mov_b64 exec, 1")
            A("ds_add_rtn_u32 v54, v52, v53")
            A("s_mov_b64 exec, -1")
            A(f"s_waitcnt vmcnt({wait}) lgkmcnt(0)")
            A("v_readfirstlane_b32 s71, v54")
        for j in range(4):
            A(f"v_mfma_f32_16x16x32_bf16 v[{20+4*j}:{23+4*j}], v[{KB+4*j}:{KB+4*j+3}], v[6:9], 0")
        if refill:
            A(f"s_add_u32 s{so}, s71, s59")
            A("s_cmp_ge_u32 s71, s70")
            if dyn:
                A(f"s_cbranch_scc0 L_go{so}")
                A("s_getpc_b64 s[46:47]") if False else None
                A(f"s_mov_b32 s68, {so}")
                A("s_branch L_dyn")
                A.label(f"L_ret{so}")
                A(f"s_mov_b32 s{so}, s71")
                A.label(f"L_go{so}")
            else:
                A(f"s_cselect_b32 s{so}, s30, s{so}")
            issueK(base, so)
        D = lambda j, r: 20 + 4 * (j & 3) + r
        for rho in range(4): A(f"v_cndmask_b32 v{44+rho}, v{D(rho,0)}, v{D(rho+1,1)}, s[60:61]")
        for rho in range(4): A(f"v_cndmask_b32 v{44+rho}, v{44+rho}, v{D(rho+2,2)}, s[62:63]")
        for rho in (1, 2, 3, 0): A(f"v_cndmask_b32 v{44+rho}, v{44+rho}, v{D(rho+3,3)}, s[64:65]")
        for rho in range(1, 4):
            qp = ",".join(str((q - rho) & 3) for q in range(4))
            dpp("v_add_f32", 44, 44 + rho, 44, f"quad_perm:[{qp}]")
        rbf(44, 44)
        A("v_mul_f32 v44, s74, v44")
        rbf(44, 44)
        A("v_mul_f32 v44, s75, v44")
        A("v_cmp_gt_f32 vcc, v44, v18")
        A(f"s_cbranch_vccz L_nors{u}")
        A("v_max_f32 v45, v44, v18")
        quad_all(45, "v_max_f32")
        rows_all(45, 46, "v_max_f32")
        A("v_sub_f32 v46, v18, v45")
        A("v_exp_f32 v46, v46")
        A("v_mov_b32 v18, v45")
        A("v_mul_f32 v19, v19, v46")
        for h in range(4): A(f"v_mov_b32_dpp v47, v46 row_newbcast:{4*h} row_mask:{hex(1<<h)} bank_mask:0xf")
        for r in range(10, 18): A(f"v_mul_f32 v{r}, v{r}, v47")
        A.label(f"L_nors{u}")
        A("v_sub_f32 v44, v44, v18")
        A("v_exp_f32 v44, v44")
        A("v_cvt_pk_bf16_f32 v45, v44, v44")
        A("v_add_f32 v19, v19, v44")
        for j in range(4):
            dpp("v_and_b32", 36 + 2 * j, 45, 4, f"quad_perm:[{j},{j},{j},{j}]")
            dpp("v_and_b32", 37 + 2 * j, 45, 5, f"quad_perm:[{j},{j},{j},{j}]")
        if refill: A(f"s_waitcnt vmcnt({wait})")
        for j in range(4):
            A(f"v_mfma_f32_16x16x16_bf16 v[10:13], v[{36+2*j}:{37+2*j}], v[{VB+4*j}:{VB+4*j+1}], v[10:13]")
            A(f"v_mfma_f32_16x16x16_bf16 v[14:17], v[{36+2*j}:{37+2*j}], v[{VB+4*j+2}:{VB+4*j+3}], v[14:17]")
        if refill: issueV(base, so)
    def sum4x4():
        A("v_pk_add_f32 v[20:21], v[20:21], v[24:25]"); A("v_pk_add_f32 v[22:23], v[22:23], v[26:27]")
        A("v_pk_add_f32 v[28:29], v[28:29], v[32:33]"); A("v_pk_add_f32 v[30:31], v[30:31], v[34:35]")
        A("v_pk_add_f32 v[20:21], v[20:21], v[28:29]"); A("v_pk_add_f32 v[22:23], v[22:23], v[30:31]")
        rr4(20, 21, 22, 23)
    def load_wo(lo, hi):
        for i in range(lo, lo if now else hi):
            A(f"buffer_load_dwordx4 v[{WO+4*i}:{WO+4*i+3}], v{TC+8}, s[40:43], s78 offen {wf}")
            if i < 3: A("s_add_u32 s78, s78, 4096")
    def load_wd(lo, hi):
        for i in range(lo, lo if now else hi):
            A(f"buffer_load_dwordx4 v[{WD+4*i}:{WD+4*i+3}], v{TC+8}, s[40:43], s78 offen {wf}")
            if i < 7: A("s_add_u32 s78, s78, 4096")
    def load_gu(lo, hi):
        for i in range(lo, lo if now else hi):
            A(f"global_load_dwordx4 v[{WGU+4*i}:{WGU+4*i+3}], v[{TC+24}:{TC+25}], off {wf}")
            if i < 7: A(f"v_add_co_u32 v{TC+24}, vcc, {4*3584}, v{TC+24}"); A(f"v_addc_co_u32 v{TC+25}, vcc, 0, v{TC+25}, vcc")
    def late_loads(tag):
        if wo_e < 4:
            A("s_cmp_lg_u32 s69, 1"); A(f"s_cbranch_scc1 L_ll1{tag}")
            load_wo(wo_e, 4)
            A.label(f"L_ll1{tag}")
        if gu_early < 8 or wd_e < 8:
            A("s_cmp_lg_u32 s69, 2"); A(f"s_cbranch_scc1 L_ll2{tag}")
            load_gu(gu_early, 8)
            if wd_e < 8:
                A("s_cmp_ge_u32 s3, 4"); A(f"s_cbranch_scc1 L_ll2{tag}")
                load_wd(wd_e, 8)
            A.label(f"L_ll2{tag}")

    A("s_cmp_ge_u32 s2, 256")
    A("s_cbranch_scc1 L_exit")
    A("s_load_dwordx16 s[4:19], s[0:1], 0")
    A("s_load_dwordx8 s[20:27], s[0:1], 64")
    stamp(0)
    if remap:
        A("s_bfe_u32 s71, s2, 0x30003"); A("s_lshr_b32 s73, s2, 6"); A("s_sub_u32 s73, 3, s73"); A("s_and_b32 s2, s2, 7")
        A("s_lshl_b32 s71, s71, 5"); A("s_lshl_b32 s73, s73, 3"); A("s_or_b32 s2, s2, s71"); A("s_or_b32 s2, s2, s73")
    A("v_and_b32 v1, 63, v0")
    A("v_lshrrev_b32 v44, 6, v0")
    A("v_lshlrev_b32 v3, 4, v1")
    A("v_readfirstlane_b32 s3, v44")
    A("v_bfe_u32 v45, v1, 2, 2")
    A("v_lshrrev_b32 v46, 4, v1")
    A("v_and_b32 v47, 3, v1")
    A("v_lshlrev_b32 v2, 8, v45")
    A("v_lshl_add_u32 v2, v46, 6, v2")
    A("v_lshl_add_u32 v2, v47, 4, v2")
    A("s_and_b32 s79, s2, 31")
    A(f"s_mul_i32 s59, s79, {n1*4096}"); A(f"s_mov_b32 s70, {n1*4096}")
    A("s_cmp_lt_u32 s79, 16"); A("s_cbranch_scc1 L_rng")
    A(f"s_mul_i32 s59, s79, {n2*4096}"); A(f"s_add_u32 s59, s59, {16*(n1-n2)*4096}"); A(f"s_mov_b32 s70, {n2*4096}")
    A("s_cmp_lt_u32 s79, 23"); A("s_cbranch_scc1 L_rng")
    A(f"s_mov_b32 s59, {(16*n1+7*n2)*4096}"); A(f"s_mov_b32 s70, {n4*4096}")
    A("s_cmp_eq_u32 s79, 23"); A("s_cbranch_scc1 L_rng")
    A(f"s_mul_i32 s59, s79, {n3*4096}"); A(f"s_add_u32 s59, s59, {hex(((16*n1+7*n2+n4-24*n3)*4096) & 0xffffffff)}"); A(f"s_mov_b32 s70, {n3*4096}")
    A.label("L_rng")
    if dyn: A(f"s_sub_u32 s70, s70, {LA*4096}")
    A("s_lshl_b32 s66, s3, 12"); A("s_add_u32 s66, s66, s59"); A(f"s_add_u32 s67, s66, {8*4096}")
    A("s_lshr_b32 s71, s2, 5"); A("s_lshl_b32 s71, s71, 24")
    A(f"s_mov_b32 s30, {OOB}"); A("s_mov_b32 s31, 0x20000"); A(f"s_mov_b32 s34, {OOB}"); A("s_mov_b32 s35, 0x20000")
    A(f"v_mov_b32 v52, {L_TK}"); A(f"v_mov_b32 v48, {(8*RS+7*NX)*4096}"); A("v_mov_b32 v49, 0")
    A("s_cmp_lg_u32 s3, 0")
    A("s_cbranch_scc1 L_noinit")
    A("ds_write_b64 v52, v[48:49]")
    if dyn:
        for r in range(4): A(f"v_mov_b32 v{20+r}, -1")
        A(f"ds_write_b128 v3, v[20:23] offset:{L_TB}")
        A(f"ds_write_b128 v3, v[20:23] offset:{L_TB+1024}")
        A("s_add_u32 s73, s59, s70")
        A("v_lshlrev_b32 v24, 12, v1"); A("v_add_u32 v24, s73, v24"); A("v_lshlrev_b32 v25, 2, v1")
        A("v_cmp_eq_u32 vcc, 0, v1"); A("v_addc_co_u32 v24, vcc, 0, v24, vcc")
        A(f"s_mov_b64 exec, {(1 << LA) - 1}")
        A(f"ds_write_b32 v25, v24 offset:{L_TB}")
        A("s_mov_b64 exec, -1")
    A.label("L_noinit")
    A("s_cmp_ge_u32 s79, 24")
    A("s_cbranch_scc1 L_qprod")
    A("s_waitcnt lgkmcnt(0)")
    A("s_add_u32 s28, s6, s71"); A("s_addc_u32 s29, s7, 0")
    A("s_add_u32 s32, s8, s71"); A("s_addc_u32 s33, s9, 0")
    A("s_load_dword s52, s[26:27], 0")
    A("s_cmp_eq_u32 s3, 0")
    A("s_cbranch_scc1 L_w0")
    A.label("L_ring")
    for bs, so in ST: issueK(bs, so); issueV(bs, so)
    A(f"s_add_u32 s68, s66, {(8*RS-1)*4096}")
    for k in range(NX):
        issueK(RX + 32 * k, 68); issueV(RX + 32 * k, 68)
        if k < NX - 1: A(f"s_add_u32 s68, s68, {7*4096}")
    srd(48, 4, 5, 1024)
    srd(36, 26, 27, WSN)
    common_setup()
    A("s_waitcnt lgkmcnt(0)")
    tags()
    stamp(1)
    A("s_barrier")
    A("s_branch L_qj")
    A.label("L_qprod")
    A("v_lshrrev_b32 v44, 3, v1"); A("v_and_b32 v45, 7, v1")
    A("v_lshlrev_b32 v50, 16, v44")
    A("v_lshl_add_u32 v50, v45, 4, v50")
    A("v_lshlrev_b32 v51, 4, v44")
    A("s_lshr_b32 s76, s2, 5"); A("s_lshl_b32 s76, s76, 9")
    A("s_and_b32 s73, s2, 7"); A("s_lshl_b32 s73, s73, 6"); A("s_add_u32 s76, s76, s73")
    A("s_lshl_b32 s77, s76, 1"); A("s_lshl_b32 s73, s3, 19"); A("s_add_u32 s77, s77, s73")
    A("s_lshl_b32 s73, s3, 7")
    A("s_mov_b32 s50, 1024"); A("s_mov_b32 s51, 0x20000"); A(f"s_mov_b32 s42, {4<<20}"); A("s_mov_b32 s43, 0x20000")
    for i in range(1, 8): A(f"v_add_u32 v{35+i}, {8192*i}, v50")
    A("s_waitcnt lgkmcnt(0)")
    A("s_mov_b32 s48, s4"); A("s_mov_b32 s49, s5"); A("s_mov_b32 s40, s10"); A("s_mov_b32 s41, s11")
    A("buffer_load_dwordx4 v[52:55], v3, s[48:51], 0 offen")
    A("buffer_load_dwordx4 v[32:35], v51, s[48:51], s73 offen")
    nt = " " + wf
    for i in range(8):
        va = 50 if i == 0 else 35 + i
        A(f"buffer_load_dwordx4 v[{RA+4*i}:{RA+4*i+3}], v{va}, s[40:43], s77 offen{nt}")
    A("s_load_dword s52, s[26:27], 0")
    A("s_add_u32 s28, s6, s71"); A("s_addc_u32 s29, s7, 0")
    A("s_add_u32 s32, s8, s71"); A("s_addc_u32 s33, s9, 0")
    if dyn:
        A("s_cmp_lg_u32 s3, 0"); A("s_cbranch_scc1 L_nz")
        A("s_cmp_ge_u32 s79, 28"); A("s_cbranch_scc1 L_nz")
        A("s_lshr_b32 s73, s2, 5"); A("s_lshl_b32 s73, s73, 2"); A("s_add_u32 s73, s73, s79"); A("s_sub_u32 s73, s73, 24")
        A(f"s_mul_i32 s73, s73, {cstride}"); A(f"s_add_u32 s73, s73, {CBUF}")
        A("v_mov_b32 v49, s73"); A("v_mov_b32 v48, 0")
        A("s_mov_b64 exec, 1")
        A("global_store_dword v49, v48, s[26:27] sc1")
        A("s_mov_b64 exec, -1")
        A.label("L_nz")
    A("v_lshrrev_b32 v49, 5, v1"); A("v_and_b32 v44, 1, v46")
    A("v_lshlrev_b32 v48, 8, v49"); A("v_lshl_add_u32 v48, v45, 5, v48"); A("v_lshl_add_u32 v48, v44, 4, v48")
    A("s_lshl_b32 s73, s3, 9"); A("v_add_u32 v48, s73, v48")
    common_setup()
    A("v_bfe_u32 v51, v1, 2, 1"); A("v_cmp_eq_u32 vcc, 0, v51")
    A("v_cndmask_b32 v6, 0, v4, vcc"); A("v_cndmask_b32 v7, 0, v5, vcc")
    A("v_cndmask_b32 v8, v4, 0, vcc"); A("v_cndmask_b32 v9, v5, 0, vcc")
    A("s_waitcnt vmcnt(8)")
    for k in range(4):
        A(f"v_lshlrev_b32 v{36+2*k}, 16, v{52+k}")
        A(f"v_and_b32 v{37+2*k}, 0xffff0000, v{52+k}")
    for k in range(4):
        A(f"v_lshlrev_b32 v{20+2*k}, 16, v{32+k}")
        A(f"v_and_b32 v{21+2*k}, 0xffff0000, v{32+k}")
    ln_stats(list(range(36, 44)), 44, 45, 51)
    for k in range(8): A(f"v_sub_f32 v{20+k}, v{20+k}, v44")
    for k in range(8): rbf(20 + k, 20 + k)
    for k in range(8): A(f"v_mul_f32 v{20+k}, v{20+k}, v45")
    for k in range(8): A(f"v_cvt_pk_bf16_f32 v{20+k}, v{20+k}, v{20+k}")
    for i in range(8):
        for r in range(4): A(f"v_and_b32 v{RB+4*i+r}, v{20+i}, v{6+r}")
    A("s_waitcnt vmcnt(0)")
    for i in range(8):
        c = "0" if i == 0 else "v[28:31]"
        A(f"v_mfma_f32_16x16x32_bf16 v[28:31], v[{RB+4*i}:{RB+4*i+3}], v[{RA+4*i}:{RA+4*i+3}], {c}")
    A("s_mov_b32 exec_lo, 0x00ff00ff"); A("s_mov_b32 exec_hi, 0xff00ff00")
    A(f"ds_write_b128 v48, v[28:31] offset:{L_RED}")
    A("s_mov_b64 exec, -1")
    A("s_waitcnt lgkmcnt(0)")
    A("s_barrier")
    A("s_cmp_lg_u32 s3, 0")
    A("s_cbranch_scc1 L_ring")
    A("s_setprio 3")
    A("v_and_b32 v50, 15, v1"); A("v_lshlrev_b32 v49, 10, v46"); A("v_lshl_add_u32 v49, v50, 4, v49")
    for k in range(4): A(f"ds_read_b128 v[{20+4*k}:{23+4*k}], v49 offset:{L_RED+256*k}")
    srd(36, 26, 27, WSN)
    tags()
    A("v_and_b32 v45, 1, v46"); A("v_lshlrev_b32 v45, 1, v45"); A("v_lshrrev_b32 v44, 1, v46"); A("v_or_b32 v45, v45, v44")
    A("v_lshl_add_u32 v45, v50, 2, v45"); A("v_lshlrev_b32 v45, 2, v45")
    A("v_mov_b32 v49, s57"); A("v_mov_b32 v51, s58")
    A("v_cmp_eq_u32 vcc, 0, v44")
    A("v_cndmask_b32 v49, v51, v49, vcc")
    A("s_lshl_b32 s71, s76, 2"); A(f"s_add_u32 s71, s71, {QBUF}")
    A("s_waitcnt lgkmcnt(0)")
    sum4x4()
    rbf(20, 20)
    A("v_or_b32 v20, v20, v49")
    A("buffer_store_dword v20, v45, s[36:39], s71 offen sc1")
    stamp(2)
    A("s_branch L_w0b")
    A.label("L_w0")
    A("s_setprio 3")
    srd(48, 4, 5, 1024)
    srd(36, 26, 27, WSN)
    common_setup()
    A("s_waitcnt lgkmcnt(0)")
    tags()
    A.label("L_w0b")
    A("v_lshlrev_b32 v44, 1, v2")
    A("s_lshr_b32 s71, s2, 5"); A("s_lshl_b32 s71, s71, 11"); A(f"s_add_u32 s71, s71, {QBUF}")
    A("s_add_u32 s76, s26, s71"); A("s_addc_u32 s77, s27, 0")
    if fakeq: A("s_branch L_q_ok")
    A.label("L_qhint")
    QS = [40, 41, 42, 43, 44, 45, 46, 47]
    for k in range(8): A(f"s_load_dword s{QS[k]}, s[76:77], {256*k} glc")
    A("s_waitcnt lgkmcnt(0)")
    for k in range(8): A(f"s_xor_b32 s{QS[k]}, s{QS[k]}, s57")
    for k in range(1, 8): A(f"s_or_b32 s40, s40, s{QS[k]}")
    A("s_and_b32 s40, s40, 0xffff")
    A("s_cbranch_scc0 L_qpoll")
    spin("L_qhint", qslp)
    A.label("L_qpoll")
    stamp(9)
    A("buffer_load_dwordx4 v[20:23], v44, s[36:39], s71 offen sc1")
    A("buffer_load_dwordx4 v[24:27], v44, s[36:39], s71 offen offset:16 sc1")
    A("s_mov_b32 s73, 0x07060302")
    A("s_waitcnt vmcnt(0)")
    for e in range(8): A(f"v_xor_b32 v{20+e}, s{57+(e&1)}, v{20+e}")
    A("v_or3_b32 v45, v20, v21, v22"); A("v_or3_b32 v45, v45, v23, v24"); A("v_or3_b32 v45, v45, v25, v26"); A("v_or_b32 v45, v45, v27")
    A("v_and_b32 v45, 0xffff, v45")
    A("v_cmp_ne_u32 vcc, 0, v45")
    A("s_cbranch_vccz L_q_ok")
    spin("L_qpoll")
    A.label("L_q_ok")
    for k in range(4): A(f"v_perm_b32 v{6+k}, v{21+2*k}, v{20+2*k}, s73")
    A(f"ds_write_b128 v3, v[6:9] offset:{L_QF}")
    A("s_waitcnt lgkmcnt(0)")
    stamp(1)
    A("s_barrier")
    for bs, so in ST: issueK(bs, so); issueV(bs, so)
    A("s_setprio 0")
    A.label("L_qj")
    A(f"ds_read_b128 v[6:9], v3 offset:{L_QF}")
    A(f"v_mov_b32 v52, {L_TK}"); A("v_mov_b32 v53, 4096")
    A("s_mov_b32 s69, 3")
    if dyn:
        A("s_lshr_b32 s58, s2, 3"); A("s_and_b32 s57, s58, 3")
        A(f"s_mul_i32 s58, s58, {cstride}"); A(f"s_add_u32 s58, s58, {CBUF}")
        A(f"s_mul_i32 s57, s57, {DP*4096}"); A(f"s_add_u32 s57, s57, {TOT*4096}")
    stamp(3)
    A.label("L_loop")
    for bs, so in ST: chunk(bs, so, True, 8 * RS - 4)
    A("s_cmp_lg_u32 s69, 3")
    A("s_cbranch_scc1 L_loop")
    A("s_mov_b32 s69, 0")
    A("s_cmp_eq_u32 s3, 0")
    A("s_cbranch_scc1 L_setup")
    A(f"s_waitcnt vmcnt({8*RS})")
    for k in range(NX): chunk(RX + 32 * k, None, False, None)
    A.label("L_setup")
    A("v_lshrrev_b32 v46, 4, v1"); A("v_and_b32 v47, 3, v1"); A("v_bfe_u32 v45, v1, 2, 2"); A("v_and_b32 v50, 15, v1")
    A("v_and_b32 v48, 1, v46"); A("v_lshlrev_b32 v48, 1, v48"); A("v_lshrrev_b32 v49, 1, v46"); A("v_or_b32 v48, v48, v49")
    A("s_lshl_b32 s71, s3, 11"); A(f"v_lshlrev_b32 v{TC}, 5, v1"); A(f"v_add_u32 v{TC}, s71, v{TC}")
    A("s_lshl_b32 s71, s3, 3"); A(f"v_lshlrev_b32 v{TC+1}, 6, v45"); A(f"v_add_u32 v{TC+1}, s71, v{TC+1}")
    A(f"v_lshrrev_b32 v{TC+2}, 1, v{TC+1}")
    A("s_lshl_b32 s71, s3, 8"); A(f"v_lshlrev_b32 v{TC+3}, 12, v46"); A(f"v_lshl_add_u32 v{TC+3}, v50, 4, v{TC+3}"); A(f"v_add_u32 v{TC+3}, s71, v{TC+3}")
    A("s_lshr_b32 s71, s3, 1"); A("s_lshl_b32 s73, s71, 6"); A(f"v_lshlrev_b32 v{TC+4}, 4, v46"); A(f"v_add_u32 v{TC+4}, s73, v{TC+4}")
    A("s_lshl_b32 s73, s71, 5"); A(f"v_mov_b32 v{TC+5}, s73")
    A(f"v_lshl_add_u32 v{TC+6}, v50, 2, v48"); A(f"v_lshlrev_b32 v{TC+6}, 2, v{TC+6}")
    A(f"v_lshlrev_b32 v{TC+7}, 3, v48"); A(f"v_lshrrev_b32 v{TC+7}, v{TC+7}, s52"); A(f"v_and_b32 v{TC+7}, 0xff, v{TC+7}")
    A("s_lshr_b32 s71, s2, 5"); A("s_lshl_b32 s71, s71, 1"); A("s_lshr_b32 s73, s3, 2"); A("s_add_u32 s71, s71, s73")
    A("s_lshl_b32 s0, s71, 15"); A("s_lshl_b32 s73, s79, 10"); A("s_add_u32 s0, s0, s73")
    A("s_and_b32 s73, s3, 3"); A("s_lshl_b32 s73, s73, 8"); A("s_add_u32 s0, s0, s73"); A(f"s_add_u32 s0, s0, {OBUF}")
    A(f"s_lshl_b32 s1, s71, {6+mlsh}"); A("s_bfe_u32 s73, s3, 0x10001"); A(f"s_lshl_b32 s73, s73, {5+mlsh}"); A("s_add_u32 s1, s1, s73")
    A(f"s_lshl_b32 s73, s79, {mlsh}"); A("s_add_u32 s1, s1, s73"); A(f"s_add_u32 s1, s1, {MLBUF}")
    A("s_cmp_ge_u32 s79, 16")
    A("s_cbranch_scc1 L_su2")
    A("s_mov_b32 s69, 1")
    srd(40, 12, 13, 4 << 20)
    A("s_lshr_b32 s77, s2, 5")
    A("s_lshl_b32 s78, s79, 18"); A("s_lshl_b32 s73, s3, 15"); A("s_add_u32 s78, s78, s73")
    A("s_lshl_b32 s73, s77, 7"); A("s_add_u32 s78, s78, s73")
    A("v_bfe_u32 v49, v1, 3, 1"); A("v_and_b32 v51, 7, v1")
    A(f"v_lshl_add_u32 v{TC+8}, v49, 4, v48"); A(f"v_lshlrev_b32 v{TC+8}, 10, v{TC+8}"); A(f"v_lshl_add_u32 v{TC+8}, v51, 4, v{TC+8}")
    A("v_lshrrev_b32 v44, 3, v1")
    A(f"v_lshlrev_b32 v{TC+9}, 10, v44"); A(f"v_lshl_add_u32 v{TC+9}, v51, 4, v{TC+9}")
    A(f"v_lshlrev_b32 v{TC+10}, {mlsh}, v44"); A(f"v_lshlrev_b32 v{TC+13}, {mlsh}, v1")
    A(f"v_lshlrev_b32 v{TC+11}, 8, v49"); A(f"v_lshl_add_u32 v{TC+11}, v51, 5, v{TC+11}"); A("s_lshl_b32 s71, s3, 9"); A(f"v_add_u32 v{TC+11}, s71, v{TC+11}")
    A(f"v_lshlrev_b32 v{TC+12}, 10, v46"); A(f"v_lshl_add_u32 v{TC+12}, v50, 4, v{TC+12}")
    A("s_lshl_b32 s16, s79, 15"); A("s_lshl_b32 s71, s3, 7"); A("s_add_u32 s16, s16, s71"); A(f"s_add_u32 s16, s16, {OBUF}")
    A("s_add_u32 s17, s16, 8192"); A("s_add_u32 s18, s16, 16384"); A("s_add_u32 s19, s16, 24576")
    A(f"s_lshl_b32 s20, s79, {6+mlsh}"); A("s_lshr_b32 s71, s3, 2"); A(f"s_lshl_b32 s71, s71, {5+mlsh}"); A("s_add_u32 s20, s20, s71"); A(f"s_add_u32 s20, s20, {MLBUF}")
    A("s_lshl_b32 s21, s79, 11"); A("s_lshl_b32 s73, s77, 8"); A("s_add_u32 s21, s21, s73"); A(f"s_add_u32 s21, s21, {HBUF}")
    load_wo(0, wo_e)
    A("s_branch L_loop")
    A.label("L_su2")
    A("s_cmp_ge_u32 s79, 23")
    A("s_cbranch_scc1 L_loop")
    A("s_mov_b32 s69, 2")
    A("s_and_b32 s76, s2, 7"); A("s_lshl_b32 s76, s76, 3"); A("s_lshr_b32 s71, s2, 5"); A("s_add_u32 s76, s76, s71")
    A(f"v_lshrrev_b32 v51, 1, v{TC+6}"); A("s_lshl_b32 s71, s3, 7")
    A(f"buffer_load_ushort v{TC+13}, v51, s[48:51], s71 offen")
    A("v_bfe_u32 v49, v1, 3, 1"); A("v_lshl_add_u32 v49, v49, 5, v48"); A("s_lshl_b32 s71, s3, 6"); A("v_add_u32 v49, s71, v49")
    A("v_mul_u32_u24 v49, 3584, v49"); A("v_lshl_add_u32 v49, v47, 4, v49"); A("s_lshl_b32 s71, s76, 6"); A("v_add_u32 v49, s71, v49")
    A("v_bfe_u32 v51, v1, 2, 1"); A("v_cmp_eq_u32 vcc, 0, v51")
    A("v_mov_b32 v44, s16"); A("v_mov_b32 v45, s18"); A("v_cndmask_b32 v44, v45, v44, vcc")
    A("v_mov_b32 v45, s17"); A("v_mov_b32 v51, s19"); A("v_cndmask_b32 v45, v51, v45, vcc")
    A(f"v_cndmask_b32 v{TC+16}, 0, v4, vcc"); A(f"v_cndmask_b32 v{TC+17}, 0, v5, vcc")
    A(f"v_cndmask_b32 v{TC+18}, v4, 0, vcc"); A(f"v_cndmask_b32 v{TC+19}, v5, 0, vcc")
    A(f"v_add_co_u32 v{TC+24}, vcc, v44, v49"); A(f"v_addc_co_u32 v{TC+25}, vcc, 0, v45, vcc")
    load_gu(0, gu_early)
    srd(40, 20, 21, 1792 * 1024)
    srd(44, 22, 23, 1024)
    A(f"v_lshlrev_b32 v{TC+8}, 4, v50"); A(f"v_lshl_add_u32 v{TC+8}, v48, 10, v{TC+8}")
    A("s_lshl_b32 s78, s76, 15"); A("s_and_b32 s73, s3, 3"); A("s_lshl_b32 s73, s73, 8"); A("s_add_u32 s78, s78, s73")
    A(f"v_lshlrev_b32 v{TC+9}, 11, v46"); A(f"v_lshl_add_u32 v{TC+9}, v50, 4, v{TC+9}")
    A("s_lshl_b32 s71, s3, 8"); A(f"v_add_u32 v{TC+10}, s71, v{TC+6}")
    A("v_lshrrev_b32 v49, 5, v1"); A("v_and_b32 v51, 7, v1"); A("v_and_b32 v44, 1, v46")
    A(f"v_lshlrev_b32 v{TC+11}, 8, v49"); A(f"v_lshl_add_u32 v{TC+11}, v51, 5, v{TC+11}"); A(f"v_lshl_add_u32 v{TC+11}, v44, 4, v{TC+11}")
    A("s_lshl_b32 s71, s3, 9"); A(f"v_add_u32 v{TC+11}, s71, v{TC+11}")
    A(f"v_lshlrev_b32 v{TC+12}, 10, v46"); A(f"v_lshl_add_u32 v{TC+12}, v50, 4, v{TC+12}")
    A(f"v_lshlrev_b32 v{TC+14}, 4, v51")
    A(f"v_lshlrev_b32 v{TC+15}, 4, v44"); A(f"v_lshl_add_u32 v{TC+15}, v50, 5, v{TC+15}")
    A("s_lshl_b32 s71, s3, 4"); A(f"v_mov_b32 v{TC+20}, s71")
    A(f"v_lshrrev_b32 v{TC+21}, 2, v1"); A(f"v_lshlrev_b32 v{TC+21}, 11, v{TC+21}"); A(f"v_lshl_add_u32 v{TC+21}, v47, 4, v{TC+21}")
    A(f"v_lshl_add_u32 v{TC+22}, v47, 2, v48"); A("s_lshl_b32 s71, s76, 4"); A(f"v_add_u32 v{TC+22}, s71, v{TC+22}"); A(f"v_lshlrev_b32 v{TC+22}, 1, v{TC+22}")
    A("s_lshl_b32 s16, s3, 8"); A(f"s_add_u32 s16, s16, {HBUF}")
    A("s_add_u32 s17, s16, 8192"); A("s_add_u32 s18, s16, 16384"); A("s_add_u32 s19, s16, 24576")
    A("s_lshl_b32 s21, s76, 11"); A("s_lshl_b32 s73, s3, 9"); A("s_add_u32 s21, s21, s73"); A(f"s_add_u32 s21, s21, {YBUF}")
    A("s_lshl_b32 s22, s76, 6"); A(f"s_add_u32 s22, s22, {YBUF}")
    A("s_add_u32 s23, s22, 32768"); A("s_add_u32 s24, s22, 65536"); A("s_add_u32 s25, s22, 98304")
    A("s_cmp_ge_u32 s3, 4"); A("s_cbranch_scc1 L_loop")
    load_wd(0, wd_e)
    A("s_branch L_loop")

    if dyn:
        A.label("L_dyn")
        A("s_sub_u32 s73, s71, s70"); A("s_lshr_b32 s73, s73, 10")
        A("v_mov_b32 v48, s73")
        A.label("L_dynw")
        A(f"ds_read_b32 v49, v48 offset:{L_TB}")
        A("s_waitcnt lgkmcnt(0)")
        A("v_readfirstlane_b32 s71, v49")
        A("s_cmp_lg_u32 s71, -1")
        A("s_cbranch_scc1 L_dyng")
        spin("L_dynw")
        A.label("L_dyng")
        A("s_bitcmp1_b32 s71, 0")
        A("s_cbranch_scc0 L_dynr")
        A("s_and_b32 s71, s71, -2")
        A("s_max_u32 vcc_lo, s71, s57"); A("s_sub_u32 vcc_lo, vcc_lo, s57")
        A(f"s_cmp_lt_u32 vcc_lo, {(DP-t4)*4096}"); A("s_cselect_b32 vcc_hi, 4, 2")
        A(f"s_cmp_lt_u32 vcc_lo, {(DP-t8)*4096}"); A(f"s_cselect_b32 vcc_hi, {b0}, vcc_hi")
        A("s_mov_b32 s14, vcc_hi"); A("s_mov_b32 s15, vcc_hi")
        A("s_atomic_add s14, s[26:27], s58 glc")
        A(f"v_lshl_add_u32 v48, v1, 2, v48")
        A(f"s_sub_u32 s73, s15, {LA}")
        A("s_waitcnt lgkmcnt(0)")
        A("v_add_u32 v49, s14, v1")
        A("v_lshlrev_b32 v50, 12, v49"); A("v_add_u32 v50, s57, v50")
        A("s_add_u32 s14, s14, s15")
        A(f"s_cmp_ge_u32 s14, {DP}")
        A("s_cbranch_scc1 L_dynx")
        A("v_cmp_eq_u32 vcc, s73, v1"); A("v_addc_co_u32 v50, vcc, 0, v50, vcc")
        A("v_cmp_gt_u32 vcc, s15, v1")
        A("s_mov_b64 exec, vcc")
        A(f"ds_write_b32 v48, v50 offset:{L_TB+4*LA}")
        A("s_mov_b64 exec, -1")
        A("s_branch L_dynr")
        A.label("L_dynx")
        A("v_mov_b32 v51, s30")
        A(f"v_cmp_gt_u32 vcc, {DP}, v49")
        A("v_cndmask_b32 v50, v51, v50, vcc")
        A(f"ds_write_b32 v48, v50 offset:{L_TB+4*LA}")
        A.label("L_dynr")
        if RS == 2:
            A("s_cmp_eq_u32 s68, 67")
            A("s_cbranch_scc1 L_ret67")
        A("s_branch L_ret66")
    A.label("L_done")
    A("s_cmp_eq_u32 s69, 3")
    A("s_cbranch_scc1 L_end")
    stamp(4)
    if cut == 1: A("s_branch L_end")
    if late_at == 0: late_loads("a")
    quad_all(19, "v_add_f32")
    A(f"ds_write_b32 v{TC+2}, v18 offset:{L_MX}")
    rows_all(19, 49, "v_add_f32")
    A(f"ds_write_b128 v{TC}, v[10:13] offset:{L_OM}")
    A(f"ds_write_b128 v{TC}, v[14:17] offset:{L_OM+16}")
    A(f"ds_write_b64 v{TC+1}, v[18:19] offset:{L_ML}")
    A("s_mov_b32 s73, 0xffffff00")
    A("s_waitcnt lgkmcnt(0)")
    A("s_barrier")
    stamp(5)
    A(f"ds_read_b128 v[20:23], v{TC+5} offset:{L_MX}")
    A(f"ds_read_b128 v[24:27], v{TC+5} offset:{L_MX+16}")
    A(f"ds_read_b128 v[28:31], v{TC+4} offset:{L_ML}")
    A(f"ds_read_b128 v[10:13], v{TC+3} offset:{L_OM}")
    A(f"ds_read_b128 v[14:17], v{TC+3} offset:{L_OM+2048}")
    A("v_mov_b32 v38, s55"); A("v_mov_b32 v39, s56")
    A("s_waitcnt lgkmcnt(3)")
    A("v_max3_f32 v36, v20, v21, v22"); A("v_max3_f32 v37, v23, v24, v25"); A("v_max3_f32 v36, v36, v26, v27"); A("v_max_f32 v36, v36, v37")
    A("v_and_b32 v36, s73, v36")
    A("s_waitcnt lgkmcnt(2)")
    A("v_sub_f32 v28, v28, v36"); A("v_sub_f32 v30, v30, v36")
    A("v_exp_f32 v28, v28"); A("v_exp_f32 v30, v30")
    A("v_or_b32 v36, s53, v36")
    A("s_waitcnt lgkmcnt(0)")
    for r in range(4): A(f"v_mul_f32 v{10+r}, v{10+r}, v28")
    for r in range(4): A(f"v_fmac_f32 v{10+r}, v{14+r}, v30")
    A("v_mul_f32 v37, v28, v29")
    A("v_fmac_f32 v37, v30, v31")
    rr4(10, 11, 12, 13)
    A(f"v_and_or_b32 v10, v10, s73, v{TC+7}")
    A(f"buffer_store_dword v10, v{TC+6}, s[36:39], s0 offen sc1")
    A("s_bitcmp1_b32 s3, 0")
    A("s_cbranch_scc1 L_mj")
    rows_all(37, 49, "v_add_f32")
    A("v_and_b32 v37, s73, v37"); A("v_or_b32 v37, s54, v37")
    A("s_mov_b64 exec, 1")
    A("buffer_store_dwordx4 v[36:39], v3, s[36:39], s1 offen sc1")
    A("s_mov_b64 exec, -1")
    A.label("L_mj")
    stamp(6)
    if cut == 2: A("s_branch L_end")
    if late_at == 1: late_loads("b")
    A("s_cmp_lg_u32 s69, 1")
    A("s_cbranch_scc1 L_role2")
    OB, MB = MO, MO + 16
    A("s_mov_b32 exec_hi, 0")
    A.label("L_h1pre")
    A(f"buffer_load_dword v53, v{TC+13}, s[36:39], s20 offen offset:12 sc1")
    A("s_waitcnt vmcnt(0)")
    A("v_cmp_eq_u32 vcc, s56, v53")
    A("s_bcnt1_i32_b64 s71, vcc")
    A(f"s_cmp_ge_u32 s71, {thr1}")
    A("s_cbranch_scc1 L_h1go")
    spin("L_h1pre", slp1)
    A.label("L_h1go")
    gather("L_h1", [[(MB + 4 * j, TC + 10, 20, (8 << mlsh) * j), (OB + 4 * j, TC + 9, 16 + j, 0)] for j in range(4)], [56, 88, 136])
    stamp(7)
    A(f"v_max3_f32 v20, v{MB}, v{MB+4}, v{MB+8}"); A(f"v_max_f32 v20, v20, v{MB+12}")
    dpp("v_max_f32", 20, 20, 20, "row_ror:8")
    rows_all(20, 21, "v_max_f32")
    for j in range(4): A(f"v_sub_f32 v{MB+4*j}, v{MB+4*j}, v20")
    for j in range(4): A(f"v_exp_f32 v{MB+4*j}, v{MB+4*j}")
    A(f"v_mul_f32 v21, v{MB}, v{MB+1}")
    for j in range(1, 4): A(f"v_fmac_f32 v21, v{MB+4*j}, v{MB+4*j+1}")
    for r in range(4): A(f"v_mul_f32 v{24+r}, v{OB+r}, v{MB}")
    dpp("v_add_f32", 21, 21, 21, "row_ror:8")
    for r in range(4): A(f"v_fmac_f32 v{24+r}, v{OB+4+r}, v{MB+4}")
    A("v_mov_b32 v22, v21")
    for r in range(2): A(f"v_fmac_f32 v{24+r}, v{OB+8+r}, v{MB+8}")
    A("v_permlane32_swap_b32 v21, v22")
    for r in range(2, 4): A(f"v_fmac_f32 v{24+r}, v{OB+8+r}, v{MB+8}")
    A("v_add_f32 v21, v21, v22")
    A("v_mov_b32 v22, v21")
    for r in range(4): A(f"v_fmac_f32 v{24+r}, v{OB+12+r}, v{MB+12}")
    A("v_permlane16_swap_b32 v21, v22")
    A("v_add_f32 v21, v21, v22")
    A("v_permlane32_swap_b32 v24, v25")
    A("v_permlane32_swap_b32 v26, v27")
    A("v_add_f32 v24, v24, v25")
    A("v_add_f32 v26, v26, v27")
    A("v_rcp_f32 v21, v21")
    A("v_permlane16_swap_b32 v24, v26")
    A("v_add_f32 v24, v24, v26")
    dpp("v_add_f32", 24, 24, 24, "row_ror:8")
    A("v_mul_f32 v24, v24, v21")
    A("v_cvt_pk_bf16_f32 v24, v24, v24")
    for i in range(4):
        dpp("v_and_b32", 36 + 2 * i, 24, 4, f"quad_perm:[{i},{i},{i},{i}]")
        dpp("v_and_b32", 37 + 2 * i, 24, 5, f"quad_perm:[{i},{i},{i},{i}]")
    for i in range(4):
        c0 = "0" if i == 0 else "v[10:13]"; c1 = "0" if i == 0 else "v[14:17]"
        A(f"v_mfma_f32_16x16x16_bf16 v[10:13], v[{36+2*i}:{37+2*i}], v[{WO+4*i}:{WO+4*i+1}], {c0}")
        A(f"v_mfma_f32_16x16x16_bf16 v[14:17], v[{36+2*i}:{37+2*i}], v[{WO+4*i+2}:{WO+4*i+3}], {c1}")
    A("s_mov_b32 exec_lo, 0xff0000ff"); A("s_mov_b32 exec_hi, 0")
    A(f"ds_write_b128 v{TC+11}, v[10:13] offset:{L_RED}")
    A(f"ds_write_b128 v{TC+11}, v[14:17] offset:{L_RED+16}")
    A("s_mov_b64 exec, -1")
    A("s_waitcnt lgkmcnt(0)")
    A("s_barrier")
    A("s_cmp_lg_u32 s3, 0")
    A("s_cbranch_scc1 L_end")
    for k in range(4): A(f"ds_read_b128 v[{20+4*k}:{23+4*k}], v{TC+12} offset:{L_RED+256*k}")
    A("s_waitcnt lgkmcnt(0)")
    sum4x4()
    A(f"v_and_or_b32 v20, v20, s73, v{TC+7}")
    A(f"buffer_store_dword v20, v{TC+6}, s[36:39], s21 offen sc1")
    stamp(8)
    A("s_branch L_end")
    A.label("L_role2")
    A("s_cmp_lg_u32 s69, 2")
    A("s_cbranch_scc1 L_end")
    if pretouch:
        for j in range(4): A(f"buffer_load_dwordx4 v[{20+4*j}:{23+4*j}], v{TC+9}, s[36:39], s{16+j} offen sc1")
        A("s_cmp_lg_u32 s3, 4"); A("s_cbranch_scc1 L_nopt")
        for j in range(4): A(f"buffer_load_dwordx4 v[{20+4*j}:{23+4*j}], v{TC+21}, s[36:39], s{22+j} offen sc1")
        A.label("L_nopt")
    A("s_mov_b32 exec_lo, 0x00010001"); A("s_mov_b32 exec_hi, 0x00010001")
    A.label("L_h2pre")
    A(f"buffer_load_dword v53, v{TC+9}, s[36:39], s16 offen sc1")
    A("s_waitcnt vmcnt(0)")
    A("v_and_b32 v53, 0xff, v53")
    A("v_cmp_eq_u32 vcc, s53, v53")
    A("s_cbranch_vccnz L_h2go")
    spin("L_h2pre", slp1)
    A.label("L_h2go")
    A("s_mov_b64 exec, -1")
    A(f"v_lshlrev_b32 v{TC+13}, 16, v{TC+13}")
    gather("L_h2", [[(20 + 4 * j, TC + 9, 16 + j, 0)] for j in range(4)], [56, 72, 88, 104])
    stamp(7)
    sum4x4()
    rbf(20, 20)
    A(f"v_add_f32 v20, v20, v{TC+13}")
    rbf(20, 20)
    A("v_readfirstlane_b32 s71, v20")
    A(f"ds_write_b32 v{TC+10}, v20 offset:{L_HL}")
    A("v_subrev_f32 v25, s71, v20")
    A("v_mov_b32 v24, s71")
    A("v_mul_f32 v26, v25, v25")
    for ctl in ("quad_perm:[1,0,3,2]", "quad_perm:[2,3,0,1]", "row_ror:8", "row_ror:4"):
        dpp("v_add_f32", 25, 25, 25, ctl); dpp("v_add_f32", 26, 26, 26, ctl)
    A("v_permlane32_swap_b32 v25, v26")
    A("v_add_f32 v25, v25, v26")
    A("v_mov_b32 v26, v25")
    A("v_permlane16_swap_b32 v25, v26")
    A("v_add_f32 v25, v25, v26")
    A("s_mov_b64 exec, 1")
    A(f"ds_write_b64 v{TC+20}, v[24:25] offset:{L_ST}")
    A("s_mov_b32 exec_lo, 0"); A("s_mov_b32 exec_hi, 1")
    A(f"ds_write_b32 v{TC+20}, v25 offset:{L_ST+8}")
    A("s_mov_b64 exec, -1")
    A("s_waitcnt lgkmcnt(0)")
    A("s_barrier")
    A(f"ds_read_b128 v[24:27], v{TC+14} offset:{L_ST}")
    A("s_waitcnt lgkmcnt(0)")
    A("v_readfirstlane_b32 s71, v24")
    A("v_subrev_f32 v24, s71, v24")
    A(f"v_fma_f32 v27, v24, {'s68'}, v25") if False else None
    A("v_mul_f32 v27, 0x42800000, v24")
    A("v_add_f32 v28, v25, v27")
    A("v_add_f32 v25, v25, v28")
    A("v_fmac_f32 v26, v24, v25")
    for ctl in ("quad_perm:[1,0,3,2]", "quad_perm:[2,3,0,1]", "row_half_mirror"):
        dpp("v_add_f32", 28, 28, 28, ctl); dpp("v_add_f32", 26, 26, 26, ctl)
    A("v_mul_f32 v28, 0x3b000000, v28")
    A("v_mul_f32 v26, 0x3b000000, v26")
    A("v_fma_f32 v26, -v28, v28, v26")
    A("v_add_f32 v28, s71, v28")
    A("v_max_f32 v26, 0, v26")
    ln_fin(28, 26)
    A("v_sub_f32 v20, v20, v28")
    rbf(20, 20)
    A("v_mul_f32 v20, v20, v26")
    A("v_cvt_pk_bf16_f32 v20, v20, v20")
    A(f"v_mov_b32_dpp v21, v20 row_half_mirror {DPPF}")
    for i in range(8):
        F = 24 + 4 * (i & 3)
        p = i & 3
        own, oth = (20, 21) if i < 4 else (21, 20)
        pa, pb = (p, 3 - p) if i < 4 else (3 - p, p)
        for r in range(2): dpp("v_and_b32", F + r, own, TC + 16 + r, f"quad_perm:[{pa},{pa},{pa},{pa}]")
        for r in range(2, 4): dpp("v_and_b32", F + r, oth, TC + 16 + r, f"quad_perm:[{pb},{pb},{pb},{pb}]")
        c = "0" if i == 0 else "v[10:13]"
        A(f"v_mfma_f32_16x16x32_bf16 v[10:13], v[{F}:{F+3}], v[{WGU+4*i}:{WGU+4*i+3}], {c}")
    A("s_mov_b32 exec_lo, 0x00ff00ff"); A("s_mov_b32 exec_hi, 0xff00ff00")
    A(f"ds_write_b128 v{TC+11}, v[10:13] offset:{L_RED}")
    A("s_mov_b64 exec, -1")
    A("s_waitcnt lgkmcnt(0)")
    A("s_barrier")
    stamp(8)
    A("s_cmp_ge_u32 s3, 4")
    A("s_cbranch_scc1 L_fin")
    for k in range(4): A(f"ds_read_b128 v[{20+4*k}:{23+4*k}], v{TC+12} offset:{L_RED+256*k}")
    A("v_mov_b32 v52, s73")
    A("s_waitcnt lgkmcnt(0)")
    sum4x4()
    rbf(20, 20)
    dpp("v_mul_f32", 21, 20, 20, "row_ror:8")
    A("v_cvt_pk_bf16_f32 v21, v21, v21")
    for i in range(8):
        F = 24 + 4 * (i & 3)
        for r in range(4): dpp("v_and_b32", F + r, 21, TC + 16 + r, f"row_newbcast:{i}")
        c = "0" if i == 0 else "v[10:13]"
        A(f"v_mfma_f32_16x16x32_bf16 v[10:13], v[{F}:{F+3}], v[{WD+4*i}:{WD+4*i+3}], {c}")
    A("s_mov_b32 exec_hi, 0")
    for r in range(4): A(f"v_and_or_b32 v{10+r}, v{10+r}, v52, s{53+r}")
    A(f"buffer_store_dwordx4 v[10:13], v{TC+15}, s[36:39], s21 offen sc1")
    stamp(9)
    A("s_branch L_end")
    A.label("L_fin")
    A("s_cmp_lg_u32 s3, 4")
    A("s_cbranch_scc1 L_end")
    A("s_cmp_ge_u32 s76, 32")
    A("s_cbranch_scc1 L_end")
    A(f"v_lshlrev_b32 v49, 1, v{TC+22}")
    A(f"ds_read_b32 v50, v49 offset:{L_HL}")
    for r in range(4): A(f"v_mov_b32 v{32+r}, 0")
    gather("L_h3", [[(20 + 4 * j, TC + 21, 22 + j, 0)] for j in range(4)], [56, 72, 88, 104], [-1, -1, -1, 0xffffffff])
    stamp(9)
    sum4x4()
    dpp("v_add_f32", 20, 20, 20, "row_ror:8"); dpp("v_add_f32", 20, 20, 20, "row_ror:4")
    A("s_waitcnt lgkmcnt(0)")
    rbf(20, 20)
    A("v_add_f32 v20, v20, v50")
    rbf(20, 20)
    A("s_mov_b32 exec_lo, 0x000f000f"); A("s_mov_b32 exec_hi, 0x000f000f")
    A(f"buffer_store_short_d16_hi v20, v{TC+22}, s[44:47], 0 offen")
    A("s_cmp_lg_u32 s76, 0")
    A("s_cbranch_scc1 L_end")
    A("s_mov_b64 exec, 1")
    A("v_mov_b32 v21, s52")
    A("buffer_store_dword v21, v3, s[36:39], 0 offen sc1")
    A.label("L_end")
    if prof:
        A("s_waitcnt vmcnt(0)")
        stamp(10)
        A("s_mov_b64 exec, -1")
        A("s_waitcnt lgkmcnt(0)")
        for i in range(11): A(f"v_writelane_b32 v20, s{80+2*i}, {i}")
        A("v_writelane_b32 v20, s71, 11")
        A("s_getreg_b32 s71, hwreg(HW_REG_XCC_ID)"); A("v_writelane_b32 v20, s71, 12")
        A("s_lshl_b32 s71, s2, 3"); A("s_add_u32 s71, s71, s3"); A("s_lshl_b32 s71, s71, 6"); A(f"s_add_u32 s71, s71, {PROF}")
        A("v_lshlrev_b32 v21, 2, v1")
        A("s_mov_b64 exec, 0xffff")
        A("buffer_store_dword v20, v21, s[36:39], s71 offen")
    A.label("L_exit")
    A("s_endpgm")
    body = A.finish()
    nv = max(A.maxv + 1, 136)
    txt = HEADER + f"; @launch grid=(256,1,1) block=(512,1,1) lds={L_END}\n"
    txt += f'.amdgcn_target "amdgcn-amd-amdhsa--gfx950"\n.text\n.globl {KNAME}\n.p2align 8\n.type {KNAME},@function\n{KNAME}:\n'
    txt += body
    txt += f'.section .rodata,"a"\n.p2align 6\n.amdhsa_kernel {KNAME}\n  .amdhsa_next_free_vgpr {nv}\n  .amdhsa_next_free_sgpr 102\n'
    txt += f"  .amdhsa_accum_offset {(nv+3)//4*4}\n  .amdhsa_group_segment_fixed_size 0\n  .amdhsa_kernarg_size 96\n  .amdhsa_user_sgpr_count 2\n"
    txt += "  .amdhsa_user_sgpr_kernarg_segment_ptr 1\n  .amdhsa_system_sgpr_workgroup_id_x 1\n  .amdhsa_float_denorm_mode_32 3\n.end_amdhsa_kernel\n"
    return txt

if __name__ == "__main__":
    import argparse
    p = argparse.ArgumentParser(); p.add_argument("-o"); p.add_argument("kv", nargs="*")
    a = p.parse_args()
    kw = {k: eval(v) for k, v in (x.split("=") for x in a.kv)}
    open(a.o, "w").write(gen(**kw))
```

```python
import sys, struct
sys.path.insert(0, "gen")
from asmlib import Asm

KNAME = "sequential_preLN__gqa_block_cached__glu_gated_bilinear__decode_kernel"
HEADER = open("sequential_preLN__gqa_block_cached__glu_gated_bilinear__decode.s.ref").read().split("; Override launch")[0]

XBUF, QBUF, OBUF, HBUF, YBUF, CBUF, MLBUF, WS_END = 0x800, 0x1000, 0x10000, 0xA8000, 0xB0000, 0xD0000, 0x140000, 0x180000
PROF = 0x100000
L_OM, L_ML, L_MX, L_QF, L_TK, L_ST, L_RED, L_RED2, L_HL, L_TB, L_WD, L_END = 0, 0x4000, 0x4100, 0x4600, 0x4A00, 0x4B00, 0x5000, 0x7000, 0x8000, 0x8800, 0x9000, 0x19000
DPPF = "row_mask:0xf bank_mask:0xf"
SPIN = 1 << 20

def gen(NX=4, prof=False, S0=104, offT=40, offF=24, offQ=12, thr1=24, slp1=4, qslp=4, LA=2, t8=128, t4=48, t1=0, b0=8,
        cstride=4352, kf='nt', vf='nt', wf='', mlsh=7, cut=0, local=True, pretouch=True, tT=0, diag=0):
    A = Asm()
    RA, RX = 56, 88
    WO, WGU, WD = 88, 152, 88
    TC = 216
    OOB = 0x1000000
    D0 = (4096 - 32 * S0 + 8 * offQ + 4 * offT) // 4
    assert offF % 4 == 0
    D1 = D0 - offF // 4
    assert LA + D0 + 64 + 64 <= 512
    def stamp(i):
        if prof: A(f"s_memrealtime s[{80+2*i}:{81+2*i}]")
    def rr4(a, b, c, d):
        A(f"v_permlane32_swap_b32 v{a}, v{b}")
        A(f"v_permlane32_swap_b32 v{c}, v{d}")
        A(f"v_add_f32 v{a}, v{a}, v{b}")
        A(f"v_add_f32 v{c}, v{c}, v{d}")
        A(f"v_permlane16_swap_b32 v{a}, v{c}")
        A(f"v_add_f32 v{a}, v{a}, v{c}")
    def rows_all(x, t, op):
        A(f"v_mov_b32 v{t}, v{x}")
        A(f"v_permlane32_swap_b32 v{x}, v{t}")
        A(f"{op} v{x}, v{x}, v{t}")
        A(f"v_mov_b32 v{t}, v{x}")
        A(f"v_permlane16_swap_b32 v{x}, v{t}")
        A(f"{op} v{x}, v{x}, v{t}")
    def dpp(op, d, s, o, ctl): A(f"{op}_dpp v{d}, v{s}, v{o} {ctl} {DPPF}")
    def quad_all(x, op):
        dpp(op, x, x, x, "quad_perm:[1,0,3,2]"); dpp(op, x, x, x, "quad_perm:[2,3,0,1]")
    def wave_all(x, t, op):
        quad_all(x, op); dpp(op, x, x, x, "row_ror:8"); dpp(op, x, x, x, "row_ror:4"); rows_all(x, t, op)
    def rbf(d, s): A(f"v_cvt_pk_bf16_f32 v{d}, 0, v{s}")
    def ln_fin(mean, var):
        rbf(var, var)
        rbf(mean, mean)
        A(f"v_add_f32 v{var}, 0x37280000, v{var}")
        rbf(var, var)
        A(f"v_sqrt_f32 v{var}, v{var}")
        rbf(var, var)
        A(f"v_rcp_f32 v{var}, v{var}")
    def ln_stats(vals, mean, rinv, t):
        A(f"v_add_f32 v{mean}, v{vals[0]}, v{vals[1]}")
        A(f"v_add_f32 v{t}, v{vals[2]}, v{vals[3]}")
        A(f"v_add_f32 v{rinv}, v{vals[4]}, v{vals[5]}")
        A(f"v_add_f32 v{mean}, v{mean}, v{t}")
        A(f"v_add_f32 v{t}, v{vals[6]}, v{vals[7]}")
        A(f"v_add_f32 v{rinv}, v{rinv}, v{t}")
        A(f"v_add_f32 v{mean}, v{mean}, v{rinv}")
        wave_all(mean, t, "v_add_f32")
        A(f"v_mul_f32 v{mean}, 0x3b000000, v{mean}")
        for v in vals: A(f"v_sub_f32 v{v}, v{v}, v{mean}")
        A(f"v_mul_f32 v{rinv}, v{vals[0]}, v{vals[0]}")
        A(f"v_mul_f32 v{t}, v{vals[1]}, v{vals[1]}")
        for k in range(2, 8, 2):
            A(f"v_fmac_f32 v{rinv}, v{vals[k]}, v{vals[k]}")
            A(f"v_fmac_f32 v{t}, v{vals[k+1]}, v{vals[k+1]}")
        A(f"v_add_f32 v{rinv}, v{rinv}, v{t}")
        wave_all(rinv, t, "v_add_f32")
        A(f"v_mul_f32 v{rinv}, 0x3b000000, v{rinv}")
        ln_fin(mean, rinv)
    def srd(d, lo, hi, n):
        A(f"s_mov_b32 s{d}, s{lo}"); A(f"s_mov_b32 s{d+1}, s{hi}"); A(f"s_mov_b32 s{d+2}, {hex(n)}"); A(f"s_mov_b32 s{d+3}, 0x20000")
    def spin(label, slp=0):
        A("s_sub_u32 s72, s72, 1")
        A("s_cbranch_scc1 L_end")
        if slp: A(f"s_sleep {slp}")
        A(f"s_branch {label}")
    def gather(name, groups, init_masks=None):
        for j in range(len(groups)):
            m = -1 if init_masks is None else init_masks[j]
            if m == -1: A(f"s_mov_b64 s[{4+2*j}:{5+2*j}], -1")
            else: A(f"s_mov_b32 s{4+2*j}, {hex(m & 0xffffffff)}"); A(f"s_mov_b32 s{5+2*j}, {hex(m >> 32)}")
        A.label(f"{name}_rnd")
        for j, g in enumerate(groups):
            A(f"s_mov_b64 exec, s[{4+2*j}:{5+2*j}]")
            A(f"s_cbranch_execz {name}_i{j}")
            for (r, va, so, imm) in g:
                A(f"buffer_load_dwordx4 v[{r}:{r+3}], v{va}, s[36:39], s{so} offen offset:{imm} sc1")
            A.label(f"{name}_i{j}")
        A("s_waitcnt vmcnt(0)")
        for j, g in enumerate(groups):
            A(f"s_mov_b64 exec, s[{4+2*j}:{5+2*j}]")
            A(f"s_cbranch_execz {name}_c{j}")
            regs = [r + k for (r, _, _, _) in g for k in range(4)]
            for k, r in enumerate(regs): A(f"v_xor_b32 v{r}, s{53+(k&3)}, v{r}")
            A(f"v_or3_b32 v55, v{regs[0]}, v{regs[1]}, v{regs[2]}")
            rest = regs[3:]
            while len(rest) >= 2:
                A(f"v_or3_b32 v55, v55, v{rest[0]}, v{rest[1]}"); rest = rest[2:]
            A(f"v_or_b32 v55, v55, v{rest[0]}")
            A("v_and_b32 v55, 0xff, v55")
            A(f"v_cmp_ne_u32 s[{4+2*j}:{5+2*j}], 0, v55")
            A.label(f"{name}_c{j}")
        A("s_or_b64 s[12:13], s[4:5], s[6:7]")
        A("s_or_b64 s[14:15], s[8:9], s[10:11]")
        A("s_mov_b64 exec, -1")
        A("s_or_b64 s[12:13], s[12:13], s[14:15]")
        A(f"s_cbranch_scc0 {name}_ok")
        spin(f"{name}_rnd")
        A.label(f"{name}_ok")
    def lstore(name, text):
        A("s_cmp_eq_u32 s64, 1")
        A(f"s_cbranch_scc1 {name}_l")
        A(text + " sc1")
        A(f"s_branch {name}_j")
        A.label(f"{name}_l")
        A(text)
        A.label(f"{name}_j")
    def issueK(base, so):
        for j in range(4):
            r = base + 4 * j
            A(f"buffer_load_dwordx4 v[{r}:{r+3}], v2, s[28:31], s{so} offen offset:{1024*j} {kf}")
    def issueV(base, so):
        for j in range(4):
            r = base + 16 + 4 * j
            A(f"buffer_load_dwordx4 v[{r}:{r+3}], v3, s[32:35], s{so} offen offset:{1024*j} {vf}")
    def common_setup():
        A("s_mov_b32 s60, 0x22222222"); A("s_mov_b32 s61, 0x22222222")
        A("s_mov_b32 s62, 0x44444444"); A("s_mov_b32 s63, 0x44444444")
        A("s_mov_b32 s64, 0x88888888"); A("s_mov_b32 s65, 0x88888888")
        A("s_mov_b32 s74, 0x3db504f3"); A("s_mov_b32 s75, 0x3fb8aa3b")
        A(f"s_mov_b32 s72, {SPIN}")
        A("v_mov_b32 v44, 0xffff"); A("v_mov_b32 v45, 0xffff0000")
        A("v_mov_b32 v4, 0"); A("v_mov_b32 v5, 0")
        A("v_cmp_eq_u32 vcc, 0, v47")
        A("v_cndmask_b32 v4, v4, v44, vcc")
        A("v_cndmask_b32 v4, v4, v45, s[60:61]")
        A("v_cndmask_b32 v5, v5, v44, s[62:63]")
        A("v_cndmask_b32 v5, v5, v45, s[64:65]")
        for r in range(10, 18): A(f"v_mov_b32 v{r}, 0")
        A("v_mov_b32 v18, 0xff7fffff"); A("v_mov_b32 v19, 0")
    def k32masks(b):
        A("v_bfe_u32 v51, v1, 2, 1"); A("v_cmp_eq_u32 vcc, 0, v51")
        A(f"v_cndmask_b32 v{b}, 0, v4, vcc"); A(f"v_cndmask_b32 v{b+1}, 0, v5, vcc")
        A(f"v_cndmask_b32 v{b+2}, v4, 0, vcc"); A(f"v_cndmask_b32 v{b+3}, v5, 0, vcc")
    def tags():
        A("s_add_u32 s52, s52, 0x9e3779b9")
        A("s_and_b32 s53, s52, 0xff"); A("s_bfe_u32 s54, s52, 0x80008"); A("s_bfe_u32 s55, s52, 0x80010"); A("s_lshr_b32 s56, s52, 24")
        A("s_and_b32 s57, s52, 0xffff"); A("s_lshr_b32 s58, s52, 16")
    def sum4x4():
        A("v_pk_add_f32 v[20:21], v[20:21], v[24:25]"); A("v_pk_add_f32 v[22:23], v[22:23], v[26:27]")
        A("v_pk_add_f32 v[28:29], v[28:29], v[32:33]"); A("v_pk_add_f32 v[30:31], v[30:31], v[34:35]")
        A("v_pk_add_f32 v[20:21], v[20:21], v[28:29]"); A("v_pk_add_f32 v[22:23], v[22:23], v[30:31]")
        rr4(20, 21, 22, 23)
    def sum2x4():
        A("v_pk_add_f32 v[20:21], v[20:21], v[24:25]"); A("v_pk_add_f32 v[22:23], v[22:23], v[26:27]")
        rr4(20, 21, 22, 23)
    uid = [0]
    def chunk(base, refill):
        KB, VB = base, base + 16
        uid[0] += 1; u = uid[0]
        if refill:
            A("s_cmp_ge_u32 s66, s30")
            A("s_cbranch_scc1 L_done")
            A("s_mov_b64 exec, 1")
            A("ds_add_rtn_u32 v54, v52, v53")
            A("s_mov_b64 exec, -1")
            A("s_waitcnt vmcnt(4) lgkmcnt(0)")
            A("v_readfirstlane_b32 s71, v54")
        for j in range(4):
            A(f"v_mfma_f32_16x16x32_bf16 v[{20+4*j}:{23+4*j}], v[{KB+4*j}:{KB+4*j+3}], v[6:9], 0")
        if refill:
            A("s_add_u32 s66, s71, s59")
            A("s_cmp_ge_u32 s71, s70")
            A("s_cbranch_scc1 L_dyn")
            A.label("L_go")
            issueK(base, 66)
        D = lambda j, r: 20 + 4 * (j & 3) + r
        for rho in range(4): A(f"v_cndmask_b32 v{44+rho}, v{D(rho,0)}, v{D(rho+1,1)}, s[60:61]")
        for rho in range(4): A(f"v_cndmask_b32 v{44+rho}, v{44+rho}, v{D(rho+2,2)}, s[62:63]")
        for rho in (1, 2, 3, 0): A(f"v_cndmask_b32 v{44+rho}, v{44+rho}, v{D(rho+3,3)}, s[64:65]")
        for rho in range(1, 4):
            qp = ",".join(str((q - rho) & 3) for q in range(4))
            dpp("v_add_f32", 44, 44 + rho, 44, f"quad_perm:[{qp}]")
        rbf(44, 44)
        A("v_mul_f32 v44, s74, v44")
        rbf(44, 44)
        A("v_mul_f32 v44, s75, v44")
        A("v_cmp_gt_f32 vcc, v44, v18")
        A(f"s_cbranch_vccz L_nors{u}")
        A("v_max_f32 v45, v44, v18")
        quad_all(45, "v_max_f32")
        rows_all(45, 46, "v_max_f32")
        A("v_sub_f32 v46, v18, v45")
        A("v_exp_f32 v46, v46")
        A("v_mov_b32 v18, v45")
        A("v_mul_f32 v19, v19, v46")
        for h in range(4): A(f"v_mov_b32_dpp v47, v46 row_newbcast:{4*h} row_mask:{hex(1<<h)} bank_mask:0xf")
        for r in range(10, 18): A(f"v_mul_f32 v{r}, v{r}, v47")
        A.label(f"L_nors{u}")
        A("v_sub_f32 v44, v44, v18")
        A("v_exp_f32 v44, v44")
        A("v_cvt_pk_bf16_f32 v45, v44, v44")
        A("v_add_f32 v19, v19, v44")
        for j in range(4):
            dpp("v_and_b32", 36 + 2 * j, 45, 4, f"quad_perm:[{j},{j},{j},{j}]")
            dpp("v_and_b32", 37 + 2 * j, 45, 5, f"quad_perm:[{j},{j},{j},{j}]")
        if refill: A("s_waitcnt vmcnt(4)")
        for j in range(4):
            A(f"v_mfma_f32_16x16x16_bf16 v[10:13], v[{36+2*j}:{37+2*j}], v[{VB+4*j}:{VB+4*j+1}], v[10:13]")
            A(f"v_mfma_f32_16x16x16_bf16 v[14:17], v[{36+2*j}:{37+2*j}], v[{VB+4*j+2}:{VB+4*j+3}], v[14:17]")
        if refill: issueV(base, 66)

    A("s_cmp_ge_u32 s2, 256")
    A("s_cbranch_scc1 L_exit")
    A("s_load_dwordx16 s[4:19], s[0:1], 0")
    A("s_load_dwordx8 s[20:27], s[0:1], 64")
    stamp(0)
    if diag: A("s_memrealtime s[80:81]")
    A("v_and_b32 v1, 63, v0")
    A("v_lshrrev_b32 v44, 6, v0")
    A("v_lshlrev_b32 v3, 4, v1")
    A("v_readfirstlane_b32 s3, v44")
    A("v_bfe_u32 v45, v1, 2, 2")
    A("v_lshrrev_b32 v46, 4, v1")
    A("v_and_b32 v47, 3, v1")
    A("v_lshlrev_b32 v2, 8, v45")
    A("v_lshl_add_u32 v2, v46, 6, v2")
    A("v_lshl_add_u32 v2, v47, 4, v2")
    A("s_lshr_b32 s77, s2, 3"); A("s_and_b32 s76, s77, 7"); A("s_and_b32 s73, s2, 7"); A("s_lshr_b32 s78, s2, 6")
    A("s_lshl3_add_u32 s79, s78, s73")
    A("s_cmp_ge_u32 s76, 4"); A(f"s_cselect_b32 s67, {D0-D1}, 0"); A(f"s_sub_u32 s67, {D0}, s67")
    A("s_cmp_eq_u32 s78, 0"); A(f"s_cselect_b32 s70, {offQ}, 0"); A(f"s_cselect_b32 s71, 0, 8"); A(f"s_sub_u32 s70, {S0}, s70")
    A(f"s_mul_i32 s71, s71, {offQ}")
    A(f"s_mul_i32 s59, s78, {8*S0-offT}"); A("s_sub_u32 s59, s59, s71")
    A("s_cmp_ge_u32 s77, 28"); A(f"s_cselect_b32 s68, {offT-offF}, {offT}")
    A("s_mul_i32 s71, s73, s70"); A("s_add_u32 s59, s59, s71")
    A("s_cmp_eq_u32 s73, 0"); A("s_cselect_b32 s71, 0, s68"); A("s_cselect_b32 s68, s68, 0")
    A("s_sub_u32 s59, s59, s71"); A("s_sub_u32 s70, s70, s68"); A(f"s_sub_u32 s70, s70, {LA}")
    A("s_lshl_b32 s59, s59, 12"); A("s_lshl_b32 s70, s70, 12")
    A("s_lshl_b32 s66, s3, 12"); A("s_add_u32 s66, s66, s59")
    A("s_lshl_b32 s71, s76, 24")
    A(f"s_mov_b32 s30, {OOB}"); A("s_mov_b32 s31, 0x20000"); A(f"s_mov_b32 s34, {OOB}"); A("s_mov_b32 s35, 0x20000")
    A("s_cmp_lt_u32 s2, 64")
    A("s_cbranch_scc1 L_qprod")
    A("s_waitcnt lgkmcnt(0)")
    A("s_add_u32 s28, s6, s71"); A("s_addc_u32 s29, s7, 0")
    A("s_add_u32 s32, s8, s71"); A("s_addc_u32 s33, s9, 0")
    A("s_load_dword s52, s[26:27], 0")
    A("s_cmp_eq_u32 s3, 0")
    A("s_cbranch_scc1 L_w0")
    A.label("L_ring")
    issueK(RA, 66); issueV(RA, 66)
    A(f"s_add_u32 s68, s66, {7*4096}")
    for k in range(NX):
        issueK(RX + 32 * k, 68); issueV(RX + 32 * k, 68)
        if k < NX - 1: A(f"s_add_u32 s68, s68, {7*4096}")
    srd(48, 4, 5, 1024)
    srd(36, 26, 27, WS_END)
    common_setup()
    A("s_waitcnt lgkmcnt(0)")
    tags()
    stamp(1)
    A("s_barrier")
    A("s_branch L_qj")
    A.label("L_qprod")
    A("v_lshrrev_b32 v44, 3, v1"); A("v_and_b32 v45, 7, v1")
    A("v_lshlrev_b32 v50, 16, v44")
    A("v_lshl_add_u32 v50, v45, 4, v50")
    A("v_lshlrev_b32 v51, 4, v44")
    A("s_lshl_b32 s68, s2, 7"); A("s_lshl_b32 s73, s3, 19"); A("s_add_u32 s68, s68, s73")
    A("s_lshl_b32 s73, s3, 7")
    A("s_mov_b32 s50, 1024"); A("s_mov_b32 s51, 0x20000"); A(f"s_mov_b32 s42, {4<<20}"); A("s_mov_b32 s43, 0x20000")
    for i in range(1, 8): A(f"v_add_u32 v{35+i}, {8192*i}, v50")
    A("s_waitcnt lgkmcnt(0)")
    A("s_mov_b32 s48, s4"); A("s_mov_b32 s49, s5"); A("s_mov_b32 s40, s10"); A("s_mov_b32 s41, s11")
    A("buffer_load_dwordx4 v[52:55], v3, s[48:51], 0 offen")
    A("buffer_load_dwordx4 v[32:35], v51, s[48:51], s73 offen")
    for i in range(8):
        va = 50 if i == 0 else 35 + i
        A(f"buffer_load_dwordx4 v[{RA+4*i}:{RA+4*i+3}], v{va}, s[40:43], s68 offen {wf}")
    A("s_load_dword s52, s[26:27], 0")
    A("s_add_u32 s28, s6, s71"); A("s_addc_u32 s29, s7, 0")
    A("s_add_u32 s32, s8, s71"); A("s_addc_u32 s33, s9, 0")
    A("s_cmp_lg_u32 s3, 0"); A("s_cbranch_scc1 L_nz")
    A("s_cmp_ge_u32 s79, 4"); A("s_cbranch_scc1 L_nz")
    A("s_lshl3_add_u32 s73, s79, s76")
    A(f"s_mul_i32 s73, s73, {cstride}"); A(f"s_add_u32 s73, s73, {CBUF}")
    A("v_mov_b32 v49, s73"); A("v_mov_b32 v48, 0")
    A("s_mov_b64 exec, 1")
    A("global_store_dword v49, v48, s[26:27] sc1")
    A("s_mov_b64 exec, -1")
    A.label("L_nz")
    A("v_lshrrev_b32 v49, 5, v1"); A("v_and_b32 v44, 1, v46")
    A("v_lshlrev_b32 v48, 8, v49"); A("v_lshl_add_u32 v48, v45, 5, v48"); A("v_lshl_add_u32 v48, v44, 4, v48")
    A("s_lshl_b32 s73, s3, 9"); A("v_add_u32 v48, s73, v48")
    common_setup()
    k32masks(6)
    A("s_waitcnt vmcnt(8)")
    for k in range(4):
        A(f"v_lshlrev_b32 v{36+2*k}, 16, v{52+k}")
        A(f"v_and_b32 v{37+2*k}, 0xffff0000, v{52+k}")
    for k in range(4):
        A(f"v_lshlrev_b32 v{20+2*k}, 16, v{32+k}")
        A(f"v_and_b32 v{21+2*k}, 0xffff0000, v{32+k}")
    ln_stats(list(range(36, 44)), 44, 45, 51)
    for k in range(8): A(f"v_sub_f32 v{20+k}, v{20+k}, v44")
    for k in range(8): rbf(20 + k, 20 + k)
    for k in range(8): A(f"v_mul_f32 v{20+k}, v{20+k}, v45")
    for k in range(8): A(f"v_cvt_pk_bf16_f32 v{20+k}, v{20+k}, v{20+k}")
    for i in range(8):
        for r in range(4): A(f"v_and_b32 v{RX+4*i+r}, v{20+i}, v{6+r}")
    A("s_waitcnt vmcnt(0)")
    for i in range(8):
        c = "0" if i == 0 else "v[28:31]"
        A(f"v_mfma_f32_16x16x32_bf16 v[28:31], v[{RX+4*i}:{RX+4*i+3}], v[{RA+4*i}:{RA+4*i+3}], {c}")
    A("s_mov_b32 exec_lo, 0x00ff00ff"); A("s_mov_b32 exec_hi, 0xff00ff00")
    A(f"ds_write_b128 v48, v[28:31] offset:{L_RED}")
    A("s_mov_b64 exec, -1")
    A("s_waitcnt lgkmcnt(0)")
    A("s_barrier")
    A("s_cmp_lg_u32 s3, 0")
    A("s_cbranch_scc1 L_ring")
    A("s_setprio 3")
    A("v_and_b32 v50, 15, v1"); A("v_lshlrev_b32 v49, 10, v46"); A("v_lshl_add_u32 v49, v50, 4, v49")
    for k in range(4): A(f"ds_read_b128 v[{20+4*k}:{23+4*k}], v49 offset:{L_RED+256*k}")
    srd(36, 26, 27, WS_END)
    tags()
    A("v_and_b32 v45, 1, v46"); A("v_lshlrev_b32 v45, 1, v45"); A("v_lshrrev_b32 v44, 1, v46"); A("v_or_b32 v45, v45, v44")
    A("v_lshl_add_u32 v45, v50, 2, v45"); A("v_lshlrev_b32 v45, 2, v45")
    A("v_mov_b32 v49, s57"); A("v_mov_b32 v51, s58")
    A("v_cmp_eq_u32 vcc, 0, v44")
    A("v_cndmask_b32 v49, v51, v49, vcc")
    A("s_lshl_b32 s71, s2, 8"); A(f"s_add_u32 s71, s71, {QBUF}")
    A("s_waitcnt lgkmcnt(0)")
    sum4x4()
    rbf(20, 20)
    A("v_or_b32 v20, v20, v49")
    A("buffer_store_dword v20, v45, s[36:39], s71 offen sc1")
    stamp(2)
    A("s_branch L_w0b")
    A.label("L_w0")
    A("s_setprio 3")
    srd(48, 4, 5, 1024)
    srd(36, 26, 27, WS_END)
    common_setup()
    A("s_waitcnt lgkmcnt(0)")
    tags()
    A.label("L_w0b")
    A(f"v_mov_b32 v52, {L_TK}"); A(f"v_mov_b32 v48, {(8+7*NX)*4096}")
    A("ds_write_b32 v52, v48")
    for r in range(4): A(f"v_mov_b32 v{24+r}, -1")
    A(f"ds_write_b128 v3, v[24:27] offset:{L_TB}")
    A(f"ds_write_b128 v3, v[24:27] offset:{L_TB+1024}")
    A("s_add_u32 s73, s59, s70")
    A("v_lshlrev_b32 v28, 12, v1"); A("v_add_u32 v28, s73, v28"); A("v_lshlrev_b32 v29, 2, v1")
    A("v_cmp_eq_u32 vcc, 0, v1"); A("v_addc_co_u32 v28, vcc, 0, v28, vcc")
    A(f"s_mov_b64 exec, {(1 << LA) - 1}")
    A(f"ds_write_b32 v29, v28 offset:{L_TB}")
    A("s_mov_b64 exec, -1")
    A("v_lshlrev_b32 v44, 1, v2")
    A("s_lshl_b32 s71, s76, 11"); A(f"s_add_u32 s71, s71, {QBUF}")
    A("s_add_u32 s14, s26, s71"); A("s_addc_u32 s15, s27, 0")
    A.label("L_qhint")
    for k in range(8): A(f"s_load_dword s{40+k}, s[14:15], {256*k} glc")
    A("s_waitcnt lgkmcnt(0)")
    for k in range(8): A(f"s_xor_b32 s{40+k}, s{40+k}, s57")
    for k in range(1, 8): A(f"s_or_b32 s40, s40, s{40+k}")
    A("s_and_b32 s40, s40, 0xffff")
    A("s_cbranch_scc0 L_qpoll")
    spin("L_qhint", qslp)
    A.label("L_qpoll")
    A("buffer_load_dwordx4 v[20:23], v44, s[36:39], s71 offen sc1")
    A("buffer_load_dwordx4 v[24:27], v44, s[36:39], s71 offen offset:16 sc1")
    A("s_mov_b32 s73, 0x07060302")
    A("s_waitcnt vmcnt(0)")
    for e in range(8): A(f"v_xor_b32 v{20+e}, s{57+(e&1)}, v{20+e}")
    A("v_or3_b32 v45, v20, v21, v22"); A("v_or3_b32 v45, v45, v23, v24"); A("v_or3_b32 v45, v45, v25, v26"); A("v_or_b32 v45, v45, v27")
    A("v_and_b32 v45, 0xffff, v45")
    A("v_cmp_ne_u32 vcc, 0, v45")
    A("s_cbranch_vccz L_q_ok")
    spin("L_qpoll")
    A.label("L_q_ok")
    for k in range(4): A(f"v_perm_b32 v{6+k}, v{21+2*k}, v{20+2*k}, s73")
    A(f"ds_write_b128 v3, v[6:9] offset:{L_QF}")
    A("s_waitcnt lgkmcnt(0)")
    stamp(1)
    A("s_barrier")
    issueK(RA, 66); issueV(RA, 66)
    A("s_setprio 0")
    A.label("L_qj")
    A(f"ds_read_b128 v[6:9], v3 offset:{L_QF}")
    A(f"v_mov_b32 v52, {L_TK}"); A("v_mov_b32 v53, 4096")
    A("s_mov_b32 s69, 3")
    A(f"s_mul_i32 s58, s77, {cstride}"); A(f"s_add_u32 s58, s58, {CBUF}")
    A("s_sub_u32 s57, 4, s78"); A("s_mul_i32 s57, s57, s67"); A("s_sub_u32 s57, 4096, s57"); A("s_lshl_b32 s57, s57, 12")
    stamp(3)
    A.label("L_loop")
    chunk(RA, True)
    A("s_cmp_lg_u32 s69, 3")
    A("s_cbranch_scc1 L_loop")
    A("s_mov_b32 s69, 0")
    A("s_cmp_eq_u32 s3, 0")
    A("s_cbranch_scc1 L_setup")
    A("s_waitcnt vmcnt(8)")
    for k in range(NX): chunk(RX + 32 * k, False)
    A.label("L_setup")
    A("v_lshrrev_b32 v46, 4, v1"); A("v_and_b32 v47, 3, v1"); A("v_bfe_u32 v45, v1, 2, 2"); A("v_and_b32 v50, 15, v1")
    A("v_and_b32 v48, 1, v46"); A("v_lshlrev_b32 v48, 1, v48"); A("v_lshrrev_b32 v49, 1, v46"); A("v_or_b32 v48, v48, v49")
    A("s_lshl_b32 s71, s3, 11"); A(f"v_lshlrev_b32 v{TC}, 5, v1"); A(f"v_add_u32 v{TC}, s71, v{TC}")
    A("s_lshl_b32 s71, s3, 3"); A(f"v_lshlrev_b32 v{TC+1}, 6, v45"); A(f"v_add_u32 v{TC+1}, s71, v{TC+1}")
    A(f"v_lshrrev_b32 v{TC+2}, 1, v{TC+1}")
    A("s_lshl_b32 s71, s3, 8"); A(f"v_lshlrev_b32 v{TC+3}, 12, v46"); A(f"v_lshl_add_u32 v{TC+3}, v50, 4, v{TC+3}"); A(f"v_add_u32 v{TC+3}, s71, v{TC+3}")
    A("s_lshr_b32 s71, s3, 1"); A("s_lshl_b32 s73, s71, 6"); A(f"v_lshlrev_b32 v{TC+4}, 4, v46"); A(f"v_add_u32 v{TC+4}, s73, v{TC+4}")
    A("s_lshl_b32 s73, s71, 5"); A(f"v_mov_b32 v{TC+5}, s73")
    A(f"v_lshl_add_u32 v{TC+6}, v50, 2, v48"); A(f"v_lshlrev_b32 v{TC+6}, 2, v{TC+6}")
    A(f"v_lshlrev_b32 v{TC+7}, 3, v48"); A(f"v_lshrrev_b32 v{TC+7}, v{TC+7}, s52"); A(f"v_and_b32 v{TC+7}, 0xff, v{TC+7}")
    A("s_lshl_b32 s71, s76, 1"); A("s_lshr_b32 s73, s3, 2"); A("s_add_u32 s71, s71, s73")
    A("s_lshl_b32 s0, s71, 15"); A("s_lshl_b32 s73, s79, 10"); A("s_add_u32 s0, s0, s73")
    A("s_and_b32 s73, s3, 3"); A("s_lshl_b32 s73, s73, 8"); A("s_add_u32 s0, s0, s73"); A(f"s_add_u32 s0, s0, {OBUF}")
    A(f"s_lshl_b32 s1, s71, {6+mlsh}"); A("s_bfe_u32 s73, s3, 0x10001"); A(f"s_lshl_b32 s73, s73, {5+mlsh}"); A("s_add_u32 s1, s1, s73")
    A(f"s_lshl_b32 s73, s79, {mlsh}"); A("s_add_u32 s1, s1, s73"); A(f"s_add_u32 s1, s1, {MLBUF}")
    A("s_and_b32 s71, s2, 7")
    A("s_cbranch_scc1 L_loop")
    A("s_mov_b32 s69, 2")
    A("s_getreg_b32 s78, hwreg(HW_REG_XCC_ID, 0, 4)"); A("s_lshl_b32 s78, s78, 8")
    A("s_cmp_lg_u32 s3, 0"); A("s_cbranch_scc1 L_nox")
    A("s_or_b32 s71, s78, s53")
    A("v_mov_b32 v20, s71"); A("v_mov_b32 v21, s54"); A("v_mov_b32 v22, s55"); A("v_mov_b32 v23, s56")
    A("s_lshl_b32 s71, s77, 4"); A(f"s_add_u32 s71, s71, {XBUF}")
    A("s_mov_b64 exec, 1")
    A("buffer_store_dwordx4 v[20:23], v3, s[36:39], s71 offen sc1")
    A("s_mov_b64 exec, -1")
    A.label("L_nox")
    srd(40, 12, 13, 4 << 20)
    A("s_lshr_b32 s68, s77, 1")
    A("s_lshl_b32 s71, s68, 18"); A("s_lshl_b32 s73, s3, 15"); A("s_add_u32 s71, s71, s73")
    A("s_and_b32 s73, s77, 1"); A("s_lshl_b32 s73, s73, 9"); A("s_add_u32 s71, s71, s73")
    A("v_lshlrev_b32 v44, 4, v50"); A("v_lshl_add_u32 v44, v48, 10, v44")
    for i in range(8):
        for c2 in range(2):
            r = WO + 4 * (2 * i + c2)
            A(f"buffer_load_dwordx4 v[{r}:{r+3}], v44, s[40:43], s71 offen offset:{256*c2} {wf}")
        if i < 7: A("s_add_u32 s71, s71, 4096")
    A(f"v_lshrrev_b32 v51, 1, v{TC+6}"); A("s_lshl_b32 s71, s3, 7")
    A(f"buffer_load_ushort v{TC+13}, v51, s[48:51], s71 offen")
    k32masks(TC + 16)
    A("v_lshrrev_b32 v49, 3, v1"); A("v_and_b32 v51, 7, v1"); A("v_and_b32 v45, 1, v46")
    A(f"v_lshlrev_b32 v{TC+8}, 10, v49"); A(f"v_lshl_add_u32 v{TC+8}, v51, 4, v{TC+8}")
    A(f"v_lshlrev_b32 v{TC+9}, {mlsh}, v49"); A(f"v_lshlrev_b32 v{TC+10}, {mlsh}, v1")
    A(f"v_lshlrev_b32 v{TC+24}, 4, v45"); A(f"v_lshl_add_u32 v{TC+24}, v50, 5, v{TC+24}")
    A("s_lshl_b32 s71, s3, 10"); A(f"v_add_u32 v{TC+11}, s71, v{TC+24}")
    A("s_lshl_b32 s71, s3, 9"); A(f"v_add_u32 v{TC+22}, s71, v{TC+24}")
    A(f"v_lshlrev_b32 v{TC+14}, 11, v46"); A(f"v_lshl_add_u32 v{TC+14}, v50, 4, v{TC+14}")
    A("s_and_b32 s71, s3, 3"); A("s_lshl_b32 s71, s71, 8"); A(f"v_add_u32 v{TC+12}, s71, v{TC+14}")
    A("s_lshl_b32 s71, s3, 8"); A(f"v_add_u32 v{TC+15}, s71, v{TC+6}")
    A("s_lshl_b32 s71, s3, 4"); A(f"v_mov_b32 v{TC+20}, s71"); A(f"v_lshlrev_b32 v{TC+21}, 4, v51")
    A("v_bfe_u32 v49, v1, 3, 1")
    A(f"v_lshlrev_b32 v{TC+23}, 10, v46"); A(f"v_lshl_add_u32 v{TC+23}, v49, 8, v{TC+23}"); A(f"v_lshl_add_u32 v{TC+23}, v51, 4, v{TC+23}")
    A("s_lshr_b32 s71, s3, 2"); A("s_lshl_b32 s71, s71, 7"); A(f"v_add_u32 v{TC+23}, s71, v{TC+23}")
    A("s_lshl_b32 s71, s3, 13"); A(f"s_add_u32 s71, s71, {L_WD}"); A(f"v_add_u32 v{TC+26}, s71, v3")
    A("s_mov_b32 m0, s71")
    srd(44, 22, 23, 1024)
    A("s_cmp_ge_u32 s77, 28")
    A("s_cbranch_scc1 L_sufin")
    A("s_mov_b32 s69, 1")
    A("s_lshl_b32 s71, s3, 6"); A("v_add_u32 v45, s71, v48")
    A("v_mul_u32_u24 v45, 3584, v45"); A("v_lshl_add_u32 v45, v51, 4, v45"); A("s_lshl_b32 s71, s77, 7"); A("v_add_u32 v45, s71, v45")
    A("v_cmp_eq_u32 vcc, 0, v49")
    A("v_mov_b32 v20, s16"); A("v_mov_b32 v21, s18"); A("v_cndmask_b32 v20, v21, v20, vcc")
    A("v_mov_b32 v21, s17"); A("v_mov_b32 v22, s19"); A("v_cndmask_b32 v21, v22, v21, vcc")
    A("v_add_co_u32 v20, vcc, v20, v45"); A("v_addc_co_u32 v21, vcc, 0, v21, vcc")
    for i in range(16):
        A(f"global_load_dwordx4 v[{WGU+4*i}:{WGU+4*i+3}], v[20:21], off {wf}")
        if i < 15: A(f"v_add_co_u32 v20, vcc, {4*3584}, v20"); A("v_addc_co_u32 v21, vcc, 0, v21, vcc")
    srd(40, 20, 21, 1792 * 1024)
    A("s_lshl_b32 s71, s77, 16"); A("s_lshr_b32 s73, s3, 2"); A("s_lshl_b32 s73, s73, 15"); A("s_add_u32 s71, s71, s73")
    A("s_and_b32 s73, s3, 3"); A("s_lshl_b32 s73, s73, 8"); A("s_add_u32 s71, s71, s73")
    for i in range(8):
        A(f"buffer_load_dwordx4 v44, s[40:43], s71 offen {wf} lds")
        if i < 7: A("s_add_u32 s71, s71, 4096"); A("s_add_u32 m0, m0, 1024")
    A("s_lshl_b32 s22, s77, 12"); A("s_lshl_b32 s73, s3, 9"); A("s_add_u32 s22, s22, s73"); A(f"s_add_u32 s22, s22, {YBUF}")
    A("s_branch L_suj")
    A.label("L_sufin")
    A("s_sub_u32 s71, s77, 28"); A("s_lshl3_add_u32 s71, s71, s3")
    A(f"v_lshrrev_b32 v{TC+24}, 2, v1"); A(f"v_lshlrev_b32 v{TC+24}, 11, v{TC+24}"); A(f"v_lshl_add_u32 v{TC+24}, v47, 4, v{TC+24}")
    A(f"v_lshl_add_u32 v{TC+25}, v47, 2, v48"); A("s_lshl_b32 s73, s71, 4"); A(f"v_add_u32 v{TC+25}, s73, v{TC+25}"); A(f"v_lshlrev_b32 v{TC+25}, 1, v{TC+25}")
    A("s_lshl_b32 s22, s71, 6"); A(f"s_add_u32 s22, s22, {YBUF}")
    A("s_add_u32 s23, s22, 32768"); A("s_add_u32 s24, s22, 65536"); A("s_add_u32 s25, s22, 98304")
    A.label("L_suj")
    A("s_lshl_b32 s16, s68, 15"); A("s_lshl_b32 s71, s3, 7"); A("s_add_u32 s16, s16, s71"); A(f"s_add_u32 s16, s16, {OBUF}")
    A("s_add_u32 s17, s16, 8192"); A("s_add_u32 s18, s16, 16384"); A("s_add_u32 s19, s16, 24576")
    A(f"s_lshl_b32 s20, s68, {6+mlsh}"); A("s_lshr_b32 s71, s3, 2"); A(f"s_lshl_b32 s71, s71, {5+mlsh}"); A("s_add_u32 s20, s20, s71"); A(f"s_add_u32 s20, s20, {MLBUF}")
    A("s_lshl_b32 s21, s77, 10"); A("s_lshl_b32 s73, s3, 8"); A("s_add_u32 s21, s21, s73"); A(f"s_add_u32 s21, s21, {HBUF}")
    A("s_branch L_loop")

    A.label("L_dyn")
    A("s_sub_u32 s73, s71, s70"); A("s_lshr_b32 s73, s73, 10")
    A("v_mov_b32 v48, s73")
    A.label("L_dynw")
    A(f"ds_read_b32 v49, v48 offset:{L_TB}")
    A("s_waitcnt lgkmcnt(0)")
    A("v_readfirstlane_b32 s66, v49")
    A("s_cmp_lg_u32 s66, -1")
    A("s_cbranch_scc1 L_dyng")
    spin("L_dynw")
    A.label("L_dyng")
    if t1:
        A("s_cmp_eq_u32 s66, 2")
        A("s_cbranch_scc1 L_self")
    A("s_bitcmp1_b32 s66, 0")
    A("s_cbranch_scc0 L_go")
    A("s_and_b32 s66, s66, -2")
    A("s_max_u32 s71, s66, s57"); A("s_sub_u32 s71, s71, s57"); A("s_lshr_b32 s71, s71, 12"); A("s_sub_u32 s71, s67, s71")
    if tT:
        A("s_and_b32 s14, s2, 7"); A(f"s_cselect_b32 s14, 0, {tT}")
        A("s_cmp_gt_u32 s71, s14")
        A("s_cbranch_scc1 L_dynt")
        A("v_lshl_add_u32 v48, v1, 2, v48")
        A("v_mov_b32 v51, s30")
        A(f"ds_write_b32 v48, v51 offset:{L_TB+4*LA}")
        A("s_branch L_go")
        A.label("L_dynt")
    A(f"s_cmp_gt_u32 s71, {t4}"); A("s_cselect_b32 s15, 4, 2")
    A(f"s_cmp_gt_u32 s71, {t8}"); A(f"s_cselect_b32 s15, {b0}, s15")
    A("s_mov_b32 s14, s15")
    A("s_atomic_add s14, s[26:27], s58 glc")
    A("v_lshl_add_u32 v48, v1, 2, v48")
    A(f"s_sub_u32 s73, s15, {LA}")
    A("s_waitcnt lgkmcnt(0)")
    A("v_add_u32 v49, s14, v1")
    A("v_lshlrev_b32 v50, 12, v49"); A("v_add_u32 v50, s57, v50")
    A("s_add_u32 s14, s14, s15")
    A("s_cmp_ge_u32 s14, s67")
    A("s_cbranch_scc1 L_dynx")
    if t1:
        A(f"s_add_u32 s14, s14, {t1}")
        A("s_cmp_ge_u32 s14, s67")
        A("s_cbranch_scc1 L_dyns")
    A("v_cmp_eq_u32 vcc, s73, v1"); A("v_addc_co_u32 v50, vcc, 0, v50, vcc")
    A("v_cmp_gt_u32 vcc, s15, v1")
    A("s_mov_b64 exec, vcc")
    A(f"ds_write_b32 v48, v50 offset:{L_TB+4*LA}")
    A("s_mov_b64 exec, -1")
    A("s_branch L_go")
    A.label("L_dynx")
    A("v_mov_b32 v51, s30")
    A("v_cmp_gt_u32 vcc, s67, v49")
    A("v_cndmask_b32 v50, v51, v50, vcc")
    A(f"ds_write_b32 v48, v50 offset:{L_TB+4*LA}")
    A("s_branch L_go")
    if t1:
        A.label("L_dyns")
        A("v_cmp_gt_u32 vcc, s15, v1")
        A("v_cndmask_b32 v50, 2, v50, vcc")
        A(f"ds_write_b32 v48, v50 offset:{L_TB+4*LA}")
        A("s_branch L_go")
        A.label("L_self")
        A("s_mov_b32 s14, 1")
        A("s_atomic_add s14, s[26:27], s58 glc")
        A("v_lshl_add_u32 v48, v1, 2, v48")
        A("v_mov_b32 v51, s30")
        A("s_waitcnt lgkmcnt(0)")
        A("s_lshl_b32 s66, s14, 12"); A("s_add_u32 s66, s66, s57")
        A("s_cmp_lt_u32 s14, s67")
        A("s_cbranch_scc1 L_go")
        A("s_mov_b32 s66, s30")
        A(f"ds_write_b32 v48, v51 offset:{L_TB+4}")
        A("s_branch L_go")

    A.label("L_done")
    A("s_cmp_eq_u32 s69, 3")
    A("s_cbranch_scc1 L_end")
    stamp(4)
    if cut == 1: A("s_branch L_end")
    quad_all(19, "v_add_f32")
    A(f"ds_write_b32 v{TC+2}, v18 offset:{L_MX}")
    rows_all(19, 49, "v_add_f32")
    A(f"ds_write_b128 v{TC}, v[10:13] offset:{L_OM}")
    A(f"ds_write_b128 v{TC}, v[14:17] offset:{L_OM+16}")
    A(f"ds_write_b64 v{TC+1}, v[18:19] offset:{L_ML}")
    A("s_mov_b32 s73, 0xffffff00")
    A("s_lshl_b32 s60, s3, 8"); A(f"s_add_u32 s60, s60, {HBUF}")
    A("s_add_u32 s61, s60, 8192"); A("s_add_u32 s62, s60, 16384"); A("s_add_u32 s63, s60, 24576")
    A("s_cmp_eq_u32 s69, 0")
    A("s_cbranch_scc1 L_nopt")
    A("v_and_b32 v54, 0x1f0, v3")
    A(f"buffer_load_dwordx4 v[40:43], v54, s[36:39], 0 offen offset:{XBUF} sc1")
    if pretouch:
        A("s_lshl_b32 s71, s3, 5"); A("s_add_u32 s71, s71, s77")
        A("s_cmp_ge_u32 s71, 144")
        A("s_cbranch_scc1 L_nopt")
        A("s_lshl_b32 s71, s71, 10"); A(f"s_add_u32 s71, s71, {HBUF}")
        A("buffer_load_dwordx4 v[44:47], v3, s[36:39], s71 offen sc1")
    A.label("L_nopt")
    A("s_waitcnt lgkmcnt(0)")
    A("s_barrier")
    stamp(5)
    A(f"ds_read_b128 v[20:23], v{TC+5} offset:{L_MX}")
    A(f"ds_read_b128 v[24:27], v{TC+5} offset:{L_MX+16}")
    A(f"ds_read_b128 v[28:31], v{TC+4} offset:{L_ML}")
    A(f"ds_read_b128 v[10:13], v{TC+3} offset:{L_OM}")
    A(f"ds_read_b128 v[14:17], v{TC+3} offset:{L_OM+2048}")
    A("v_mov_b32 v38, s55"); A("v_mov_b32 v39, s56")
    A("s_waitcnt lgkmcnt(3)")
    A("v_max3_f32 v36, v20, v21, v22"); A("v_max3_f32 v37, v23, v24, v25"); A("v_max3_f32 v36, v36, v26, v27"); A("v_max_f32 v36, v36, v37")
    A("v_and_b32 v36, s73, v36")
    A("s_waitcnt lgkmcnt(2)")
    A("v_sub_f32 v28, v28, v36"); A("v_sub_f32 v30, v30, v36")
    A("v_exp_f32 v28, v28"); A("v_exp_f32 v30, v30")
    A("v_or_b32 v36, s53, v36")
    A("s_waitcnt lgkmcnt(0)")
    for r in range(4): A(f"v_mul_f32 v{10+r}, v{10+r}, v28")
    for r in range(4): A(f"v_fmac_f32 v{10+r}, v{14+r}, v30")
    A("v_mul_f32 v37, v28, v29")
    A("v_fmac_f32 v37, v30, v31")
    rr4(10, 11, 12, 13)
    A(f"v_and_or_b32 v10, v10, s73, v{TC+7}")
    A(f"buffer_store_dword v10, v{TC+6}, s[36:39], s0 offen sc1")
    A("s_bitcmp1_b32 s3, 0")
    A("s_cbranch_scc1 L_mj")
    rows_all(37, 49, "v_add_f32")
    A("v_and_b32 v37, s73, v37"); A("v_or_b32 v37, s54, v37")
    A("s_mov_b64 exec, 1")
    A("buffer_store_dwordx4 v[36:39], v3, s[36:39], s1 offen sc1")
    A("s_mov_b64 exec, -1")
    A.label("L_mj")
    stamp(6)
    A("s_cmp_eq_u32 s69, 0")
    A("s_cbranch_scc1 L_end")
    OB, MB = RA, RA + 16
    A("s_mov_b32 exec_hi, 0")
    A.label("L_h1pre")
    A(f"buffer_load_dword v53, v{TC+10}, s[36:39], s20 offen offset:12 sc1")
    A("s_waitcnt vmcnt(0)")
    A("v_cmp_eq_u32 vcc, s56, v53")
    A("s_bcnt1_i32_b64 s71, vcc")
    A(f"s_cmp_ge_u32 s71, {thr1}")
    A("s_cbranch_scc1 L_h1go")
    spin("L_h1pre", slp1)
    A.label("L_h1go")
    A("s_mov_b64 exec, -1")
    A.label("L_xchk")
    for k in range(4): A(f"v_xor_b32 v{40+k}, s{53+k}, v{40+k}")
    A("v_or3_b32 v55, v41, v42, v43"); A("v_and_or_b32 v55, v40, 0xff, v55") if False else None
    A("v_and_b32 v53, 0xff, v40"); A("v_or_b32 v55, v55, v53")
    A("v_cmp_ne_u32 vcc, 0, v55")
    A("s_cbranch_vccz L_xok")
    A(f"buffer_load_dwordx4 v[40:43], v54, s[36:39], 0 offen offset:{XBUF} sc1")
    A("s_waitcnt vmcnt(0)")
    spin("L_xchk")
    A.label("L_xok")
    A("v_cmp_ne_u32 vcc, s78, v40")
    A("s_mov_b32 s64, 0")
    if local:
        A("s_cbranch_vccnz L_xg")
        A("s_mov_b32 s64, 1")
        A.label("L_xg")
    A(f"v_lshlrev_b32 v{TC+13}, 16, v{TC+13}")
    gather("L_h1", [[(MB + 4 * j, TC + 9, 20, (8 << mlsh) * j), (OB + 4 * j, TC + 8, 16 + j, 0)] for j in range(4)])
    stamp(7)
    A(f"v_max3_f32 v20, v{MB}, v{MB+4}, v{MB+8}"); A(f"v_max_f32 v20, v20, v{MB+12}")
    dpp("v_max_f32", 20, 20, 20, "row_ror:8")
    rows_all(20, 21, "v_max_f32")
    for j in range(4): A(f"v_sub_f32 v{MB+4*j}, v{MB+4*j}, v20")
    for j in range(4): A(f"v_exp_f32 v{MB+4*j}, v{MB+4*j}")
    A(f"v_mul_f32 v21, v{MB}, v{MB+1}")
    for j in range(1, 4): A(f"v_fmac_f32 v21, v{MB+4*j}, v{MB+4*j+1}")
    for r in range(4): A(f"v_mul_f32 v{24+r}, v{OB+r}, v{MB}")
    dpp("v_add_f32", 21, 21, 21, "row_ror:8")
    for r in range(4): A(f"v_fmac_f32 v{24+r}, v{OB+4+r}, v{MB+4}")
    A("v_mov_b32 v22, v21")
    for r in range(2): A(f"v_fmac_f32 v{24+r}, v{OB+8+r}, v{MB+8}")
    A("v_permlane32_swap_b32 v21, v22")
    for r in range(2, 4): A(f"v_fmac_f32 v{24+r}, v{OB+8+r}, v{MB+8}")
    A("v_add_f32 v21, v21, v22")
    A("v_mov_b32 v22, v21")
    for r in range(4): A(f"v_fmac_f32 v{24+r}, v{OB+12+r}, v{MB+12}")
    A("v_permlane16_swap_b32 v21, v22")
    A("v_add_f32 v21, v21, v22")
    A("v_permlane32_swap_b32 v24, v25")
    A("v_permlane32_swap_b32 v26, v27")
    A("v_add_f32 v24, v24, v25")
    A("v_add_f32 v26, v26, v27")
    A("v_rcp_f32 v21, v21")
    A("v_permlane16_swap_b32 v24, v26")
    A("v_add_f32 v24, v24, v26")
    dpp("v_add_f32", 24, 24, 24, "row_ror:8")
    A("v_mul_f32 v20, v24, v21")
    A("v_cvt_pk_bf16_f32 v20, v20, v20")
    def frag(i, src):
        F = 24 + 4 * (i % 3)
        for r in range(4): dpp("v_and_b32", F + r, src, TC + 16 + r, f"row_newbcast:{i}")
        return F
    Fs = {0: frag(0, 20)}
    for i in range(8):
        if i < 7: Fs[i + 1] = frag(i + 1, 20)
        for c2 in range(2):
            acc = 10 + 4 * c2; c = "0" if i == 0 else f"v[{acc}:{acc+3}]"; b = WO + 4 * (2 * i + c2)
            A(f"v_mfma_f32_16x16x32_bf16 v[{acc}:{acc+3}], v[{Fs[i]}:{Fs[i]+3}], v[{b}:{b+3}], {c}")
    A("s_mov_b32 exec_hi, 0")
    A(f"ds_write_b128 v{TC+11}, v[10:13] offset:{L_RED}")
    A(f"ds_write_b128 v{TC+11}, v[14:17] offset:{L_RED+512}")
    A("s_mov_b64 exec, -1")
    A("s_waitcnt lgkmcnt(0)")
    A("s_barrier")
    A("s_cmp_ge_u32 s3, 4")
    A("s_cbranch_scc1 L_h2")
    A(f"ds_read_b128 v[20:23], v{TC+12} offset:{L_RED}")
    A(f"ds_read_b128 v[24:27], v{TC+12} offset:{L_RED+1024}")
    A("s_waitcnt lgkmcnt(0)")
    sum2x4()
    A(f"v_and_or_b32 v36, v20, s73, v{TC+7}")
    lstore("L_hs", f"buffer_store_dword v36, v{TC+6}, s[36:39], s21 offen")
    stamp(8)
    A.label("L_h2")
    for i in range(8): A(f"ds_read_b128 v[{WD+4*i}:{WD+4*i+3}], v{TC+26} offset:{1024*i}")
    gather("L_h2", [[(20 + 4 * j, TC + 14, 60 + j, 0)] for j in range(4)])
    stamp(2)
    sum4x4()
    rbf(20, 20)
    A(f"v_add_f32 v20, v20, v{TC+13}")
    rbf(20, 20)
    A("s_cmp_eq_u32 s69, 2")
    A("s_cbranch_scc1 L_fin")
    A("v_readfirstlane_b32 s71, v20")
    A("v_subrev_f32 v25, s71, v20")
    A("v_mov_b32 v24, s71")
    A("v_mul_f32 v26, v25, v25")
    for ctl in ("quad_perm:[1,0,3,2]", "quad_perm:[2,3,0,1]", "row_ror:8", "row_ror:4"):
        dpp("v_add_f32", 25, 25, 25, ctl); dpp("v_add_f32", 26, 26, 26, ctl)
    A("v_permlane32_swap_b32 v25, v26")
    A("v_add_f32 v25, v25, v26")
    A("v_mov_b32 v26, v25")
    A("v_permlane16_swap_b32 v25, v26")
    A("v_add_f32 v25, v25, v26")
    A("s_mov_b64 exec, 1")
    A(f"ds_write_b64 v{TC+20}, v[24:25] offset:{L_ST}")
    A("s_mov_b32 exec_lo, 0"); A("s_mov_b32 exec_hi, 1")
    A(f"ds_write_b32 v{TC+20}, v25 offset:{L_ST+8}")
    A("s_mov_b64 exec, -1")
    A("s_waitcnt lgkmcnt(0)")
    A("s_barrier")
    A(f"ds_read_b128 v[24:27], v{TC+21} offset:{L_ST}")
    A("s_waitcnt lgkmcnt(0)")
    A("v_readfirstlane_b32 s71, v24")
    A("v_subrev_f32 v24, s71, v24")
    A("v_mul_f32 v27, 0x42800000, v24")
    A("v_add_f32 v28, v25, v27")
    A("v_add_f32 v25, v25, v28")
    A("v_fmac_f32 v26, v24, v25")
    for ctl in ("quad_perm:[1,0,3,2]", "quad_perm:[2,3,0,1]", "row_half_mirror"):
        dpp("v_add_f32", 28, 28, 28, ctl); dpp("v_add_f32", 26, 26, 26, ctl)
    A("v_mul_f32 v28, 0x3b000000, v28")
    A("v_mul_f32 v26, 0x3b000000, v26")
    A("v_fma_f32 v26, -v28, v28, v26")
    A("v_add_f32 v28, s71, v28")
    A("v_max_f32 v26, 0, v26")
    ln_fin(28, 26)
    A("v_sub_f32 v20, v20, v28")
    rbf(20, 20)
    A("v_mul_f32 v20, v20, v26")
    A("v_cvt_pk_bf16_f32 v20, v20, v20")
    Fs = {0: frag(0, 20)}
    for i in range(16):
        if i < 15: Fs[i + 1] = frag(i + 1, 20)
        c = "0" if i == 0 else "v[10:13]"
        A(f"v_mfma_f32_16x16x32_bf16 v[10:13], v[{Fs[i]}:{Fs[i]+3}], v[{WGU+4*i}:{WGU+4*i+3}], {c}")
    A("s_mov_b32 exec_hi, 0")
    A(f"ds_write_b128 v{TC+22}, v[10:13] offset:{L_RED2}")
    A("s_mov_b64 exec, -1")
    A("s_waitcnt lgkmcnt(0)")
    A("s_barrier")
    stamp(3)
    A(f"ds_read_b128 v[20:23], v{TC+23} offset:{L_RED2}")
    A(f"ds_read_b128 v[24:27], v{TC+23} offset:{L_RED2+512}")
    A("v_mov_b32 v52, s73")
    A("s_waitcnt lgkmcnt(0)")
    sum2x4()
    rbf(20, 20)
    dpp("v_mul_f32", 21, 20, 20, "row_ror:8")
    A("v_cvt_pk_bf16_f32 v21, v21, v21")
    Fs = {0: frag(0, 21)}
    for i in range(8):
        if i < 7: Fs[i + 1] = frag(i + 1, 21)
        c = "0" if i == 0 else "v[10:13]"
        A(f"v_mfma_f32_16x16x32_bf16 v[10:13], v[{Fs[i]}:{Fs[i]+3}], v[{WD+4*i}:{WD+4*i+3}], {c}")
    A("s_mov_b32 exec_hi, 0")
    for r in range(4): A(f"v_and_or_b32 v{10+r}, v{10+r}, v52, s{53+r}")
    lstore("L_ys", f"buffer_store_dwordx4 v[10:13], v{TC+24}, s[36:39], s22 offen")
    stamp(9)
    A("s_branch L_end")
    A.label("L_fin")
    A(f"ds_write_b32 v{TC+15}, v20 offset:{L_HL}")
    A(f"v_lshlrev_b32 v49, 1, v{TC+25}")
    A("s_waitcnt lgkmcnt(0)")
    A("s_barrier")
    A(f"ds_read_b32 v50, v49 offset:{L_HL}")
    for r in range(4): A(f"v_mov_b32 v{32+r}, 0")
    gather("L_h3", [[(20 + 4 * j, TC + 24, 22 + j, 0)] for j in range(4)], [-1, -1, -1, 0xffffffff])
    stamp(9)
    sum4x4()
    dpp("v_add_f32", 20, 20, 20, "row_ror:8"); dpp("v_add_f32", 20, 20, 20, "row_ror:4")
    A("s_waitcnt lgkmcnt(0)")
    rbf(20, 20)
    A("v_add_f32 v20, v20, v50")
    rbf(20, 20)
    if diag:
        if diag == 2:
            A("s_cmp_eq_u32 s64, 1"); A("s_cbranch_scc1 L_dg2")
        A.label("L_dg1")
        A("s_memrealtime s[82:83]"); A("s_waitcnt lgkmcnt(0)")
        A("s_sub_u32 s82, s82, s80"); A("s_cmp_lt_u32 s82, 10000"); A("s_cbranch_scc1 L_dg1")
        A.label("L_dg2")
    A("s_mov_b32 exec_lo, 0x000f000f"); A("s_mov_b32 exec_hi, 0x000f000f")
    A(f"buffer_store_short_d16_hi v20, v{TC+25}, s[44:47], 0 offen")
    A("s_cmp_lg_u32 s77, 28"); A("s_cbranch_scc1 L_end")
    A("s_cmp_lg_u32 s3, 0"); A("s_cbranch_scc1 L_end")
    A("s_mov_b64 exec, 1")
    A("v_mov_b32 v21, s52")
    A("buffer_store_dword v21, v3, s[36:39], 0 offen sc1")
    A.label("L_end")
    if prof:
        A("s_waitcnt vmcnt(0)")
        stamp(10)
        A("s_mov_b64 exec, -1")
        A("s_waitcnt lgkmcnt(0)")
        for i in range(11): A(f"v_writelane_b32 v20, s{80+2*i}, {i}")
        A("v_writelane_b32 v20, s64, 11")
        A("s_getreg_b32 s71, hwreg(HW_REG_XCC_ID)"); A("v_writelane_b32 v20, s71, 12")
        A("s_lshl_b32 s71, s2, 3"); A("s_add_u32 s71, s71, s3"); A("s_lshl_b32 s71, s71, 6"); A(f"s_add_u32 s71, s71, {PROF}")
        A("v_lshlrev_b32 v21, 2, v1")
        A("s_mov_b64 exec, 0xffff")
        A("buffer_store_dword v20, v21, s[36:39], s71 offen")
    A.label("L_exit")
    A("s_endpgm")
    body = A.finish()
    nv = max(A.maxv + 1, 136)
    txt = HEADER + f"; @launch grid=(256,1,1) block=(512,1,1) lds={L_END}\n"
    txt += f'.amdgcn_target "amdgcn-amd-amdhsa--gfx950"\n.text\n.globl {KNAME}\n.p2align 8\n.type {KNAME},@function\n{KNAME}:\n'
    txt += body
    txt += f'.section .rodata,"a"\n.p2align 6\n.amdhsa_kernel {KNAME}\n  .amdhsa_next_free_vgpr {nv}\n  .amdhsa_next_free_sgpr 102\n'
    txt += f"  .amdhsa_accum_offset {(nv+3)//4*4}\n  .amdhsa_group_segment_fixed_size 0\n  .amdhsa_kernarg_size 96\n  .amdhsa_user_sgpr_count 2\n"
    txt += "  .amdhsa_user_sgpr_kernarg_segment_ptr 1\n  .amdhsa_system_sgpr_workgroup_id_x 1\n  .amdhsa_float_denorm_mode_32 3\n.end_amdhsa_kernel\n"
    return txt

if __name__ == "__main__":
    import argparse
    p = argparse.ArgumentParser(); p.add_argument("-o"); p.add_argument("kv", nargs="*")
    a = p.parse_args()
    kw = {k: eval(v) for k, v in (x.split("=") for x in a.kv)}
    open(a.o, "w").write(gen(**kw))
```

```python
import sys, struct
sys.path.insert(0, "gen")
from asmlib import Asm

KNAME = "sequential_preLN__gqa_block_cached__glu_gated_bilinear__decode_kernel"
HEADER = open("sequential_preLN__gqa_block_cached__glu_gated_bilinear__decode.s.ref").read().split("; Override launch")[0]

XBUF, QBUF, OBUF, HBUF, YBUF, CBUF, MLBUF, WS_END = 0x800, 0x1000, 0x10000, 0xA8000, 0xB0000, 0xD0000, 0x140000, 0x180000
PROF = 0x100000
L_OM, L_ML, L_MX, L_QF, L_TK, L_ST, L_RED, L_RED2, L_HL, L_TB, L_WD, L_END = 0, 0x4000, 0x4100, 0x4600, 0x4A00, 0x4B00, 0x5000, 0x7000, 0x8000, 0x8800, 0x9000, 0x19000
DPPF = "row_mask:0xf bank_mask:0xf"
SPIN = 1 << 20

def gen(NX=4, prof=False, S0=104, offT=40, offF=24, offQ=12, thr1=24, slp1=4, qslp=4, LA=2, t8=128, t4=48, t1=0, b0=8,
        cstride=4352, kf='nt', vf='nt', wf='', mlsh=7, cut=0, local=True, pretouch=True, tT=0, diag=0):
    A = Asm()
    RA, RX = 56, 88
    WO, WGU, WD = 88, 152, 88
    TC = 216
    OOB = 0x1000000
    D0 = (4096 - 32 * S0 + 8 * offQ + 4 * offT) // 4
    assert offF % 4 == 0
    D1 = D0 - offF // 4
    assert LA + D0 + 64 + 64 <= 512
    def stamp(i):
        if prof: A(f"s_memrealtime s[{80+2*i}:{81+2*i}]")
    def rr4(a, b, c, d):
        A(f"v_permlane32_swap_b32 v{a}, v{b}")
        A(f"v_permlane32_swap_b32 v{c}, v{d}")
        A(f"v_add_f32 v{a}, v{a}, v{b}")
        A(f"v_add_f32 v{c}, v{c}, v{d}")
        A(f"v_permlane16_swap_b32 v{a}, v{c}")
        A(f"v_add_f32 v{a}, v{a}, v{c}")
    def rows_all(x, t, op):
        A(f"v_mov_b32 v{t}, v{x}")
        A(f"v_permlane32_swap_b32 v{x}, v{t}")
        A(f"{op} v{x}, v{x}, v{t}")
        A(f"v_mov_b32 v{t}, v{x}")
        A(f"v_permlane16_swap_b32 v{x}, v{t}")
        A(f"{op} v{x}, v{x}, v{t}")
    def dpp(op, d, s, o, ctl): A(f"{op}_dpp v{d}, v{s}, v{o} {ctl} {DPPF}")
    def quad_all(x, op):
        dpp(op, x, x, x, "quad_perm:[1,0,3,2]"); dpp(op, x, x, x, "quad_perm:[2,3,0,1]")
    def wave_all(x, t, op):
        quad_all(x, op); dpp(op, x, x, x, "row_ror:8"); dpp(op, x, x, x, "row_ror:4"); rows_all(x, t, op)
    def rbf(d, s): A(f"v_cvt_pk_bf16_f32 v{d}, 0, v{s}")
    def ln_fin(mean, var):
        rbf(var, var)
        rbf(mean, mean)
        A(f"v_add_f32 v{var}, 0x37280000, v{var}")
        rbf(var, var)
        A(f"v_sqrt_f32 v{var}, v{var}")
        rbf(var, var)
        A(f"v_rcp_f32 v{var}, v{var}")
    def ln_stats(vals, mean, rinv, t):
        A(f"v_add_f32 v{mean}, v{vals[0]}, v{vals[1]}")
        A(f"v_add_f32 v{t}, v{vals[2]}, v{vals[3]}")
        A(f"v_add_f32 v{rinv}, v{vals[4]}, v{vals[5]}")
        A(f"v_add_f32 v{mean}, v{mean}, v{t}")
        A(f"v_add_f32 v{t}, v{vals[6]}, v{vals[7]}")
        A(f"v_add_f32 v{rinv}, v{rinv}, v{t}")
        A(f"v_add_f32 v{mean}, v{mean}, v{rinv}")
        wave_all(mean, t, "v_add_f32")
        A(f"v_mul_f32 v{mean}, 0x3b000000, v{mean}")
        for v in vals: A(f"v_sub_f32 v{v}, v{v}, v{mean}")
        A(f"v_mul_f32 v{rinv}, v{vals[0]}, v{vals[0]}")
        A(f"v_mul_f32 v{t}, v{vals[1]}, v{vals[1]}")
        for k in range(2, 8, 2):
            A(f"v_fmac_f32 v{rinv}, v{vals[k]}, v{vals[k]}")
            A(f"v_fmac_f32 v{t}, v{vals[k+1]}, v{vals[k+1]}")
        A(f"v_add_f32 v{rinv}, v{rinv}, v{t}")
        wave_all(rinv, t, "v_add_f32")
        A(f"v_mul_f32 v{rinv}, 0x3b000000, v{rinv}")
        ln_fin(mean, rinv)
    def srd(d, lo, hi, n):
        A(f"s_mov_b32 s{d}, s{lo}"); A(f"s_mov_b32 s{d+1}, s{hi}"); A(f"s_mov_b32 s{d+2}, {hex(n)}"); A(f"s_mov_b32 s{d+3}, 0x20000")
    def spin(label, slp=0):
        A("s_sub_u32 s72, s72, 1")
        A("s_cbranch_scc1 L_end")
        if slp: A(f"s_sleep {slp}")
        A(f"s_branch {label}")
    def gather(name, groups, init_masks=None):
        for j in range(len(groups)):
            m = -1 if init_masks is None else init_masks[j]
            if m == -1: A(f"s_mov_b64 s[{4+2*j}:{5+2*j}], -1")
            else: A(f"s_mov_b32 s{4+2*j}, {hex(m & 0xffffffff)}"); A(f"s_mov_b32 s{5+2*j}, {hex(m >> 32)}")
        A.label(f"{name}_rnd")
        for j, g in enumerate(groups):
            A(f"s_mov_b64 exec, s[{4+2*j}:{5+2*j}]")
            A(f"s_cbranch_execz {name}_i{j}")
            for (r, va, so, imm) in g:
                A(f"buffer_load_dwordx4 v[{r}:{r+3}], v{va}, s[36:39], s{so} offen offset:{imm} sc1")
            A.label(f"{name}_i{j}")
        A("s_waitcnt vmcnt(0)")
        for j, g in enumerate(groups):
            A(f"s_mov_b64 exec, s[{4+2*j}:{5+2*j}]")
            A(f"s_cbranch_execz {name}_c{j}")
            regs = [r + k for (r, _, _, _) in g for k in range(4)]
            for k, r in enumerate(regs): A(f"v_xor_b32 v{r}, s{53+(k&3)}, v{r}")
            A(f"v_or3_b32 v55, v{regs[0]}, v{regs[1]}, v{regs[2]}")
            rest = regs[3:]
            while len(rest) >= 2:
                A(f"v_or3_b32 v55, v55, v{rest[0]}, v{rest[1]}"); rest = rest[2:]
            A(f"v_or_b32 v55, v55, v{rest[0]}")
            A("v_and_b32 v55, 0xff, v55")
            A(f"v_cmp_ne_u32 s[{4+2*j}:{5+2*j}], 0, v55")
            A.label(f"{name}_c{j}")
        A("s_or_b64 s[12:13], s[4:5], s[6:7]")
        A("s_or_b64 s[14:15], s[8:9], s[10:11]")
        A("s_mov_b64 exec, -1")
        A("s_or_b64 s[12:13], s[12:13], s[14:15]")
        A(f"s_cbranch_scc0 {name}_ok")
        spin(f"{name}_rnd")
        A.label(f"{name}_ok")
    def lstore(name, text):
        A("s_cmp_eq_u32 s64, 1")
        A(f"s_cbranch_scc1 {name}_l")
        A(text + " sc1")
        A(f"s_branch {name}_j")
        A.label(f"{name}_l")
        A(text)
        A.label(f"{name}_j")
    def issueK(base, so):
        for j in range(4):
            r = base + 4 * j
            A(f"buffer_load_dwordx4 v[{r}:{r+3}], v2, s[28:31], s{so} offen offset:{1024*j} {kf}")
    def issueV(base, so):
        for j in range(4):
            r = base + 16 + 4 * j
            A(f"buffer_load_dwordx4 v[{r}:{r+3}], v3, s[32:35], s{so} offen offset:{1024*j} {vf}")
    def common_setup():
        A("s_mov_b32 s60, 0x22222222"); A("s_mov_b32 s61, 0x22222222")
        A("s_mov_b32 s62, 0x44444444"); A("s_mov_b32 s63, 0x44444444")
        A("s_mov_b32 s64, 0x88888888"); A("s_mov_b32 s65, 0x88888888")
        A("s_mov_b32 s74, 0x3db504f3"); A("s_mov_b32 s75, 0x3fb8aa3b")
        A(f"s_mov_b32 s72, {SPIN}")
        A("v_mov_b32 v44, 0xffff"); A("v_mov_b32 v45, 0xffff0000")
        A("v_mov_b32 v4, 0"); A("v_mov_b32 v5, 0")
        A("v_cmp_eq_u32 vcc, 0, v47")
        A("v_cndmask_b32 v4, v4, v44, vcc")
        A("v_cndmask_b32 v4, v4, v45, s[60:61]")
        A("v_cndmask_b32 v5, v5, v44, s[62:63]")
        A("v_cndmask_b32 v5, v5, v45, s[64:65]")
        for r in range(10, 18): A(f"v_mov_b32 v{r}, 0")
        A("v_mov_b32 v18, 0xff7fffff"); A("v_mov_b32 v19, 0")
    def k32masks(b):
        A("v_bfe_u32 v51, v1, 2, 1"); A("v_cmp_eq_u32 vcc, 0, v51")
        A(f"v_cndmask_b32 v{b}, 0, v4, vcc"); A(f"v_cndmask_b32 v{b+1}, 0, v5, vcc")
        A(f"v_cndmask_b32 v{b+2}, v4, 0, vcc"); A(f"v_cndmask_b32 v{b+3}, v5, 0, vcc")
    def tags():
        A("s_add_u32 s52, s52, 0x9e3779b9")
        A("s_and_b32 s53, s52, 0xff"); A("s_bfe_u32 s54, s52, 0x80008"); A("s_bfe_u32 s55, s52, 0x80010"); A("s_lshr_b32 s56, s52, 24")
        A("s_and_b32 s57, s52, 0xffff"); A("s_lshr_b32 s58, s52, 16")
    def sum4x4():
        A("v_pk_add_f32 v[20:21], v[20:21], v[24:25]"); A("v_pk_add_f32 v[22:23], v[22:23], v[26:27]")
        A("v_pk_add_f32 v[28:29], v[28:29], v[32:33]"); A("v_pk_add_f32 v[30:31], v[30:31], v[34:35]")
        A("v_pk_add_f32 v[20:21], v[20:21], v[28:29]"); A("v_pk_add_f32 v[22:23], v[22:23], v[30:31]")
        rr4(20, 21, 22, 23)
    def sum2x4():
        A("v_pk_add_f32 v[20:21], v[20:21], v[24:25]"); A("v_pk_add_f32 v[22:23], v[22:23], v[26:27]")
        rr4(20, 21, 22, 23)
    uid = [0]
    def chunk(base, refill):
        KB, VB = base, base + 16
        uid[0] += 1; u = uid[0]
        if refill:
            A("s_cmp_ge_u32 s66, s30")
            A("s_cbranch_scc1 L_done")
            A("s_mov_b64 exec, 1")
            A("ds_add_rtn_u32 v54, v52, v53")
            A("s_mov_b64 exec, -1")
            A("s_waitcnt vmcnt(4) lgkmcnt(0)")
            A("v_readfirstlane_b32 s71, v54")
        for j in range(4):
            A(f"v_mfma_f32_16x16x32_bf16 v[{20+4*j}:{23+4*j}], v[{KB+4*j}:{KB+4*j+3}], v[6:9], 0")
        if refill:
            A("s_add_u32 s66, s71, s59")
            A("s_cmp_ge_u32 s71, s70")
            A("s_cbranch_scc1 L_dyn")
            A.label("L_go")
            issueK(base, 66)
        D = lambda j, r: 20 + 4 * (j & 3) + r
        for rho in range(4): A(f"v_cndmask_b32 v{44+rho}, v{D(rho,0)}, v{D(rho+1,1)}, s[60:61]")
        for rho in range(4): A(f"v_cndmask_b32 v{44+rho}, v{44+rho}, v{D(rho+2,2)}, s[62:63]")
        for rho in (1, 2, 3, 0): A(f"v_cndmask_b32 v{44+rho}, v{44+rho}, v{D(rho+3,3)}, s[64:65]")
        for rho in range(1, 4):
            qp = ",".join(str((q - rho) & 3) for q in range(4))
            dpp("v_add_f32", 44, 44 + rho, 44, f"quad_perm:[{qp}]")
        rbf(44, 44)
        A("v_mul_f32 v44, s74, v44")
        rbf(44, 44)
        A("v_mul_f32 v44, s75, v44")
        A("v_cmp_gt_f32 vcc, v44, v18")
        A(f"s_cbranch_vccz L_nors{u}")
        A("v_max_f32 v45, v44, v18")
        quad_all(45, "v_max_f32")
        rows_all(45, 46, "v_max_f32")
        A("v_sub_f32 v46, v18, v45")
        A("v_exp_f32 v46, v46")
        A("v_mov_b32 v18, v45")
        A("v_mul_f32 v19, v19, v46")
        for h in range(4): A(f"v_mov_b32_dpp v47, v46 row_newbcast:{4*h} row_mask:{hex(1<<h)} bank_mask:0xf")
        for r in range(10, 18): A(f"v_mul_f32 v{r}, v{r}, v47")
        A.label(f"L_nors{u}")
        A("v_sub_f32 v44, v44, v18")
        A("v_exp_f32 v44, v44")
        A("v_cvt_pk_bf16_f32 v45, v44, v44")
        A("v_add_f32 v19, v19, v44")
        for j in range(4):
            dpp("v_and_b32", 36 + 2 * j, 45, 4, f"quad_perm:[{j},{j},{j},{j}]")
            dpp("v_and_b32", 37 + 2 * j, 45, 5, f"quad_perm:[{j},{j},{j},{j}]")
        if refill: A("s_waitcnt vmcnt(4)")
        for j in range(4):
            A(f"v_mfma_f32_16x16x16_bf16 v[10:13], v[{36+2*j}:{37+2*j}], v[{VB+4*j}:{VB+4*j+1}], v[10:13]")
            A(f"v_mfma_f32_16x16x16_bf16 v[14:17], v[{36+2*j}:{37+2*j}], v[{VB+4*j+2}:{VB+4*j+3}], v[14:17]")
        if refill: issueV(base, 66)

    A("s_cmp_ge_u32 s2, 256")
    A("s_cbranch_scc1 L_exit")
    A("s_load_dwordx16 s[4:19], s[0:1], 0")
    A("s_load_dwordx8 s[20:27], s[0:1], 64")
    stamp(0)
    if diag: A("s_memrealtime s[80:81]")
    A("v_and_b32 v1, 63, v0")
    A("v_lshrrev_b32 v44, 6, v0")
    A("v_lshlrev_b32 v3, 4, v1")
    A("v_readfirstlane_b32 s3, v44")
    A("v_bfe_u32 v45, v1, 2, 2")
    A("v_lshrrev_b32 v46, 4, v1")
    A("v_and_b32 v47, 3, v1")
    A("v_lshlrev_b32 v2, 8, v45")
    A("v_lshl_add_u32 v2, v46, 6, v2")
    A("v_lshl_add_u32 v2, v47, 4, v2")
    A("s_lshr_b32 s77, s2, 3"); A("s_and_b32 s76, s77, 7"); A("s_and_b32 s73, s2, 7"); A("s_lshr_b32 s78, s2, 6")
    A("s_lshl3_add_u32 s79, s78, s73")
    A("s_cmp_ge_u32 s76, 4"); A(f"s_cselect_b32 s67, {D0-D1}, 0"); A(f"s_sub_u32 s67, {D0}, s67")
    A("s_cmp_eq_u32 s78, 0"); A(f"s_cselect_b32 s70, {offQ}, 0"); A(f"s_cselect_b32 s71, 0, 8"); A(f"s_sub_u32 s70, {S0}, s70")
    A(f"s_mul_i32 s71, s71, {offQ}")
    A(f"s_mul_i32 s59, s78, {8*S0-offT}"); A("s_sub_u32 s59, s59, s71")
    A("s_cmp_ge_u32 s77, 28"); A(f"s_cselect_b32 s68, {offT-offF}, {offT}")
    A("s_mul_i32 s71, s73, s70"); A("s_add_u32 s59, s59, s71")
    A("s_cmp_eq_u32 s73, 0"); A("s_cselect_b32 s71, 0, s68"); A("s_cselect_b32 s68, s68, 0")
    A("s_sub_u32 s59, s59, s71"); A("s_sub_u32 s70, s70, s68"); A(f"s_sub_u32 s70, s70, {LA}")
    A("s_lshl_b32 s59, s59, 12"); A("s_lshl_b32 s70, s70, 12")
    A("s_lshl_b32 s66, s3, 12"); A("s_add_u32 s66, s66, s59")
    A("s_lshl_b32 s71, s76, 24")
    A(f"s_mov_b32 s30, {OOB}"); A("s_mov_b32 s31, 0x20000"); A(f"s_mov_b32 s34, {OOB}"); A("s_mov_b32 s35, 0x20000")
    A("s_cmp_lt_u32 s2, 64")
    A("s_cbranch_scc1 L_qprod")
    A("s_waitcnt lgkmcnt(0)")
    A("s_add_u32 s28, s6, s71"); A("s_addc_u32 s29, s7, 0")
    A("s_add_u32 s32, s8, s71"); A("s_addc_u32 s33, s9, 0")
    A("s_load_dword s52, s[26:27], 0")
    A("s_cmp_eq_u32 s3, 0")
    A("s_cbranch_scc1 L_w0")
    A.label("L_ring")
    issueK(RA, 66); issueV(RA, 66)
    A(f"s_add_u32 s68, s66, {7*4096}")
    for k in range(NX):
        issueK(RX + 32 * k, 68); issueV(RX + 32 * k, 68)
        if k < NX - 1: A(f"s_add_u32 s68, s68, {7*4096}")
    srd(48, 4, 5, 1024)
    srd(36, 26, 27, WS_END)
    common_setup()
    A("s_waitcnt lgkmcnt(0)")
    tags()
    stamp(1)
    A("s_barrier")
    A("s_branch L_qj")
    A.label("L_qprod")
    A("v_lshrrev_b32 v44, 3, v1"); A("v_and_b32 v45, 7, v1")
    A("v_lshlrev_b32 v50, 16, v44")
    A("v_lshl_add_u32 v50, v45, 4, v50")
    A("v_lshlrev_b32 v51, 4, v44")
    A("s_lshl_b32 s68, s2, 7"); A("s_lshl_b32 s73, s3, 19"); A("s_add_u32 s68, s68, s73")
    A("s_lshl_b32 s73, s3, 7")
    A("s_mov_b32 s50, 1024"); A("s_mov_b32 s51, 0x20000"); A(f"s_mov_b32 s42, {4<<20}"); A("s_mov_b32 s43, 0x20000")
    for i in range(1, 8): A(f"v_add_u32 v{35+i}, {8192*i}, v50")
    A("s_waitcnt lgkmcnt(0)")
    A("s_mov_b32 s48, s4"); A("s_mov_b32 s49, s5"); A("s_mov_b32 s40, s10"); A("s_mov_b32 s41, s11")
    A("buffer_load_dwordx4 v[52:55], v3, s[48:51], 0 offen")
    A("buffer_load_dwordx4 v[32:35], v51, s[48:51], s73 offen")
    for i in range(8):
        va = 50 if i == 0 else 35 + i
        A(f"buffer_load_dwordx4 v[{RA+4*i}:{RA+4*i+3}], v{va}, s[40:43], s68 offen {wf}")
    A("s_load_dword s52, s[26:27], 0")
    A("s_add_u32 s28, s6, s71"); A("s_addc_u32 s29, s7, 0")
    A("s_add_u32 s32, s8, s71"); A("s_addc_u32 s33, s9, 0")
    A("s_cmp_lg_u32 s3, 0"); A("s_cbranch_scc1 L_nz")
    A("s_cmp_ge_u32 s79, 4"); A("s_cbranch_scc1 L_nz")
    A("s_lshl3_add_u32 s73, s79, s76")
    A(f"s_mul_i32 s73, s73, {cstride}"); A(f"s_add_u32 s73, s73, {CBUF}")
    A("v_mov_b32 v49, s73"); A("v_mov_b32 v48, 0")
    A("s_mov_b64 exec, 1")
    A("global_store_dword v49, v48, s[26:27] sc1")
    A("s_mov_b64 exec, -1")
    A.label("L_nz")
    A("v_lshrrev_b32 v49, 5, v1"); A("v_and_b32 v44, 1, v46")
    A("v_lshlrev_b32 v48, 8, v49"); A("v_lshl_add_u32 v48, v45, 5, v48"); A("v_lshl_add_u32 v48, v44, 4, v48")
    A("s_lshl_b32 s73, s3, 9"); A("v_add_u32 v48, s73, v48")
    common_setup()
    k32masks(6)
    A("s_waitcnt vmcnt(8)")
    for k in range(4):
        A(f"v_lshlrev_b32 v{36+2*k}, 16, v{52+k}")
        A(f"v_and_b32 v{37+2*k}, 0xffff0000, v{52+k}")
    for k in range(4):
        A(f"v_lshlrev_b32 v{20+2*k}, 16, v{32+k}")
        A(f"v_and_b32 v{21+2*k}, 0xffff0000, v{32+k}")
    ln_stats(list(range(36, 44)), 44, 45, 51)
    for k in range(8): A(f"v_sub_f32 v{20+k}, v{20+k}, v44")
    for k in range(8): rbf(20 + k, 20 + k)
    for k in range(8): A(f"v_mul_f32 v{20+k}, v{20+k}, v45")
    for k in range(8): A(f"v_cvt_pk_bf16_f32 v{20+k}, v{20+k}, v{20+k}")
    for i in range(8):
        for r in range(4): A(f"v_and_b32 v{RX+4*i+r}, v{20+i}, v{6+r}")
    A("s_waitcnt vmcnt(0)")
    for i in range(8):
        c = "0" if i == 0 else "v[28:31]"
        A(f"v_mfma_f32_16x16x32_bf16 v[28:31], v[{RX+4*i}:{RX+4*i+3}], v[{RA+4*i}:{RA+4*i+3}], {c}")
    A("s_mov_b32 exec_lo, 0x00ff00ff"); A("s_mov_b32 exec_hi, 0xff00ff00")
    A(f"ds_write_b128 v48, v[28:31] offset:{L_RED}")
    A("s_mov_b64 exec, -1")
    A("s_waitcnt lgkmcnt(0)")
    A("s_barrier")
    A("s_cmp_lg_u32 s3, 0")
    A("s_cbranch_scc1 L_ring")
    A("s_setprio 3")
    A("v_and_b32 v50, 15, v1"); A("v_lshlrev_b32 v49, 10, v46"); A("v_lshl_add_u32 v49, v50, 4, v49")
    for k in range(4): A(f"ds_read_b128 v[{20+4*k}:{23+4*k}], v49 offset:{L_RED+256*k}")
    srd(36, 26, 27, WS_END)
    tags()
    A("v_and_b32 v45, 1, v46"); A("v_lshlrev_b32 v45, 1, v45"); A("v_lshrrev_b32 v44, 1, v46"); A("v_or_b32 v45, v45, v44")
    A("v_lshl_add_u32 v45, v50, 2, v45"); A("v_lshlrev_b32 v45, 2, v45")
    A("v_mov_b32 v49, s57"); A("v_mov_b32 v51, s58")
    A("v_cmp_eq_u32 vcc, 0, v44")
    A("v_cndmask_b32 v49, v51, v49, vcc")
    A("s_lshl_b32 s71, s2, 8"); A(f"s_add_u32 s71, s71, {QBUF}")
    A("s_waitcnt lgkmcnt(0)")
    sum4x4()
    rbf(20, 20)
    A("v_or_b32 v20, v20, v49")
    A("buffer_store_dword v20, v45, s[36:39], s71 offen sc1")
    stamp(2)
    A("s_branch L_w0b")
    A.label("L_w0")
    A("s_setprio 3")
    srd(48, 4, 5, 1024)
    srd(36, 26, 27, WS_END)
    common_setup()
    A("s_waitcnt lgkmcnt(0)")
    tags()
    A.label("L_w0b")
    A(f"v_mov_b32 v52, {L_TK}"); A(f"v_mov_b32 v48, {(8+7*NX)*4096}")
    A("ds_write_b32 v52, v48")
    for r in range(4): A(f"v_mov_b32 v{24+r}, -1")
    A(f"ds_write_b128 v3, v[24:27] offset:{L_TB}")
    A(f"ds_write_b128 v3, v[24:27] offset:{L_TB+1024}")
    A("s_add_u32 s73, s59, s70")
    A("v_lshlrev_b32 v28, 12, v1"); A("v_add_u32 v28, s73, v28"); A("v_lshlrev_b32 v29, 2, v1")
    A("v_cmp_eq_u32 vcc, 0, v1"); A("v_addc_co_u32 v28, vcc, 0, v28, vcc")
    A(f"s_mov_b64 exec, {(1 << LA) - 1}")
    A(f"ds_write_b32 v29, v28 offset:{L_TB}")
    A("s_mov_b64 exec, -1")
    A("v_lshlrev_b32 v44, 1, v2")
    A("s_lshl_b32 s71, s76, 11"); A(f"s_add_u32 s71, s71, {QBUF}")
    A("s_add_u32 s14, s26, s71"); A("s_addc_u32 s15, s27, 0")
    A.label("L_qhint")
    for k in range(8): A(f"s_load_dword s{40+k}, s[14:15], {256*k} glc")
    A("s_waitcnt lgkmcnt(0)")
    for k in range(8): A(f"s_xor_b32 s{40+k}, s{40+k}, s57")
    for k in range(1, 8): A(f"s_or_b32 s40, s40, s{40+k}")
    A("s_and_b32 s40, s40, 0xffff")
    A("s_cbranch_scc0 L_qpoll")
    spin("L_qhint", qslp)
    A.label("L_qpoll")
    A("buffer_load_dwordx4 v[20:23], v44, s[36:39], s71 offen sc1")
    A("buffer_load_dwordx4 v[24:27], v44, s[36:39], s71 offen offset:16 sc1")
    A("s_mov_b32 s73, 0x07060302")
    A("s_waitcnt vmcnt(0)")
    for e in range(8): A(f"v_xor_b32 v{20+e}, s{57+(e&1)}, v{20+e}")
    A("v_or3_b32 v45, v20, v21, v22"); A("v_or3_b32 v45, v45, v23, v24"); A("v_or3_b32 v45, v45, v25, v26"); A("v_or_b32 v45, v45, v27")
    A("v_and_b32 v45, 0xffff, v45")
    A("v_cmp_ne_u32 vcc, 0, v45")
    A("s_cbranch_vccz L_q_ok")
    spin("L_qpoll")
    A.label("L_q_ok")
    for k in range(4): A(f"v_perm_b32 v{6+k}, v{21+2*k}, v{20+2*k}, s73")
    A(f"ds_write_b128 v3, v[6:9] offset:{L_QF}")
    A("s_waitcnt lgkmcnt(0)")
    stamp(1)
    A("s_barrier")
    issueK(RA, 66); issueV(RA, 66)
    A("s_setprio 0")
    A.label("L_qj")
    A(f"ds_read_b128 v[6:9], v3 offset:{L_QF}")
    A(f"v_mov_b32 v52, {L_TK}"); A("v_mov_b32 v53, 4096")
    A("s_mov_b32 s69, 3")
    A(f"s_mul_i32 s58, s77, {cstride}"); A(f"s_add_u32 s58, s58, {CBUF}")
    A("s_sub_u32 s57, 4, s78"); A("s_mul_i32 s57, s57, s67"); A("s_sub_u32 s57, 4096, s57"); A("s_lshl_b32 s57, s57, 12")
    stamp(3)
    A.label("L_loop")
    chunk(RA, True)
    A("s_cmp_lg_u32 s69, 3")
    A("s_cbranch_scc1 L_loop")
    A("s_mov_b32 s69, 0")
    A("s_cmp_eq_u32 s3, 0")
    A("s_cbranch_scc1 L_setup")
    A("s_waitcnt vmcnt(8)")
    for k in range(NX): chunk(RX + 32 * k, False)
    A.label("L_setup")
    A("v_lshrrev_b32 v46, 4, v1"); A("v_and_b32 v47, 3, v1"); A("v_bfe_u32 v45, v1, 2, 2"); A("v_and_b32 v50, 15, v1")
    A("v_and_b32 v48, 1, v46"); A("v_lshlrev_b32 v48, 1, v48"); A("v_lshrrev_b32 v49, 1, v46"); A("v_or_b32 v48, v48, v49")
    A("s_lshl_b32 s71, s3, 11"); A(f"v_lshlrev_b32 v{TC}, 5, v1"); A(f"v_add_u32 v{TC}, s71, v{TC}")
    A("s_lshl_b32 s71, s3, 3"); A(f"v_lshlrev_b32 v{TC+1}, 6, v45"); A(f"v_add_u32 v{TC+1}, s71, v{TC+1}")
    A(f"v_lshrrev_b32 v{TC+2}, 1, v{TC+1}")
    A("s_lshl_b32 s71, s3, 8"); A(f"v_lshlrev_b32 v{TC+3}, 12, v46"); A(f"v_lshl_add_u32 v{TC+3}, v50, 4, v{TC+3}"); A(f"v_add_u32 v{TC+3}, s71, v{TC+3}")
    A("s_lshr_b32 s71, s3, 1"); A("s_lshl_b32 s73, s71, 6"); A(f"v_lshlrev_b32 v{TC+4}, 4, v46"); A(f"v_add_u32 v{TC+4}, s73, v{TC+4}")
    A("s_lshl_b32 s73, s71, 5"); A(f"v_mov_b32 v{TC+5}, s73")
    A(f"v_lshl_add_u32 v{TC+6}, v50, 2, v48"); A(f"v_lshlrev_b32 v{TC+6}, 2, v{TC+6}")
    A(f"v_lshlrev_b32 v{TC+7}, 3, v48"); A(f"v_lshrrev_b32 v{TC+7}, v{TC+7}, s52"); A(f"v_and_b32 v{TC+7}, 0xff, v{TC+7}")
    A("s_lshl_b32 s71, s76, 1"); A("s_lshr_b32 s73, s3, 2"); A("s_add_u32 s71, s71, s73")
    A("s_lshl_b32 s0, s71, 15"); A("s_lshl_b32 s73, s79, 10"); A("s_add_u32 s0, s0, s73")
    A("s_and_b32 s73, s3, 3"); A("s_lshl_b32 s73, s73, 8"); A("s_add_u32 s0, s0, s73"); A(f"s_add_u32 s0, s0, {OBUF}")
    A(f"s_lshl_b32 s1, s71, {6+mlsh}"); A("s_bfe_u32 s73, s3, 0x10001"); A(f"s_lshl_b32 s73, s73, {5+mlsh}"); A("s_add_u32 s1, s1, s73")
    A(f"s_lshl_b32 s73, s79, {mlsh}"); A("s_add_u32 s1, s1, s73"); A(f"s_add_u32 s1, s1, {MLBUF}")
    A("s_and_b32 s71, s2, 7")
    A("s_cbranch_scc1 L_loop")
    A("s_mov_b32 s69, 2")
    A("s_getreg_b32 s78, hwreg(HW_REG_XCC_ID, 0, 4)"); A("s_lshl_b32 s78, s78, 8")
    A("s_cmp_lg_u32 s3, 0"); A("s_cbranch_scc1 L_nox")
    A("s_or_b32 s71, s78, s53")
    A("v_mov_b32 v20, s71"); A("v_mov_b32 v21, s54"); A("v_mov_b32 v22, s55"); A("v_mov_b32 v23, s56")
    if diag == 3:
        A("s_lshl_b32 s71, s80, 8"); A("s_or_b32 s71, s71, s54"); A("v_mov_b32 v21, s71")
    A("s_lshl_b32 s71, s77, 4"); A(f"s_add_u32 s71, s71, {XBUF}")
    A("s_mov_b64 exec, 1")
    A("buffer_store_dwordx4 v[20:23], v3, s[36:39], s71 offen sc1")
    A("s_mov_b64 exec, -1")
    A.label("L_nox")
    srd(40, 12, 13, 4 << 20)
    A("s_lshr_b32 s68, s77, 1")
    A("s_lshl_b32 s71, s68, 18"); A("s_lshl_b32 s73, s3, 15"); A("s_add_u32 s71, s71, s73")
    A("s_and_b32 s73, s77, 1"); A("s_lshl_b32 s73, s73, 9"); A("s_add_u32 s71, s71, s73")
    A("v_lshlrev_b32 v44, 4, v50"); A("v_lshl_add_u32 v44, v48, 10, v44")
    for i in range(8):
        for c2 in range(2):
            r = WO + 4 * (2 * i + c2)
            A(f"buffer_load_dwordx4 v[{r}:{r+3}], v44, s[40:43], s71 offen offset:{256*c2} {wf}")
        if i < 7: A("s_add_u32 s71, s71, 4096")
    A(f"v_lshrrev_b32 v51, 1, v{TC+6}"); A("s_lshl_b32 s71, s3, 7")
    A(f"buffer_load_ushort v{TC+13}, v51, s[48:51], s71 offen")
    k32masks(TC + 16)
    A("v_lshrrev_b32 v49, 3, v1"); A("v_and_b32 v51, 7, v1"); A("v_and_b32 v45, 1, v46")
    A(f"v_lshlrev_b32 v{TC+8}, 10, v49"); A(f"v_lshl_add_u32 v{TC+8}, v51, 4, v{TC+8}")
    A(f"v_lshlrev_b32 v{TC+9}, {mlsh}, v49"); A(f"v_lshlrev_b32 v{TC+10}, {mlsh}, v1")
    A(f"v_lshlrev_b32 v{TC+24}, 4, v45"); A(f"v_lshl_add_u32 v{TC+24}, v50, 5, v{TC+24}")
    A("s_lshl_b32 s71, s3, 10"); A(f"v_add_u32 v{TC+11}, s71, v{TC+24}")
    A("s_lshl_b32 s71, s3, 9"); A(f"v_add_u32 v{TC+22}, s71, v{TC+24}")
    A(f"v_lshlrev_b32 v{TC+14}, 11, v46"); A(f"v_lshl_add_u32 v{TC+14}, v50, 4, v{TC+14}")
    A("s_and_b32 s71, s3, 3"); A("s_lshl_b32 s71, s71, 8"); A(f"v_add_u32 v{TC+12}, s71, v{TC+14}")
    A("s_lshl_b32 s71, s3, 8"); A(f"v_add_u32 v{TC+15}, s71, v{TC+6}")
    A("s_lshl_b32 s71, s3, 4"); A(f"v_mov_b32 v{TC+20}, s71"); A(f"v_lshlrev_b32 v{TC+21}, 4, v51")
    A("v_bfe_u32 v49, v1, 3, 1")
    A(f"v_lshlrev_b32 v{TC+23}, 10, v46"); A(f"v_lshl_add_u32 v{TC+23}, v49, 8, v{TC+23}"); A(f"v_lshl_add_u32 v{TC+23}, v51, 4, v{TC+23}")
    A("s_lshr_b32 s71, s3, 2"); A("s_lshl_b32 s71, s71, 7"); A(f"v_add_u32 v{TC+23}, s71, v{TC+23}")
    A("s_lshl_b32 s71, s3, 13"); A(f"s_add_u32 s71, s71, {L_WD}"); A(f"v_add_u32 v{TC+26}, s71, v3")
    A("s_mov_b32 m0, s71")
    srd(44, 22, 23, 1024)
    A("s_cmp_ge_u32 s77, 28")
    A("s_cbranch_scc1 L_sufin")
    A("s_mov_b32 s69, 1")
    A("s_lshl_b32 s71, s3, 6"); A("v_add_u32 v45, s71, v48")
    A("v_mul_u32_u24 v45, 3584, v45"); A("v_lshl_add_u32 v45, v51, 4, v45"); A("s_lshl_b32 s71, s77, 7"); A("v_add_u32 v45, s71, v45")
    A("v_cmp_eq_u32 vcc, 0, v49")
    A("v_mov_b32 v20, s16"); A("v_mov_b32 v21, s18"); A("v_cndmask_b32 v20, v21, v20, vcc")
    A("v_mov_b32 v21, s17"); A("v_mov_b32 v22, s19"); A("v_cndmask_b32 v21, v22, v21, vcc")
    A("v_add_co_u32 v20, vcc, v20, v45"); A("v_addc_co_u32 v21, vcc, 0, v21, vcc")
    for i in range(16):
        A(f"global_load_dwordx4 v[{WGU+4*i}:{WGU+4*i+3}], v[20:21], off {wf}")
        if i < 15: A(f"v_add_co_u32 v20, vcc, {4*3584}, v20"); A("v_addc_co_u32 v21, vcc, 0, v21, vcc")
    srd(40, 20, 21, 1792 * 1024)
    A("s_lshl_b32 s71, s77, 16"); A("s_lshr_b32 s73, s3, 2"); A("s_lshl_b32 s73, s73, 15"); A("s_add_u32 s71, s71, s73")
    A("s_and_b32 s73, s3, 3"); A("s_lshl_b32 s73, s73, 8"); A("s_add_u32 s71, s71, s73")
    for i in range(8):
        A(f"buffer_load_dwordx4 v44, s[40:43], s71 offen {wf} lds")
        if i < 7: A("s_add_u32 s71, s71, 4096"); A("s_add_u32 m0, m0, 1024")
    A("s_lshl_b32 s22, s77, 12"); A("s_lshl_b32 s73, s3, 9"); A("s_add_u32 s22, s22, s73"); A(f"s_add_u32 s22, s22, {YBUF}")
    A("s_branch L_suj")
    A.label("L_sufin")
    A("s_sub_u32 s71, s77, 28"); A("s_lshl3_add_u32 s71, s71, s3")
    A(f"v_lshrrev_b32 v{TC+24}, 2, v1"); A(f"v_lshlrev_b32 v{TC+24}, 11, v{TC+24}"); A(f"v_lshl_add_u32 v{TC+24}, v47, 4, v{TC+24}")
    A(f"v_lshl_add_u32 v{TC+25}, v47, 2, v48"); A("s_lshl_b32 s73, s71, 4"); A(f"v_add_u32 v{TC+25}, s73, v{TC+25}"); A(f"v_lshlrev_b32 v{TC+25}, 1, v{TC+25}")
    A("s_lshl_b32 s22, s71, 6"); A(f"s_add_u32 s22, s22, {YBUF}")
    A("s_add_u32 s23, s22, 32768"); A("s_add_u32 s24, s22, 65536"); A("s_add_u32 s25, s22, 98304")
    A.label("L_suj")
    A("s_lshl_b32 s16, s68, 15"); A("s_lshl_b32 s71, s3, 7"); A("s_add_u32 s16, s16, s71"); A(f"s_add_u32 s16, s16, {OBUF}")
    A("s_add_u32 s17, s16, 8192"); A("s_add_u32 s18, s16, 16384"); A("s_add_u32 s19, s16, 24576")
    A(f"s_lshl_b32 s20, s68, {6+mlsh}"); A("s_lshr_b32 s71, s3, 2"); A(f"s_lshl_b32 s71, s71, {5+mlsh}"); A("s_add_u32 s20, s20, s71"); A(f"s_add_u32 s20, s20, {MLBUF}")
    A("s_lshl_b32 s21, s77, 10"); A("s_lshl_b32 s73, s3, 8"); A("s_add_u32 s21, s21, s73"); A(f"s_add_u32 s21, s21, {HBUF}")
    A("s_branch L_loop")

    A.label("L_dyn")
    A("s_sub_u32 s73, s71, s70"); A("s_lshr_b32 s73, s73, 10")
    A("v_mov_b32 v48, s73")
    A.label("L_dynw")
    A(f"ds_read_b32 v49, v48 offset:{L_TB}")
    A("s_waitcnt lgkmcnt(0)")
    A("v_readfirstlane_b32 s66, v49")
    A("s_cmp_lg_u32 s66, -1")
    A("s_cbranch_scc1 L_dyng")
    spin("L_dynw")
    A.label("L_dyng")
    if t1:
        A("s_cmp_eq_u32 s66, 2")
        A("s_cbranch_scc1 L_self")
    A("s_bitcmp1_b32 s66, 0")
    A("s_cbranch_scc0 L_go")
    A("s_and_b32 s66, s66, -2")
    A("s_max_u32 s71, s66, s57"); A("s_sub_u32 s71, s71, s57"); A("s_lshr_b32 s71, s71, 12"); A("s_sub_u32 s71, s67, s71")
    if tT:
        A("s_and_b32 s14, s2, 7"); A(f"s_cselect_b32 s14, 0, {tT}")
        A("s_cmp_gt_u32 s71, s14")
        A("s_cbranch_scc1 L_dynt")
        A("v_lshl_add_u32 v48, v1, 2, v48")
        A("v_mov_b32 v51, s30")
        A(f"ds_write_b32 v48, v51 offset:{L_TB+4*LA}")
        A("s_branch L_go")
        A.label("L_dynt")
    A(f"s_cmp_gt_u32 s71, {t4}"); A("s_cselect_b32 s15, 4, 2")
    A(f"s_cmp_gt_u32 s71, {t8}"); A(f"s_cselect_b32 s15, {b0}, s15")
    A("s_mov_b32 s14, s15")
    A("s_atomic_add s14, s[26:27], s58 glc")
    A("v_lshl_add_u32 v48, v1, 2, v48")
    A(f"s_sub_u32 s73, s15, {LA}")
    A("s_waitcnt lgkmcnt(0)")
    A("v_add_u32 v49, s14, v1")
    A("v_lshlrev_b32 v50, 12, v49"); A("v_add_u32 v50, s57, v50")
    A("s_add_u32 s14, s14, s15")
    A("s_cmp_ge_u32 s14, s67")
    A("s_cbranch_scc1 L_dynx")
    if t1:
        A(f"s_add_u32 s14, s14, {t1}")
        A("s_cmp_ge_u32 s14, s67")
        A("s_cbranch_scc1 L_dyns")
    A("v_cmp_eq_u32 vcc, s73, v1"); A("v_addc_co_u32 v50, vcc, 0, v50, vcc")
    A("v_cmp_gt_u32 vcc, s15, v1")
    A("s_mov_b64 exec, vcc")
    A(f"ds_write_b32 v48, v50 offset:{L_TB+4*LA}")
    A("s_mov_b64 exec, -1")
    A("s_branch L_go")
    A.label("L_dynx")
    A("v_mov_b32 v51, s30")
    A("v_cmp_gt_u32 vcc, s67, v49")
    A("v_cndmask_b32 v50, v51, v50, vcc")
    A(f"ds_write_b32 v48, v50 offset:{L_TB+4*LA}")
    A("s_branch L_go")
    if t1:
        A.label("L_dyns")
        A("v_cmp_gt_u32 vcc, s15, v1")
        A("v_cndmask_b32 v50, 2, v50, vcc")
        A(f"ds_write_b32 v48, v50 offset:{L_TB+4*LA}")
        A("s_branch L_go")
        A.label("L_self")
        A("s_mov_b32 s14, 1")
        A("s_atomic_add s14, s[26:27], s58 glc")
        A("v_lshl_add_u32 v48, v1, 2, v48")
        A("v_mov_b32 v51, s30")
        A("s_waitcnt lgkmcnt(0)")
        A("s_lshl_b32 s66, s14, 12"); A("s_add_u32 s66, s66, s57")
        A("s_cmp_lt_u32 s14, s67")
        A("s_cbranch_scc1 L_go")
        A("s_mov_b32 s66, s30")
        A(f"ds_write_b32 v48, v51 offset:{L_TB+4}")
        A("s_branch L_go")

    A.label("L_done")
    A("s_cmp_eq_u32 s69, 3")
    A("s_cbranch_scc1 L_end")
    stamp(4)
    if cut == 1: A("s_branch L_end")
    quad_all(19, "v_add_f32")
    A(f"ds_write_b32 v{TC+2}, v18 offset:{L_MX}")
    rows_all(19, 49, "v_add_f32")
    A(f"ds_write_b128 v{TC}, v[10:13] offset:{L_OM}")
    A(f"ds_write_b128 v{TC}, v[14:17] offset:{L_OM+16}")
    A(f"ds_write_b64 v{TC+1}, v[18:19] offset:{L_ML}")
    A("s_mov_b32 s73, 0xffffff00")
    A("s_lshl_b32 s60, s3, 8"); A(f"s_add_u32 s60, s60, {HBUF}")
    A("s_add_u32 s61, s60, 8192"); A("s_add_u32 s62, s60, 16384"); A("s_add_u32 s63, s60, 24576")
    A("s_cmp_eq_u32 s69, 0")
    A("s_cbranch_scc1 L_nopt")
    A("v_and_b32 v54, 0x1f0, v3")
    A(f"buffer_load_dwordx4 v[40:43], v54, s[36:39], 0 offen offset:{XBUF} sc1")
    if pretouch:
        A("s_lshl_b32 s71, s3, 5"); A("s_add_u32 s71, s71, s77")
        A("s_cmp_ge_u32 s71, 144")
        A("s_cbranch_scc1 L_nopt")
        A("s_lshl_b32 s71, s71, 10"); A(f"s_add_u32 s71, s71, {HBUF}")
        A("buffer_load_dwordx4 v[44:47], v3, s[36:39], s71 offen sc1")
    A.label("L_nopt")
    A("s_waitcnt lgkmcnt(0)")
    A("s_barrier")
    stamp(5)
    A(f"ds_read_b128 v[20:23], v{TC+5} offset:{L_MX}")
    A(f"ds_read_b128 v[24:27], v{TC+5} offset:{L_MX+16}")
    A(f"ds_read_b128 v[28:31], v{TC+4} offset:{L_ML}")
    A(f"ds_read_b128 v[10:13], v{TC+3} offset:{L_OM}")
    A(f"ds_read_b128 v[14:17], v{TC+3} offset:{L_OM+2048}")
    A("v_mov_b32 v38, s55"); A("v_mov_b32 v39, s56")
    A("s_waitcnt lgkmcnt(3)")
    A("v_max3_f32 v36, v20, v21, v22"); A("v_max3_f32 v37, v23, v24, v25"); A("v_max3_f32 v36, v36, v26, v27"); A("v_max_f32 v36, v36, v37")
    A("v_and_b32 v36, s73, v36")
    A("s_waitcnt lgkmcnt(2)")
    A("v_sub_f32 v28, v28, v36"); A("v_sub_f32 v30, v30, v36")
    A("v_exp_f32 v28, v28"); A("v_exp_f32 v30, v30")
    A("v_or_b32 v36, s53, v36")
    A("s_waitcnt lgkmcnt(0)")
    for r in range(4): A(f"v_mul_f32 v{10+r}, v{10+r}, v28")
    for r in range(4): A(f"v_fmac_f32 v{10+r}, v{14+r}, v30")
    A("v_mul_f32 v37, v28, v29")
    A("v_fmac_f32 v37, v30, v31")
    rr4(10, 11, 12, 13)
    A(f"v_and_or_b32 v10, v10, s73, v{TC+7}")
    A(f"buffer_store_dword v10, v{TC+6}, s[36:39], s0 offen sc1")
    A("s_bitcmp1_b32 s3, 0")
    A("s_cbranch_scc1 L_mj")
    rows_all(37, 49, "v_add_f32")
    A("v_and_b32 v37, s73, v37"); A("v_or_b32 v37, s54, v37")
    A("s_mov_b64 exec, 1")
    A("buffer_store_dwordx4 v[36:39], v3, s[36:39], s1 offen sc1")
    A("s_mov_b64 exec, -1")
    A.label("L_mj")
    stamp(6)
    A("s_cmp_eq_u32 s69, 0")
    A("s_cbranch_scc1 L_end")
    OB, MB = RA, RA + 16
    A("s_mov_b32 exec_hi, 0")
    A.label("L_h1pre")
    A(f"buffer_load_dword v53, v{TC+10}, s[36:39], s20 offen offset:12 sc1")
    A("s_waitcnt vmcnt(0)")
    A("v_cmp_eq_u32 vcc, s56, v53")
    A("s_bcnt1_i32_b64 s71, vcc")
    A(f"s_cmp_ge_u32 s71, {thr1}")
    A("s_cbranch_scc1 L_h1go")
    spin("L_h1pre", slp1)
    A.label("L_h1go")
    A("s_mov_b64 exec, -1")
    A.label("L_xchk")
    for k in range(4): A(f"v_xor_b32 v{40+k}, s{53+k}, v{40+k}")
    A("v_or3_b32 v55, v41, v42, v43"); A("v_and_or_b32 v55, v40, 0xff, v55") if False else None
    A("v_and_b32 v53, 0xff, v40"); A("v_or_b32 v55, v55, v53")
    if diag == 3:
        A("v_and_b32 v55, 0xff, v55"); A("v_readfirstlane_b32 s84, v41")
    A("v_cmp_ne_u32 vcc, 0, v55")
    A("s_cbranch_vccz L_xok")
    A(f"buffer_load_dwordx4 v[40:43], v54, s[36:39], 0 offen offset:{XBUF} sc1")
    A("s_waitcnt vmcnt(0)")
    spin("L_xchk")
    A.label("L_xok")
    A("v_cmp_ne_u32 vcc, s78, v40")
    A("s_mov_b32 s64, 0")
    if local:
        A("s_cbranch_vccnz L_xg")
        A("s_mov_b32 s64, 1")
        A.label("L_xg")
    A(f"v_lshlrev_b32 v{TC+13}, 16, v{TC+13}")
    gather("L_h1", [[(MB + 4 * j, TC + 9, 20, (8 << mlsh) * j), (OB + 4 * j, TC + 8, 16 + j, 0)] for j in range(4)])
    stamp(7)
    A(f"v_max3_f32 v20, v{MB}, v{MB+4}, v{MB+8}"); A(f"v_max_f32 v20, v20, v{MB+12}")
    dpp("v_max_f32", 20, 20, 20, "row_ror:8")
    rows_all(20, 21, "v_max_f32")
    for j in range(4): A(f"v_sub_f32 v{MB+4*j}, v{MB+4*j}, v20")
    for j in range(4): A(f"v_exp_f32 v{MB+4*j}, v{MB+4*j}")
    A(f"v_mul_f32 v21, v{MB}, v{MB+1}")
    for j in range(1, 4): A(f"v_fmac_f32 v21, v{MB+4*j}, v{MB+4*j+1}")
    for r in range(4): A(f"v_mul_f32 v{24+r}, v{OB+r}, v{MB}")
    dpp("v_add_f32", 21, 21, 21, "row_ror:8")
    for r in range(4): A(f"v_fmac_f32 v{24+r}, v{OB+4+r}, v{MB+4}")
    A("v_mov_b32 v22, v21")
    for r in range(2): A(f"v_fmac_f32 v{24+r}, v{OB+8+r}, v{MB+8}")
    A("v_permlane32_swap_b32 v21, v22")
    for r in range(2, 4): A(f"v_fmac_f32 v{24+r}, v{OB+8+r}, v{MB+8}")
    A("v_add_f32 v21, v21, v22")
    A("v_mov_b32 v22, v21")
    for r in range(4): A(f"v_fmac_f32 v{24+r}, v{OB+12+r}, v{MB+12}")
    A("v_permlane16_swap_b32 v21, v22")
    A("v_add_f32 v21, v21, v22")
    A("v_permlane32_swap_b32 v24, v25")
    A("v_permlane32_swap_b32 v26, v27")
    A("v_add_f32 v24, v24, v25")
    A("v_add_f32 v26, v26, v27")
    A("v_rcp_f32 v21, v21")
    A("v_permlane16_swap_b32 v24, v26")
    A("v_add_f32 v24, v24, v26")
    dpp("v_add_f32", 24, 24, 24, "row_ror:8")
    A("v_mul_f32 v20, v24, v21")
    A("v_cvt_pk_bf16_f32 v20, v20, v20")
    def frag(i, src):
        F = 24 + 4 * (i % 3)
        for r in range(4): dpp("v_and_b32", F + r, src, TC + 16 + r, f"row_newbcast:{i}")
        return F
    Fs = {0: frag(0, 20)}
    for i in range(8):
        if i < 7: Fs[i + 1] = frag(i + 1, 20)
        for c2 in range(2):
            acc = 10 + 4 * c2; c = "0" if i == 0 else f"v[{acc}:{acc+3}]"; b = WO + 4 * (2 * i + c2)
            A(f"v_mfma_f32_16x16x32_bf16 v[{acc}:{acc+3}], v[{Fs[i]}:{Fs[i]+3}], v[{b}:{b+3}], {c}")
    A("s_mov_b32 exec_hi, 0")
    A(f"ds_write_b128 v{TC+11}, v[10:13] offset:{L_RED}")
    A(f"ds_write_b128 v{TC+11}, v[14:17] offset:{L_RED+512}")
    A("s_mov_b64 exec, -1")
    A("s_waitcnt lgkmcnt(0)")
    A("s_barrier")
    A("s_cmp_ge_u32 s3, 4")
    A("s_cbranch_scc1 L_h2")
    A(f"ds_read_b128 v[20:23], v{TC+12} offset:{L_RED}")
    A(f"ds_read_b128 v[24:27], v{TC+12} offset:{L_RED+1024}")
    A("s_waitcnt lgkmcnt(0)")
    sum2x4()
    A(f"v_and_or_b32 v36, v20, s73, v{TC+7}")
    lstore("L_hs", f"buffer_store_dword v36, v{TC+6}, s[36:39], s21 offen")
    stamp(8)
    A.label("L_h2")
    for i in range(8): A(f"ds_read_b128 v[{WD+4*i}:{WD+4*i+3}], v{TC+26} offset:{1024*i}")
    gather("L_h2", [[(20 + 4 * j, TC + 14, 60 + j, 0)] for j in range(4)])
    stamp(2)
    sum4x4()
    rbf(20, 20)
    A(f"v_add_f32 v20, v20, v{TC+13}")
    rbf(20, 20)
    A("s_cmp_eq_u32 s69, 2")
    A("s_cbranch_scc1 L_fin")
    A("v_readfirstlane_b32 s71, v20")
    A("v_subrev_f32 v25, s71, v20")
    A("v_mov_b32 v24, s71")
    A("v_mul_f32 v26, v25, v25")
    for ctl in ("quad_perm:[1,0,3,2]", "quad_perm:[2,3,0,1]", "row_ror:8", "row_ror:4"):
        dpp("v_add_f32", 25, 25, 25, ctl); dpp("v_add_f32", 26, 26, 26, ctl)
    A("v_permlane32_swap_b32 v25, v26")
    A("v_add_f32 v25, v25, v26")
    A("v_mov_b32 v26, v25")
    A("v_permlane16_swap_b32 v25, v26")
    A("v_add_f32 v25, v25, v26")
    A("s_mov_b64 exec, 1")
    A(f"ds_write_b64 v{TC+20}, v[24:25] offset:{L_ST}")
    A("s_mov_b32 exec_lo, 0"); A("s_mov_b32 exec_hi, 1")
    A(f"ds_write_b32 v{TC+20}, v25 offset:{L_ST+8}")
    A("s_mov_b64 exec, -1")
    A("s_waitcnt lgkmcnt(0)")
    A("s_barrier")
    A(f"ds_read_b128 v[24:27], v{TC+21} offset:{L_ST}")
    A("s_waitcnt lgkmcnt(0)")
    A("v_readfirstlane_b32 s71, v24")
    A("v_subrev_f32 v24, s71, v24")
    A("v_mul_f32 v27, 0x42800000, v24")
    A("v_add_f32 v28, v25, v27")
    A("v_add_f32 v25, v25, v28")
    A("v_fmac_f32 v26, v24, v25")
    for ctl in ("quad_perm:[1,0,3,2]", "quad_perm:[2,3,0,1]", "row_half_mirror"):
        dpp("v_add_f32", 28, 28, 28, ctl); dpp("v_add_f32", 26, 26, 26, ctl)
    A("v_mul_f32 v28, 0x3b000000, v28")
    A("v_mul_f32 v26, 0x3b000000, v26")
    A("v_fma_f32 v26, -v28, v28, v26")
    A("v_add_f32 v28, s71, v28")
    A("v_max_f32 v26, 0, v26")
    ln_fin(28, 26)
    A("v_sub_f32 v20, v20, v28")
    rbf(20, 20)
    A("v_mul_f32 v20, v20, v26")
    A("v_cvt_pk_bf16_f32 v20, v20, v20")
    Fs = {0: frag(0, 20)}
    for i in range(16):
        if i < 15: Fs[i + 1] = frag(i + 1, 20)
        c = "0" if i == 0 else "v[10:13]"
        A(f"v_mfma_f32_16x16x32_bf16 v[10:13], v[{Fs[i]}:{Fs[i]+3}], v[{WGU+4*i}:{WGU+4*i+3}], {c}")
    A("s_mov_b32 exec_hi, 0")
    A(f"ds_write_b128 v{TC+22}, v[10:13] offset:{L_RED2}")
    A("s_mov_b64 exec, -1")
    A("s_waitcnt lgkmcnt(0)")
    A("s_barrier")
    stamp(3)
    A(f"ds_read_b128 v[20:23], v{TC+23} offset:{L_RED2}")
    A(f"ds_read_b128 v[24:27], v{TC+23} offset:{L_RED2+512}")
    A("v_mov_b32 v52, s73")
    A("s_waitcnt lgkmcnt(0)")
    sum2x4()
    rbf(20, 20)
    dpp("v_mul_f32", 21, 20, 20, "row_ror:8")
    A("v_cvt_pk_bf16_f32 v21, v21, v21")
    Fs = {0: frag(0, 21)}
    for i in range(8):
        if i < 7: Fs[i + 1] = frag(i + 1, 21)
        c = "0" if i == 0 else "v[10:13]"
        A(f"v_mfma_f32_16x16x32_bf16 v[10:13], v[{Fs[i]}:{Fs[i]+3}], v[{WD+4*i}:{WD+4*i+3}], {c}")
    A("s_mov_b32 exec_hi, 0")
    for r in range(4): A(f"v_and_or_b32 v{10+r}, v{10+r}, v52, s{53+r}")
    lstore("L_ys", f"buffer_store_dwordx4 v[10:13], v{TC+24}, s[36:39], s22 offen")
    stamp(9)
    A("s_branch L_end")
    A.label("L_fin")
    A(f"ds_write_b32 v{TC+15}, v20 offset:{L_HL}")
    A(f"v_lshlrev_b32 v49, 1, v{TC+25}")
    A("s_waitcnt lgkmcnt(0)")
    A("s_barrier")
    A(f"ds_read_b32 v50, v49 offset:{L_HL}")
    for r in range(4): A(f"v_mov_b32 v{32+r}, 0")
    gather("L_h3", [[(20 + 4 * j, TC + 24, 22 + j, 0)] for j in range(4)], [-1, -1, -1, 0xffffffff])
    stamp(9)
    sum4x4()
    dpp("v_add_f32", 20, 20, 20, "row_ror:8"); dpp("v_add_f32", 20, 20, 20, "row_ror:4")
    A("s_waitcnt lgkmcnt(0)")
    rbf(20, 20)
    A("v_add_f32 v20, v20, v50")
    rbf(20, 20)
    if diag:
        if diag == 2:
            A("s_cmp_eq_u32 s64, 1"); A("s_cbranch_scc1 L_dg2")
        A.label("L_dg1")
        A("s_memrealtime s[82:83]"); A("s_waitcnt lgkmcnt(0)")
        if diag == 3:
            A("s_lshl_b32 s82, s82, 8"); A("s_sub_u32 s82, s82, s84"); A(f"s_cmp_lt_u32 s82, {10000*256}"); A("s_cbranch_scc1 L_dg1")
        else:
            A("s_sub_u32 s82, s82, s80"); A("s_cmp_lt_u32 s82, 10000"); A("s_cbranch_scc1 L_dg1")
        A.label("L_dg2")
    A("s_mov_b32 exec_lo, 0x000f000f"); A("s_mov_b32 exec_hi, 0x000f000f")
    A(f"buffer_store_short_d16_hi v20, v{TC+25}, s[44:47], 0 offen")
    A("s_cmp_lg_u32 s77, 28"); A("s_cbranch_scc1 L_end")
    A("s_cmp_lg_u32 s3, 0"); A("s_cbranch_scc1 L_end")
    A("s_mov_b64 exec, 1")
    A("v_mov_b32 v21, s52")
    A("buffer_store_dword v21, v3, s[36:39], 0 offen sc1")
    A.label("L_end")
    if prof:
        A("s_waitcnt vmcnt(0)")
        stamp(10)
        A("s_mov_b64 exec, -1")
        A("s_waitcnt lgkmcnt(0)")
        for i in range(11): A(f"v_writelane_b32 v20, s{80+2*i}, {i}")
        A("v_writelane_b32 v20, s64, 11")
        A("s_getreg_b32 s71, hwreg(HW_REG_XCC_ID)"); A("v_writelane_b32 v20, s71, 12")
        A("s_lshl_b32 s71, s2, 3"); A("s_add_u32 s71, s71, s3"); A("s_lshl_b32 s71, s71, 6"); A(f"s_add_u32 s71, s71, {PROF}")
        A("v_lshlrev_b32 v21, 2, v1")
        A("s_mov_b64 exec, 0xffff")
        A("buffer_store_dword v20, v21, s[36:39], s71 offen")
    A.label("L_exit")
    A("s_endpgm")
    body = A.finish()
    nv = max(A.maxv + 1, 136)
    txt = HEADER + f"; @launch grid=(256,1,1) block=(512,1,1) lds={L_END}\n"
    txt += f'.amdgcn_target "amdgcn-amd-amdhsa--gfx950"\n.text\n.globl {KNAME}\n.p2align 8\n.type {KNAME},@function\n{KNAME}:\n'
    txt += body
    txt += f'.section .rodata,"a"\n.p2align 6\n.amdhsa_kernel {KNAME}\n  .amdhsa_next_free_vgpr {nv}\n  .amdhsa_next_free_sgpr 102\n'
    txt += f"  .amdhsa_accum_offset {(nv+3)//4*4}\n  .amdhsa_group_segment_fixed_size 0\n  .amdhsa_kernarg_size 96\n  .amdhsa_user_sgpr_count 2\n"
    txt += "  .amdhsa_user_sgpr_kernarg_segment_ptr 1\n  .amdhsa_system_sgpr_workgroup_id_x 1\n  .amdhsa_float_denorm_mode_32 3\n.end_amdhsa_kernel\n"
    return txt

if __name__ == "__main__":
    import argparse
    p = argparse.ArgumentParser(); p.add_argument("-o"); p.add_argument("kv", nargs="*")
    a = p.parse_args()
    kw = {k: eval(v) for k, v in (x.split("=") for x in a.kv)}
    open(a.o, "w").write(gen(**kw))
```

```python
import sys, struct
sys.path.insert(0, "gen")
from asmlib import Asm

KNAME = "sequential_preLN__gqa_block_cached__glu_gated_bilinear__decode_kernel"
HEADER = open("sequential_preLN__gqa_block_cached__glu_gated_bilinear__decode.s.ref").read().split("; Override launch")[0]

XBUF, QBUF, OBUF, HBUF, YBUF, CBUF, MLBUF, WS_END = 0x800, 0x1000, 0x10000, 0xA8000, 0xB0000, 0xD0000, 0x140000, 0x180000
PROF = 0x100000
L_OM, L_ML, L_MX, L_QF, L_TK, L_ST, L_RED, L_RED2, L_HL, L_TB, L_WD, L_END = 0, 0x4000, 0x4100, 0x4600, 0x4A00, 0x4B00, 0x5000, 0x7000, 0x4C00, 0x9000, 0x9800, 0x19800
DPPF = "row_mask:0xf bank_mask:0xf"
SPIN = 1 << 20

def gen(NX=4, prof=False, S0=104, offT=40, offF=24, offQ=12, thr1=8, slp1=4, qslp=4, LA=2, t8=128, t4=48, t1=0, b0=8,
        cstride=4352, kf='nt', vf='nt', wf='', mlsh=4, cut=0, local=True, pretouch=True, tT=64, diag=0, codepf=True, outpf=True, h2pre=False, opre=None, osf='sc1', ew=8, ewx=0, PS=0, pgap=0):
    A = Asm()
    RA, RX = 56, 88
    WO, WGU, WD = 88, 152, 88
    TC = 216
    OOB = 0x1000000
    D0 = (4096 - 32 * S0 + 8 * offQ + 4 * offT) // 4
    assert offF % 4 == 0
    D1 = D0 - offF // 4
    assert LA + D0 + 64 + 64 <= 512
    seen = {}
    def stamp(i):
        if prof: A(f"s_memrealtime s[{80+2*i}:{81+2*i}]")
        seen[i] = seen.get(i, 0) + 1
        if diag == (i, seen[i]): A("s_memrealtime s[80:81]")
    def rr4(a, b, c, d):
        A(f"v_permlane32_swap_b32 v{a}, v{b}")
        A(f"v_permlane32_swap_b32 v{c}, v{d}")
        A(f"v_add_f32 v{a}, v{a}, v{b}")
        A(f"v_add_f32 v{c}, v{c}, v{d}")
        A(f"v_permlane16_swap_b32 v{a}, v{c}")
        A(f"v_add_f32 v{a}, v{a}, v{c}")
    def rows_all(x, t, op):
        A(f"v_mov_b32 v{t}, v{x}")
        A(f"v_permlane32_swap_b32 v{x}, v{t}")
        A(f"{op} v{x}, v{x}, v{t}")
        A(f"v_mov_b32 v{t}, v{x}")
        A(f"v_permlane16_swap_b32 v{x}, v{t}")
        A(f"{op} v{x}, v{x}, v{t}")
    def dpp(op, d, s, o, ctl): A(f"{op}_dpp v{d}, v{s}, v{o} {ctl} {DPPF}")
    def quad_all(x, op):
        dpp(op, x, x, x, "quad_perm:[1,0,3,2]"); dpp(op, x, x, x, "quad_perm:[2,3,0,1]")
    def wave_all(x, t, op):
        quad_all(x, op); dpp(op, x, x, x, "row_ror:8"); dpp(op, x, x, x, "row_ror:4"); rows_all(x, t, op)
    def rbf(d, s): A(f"v_cvt_pk_bf16_f32 v{d}, 0, v{s}")
    def ln_fin(mean, var):
        rbf(var, var)
        rbf(mean, mean)
        A(f"v_add_f32 v{var}, 0x37280000, v{var}")
        rbf(var, var)
        A(f"v_sqrt_f32 v{var}, v{var}")
        rbf(var, var)
        A(f"v_rcp_f32 v{var}, v{var}")
    def ln_stats(vals, mean, rinv, t):
        A(f"v_add_f32 v{mean}, v{vals[0]}, v{vals[1]}")
        A(f"v_add_f32 v{t}, v{vals[2]}, v{vals[3]}")
        A(f"v_add_f32 v{rinv}, v{vals[4]}, v{vals[5]}")
        A(f"v_add_f32 v{mean}, v{mean}, v{t}")
        A(f"v_add_f32 v{t}, v{vals[6]}, v{vals[7]}")
        A(f"v_add_f32 v{rinv}, v{rinv}, v{t}")
        A(f"v_add_f32 v{mean}, v{mean}, v{rinv}")
        wave_all(mean, t, "v_add_f32")
        A(f"v_mul_f32 v{mean}, 0x3b000000, v{mean}")
        for v in vals: A(f"v_sub_f32 v{v}, v{v}, v{mean}")
        A(f"v_mul_f32 v{rinv}, v{vals[0]}, v{vals[0]}")
        A(f"v_mul_f32 v{t}, v{vals[1]}, v{vals[1]}")
        for k in range(2, 8, 2):
            A(f"v_fmac_f32 v{rinv}, v{vals[k]}, v{vals[k]}")
            A(f"v_fmac_f32 v{t}, v{vals[k+1]}, v{vals[k+1]}")
        A(f"v_add_f32 v{rinv}, v{rinv}, v{t}")
        wave_all(rinv, t, "v_add_f32")
        A(f"v_mul_f32 v{rinv}, 0x3b000000, v{rinv}")
        ln_fin(mean, rinv)
    def srd(d, lo, hi, n):
        A(f"s_mov_b32 s{d}, s{lo}"); A(f"s_mov_b32 s{d+1}, s{hi}"); A(f"s_mov_b32 s{d+2}, {hex(n)}"); A(f"s_mov_b32 s{d+3}, 0x20000")
    def spin(label, slp=0):
        A("s_sub_u32 s72, s72, 1")
        A("s_cbranch_scc1 L_end")
        if slp: A(f"s_sleep {slp}")
        A(f"s_branch {label}")
    MREG = [4, 6, 8, 10, 28, 30, 32, 34, 40]
    def gather(name, groups, init_masks=None, check_first=False):
        ng = len(groups)
        for j in range(ng):
            m = -1 if init_masks is None else init_masks[j]; M = MREG[j]
            if m == -1: A(f"s_mov_b64 s[{M}:{M+1}], -1")
            else: A(f"s_mov_b32 s{M}, {hex(m & 0xffffffff)}"); A(f"s_mov_b32 s{M+1}, {hex(m >> 32)}")
        if check_first: A(f"s_branch {name}_chk")
        A.label(f"{name}_rnd")
        for j, g in enumerate(groups):
            M = MREG[j]
            A(f"s_mov_b64 exec, s[{M}:{M+1}]")
            A(f"s_cbranch_execz {name}_i{j}")
            for (r, va, so, imm) in g:
                A(f"buffer_load_dwordx4 v[{r}:{r+3}], v{va}, s[36:39], s{so} offen offset:{imm} sc1")
            A.label(f"{name}_i{j}")
        A.label(f"{name}_chk")
        A("s_mov_b64 s[12:13], 0")
        A("s_waitcnt vmcnt(0)")
        for j, g in enumerate(groups):
            M = MREG[j]
            A(f"s_mov_b64 exec, s[{M}:{M+1}]")
            A(f"s_cbranch_execz {name}_c{j}")
            regs = [r + k for (r, _, _, _) in g for k in range(4)]
            for k, r in enumerate(regs): A(f"v_xor_b32 v{r}, s{53+(k&3)}, v{r}")
            A(f"v_or3_b32 v55, v{regs[0]}, v{regs[1]}, v{regs[2]}")
            rest = regs[3:]
            while len(rest) >= 2:
                A(f"v_or3_b32 v55, v55, v{rest[0]}, v{rest[1]}"); rest = rest[2:]
            A(f"v_or_b32 v55, v55, v{rest[0]}")
            A("v_and_b32 v55, 0xff, v55")
            A(f"v_cmp_ne_u32 s[{M}:{M+1}], 0, v55")
            A(f"s_or_b64 s[12:13], s[12:13], s[{M}:{M+1}]")
            A.label(f"{name}_c{j}")
        A("s_mov_b64 exec, -1")
        A("s_cmp_eq_u64 s[12:13], 0")
        A(f"s_cbranch_scc1 {name}_ok")
        spin(f"{name}_rnd")
        A.label(f"{name}_ok")
    def gatherp(name, groups, raws):
        ng = len(groups)
        for j in range(ng): A(f"s_mov_b64 s[{MREG[j]}:{MREG[j]+1}], -1")
        NL = sum(len(g) for g in groups)
        def issue(rb):
            n = 0
            for j, g in enumerate(groups):
                A(f"s_or_b64 exec, s[{MREG[j]}:{MREG[j]+1}], 1")
                for (r, va, so, imm) in g:
                    A(f"buffer_load_dwordx4 v[{rb+4*n}:{rb+4*n+3}], v{va}, s[36:39], s{so} offen offset:{imm} sc1")
                    n += 1
        for rb in raws: issue(rb)
        A.label(f"{name}_rnd")
        for k, rb in enumerate(raws):
            A("s_mov_b64 s[12:13], 0")
            A(f"s_waitcnt vmcnt({(len(raws)-1)*NL})")
            n = 0
            for j, g in enumerate(groups):
                M = MREG[j]
                A(f"s_mov_b64 exec, s[{M}:{M+1}]")
                A(f"s_cbranch_execz {name}_c{k}_{j}")
                regs = []
                for (r, _, _, _) in g:
                    for e in range(4):
                        A(f"v_xor_b32 v{r+e}, s{53+e}, v{rb+4*n+e}"); regs.append(r + e)
                    n += 1
                A(f"v_or3_b32 v55, v{regs[0]}, v{regs[1]}, v{regs[2]}")
                A(f"v_or_b32 v55, v55, v{regs[3]}")
                A("v_and_b32 v55, 0xff, v55")
                A(f"v_cmp_ne_u32 s[{M}:{M+1}], 0, v55")
                A(f"s_or_b64 s[12:13], s[12:13], s[{M}:{M+1}]")
                A.label(f"{name}_c{k}_{j}")
            A("s_cmp_eq_u64 s[12:13], 0")
            A(f"s_cbranch_scc1 {name}_ok")
            if pgap: A(f"s_sleep {pgap}")
            issue(rb)
        spin(f"{name}_rnd")
        A.label(f"{name}_ok")
        A("s_mov_b64 exec, -1")
    def lstore(name, text):
        A("s_cmp_eq_u32 s64, 1")
        A(f"s_cbranch_scc1 {name}_l")
        A(text + " sc1")
        A(f"s_branch {name}_j")
        A.label(f"{name}_l")
        A(text)
        A.label(f"{name}_j")
    def issueK(base, so):
        for j in range(4):
            r = base + 4 * j
            A(f"buffer_load_dwordx4 v[{r}:{r+3}], v2, s[28:31], s{so} offen offset:{1024*j} {kf}")
    def issueV(base, so):
        for j in range(4):
            r = base + 16 + 4 * j
            A(f"buffer_load_dwordx4 v[{r}:{r+3}], v3, s[32:35], s{so} offen offset:{1024*j} {vf}")
    def common_setup():
        A("s_mov_b32 s60, 0x22222222"); A("s_mov_b32 s61, 0x22222222")
        A("s_mov_b32 s62, 0x44444444"); A("s_mov_b32 s63, 0x44444444")
        A("s_mov_b32 s64, 0x88888888"); A("s_mov_b32 s65, 0x88888888")
        A("s_mov_b32 s74, 0x3db504f3"); A("s_mov_b32 s75, 0x3fb8aa3b")
        A(f"s_mov_b32 s72, {SPIN}")
        A("v_mov_b32 v44, 0xffff"); A("v_mov_b32 v45, 0xffff0000")
        A("v_mov_b32 v4, 0"); A("v_mov_b32 v5, 0")
        A("v_cmp_eq_u32 vcc, 0, v47")
        A("v_cndmask_b32 v4, v4, v44, vcc")
        A("v_cndmask_b32 v4, v4, v45, s[60:61]")
        A("v_cndmask_b32 v5, v5, v44, s[62:63]")
        A("v_cndmask_b32 v5, v5, v45, s[64:65]")
        for r in range(10, 18): A(f"v_mov_b32 v{r}, 0")
        A("v_mov_b32 v18, 0xff7fffff"); A("v_mov_b32 v19, 0")
    def k32masks(b):
        A("v_bfe_u32 v51, v1, 2, 1"); A("v_cmp_eq_u32 vcc, 0, v51")
        A(f"v_cndmask_b32 v{b}, 0, v4, vcc"); A(f"v_cndmask_b32 v{b+1}, 0, v5, vcc")
        A(f"v_cndmask_b32 v{b+2}, v4, 0, vcc"); A(f"v_cndmask_b32 v{b+3}, v5, 0, vcc")
    def tags():
        A("s_add_u32 s52, s52, 0x9e3779b9")
        A("s_and_b32 s53, s52, 0xff"); A("s_bfe_u32 s54, s52, 0x80008"); A("s_bfe_u32 s55, s52, 0x80010"); A("s_lshr_b32 s56, s52, 24")
        A("s_and_b32 s57, s52, 0xffff"); A("s_lshr_b32 s58, s52, 16")
    def sum4x4():
        A("v_pk_add_f32 v[20:21], v[20:21], v[24:25]"); A("v_pk_add_f32 v[22:23], v[22:23], v[26:27]")
        A("v_pk_add_f32 v[28:29], v[28:29], v[32:33]"); A("v_pk_add_f32 v[30:31], v[30:31], v[34:35]")
        A("v_pk_add_f32 v[20:21], v[20:21], v[28:29]"); A("v_pk_add_f32 v[22:23], v[22:23], v[30:31]")
        rr4(20, 21, 22, 23)
    def sum2x4():
        A("v_pk_add_f32 v[20:21], v[20:21], v[24:25]"); A("v_pk_add_f32 v[22:23], v[22:23], v[26:27]")
        rr4(20, 21, 22, 23)
    uid = [0]
    def chunk(base, refill):
        KB, VB = base, base + 16
        uid[0] += 1; u = uid[0]
        if refill:
            A("s_cmp_ge_u32 s66, s30")
            A("s_cbranch_scc1 L_done")
            if ew < 8:
                A("s_cmp_ge_u32 s66, s101")
                A("s_cbranch_scc1 L_nodraw")
            A("s_mov_b64 exec, 1")
            A("ds_add_rtn_u32 v54, v52, v53")
            A("s_mov_b64 exec, -1")
            if ew < 8: A.label("L_nodraw")
            A("s_waitcnt vmcnt(4) lgkmcnt(0)")
            A("v_readfirstlane_b32 s71, v54")
        for j in range(4):
            A(f"v_mfma_f32_16x16x32_bf16 v[{20+4*j}:{23+4*j}], v[{KB+4*j}:{KB+4*j+3}], v[6:9], 0")
        if refill:
            if ew < 8:
                A("s_cmp_ge_u32 s66, s101")
                A("s_mov_b32 s66, s30")
                A("s_cbranch_scc1 L_go")
            A("s_add_u32 s66, s71, s59")
            A("s_cmp_ge_u32 s71, s70")
            A("s_cbranch_scc1 L_dyn")
            A.label("L_go")
            issueK(base, 66)
        D = lambda j, r: 20 + 4 * (j & 3) + r
        for rho in range(4): A(f"v_cndmask_b32 v{44+rho}, v{D(rho,0)}, v{D(rho+1,1)}, s[60:61]")
        for rho in range(4): A(f"v_cndmask_b32 v{44+rho}, v{44+rho}, v{D(rho+2,2)}, s[62:63]")
        for rho in (1, 2, 3, 0): A(f"v_cndmask_b32 v{44+rho}, v{44+rho}, v{D(rho+3,3)}, s[64:65]")
        for rho in range(1, 4):
            qp = ",".join(str((q - rho) & 3) for q in range(4))
            dpp("v_add_f32", 44, 44 + rho, 44, f"quad_perm:[{qp}]")
        rbf(44, 44)
        A("v_mul_f32 v44, s74, v44")
        rbf(44, 44)
        A("v_mul_f32 v44, s75, v44")
        A("v_cmp_gt_f32 vcc, v44, v18")
        A(f"s_cbranch_vccz L_nors{u}")
        A("v_max_f32 v45, v44, v18")
        quad_all(45, "v_max_f32")
        rows_all(45, 46, "v_max_f32")
        A("v_sub_f32 v46, v18, v45")
        A("v_exp_f32 v46, v46")
        A("v_mov_b32 v18, v45")
        A("v_mul_f32 v19, v19, v46")
        for h in range(4): A(f"v_mov_b32_dpp v47, v46 row_newbcast:{4*h} row_mask:{hex(1<<h)} bank_mask:0xf")
        for r in range(10, 18): A(f"v_mul_f32 v{r}, v{r}, v47")
        A.label(f"L_nors{u}")
        A("v_sub_f32 v44, v44, v18")
        A("v_exp_f32 v44, v44")
        A("v_cvt_pk_bf16_f32 v45, v44, v44")
        A("v_add_f32 v19, v19, v44")
        for j in range(4):
            dpp("v_and_b32", 36 + 2 * j, 45, 4, f"quad_perm:[{j},{j},{j},{j}]")
            dpp("v_and_b32", 37 + 2 * j, 45, 5, f"quad_perm:[{j},{j},{j},{j}]")
        if refill: A("s_waitcnt vmcnt(4)")
        for j in range(4):
            A(f"v_mfma_f32_16x16x16_bf16 v[10:13], v[{36+2*j}:{37+2*j}], v[{VB+4*j}:{VB+4*j+1}], v[10:13]")
            A(f"v_mfma_f32_16x16x16_bf16 v[14:17], v[{36+2*j}:{37+2*j}], v[{VB+4*j+2}:{VB+4*j+3}], v[14:17]")
        if refill: issueV(base, 66)

    A("s_cmp_ge_u32 s2, 256")
    A("s_cbranch_scc1 L_exit")
    A("s_load_dwordx16 s[4:19], s[0:1], 0")
    A("s_load_dwordx8 s[20:27], s[0:1], 64")
    stamp(0)
    A("v_and_b32 v1, 63, v0")
    A("v_lshrrev_b32 v44, 6, v0")
    A("v_lshlrev_b32 v3, 4, v1")
    A("v_readfirstlane_b32 s3, v44")
    A("v_bfe_u32 v45, v1, 2, 2")
    A("v_lshrrev_b32 v46, 4, v1")
    A("v_and_b32 v47, 3, v1")
    A("v_lshlrev_b32 v2, 8, v45")
    A("v_lshl_add_u32 v2, v46, 6, v2")
    A("v_lshl_add_u32 v2, v47, 4, v2")
    A("s_lshr_b32 s77, s2, 3"); A("s_and_b32 s76, s77, 7"); A("s_and_b32 s73, s2, 7"); A("s_lshr_b32 s78, s2, 6")
    A("s_lshl3_add_u32 s79, s78, s73")
    A("s_cmp_ge_u32 s76, 4"); A(f"s_cselect_b32 s67, {D0-D1}, 0"); A(f"s_sub_u32 s67, {D0}, s67")
    A("s_cmp_eq_u32 s78, 0"); A(f"s_cselect_b32 s70, {offQ}, 0"); A(f"s_cselect_b32 s71, 0, 8"); A(f"s_sub_u32 s70, {S0}, s70")
    A(f"s_mul_i32 s71, s71, {offQ}")
    A(f"s_mul_i32 s59, s78, {8*S0-offT}"); A("s_sub_u32 s59, s59, s71")
    A("s_cmp_ge_u32 s77, 28"); A(f"s_cselect_b32 s68, {offT-offF}, {offT}")
    A("s_mul_i32 s71, s73, s70"); A("s_add_u32 s59, s59, s71")
    A("s_cmp_eq_u32 s73, 0"); A("s_cselect_b32 s71, 0, s68"); A("s_cselect_b32 s68, s68, 0")
    A("s_sub_u32 s59, s59, s71"); A("s_sub_u32 s70, s70, s68"); A(f"s_sub_u32 s70, s70, {LA}")
    A("s_lshl_b32 s59, s59, 12"); A("s_lshl_b32 s70, s70, 12")
    A("s_lshl_b32 s66, s3, 12"); A("s_add_u32 s66, s66, s59")
    A("s_lshl_b32 s71, s76, 24")
    A(f"s_mov_b32 s30, {OOB}"); A("s_mov_b32 s31, 0x20000"); A(f"s_mov_b32 s34, {OOB}"); A("s_mov_b32 s35, 0x20000")
    A("s_cmp_lt_u32 s2, 64")
    A("s_cbranch_scc1 L_qprod")
    A("s_waitcnt lgkmcnt(0)")
    A("s_add_u32 s28, s6, s71"); A("s_addc_u32 s29, s7, 0")
    A("s_add_u32 s32, s8, s71"); A("s_addc_u32 s33, s9, 0")
    A("s_load_dword s52, s[26:27], 0")
    A("s_cmp_eq_u32 s3, 0")
    A("s_cbranch_scc1 L_w0")
    A.label("L_ring")
    issueK(RA, 66); issueV(RA, 66)
    A(f"s_add_u32 s68, s66, {7*4096}")
    for k in range(NX):
        issueK(RX + 32 * k, 68); issueV(RX + 32 * k, 68)
        if k < NX - 1: A(f"s_add_u32 s68, s68, {7*4096}")
    srd(48, 4, 5, 1024)
    srd(36, 26, 27, WS_END)
    common_setup()
    A("s_waitcnt lgkmcnt(0)")
    tags()
    stamp(1)
    A("s_barrier")
    A("s_branch L_qj")
    A.label("L_qprod")
    A("v_lshrrev_b32 v44, 3, v1"); A("v_and_b32 v45, 7, v1")
    A("v_lshlrev_b32 v50, 16, v44")
    A("v_lshl_add_u32 v50, v45, 4, v50")
    A("v_lshlrev_b32 v51, 4, v44")
    A("s_lshl_b32 s68, s2, 7"); A("s_lshl_b32 s73, s3, 19"); A("s_add_u32 s68, s68, s73")
    A("s_lshl_b32 s73, s3, 7")
    A("s_mov_b32 s50, 1024"); A("s_mov_b32 s51, 0x20000"); A(f"s_mov_b32 s42, {4<<20}"); A("s_mov_b32 s43, 0x20000")
    for i in range(1, 8): A(f"v_add_u32 v{35+i}, {8192*i}, v50")
    A("s_waitcnt lgkmcnt(0)")
    A("s_mov_b32 s48, s4"); A("s_mov_b32 s49, s5"); A("s_mov_b32 s40, s10"); A("s_mov_b32 s41, s11")
    A("buffer_load_dwordx4 v[52:55], v3, s[48:51], 0 offen")
    A("buffer_load_dwordx4 v[32:35], v51, s[48:51], s73 offen")
    for i in range(8):
        va = 50 if i == 0 else 35 + i
        A(f"buffer_load_dwordx4 v[{RA+4*i}:{RA+4*i+3}], v{va}, s[40:43], s68 offen {wf}")
    A("s_load_dword s52, s[26:27], 0")
    A("s_add_u32 s28, s6, s71"); A("s_addc_u32 s29, s7, 0")
    A("s_add_u32 s32, s8, s71"); A("s_addc_u32 s33, s9, 0")
    A("s_cmp_lg_u32 s3, 0"); A("s_cbranch_scc1 L_nz")
    A("s_cmp_ge_u32 s79, 4"); A("s_cbranch_scc1 L_nz")
    A("s_lshl3_add_u32 s73, s79, s76")
    A(f"s_mul_i32 s73, s73, {cstride}"); A(f"s_add_u32 s73, s73, {CBUF}")
    A("v_mov_b32 v49, s73"); A("v_mov_b32 v48, 0")
    A("s_mov_b64 exec, 1")
    A("global_store_dword v49, v48, s[26:27] sc1")
    A("s_mov_b64 exec, -1")
    A.label("L_nz")
    A("v_lshrrev_b32 v49, 5, v1"); A("v_and_b32 v44, 1, v46")
    A("v_lshlrev_b32 v48, 8, v49"); A("v_lshl_add_u32 v48, v45, 5, v48"); A("v_lshl_add_u32 v48, v44, 4, v48")
    A("s_lshl_b32 s73, s3, 9"); A("v_add_u32 v48, s73, v48")
    common_setup()
    k32masks(6)
    A("s_waitcnt vmcnt(8)")
    for k in range(4):
        A(f"v_lshlrev_b32 v{36+2*k}, 16, v{52+k}")
        A(f"v_and_b32 v{37+2*k}, 0xffff0000, v{52+k}")
    for k in range(4):
        A(f"v_lshlrev_b32 v{20+2*k}, 16, v{32+k}")
        A(f"v_and_b32 v{21+2*k}, 0xffff0000, v{32+k}")
    ln_stats(list(range(36, 44)), 44, 45, 51)
    for k in range(8): A(f"v_sub_f32 v{20+k}, v{20+k}, v44")
    for k in range(8): rbf(20 + k, 20 + k)
    for k in range(8): A(f"v_mul_f32 v{20+k}, v{20+k}, v45")
    for k in range(8): A(f"v_cvt_pk_bf16_f32 v{20+k}, v{20+k}, v{20+k}")
    for i in range(8):
        for r in range(4): A(f"v_and_b32 v{RX+4*i+r}, v{20+i}, v{6+r}")
    A("s_waitcnt vmcnt(0)")
    for i in range(8):
        c = "0" if i == 0 else "v[28:31]"
        A(f"v_mfma_f32_16x16x32_bf16 v[28:31], v[{RX+4*i}:{RX+4*i+3}], v[{RA+4*i}:{RA+4*i+3}], {c}")
    A("s_mov_b32 exec_lo, 0x00ff00ff"); A("s_mov_b32 exec_hi, 0xff00ff00")
    A(f"ds_write_b128 v48, v[28:31] offset:{L_RED}")
    A("s_mov_b64 exec, -1")
    A("s_waitcnt lgkmcnt(0)")
    A("s_barrier")
    A("s_cmp_lg_u32 s3, 0")
    A("s_cbranch_scc1 L_ring")
    A("s_setprio 3")
    A("v_and_b32 v50, 15, v1"); A("v_lshlrev_b32 v49, 10, v46"); A("v_lshl_add_u32 v49, v50, 4, v49")
    for k in range(4): A(f"ds_read_b128 v[{20+4*k}:{23+4*k}], v49 offset:{L_RED+256*k}")
    srd(36, 26, 27, WS_END)
    tags()
    A("v_and_b32 v45, 1, v46"); A("v_lshlrev_b32 v45, 1, v45"); A("v_lshrrev_b32 v44, 1, v46"); A("v_or_b32 v45, v45, v44")
    A("v_lshl_add_u32 v45, v50, 2, v45"); A("v_lshlrev_b32 v45, 2, v45")
    A("v_mov_b32 v49, s57"); A("v_mov_b32 v51, s58")
    A("v_cmp_eq_u32 vcc, 0, v44")
    A("v_cndmask_b32 v49, v51, v49, vcc")
    A("s_lshl_b32 s71, s2, 8"); A(f"s_add_u32 s71, s71, {QBUF}")
    A("s_waitcnt lgkmcnt(0)")
    sum4x4()
    rbf(20, 20)
    A("v_or_b32 v20, v20, v49")
    A("buffer_store_dword v20, v45, s[36:39], s71 offen sc1")
    stamp(2)
    A("s_branch L_w0b")
    A.label("L_w0")
    A("s_setprio 3")
    srd(48, 4, 5, 1024)
    srd(36, 26, 27, WS_END)
    common_setup()
    A("s_waitcnt lgkmcnt(0)")
    tags()
    A.label("L_w0b")
    A(f"v_mov_b32 v52, {L_TK}"); A(f"v_mov_b32 v48, {(8+7*NX)*4096}")
    A("ds_write_b32 v52, v48")
    for r in range(4): A(f"v_mov_b32 v{24+r}, -1")
    A(f"ds_write_b128 v3, v[24:27] offset:{L_TB}")
    A(f"ds_write_b128 v3, v[24:27] offset:{L_TB+1024}")
    A("s_add_u32 s73, s59, s70")
    A("v_lshlrev_b32 v28, 12, v1"); A("v_add_u32 v28, s73, v28"); A("v_lshlrev_b32 v29, 2, v1")
    A("v_cmp_eq_u32 vcc, 0, v1"); A("v_addc_co_u32 v28, vcc, 0, v28, vcc")
    A(f"s_mov_b64 exec, {(1 << LA) - 1}")
    A(f"ds_write_b32 v29, v28 offset:{L_TB}")
    A("s_mov_b64 exec, -1")
    A("v_lshlrev_b32 v44, 1, v2")
    A("s_lshl_b32 s71, s76, 11"); A(f"s_add_u32 s71, s71, {QBUF}")
    A("s_add_u32 s14, s26, s71"); A("s_addc_u32 s15, s27, 0")
    A.label("L_qhint")
    for k in range(8): A(f"s_load_dword s{40+k}, s[14:15], {256*k} glc")
    A("s_waitcnt lgkmcnt(0)")
    for k in range(8): A(f"s_xor_b32 s{40+k}, s{40+k}, s57")
    for k in range(1, 8): A(f"s_or_b32 s40, s40, s{40+k}")
    A("s_and_b32 s40, s40, 0xffff")
    A("s_cbranch_scc0 L_qpoll")
    spin("L_qhint", qslp)
    A.label("L_qpoll")
    A("buffer_load_dwordx4 v[20:23], v44, s[36:39], s71 offen sc1")
    A("buffer_load_dwordx4 v[24:27], v44, s[36:39], s71 offen offset:16 sc1")
    A("s_mov_b32 s73, 0x07060302")
    A("s_waitcnt vmcnt(0)")
    for e in range(8): A(f"v_xor_b32 v{20+e}, s{57+(e&1)}, v{20+e}")
    A("v_or3_b32 v45, v20, v21, v22"); A("v_or3_b32 v45, v45, v23, v24"); A("v_or3_b32 v45, v45, v25, v26"); A("v_or_b32 v45, v45, v27")
    A("v_and_b32 v45, 0xffff, v45")
    A("v_cmp_ne_u32 vcc, 0, v45")
    A("s_cbranch_vccz L_q_ok")
    spin("L_qpoll")
    A.label("L_q_ok")
    for k in range(4): A(f"v_perm_b32 v{6+k}, v{21+2*k}, v{20+2*k}, s73")
    A(f"ds_write_b128 v3, v[6:9] offset:{L_QF}")
    A("s_waitcnt lgkmcnt(0)")
    stamp(1)
    A("s_barrier")
    issueK(RA, 66); issueV(RA, 66)
    A("s_setprio 0")
    A.label("L_qj")
    A(f"ds_read_b128 v[6:9], v3 offset:{L_QF}")
    A(f"v_mov_b32 v52, {L_TK}"); A("v_mov_b32 v53, 4096")
    A("s_mov_b32 s69, 3")
    A(f"s_mul_i32 s58, s77, {cstride}"); A(f"s_add_u32 s58, s58, {CBUF}")
    A("s_sub_u32 s57, 4, s78"); A("s_mul_i32 s57, s57, s67"); A("s_sub_u32 s57, 4096, s57"); A("s_lshl_b32 s57, s57, 12")
    if ew < 8:
        A(f"s_sub_u32 s101, s67, {ewx}"); A("s_lshl_b32 s101, s101, 12"); A("s_add_u32 s101, s101, s57")
        A(f"s_cmp_ge_u32 s3, {ew}"); A("s_cselect_b32 s101, s101, -1")
    stamp(3)
    A.label("L_loop")
    chunk(RA, True)
    A("s_cmp_lg_u32 s69, 3")
    A("s_cbranch_scc1 L_loop")
    A("s_mov_b32 s69, 0")
    A("s_cmp_eq_u32 s3, 0")
    A("s_cbranch_scc1 L_setup")
    A("s_waitcnt vmcnt(8)")
    for k in range(NX): chunk(RX + 32 * k, False)
    A.label("L_setup")
    A("v_lshrrev_b32 v46, 4, v1"); A("v_and_b32 v47, 3, v1"); A("v_bfe_u32 v45, v1, 2, 2"); A("v_and_b32 v50, 15, v1")
    A("v_and_b32 v48, 1, v46"); A("v_lshlrev_b32 v48, 1, v48"); A("v_lshrrev_b32 v49, 1, v46"); A("v_or_b32 v48, v48, v49")
    A("s_lshl_b32 s71, s3, 11"); A(f"v_lshlrev_b32 v{TC}, 5, v1"); A(f"v_add_u32 v{TC}, s71, v{TC}")
    A("s_lshl_b32 s71, s3, 3"); A(f"v_lshlrev_b32 v{TC+1}, 6, v45"); A(f"v_add_u32 v{TC+1}, s71, v{TC+1}")
    A(f"v_lshrrev_b32 v{TC+2}, 1, v{TC+1}")
    A("s_lshl_b32 s71, s3, 8"); A(f"v_lshlrev_b32 v{TC+3}, 12, v46"); A(f"v_lshl_add_u32 v{TC+3}, v50, 4, v{TC+3}"); A(f"v_add_u32 v{TC+3}, s71, v{TC+3}")
    A("s_lshr_b32 s71, s3, 1"); A("s_lshl_b32 s73, s71, 6"); A(f"v_lshlrev_b32 v{TC+4}, 4, v46"); A(f"v_add_u32 v{TC+4}, s73, v{TC+4}")
    A("s_lshl_b32 s73, s71, 5"); A(f"v_mov_b32 v{TC+5}, s73")
    A(f"v_lshl_add_u32 v{TC+6}, v50, 2, v48"); A(f"v_lshlrev_b32 v{TC+6}, 2, v{TC+6}")
    A(f"v_lshlrev_b32 v{TC+7}, 3, v48"); A(f"v_lshrrev_b32 v{TC+7}, v{TC+7}, s52"); A(f"v_and_b32 v{TC+7}, 0xff, v{TC+7}")
    A("s_lshl_b32 s0, s76, 16"); A("s_lshl_b32 s73, s79, 11"); A("s_add_u32 s0, s0, s73")
    A("s_lshl_b32 s73, s3, 8"); A("s_add_u32 s0, s0, s73"); A(f"s_add_u32 s0, s0, {OBUF}")
    A("s_lshr_b32 s73, s3, 1"); A("s_lshl2_add_u32 s1, s76, s73"); A("s_lshl_b32 s1, s1, 5"); A("s_add_u32 s1, s1, s79")
    A(f"s_lshl_b32 s1, s1, {mlsh}"); A(f"s_add_u32 s1, s1, {MLBUF}")
    A(f"v_lshlrev_b32 v{TC+10}, 2, v1")
    A(f"v_lshlrev_b32 v{TC+27}, 3, v47"); A(f"v_lshrrev_b32 v{TC+27}, v{TC+27}, s52"); A(f"v_and_b32 v{TC+27}, 0xff, v{TC+27}")
    if opre is not None:
        A(f"buffer_load_dword v44, v{TC+10}, s[36:39], s0 offen {opre}")
        A("s_mov_b64 exec, 1")
        A(f"buffer_load_dword v45, v3, s[36:39], s1 offen {opre}")
        A("s_mov_b64 exec, -1")
        A("s_waitcnt vmcnt(0)")
    A("s_and_b32 s71, s2, 7")
    A("s_cbranch_scc1 L_loop")
    A("s_mov_b32 s69, 2")
    A("s_getreg_b32 s78, hwreg(HW_REG_XCC_ID, 0, 4)"); A("s_lshl_b32 s78, s78, 8")
    A("s_cmp_lg_u32 s3, 0"); A("s_cbranch_scc1 L_nox")
    A("s_or_b32 s71, s78, s53")
    A("v_mov_b32 v20, s71"); A("v_mov_b32 v21, s54"); A("v_mov_b32 v22, s55"); A("v_mov_b32 v23, s56")

    A("s_lshl_b32 s71, s77, 4"); A(f"s_add_u32 s71, s71, {XBUF}")
    A("s_mov_b64 exec, 1")
    A("buffer_store_dwordx4 v[20:23], v3, s[36:39], s71 offen sc1")
    A("s_mov_b64 exec, -1")
    A.label("L_nox")
    srd(40, 12, 13, 4 << 20)
    A("s_lshr_b32 s68, s77, 1")
    A("s_lshl_b32 s71, s68, 18"); A("s_lshr_b32 s73, s3, 1"); A("s_lshl_b32 s73, s73, 16"); A("s_add_u32 s71, s71, s73")
    A("s_and_b32 s73, s3, 1"); A("s_lshl_b32 s73, s73, 10"); A("s_add_u32 s71, s71, s73")
    A("s_and_b32 s73, s77, 1"); A("s_lshl_b32 s73, s73, 9"); A("s_add_u32 s71, s71, s73")
    A("v_lshlrev_b32 v44, 4, v50"); A("v_lshl_add_u32 v45, v48, 12, v44"); A("v_lshl_add_u32 v44, v48, 10, v44")
    for q in range(4):
        for hi in range(2):
            for c2 in range(2):
                r = WO + 4 * (8 * c2 + 4 * hi + q)
                A(f"buffer_load_dwordx4 v[{r}:{r+3}], v45, s[40:43], s71 offen offset:{2048*hi+256*c2} {wf}")
        if q < 3: A("s_add_u32 s71, s71, 16384")
    A(f"v_lshrrev_b32 v51, 1, v{TC+6}"); A("s_lshl_b32 s71, s3, 7")
    A(f"buffer_load_ushort v{TC+13}, v51, s[48:51], s71 offen")
    k32masks(TC + 16)
    A("v_and_b32 v51, 7, v1"); A("v_and_b32 v45, 1, v46"); A("v_lshrrev_b32 v49, 5, v1")
    A(f"v_lshrrev_b32 v{TC+9}, 3, v1")
    A(f"v_lshlrev_b32 v{TC+8}, 13, v{TC+9}"); A(f"v_lshl_add_u32 v{TC+8}, v51, 4, v{TC+8}")
    A(f"v_lshl_add_u32 v{TC+9}, v{TC+9}, 2, v47"); A(f"v_lshlrev_b32 v{TC+9}, {mlsh}, v{TC+9}")
    A(f"v_lshlrev_b32 v{TC+24}, 4, v45"); A(f"v_lshl_add_u32 v{TC+24}, v50, 5, v{TC+24}")
    A(f"v_lshl_add_u32 v{TC+11}, v49, 9, v{TC+24}"); A("s_lshl_b32 s71, s3, 10"); A(f"v_add_u32 v{TC+11}, s71, v{TC+11}")
    A(f"v_lshlrev_b32 v{TC+14}, 11, v46"); A(f"v_lshl_add_u32 v{TC+14}, v50, 4, v{TC+14}")
    A("s_and_b32 s71, s3, 3"); A("s_lshl_b32 s71, s71, 8"); A(f"v_add_u32 v{TC+12}, s71, v{TC+14}")
    A(f"v_lshlrev_b32 v{TC+15}, 11, v50")
    A("s_lshl_b32 s71, s3, 4"); A(f"v_mov_b32 v{TC+20}, s71"); A(f"v_lshlrev_b32 v{TC+21}, 4, v51")
    A("v_bfe_u32 v49, v1, 3, 1")
    A(f"v_lshlrev_b32 v{TC+23}, 11, v46"); A(f"v_lshl_add_u32 v{TC+23}, v49, 8, v{TC+23}"); A(f"v_lshl_add_u32 v{TC+23}, v51, 4, v{TC+23}")
    A("s_lshr_b32 s71, s3, 2"); A("s_lshl_b32 s71, s71, 7"); A(f"v_add_u32 v{TC+23}, s71, v{TC+23}")
    A("s_lshl_b32 s71, s3, 13"); A(f"s_add_u32 s71, s71, {L_WD}"); A(f"v_add_u32 v{TC+26}, s71, v3")
    A("s_mov_b32 m0, s71")
    A(f"v_lshrrev_b32 v{TC+22}, 2, v1"); A(f"v_lshlrev_b32 v{TC+22}, 11, v{TC+22}"); A(f"v_lshl_add_u32 v{TC+22}, v47, 4, v{TC+22}")
    A(f"v_lshrrev_b32 v{TC+25}, 1, v{TC+6}"); A("s_lshl_b32 s71, s3, 7"); A(f"v_add_u32 v{TC+25}, s71, v{TC+25}")
    srd(44, 22, 23, 1024)
    A("s_cmp_ge_u32 s77, 28")
    A("s_cbranch_scc1 L_suj")
    A("s_mov_b32 s69, 1")
    A("s_lshl_b32 s71, s3, 6"); A("v_add_u32 v45, s71, v48")
    A("v_mul_u32_u24 v45, 3584, v45"); A("v_lshl_add_u32 v45, v51, 4, v45"); A("s_lshl_b32 s71, s77, 7"); A("v_add_u32 v45, s71, v45")
    A("v_cmp_eq_u32 vcc, 0, v49")
    A("v_mov_b32 v20, s16"); A("v_mov_b32 v21, s18"); A("v_cndmask_b32 v20, v21, v20, vcc")
    A("v_mov_b32 v21, s17"); A("v_mov_b32 v22, s19"); A("v_cndmask_b32 v21, v22, v21, vcc")
    A("v_add_co_u32 v20, vcc, v20, v45"); A("v_addc_co_u32 v21, vcc, 0, v21, vcc")
    for i in range(16):
        A(f"global_load_dwordx4 v[{WGU+4*i}:{WGU+4*i+3}], v[20:21], off {wf}")
        if i < 15: A(f"v_add_co_u32 v20, vcc, {4*3584}, v20"); A("v_addc_co_u32 v21, vcc, 0, v21, vcc")
    srd(40, 20, 21, 1792 * 1024)
    A("s_lshl_b32 s71, s77, 16"); A("s_lshr_b32 s73, s3, 2"); A("s_lshl_b32 s73, s73, 15"); A("s_add_u32 s71, s71, s73")
    A("s_and_b32 s73, s3, 3"); A("s_lshl_b32 s73, s73, 8"); A("s_add_u32 s71, s71, s73")
    for i in range(8):
        A(f"buffer_load_dwordx4 v44, s[40:43], s71 offen {wf} lds")
        if i < 7: A("s_add_u32 s71, s71, 4096"); A("s_add_u32 m0, m0, 1024")
    A.label("L_suj")
    A("s_lshl_b32 s22, s77, 6"); A(f"s_add_u32 s22, s22, {YBUF}")
    A("s_add_u32 s23, s22, 32768"); A("s_add_u32 s24, s22, 65536"); A("s_add_u32 s25, s22, 98304")
    A("s_lshr_b32 s16, s68, 1"); A("s_lshl_b32 s16, s16, 16"); A("s_and_b32 s71, s68, 1"); A("s_lshl_b32 s71, s71, 10"); A("s_add_u32 s16, s16, s71")
    A("s_lshl_b32 s71, s3, 7"); A("s_add_u32 s16, s16, s71"); A(f"s_add_u32 s16, s16, {OBUF}")
    A("s_add_u32 s17, s16, 4096")
    A("s_lshr_b32 s71, s3, 2"); A("s_lshl1_add_u32 s20, s68, s71"); A(f"s_lshl_b32 s20, s20, {5+mlsh}"); A(f"s_add_u32 s20, s20, {MLBUF}")
    A("s_lshl_b32 s21, s77, 10"); A("s_lshl_b32 s73, s3, 8"); A("s_add_u32 s21, s21, s73"); A(f"s_add_u32 s21, s21, {HBUF}")
    A("s_lshl_b32 s18, s77, 12"); A("s_lshl_b32 s71, s3, 9"); A("s_add_u32 s18, s18, s71"); A(f"s_add_u32 s18, s18, {YBUF}")
    A("s_lshr_b32 s68, s77, 2")
    A("s_branch L_loop")

    A.label("L_dyn")
    A("s_sub_u32 s73, s71, s70"); A("s_lshr_b32 s73, s73, 10")
    A("v_mov_b32 v48, s73")
    A.label("L_dynw")
    A(f"ds_read_b32 v49, v48 offset:{L_TB}")
    A("s_waitcnt lgkmcnt(0)")
    A("v_readfirstlane_b32 s66, v49")
    A("s_cmp_lg_u32 s66, -1")
    A("s_cbranch_scc1 L_dyng")
    spin("L_dynw")
    A.label("L_dyng")
    if t1:
        A("s_cmp_eq_u32 s66, 2")
        A("s_cbranch_scc1 L_self")
    A("s_bitcmp1_b32 s66, 0")
    A("s_cbranch_scc0 L_go")
    A("s_and_b32 s66, s66, -2")
    A("s_max_u32 s71, s66, s57"); A("s_sub_u32 s71, s71, s57"); A("s_lshr_b32 s71, s71, 12"); A("s_sub_u32 s71, s67, s71")
    if tT:
        A("s_and_b32 s14, s2, 7"); A(f"s_cselect_b32 s14, 0, {tT}")
        A("s_cmp_gt_u32 s71, s14")
        A("s_cbranch_scc1 L_dynt")
        A("v_lshl_add_u32 v48, v1, 2, v48")
        A("v_mov_b32 v51, s30")
        A(f"ds_write_b32 v48, v51 offset:{L_TB+4*LA}")
        A("s_branch L_go")
        A.label("L_dynt")
    A(f"s_cmp_gt_u32 s71, {t4}"); A("s_cselect_b32 s15, 4, 2")
    A(f"s_cmp_gt_u32 s71, {t8}"); A(f"s_cselect_b32 s15, {b0}, s15")
    A("s_mov_b32 s14, s15")
    A("s_atomic_add s14, s[26:27], s58 glc")
    A("v_lshl_add_u32 v48, v1, 2, v48")
    A(f"s_sub_u32 s73, s15, {LA}")
    A("s_waitcnt lgkmcnt(0)")
    A("v_add_u32 v49, s14, v1")
    A("v_lshlrev_b32 v50, 12, v49"); A("v_add_u32 v50, s57, v50")
    A("s_add_u32 s14, s14, s15")
    A("s_cmp_ge_u32 s14, s67")
    A("s_cbranch_scc1 L_dynx")
    if t1:
        A(f"s_add_u32 s14, s14, {t1}")
        A("s_cmp_ge_u32 s14, s67")
        A("s_cbranch_scc1 L_dyns")
    A("v_cmp_eq_u32 vcc, s73, v1"); A("v_addc_co_u32 v50, vcc, 0, v50, vcc")
    A("v_cmp_gt_u32 vcc, s15, v1")
    A("s_mov_b64 exec, vcc")
    A(f"ds_write_b32 v48, v50 offset:{L_TB+4*LA}")
    A("s_mov_b64 exec, -1")
    A("s_branch L_go")
    A.label("L_dynx")
    A("v_mov_b32 v51, s30")
    A("v_cmp_gt_u32 vcc, s67, v49")
    A("v_cndmask_b32 v50, v51, v50, vcc")
    A(f"ds_write_b32 v48, v50 offset:{L_TB+4*LA}")
    A("s_branch L_go")
    if t1:
        A.label("L_dyns")
        A("v_cmp_gt_u32 vcc, s15, v1")
        A("v_cndmask_b32 v50, 2, v50, vcc")
        A(f"ds_write_b32 v48, v50 offset:{L_TB+4*LA}")
        A("s_branch L_go")
        A.label("L_self")
        A("s_mov_b32 s14, 1")
        A("s_atomic_add s14, s[26:27], s58 glc")
        A("v_lshl_add_u32 v48, v1, 2, v48")
        A("v_mov_b32 v51, s30")
        A("s_waitcnt lgkmcnt(0)")
        A("s_lshl_b32 s66, s14, 12"); A("s_add_u32 s66, s66, s57")
        A("s_cmp_lt_u32 s14, s67")
        A("s_cbranch_scc1 L_go")
        A("s_mov_b32 s66, s30")
        A(f"ds_write_b32 v48, v51 offset:{L_TB+4}")
        A("s_branch L_go")

    A.label("L_done")
    A("s_cmp_eq_u32 s69, 3")
    A("s_cbranch_scc1 L_end")
    stamp(4)
    if cut == 1: A("s_branch L_end")
    quad_all(19, "v_add_f32")
    A(f"ds_write_b32 v{TC+2}, v18 offset:{L_MX}")
    rows_all(19, 49, "v_add_f32")
    A(f"ds_write_b128 v{TC}, v[10:13] offset:{L_OM}")
    A(f"ds_write_b128 v{TC}, v[14:17] offset:{L_OM+16}")
    A(f"ds_write_b64 v{TC+1}, v[18:19] offset:{L_ML}")
    A("s_mov_b32 s73, 0xffffff00")
    A("s_lshl_b32 s60, s3, 8"); A(f"s_add_u32 s60, s60, {HBUF}")
    A("s_add_u32 s61, s60, 8192"); A("s_add_u32 s62, s60, 16384"); A("s_add_u32 s63, s60, 24576")
    A("s_cmp_eq_u32 s69, 0")
    A("s_cbranch_scc1 L_nopt")
    A("v_and_b32 v54, 0x1f0, v3")
    A(f"buffer_load_dwordx4 v[40:43], v54, s[36:39], 0 offen offset:{XBUF} sc1")
    if codepf:
        A("s_getpc_b64 s[12:13]")
        A("s_lshl_b32 s71, s3, 10"); A("s_add_u32 s12, s12, s71"); A("s_addc_u32 s13, s13, 0")
        A("global_load_dwordx4 v[44:47], v3, s[12:13]")
    if outpf:
        A("buffer_load_dword v44, v3, s[44:47], 0 offen")
    if pretouch:
        A("s_lshl_b32 s71, s3, 5"); A("s_add_u32 s71, s71, s77")
        A("s_cmp_ge_u32 s71, 144")
        A("s_cbranch_scc1 L_nopt")
        A("s_lshl_b32 s71, s71, 10"); A(f"s_add_u32 s71, s71, {HBUF}")
        A("buffer_load_dwordx4 v[44:47], v3, s[36:39], s71 offen sc1")
    A.label("L_nopt")
    A("s_waitcnt lgkmcnt(0)")
    A("s_barrier")
    stamp(5)
    A(f"ds_read_b128 v[20:23], v{TC+5} offset:{L_MX}")
    A(f"ds_read_b128 v[24:27], v{TC+5} offset:{L_MX+16}")
    A(f"ds_read_b128 v[28:31], v{TC+4} offset:{L_ML}")
    A(f"ds_read_b128 v[10:13], v{TC+3} offset:{L_OM}")
    A(f"ds_read_b128 v[14:17], v{TC+3} offset:{L_OM+2048}")
    A("v_mov_b32 v38, s55"); A("v_mov_b32 v39, s56")
    A("s_waitcnt lgkmcnt(3)")
    A("v_max3_f32 v36, v20, v21, v22"); A("v_max3_f32 v37, v23, v24, v25"); A("v_max3_f32 v36, v36, v26, v27"); A("v_max_f32 v36, v36, v37")
    A("v_and_b32 v36, s73, v36")
    A("s_waitcnt lgkmcnt(2)")
    A("v_sub_f32 v28, v28, v36"); A("v_sub_f32 v30, v30, v36")
    A("v_exp_f32 v28, v28"); A("v_exp_f32 v30, v30")
    A("v_or_b32 v36, s53, v36")
    A("s_waitcnt lgkmcnt(0)")
    for r in range(4): A(f"v_mul_f32 v{10+r}, v{10+r}, v28")
    for r in range(4): A(f"v_fmac_f32 v{10+r}, v{14+r}, v30")
    A("v_mul_f32 v37, v28, v29")
    A("v_fmac_f32 v37, v30, v31")
    rr4(10, 11, 12, 13)
    A(f"v_and_or_b32 v10, v10, s73, v{TC+27}")
    A(f"buffer_store_dword v10, v{TC+10}, s[36:39], s0 offen {osf}")
    A("s_bitcmp1_b32 s3, 0")
    A("s_cbranch_scc1 L_mj")
    rows_all(37, 49, "v_add_f32")
    A("v_and_b32 v37, s73, v37"); A("v_or_b32 v37, s54, v37")
    A("s_mov_b64 exec, 1")
    A(f"buffer_store_dwordx4 v[36:39], v3, s[36:39], s1 offen {osf}")
    A("s_mov_b64 exec, -1")
    A.label("L_mj")
    stamp(6)
    A("s_cmp_eq_u32 s69, 0")
    A("s_cbranch_scc1 L_end")
    OB = RA
    A("s_waitcnt vmcnt(0)")
    A.label("L_xchk")
    for k in range(4): A(f"v_xor_b32 v{40+k}, s{53+k}, v{40+k}")
    A("v_or3_b32 v55, v41, v42, v43")
    A("v_and_b32 v53, 0xff, v40"); A("v_or_b32 v55, v55, v53")
    A("v_cmp_ne_u32 vcc, 0, v55")
    A("s_cbranch_vccz L_xok")
    A(f"buffer_load_dwordx4 v[40:43], v54, s[36:39], 0 offen offset:{XBUF} sc1")
    A("s_waitcnt vmcnt(0)")
    spin("L_xchk")
    A.label("L_xok")
    A("v_cmp_ne_u32 vcc, s78, v40")
    A("s_mov_b32 s64, 0")
    if local:
        A("s_cbranch_vccnz L_xg")
        A("s_mov_b32 s64, 1")
        A.label("L_xg")
    A(f"v_lshlrev_b32 v{TC+13}, 16, v{TC+13}")
    OG = [(OB + 4 * j, TC + 8, 16 + (j >> 1), 2048 * (j & 1)) for j in range(4)]
    A.label("L_h1pre")
    A(f"buffer_load_dword v23, v{TC+9}, s[36:39], s20 offen offset:12 sc1")
    A("s_waitcnt vmcnt(0)")
    A("v_cmp_eq_u32 vcc, s56, v23")
    A("s_bcnt1_i32_b64 s71, vcc")
    A(f"s_cmp_ge_u32 s71, {2*thr1}")
    A("s_cbranch_scc1 L_h1go")
    spin("L_h1pre", slp1)
    A.label("L_h1go")
    gather("L_h1", [[(20, TC + 9, 20, 0)]] + [[g] for g in OG])
    stamp(7)
    dpp("v_max_f32", 22, 20, 20, "quad_perm:[1,0,3,2]")
    for ctl in ("quad_perm:[2,3,0,1]", "row_ror:8"): dpp("v_max_f32", 22, 22, 22, ctl)
    rows_all(22, 23, "v_max_f32")
    A("v_sub_f32 v20, v20, v22")
    A("v_exp_f32 v20, v20")
    A("v_mul_f32 v21, v20, v21")
    fm = []
    for j in range(4):
        for r in range(4):
            op = "v_mul_f32" if j == 0 else "v_fmac_f32"
            fm.append(f"{op}_dpp v{24+r}, v20, v{OB+4*j+r} quad_perm:[{j},{j},{j},{j}] {DPPF}")
    lr = [f"v_add_f32_dpp v21, v21, v21 {c} {DPPF}" for c in ("quad_perm:[1,0,3,2]", "quad_perm:[2,3,0,1]", "row_ror:8")]
    lr += ["v_mov_b32 v22, v21", "v_permlane32_swap_b32 v21, v22", "v_add_f32 v21, v21, v22\nv_mov_b32 v22, v21"]
    for k in range(len(fm)):
        A(fm[k])
        if k % 2 == 1 and k >= 1 and lr: A(lr.pop(0))
    assert not lr
    A("v_permlane16_swap_b32 v21, v22")
    A("v_add_f32 v21, v21, v22")
    A("v_permlane32_swap_b32 v24, v25")
    A("v_permlane32_swap_b32 v26, v27")
    A("v_add_f32 v24, v24, v25")
    A("v_add_f32 v26, v26, v27")
    A("v_rcp_f32 v21, v21")
    A("v_permlane16_swap_b32 v24, v26")
    A("v_add_f32 v24, v24, v26")
    dpp("v_add_f32", 24, 24, 24, "row_ror:8")
    A("v_mul_f32 v20, v24, v21")
    A("v_cvt_pk_bf16_f32 v20, v20, v20")
    def frag(i, src):
        F = 24 + 4 * (i % 3)
        for r in range(4): dpp("v_and_b32", F + r, src, TC + 16 + r, f"row_newbcast:{i}")
        return F
    def frag2(i):
        F = 24 + 4 * (i % 3); p = i & 3
        own, oth = (20, 21) if i < 4 else (21, 20)
        pa, pb = (p, 3 - p) if i < 4 else (3 - p, p)
        for r in range(2): dpp("v_and_b32", F + r, own, TC + 16 + r, f"quad_perm:[{pa},{pa},{pa},{pa}]")
        for r in range(2, 4): dpp("v_and_b32", F + r, oth, TC + 16 + r, f"quad_perm:[{pb},{pb},{pb},{pb}]")
        return F
    def gemv16(W, red, pair=True):
        fr = frag2 if pair else (lambda i: frag(i, 20))
        if pair: A(f"v_mov_b32_dpp v21, v20 row_half_mirror {DPPF}")
        Fs = {0: fr(0)}
        for i in range(8):
            if i < 7: Fs[i + 1] = fr(i + 1)
            for v in range(2):
                acc = 10 + 4 * v; c = "0" if i == 0 else f"v[{acc}:{acc+3}]"; b = W + 4 * (8 * v + i)
                A(f"v_mfma_f32_16x16x32_bf16 v[{acc}:{acc+3}], v[{Fs[i]}:{Fs[i]+3}], v[{b}:{b+3}], {c}")
        A("s_mov_b32 exec_hi, 0")
        A(f"ds_write_b128 v{TC+11}, v[10:13] offset:{red}")
        A("s_mov_b32 exec_lo, 0"); A("s_mov_b32 exec_hi, -1")
        A(f"ds_write_b128 v{TC+11}, v[14:17] offset:{red}")
        A("s_mov_b64 exec, -1")
        A("s_waitcnt lgkmcnt(0)")
        A("s_barrier")
    gemv16(WO, L_RED, pair=False)
    A("s_cmp_ge_u32 s3, 4")
    A("s_cbranch_scc1 L_h2")
    for k in range(2): A(f"ds_read_b128 v[{20+4*k}:{23+4*k}], v{TC+12} offset:{L_RED+1024*k}")
    A("s_waitcnt lgkmcnt(0)")
    sum2x4()
    A(f"v_and_or_b32 v36, v20, s73, v{TC+7}")
    lstore("L_hs", f"buffer_store_dword v36, v{TC+6}, s[36:39], s21 offen")
    stamp(8)
    A.label("L_h2")
    A("s_cmp_lg_u32 s69, 2")
    A("s_cbranch_scc1 L_h2f")
    A("s_cmp_lg_u32 s3, 7")
    A("s_cbranch_scc1 L_end")
    A.label("L_h2f")
    for i in range(8): A(f"ds_read_b128 v[{WD+4*i}:{WD+4*i+3}], v{TC+26} offset:{1024*i}")
    if h2pre:
        A("s_mov_b64 exec, 0xffff")
        A.label("L_h2pre")
        A(f"buffer_load_dword v53, v{TC+15}, s[36:39], s60 offen sc1")
        A("s_waitcnt vmcnt(0)")
        A("v_and_b32 v53, 0xff, v53")
        A("v_cmp_ne_u32 vcc, s53, v53")
        A("s_cbranch_vccz L_h2go")
        spin("L_h2pre")
        A.label("L_h2go")
    gather("L_h2", [[(20 + 4 * j, TC + 14, 60 + j, 0)] for j in range(4)])
    stamp(2)
    sum4x4()
    rbf(20, 20)
    A(f"v_add_f32 v20, v20, v{TC+13}")
    rbf(50, 20)
    A("s_cmp_eq_u32 s69, 2")
    A("s_cbranch_scc1 L_fin0")
    A("v_readfirstlane_b32 s71, v50")
    A("v_subrev_f32 v25, s71, v50")
    A("v_mov_b32 v24, s71")
    A("v_mul_f32 v26, v25, v25")
    for ctl in ("quad_perm:[1,0,3,2]", "quad_perm:[2,3,0,1]", "row_ror:8", "row_ror:4"):
        dpp("v_add_f32", 25, 25, 25, ctl); dpp("v_add_f32", 26, 26, 26, ctl)
    A("v_permlane32_swap_b32 v25, v26")
    A("v_add_f32 v25, v25, v26")
    A("v_mov_b32 v26, v25")
    A("v_permlane16_swap_b32 v25, v26")
    A("v_add_f32 v25, v25, v26")
    A("s_mov_b64 exec, 1")
    A(f"ds_write_b64 v{TC+20}, v[24:25] offset:{L_ST}")
    A("s_mov_b32 exec_lo, 0"); A("s_mov_b32 exec_hi, 1")
    A(f"ds_write_b32 v{TC+20}, v25 offset:{L_ST+8}")
    A("s_mov_b64 exec, -1")
    A("s_waitcnt lgkmcnt(0)")
    A("s_barrier")
    A(f"ds_read_b128 v[24:27], v{TC+21} offset:{L_ST}")
    A("s_waitcnt lgkmcnt(0)")
    A("v_readfirstlane_b32 s71, v24")
    A("v_subrev_f32 v24, s71, v24")
    A("v_mul_f32 v27, 0x42800000, v24")
    A("v_add_f32 v28, v25, v27")
    A("v_add_f32 v25, v25, v28")
    A("v_fmac_f32 v26, v24, v25")
    for ctl in ("quad_perm:[1,0,3,2]", "quad_perm:[2,3,0,1]", "row_half_mirror"):
        dpp("v_add_f32", 28, 28, 28, ctl); dpp("v_add_f32", 26, 26, 26, ctl)
    A("v_mul_f32 v28, 0x3b000000, v28")
    A("v_mul_f32 v26, 0x3b000000, v26")
    A("v_fma_f32 v26, -v28, v28, v26")
    A("v_add_f32 v28, s71, v28")
    A("v_max_f32 v26, 0, v26")
    ln_fin(28, 26)
    A("v_sub_f32 v20, v50, v28")
    rbf(20, 20)
    A("v_mul_f32 v20, v20, v26")
    A("v_cvt_pk_bf16_f32 v20, v20, v20")
    gemv16(WGU, L_RED2)
    stamp(3)
    for k in range(4): A(f"ds_read_b128 v[{20+4*k}:{23+4*k}], v{TC+23} offset:{L_RED2+512*k}")
    A("v_mov_b32 v52, s73")
    A("s_waitcnt lgkmcnt(0)")
    sum4x4()
    rbf(20, 20)
    dpp("v_mul_f32", 21, 20, 20, "row_ror:8")
    A("v_cvt_pk_bf16_f32 v21, v21, v21")
    Fs = {0: frag(0, 21)}
    for i in range(8):
        if i < 7: Fs[i + 1] = frag(i + 1, 21)
        c = "0" if i == 0 else "v[10:13]"
        A(f"v_mfma_f32_16x16x32_bf16 v[10:13], v[{Fs[i]}:{Fs[i]+3}], v[{WD+4*i}:{WD+4*i+3}], {c}")
    A("s_mov_b32 exec_hi, 0")
    for r in range(4): A(f"v_and_or_b32 v{10+r}, v{10+r}, v52, s{53+r}")
    lstore("L_ys", f"buffer_store_dwordx4 v[10:13], v{TC+24}, s[36:39], s18 offen")
    stamp(9)
    A("s_cmp_lg_u32 s3, s68")
    A("s_cbranch_scc1 L_end")
    A("s_mov_b64 exec, -1")
    A("s_branch L_fin")
    A.label("L_fin0")
    A("s_cmp_lg_u32 s77, 28"); A("s_cbranch_scc1 L_fin")
    A("s_mov_b64 exec, 1")
    A("v_mov_b32 v36, s52")
    A("buffer_store_dword v36, v3, s[36:39], 0 offen sc1")
    A("s_mov_b64 exec, -1")
    A.label("L_fin")
    for r in range(4): A(f"v_mov_b32 v{32+r}, 0")
    gather("L_h3", [[(20 + 4 * j, TC + 22, 22 + j, 0)] for j in range(4)], [-1, -1, -1, 0xffffffff])
    stamp(5)
    sum4x4()
    A("s_and_b32 s71, s77, 3"); A("s_lshl_b32 s71, s71, 2")
    dpp("v_add_f32", 20, 20, 20, "row_ror:8"); dpp("v_add_f32", 20, 20, 20, "row_ror:4")
    A("s_lshl_b32 s71, 0x000f000f, s71")
    rbf(20, 20)
    A("v_add_f32 v20, v20, v50")
    rbf(20, 20)
    if diag:
        A.label("L_dg1")
        A("s_memrealtime s[82:83]"); A("s_waitcnt lgkmcnt(0)")
        A("s_sub_u32 s82, s82, s80"); A("s_cmp_lt_u32 s82, 6000"); A("s_cbranch_scc1 L_dg1")
    A("s_mov_b32 exec_lo, s71"); A("s_mov_b32 exec_hi, s71")
    A(f"buffer_store_short_d16_hi v20, v{TC+25}, s[44:47], 0 offen")
    A.label("L_end")
    if prof:
        A("s_waitcnt vmcnt(0)")
        stamp(10)
        A("s_mov_b64 exec, -1")
        A("s_waitcnt lgkmcnt(0)")
        for i in range(11): A(f"v_writelane_b32 v20, s{80+2*i}, {i}")
        A("v_writelane_b32 v20, s64, 11")
        A("s_getreg_b32 s71, hwreg(HW_REG_XCC_ID)"); A("v_writelane_b32 v20, s71, 12")
        A("s_lshl_b32 s71, s2, 3"); A("s_add_u32 s71, s71, s3"); A("s_lshl_b32 s71, s71, 6"); A(f"s_add_u32 s71, s71, {PROF}")
        A("v_lshlrev_b32 v21, 2, v1")
        A("s_mov_b64 exec, 0xffff")
        A("buffer_store_dword v20, v21, s[36:39], s71 offen")
    A.label("L_exit")
    A("s_endpgm")
    body = A.finish()
    nv = max(A.maxv + 1, 136)
    txt = HEADER + f"; @launch grid=(256,1,1) block=(512,1,1) lds={L_END}\n"
    txt += f'.amdgcn_target "amdgcn-amd-amdhsa--gfx950"\n.text\n.globl {KNAME}\n.p2align 8\n.type {KNAME},@function\n{KNAME}:\n'
    txt += body
    txt += ".fill 768, 4, 0xbf800000\n"
    txt += f'.section .rodata,"a"\n.p2align 6\n.amdhsa_kernel {KNAME}\n  .amdhsa_next_free_vgpr {nv}\n  .amdhsa_next_free_sgpr 102\n'
    txt += f"  .amdhsa_accum_offset {(nv+3)//4*4}\n  .amdhsa_group_segment_fixed_size 0\n  .amdhsa_kernarg_size 96\n  .amdhsa_user_sgpr_count 2\n"
    txt += "  .amdhsa_user_sgpr_kernarg_segment_ptr 1\n  .amdhsa_system_sgpr_workgroup_id_x 1\n  .amdhsa_float_denorm_mode_32 3\n.end_amdhsa_kernel\n"
    return txt

if __name__ == "__main__":
    import argparse
    p = argparse.ArgumentParser(); p.add_argument("-o"); p.add_argument("kv", nargs="*")
    a = p.parse_args()
    kw = {k: eval(v) for k, v in (x.split("=") for x in a.kv)}
    open(a.o, "w").write(gen(**kw))
```

```python
import re

TRANS = ("v_exp_f32", "v_log_f32", "v_rcp_f32", "v_rsq_f32", "v_sqrt_f32", "v_sin_f32", "v_cos_f32")

def regs_of(tok):
    t = tok.strip()
    t = re.sub(r"^(neg|abs)\((.*)\)$", r"\2", t).lstrip("-").strip("|")
    if t == "vcc": return {("s", 106), ("s", 107)}
    if t == "vcc_lo": return {("s", 106)}
    if t == "vcc_hi": return {("s", 107)}
    if t == "exec": return {("s", 126), ("s", 127)}
    if t == "m0": return {("s", 124)}
    m = re.match(r"^([vsa])(\d+)$", t)
    if m: return {(m.group(1), int(m.group(2)))}
    m = re.match(r"^([vsa])\[(\d+):(\d+)\]$", t)
    if m: return {(m.group(1), i) for i in range(int(m.group(2)), int(m.group(3)) + 1)}
    return set()

class Ins:
    def __init__(self, text):
        self.text = text
        body = text.split(";")[0].strip()
        self.is_label = body.endswith(":")
        self.is_dir = body.startswith(".") or body == ""
        self.op = ""; self.dst = set(); self.src = set(); self.ops = []
        self.kind = "none"; self.dpp = False; self.dppsrc = set(); self.srcC = set(); self.srcAB = set()
        self.states = 0; self.sdata = set(); self.ldsdma = False
        if self.is_label or self.is_dir: return
        parts = body.split(None, 1)
        self.op = op = parts[0]
        rest = parts[1] if len(parts) > 1 else ""
        ops = []; cur = ""; depth = 0
        for ch in rest:
            if ch == "[": depth += 1
            if ch == "]": depth -= 1
            if ch == "," and depth == 0: ops.append(cur.strip()); cur = ""
            else: cur += ch
        if cur.strip(): ops.append(cur.strip())
        mods = ""
        if ops:
            last = ops[-1].split(None, 1)
            ops[-1] = last[0]
            mods = last[1] if len(last) > 1 else ""
        self.ops = ops; self.mods = mods
        self.states = 1
        R = [regs_of(o) for o in ops]
        if op == "s_nop":
            self.kind = "salu"; self.states = int(ops[0], 0) + 1; return
        if op.startswith("v_smfmac"):
            self.kind = "mfma"; self.dst = R[0]; self.srcAB = R[1] | R[2] | R[3]; self.srcC = R[0]; self.src = self.srcAB | self.srcC
            self.passes = 8 if "32x32" in op else 4
            return
        if op.startswith("v_mfma"):
            self.kind = "mfma"; self.dst = R[0]; self.srcAB = R[1] | R[2]; self.srcC = R[3]; self.src = self.srcAB | self.srcC
            self.passes = 8 if "32x32" in op else 4
            return
        if op.startswith("v_"):
            self.kind = "valu"
            self.dpp = "_dpp" in op
            if op.startswith("v_permlane"):
                self.dst = R[0] | R[1]; self.src = R[0] | R[1]; return
            if op.startswith("v_cmp"):
                self.dst = R[0]; self.src = set().union(*R[1:]); return
            if op in ("v_add_co_u32", "v_sub_co_u32", "v_addc_co_u32", "v_subb_co_u32", "v_mad_u64_u32"):
                self.dst = R[0] | R[1]; self.src = set().union(*R[2:]); return
            self.dst = R[0]; self.src = set().union(*R[1:]) if len(R) > 1 else set()
            if op.startswith(("v_fmac", "v_dot2c", "v_writelane")) or self.dpp: self.src |= R[0]
            if self.dpp: self.dppsrc = R[1]
            return
        if op.startswith(("buffer_", "global_")):
            self.kind = "vmem"
            if "load" in op and re.search(r"\blds\b", mods):
                self.src = set().union(*R) | regs_of("m0"); self.ldsdma = True
            elif "load" in op:
                self.dst = R[0]; self.src = set().union(*R[1:])
                if "d16" in op: self.src |= R[0]
            elif "store" in op:
                self.src = set().union(*R)
                d = R[0] if op.startswith("buffer_") else R[1]
                if "x3" in op or "x4" in op: self.sdata = d
            else:
                self.src = set().union(*R)
                if "sc0" in mods: self.dst = R[0]
            return
        if op.startswith("ds_"):
            self.kind = "ds"
            if op.startswith(("ds_read", "ds_bpermute", "ds_permute", "ds_swizzle")) or "_rtn" in op:
                self.dst = R[0]; self.src = set().union(*R[1:])
            else:
                self.src = set().union(*R)
            return
        if op.startswith("s_"):
            self.kind = "salu"
            if op.startswith(("s_cmp", "s_cbranch", "s_branch", "s_waitcnt", "s_barrier", "s_endpgm", "s_sleep", "s_setprio", "s_bitcmp")):
                self.src = set().union(*R) if R else set()
            else:
                self.dst = R[0] if R else set(); self.src = set().union(*R[1:]) if len(R) > 1 else set()
                if "saveexec" in op: self.dst |= regs_of("exec")
            return
        raise ValueError("unknown instr " + text)

def need(p, c):
    n = 0
    pv = {r for r in p.dst if r[0] in "va"}
    ps = {r for r in p.dst if r[0] == "s"}
    if p.kind == "valu":
        if c.kind == "valu":
            if c.dpp and (pv & c.dppsrc): n = max(n, 2)
            if c.op.startswith("v_permlane") and (pv & c.src): n = max(n, 2)
            if c.op.startswith(("v_readlane", "v_readfirstlane")) and (pv & c.src): n = max(n, 1)
            if p.op.replace("_e32", "").replace("_e64", "") in TRANS and (pv & c.src): n = max(n, 1)
            if "sdwa" in p.op and (pv & (c.src | c.dst)): n = max(n, 1)
            cs = set(c.src)
            if c.op.startswith("v_cndmask") and len(c.ops) == 4: cs |= regs_of(c.ops[3])
            if ps & cs:
                n = max(n, 4 if c.op.startswith(("v_readlane", "v_writelane")) else 2)
            if (ps & regs_of("exec")):
                n = max(n, 5 if c.dpp else (4 if c.op.startswith(("v_readlane", "v_readfirstlane", "v_writelane", "v_permlane")) else 0))
        if c.kind == "mfma":
            if pv & c.src: n = max(n, 2)
            if ps & regs_of("exec"): n = max(n, 4)
        if c.kind == "vmem" and (ps & c.src): n = max(n, 5)
        if c.kind == "salu" and (ps & c.src) and not c.op.startswith("s_cbranch"): n = max(n, 1)
    if p.kind == "mfma":
        big = {4: 8, 8: 12}[p.passes]
        if c.kind == "mfma":
            if pv & c.srcAB: n = max(n, big)
            if pv & c.srcC and not (c.srcC == p.dst and c.passes == p.passes): n = max(n, {4: 6, 8: 10}[p.passes])
            elif (pv & c.dst) and not (pv & c.srcC): n = max(n, big)
        elif c.kind in ("valu", "vmem", "ds"):
            if pv & (c.src | c.dst): n = max(n, big)
            if c.kind == "valu" and (p.srcC & c.dst): n = max(n, {4: 3, 8: 7}[p.passes])
    if p.kind == "salu" and c.ldsdma and (ps & regs_of("m0")): n = max(n, 1)
    if p.kind == "vmem" and p.sdata:
        if c.kind in ("valu", "mfma") and (p.sdata & c.dst): n = max(n, 2)
        elif p.sdata & c.dst: n = max(n, 1)
    return n

class Asm:
    def __init__(self):
        self.lines = []
    def __call__(self, text):
        for t in text.strip("\n").split("\n"):
            t = t.strip()
            if t: self.lines.append(t)
    def label(self, name): self.lines.append(name + ":")
    def finish(self):
        ins = [Ins(t) for t in self.lines]
        out = []
        W = 14
        for c in ins:
            if c.kind != "none":
                dist = 0; req = 0
                for p in reversed(out):
                    if p.kind == "none": continue
                    if p.op in ("s_branch", "s_endpgm", "s_setpc_b64"): break
                    r = need(p, c) - dist
                    req = max(req, r)
                    dist += p.states
                    if dist >= W: break
                if req > 0:
                    out.append(Ins(f"s_nop {req - 1}"))
            out.append(c)
        labels = {o.text.split(":")[0]: i for i, o in enumerate(out) if o.is_label}
        errs = []
        for i, b in enumerate(out):
            if b.op.startswith(("s_cbranch", "s_branch")):
                tgt = labels[b.ops[0]]
                pre = [o for o in out[max(0, i - 2 * W): i + 1] if o.kind != "none"]
                for k in range(len(pre) - 2, -1, -1):
                    if pre[k].op in ("s_branch", "s_endpgm"): pre = pre[k + 1:]; break
                post = []
                for o in out[tgt: tgt + 2 * W]:
                    if o.kind == "none": continue
                    post.append(o)
                    if o.op in ("s_branch", "s_endpgm"): break
                d0 = 0
                for c in post:
                    dist = d0
                    for p in reversed(pre):
                        if need(p, c) > dist: errs.append(f"branch hazard: [{p.text}] -> {b.text} -> [{c.text}] need {need(p, c)} have {dist}")
                        dist += p.states
                        if dist >= W: break
                    d0 += c.states
                    if d0 >= W: break
        if errs: raise RuntimeError("\n".join(errs))
        self.maxv = max([r[1] for o in out for r in (o.dst | o.src) if r[0] == "v"] + [0])
        self.maxs = max([r[1] for o in out for r in (o.dst | o.src) if r[0] == "s" and r[1] < 102] + [0])
        return "\n".join(("" if (o.is_label or o.is_dir) else "    ") + o.text for o in out) + "\n"
```

```python
import sys, struct
sys.path.insert(0, "gen")
from asmlib import Asm

KNAME = "sequential_preLN__gqa_block_cached__glu_gated_bilinear__decode_kernel"
HEADER = open("sequential_preLN__gqa_block_cached__glu_gated_bilinear__decode.s.ref").read().split("; Override launch")[0]

XBUF, QBUF, OBUF, HBUF, YBUF, CBUF, MLBUF, WS_END = 0x800, 0x1000, 0x10000, 0xA8000, 0xB0000, 0xD0000, 0x140000, 0x180000
PROF = 0x100000
L_OM, L_ML, L_MX, L_QF, L_TK, L_ST, L_RED, L_RED2, L_HL, L_TB, L_WD, L_END = 0, 0x4000, 0x4100, 0x4600, 0x4A00, 0x4B00, 0x5000, 0x7000, 0x4C00, 0x9000, 0x9800, 0x19800
DPPF = "row_mask:0xf bank_mask:0xf"
SPIN = 1 << 20

def gen(NX=4, prof=False, S0=104, offT=40, offF=24, offQ=12, thr1=8, slp1=4, qslp=4, LA=2, t8=128, t4=48, t1=0, b0=8,
        cstride=4352, kf='nt', vf='nt', wf='', mlsh=4, cut=0, local=True, pretouch=True, tT=64, diag=0, codepf=True, outpf=True, h2pre=False, opre=None, osf='sc1', ew=8, ewx=0, PS=0, pgap=0, flat2=True, flat3=True, skipoob=True, hw=-2, yw=0, stx=True, noround=0):
    A = Asm()
    RA, RX = 56, 88
    WO, WGU = 88, 152
    WDR = [72, 80, 244, 40]
    FS = [232, 6, 252]
    TC = 216
    OOB = 0x1000000
    D0 = (4096 - 32 * S0 + 8 * offQ + 4 * offT) // 4
    assert offF % 4 == 0
    D1 = D0 - offF // 4
    assert LA + D0 + 64 + 64 <= 512
    seen = {}
    def stamp(i):
        if prof: A(f"s_memrealtime s[{80+2*i}:{81+2*i}]")
        seen[i] = seen.get(i, 0) + 1
        if diag == (i, seen[i]): A("s_memrealtime s[80:81]")
    def rr4(a, b, c, d):
        A(f"v_permlane32_swap_b32 v{a}, v{b}")
        A(f"v_permlane32_swap_b32 v{c}, v{d}")
        A(f"v_add_f32 v{a}, v{a}, v{b}")
        A(f"v_add_f32 v{c}, v{c}, v{d}")
        A(f"v_permlane16_swap_b32 v{a}, v{c}")
        A(f"v_add_f32 v{a}, v{a}, v{c}")
    def rows_all(x, t, op):
        A(f"v_mov_b32 v{t}, v{x}")
        A(f"v_permlane32_swap_b32 v{x}, v{t}")
        A(f"{op} v{x}, v{x}, v{t}")
        A(f"v_mov_b32 v{t}, v{x}")
        A(f"v_permlane16_swap_b32 v{x}, v{t}")
        A(f"{op} v{x}, v{x}, v{t}")
    def dpp(op, d, s, o, ctl): A(f"{op}_dpp v{d}, v{s}, v{o} {ctl} {DPPF}")
    def quad_all(x, op):
        dpp(op, x, x, x, "quad_perm:[1,0,3,2]"); dpp(op, x, x, x, "quad_perm:[2,3,0,1]")
    def wave_all(x, t, op):
        quad_all(x, op); dpp(op, x, x, x, "row_ror:8"); dpp(op, x, x, x, "row_ror:4"); rows_all(x, t, op)
    def rbf(d, s): A(f"v_cvt_pk_bf16_f32 v{d}, 0, v{s}")
    def ln_fin(mean, var):
        rbf(var, var)
        rbf(mean, mean)
        A(f"v_add_f32 v{var}, 0x37280000, v{var}")
        rbf(var, var)
        A(f"v_sqrt_f32 v{var}, v{var}")
        rbf(var, var)
        A(f"v_rcp_f32 v{var}, v{var}")
    def ln_stats(vals, mean, rinv, t):
        A(f"v_add_f32 v{mean}, v{vals[0]}, v{vals[1]}")
        A(f"v_add_f32 v{t}, v{vals[2]}, v{vals[3]}")
        A(f"v_add_f32 v{rinv}, v{vals[4]}, v{vals[5]}")
        A(f"v_add_f32 v{mean}, v{mean}, v{t}")
        A(f"v_add_f32 v{t}, v{vals[6]}, v{vals[7]}")
        A(f"v_add_f32 v{rinv}, v{rinv}, v{t}")
        A(f"v_add_f32 v{mean}, v{mean}, v{rinv}")
        wave_all(mean, t, "v_add_f32")
        A(f"v_mul_f32 v{mean}, 0x3b000000, v{mean}")
        for v in vals: A(f"v_sub_f32 v{v}, v{v}, v{mean}")
        A(f"v_mul_f32 v{rinv}, v{vals[0]}, v{vals[0]}")
        A(f"v_mul_f32 v{t}, v{vals[1]}, v{vals[1]}")
        for k in range(2, 8, 2):
            A(f"v_fmac_f32 v{rinv}, v{vals[k]}, v{vals[k]}")
            A(f"v_fmac_f32 v{t}, v{vals[k+1]}, v{vals[k+1]}")
        A(f"v_add_f32 v{rinv}, v{rinv}, v{t}")
        wave_all(rinv, t, "v_add_f32")
        A(f"v_mul_f32 v{rinv}, 0x3b000000, v{rinv}")
        ln_fin(mean, rinv)
    def srd(d, lo, hi, n):
        A(f"s_mov_b32 s{d}, s{lo}"); A(f"s_mov_b32 s{d+1}, s{hi}"); A(f"s_mov_b32 s{d+2}, {hex(n)}"); A(f"s_mov_b32 s{d+3}, 0x20000")
    def spin(label, slp=0):
        A("s_sub_u32 s72, s72, 1")
        A("s_cbranch_scc1 L_end")
        if slp: A(f"s_sleep {slp}")
        A(f"s_branch {label}")
    MREG = [4, 6, 8, 10, 28, 30, 32, 34, 40]
    def gather(name, groups, init_masks=None, check_first=False):
        ng = len(groups)
        for j in range(ng):
            m = -1 if init_masks is None else init_masks[j]; M = MREG[j]
            if m == -1: A(f"s_mov_b64 s[{M}:{M+1}], -1")
            else: A(f"s_mov_b32 s{M}, {hex(m & 0xffffffff)}"); A(f"s_mov_b32 s{M+1}, {hex(m >> 32)}")
        if check_first: A(f"s_branch {name}_chk")
        A.label(f"{name}_rnd")
        for j, g in enumerate(groups):
            M = MREG[j]
            A(f"s_mov_b64 exec, s[{M}:{M+1}]")
            A(f"s_cbranch_execz {name}_i{j}")
            for (r, va, so, imm) in g:
                A(f"buffer_load_dwordx4 v[{r}:{r+3}], v{va}, s[36:39], s{so} offen offset:{imm} sc1")
            A.label(f"{name}_i{j}")
        A.label(f"{name}_chk")
        A("s_mov_b64 s[12:13], 0")
        A("s_waitcnt vmcnt(0)")
        for j, g in enumerate(groups):
            M = MREG[j]
            A(f"s_mov_b64 exec, s[{M}:{M+1}]")
            A(f"s_cbranch_execz {name}_c{j}")
            regs = [r + k for (r, _, _, _) in g for k in range(4)]
            for k, r in enumerate(regs): A(f"v_xor_b32 v{r}, s{53+(k&3)}, v{r}")
            A(f"v_or3_b32 v55, v{regs[0]}, v{regs[1]}, v{regs[2]}")
            rest = regs[3:]
            while len(rest) >= 2:
                A(f"v_or3_b32 v55, v55, v{rest[0]}, v{rest[1]}"); rest = rest[2:]
            A(f"v_or_b32 v55, v55, v{rest[0]}")
            A("v_and_b32 v55, 0xff, v55")
            A(f"v_cmp_ne_u32 s[{M}:{M+1}], 0, v55")
            A(f"s_or_b64 s[12:13], s[12:13], s[{M}:{M+1}]")
            A.label(f"{name}_c{j}")
        A("s_mov_b64 exec, -1")
        A("s_cmp_eq_u64 s[12:13], 0")
        A(f"s_cbranch_scc1 {name}_ok")
        spin(f"{name}_rnd")
        A.label(f"{name}_ok")
    def gatherp(name, groups, raws):
        ng = len(groups)
        for j in range(ng): A(f"s_mov_b64 s[{MREG[j]}:{MREG[j]+1}], -1")
        NL = sum(len(g) for g in groups)
        def issue(rb):
            n = 0
            for j, g in enumerate(groups):
                A(f"s_or_b64 exec, s[{MREG[j]}:{MREG[j]+1}], 1")
                for (r, va, so, imm) in g:
                    A(f"buffer_load_dwordx4 v[{rb+4*n}:{rb+4*n+3}], v{va}, s[36:39], s{so} offen offset:{imm} sc1")
                    n += 1
        for rb in raws: issue(rb)
        A.label(f"{name}_rnd")
        for k, rb in enumerate(raws):
            A("s_mov_b64 s[12:13], 0")
            A(f"s_waitcnt vmcnt({(len(raws)-1)*NL})")
            n = 0
            for j, g in enumerate(groups):
                M = MREG[j]
                A(f"s_mov_b64 exec, s[{M}:{M+1}]")
                A(f"s_cbranch_execz {name}_c{k}_{j}")
                regs = []
                for (r, _, _, _) in g:
                    for e in range(4):
                        A(f"v_xor_b32 v{r+e}, s{53+e}, v{rb+4*n+e}"); regs.append(r + e)
                    n += 1
                A(f"v_or3_b32 v55, v{regs[0]}, v{regs[1]}, v{regs[2]}")
                A(f"v_or_b32 v55, v55, v{regs[3]}")
                A("v_and_b32 v55, 0xff, v55")
                A(f"v_cmp_ne_u32 s[{M}:{M+1}], 0, v55")
                A(f"s_or_b64 s[12:13], s[12:13], s[{M}:{M+1}]")
                A.label(f"{name}_c{k}_{j}")
            A("s_cmp_eq_u64 s[12:13], 0")
            A(f"s_cbranch_scc1 {name}_ok")
            if pgap: A(f"s_sleep {pgap}")
            issue(rb)
        spin(f"{name}_rnd")
        A.label(f"{name}_ok")
        A("s_mov_b64 exec, -1")
    def gatherf(name, loads, last_half=False):
        A.label(f"{name}_rnd")
        for k, (r, va, so, imm) in enumerate(loads):
            if last_half and k == len(loads) - 1:
                for e in range(4): A(f"v_mov_b32 v{r+e}, s{53+e}")
                A("s_mov_b32 exec_hi, 0")
            A(f"buffer_load_dwordx4 v[{r}:{r+3}], v{va}, s[36:39], s{so} offen offset:{imm} sc1")
        if last_half: A("s_mov_b32 exec_hi, -1")
        n = len(loads)
        for k, (r, _, _, _) in enumerate(loads):
            A(f"s_waitcnt vmcnt({n-1-k})")
            for e in range(4): A(f"v_xor_b32 v{r+e}, s{53+e}, v{r+e}")
            if k == 0: A(f"v_or_b32 v55, v{r}, v{r+1}")
            else: A(f"v_or3_b32 v55, v55, v{r}, v{r+1}")
            A(f"v_or3_b32 v55, v55, v{r+2}, v{r+3}")
        A("v_and_b32 v55, 0xff, v55")
        A("v_cmp_ne_u32 vcc, 0, v55")
        A(f"s_cbranch_vccnz {name}_re")
        post.append((f"{name}_re", f"{name}_rnd"))
    post = []; post2 = []
    def lstore(name, text):
        A(f"s_cbranch_scc0 {name}_g")
        A(text)
        A.label(f"{name}_j")
        post2.append((name, text))
    def issueK(base, so):
        for j in range(4):
            r = base + 4 * j
            A(f"buffer_load_dwordx4 v[{r}:{r+3}], v2, s[28:31], s{so} offen offset:{1024*j} {kf}")
    def issueV(base, so):
        for j in range(4):
            r = base + 16 + 4 * j
            A(f"buffer_load_dwordx4 v[{r}:{r+3}], v3, s[32:35], s{so} offen offset:{1024*j} {vf}")
    def common_setup():
        A("s_mov_b32 s60, 0x22222222"); A("s_mov_b32 s61, 0x22222222")
        A("s_mov_b32 s62, 0x44444444"); A("s_mov_b32 s63, 0x44444444")
        A("s_mov_b32 s64, 0x88888888"); A("s_mov_b32 s65, 0x88888888")
        A("s_mov_b32 s74, 0x3db504f3"); A("s_mov_b32 s75, 0x3fb8aa3b")
        A(f"s_mov_b32 s72, {SPIN}")
        A("v_mov_b32 v44, 0xffff"); A("v_mov_b32 v45, 0xffff0000")
        A("v_mov_b32 v4, 0"); A("v_mov_b32 v5, 0")
        A("v_cmp_eq_u32 vcc, 0, v47")
        A("v_cndmask_b32 v4, v4, v44, vcc")
        A("v_cndmask_b32 v4, v4, v45, s[60:61]")
        A("v_cndmask_b32 v5, v5, v44, s[62:63]")
        A("v_cndmask_b32 v5, v5, v45, s[64:65]")
        for r in range(10, 18): A(f"v_mov_b32 v{r}, 0")
        A("v_mov_b32 v18, 0xff7fffff"); A("v_mov_b32 v19, 0")
    def k32masks(b):
        A("v_bfe_u32 v51, v1, 2, 1"); A("v_cmp_eq_u32 vcc, 0, v51")
        A(f"v_cndmask_b32 v{b}, 0, v4, vcc"); A(f"v_cndmask_b32 v{b+1}, 0, v5, vcc")
        A(f"v_cndmask_b32 v{b+2}, v4, 0, vcc"); A(f"v_cndmask_b32 v{b+3}, v5, 0, vcc")
    def tags():
        A("s_add_u32 s52, s52, 0x9e3779b9")
        A("s_and_b32 s53, s52, 0xff"); A("s_bfe_u32 s54, s52, 0x80008"); A("s_bfe_u32 s55, s52, 0x80010"); A("s_lshr_b32 s56, s52, 24")
        A("s_and_b32 s57, s52, 0xffff"); A("s_lshr_b32 s58, s52, 16")
    def sum4x4():
        A("v_pk_add_f32 v[20:21], v[20:21], v[24:25]"); A("v_pk_add_f32 v[22:23], v[22:23], v[26:27]")
        A("v_pk_add_f32 v[28:29], v[28:29], v[32:33]"); A("v_pk_add_f32 v[30:31], v[30:31], v[34:35]")
        A("v_pk_add_f32 v[20:21], v[20:21], v[28:29]"); A("v_pk_add_f32 v[22:23], v[22:23], v[30:31]")
        rr4(20, 21, 22, 23)
    def sum2x4():
        A("v_pk_add_f32 v[20:21], v[20:21], v[24:25]"); A("v_pk_add_f32 v[22:23], v[22:23], v[26:27]")
        rr4(20, 21, 22, 23)
    uid = [0]
    def chunk(base, refill):
        KB, VB = base, base + 16
        uid[0] += 1; u = uid[0]
        if refill:
            A("s_cmp_ge_u32 s66, s30")
            A("s_cbranch_scc1 L_done")
            if ew < 8:
                A("s_cmp_ge_u32 s66, s101")
                A("s_cbranch_scc1 L_nodraw")
            A("s_mov_b64 exec, 1")
            A("ds_add_rtn_u32 v54, v52, v53")
            A("s_mov_b64 exec, -1")
            if ew < 8: A.label("L_nodraw")
            A("s_waitcnt vmcnt(4) lgkmcnt(0)")
            A("v_readfirstlane_b32 s71, v54")
        for j in range(4):
            A(f"v_mfma_f32_16x16x32_bf16 v[{20+4*j}:{23+4*j}], v[{KB+4*j}:{KB+4*j+3}], v[6:9], 0")
        if refill:
            if ew < 8:
                A("s_cmp_ge_u32 s66, s101")
                A("s_mov_b32 s66, s30")
                A("s_cbranch_scc1 L_go")
            A("s_add_u32 s66, s71, s59")
            A("s_cmp_ge_u32 s71, s70")
            A("s_cbranch_scc1 L_dyn")
            A.label("L_go")
            issueK(base, 66)
            A.label("L_gox")
        D = lambda j, r: 20 + 4 * (j & 3) + r
        for rho in range(4): A(f"v_cndmask_b32 v{44+rho}, v{D(rho,0)}, v{D(rho+1,1)}, s[60:61]")
        for rho in range(4): A(f"v_cndmask_b32 v{44+rho}, v{44+rho}, v{D(rho+2,2)}, s[62:63]")
        for rho in (1, 2, 3, 0): A(f"v_cndmask_b32 v{44+rho}, v{44+rho}, v{D(rho+3,3)}, s[64:65]")
        for rho in range(1, 4):
            qp = ",".join(str((q - rho) & 3) for q in range(4))
            dpp("v_add_f32", 44, 44 + rho, 44, f"quad_perm:[{qp}]")
        if noround < 1: rbf(44, 44)
        A("v_mul_f32 v44, s74, v44")
        if noround < 2: rbf(44, 44)
        A("v_mul_f32 v44, s75, v44")
        A("v_cmp_gt_f32 vcc, v44, v18")
        A(f"s_cbranch_vccz L_nors{u}")
        A("v_max_f32 v45, v44, v18")
        quad_all(45, "v_max_f32")
        rows_all(45, 46, "v_max_f32")
        A("v_sub_f32 v46, v18, v45")
        A("v_exp_f32 v46, v46")
        A("v_mov_b32 v18, v45")
        A("v_mul_f32 v19, v19, v46")
        for h in range(4): A(f"v_mov_b32_dpp v47, v46 row_newbcast:{4*h} row_mask:{hex(1<<h)} bank_mask:0xf")
        for r in range(10, 18): A(f"v_mul_f32 v{r}, v{r}, v47")
        A.label(f"L_nors{u}")
        A("v_sub_f32 v44, v44, v18")
        A("v_exp_f32 v44, v44")
        A("v_cvt_pk_bf16_f32 v45, v44, v44")
        A("v_add_f32 v19, v19, v44")
        for j in range(4):
            dpp("v_and_b32", 36 + 2 * j, 45, 4, f"quad_perm:[{j},{j},{j},{j}]")
            dpp("v_and_b32", 37 + 2 * j, 45, 5, f"quad_perm:[{j},{j},{j},{j}]")
        if refill:
            if skipoob:
                A("s_cmp_ge_u32 s66, s30")
                A("s_cbranch_scc1 L_last")
            A("s_waitcnt vmcnt(4)")
            A.label("L_pv")
        for j in range(4):
            A(f"v_mfma_f32_16x16x16_bf16 v[10:13], v[{36+2*j}:{37+2*j}], v[{VB+4*j}:{VB+4*j+1}], v[10:13]")
            A(f"v_mfma_f32_16x16x16_bf16 v[14:17], v[{36+2*j}:{37+2*j}], v[{VB+4*j+2}:{VB+4*j+3}], v[14:17]")
        if refill: issueV(base, 66)

    A("s_cmp_ge_u32 s2, 256")
    A("s_cbranch_scc1 L_exit")
    A("s_load_dwordx16 s[4:19], s[0:1], 0")
    A("s_load_dwordx8 s[20:27], s[0:1], 64")
    stamp(0)
    A("v_and_b32 v1, 63, v0")
    A("v_lshrrev_b32 v44, 6, v0")
    A("v_lshlrev_b32 v3, 4, v1")
    A("v_readfirstlane_b32 s3, v44")
    A("v_bfe_u32 v45, v1, 2, 2")
    A("v_lshrrev_b32 v46, 4, v1")
    A("v_and_b32 v47, 3, v1")
    A("v_lshlrev_b32 v2, 8, v45")
    A("v_lshl_add_u32 v2, v46, 6, v2")
    A("v_lshl_add_u32 v2, v47, 4, v2")
    A("s_lshr_b32 s77, s2, 3"); A("s_and_b32 s76, s77, 7"); A("s_and_b32 s73, s2, 7"); A("s_lshr_b32 s78, s2, 6")
    A("s_lshl3_add_u32 s79, s78, s73")
    A("s_cmp_ge_u32 s76, 4"); A(f"s_cselect_b32 s67, {D0-D1}, 0"); A(f"s_sub_u32 s67, {D0}, s67")
    A("s_cmp_eq_u32 s78, 0"); A(f"s_cselect_b32 s70, {offQ}, 0"); A(f"s_cselect_b32 s71, 0, 8"); A(f"s_sub_u32 s70, {S0}, s70")
    A(f"s_mul_i32 s71, s71, {offQ}")
    A(f"s_mul_i32 s59, s78, {8*S0-offT}"); A("s_sub_u32 s59, s59, s71")
    A("s_cmp_ge_u32 s77, 28"); A(f"s_cselect_b32 s68, {offT-offF}, {offT}")
    A("s_mul_i32 s71, s73, s70"); A("s_add_u32 s59, s59, s71")
    A("s_cmp_eq_u32 s73, 0"); A("s_cselect_b32 s71, 0, s68"); A("s_cselect_b32 s68, s68, 0")
    A("s_sub_u32 s59, s59, s71"); A("s_sub_u32 s70, s70, s68"); A(f"s_sub_u32 s70, s70, {LA}")
    A("s_lshl_b32 s59, s59, 12"); A("s_lshl_b32 s70, s70, 12")
    A("s_lshl_b32 s66, s3, 12"); A("s_add_u32 s66, s66, s59")
    A("s_lshl_b32 s71, s76, 24")
    A(f"s_mov_b32 s30, {OOB}"); A("s_mov_b32 s31, 0x20000"); A(f"s_mov_b32 s34, {OOB}"); A("s_mov_b32 s35, 0x20000")
    A("s_cmp_lt_u32 s2, 64")
    A("s_cbranch_scc1 L_qprod")
    A("s_waitcnt lgkmcnt(0)")
    A("s_add_u32 s28, s6, s71"); A("s_addc_u32 s29, s7, 0")
    A("s_add_u32 s32, s8, s71"); A("s_addc_u32 s33, s9, 0")
    A("s_load_dword s52, s[26:27], 0")
    A("s_cmp_eq_u32 s3, 0")
    A("s_cbranch_scc1 L_w0")
    A.label("L_ring")
    issueK(RA, 66); issueV(RA, 66)
    A(f"s_add_u32 s68, s66, {7*4096}")
    for k in range(NX):
        issueK(RX + 32 * k, 68); issueV(RX + 32 * k, 68)
        if k < NX - 1: A(f"s_add_u32 s68, s68, {7*4096}")
    srd(48, 4, 5, 1024)
    srd(36, 26, 27, WS_END)
    common_setup()
    A("s_waitcnt lgkmcnt(0)")
    tags()
    stamp(1)
    A("s_barrier")
    A("s_branch L_qj")
    A.label("L_qprod")
    A("v_lshrrev_b32 v44, 3, v1"); A("v_and_b32 v45, 7, v1")
    A("v_lshlrev_b32 v50, 16, v44")
    A("v_lshl_add_u32 v50, v45, 4, v50")
    A("v_lshlrev_b32 v51, 4, v44")
    A("s_lshl_b32 s68, s2, 7"); A("s_lshl_b32 s73, s3, 19"); A("s_add_u32 s68, s68, s73")
    A("s_lshl_b32 s73, s3, 7")
    A("s_mov_b32 s50, 1024"); A("s_mov_b32 s51, 0x20000"); A(f"s_mov_b32 s42, {4<<20}"); A("s_mov_b32 s43, 0x20000")
    for i in range(1, 8): A(f"v_add_u32 v{35+i}, {8192*i}, v50")
    A("s_waitcnt lgkmcnt(0)")
    A("s_mov_b32 s48, s4"); A("s_mov_b32 s49, s5"); A("s_mov_b32 s40, s10"); A("s_mov_b32 s41, s11")
    A("buffer_load_dwordx4 v[52:55], v3, s[48:51], 0 offen")
    A("buffer_load_dwordx4 v[32:35], v51, s[48:51], s73 offen")
    for i in range(8):
        va = 50 if i == 0 else 35 + i
        A(f"buffer_load_dwordx4 v[{RA+4*i}:{RA+4*i+3}], v{va}, s[40:43], s68 offen {wf}")
    A("s_load_dword s52, s[26:27], 0")
    A("s_add_u32 s28, s6, s71"); A("s_addc_u32 s29, s7, 0")
    A("s_add_u32 s32, s8, s71"); A("s_addc_u32 s33, s9, 0")
    A("s_cmp_lg_u32 s3, 0"); A("s_cbranch_scc1 L_nz")
    A("s_cmp_ge_u32 s79, 4"); A("s_cbranch_scc1 L_nz")
    A("s_lshl3_add_u32 s73, s79, s76")
    A(f"s_mul_i32 s73, s73, {cstride}"); A(f"s_add_u32 s73, s73, {CBUF}")
    A("v_mov_b32 v49, s73"); A("v_mov_b32 v48, 0")
    A("s_mov_b64 exec, 1")
    A("global_store_dword v49, v48, s[26:27] sc1")
    A("s_mov_b64 exec, -1")
    A.label("L_nz")
    A("v_lshrrev_b32 v49, 5, v1"); A("v_and_b32 v44, 1, v46")
    A("v_lshlrev_b32 v48, 8, v49"); A("v_lshl_add_u32 v48, v45, 5, v48"); A("v_lshl_add_u32 v48, v44, 4, v48")
    A("s_lshl_b32 s73, s3, 9"); A("v_add_u32 v48, s73, v48")
    common_setup()
    k32masks(6)
    A("s_waitcnt vmcnt(8)")
    for k in range(4):
        A(f"v_lshlrev_b32 v{36+2*k}, 16, v{52+k}")
        A(f"v_and_b32 v{37+2*k}, 0xffff0000, v{52+k}")
    for k in range(4):
        A(f"v_lshlrev_b32 v{20+2*k}, 16, v{32+k}")
        A(f"v_and_b32 v{21+2*k}, 0xffff0000, v{32+k}")
    ln_stats(list(range(36, 44)), 44, 45, 51)
    for k in range(8): A(f"v_sub_f32 v{20+k}, v{20+k}, v44")
    for k in range(8): rbf(20 + k, 20 + k)
    for k in range(8): A(f"v_mul_f32 v{20+k}, v{20+k}, v45")
    for k in range(8): A(f"v_cvt_pk_bf16_f32 v{20+k}, v{20+k}, v{20+k}")
    for i in range(8):
        for r in range(4): A(f"v_and_b32 v{RX+4*i+r}, v{20+i}, v{6+r}")
    A("s_waitcnt vmcnt(0)")
    for i in range(8):
        c = "0" if i == 0 else "v[28:31]"
        A(f"v_mfma_f32_16x16x32_bf16 v[28:31], v[{RX+4*i}:{RX+4*i+3}], v[{RA+4*i}:{RA+4*i+3}], {c}")
    A("s_mov_b32 exec_lo, 0x00ff00ff"); A("s_mov_b32 exec_hi, 0xff00ff00")
    A(f"ds_write_b128 v48, v[28:31] offset:{L_RED}")
    A("s_mov_b64 exec, -1")
    A("s_waitcnt lgkmcnt(0)")
    A("s_barrier")
    A("s_cmp_lg_u32 s3, 0")
    A("s_cbranch_scc1 L_ring")
    A("s_setprio 3")
    A("v_and_b32 v50, 15, v1"); A("v_lshlrev_b32 v49, 10, v46"); A("v_lshl_add_u32 v49, v50, 4, v49")
    for k in range(4): A(f"ds_read_b128 v[{20+4*k}:{23+4*k}], v49 offset:{L_RED+256*k}")
    srd(36, 26, 27, WS_END)
    tags()
    A("v_and_b32 v45, 1, v46"); A("v_lshlrev_b32 v45, 1, v45"); A("v_lshrrev_b32 v44, 1, v46"); A("v_or_b32 v45, v45, v44")
    A("v_lshl_add_u32 v45, v50, 2, v45"); A("v_lshlrev_b32 v45, 2, v45")
    A("v_mov_b32 v49, s57"); A("v_mov_b32 v51, s58")
    A("v_cmp_eq_u32 vcc, 0, v44")
    A("v_cndmask_b32 v49, v51, v49, vcc")
    A("s_lshl_b32 s71, s2, 8"); A(f"s_add_u32 s71, s71, {QBUF}")
    A("s_waitcnt lgkmcnt(0)")
    sum4x4()
    rbf(20, 20)
    A("v_or_b32 v20, v20, v49")
    A("buffer_store_dword v20, v45, s[36:39], s71 offen sc1")
    stamp(2)
    A("s_branch L_w0b")
    A.label("L_w0")
    A("s_setprio 3")
    srd(48, 4, 5, 1024)
    srd(36, 26, 27, WS_END)
    common_setup()
    A("s_waitcnt lgkmcnt(0)")
    tags()
    A.label("L_w0b")
    A(f"v_mov_b32 v52, {L_TK}"); A(f"v_mov_b32 v48, {(8+7*NX)*4096}")
    A("ds_write_b32 v52, v48")
    for r in range(4): A(f"v_mov_b32 v{24+r}, -1")
    A(f"ds_write_b128 v3, v[24:27] offset:{L_TB}")
    A(f"ds_write_b128 v3, v[24:27] offset:{L_TB+1024}")
    A("s_add_u32 s73, s59, s70")
    A("v_lshlrev_b32 v28, 12, v1"); A("v_add_u32 v28, s73, v28"); A("v_lshlrev_b32 v29, 2, v1")
    A("v_cmp_eq_u32 vcc, 0, v1"); A("v_addc_co_u32 v28, vcc, 0, v28, vcc")
    A(f"s_mov_b64 exec, {(1 << LA) - 1}")
    A(f"ds_write_b32 v29, v28 offset:{L_TB}")
    A("s_mov_b64 exec, -1")
    A("v_lshlrev_b32 v44, 1, v2")
    A("s_lshl_b32 s71, s76, 11"); A(f"s_add_u32 s71, s71, {QBUF}")
    A("s_add_u32 s14, s26, s71"); A("s_addc_u32 s15, s27, 0")
    A.label("L_qhint")
    for k in range(8): A(f"s_load_dword s{40+k}, s[14:15], {256*k} glc")
    A("s_waitcnt lgkmcnt(0)")
    for k in range(8): A(f"s_xor_b32 s{40+k}, s{40+k}, s57")
    for k in range(1, 8): A(f"s_or_b32 s40, s40, s{40+k}")
    A("s_and_b32 s40, s40, 0xffff")
    A("s_cbranch_scc0 L_qpoll")
    spin("L_qhint", qslp)
    A.label("L_qpoll")
    A("buffer_load_dwordx4 v[20:23], v44, s[36:39], s71 offen sc1")
    A("buffer_load_dwordx4 v[24:27], v44, s[36:39], s71 offen offset:16 sc1")
    A("s_mov_b32 s73, 0x07060302")
    A("s_waitcnt vmcnt(0)")
    for e in range(8): A(f"v_xor_b32 v{20+e}, s{57+(e&1)}, v{20+e}")
    A("v_or3_b32 v45, v20, v21, v22"); A("v_or3_b32 v45, v45, v23, v24"); A("v_or3_b32 v45, v45, v25, v26"); A("v_or_b32 v45, v45, v27")
    A("v_and_b32 v45, 0xffff, v45")
    A("v_cmp_ne_u32 vcc, 0, v45")
    A("s_cbranch_vccz L_q_ok")
    spin("L_qpoll")
    A.label("L_q_ok")
    for k in range(4): A(f"v_perm_b32 v{6+k}, v{21+2*k}, v{20+2*k}, s73")
    A(f"ds_write_b128 v3, v[6:9] offset:{L_QF}")
    A("s_waitcnt lgkmcnt(0)")
    stamp(1)
    A("s_barrier")
    issueK(RA, 66); issueV(RA, 66)
    A("s_setprio 0")
    A.label("L_qj")
    A(f"ds_read_b128 v[6:9], v3 offset:{L_QF}")
    A(f"v_mov_b32 v52, {L_TK}"); A("v_mov_b32 v53, 4096")
    A("s_mov_b32 s69, 3")
    A(f"s_mul_i32 s58, s77, {cstride}"); A(f"s_add_u32 s58, s58, {CBUF}")
    A("s_sub_u32 s57, 4, s78"); A("s_mul_i32 s57, s57, s67"); A("s_sub_u32 s57, 4096, s57"); A("s_lshl_b32 s57, s57, 12")
    if ew < 8:
        A(f"s_sub_u32 s101, s67, {ewx}"); A("s_lshl_b32 s101, s101, 12"); A("s_add_u32 s101, s101, s57")
        A(f"s_cmp_ge_u32 s3, {ew}"); A("s_cselect_b32 s101, s101, -1")
    stamp(3)
    A.label("L_loop")
    chunk(RA, True)
    A("s_cmp_lg_u32 s69, 3")
    A("s_cbranch_scc1 L_loop")
    A("s_mov_b32 s69, 0")
    A("s_cmp_eq_u32 s3, 0")
    A("s_cbranch_scc1 L_setup")
    A("s_waitcnt vmcnt(8)")
    for k in range(NX): chunk(RX + 32 * k, False)
    A.label("L_setup")
    A("v_lshrrev_b32 v46, 4, v1"); A("v_and_b32 v47, 3, v1"); A("v_bfe_u32 v45, v1, 2, 2"); A("v_and_b32 v50, 15, v1")
    A("v_and_b32 v48, 1, v46"); A("v_lshlrev_b32 v48, 1, v48"); A("v_lshrrev_b32 v49, 1, v46"); A("v_or_b32 v48, v48, v49")
    A("s_lshl_b32 s71, s3, 11"); A(f"v_lshlrev_b32 v{TC}, 5, v1"); A(f"v_add_u32 v{TC}, s71, v{TC}")
    A("s_lshl_b32 s71, s3, 3"); A(f"v_lshlrev_b32 v{TC+1}, 6, v45"); A(f"v_add_u32 v{TC+1}, s71, v{TC+1}")
    A(f"v_lshrrev_b32 v{TC+2}, 1, v{TC+1}")
    A("s_lshl_b32 s71, s3, 8"); A(f"v_lshlrev_b32 v{TC+3}, 12, v46"); A(f"v_lshl_add_u32 v{TC+3}, v50, 4, v{TC+3}"); A(f"v_add_u32 v{TC+3}, s71, v{TC+3}")
    A("s_lshr_b32 s71, s3, 1"); A("s_lshl_b32 s73, s71, 6"); A(f"v_lshlrev_b32 v{TC+4}, 4, v46"); A(f"v_add_u32 v{TC+4}, s73, v{TC+4}")
    A("s_lshl_b32 s73, s71, 5"); A(f"v_mov_b32 v{TC+5}, s73")
    A(f"v_lshl_add_u32 v{TC+6}, v50, 2, v48"); A(f"v_lshlrev_b32 v{TC+6}, 2, v{TC+6}")
    A(f"v_lshlrev_b32 v{TC+7}, 3, v48"); A(f"v_lshrrev_b32 v{TC+7}, v{TC+7}, s52"); A(f"v_and_b32 v{TC+7}, 0xff, v{TC+7}")
    A("s_lshl_b32 s0, s76, 16"); A("s_lshl_b32 s73, s79, 11"); A("s_add_u32 s0, s0, s73")
    A("s_lshl_b32 s73, s3, 8"); A("s_add_u32 s0, s0, s73"); A(f"s_add_u32 s0, s0, {OBUF}")
    A("s_lshr_b32 s73, s3, 1"); A("s_lshl2_add_u32 s1, s76, s73"); A("s_lshl_b32 s1, s1, 5"); A("s_add_u32 s1, s1, s79")
    A(f"s_lshl_b32 s1, s1, {mlsh}"); A(f"s_add_u32 s1, s1, {MLBUF}")
    A(f"v_lshlrev_b32 v{TC+10}, 2, v1")
    A(f"v_lshlrev_b32 v{TC+27}, 3, v47"); A(f"v_lshrrev_b32 v{TC+27}, v{TC+27}, s52"); A(f"v_and_b32 v{TC+27}, 0xff, v{TC+27}")
    if opre is not None:
        A(f"buffer_load_dword v44, v{TC+10}, s[36:39], s0 offen {opre}")
        A("s_mov_b64 exec, 1")
        A(f"buffer_load_dword v45, v3, s[36:39], s1 offen {opre}")
        A("s_mov_b64 exec, -1")
        A("s_waitcnt vmcnt(0)")
    A("s_and_b32 s71, s2, 7")
    A("s_cbranch_scc1 L_loop")
    A("s_mov_b32 s69, 2")
    A("s_getreg_b32 s78, hwreg(HW_REG_XCC_ID, 0, 4)"); A("s_lshl_b32 s78, s78, 8")
    A("s_cmp_lg_u32 s3, 0"); A("s_cbranch_scc1 L_nox")
    A("s_or_b32 s71, s78, s53")
    A("v_mov_b32 v20, s71"); A("v_mov_b32 v21, s54"); A("v_mov_b32 v22, s55"); A("v_mov_b32 v23, s56")

    A("s_lshl_b32 s71, s77, 4"); A(f"s_add_u32 s71, s71, {XBUF}")
    A("s_mov_b64 exec, 1")
    A("buffer_store_dwordx4 v[20:23], v3, s[36:39], s71 offen sc1")
    A("s_mov_b64 exec, -1")
    A.label("L_nox")
    srd(40, 12, 13, 4 << 20)
    A("s_lshr_b32 s68, s77, 1")
    A("s_lshl_b32 s71, s68, 18"); A("s_lshr_b32 s73, s3, 1"); A("s_lshl_b32 s73, s73, 16"); A("s_add_u32 s71, s71, s73")
    A("s_and_b32 s73, s3, 1"); A("s_lshl_b32 s73, s73, 10"); A("s_add_u32 s71, s71, s73")
    A("s_and_b32 s73, s77, 1"); A("s_lshl_b32 s73, s73, 9"); A("s_add_u32 s71, s71, s73")
    A("v_lshlrev_b32 v44, 4, v50"); A("v_lshl_add_u32 v45, v48, 13, v44"); A("v_lshl_add_u32 v44, v48, 11, v44")
    for jl in range(2):
        for half in range(2):
            for jh in range(2):
                for c2 in range(2):
                    r = WO + 8 * (4 * c2 + 2 * jh + jl) + 4 * half
                    A(f"buffer_load_dwordx4 v[{r}:{r+3}], v45, s[40:43], s71 offen offset:{2048*jh+256*c2} {wf}")
            if (jl, half) != (1, 1): A(f"s_add_u32 s71, s71, {4096 if half == 0 else 32768-4096}")
    A(f"v_lshrrev_b32 v51, 1, v{TC+6}"); A("s_lshl_b32 s71, s3, 7")
    A(f"buffer_load_ushort v{TC+13}, v51, s[48:51], s71 offen")
    A("v_and_b32 v51, 7, v1"); A("v_and_b32 v45, 1, v46"); A("v_lshrrev_b32 v49, 5, v1")
    A(f"v_lshrrev_b32 v{TC+9}, 3, v1")
    A(f"v_lshlrev_b32 v{TC+8}, 13, v{TC+9}"); A(f"v_lshl_add_u32 v{TC+8}, v51, 4, v{TC+8}")
    A(f"v_lshl_add_u32 v{TC+9}, v{TC+9}, 2, v47"); A(f"v_lshlrev_b32 v{TC+9}, {mlsh}, v{TC+9}")
    A(f"v_lshlrev_b32 v{TC+24}, 4, v45"); A(f"v_lshl_add_u32 v{TC+24}, v50, 5, v{TC+24}")
    A(f"v_lshl_add_u32 v{TC+11}, v49, 9, v{TC+24}"); A("s_lshl_b32 s71, s3, 10"); A(f"v_add_u32 v{TC+11}, s71, v{TC+11}")
    A(f"v_lshlrev_b32 v{TC+14}, 11, v46"); A(f"v_lshl_add_u32 v{TC+14}, v50, 4, v{TC+14}")
    A(f"v_lshrrev_b32 v{TC+12}, 3, v1"); A(f"v_lshlrev_b32 v{TC+12}, 10, v{TC+12}"); A(f"v_lshl_add_u32 v{TC+12}, v51, 4, v{TC+12}"); A("s_lshl_b32 s71, s3, 7"); A(f"v_add_u32 v{TC+12}, s71, v{TC+12}")
    A(f"v_lshlrev_b32 v{TC+15}, 11, v50")
    A("s_lshl_b32 s71, s3, 4"); A(f"v_lshlrev_b32 v{TC+20}, 3, v49"); A(f"v_add_u32 v{TC+20}, s71, v{TC+20}"); A(f"v_lshlrev_b32 v{TC+21}, 4, v51")
    A("v_bfe_u32 v49, v1, 3, 1")
    A(f"v_lshlrev_b32 v{TC+23}, 11, v46"); A(f"v_lshl_add_u32 v{TC+23}, v49, 8, v{TC+23}"); A(f"v_lshl_add_u32 v{TC+23}, v51, 4, v{TC+23}")
    A("s_lshr_b32 s71, s3, 2"); A("s_lshl_b32 s71, s71, 7"); A(f"v_add_u32 v{TC+23}, s71, v{TC+23}")
    A("s_lshl_b32 s71, s3, 13"); A(f"s_add_u32 s71, s71, {L_WD}"); A(f"v_add_u32 v{TC+26}, s71, v3")
    A("s_mov_b32 m0, s71")
    A(f"v_lshrrev_b32 v{TC+22}, 2, v1"); A(f"v_lshlrev_b32 v{TC+22}, 11, v{TC+22}"); A(f"v_lshl_add_u32 v{TC+22}, v47, 4, v{TC+22}")
    A(f"v_lshrrev_b32 v{TC+25}, 1, v{TC+6}"); A("s_lshl_b32 s71, s3, 7"); A(f"v_add_u32 v{TC+25}, s71, v{TC+25}")
    srd(44, 22, 23, 1024)
    A("s_cmp_ge_u32 s77, 28")
    A("s_cbranch_scc1 L_suj")
    A("s_mov_b32 s69, 1")
    A("s_lshl_b32 s71, s3, 6"); A("v_lshl_add_u32 v45, v48, 1, s71")
    A("v_mul_u32_u24 v45, 3584, v45"); A("v_lshl_add_u32 v45, v51, 4, v45"); A("s_lshl_b32 s71, s77, 7"); A("v_add_u32 v45, s71, v45")
    A("v_cmp_eq_u32 vcc, 0, v49")
    A("v_mov_b32 v20, s16"); A("v_mov_b32 v21, s18"); A("v_cndmask_b32 v20, v21, v20, vcc")
    A("v_mov_b32 v21, s17"); A("v_mov_b32 v22, s19"); A("v_cndmask_b32 v21, v22, v21, vcc")
    A("v_add_co_u32 v20, vcc, v20, v45"); A("v_addc_co_u32 v21, vcc, 0, v21, vcc")
    for i in range(8):
        for half in range(2):
            A(f"global_load_dwordx4 v[{WGU+8*i+4*half}:{WGU+8*i+4*half+3}], v[20:21], off offset:{3584*half} {wf}")
        if i < 7: A(f"v_add_co_u32 v20, vcc, {8*3584}, v20"); A("v_addc_co_u32 v21, vcc, 0, v21, vcc")
    srd(40, 20, 21, 1792 * 1024)
    A("s_lshl_b32 s71, s77, 16"); A("s_lshr_b32 s73, s3, 2"); A("s_lshl_b32 s73, s73, 15"); A("s_add_u32 s71, s71, s73")
    A("s_and_b32 s73, s3, 3"); A("s_lshl_b32 s73, s73, 8"); A("s_add_u32 s71, s71, s73")
    for i in range(8):
        A(f"buffer_load_dwordx4 v44, s[40:43], s71 offen {wf} lds")
        if i < 7: A(f"s_add_u32 s71, s71, {1024 if i % 2 == 0 else 7168}"); A("s_add_u32 m0, m0, 1024")
    A.label("L_suj")
    A("s_lshl_b32 s22, s77, 6"); A(f"s_add_u32 s22, s22, {YBUF}")
    A("s_add_u32 s23, s22, 32768"); A("s_add_u32 s24, s22, 65536"); A("s_add_u32 s25, s22, 98304")
    A("s_lshr_b32 s16, s68, 1"); A("s_lshl_b32 s16, s16, 16"); A("s_and_b32 s71, s68, 1"); A("s_lshl_b32 s71, s71, 10"); A("s_add_u32 s16, s16, s71")
    A("s_lshl_b32 s71, s3, 7"); A("s_add_u32 s16, s16, s71"); A(f"s_add_u32 s16, s16, {OBUF}")
    A("s_add_u32 s17, s16, 4096")
    A("s_lshr_b32 s71, s3, 2"); A("s_lshl1_add_u32 s20, s68, s71"); A(f"s_lshl_b32 s20, s20, {5+mlsh}"); A(f"s_add_u32 s20, s20, {MLBUF}")
    A("s_lshl_b32 s21, s77, 10"); A("s_lshl_b32 s73, s3, 7"); A("s_add_u32 s21, s21, s73"); A(f"s_add_u32 s21, s21, {HBUF}")
    A("s_lshl_b32 s18, s77, 12"); A("s_lshl_b32 s71, s3, 9"); A("s_add_u32 s18, s18, s71"); A(f"s_add_u32 s18, s18, {YBUF}")
    A("s_lshr_b32 s68, s77, 2")
    A("s_branch L_loop")

    A.label("L_dyn")
    A("s_sub_u32 s73, s71, s70"); A("s_lshr_b32 s73, s73, 10")
    A("v_mov_b32 v48, s73")
    A.label("L_dynw")
    A(f"ds_read_b32 v49, v48 offset:{L_TB}")
    A("s_waitcnt lgkmcnt(0)")
    A("v_readfirstlane_b32 s66, v49")
    A("s_cmp_lg_u32 s66, -1")
    A("s_cbranch_scc1 L_dyng")
    spin("L_dynw")
    A.label("L_dyng")
    if t1:
        A("s_cmp_eq_u32 s66, 2")
        A("s_cbranch_scc1 L_self")
    if skipoob:
        A("s_cmp_ge_u32 s66, s30")
        A("s_cbranch_scc1 L_gox")
    A("s_bitcmp1_b32 s66, 0")
    A("s_cbranch_scc0 L_go")
    A("s_and_b32 s66, s66, -2")
    A("s_max_u32 s71, s66, s57"); A("s_sub_u32 s71, s71, s57"); A("s_lshr_b32 s71, s71, 12"); A("s_sub_u32 s71, s67, s71")
    if tT:
        A("s_and_b32 s14, s2, 7"); A(f"s_cselect_b32 s14, 0, {tT}")
        A("s_cmp_gt_u32 s71, s14")
        A("s_cbranch_scc1 L_dynt")
        A("v_lshl_add_u32 v48, v1, 2, v48")
        A("v_mov_b32 v51, s30")
        A(f"ds_write_b32 v48, v51 offset:{L_TB+4*LA}")
        A("s_branch L_go")
        A.label("L_dynt")
    A(f"s_cmp_gt_u32 s71, {t4}"); A("s_cselect_b32 s15, 4, 2")
    A(f"s_cmp_gt_u32 s71, {t8}"); A(f"s_cselect_b32 s15, {b0}, s15")
    A("s_mov_b32 s14, s15")
    A("s_atomic_add s14, s[26:27], s58 glc")
    A("v_lshl_add_u32 v48, v1, 2, v48")
    A(f"s_sub_u32 s73, s15, {LA}")
    A("s_waitcnt lgkmcnt(0)")
    A("v_add_u32 v49, s14, v1")
    A("v_lshlrev_b32 v50, 12, v49"); A("v_add_u32 v50, s57, v50")
    A("s_add_u32 s14, s14, s15")
    A("s_cmp_ge_u32 s14, s67")
    A("s_cbranch_scc1 L_dynx")
    if t1:
        A(f"s_add_u32 s14, s14, {t1}")
        A("s_cmp_ge_u32 s14, s67")
        A("s_cbranch_scc1 L_dyns")
    A("v_cmp_eq_u32 vcc, s73, v1"); A("v_addc_co_u32 v50, vcc, 0, v50, vcc")
    A("v_cmp_gt_u32 vcc, s15, v1")
    A("s_mov_b64 exec, vcc")
    A(f"ds_write_b32 v48, v50 offset:{L_TB+4*LA}")
    A("s_mov_b64 exec, -1")
    A("s_branch L_go")
    A.label("L_dynx")
    A("v_mov_b32 v51, s30")
    A("v_cmp_gt_u32 vcc, s67, v49")
    A("v_cndmask_b32 v50, v51, v50, vcc")
    A(f"ds_write_b32 v48, v50 offset:{L_TB+4*LA}")
    A("s_branch L_go")
    if t1:
        A.label("L_dyns")
        A("v_cmp_gt_u32 vcc, s15, v1")
        A("v_cndmask_b32 v50, 2, v50, vcc")
        A(f"ds_write_b32 v48, v50 offset:{L_TB+4*LA}")
        A("s_branch L_go")
        A.label("L_self")
        A("s_mov_b32 s14, 1")
        A("s_atomic_add s14, s[26:27], s58 glc")
        A("v_lshl_add_u32 v48, v1, 2, v48")
        A("v_mov_b32 v51, s30")
        A("s_waitcnt lgkmcnt(0)")
        A("s_lshl_b32 s66, s14, 12"); A("s_add_u32 s66, s66, s57")
        A("s_cmp_lt_u32 s14, s67")
        A("s_cbranch_scc1 L_go")
        A("s_mov_b32 s66, s30")
        A(f"ds_write_b32 v48, v51 offset:{L_TB+4}")
        A("s_branch L_go")

    def lred():
        quad_all(19, "v_add_f32")
        A(f"ds_write_b32 v{TC+2}, v18 offset:{L_MX}")
        rows_all(19, 49, "v_add_f32")
        A(f"ds_write_b64 v{TC+1}, v[18:19] offset:{L_ML}")
    A.label("L_done")
    A("s_cmp_eq_u32 s69, 3")
    A("s_cbranch_scc1 L_end")
    lred()
    if skipoob:
        A("s_branch L_done2")
        A.label("L_first")
        A("s_waitcnt vmcnt(0)")
        A("s_branch L_pv")
        A.label("L_last")
        A("s_cmp_eq_u32 s69, 3")
        A("s_cbranch_scc1 L_first")
        lred()
        A("s_waitcnt vmcnt(0)")
        VB = RA + 16
        for j in range(4):
            A(f"v_mfma_f32_16x16x16_bf16 v[10:13], v[{36+2*j}:{37+2*j}], v[{VB+4*j}:{VB+4*j+1}], v[10:13]")
            A(f"v_mfma_f32_16x16x16_bf16 v[14:17], v[{36+2*j}:{37+2*j}], v[{VB+4*j+2}:{VB+4*j+3}], v[14:17]")
        A.label("L_done2")
    stamp(4)
    if cut == 1: A("s_branch L_end")
    A("s_mov_b32 s73, 0xffffff00")
    A("v_mov_b32 v38, s55"); A("v_mov_b32 v39, s56")
    A(f"ds_write_b128 v{TC}, v[10:13] offset:{L_OM}")
    A(f"ds_write_b128 v{TC}, v[14:17] offset:{L_OM+16}")
    A("s_waitcnt lgkmcnt(0)")
    A("s_barrier")
    stamp(5)
    A(f"ds_read_b128 v[20:23], v{TC+5} offset:{L_MX}")
    A(f"ds_read_b128 v[24:27], v{TC+5} offset:{L_MX+16}")
    A(f"ds_read_b128 v[28:31], v{TC+4} offset:{L_ML}")
    A(f"ds_read_b128 v[10:13], v{TC+3} offset:{L_OM}")
    A(f"ds_read_b128 v[14:17], v{TC+3} offset:{L_OM+2048}")
    A("s_waitcnt lgkmcnt(3)")
    A("v_max3_f32 v36, v20, v21, v22"); A("v_max3_f32 v37, v23, v24, v25"); A("v_max3_f32 v36, v36, v26, v27"); A("v_max_f32 v36, v36, v37")
    A("v_and_b32 v36, s73, v36")
    A("s_waitcnt lgkmcnt(2)")
    A("v_sub_f32 v28, v28, v36"); A("v_sub_f32 v30, v30, v36")
    A("v_exp_f32 v28, v28"); A("v_exp_f32 v30, v30")
    A("v_or_b32 v36, s53, v36")
    A("v_mul_f32 v37, v28, v29")
    A("v_fmac_f32 v37, v30, v31")
    A("s_waitcnt lgkmcnt(0)")
    A("v_mov_b32 v49, v37")
    for r in range(4): A(f"v_mul_f32 v{10+r}, v{10+r}, v28")
    A("v_permlane32_swap_b32 v37, v49")
    for r in range(2): A(f"v_fmac_f32 v{10+r}, v{14+r}, v30")
    A("v_add_f32 v37, v37, v49")
    for r in range(2, 4): A(f"v_fmac_f32 v{10+r}, v{14+r}, v30")
    A("v_mov_b32 v49, v37")
    A("v_permlane32_swap_b32 v10, v11")
    A("v_permlane32_swap_b32 v12, v13")
    A("v_add_f32 v10, v10, v11")
    A("v_add_f32 v12, v12, v13")
    A("v_permlane16_swap_b32 v37, v49")
    A("v_add_f32 v37, v37, v49")
    A("v_permlane16_swap_b32 v10, v12")
    A("v_add_f32 v10, v10, v12")
    A(f"v_and_or_b32 v10, v10, s73, v{TC+27}")
    A(f"buffer_store_dword v10, v{TC+10}, s[36:39], s0 offen {osf}")
    A("s_bitcmp1_b32 s3, 0")
    A("s_cbranch_scc1 L_mj")
    A("v_and_b32 v37, s73, v37"); A("v_or_b32 v37, s54, v37")
    A("s_mov_b64 exec, 1")
    A(f"buffer_store_dwordx4 v[36:39], v3, s[36:39], s1 offen {osf}")
    A("s_mov_b64 exec, -1")
    A.label("L_mj")
    stamp(6)
    A("s_cmp_eq_u32 s69, 0")
    A("s_cbranch_scc1 L_end")
    A("v_and_b32 v54, 0x1f0, v3")
    A(f"buffer_load_dwordx4 v[40:43], v54, s[36:39], 0 offen offset:{XBUF} sc1")
    if codepf:
        A("s_getpc_b64 s[12:13]")
        A.label("L_pcref")
        A("s_lshl_b32 s71, s3, 9"); A("s_add_u32 s12, s12, s71"); A("s_addc_u32 s13, s13, 0")
        A(f"v_lshlrev_b32 v48, 3, v1")
        A("global_load_dwordx2 v[44:45], v48, s[12:13]")
    if outpf:
        A("buffer_load_dword v44, v3, s[44:47], 0 offen")
    if pretouch:
        A("s_lshl_b32 s71, s3, 5"); A("s_add_u32 s71, s71, s77")
        A("s_cmp_ge_u32 s71, 144")
        A("s_cbranch_scc1 L_nopt")
        A("s_lshl_b32 s71, s71, 10"); A(f"s_add_u32 s71, s71, {HBUF}")
        A("buffer_load_dwordx4 v[44:47], v3, s[36:39], s71 offen sc1")
        A.label("L_nopt")
    A("s_lshl_b32 s60, s3, 8"); A(f"s_add_u32 s60, s60, {HBUF}")
    A("s_add_u32 s61, s60, 8192"); A("s_add_u32 s62, s60, 16384"); A("s_add_u32 s63, s60, 24576")
    OB = RA
    A("s_waitcnt vmcnt(0)")
    A.label("L_xchk")
    for k in range(4): A(f"v_xor_b32 v{40+k}, s{53+k}, v{40+k}")
    A("v_or3_b32 v55, v41, v42, v43")
    A("v_and_b32 v53, 0xff, v40"); A("v_or_b32 v55, v55, v53")
    A("v_cmp_ne_u32 vcc, 0, v55")
    A("s_cbranch_vccz L_xok")
    A(f"buffer_load_dwordx4 v[40:43], v54, s[36:39], 0 offen offset:{XBUF} sc1")
    A("s_waitcnt vmcnt(0)")
    spin("L_xchk")
    A.label("L_xok")
    A("v_cmp_ne_u32 vcc, s78, v40")
    A("s_mov_b32 s64, 0")
    if local:
        A("s_cbranch_vccnz L_xg")
        A("s_mov_b32 s64, 1")
        A.label("L_xg")
    A(f"v_lshlrev_b32 v{TC+13}, 16, v{TC+13}")
    for i in range(8):
        r = WDR[i >> 1] + 4 * (i & 1)
        A(f"ds_read_b128 v[{r}:{r+3}], v{TC+26} offset:{1024*i}")
    for F in FS:
        for r in range(4): A(f"v_mov_b32 v{F+r}, 0")
    for r in range(10, 18): A(f"v_mov_b32 v{r}, 0")
    A("v_and_b32 v4, 3, v1"); A("v_mul_u32_u24 v4, 0x5555, v4")
    OG = [(OB + 4 * j, TC + 8, 16 + (j >> 1), 2048 * (j & 1)) for j in range(4)]
    A.label("L_h1pre")
    A(f"buffer_load_dword v23, v{TC+9}, s[36:39], s20 offen offset:12 sc1")
    A("s_waitcnt vmcnt(0)")
    A("v_cmp_eq_u32 vcc, s56, v23")
    A("s_bcnt1_i32_b64 s71, vcc")
    A(f"s_cmp_ge_u32 s71, {2*thr1}")
    A("s_cbranch_scc1 L_h1go")
    spin("L_h1pre", slp1)
    A.label("L_h1go")
    gather("L_h1", [[(20, TC + 9, 20, 0)]] + [[g] for g in OG])
    stamp(7)
    dpp("v_max_f32", 22, 20, 20, "quad_perm:[1,0,3,2]")
    for ctl in ("quad_perm:[2,3,0,1]", "row_ror:8"): dpp("v_max_f32", 22, 22, 22, ctl)
    rows_all(22, 23, "v_max_f32")
    A("v_sub_f32 v20, v20, v22")
    A("v_exp_f32 v20, v20")
    A("v_mul_f32 v21, v20, v21")
    fm = []
    for j in range(4):
        for r in range(4):
            op = "v_mul_f32" if j == 0 else "v_fmac_f32"
            fm.append(f"{op}_dpp v{24+r}, v20, v{OB+4*j+r} quad_perm:[{j},{j},{j},{j}] {DPPF}")
    lr = [f"v_add_f32_dpp v21, v21, v21 {c} {DPPF}" for c in ("quad_perm:[1,0,3,2]", "quad_perm:[2,3,0,1]", "row_ror:8")]
    lr += ["v_mov_b32 v22, v21", "v_permlane32_swap_b32 v21, v22", "v_add_f32 v21, v21, v22\nv_mov_b32 v22, v21"]
    for k in range(len(fm)):
        A(fm[k])
        if k % 2 == 1 and k >= 1 and lr: A(lr.pop(0))
    assert not lr
    A("v_permlane16_swap_b32 v21, v22")
    A("v_add_f32 v21, v21, v22")
    A("v_permlane32_swap_b32 v24, v25")
    A("v_permlane32_swap_b32 v26, v27")
    A("v_add_f32 v24, v24, v25")
    A("v_add_f32 v26, v26, v27")
    A("v_rcp_f32 v21, v21")
    A("v_permlane16_swap_b32 v24, v26")
    A("v_add_f32 v24, v24, v26")
    dpp("v_add_f32", 24, 24, 24, "row_ror:8")
    A("v_mul_f32 v20, v24, v21")
    rbf(20, 20)
    def frag(j, src):
        F = FS[j % 3]
        for r in range(4):
            A(f"v_mov_b32_dpp v{F+r}, v{src} row_newbcast:{2*j+(r>>1)} row_mask:0xf bank_mask:{'0x5' if r % 2 == 0 else '0xa'}")
        return F
    def frag2(j):
        F = FS[j % 3]
        for r in range(4):
            q = 2 * j + (r >> 1); second = r & 1
            src, p = (20, q & 3) if (q >> 2) == second else (21, 3 - (q & 3))
            A(f"v_mov_b32_dpp v{F+r}, v{src} quad_perm:[{p},{p},{p},{p}] row_mask:0xf bank_mask:{'0xa' if second else '0x5'}")
        return F
    def gemv16(W, red, pair=True):
        fr = frag2 if pair else (lambda i: frag(i, 20))
        if pair: A(f"v_mov_b32_dpp v21, v20 row_half_mirror {DPPF}")
        Fs = {0: fr(0)}
        for j in range(4):
            if j < 3: Fs[j + 1] = fr(j + 1)
            for v in range(2):
                acc = 10 + 4 * v; b = W + 8 * (4 * v + j)
                A(f"v_smfmac_f32_16x16x64_bf16 v[{acc}:{acc+3}], v[{Fs[j]}:{Fs[j]+3}], v[{b}:{b+7}], v4")
        A("s_mov_b32 exec_hi, 0")
        A(f"ds_write_b128 v{TC+11}, v[10:13] offset:{red}")
        A("s_mov_b32 exec_lo, 0"); A("s_mov_b32 exec_hi, -1")
        A(f"ds_write_b128 v{TC+11}, v[14:17] offset:{red}")
        A("s_mov_b64 exec, -1")
        A("s_waitcnt lgkmcnt(0)")
        A("s_barrier")
    gemv16(WO, L_RED, pair=False)
    A(f"ds_read_b128 v[20:23], v{TC+12} offset:{L_RED}")
    A("s_cmp_eq_u32 s64, 1")
    A("s_waitcnt lgkmcnt(0)")
    rr4(20, 21, 22, 23)
    dpp("v_add_f32", 20, 20, 20, "row_ror:8")
    A("s_mov_b32 exec_lo, 0x00ff00ff"); A("s_mov_b32 exec_hi, 0x00ff00ff")
    A(f"v_and_or_b32 v36, v20, s73, v{TC+7}")
    lstore("L_hs", f"buffer_store_dword v36, v{TC+6}, s[36:39], s21 offen")
    A("s_mov_b64 exec, -1")
    stamp(8)
    if hw == -1: A("s_waitcnt vmcnt(0)")
    elif hw == -2: A("s_barrier")
    elif hw: A(f"s_sleep {hw}")
    A.label("L_h2")
    A("s_cmp_lg_u32 s69, 2")
    A("s_cbranch_scc1 L_h2f")
    A("s_cmp_lg_u32 s3, 7")
    A("s_cbranch_scc1 L_end")
    A.label("L_h2f")
    for r in list(range(10, 18)) + list(range(56, 60)): A(f"v_mov_b32 v{r}, 0")
    if h2pre:
        A("s_mov_b64 exec, 0xffff")
        A.label("L_h2pre")
        A(f"buffer_load_dword v53, v{TC+15}, s[36:39], s60 offen sc1")
        A("s_waitcnt vmcnt(0)")
        A("v_and_b32 v53, 0xff, v53")
        A("v_cmp_ne_u32 vcc, s53, v53")
        A("s_cbranch_vccz L_h2go")
        spin("L_h2pre")
        A.label("L_h2go")
    if flat2: gatherf("L_h2", [(20 + 4 * j, TC + 14, 60 + j, 0) for j in range(4)])
    else: gather("L_h2", [[(20 + 4 * j, TC + 14, 60 + j, 0)] for j in range(4)])
    stamp(2)
    sum4x4()
    rbf(20, 20)
    A(f"v_add_f32 v20, v20, v{TC+13}")
    rbf(50, 20)
    A("s_cmp_eq_u32 s69, 2")
    A("s_cbranch_scc1 L_fin0")
    A("v_readfirstlane_b32 s71, v50")
    A("v_subrev_f32 v25, s71, v50")
    A("v_mov_b32 v24, s71")
    A("v_mul_f32 v26, v25, v25")
    A("v_permlane32_swap_b32 v25, v26")
    A("v_add_f32 v25, v25, v26")
    for ctl in ("quad_perm:[1,0,3,2]", "quad_perm:[2,3,0,1]", "row_ror:8", "row_ror:4"):
        dpp("v_add_f32", 25, 25, 25, ctl)
    A("v_mov_b32 v26, v25")
    A("s_mov_b32 exec_lo, 1") if False else None
    A("v_permlane16_swap_b32 v25, v26")
    A("v_add_f32 v25, v25, v26")
    if stx: A("s_mov_b32 exec_lo, 1"); A("s_mov_b32 exec_hi, 1")
    A(f"ds_write_b64 v{TC+20}, v[24:25] offset:{L_ST}")
    if stx: A("s_mov_b64 exec, -1")
    A("s_waitcnt lgkmcnt(0)")
    A("s_barrier")
    A(f"ds_read_b128 v[24:27], v{TC+21} offset:{L_ST}")
    A("s_waitcnt lgkmcnt(0)")
    A("v_readfirstlane_b32 s71, v24")
    A("v_subrev_f32 v24, s71, v24")
    A("v_fmamk_f32 v28, v24, 0x42800000, v25")
    A("v_add_f32 v25, v25, v28")
    A("v_fma_f32 v26, v24, v25, v27")
    for ctl in ("quad_perm:[1,0,3,2]", "quad_perm:[2,3,0,1]", "row_half_mirror"):
        dpp("v_add_f32", 28, 28, 28, ctl); dpp("v_add_f32", 26, 26, 26, ctl)
    A("v_mul_f32 v28, 0x3b000000, v28")
    A("v_mul_f32 v26, 0x3b000000, v26")
    A("v_fma_f32 v26, -v28, v28, v26")
    A("v_add_f32 v28, s71, v28")
    A("v_max_f32 v26, 0, v26")
    ln_fin(28, 26)
    A("v_sub_f32 v20, v50, v28")
    rbf(20, 20)
    A("v_mul_f32 v20, v20, v26")
    rbf(20, 20)
    gemv16(WGU, L_RED2)
    stamp(3)
    for k in range(4): A(f"ds_read_b128 v[{20+4*k}:{23+4*k}], v{TC+23} offset:{L_RED2+512*k}")
    A("v_mov_b32 v52, s73")
    A("s_waitcnt lgkmcnt(0)")
    sum4x4()
    rbf(20, 20)
    dpp("v_mul_f32", 21, 20, 20, "row_ror:8")
    rbf(21, 21)
    Fs = {0: frag(0, 21)}
    for j in range(4):
        if j < 3: Fs[j + 1] = frag(j + 1, 21)
        A(f"v_smfmac_f32_16x16x64_bf16 v[56:59], v[{Fs[j]}:{Fs[j]+3}], v[{WDR[j]}:{WDR[j]+7}], v4")
    A("s_mov_b32 exec_hi, 0")
    A("s_cmp_eq_u32 s64, 1")
    for r in range(4): A(f"v_and_or_b32 v{56+r}, v{56+r}, v52, s{53+r}")
    lstore("L_ys", f"buffer_store_dwordx4 v[56:59], v{TC+24}, s[36:39], s18 offen")
    stamp(9)
    A("s_cmp_lg_u32 s3, s68")
    A("s_cbranch_scc1 L_end")
    A("s_mov_b64 exec, -1")
    if yw == -1: A("s_waitcnt vmcnt(0)")
    elif yw: A(f"s_sleep {yw}")
    A("s_branch L_fin")
    A.label("L_fin0")
    A("s_cmp_lg_u32 s77, 28"); A("s_cbranch_scc1 L_fin")
    A("s_mov_b64 exec, 1")
    A("v_mov_b32 v36, s52")
    A("buffer_store_dword v36, v3, s[36:39], 0 offen sc1")
    A("s_mov_b64 exec, -1")
    A.label("L_fin")
    if flat3: gatherf("L_h3", [(20 + 4 * j, TC + 22, 22 + j, 0) for j in range(4)], last_half=True)
    else:
        for r in range(4): A(f"v_mov_b32 v{32+r}, 0")
        gather("L_h3", [[(20 + 4 * j, TC + 22, 22 + j, 0)] for j in range(4)], [-1, -1, -1, 0xffffffff])
    stamp(5)
    sum4x4()
    A("s_and_b32 s71, s77, 3"); A("s_lshl_b32 s71, s71, 2")
    dpp("v_add_f32", 20, 20, 20, "row_ror:8"); dpp("v_add_f32", 20, 20, 20, "row_ror:4")
    A("s_lshl_b32 s71, 0x000f000f, s71")
    rbf(20, 20)
    A("v_add_f32 v20, v20, v50")
    rbf(20, 20)
    if diag:
        A.label("L_dg1")
        A("s_memrealtime s[82:83]"); A("s_waitcnt lgkmcnt(0)")
        A("s_sub_u32 s82, s82, s80"); A("s_cmp_lt_u32 s82, 6000"); A("s_cbranch_scc1 L_dg1")
    A("s_mov_b32 exec_lo, s71"); A("s_mov_b32 exec_hi, s71")
    A(f"buffer_store_short_d16_hi v20, v{TC+25}, s[44:47], 0 offen")
    A("s_branch L_end")
    for (lab, back) in post:
        A.label(lab); spin(back)
    for (name, text) in post2:
        A.label(f"{name}_g"); A(text + " sc1"); A(f"s_branch {name}_j")
    A.label("L_end")
    if prof:
        A("s_waitcnt vmcnt(0)")
        stamp(10)
        A("s_mov_b64 exec, -1")
        A("s_waitcnt lgkmcnt(0)")
        for i in range(11): A(f"v_writelane_b32 v20, s{80+2*i}, {i}")
        A("v_writelane_b32 v20, s64, 11")
        A("s_getreg_b32 s71, hwreg(HW_REG_XCC_ID)"); A("v_writelane_b32 v20, s71, 12")
        A("s_lshl_b32 s71, s2, 3"); A("s_add_u32 s71, s71, s3"); A("s_lshl_b32 s71, s71, 6"); A(f"s_add_u32 s71, s71, {PROF}")
        A("v_lshlrev_b32 v21, 2, v1")
        A("s_mov_b64 exec, 0xffff")
        A("buffer_store_dword v20, v21, s[36:39], s71 offen")
    A.label("L_exit")
    A("s_endpgm")
    body = A.finish()
    nv = max(A.maxv + 1, 136)
    txt = HEADER + f"; @launch grid=(256,1,1) block=(512,1,1) lds={L_END}\n"
    txt += f'.amdgcn_target "amdgcn-amd-amdhsa--gfx950"\n.text\n.globl {KNAME}\n.p2align 8\n.type {KNAME},@function\n{KNAME}:\n'
    txt += body
    txt += ".fill 256, 4, 0xbf800000\n"
    txt += f'.section .rodata,"a"\n.p2align 6\n.amdhsa_kernel {KNAME}\n  .amdhsa_next_free_vgpr {nv}\n  .amdhsa_next_free_sgpr 102\n'
    txt += f"  .amdhsa_accum_offset {(nv+3)//4*4}\n  .amdhsa_group_segment_fixed_size 0\n  .amdhsa_kernarg_size 96\n  .amdhsa_user_sgpr_count 2\n"
    txt += "  .amdhsa_user_sgpr_kernarg_segment_ptr 1\n  .amdhsa_system_sgpr_workgroup_id_x 1\n  .amdhsa_float_denorm_mode_32 3\n.end_amdhsa_kernel\n"
    return txt

if __name__ == "__main__":
    import argparse
    p = argparse.ArgumentParser(); p.add_argument("-o"); p.add_argument("kv", nargs="*")
    a = p.parse_args()
    kw = {k: eval(v) for k, v in (x.split("=") for x in a.kv)}
    open(a.o, "w").write(gen(**kw))
```

```python
import sys, struct
sys.path.insert(0, "gen")
from asmlib import Asm

KNAME = "sequential_preLN__gqa_block_cached__glu_gated_bilinear__decode_kernel"
HEADER = open("sequential_preLN__gqa_block_cached__glu_gated_bilinear__decode.s.ref").read().split("; Override launch")[0]

XBUF, QBUF, OBUF, HBUF, YBUF, CBUF, MLBUF, WS_END = 0x800, 0x1000, 0x10000, 0xA8000, 0xB0000, 0xD0000, 0x140000, 0x180000
PROF = 0x100000
L_OM, L_ML, L_MX, L_QF, L_TK, L_ST, L_RED, L_RED2, L_HL, L_TB, L_WD, L_END = 0, 0x4000, 0x4100, 0x4600, 0x4A00, 0x4B00, 0x5000, 0x7000, 0x4C00, 0x9000, 0x9800, 0x19800
DPPF = "row_mask:0xf bank_mask:0xf"
SPIN = 1 << 20

def gen(NX=4, prof=False, S0=104, offT=40, offF=24, offQ=12, thr1=8, slp1=4, qslp=4, LA=2, t8=128, t4=48, t1=0, b0=8,
        cstride=4352, kf='nt', vf='nt', wf='', mlsh=4, cut=0, local=True, pretouch=True, tT=64, diag=0, codepf=True, outpf=True, h2pre=False, opre=None, osf='sc1', ew=8, ewx=0, PS=0, pgap=0, flat2=True, flat3=True, skipoob=True, hw=-2, yw=0, stx=True, noround=0):
    A = Asm()
    RA, RX = 56, 88
    WO, WGU = 88, 152
    WDR = [72, 80, 244, 40]
    FS = [232, 6, 252]
    TC = 216
    OOB = 0x1000000
    D0 = (4096 - 32 * S0 + 8 * offQ + 4 * offT) // 4
    assert offF % 4 == 0
    D1 = D0 - offF // 4
    assert LA + D0 + 64 + 64 <= 512
    seen = {}
    def stamp(i):
        if prof: A(f"s_memrealtime s[{80+2*i}:{81+2*i}]")
        seen[i] = seen.get(i, 0) + 1
        if diag == (i, seen[i]): A("s_memrealtime s[80:81]")
    def rr4(a, b, c, d):
        A(f"v_permlane32_swap_b32 v{a}, v{b}")
        A(f"v_permlane32_swap_b32 v{c}, v{d}")
        A(f"v_add_f32 v{a}, v{a}, v{b}")
        A(f"v_add_f32 v{c}, v{c}, v{d}")
        A(f"v_permlane16_swap_b32 v{a}, v{c}")
        A(f"v_add_f32 v{a}, v{a}, v{c}")
    def rows_all(x, t, op):
        A(f"v_mov_b32 v{t}, v{x}")
        A(f"v_permlane32_swap_b32 v{x}, v{t}")
        A(f"{op} v{x}, v{x}, v{t}")
        A(f"v_mov_b32 v{t}, v{x}")
        A(f"v_permlane16_swap_b32 v{x}, v{t}")
        A(f"{op} v{x}, v{x}, v{t}")
    def dpp(op, d, s, o, ctl): A(f"{op}_dpp v{d}, v{s}, v{o} {ctl} {DPPF}")
    def quad_all(x, op):
        dpp(op, x, x, x, "quad_perm:[1,0,3,2]"); dpp(op, x, x, x, "quad_perm:[2,3,0,1]")
    def wave_all(x, t, op):
        quad_all(x, op); dpp(op, x, x, x, "row_ror:8"); dpp(op, x, x, x, "row_ror:4"); rows_all(x, t, op)
    def rbf(d, s): A(f"v_cvt_pk_bf16_f32 v{d}, 0, v{s}")
    def ln_fin(mean, var):
        rbf(var, var)
        rbf(mean, mean)
        A(f"v_add_f32 v{var}, 0x37280000, v{var}")
        rbf(var, var)
        A(f"v_sqrt_f32 v{var}, v{var}")
        rbf(var, var)
        A(f"v_rcp_f32 v{var}, v{var}")
    def ln_stats(vals, mean, rinv, t):
        A(f"v_add_f32 v{mean}, v{vals[0]}, v{vals[1]}")
        A(f"v_add_f32 v{t}, v{vals[2]}, v{vals[3]}")
        A(f"v_add_f32 v{rinv}, v{vals[4]}, v{vals[5]}")
        A(f"v_add_f32 v{mean}, v{mean}, v{t}")
        A(f"v_add_f32 v{t}, v{vals[6]}, v{vals[7]}")
        A(f"v_add_f32 v{rinv}, v{rinv}, v{t}")
        A(f"v_add_f32 v{mean}, v{mean}, v{rinv}")
        wave_all(mean, t, "v_add_f32")
        A(f"v_mul_f32 v{mean}, 0x3b000000, v{mean}")
        for v in vals: A(f"v_sub_f32 v{v}, v{v}, v{mean}")
        A(f"v_mul_f32 v{rinv}, v{vals[0]}, v{vals[0]}")
        A(f"v_mul_f32 v{t}, v{vals[1]}, v{vals[1]}")
        for k in range(2, 8, 2):
            A(f"v_fmac_f32 v{rinv}, v{vals[k]}, v{vals[k]}")
            A(f"v_fmac_f32 v{t}, v{vals[k+1]}, v{vals[k+1]}")
        A(f"v_add_f32 v{rinv}, v{rinv}, v{t}")
        wave_all(rinv, t, "v_add_f32")
        A(f"v_mul_f32 v{rinv}, 0x3b000000, v{rinv}")
        ln_fin(mean, rinv)
    def srd(d, lo, hi, n):
        A(f"s_mov_b32 s{d}, s{lo}"); A(f"s_mov_b32 s{d+1}, s{hi}"); A(f"s_mov_b32 s{d+2}, {hex(n)}"); A(f"s_mov_b32 s{d+3}, 0x20000")
    def spin(label, slp=0):
        A("s_sub_u32 s72, s72, 1")
        A("s_cbranch_scc1 L_end")
        if slp: A(f"s_sleep {slp}")
        A(f"s_branch {label}")
    MREG = [4, 6, 8, 10, 28, 30, 32, 34, 40]
    def gather(name, groups, init_masks=None, check_first=False):
        ng = len(groups)
        for j in range(ng):
            m = -1 if init_masks is None else init_masks[j]; M = MREG[j]
            if m == -1: A(f"s_mov_b64 s[{M}:{M+1}], -1")
            else: A(f"s_mov_b32 s{M}, {hex(m & 0xffffffff)}"); A(f"s_mov_b32 s{M+1}, {hex(m >> 32)}")
        if check_first: A(f"s_branch {name}_chk")
        A.label(f"{name}_rnd")
        for j, g in enumerate(groups):
            M = MREG[j]
            A(f"s_mov_b64 exec, s[{M}:{M+1}]")
            A(f"s_cbranch_execz {name}_i{j}")
            for (r, va, so, imm) in g:
                A(f"buffer_load_dwordx4 v[{r}:{r+3}], v{va}, s[36:39], s{so} offen offset:{imm} sc1")
            A.label(f"{name}_i{j}")
        A.label(f"{name}_chk")
        A("s_mov_b64 s[12:13], 0")
        A("s_waitcnt vmcnt(0)")
        for j, g in enumerate(groups):
            M = MREG[j]
            A(f"s_mov_b64 exec, s[{M}:{M+1}]")
            A(f"s_cbranch_execz {name}_c{j}")
            regs = [r + k for (r, _, _, _) in g for k in range(4)]
            for k, r in enumerate(regs): A(f"v_xor_b32 v{r}, s{53+(k&3)}, v{r}")
            A(f"v_or3_b32 v55, v{regs[0]}, v{regs[1]}, v{regs[2]}")
            rest = regs[3:]
            while len(rest) >= 2:
                A(f"v_or3_b32 v55, v55, v{rest[0]}, v{rest[1]}"); rest = rest[2:]
            A(f"v_or_b32 v55, v55, v{rest[0]}")
            A("v_and_b32 v55, 0xff, v55")
            A(f"v_cmp_ne_u32 s[{M}:{M+1}], 0, v55")
            A(f"s_or_b64 s[12:13], s[12:13], s[{M}:{M+1}]")
            A.label(f"{name}_c{j}")
        A("s_mov_b64 exec, -1")
        A("s_cmp_eq_u64 s[12:13], 0")
        A(f"s_cbranch_scc1 {name}_ok")
        spin(f"{name}_rnd")
        A.label(f"{name}_ok")
    def gatherp(name, groups, raws):
        ng = len(groups)
        for j in range(ng): A(f"s_mov_b64 s[{MREG[j]}:{MREG[j]+1}], -1")
        NL = sum(len(g) for g in groups)
        def issue(rb):
            n = 0
            for j, g in enumerate(groups):
                A(f"s_or_b64 exec, s[{MREG[j]}:{MREG[j]+1}], 1")
                for (r, va, so, imm) in g:
                    A(f"buffer_load_dwordx4 v[{rb+4*n}:{rb+4*n+3}], v{va}, s[36:39], s{so} offen offset:{imm} sc1")
                    n += 1
        for rb in raws: issue(rb)
        A.label(f"{name}_rnd")
        for k, rb in enumerate(raws):
            A("s_mov_b64 s[12:13], 0")
            A(f"s_waitcnt vmcnt({(len(raws)-1)*NL})")
            n = 0
            for j, g in enumerate(groups):
                M = MREG[j]
                A(f"s_mov_b64 exec, s[{M}:{M+1}]")
                A(f"s_cbranch_execz {name}_c{k}_{j}")
                regs = []
                for (r, _, _, _) in g:
                    for e in range(4):
                        A(f"v_xor_b32 v{r+e}, s{53+e}, v{rb+4*n+e}"); regs.append(r + e)
                    n += 1
                A(f"v_or3_b32 v55, v{regs[0]}, v{regs[1]}, v{regs[2]}")
                A(f"v_or_b32 v55, v55, v{regs[3]}")
                A("v_and_b32 v55, 0xff, v55")
                A(f"v_cmp_ne_u32 s[{M}:{M+1}], 0, v55")
                A(f"s_or_b64 s[12:13], s[12:13], s[{M}:{M+1}]")
                A.label(f"{name}_c{k}_{j}")
            A("s_cmp_eq_u64 s[12:13], 0")
            A(f"s_cbranch_scc1 {name}_ok")
            if pgap: A(f"s_sleep {pgap}")
            issue(rb)
        spin(f"{name}_rnd")
        A.label(f"{name}_ok")
        A("s_mov_b64 exec, -1")
    def gatherf(name, loads, last_half=False):
        A.label(f"{name}_rnd")
        for k, (r, va, so, imm) in enumerate(loads):
            if last_half and k == len(loads) - 1:
                for e in range(4): A(f"v_mov_b32 v{r+e}, s{53+e}")
                A("s_mov_b32 exec_hi, 0")
            A(f"buffer_load_dwordx4 v[{r}:{r+3}], v{va}, s[36:39], s{so} offen offset:{imm} sc1")
        if last_half: A("s_mov_b32 exec_hi, -1")
        n = len(loads)
        for k, (r, _, _, _) in enumerate(loads):
            A(f"s_waitcnt vmcnt({n-1-k})")
            for e in range(4): A(f"v_xor_b32 v{r+e}, s{53+e}, v{r+e}")
            if k == 0: A(f"v_or_b32 v55, v{r}, v{r+1}")
            else: A(f"v_or3_b32 v55, v55, v{r}, v{r+1}")
            A(f"v_or3_b32 v55, v55, v{r+2}, v{r+3}")
        A("v_and_b32 v55, 0xff, v55")
        A("v_cmp_ne_u32 vcc, 0, v55")
        A(f"s_cbranch_vccnz {name}_re")
        post.append((f"{name}_re", f"{name}_rnd"))
    post = []; post2 = []
    def lstore(name, text):
        A(f"s_cbranch_scc0 {name}_g")
        A(text)
        A.label(f"{name}_j")
        post2.append((name, text))
    def issueK(base, so):
        for j in range(4):
            r = base + 4 * j
            A(f"buffer_load_dwordx4 v[{r}:{r+3}], v2, s[28:31], s{so} offen offset:{1024*j} {kf}")
    def issueV(base, so):
        for j in range(4):
            r = base + 16 + 4 * j
            A(f"buffer_load_dwordx4 v[{r}:{r+3}], v3, s[32:35], s{so} offen offset:{1024*j} {vf}")
    def common_setup():
        A("s_mov_b32 s60, 0x22222222"); A("s_mov_b32 s61, 0x22222222")
        A("s_mov_b32 s62, 0x44444444"); A("s_mov_b32 s63, 0x44444444")
        A("s_mov_b32 s64, 0x88888888"); A("s_mov_b32 s65, 0x88888888")
        A("s_mov_b32 s74, 0x3db504f3"); A("s_mov_b32 s75, 0x3fb8aa3b")
        A(f"s_mov_b32 s72, {SPIN}")
        A("v_mov_b32 v44, 0xffff"); A("v_mov_b32 v45, 0xffff0000")
        A("v_mov_b32 v4, 0"); A("v_mov_b32 v5, 0")
        A("v_cmp_eq_u32 vcc, 0, v47")
        A("v_cndmask_b32 v4, v4, v44, vcc")
        A("v_cndmask_b32 v4, v4, v45, s[60:61]")
        A("v_cndmask_b32 v5, v5, v44, s[62:63]")
        A("v_cndmask_b32 v5, v5, v45, s[64:65]")
        for r in range(10, 18): A(f"v_mov_b32 v{r}, 0")
        A("v_mov_b32 v18, 0xff7fffff"); A("v_mov_b32 v19, 0")
    def k32masks(b):
        A("v_bfe_u32 v51, v1, 2, 1"); A("v_cmp_eq_u32 vcc, 0, v51")
        A(f"v_cndmask_b32 v{b}, 0, v4, vcc"); A(f"v_cndmask_b32 v{b+1}, 0, v5, vcc")
        A(f"v_cndmask_b32 v{b+2}, v4, 0, vcc"); A(f"v_cndmask_b32 v{b+3}, v5, 0, vcc")
    def tags():
        A("s_add_u32 s52, s52, 0x9e3779b9")
        A("s_and_b32 s53, s52, 0xff"); A("s_bfe_u32 s54, s52, 0x80008"); A("s_bfe_u32 s55, s52, 0x80010"); A("s_lshr_b32 s56, s52, 24")
        A("s_and_b32 s57, s52, 0xffff"); A("s_lshr_b32 s58, s52, 16")
    def sum4x4():
        A("v_pk_add_f32 v[20:21], v[20:21], v[24:25]"); A("v_pk_add_f32 v[22:23], v[22:23], v[26:27]")
        A("v_pk_add_f32 v[28:29], v[28:29], v[32:33]"); A("v_pk_add_f32 v[30:31], v[30:31], v[34:35]")
        A("v_pk_add_f32 v[20:21], v[20:21], v[28:29]"); A("v_pk_add_f32 v[22:23], v[22:23], v[30:31]")
        rr4(20, 21, 22, 23)
    def sum2x4():
        A("v_pk_add_f32 v[20:21], v[20:21], v[24:25]"); A("v_pk_add_f32 v[22:23], v[22:23], v[26:27]")
        rr4(20, 21, 22, 23)
    uid = [0]
    def chunk(base, refill):
        KB, VB = base, base + 16
        uid[0] += 1; u = uid[0]
        if refill:
            A("s_cmp_ge_u32 s66, s30")
            A("s_cbranch_scc1 L_done")
            if ew < 8:
                A("s_cmp_ge_u32 s66, s101")
                A("s_cbranch_scc1 L_nodraw")
            A("s_mov_b64 exec, 1")
            A("ds_add_rtn_u32 v54, v52, v53")
            A("s_mov_b64 exec, -1")
            if ew < 8: A.label("L_nodraw")
            A("s_waitcnt vmcnt(4) lgkmcnt(0)")
            A("v_readfirstlane_b32 s71, v54")
        for j in range(4):
            A(f"v_mfma_f32_16x16x32_bf16 v[{20+4*j}:{23+4*j}], v[{KB+4*j}:{KB+4*j+3}], v[6:9], 0")
        if refill:
            if ew < 8:
                A("s_cmp_ge_u32 s66, s101")
                A("s_mov_b32 s66, s30")
                A("s_cbranch_scc1 L_go")
            A("s_add_u32 s66, s71, s59")
            A("s_cmp_ge_u32 s71, s70")
            A("s_cbranch_scc1 L_dyn")
            A.label("L_go")
            issueK(base, 66)
            A.label("L_gox")
        D = lambda j, r: 20 + 4 * (j & 3) + r
        for rho in range(4): A(f"v_cndmask_b32 v{44+rho}, v{D(rho,0)}, v{D(rho+1,1)}, s[60:61]")
        for rho in range(4): A(f"v_cndmask_b32 v{44+rho}, v{44+rho}, v{D(rho+2,2)}, s[62:63]")
        for rho in (1, 2, 3, 0): A(f"v_cndmask_b32 v{44+rho}, v{44+rho}, v{D(rho+3,3)}, s[64:65]")
        for rho in range(1, 4):
            qp = ",".join(str((q - rho) & 3) for q in range(4))
            dpp("v_add_f32", 44, 44 + rho, 44, f"quad_perm:[{qp}]")
        if noround < 1: rbf(44, 44)
        A("v_mul_f32 v44, s74, v44")
        if noround < 2: rbf(44, 44)
        A("v_mul_f32 v44, s75, v44")
        A("v_cmp_gt_f32 vcc, v44, v18")
        A(f"s_cbranch_vccz L_nors{u}")
        A("v_max_f32 v45, v44, v18")
        quad_all(45, "v_max_f32")
        rows_all(45, 46, "v_max_f32")
        A("v_sub_f32 v46, v18, v45")
        A("v_exp_f32 v46, v46")
        A("v_mov_b32 v18, v45")
        A("v_mul_f32 v19, v19, v46")
        for h in range(4): A(f"v_mov_b32_dpp v47, v46 row_newbcast:{4*h} row_mask:{hex(1<<h)} bank_mask:0xf")
        for r in range(10, 18): A(f"v_mul_f32 v{r}, v{r}, v47")
        A.label(f"L_nors{u}")
        A("v_sub_f32 v44, v44, v18")
        A("v_exp_f32 v44, v44")
        A("v_cvt_pk_bf16_f32 v45, v44, v44")
        A("v_add_f32 v19, v19, v44")
        for j in range(4):
            dpp("v_and_b32", 36 + 2 * j, 45, 4, f"quad_perm:[{j},{j},{j},{j}]")
            dpp("v_and_b32", 37 + 2 * j, 45, 5, f"quad_perm:[{j},{j},{j},{j}]")
        if refill:
            if skipoob:
                A("s_cmp_ge_u32 s66, s30")
                A("s_cbranch_scc1 L_last")
            A("s_waitcnt vmcnt(4)")
            A.label("L_pv")
        for j in range(4):
            A(f"v_mfma_f32_16x16x16_bf16 v[10:13], v[{36+2*j}:{37+2*j}], v[{VB+4*j}:{VB+4*j+1}], v[10:13]")
            A(f"v_mfma_f32_16x16x16_bf16 v[14:17], v[{36+2*j}:{37+2*j}], v[{VB+4*j+2}:{VB+4*j+3}], v[14:17]")
        if refill: issueV(base, 66)

    A("s_cmp_ge_u32 s2, 256")
    A("s_cbranch_scc1 L_exit")
    A("s_load_dwordx16 s[4:19], s[0:1], 0")
    A("s_load_dwordx8 s[20:27], s[0:1], 64")
    stamp(0)
    A("v_and_b32 v1, 63, v0")
    A("v_lshrrev_b32 v44, 6, v0")
    A("v_lshlrev_b32 v3, 4, v1")
    A("v_readfirstlane_b32 s3, v44")
    A("v_bfe_u32 v45, v1, 2, 2")
    A("v_lshrrev_b32 v46, 4, v1")
    A("v_and_b32 v47, 3, v1")
    A("v_lshlrev_b32 v2, 8, v45")
    A("v_lshl_add_u32 v2, v46, 6, v2")
    A("v_lshl_add_u32 v2, v47, 4, v2")
    A("s_lshr_b32 s77, s2, 3"); A("s_and_b32 s76, s77, 7"); A("s_and_b32 s73, s2, 7"); A("s_lshr_b32 s78, s2, 6")
    A("s_lshl3_add_u32 s79, s78, s73")
    A("s_cmp_ge_u32 s76, 4"); A(f"s_cselect_b32 s67, {D0-D1}, 0"); A(f"s_sub_u32 s67, {D0}, s67")
    A("s_cmp_eq_u32 s78, 0"); A(f"s_cselect_b32 s70, {offQ}, 0"); A(f"s_cselect_b32 s71, 0, 8"); A(f"s_sub_u32 s70, {S0}, s70")
    A(f"s_mul_i32 s71, s71, {offQ}")
    A(f"s_mul_i32 s59, s78, {8*S0-offT}"); A("s_sub_u32 s59, s59, s71")
    A("s_cmp_ge_u32 s77, 28"); A(f"s_cselect_b32 s68, {offT-offF}, {offT}")
    A("s_mul_i32 s71, s73, s70"); A("s_add_u32 s59, s59, s71")
    A("s_cmp_eq_u32 s73, 0"); A("s_cselect_b32 s71, 0, s68"); A("s_cselect_b32 s68, s68, 0")
    A("s_sub_u32 s59, s59, s71"); A("s_sub_u32 s70, s70, s68"); A(f"s_sub_u32 s70, s70, {LA}")
    A("s_lshl_b32 s59, s59, 12"); A("s_lshl_b32 s70, s70, 12")
    A("s_lshl_b32 s66, s3, 12"); A("s_add_u32 s66, s66, s59")
    A("s_lshl_b32 s71, s76, 24")
    A(f"s_mov_b32 s30, {OOB}"); A("s_mov_b32 s31, 0x20000"); A(f"s_mov_b32 s34, {OOB}"); A("s_mov_b32 s35, 0x20000")
    A("s_cmp_lt_u32 s2, 64")
    A("s_cbranch_scc1 L_qprod")
    A("s_waitcnt lgkmcnt(0)")
    A("s_add_u32 s28, s6, s71"); A("s_addc_u32 s29, s7, 0")
    A("s_add_u32 s32, s8, s71"); A("s_addc_u32 s33, s9, 0")
    A("s_load_dword s52, s[26:27], 0")
    A("s_cmp_eq_u32 s3, 0")
    A("s_cbranch_scc1 L_w0")
    A.label("L_ring")
    issueK(RA, 66); issueV(RA, 66)
    A(f"s_add_u32 s68, s66, {7*4096}")
    for k in range(NX):
        issueK(RX + 32 * k, 68); issueV(RX + 32 * k, 68)
        if k < NX - 1: A(f"s_add_u32 s68, s68, {7*4096}")
    srd(48, 4, 5, 1024)
    srd(36, 26, 27, WS_END)
    common_setup()
    A("s_waitcnt lgkmcnt(0)")
    tags()
    stamp(1)
    A("s_barrier")
    A("s_branch L_qj")
    A.label("L_qprod")
    A("v_lshrrev_b32 v44, 3, v1"); A("v_and_b32 v45, 7, v1")
    A("v_lshlrev_b32 v50, 16, v44")
    A("v_lshl_add_u32 v50, v45, 4, v50")
    A("v_lshlrev_b32 v51, 4, v44")
    A("s_lshl_b32 s68, s2, 7"); A("s_lshl_b32 s73, s3, 19"); A("s_add_u32 s68, s68, s73")
    A("s_lshl_b32 s73, s3, 7")
    A("s_mov_b32 s50, 1024"); A("s_mov_b32 s51, 0x20000"); A(f"s_mov_b32 s42, {4<<20}"); A("s_mov_b32 s43, 0x20000")
    for i in range(1, 8): A(f"v_add_u32 v{35+i}, {8192*i}, v50")
    A("s_waitcnt lgkmcnt(0)")
    A("s_mov_b32 s48, s4"); A("s_mov_b32 s49, s5"); A("s_mov_b32 s40, s10"); A("s_mov_b32 s41, s11")
    A("buffer_load_dwordx4 v[52:55], v3, s[48:51], 0 offen")
    A("buffer_load_dwordx4 v[32:35], v51, s[48:51], s73 offen")
    for i in range(8):
        va = 50 if i == 0 else 35 + i
        A(f"buffer_load_dwordx4 v[{RA+4*i}:{RA+4*i+3}], v{va}, s[40:43], s68 offen {wf}")
    A("s_load_dword s52, s[26:27], 0")
    A("s_add_u32 s28, s6, s71"); A("s_addc_u32 s29, s7, 0")
    A("s_add_u32 s32, s8, s71"); A("s_addc_u32 s33, s9, 0")
    A("s_cmp_lg_u32 s3, 0"); A("s_cbranch_scc1 L_nz")
    A("s_cmp_ge_u32 s79, 4"); A("s_cbranch_scc1 L_nz")
    A("s_lshl3_add_u32 s73, s79, s76")
    A(f"s_mul_i32 s73, s73, {cstride}"); A(f"s_add_u32 s73, s73, {CBUF}")
    A("v_mov_b32 v49, s73"); A("v_mov_b32 v48, 0")
    A("s_mov_b64 exec, 1")
    A("global_store_dword v49, v48, s[26:27] sc1")
    A("s_mov_b64 exec, -1")
    A.label("L_nz")
    A("v_lshrrev_b32 v49, 5, v1"); A("v_and_b32 v44, 1, v46")
    A("v_lshlrev_b32 v48, 8, v49"); A("v_lshl_add_u32 v48, v45, 5, v48"); A("v_lshl_add_u32 v48, v44, 4, v48")
    A("s_lshl_b32 s73, s3, 9"); A("v_add_u32 v48, s73, v48")
    common_setup()
    k32masks(6)
    A("s_waitcnt vmcnt(8)")
    for k in range(4):
        A(f"v_lshlrev_b32 v{36+2*k}, 16, v{52+k}")
        A(f"v_and_b32 v{37+2*k}, 0xffff0000, v{52+k}")
    for k in range(4):
        A(f"v_lshlrev_b32 v{20+2*k}, 16, v{32+k}")
        A(f"v_and_b32 v{21+2*k}, 0xffff0000, v{32+k}")
    ln_stats(list(range(36, 44)), 44, 45, 51)
    for k in range(8): A(f"v_sub_f32 v{20+k}, v{20+k}, v44")
    for k in range(8): rbf(20 + k, 20 + k)
    for k in range(8): A(f"v_mul_f32 v{20+k}, v{20+k}, v45")
    for k in range(8): A(f"v_cvt_pk_bf16_f32 v{20+k}, v{20+k}, v{20+k}")
    for i in range(8):
        for r in range(4): A(f"v_and_b32 v{RX+4*i+r}, v{20+i}, v{6+r}")
    A("s_waitcnt vmcnt(0)")
    for i in range(8):
        c = "0" if i == 0 else "v[28:31]"
        A(f"v_mfma_f32_16x16x32_bf16 v[28:31], v[{RX+4*i}:{RX+4*i+3}], v[{RA+4*i}:{RA+4*i+3}], {c}")
    A("s_mov_b32 exec_lo, 0x00ff00ff"); A("s_mov_b32 exec_hi, 0xff00ff00")
    A(f"ds_write_b128 v48, v[28:31] offset:{L_RED}")
    A("s_mov_b64 exec, -1")
    A("s_waitcnt lgkmcnt(0)")
    A("s_barrier")
    A("s_cmp_lg_u32 s3, 0")
    A("s_cbranch_scc1 L_ring")
    A("s_setprio 3")
    A("v_and_b32 v50, 15, v1"); A("v_lshlrev_b32 v49, 10, v46"); A("v_lshl_add_u32 v49, v50, 4, v49")
    for k in range(4): A(f"ds_read_b128 v[{20+4*k}:{23+4*k}], v49 offset:{L_RED+256*k}")
    srd(36, 26, 27, WS_END)
    tags()
    A("v_and_b32 v45, 1, v46"); A("v_lshlrev_b32 v45, 1, v45"); A("v_lshrrev_b32 v44, 1, v46"); A("v_or_b32 v45, v45, v44")
    A("v_lshl_add_u32 v45, v50, 2, v45"); A("v_lshlrev_b32 v45, 2, v45")
    A("v_mov_b32 v49, s57"); A("v_mov_b32 v51, s58")
    A("v_cmp_eq_u32 vcc, 0, v44")
    A("v_cndmask_b32 v49, v51, v49, vcc")
    A("s_lshl_b32 s71, s2, 8"); A(f"s_add_u32 s71, s71, {QBUF}")
    A("s_waitcnt lgkmcnt(0)")
    sum4x4()
    rbf(20, 20)
    A("v_or_b32 v20, v20, v49")
    A("buffer_store_dword v20, v45, s[36:39], s71 offen sc1")
    stamp(2)
    A("s_branch L_w0b")
    A.label("L_w0")
    A("s_setprio 3")
    srd(48, 4, 5, 1024)
    srd(36, 26, 27, WS_END)
    common_setup()
    A("s_waitcnt lgkmcnt(0)")
    tags()
    A.label("L_w0b")
    A(f"v_mov_b32 v52, {L_TK}"); A(f"v_mov_b32 v48, {(8+7*NX)*4096}")
    A("ds_write_b32 v52, v48")
    for r in range(4): A(f"v_mov_b32 v{24+r}, -1")
    A(f"ds_write_b128 v3, v[24:27] offset:{L_TB}")
    A(f"ds_write_b128 v3, v[24:27] offset:{L_TB+1024}")
    A("s_add_u32 s73, s59, s70")
    A("v_lshlrev_b32 v28, 12, v1"); A("v_add_u32 v28, s73, v28"); A("v_lshlrev_b32 v29, 2, v1")
    A("v_cmp_eq_u32 vcc, 0, v1"); A("v_addc_co_u32 v28, vcc, 0, v28, vcc")
    A(f"s_mov_b64 exec, {(1 << LA) - 1}")
    A(f"ds_write_b32 v29, v28 offset:{L_TB}")
    A("s_mov_b64 exec, -1")
    A("v_lshlrev_b32 v44, 1, v2")
    A("s_lshl_b32 s71, s76, 11"); A(f"s_add_u32 s71, s71, {QBUF}")
    A("s_add_u32 s14, s26, s71"); A("s_addc_u32 s15, s27, 0")
    A.label("L_qhint")
    for k in range(8): A(f"s_load_dword s{40+k}, s[14:15], {256*k} glc")
    A("s_waitcnt lgkmcnt(0)")
    for k in range(8): A(f"s_xor_b32 s{40+k}, s{40+k}, s57")
    for k in range(1, 8): A(f"s_or_b32 s40, s40, s{40+k}")
    A("s_and_b32 s40, s40, 0xffff")
    A("s_cbranch_scc0 L_qpoll")
    spin("L_qhint", qslp)
    A.label("L_qpoll")
    A("buffer_load_dwordx4 v[20:23], v44, s[36:39], s71 offen sc1")
    A("buffer_load_dwordx4 v[24:27], v44, s[36:39], s71 offen offset:16 sc1")
    A("s_mov_b32 s73, 0x07060302")
    A("s_waitcnt vmcnt(0)")
    for e in range(8): A(f"v_xor_b32 v{20+e}, s{57+(e&1)}, v{20+e}")
    A("v_or3_b32 v45, v20, v21, v22"); A("v_or3_b32 v45, v45, v23, v24"); A("v_or3_b32 v45, v45, v25, v26"); A("v_or_b32 v45, v45, v27")
    A("v_and_b32 v45, 0xffff, v45")
    A("v_cmp_ne_u32 vcc, 0, v45")
    A("s_cbranch_vccz L_q_ok")
    spin("L_qpoll")
    A.label("L_q_ok")
    for k in range(4): A(f"v_perm_b32 v{6+k}, v{21+2*k}, v{20+2*k}, s73")
    A(f"ds_write_b128 v3, v[6:9] offset:{L_QF}")
    A("s_waitcnt lgkmcnt(0)")
    stamp(1)
    A("s_barrier")
    issueK(RA, 66); issueV(RA, 66)
    A("s_setprio 0")
    A.label("L_qj")
    A(f"ds_read_b128 v[6:9], v3 offset:{L_QF}")
    A(f"v_mov_b32 v52, {L_TK}"); A("v_mov_b32 v53, 4096")
    A("s_mov_b32 s69, 3")
    A(f"s_mul_i32 s58, s77, {cstride}"); A(f"s_add_u32 s58, s58, {CBUF}")
    A("s_sub_u32 s57, 4, s78"); A("s_mul_i32 s57, s57, s67"); A("s_sub_u32 s57, 4096, s57"); A("s_lshl_b32 s57, s57, 12")
    if ew < 8:
        A(f"s_sub_u32 s101, s67, {ewx}"); A("s_lshl_b32 s101, s101, 12"); A("s_add_u32 s101, s101, s57")
        A(f"s_cmp_ge_u32 s3, {ew}"); A("s_cselect_b32 s101, s101, -1")
    stamp(3)
    A.label("L_loop")
    chunk(RA, True)
    A("s_cmp_lg_u32 s69, 3")
    A("s_cbranch_scc1 L_loop")
    A("s_mov_b32 s69, 0")
    A("s_cmp_eq_u32 s3, 0")
    A("s_cbranch_scc1 L_setup")
    A("s_waitcnt vmcnt(8)")
    for k in range(NX): chunk(RX + 32 * k, False)
    A.label("L_setup")
    A("v_lshrrev_b32 v46, 4, v1"); A("v_and_b32 v47, 3, v1"); A("v_bfe_u32 v45, v1, 2, 2"); A("v_and_b32 v50, 15, v1")
    A("v_and_b32 v48, 1, v46"); A("v_lshlrev_b32 v48, 1, v48"); A("v_lshrrev_b32 v49, 1, v46"); A("v_or_b32 v48, v48, v49")
    A("s_lshl_b32 s71, s3, 11"); A(f"v_lshlrev_b32 v{TC}, 5, v1"); A(f"v_add_u32 v{TC}, s71, v{TC}")
    A("s_lshl_b32 s71, s3, 3"); A(f"v_lshlrev_b32 v{TC+1}, 6, v45"); A(f"v_add_u32 v{TC+1}, s71, v{TC+1}")
    A(f"v_lshrrev_b32 v{TC+2}, 1, v{TC+1}")
    A("s_lshl_b32 s71, s3, 8"); A(f"v_lshlrev_b32 v{TC+3}, 12, v46"); A(f"v_lshl_add_u32 v{TC+3}, v50, 4, v{TC+3}"); A(f"v_add_u32 v{TC+3}, s71, v{TC+3}")
    A("s_lshr_b32 s71, s3, 1"); A("s_lshl_b32 s73, s71, 6"); A(f"v_lshlrev_b32 v{TC+4}, 4, v46"); A(f"v_add_u32 v{TC+4}, s73, v{TC+4}")
    A("s_lshl_b32 s73, s71, 5"); A(f"v_mov_b32 v{TC+5}, s73")
    A(f"v_lshl_add_u32 v{TC+6}, v50, 2, v48"); A(f"v_lshlrev_b32 v{TC+6}, 2, v{TC+6}")
    A(f"v_lshlrev_b32 v{TC+7}, 3, v48"); A(f"v_lshrrev_b32 v{TC+7}, v{TC+7}, s52"); A(f"v_and_b32 v{TC+7}, 0xff, v{TC+7}")
    A("s_lshl_b32 s0, s76, 16"); A("s_lshl_b32 s73, s79, 11"); A("s_add_u32 s0, s0, s73")
    A("s_lshl_b32 s73, s3, 8"); A("s_add_u32 s0, s0, s73"); A(f"s_add_u32 s0, s0, {OBUF}")
    A("s_lshr_b32 s73, s3, 1"); A("s_lshl2_add_u32 s1, s76, s73"); A("s_lshl_b32 s1, s1, 5"); A("s_add_u32 s1, s1, s79")
    A(f"s_lshl_b32 s1, s1, {mlsh}"); A(f"s_add_u32 s1, s1, {MLBUF}")
    A(f"v_lshlrev_b32 v{TC+10}, 2, v1")
    A(f"v_lshlrev_b32 v{TC+27}, 3, v47"); A(f"v_lshrrev_b32 v{TC+27}, v{TC+27}, s52"); A(f"v_and_b32 v{TC+27}, 0xff, v{TC+27}")
    if opre is not None:
        A(f"buffer_load_dword v44, v{TC+10}, s[36:39], s0 offen {opre}")
        A("s_mov_b64 exec, 1")
        A(f"buffer_load_dword v45, v3, s[36:39], s1 offen {opre}")
        A("s_mov_b64 exec, -1")
        A("s_waitcnt vmcnt(0)")
    A("s_and_b32 s71, s2, 7")
    A("s_cbranch_scc1 L_loop")
    A("s_mov_b32 s69, 2")
    A("s_getreg_b32 s78, hwreg(HW_REG_XCC_ID, 0, 4)"); A("s_lshl_b32 s78, s78, 8")
    A("s_cmp_lg_u32 s3, 0"); A("s_cbranch_scc1 L_nox")
    A("s_or_b32 s71, s78, s53")
    A("v_mov_b32 v20, s71"); A("v_mov_b32 v21, s54"); A("v_mov_b32 v22, s55"); A("v_mov_b32 v23, s56")

    A("s_lshl_b32 s71, s77, 4"); A(f"s_add_u32 s71, s71, {XBUF}")
    A("s_mov_b64 exec, 1")
    A("buffer_store_dwordx4 v[20:23], v3, s[36:39], s71 offen sc1")
    A("s_mov_b64 exec, -1")
    A.label("L_nox")
    srd(40, 12, 13, 4 << 20)
    A("s_lshr_b32 s68, s77, 1")
    A("s_lshl_b32 s71, s68, 18"); A("s_lshr_b32 s73, s3, 1"); A("s_lshl_b32 s73, s73, 16"); A("s_add_u32 s71, s71, s73")
    A("s_and_b32 s73, s3, 1"); A("s_lshl_b32 s73, s73, 10"); A("s_add_u32 s71, s71, s73")
    A("s_and_b32 s73, s77, 1"); A("s_lshl_b32 s73, s73, 9"); A("s_add_u32 s71, s71, s73")
    A("v_lshlrev_b32 v44, 4, v50"); A("v_lshl_add_u32 v45, v48, 13, v44"); A("v_lshl_add_u32 v44, v48, 11, v44")
    for jl in range(2):
        for half in range(2):
            for jh in range(2):
                for c2 in range(2):
                    r = WO + 8 * (4 * c2 + 2 * jh + jl) + 4 * half
                    A(f"buffer_load_dwordx4 v[{r}:{r+3}], v45, s[40:43], s71 offen offset:{2048*jh+256*c2} {wf}")
            if (jl, half) != (1, 1): A(f"s_add_u32 s71, s71, {4096 if half == 0 else 32768-4096}")
    A(f"v_lshrrev_b32 v51, 1, v{TC+6}"); A("s_lshl_b32 s71, s3, 7")
    A(f"buffer_load_ushort v{TC+13}, v51, s[48:51], s71 offen")
    A("v_and_b32 v51, 7, v1"); A("v_and_b32 v45, 1, v46"); A("v_lshrrev_b32 v49, 5, v1")
    A(f"v_lshrrev_b32 v{TC+9}, 3, v1")
    A(f"v_lshlrev_b32 v{TC+8}, 13, v{TC+9}"); A(f"v_lshl_add_u32 v{TC+8}, v51, 4, v{TC+8}")
    A(f"v_lshl_add_u32 v{TC+9}, v{TC+9}, 2, v47"); A(f"v_lshlrev_b32 v{TC+9}, {mlsh}, v{TC+9}")
    A(f"v_lshlrev_b32 v{TC+24}, 4, v45"); A(f"v_lshl_add_u32 v{TC+24}, v50, 5, v{TC+24}")
    A(f"v_lshl_add_u32 v{TC+11}, v49, 9, v{TC+24}"); A("s_lshl_b32 s71, s3, 10"); A(f"v_add_u32 v{TC+11}, s71, v{TC+11}")
    A(f"v_lshlrev_b32 v{TC+14}, 11, v46"); A(f"v_lshl_add_u32 v{TC+14}, v50, 4, v{TC+14}")
    A(f"v_lshrrev_b32 v{TC+12}, 3, v1"); A(f"v_lshlrev_b32 v{TC+12}, 10, v{TC+12}"); A(f"v_lshl_add_u32 v{TC+12}, v51, 4, v{TC+12}"); A("s_lshl_b32 s71, s3, 7"); A(f"v_add_u32 v{TC+12}, s71, v{TC+12}")
    A(f"v_lshlrev_b32 v{TC+15}, 11, v50")
    A("s_lshl_b32 s71, s3, 4"); A(f"v_lshlrev_b32 v{TC+20}, 3, v49"); A(f"v_add_u32 v{TC+20}, s71, v{TC+20}"); A(f"v_lshlrev_b32 v{TC+21}, 4, v51")
    A("v_bfe_u32 v49, v1, 3, 1")
    A(f"v_lshlrev_b32 v{TC+23}, 11, v46"); A(f"v_lshl_add_u32 v{TC+23}, v49, 8, v{TC+23}"); A(f"v_lshl_add_u32 v{TC+23}, v51, 4, v{TC+23}")
    A("s_lshr_b32 s71, s3, 2"); A("s_lshl_b32 s71, s71, 7"); A(f"v_add_u32 v{TC+23}, s71, v{TC+23}")
    A("s_lshl_b32 s71, s3, 13"); A(f"s_add_u32 s71, s71, {L_WD}"); A(f"v_add_u32 v{TC+26}, s71, v3")
    A("s_mov_b32 m0, s71")
    A(f"v_lshrrev_b32 v{TC+22}, 2, v1"); A(f"v_lshlrev_b32 v{TC+22}, 11, v{TC+22}"); A(f"v_lshl_add_u32 v{TC+22}, v47, 4, v{TC+22}")
    A(f"v_lshrrev_b32 v{TC+25}, 1, v{TC+6}"); A("s_lshl_b32 s71, s3, 7"); A(f"v_add_u32 v{TC+25}, s71, v{TC+25}")
    srd(44, 22, 23, 1024)
    A("s_cmp_ge_u32 s77, 28")
    A("s_cbranch_scc1 L_suj")
    A("s_mov_b32 s69, 1")
    A("s_lshl_b32 s71, s3, 6"); A("v_lshl_add_u32 v45, v48, 1, s71")
    A("v_mul_u32_u24 v45, 3584, v45"); A("v_lshl_add_u32 v45, v51, 4, v45"); A("s_lshl_b32 s71, s77, 7"); A("v_add_u32 v45, s71, v45")
    A("v_cmp_eq_u32 vcc, 0, v49")
    A("v_mov_b32 v20, s16"); A("v_mov_b32 v21, s18"); A("v_cndmask_b32 v20, v21, v20, vcc")
    A("v_mov_b32 v21, s17"); A("v_mov_b32 v22, s19"); A("v_cndmask_b32 v21, v22, v21, vcc")
    A("v_add_co_u32 v20, vcc, v20, v45"); A("v_addc_co_u32 v21, vcc, 0, v21, vcc")
    for i in range(8):
        for half in range(2):
            A(f"global_load_dwordx4 v[{WGU+8*i+4*half}:{WGU+8*i+4*half+3}], v[20:21], off offset:{3584*half} {wf}")
        if i < 7: A(f"v_add_co_u32 v20, vcc, {8*3584}, v20"); A("v_addc_co_u32 v21, vcc, 0, v21, vcc")
    srd(40, 20, 21, 1792 * 1024)
    A("s_lshl_b32 s71, s77, 16"); A("s_lshr_b32 s73, s3, 2"); A("s_lshl_b32 s73, s73, 15"); A("s_add_u32 s71, s71, s73")
    A("s_and_b32 s73, s3, 3"); A("s_lshl_b32 s73, s73, 8"); A("s_add_u32 s71, s71, s73")
    for i in range(8):
        A(f"buffer_load_dwordx4 v44, s[40:43], s71 offen {wf} lds")
        if i < 7: A(f"s_add_u32 s71, s71, {1024 if i % 2 == 0 else 7168}"); A("s_add_u32 m0, m0, 1024")
    A.label("L_suj")
    A("s_lshl_b32 s22, s77, 6"); A(f"s_add_u32 s22, s22, {YBUF}")
    A("s_add_u32 s23, s22, 32768"); A("s_add_u32 s24, s22, 65536"); A("s_add_u32 s25, s22, 98304")
    A("s_lshr_b32 s16, s68, 1"); A("s_lshl_b32 s16, s16, 16"); A("s_and_b32 s71, s68, 1"); A("s_lshl_b32 s71, s71, 10"); A("s_add_u32 s16, s16, s71")
    A("s_lshl_b32 s71, s3, 7"); A("s_add_u32 s16, s16, s71"); A(f"s_add_u32 s16, s16, {OBUF}")
    A("s_add_u32 s17, s16, 4096")
    A("s_lshr_b32 s71, s3, 2"); A("s_lshl1_add_u32 s20, s68, s71"); A(f"s_lshl_b32 s20, s20, {5+mlsh}"); A(f"s_add_u32 s20, s20, {MLBUF}")
    A("s_lshl_b32 s21, s77, 10"); A("s_lshl_b32 s73, s3, 7"); A("s_add_u32 s21, s21, s73"); A(f"s_add_u32 s21, s21, {HBUF}")
    A("s_lshl_b32 s18, s77, 12"); A("s_lshl_b32 s71, s3, 9"); A("s_add_u32 s18, s18, s71"); A(f"s_add_u32 s18, s18, {YBUF}")
    A("s_lshr_b32 s68, s77, 2")
    A("s_branch L_loop")

    A.label("L_dyn")
    A("s_sub_u32 s73, s71, s70"); A("s_lshr_b32 s73, s73, 10")
    A("v_mov_b32 v48, s73")
    A.label("L_dynw")
    A(f"ds_read_b32 v49, v48 offset:{L_TB}")
    A("s_waitcnt lgkmcnt(0)")
    A("v_readfirstlane_b32 s66, v49")
    A("s_cmp_lg_u32 s66, -1")
    A("s_cbranch_scc1 L_dyng")
    spin("L_dynw")
    A.label("L_dyng")
    if t1:
        A("s_cmp_eq_u32 s66, 2")
        A("s_cbranch_scc1 L_self")
    if skipoob:
        A("s_cmp_ge_u32 s66, s30")
        A("s_cbranch_scc1 L_gox")
    A("s_bitcmp1_b32 s66, 0")
    A("s_cbranch_scc0 L_go")
    A("s_and_b32 s66, s66, -2")
    A("s_max_u32 s71, s66, s57"); A("s_sub_u32 s71, s71, s57"); A("s_lshr_b32 s71, s71, 12"); A("s_sub_u32 s71, s67, s71")
    if tT:
        A("s_and_b32 s14, s2, 7"); A(f"s_cselect_b32 s14, 0, {tT}")
        A("s_cmp_gt_u32 s71, s14")
        A("s_cbranch_scc1 L_dynt")
        A("v_lshl_add_u32 v48, v1, 2, v48")
        A("v_mov_b32 v51, s30")
        A(f"ds_write_b32 v48, v51 offset:{L_TB+4*LA}")
        A("s_branch L_go")
        A.label("L_dynt")
    A(f"s_cmp_gt_u32 s71, {t4}"); A("s_cselect_b32 s15, 4, 2")
    A(f"s_cmp_gt_u32 s71, {t8}"); A(f"s_cselect_b32 s15, {b0}, s15")
    A("s_mov_b32 s14, s15")
    A("s_atomic_add s14, s[26:27], s58 glc")
    A("v_lshl_add_u32 v48, v1, 2, v48")
    A(f"s_sub_u32 s73, s15, {LA}")
    A("s_waitcnt lgkmcnt(0)")
    A("v_add_u32 v49, s14, v1")
    A("v_lshlrev_b32 v50, 12, v49"); A("v_add_u32 v50, s57, v50")
    A("s_add_u32 s14, s14, s15")
    A("s_cmp_ge_u32 s14, s67")
    A("s_cbranch_scc1 L_dynx")
    if t1:
        A(f"s_add_u32 s14, s14, {t1}")
        A("s_cmp_ge_u32 s14, s67")
        A("s_cbranch_scc1 L_dyns")
    A("v_cmp_eq_u32 vcc, s73, v1"); A("v_addc_co_u32 v50, vcc, 0, v50, vcc")
    A("v_cmp_gt_u32 vcc, s15, v1")
    A("s_mov_b64 exec, vcc")
    A(f"ds_write_b32 v48, v50 offset:{L_TB+4*LA}")
    A("s_mov_b64 exec, -1")
    A("s_branch L_go")
    A.label("L_dynx")
    A("v_mov_b32 v51, s30")
    A("v_cmp_gt_u32 vcc, s67, v49")
    A("v_cndmask_b32 v50, v51, v50, vcc")
    A(f"ds_write_b32 v48, v50 offset:{L_TB+4*LA}")
    A("s_branch L_go")
    if t1:
        A.label("L_dyns")
        A("v_cmp_gt_u32 vcc, s15, v1")
        A("v_cndmask_b32 v50, 2, v50, vcc")
        A(f"ds_write_b32 v48, v50 offset:{L_TB+4*LA}")
        A("s_branch L_go")
        A.label("L_self")
        A("s_mov_b32 s14, 1")
        A("s_atomic_add s14, s[26:27], s58 glc")
        A("v_lshl_add_u32 v48, v1, 2, v48")
        A("v_mov_b32 v51, s30")
        A("s_waitcnt lgkmcnt(0)")
        A("s_lshl_b32 s66, s14, 12"); A("s_add_u32 s66, s66, s57")
        A("s_cmp_lt_u32 s14, s67")
        A("s_cbranch_scc1 L_go")
        A("s_mov_b32 s66, s30")
        A(f"ds_write_b32 v48, v51 offset:{L_TB+4}")
        A("s_branch L_go")

    def lred():
        quad_all(19, "v_add_f32")
        A(f"ds_write_b32 v{TC+2}, v18 offset:{L_MX}")
        rows_all(19, 49, "v_add_f32")
        A(f"ds_write_b64 v{TC+1}, v[18:19] offset:{L_ML}")
    A.label("L_done")
    A("s_cmp_eq_u32 s69, 3")
    A("s_cbranch_scc1 L_end")
    lred()
    if skipoob:
        A("s_branch L_done2")
        A.label("L_first")
        A("s_waitcnt vmcnt(0)")
        A("s_branch L_pv")
        A.label("L_last")
        A("s_cmp_eq_u32 s69, 3")
        A("s_cbranch_scc1 L_first")
        lred()
        A("s_waitcnt vmcnt(0)")
        VB = RA + 16
        for j in range(4):
            A(f"v_mfma_f32_16x16x16_bf16 v[10:13], v[{36+2*j}:{37+2*j}], v[{VB+4*j}:{VB+4*j+1}], v[10:13]")
            A(f"v_mfma_f32_16x16x16_bf16 v[14:17], v[{36+2*j}:{37+2*j}], v[{VB+4*j+2}:{VB+4*j+3}], v[14:17]")
        A.label("L_done2")
    stamp(4)
    if cut == 1: A("s_branch L_end")
    A("s_mov_b32 s73, 0xffffff00")
    A("v_mov_b32 v38, s55"); A("v_mov_b32 v39, s56")
    A(f"ds_write_b128 v{TC}, v[10:13] offset:{L_OM}")
    A(f"ds_write_b128 v{TC}, v[14:17] offset:{L_OM+16}")
    A("s_cmp_eq_u32 s69, 1")
    A("s_cbranch_scc1 L_cs")
    A.label("L_csr")
    A("s_waitcnt lgkmcnt(0)")
    A("s_barrier")
    stamp(5)
    A(f"ds_read_b128 v[20:23], v{TC+5} offset:{L_MX}")
    A(f"ds_read_b128 v[24:27], v{TC+5} offset:{L_MX+16}")
    A(f"ds_read_b128 v[28:31], v{TC+4} offset:{L_ML}")
    A(f"ds_read_b128 v[10:13], v{TC+3} offset:{L_OM}")
    A(f"ds_read_b128 v[14:17], v{TC+3} offset:{L_OM+2048}")
    A("s_waitcnt lgkmcnt(3)")
    A("v_max3_f32 v36, v20, v21, v22"); A("v_max3_f32 v37, v23, v24, v25"); A("v_max3_f32 v36, v36, v26, v27"); A("v_max_f32 v36, v36, v37")
    A("v_and_b32 v36, s73, v36")
    A("s_waitcnt lgkmcnt(2)")
    A("v_sub_f32 v28, v28, v36"); A("v_sub_f32 v30, v30, v36")
    A("v_exp_f32 v28, v28"); A("v_exp_f32 v30, v30")
    A("v_or_b32 v36, s53, v36")
    A("v_mul_f32 v37, v28, v29")
    A("v_fmac_f32 v37, v30, v31")
    A("s_waitcnt lgkmcnt(0)")
    A("v_mov_b32 v49, v37")
    for r in range(4): A(f"v_mul_f32 v{10+r}, v{10+r}, v28")
    A("v_permlane32_swap_b32 v37, v49")
    for r in range(2): A(f"v_fmac_f32 v{10+r}, v{14+r}, v30")
    A("v_add_f32 v37, v37, v49")
    for r in range(2, 4): A(f"v_fmac_f32 v{10+r}, v{14+r}, v30")
    A("v_mov_b32 v49, v37")
    A("v_permlane32_swap_b32 v10, v11")
    A("v_permlane32_swap_b32 v12, v13")
    A("v_add_f32 v10, v10, v11")
    A("v_add_f32 v12, v12, v13")
    A("v_permlane16_swap_b32 v37, v49")
    A("v_add_f32 v37, v37, v49")
    A("v_permlane16_swap_b32 v10, v12")
    A("v_add_f32 v10, v10, v12")
    A(f"v_and_or_b32 v10, v10, s73, v{TC+27}")
    A(f"buffer_store_dword v10, v{TC+10}, s[36:39], s0 offen {osf}")
    A("s_bitcmp1_b32 s3, 0")
    A("s_cbranch_scc1 L_mj")
    A("v_and_b32 v37, s73, v37"); A("v_or_b32 v37, s54, v37")
    A("s_mov_b64 exec, 1")
    A(f"buffer_store_dwordx4 v[36:39], v3, s[36:39], s1 offen {osf}")
    A("s_mov_b64 exec, -1")
    A.label("L_mj")
    stamp(6)
    A("s_cmp_eq_u32 s69, 0")
    A("s_cbranch_scc1 L_end")
    A("v_and_b32 v54, 0x1f0, v3")
    A(f"buffer_load_dwordx4 v[40:43], v54, s[36:39], 0 offen offset:{XBUF} sc1")
    if codepf:
        A("s_getpc_b64 s[12:13]")
        A.label("L_pcref")
        A("s_lshl_b32 s71, s3, 9"); A("s_add_u32 s12, s12, s71"); A("s_addc_u32 s13, s13, 0")
        A(f"v_lshlrev_b32 v48, 3, v1")
        A("global_load_dwordx2 v[44:45], v48, s[12:13]")
    if outpf:
        A("buffer_load_dword v44, v3, s[44:47], 0 offen")
    if pretouch:
        A("s_lshl_b32 s71, s3, 5"); A("s_add_u32 s71, s71, s77")
        A("s_cmp_ge_u32 s71, 144")
        A("s_cbranch_scc1 L_nopt")
        A("s_lshl_b32 s71, s71, 10"); A(f"s_add_u32 s71, s71, {HBUF}")
        A("buffer_load_dwordx4 v[44:47], v3, s[36:39], s71 offen sc1")
        A.label("L_nopt")
    A("s_lshl_b32 s60, s3, 8"); A(f"s_add_u32 s60, s60, {HBUF}")
    A("s_add_u32 s61, s60, 8192"); A("s_add_u32 s62, s60, 16384"); A("s_add_u32 s63, s60, 24576")
    OB = RA
    for k in range(4): A(f"ds_read_b128 v[{20+4*k}:{23+4*k}], v{TC+23} offset:{L_RED2+512*k}")
    A("s_waitcnt lgkmcnt(0)")
    sum4x4()
    A("v_mov_b32 v51, v20")
    A("s_waitcnt vmcnt(0)")
    A.label("L_xchk")
    for k in range(4): A(f"v_xor_b32 v{40+k}, s{53+k}, v{40+k}")
    A("v_or3_b32 v55, v41, v42, v43")
    A("v_and_b32 v53, 0xff, v40"); A("v_or_b32 v55, v55, v53")
    A("v_cmp_ne_u32 vcc, 0, v55")
    A("s_cbranch_vccz L_xok")
    A(f"buffer_load_dwordx4 v[40:43], v54, s[36:39], 0 offen offset:{XBUF} sc1")
    A("s_waitcnt vmcnt(0)")
    spin("L_xchk")
    A.label("L_xok")
    A("v_cmp_ne_u32 vcc, s78, v40")
    A("s_mov_b32 s64, 0")
    if local:
        A("s_cbranch_vccnz L_xg")
        A("s_mov_b32 s64, 1")
        A.label("L_xg")
    A(f"v_lshlrev_b32 v{TC+13}, 16, v{TC+13}")
    for i in range(8):
        r = WDR[i >> 1] + 4 * (i & 1)
        A(f"ds_read_b128 v[{r}:{r+3}], v{TC+26} offset:{1024*i}")
    for F in FS:
        for r in range(4): A(f"v_mov_b32 v{F+r}, 0")
    for r in range(10, 18): A(f"v_mov_b32 v{r}, 0")
    A("v_and_b32 v4, 3, v1"); A("v_mul_u32_u24 v4, 0x5555, v4")
    OG = [(OB + 4 * j, TC + 8, 16 + (j >> 1), 2048 * (j & 1)) for j in range(4)]
    A.label("L_h1pre")
    A(f"buffer_load_dword v23, v{TC+9}, s[36:39], s20 offen offset:12 sc1")
    A("s_waitcnt vmcnt(0)")
    A("v_cmp_eq_u32 vcc, s56, v23")
    A("s_bcnt1_i32_b64 s71, vcc")
    A(f"s_cmp_ge_u32 s71, {2*thr1}")
    A("s_cbranch_scc1 L_h1go")
    spin("L_h1pre", slp1)
    A.label("L_h1go")
    gather("L_h1", [[(20, TC + 9, 20, 0)]] + [[g] for g in OG])
    stamp(7)
    dpp("v_max_f32", 22, 20, 20, "quad_perm:[1,0,3,2]")
    for ctl in ("quad_perm:[2,3,0,1]", "row_ror:8"): dpp("v_max_f32", 22, 22, 22, ctl)
    rows_all(22, 23, "v_max_f32")
    A("v_sub_f32 v20, v20, v22")
    A("v_exp_f32 v20, v20")
    A("v_mul_f32 v21, v20, v21")
    fm = []
    for j in range(4):
        for r in range(4):
            op = "v_mul_f32" if j == 0 else "v_fmac_f32"
            fm.append(f"{op}_dpp v{24+r}, v20, v{OB+4*j+r} quad_perm:[{j},{j},{j},{j}] {DPPF}")
    lr = [f"v_add_f32_dpp v21, v21, v21 {c} {DPPF}" for c in ("quad_perm:[1,0,3,2]", "quad_perm:[2,3,0,1]", "row_ror:8")]
    lr += ["v_mov_b32 v22, v21", "v_permlane32_swap_b32 v21, v22", "v_add_f32 v21, v21, v22\nv_mov_b32 v22, v21"]
    for k in range(len(fm)):
        A(fm[k])
        if k % 2 == 1 and k >= 1 and lr: A(lr.pop(0))
    assert not lr
    A("v_permlane16_swap_b32 v21, v22")
    A("v_add_f32 v21, v21, v22")
    A("v_permlane32_swap_b32 v24, v25")
    A("v_permlane32_swap_b32 v26, v27")
    A("v_add_f32 v24, v24, v25")
    A("v_add_f32 v26, v26, v27")
    A("v_rcp_f32 v21, v21")
    A("v_permlane16_swap_b32 v24, v26")
    A("v_add_f32 v24, v24, v26")
    dpp("v_add_f32", 24, 24, 24, "row_ror:8")
    A("v_mul_f32 v20, v24, v21")
    rbf(20, 20)
    def frag(j, src):
        F = FS[j % 3]
        for r in range(4):
            A(f"v_mov_b32_dpp v{F+r}, v{src} row_newbcast:{2*j+(r>>1)} row_mask:0xf bank_mask:{'0x5' if r % 2 == 0 else '0xa'}")
        return F
    def frag2(j):
        F = FS[j % 3]
        for r in range(4):
            q = 2 * j + (r >> 1); second = r & 1
            src, p = (20, q & 3) if (q >> 2) == second else (21, 3 - (q & 3))
            A(f"v_mov_b32_dpp v{F+r}, v{src} quad_perm:[{p},{p},{p},{p}] row_mask:0xf bank_mask:{'0xa' if second else '0x5'}")
        return F
    def gemv16(W, red, pair=True):
        fr = frag2 if pair else (lambda i: frag(i, 20))
        if pair: A(f"v_mov_b32_dpp v21, v20 row_half_mirror {DPPF}")
        Fs = {0: fr(0)}
        for j in range(4):
            if j < 3: Fs[j + 1] = fr(j + 1)
            for v in range(2):
                acc = 10 + 4 * v; b = W + 8 * (4 * v + j)
                A(f"v_smfmac_f32_16x16x64_bf16 v[{acc}:{acc+3}], v[{Fs[j]}:{Fs[j]+3}], v[{b}:{b+7}], v4")
        A("s_mov_b32 exec_hi, 0")
        A(f"ds_write_b128 v{TC+11}, v[10:13] offset:{red}")
        A("s_mov_b32 exec_lo, 0"); A("s_mov_b32 exec_hi, -1")
        A(f"ds_write_b128 v{TC+11}, v[14:17] offset:{red}")
        A("s_mov_b64 exec, -1")
        A("s_waitcnt lgkmcnt(0)")
        A("s_barrier")
    gemv16(WO, L_RED, pair=False)
    A(f"ds_read_b128 v[20:23], v{TC+12} offset:{L_RED}")
    A("s_cmp_eq_u32 s64, 1")
    A("s_waitcnt lgkmcnt(0)")
    rr4(20, 21, 22, 23)
    dpp("v_add_f32", 20, 20, 20, "row_ror:8")
    A("s_mov_b32 exec_lo, 0x00ff00ff"); A("s_mov_b32 exec_hi, 0x00ff00ff")
    A(f"v_and_or_b32 v36, v20, s73, v{TC+7}")
    lstore("L_hs", f"buffer_store_dword v36, v{TC+6}, s[36:39], s21 offen")
    A("s_mov_b64 exec, -1")
    stamp(8)
    if hw == -1: A("s_waitcnt vmcnt(0)")
    elif hw == -2: A("s_barrier")
    elif hw: A(f"s_sleep {hw}")
    A.label("L_h2")
    A("s_cmp_lg_u32 s69, 2")
    A("s_cbranch_scc1 L_h2f")
    A("s_cmp_lg_u32 s3, 7")
    A("s_cbranch_scc1 L_end")
    A.label("L_h2f")
    for r in list(range(10, 18)) + list(range(56, 60)): A(f"v_mov_b32 v{r}, 0")
    A("v_mov_b32 v52, s73")
    if h2pre:
        A("s_mov_b64 exec, 0xffff")
        A.label("L_h2pre")
        A(f"buffer_load_dword v53, v{TC+15}, s[36:39], s60 offen sc1")
        A("s_waitcnt vmcnt(0)")
        A("v_and_b32 v53, 0xff, v53")
        A("v_cmp_ne_u32 vcc, s53, v53")
        A("s_cbranch_vccz L_h2go")
        spin("L_h2pre")
        A.label("L_h2go")
    if flat2: gatherf("L_h2", [(20 + 4 * j, TC + 14, 60 + j, 0) for j in range(4)])
    else: gather("L_h2", [[(20 + 4 * j, TC + 14, 60 + j, 0)] for j in range(4)])
    stamp(2)
    sum4x4()
    rbf(20, 20)
    A(f"v_add_f32 v20, v20, v{TC+13}")
    rbf(20, 20)
    A("s_cmp_eq_u32 s69, 2")
    A("v_mov_b32 v50, v20")
    A("s_cbranch_scc1 L_fin0")
    A("v_readfirstlane_b32 s71, v20")
    A(f"v_mov_b32_dpp v21, v20 row_half_mirror {DPPF}")
    st = ["v_subrev_f32 v25, s71, v20\nv_mov_b32 v24, s71\nv_mul_f32 v26, v25, v25", "v_permlane32_swap_b32 v25, v26\nv_add_f32 v25, v25, v26"]
    st += [f"v_add_f32_dpp v25, v25, v25 {c} {DPPF}" for c in ("quad_perm:[1,0,3,2]", "quad_perm:[2,3,0,1]", "row_ror:8")]
    st += [f"v_add_f32_dpp v25, v25, v25 row_ror:4 {DPPF}\nv_mov_b32 v26, v25", "v_permlane16_swap_b32 v25, v26\nv_add_f32 v25, v25, v26"]
    A(st.pop(0))
    Fs = {0: frag2(0)}
    A(st.pop(0))
    for j in range(4):
        if j < 3: Fs[j + 1] = frag2(j + 1); A(st.pop(0))
        for v in range(2):
            acc = 10 + 4 * v; b = WGU + 8 * (4 * v + j)
            A(f"v_smfmac_f32_16x16x64_bf16 v[{acc}:{acc+3}], v[{Fs[j]}:{Fs[j]+3}], v[{b}:{b+7}], v4")
        if j >= 2: A(st.pop(0))
    assert not st
    A("s_mov_b32 exec_lo, 1"); A("s_mov_b32 exec_hi, 1")
    A(f"ds_write_b64 v{TC+20}, v[24:25] offset:{L_ST}")
    A("s_mov_b32 exec_lo, -1"); A("s_mov_b32 exec_hi, 0")
    A(f"ds_write_b128 v{TC+11}, v[10:13] offset:{L_RED2}")
    A("s_mov_b32 exec_lo, 0"); A("s_mov_b32 exec_hi, -1")
    A(f"ds_write_b128 v{TC+11}, v[14:17] offset:{L_RED2}")
    A("s_mov_b64 exec, -1")
    A("s_waitcnt lgkmcnt(0)")
    A("s_barrier")
    stamp(3)
    A(f"ds_read_b128 v[60:63], v{TC+21} offset:{L_ST}")
    for k in range(4): A(f"ds_read_b128 v[{20+4*k}:{23+4*k}], v{TC+23} offset:{L_RED2+512*k}")
    A("s_waitcnt lgkmcnt(4)")
    A("v_readfirstlane_b32 s71, v60")
    A("v_subrev_f32 v60, s71, v60")
    A("v_fmamk_f32 v64, v60, 0x42800000, v61")
    A("v_add_f32 v61, v61, v64")
    A("v_fma_f32 v62, v60, v61, v63")
    A("s_waitcnt lgkmcnt(0)")
    c3 = ("quad_perm:[1,0,3,2]", "quad_perm:[2,3,0,1]", "row_half_mirror")
    pk = ["v_pk_add_f32 v[20:21], v[20:21], v[24:25]", "v_pk_add_f32 v[22:23], v[22:23], v[26:27]", "v_pk_add_f32 v[28:29], v[28:29], v[32:33]",
          "v_pk_add_f32 v[30:31], v[30:31], v[34:35]", "v_pk_add_f32 v[20:21], v[20:21], v[28:29]", "v_pk_add_f32 v[22:23], v[22:23], v[30:31]"]
    for k in range(3):
        A(pk[2 * k]); dpp("v_add_f32", 64, 64, 64, c3[k]); A(pk[2 * k + 1]); dpp("v_add_f32", 62, 62, 62, c3[k])
    A("v_mul_f32 v64, 0x3b000000, v64")
    A("v_permlane32_swap_b32 v20, v21")
    A("v_permlane32_swap_b32 v22, v23")
    A("v_mul_f32 v62, 0x3b000000, v62")
    A("v_add_f32 v20, v20, v21")
    A("v_add_f32 v22, v22, v23")
    A("v_fma_f32 v62, -v64, v64, v62")
    A("v_max_f32 v62, 0, v62")
    A("v_permlane16_swap_b32 v20, v22")
    A("v_add_f32 v62, 0x3727c5ac, v62")
    A("v_add_f32 v64, s71, v64")
    A("v_rsq_f32 v62, v62")
    A("v_add_f32 v20, v20, v22")
    A("v_fma_f32 v20, -v64, v51, v20")
    A("v_mul_f32 v20, v20, v62")
    dpp("v_mul_f32", 21, 20, 20, "row_ror:8")
    rbf(21, 21)
    Fs = {0: frag(0, 21)}
    for j in range(4):
        if j < 3: Fs[j + 1] = frag(j + 1, 21)
        A(f"v_smfmac_f32_16x16x64_bf16 v[56:59], v[{Fs[j]}:{Fs[j]+3}], v[{WDR[j]}:{WDR[j]+7}], v4")
    A("s_mov_b32 exec_hi, 0")
    A("s_cmp_eq_u32 s64, 1")
    for r in range(4): A(f"v_and_or_b32 v{56+r}, v{56+r}, v52, s{53+r}")
    lstore("L_ys", f"buffer_store_dwordx4 v[56:59], v{TC+24}, s[36:39], s18 offen")
    stamp(9)
    A("s_cmp_lg_u32 s3, s68")
    A("s_cbranch_scc1 L_end")
    A("s_mov_b64 exec, -1")
    if yw == -1: A("s_waitcnt vmcnt(0)")
    elif yw: A(f"s_sleep {yw}")
    A("s_branch L_fin")
    A.label("L_fin0")
    A("s_cmp_lg_u32 s77, 28"); A("s_cbranch_scc1 L_fin")
    A("s_mov_b64 exec, 1")
    A("v_mov_b32 v36, s52")
    A("buffer_store_dword v36, v3, s[36:39], 0 offen sc1")
    A("s_mov_b64 exec, -1")
    A.label("L_fin")
    if flat3: gatherf("L_h3", [(20 + 4 * j, TC + 22, 22 + j, 0) for j in range(4)], last_half=True)
    else:
        for r in range(4): A(f"v_mov_b32 v{32+r}, 0")
        gather("L_h3", [[(20 + 4 * j, TC + 22, 22 + j, 0)] for j in range(4)], [-1, -1, -1, 0xffffffff])
    stamp(5)
    sum4x4()
    A("s_and_b32 s71, s77, 3"); A("s_lshl_b32 s71, s71, 2")
    dpp("v_add_f32", 20, 20, 20, "row_ror:8"); dpp("v_add_f32", 20, 20, 20, "row_ror:4")
    A("s_lshl_b32 s71, 0x000f000f, s71")
    rbf(20, 20)
    A("v_add_f32 v20, v20, v50")
    rbf(20, 20)
    if diag:
        A.label("L_dg1")
        A("s_memrealtime s[82:83]"); A("s_waitcnt lgkmcnt(0)")
        A("s_sub_u32 s82, s82, s80"); A("s_cmp_lt_u32 s82, 6000"); A("s_cbranch_scc1 L_dg1")
    A("s_mov_b32 exec_lo, s71"); A("s_mov_b32 exec_hi, s71")
    A(f"buffer_store_short_d16_hi v20, v{TC+25}, s[44:47], 0 offen")
    A("s_branch L_end")
    A.label("L_cs")
    A("v_and_b32 v4, 3, v1"); A("v_mul_u32_u24 v4, 0x5555, v4")
    for r in range(20, 32): A(f"v_mov_b32 v{r}, 0")
    A("v_mov_b32 v32, 1.0")
    A("s_waitcnt vmcnt(0)")
    for r in range(4): A(f"v_mov_b32_dpp v{28+r}, v32 quad_perm:[0,0,0,0] row_mask:0xf bank_mask:{'0x5' if r % 2 == 0 else '0xa'}")
    for j in range(4):
        for v in range(2):
            b = WGU + 8 * (4 * v + j)
            A(f"v_smfmac_f32_16x16x64_bf16 v[{20+4*v}:{23+4*v}], v[28:31], v[{b}:{b+7}], v4")
    A("s_mov_b32 exec_hi, 0")
    A(f"ds_write_b128 v{TC+11}, v[20:23] offset:{L_RED2}")
    A("s_mov_b32 exec_lo, 0"); A("s_mov_b32 exec_hi, -1")
    A(f"ds_write_b128 v{TC+11}, v[24:27] offset:{L_RED2}")
    A("s_mov_b64 exec, -1")
    A("s_branch L_csr")
    for (lab, back) in post:
        A.label(lab); spin(back)
    for (name, text) in post2:
        A.label(f"{name}_g"); A(text + " sc1"); A(f"s_branch {name}_j")
    A.label("L_end")
    if prof:
        A("s_waitcnt vmcnt(0)")
        stamp(10)
        A("s_mov_b64 exec, -1")
        A("s_waitcnt lgkmcnt(0)")
        for i in range(11): A(f"v_writelane_b32 v20, s{80+2*i}, {i}")
        A("v_writelane_b32 v20, s64, 11")
        A("s_getreg_b32 s71, hwreg(HW_REG_XCC_ID)"); A("v_writelane_b32 v20, s71, 12")
        A("s_lshl_b32 s71, s2, 3"); A("s_add_u32 s71, s71, s3"); A("s_lshl_b32 s71, s71, 6"); A(f"s_add_u32 s71, s71, {PROF}")
        A("v_lshlrev_b32 v21, 2, v1")
        A("s_mov_b64 exec, 0xffff")
        A("buffer_store_dword v20, v21, s[36:39], s71 offen")
    A.label("L_exit")
    A("s_endpgm")
    body = A.finish()
    nv = max(A.maxv + 1, 136)
    txt = HEADER + f"; @launch grid=(256,1,1) block=(512,1,1) lds={L_END}\n"
    txt += f'.amdgcn_target "amdgcn-amd-amdhsa--gfx950"\n.text\n.globl {KNAME}\n.p2align 8\n.type {KNAME},@function\n{KNAME}:\n'
    txt += body
    txt += ".fill 256, 4, 0xbf800000\n"
    txt += f'.section .rodata,"a"\n.p2align 6\n.amdhsa_kernel {KNAME}\n  .amdhsa_next_free_vgpr {nv}\n  .amdhsa_next_free_sgpr 102\n'
    txt += f"  .amdhsa_accum_offset {(nv+3)//4*4}\n  .amdhsa_group_segment_fixed_size 0\n  .amdhsa_kernarg_size 96\n  .amdhsa_user_sgpr_count 2\n"
    txt += "  .amdhsa_user_sgpr_kernarg_segment_ptr 1\n  .amdhsa_system_sgpr_workgroup_id_x 1\n  .amdhsa_float_denorm_mode_32 3\n.end_amdhsa_kernel\n"
    return txt

if __name__ == "__main__":
    import argparse
    p = argparse.ArgumentParser(); p.add_argument("-o"); p.add_argument("kv", nargs="*")
    a = p.parse_args()
    kw = {k: eval(v) for k, v in (x.split("=") for x in a.kv)}
    open(a.o, "w").write(gen(**kw))
```

```python
import sys, struct
sys.path.insert(0, "gen")
from asmlib import Asm

KNAME = "sequential_preLN__gqa_block_cached__glu_gated_bilinear__decode_kernel"
HEADER = open("sequential_preLN__gqa_block_cached__glu_gated_bilinear__decode.s.ref").read().split("; Override launch")[0]

XBUF, QBUF, OBUF, HBUF, YBUF, CBUF, MLBUF, WS_END = 0x800, 0x1000, 0x10000, 0xAC000, 0xB0000, 0xD0000, 0x140000, 0x180000
PROF = 0x100000
L_OM, L_ML, L_MX, L_QF, L_TK, L_ST, L_RED, L_RED2, L_HL, L_TB, L_WD, L_END = 0, 0x4000, 0x4100, 0x4600, 0x4A00, 0x4B00, 0x5000, 0x7000, 0x4C00, 0x9000, 0x9800, 0x19800
DPPF = "row_mask:0xf bank_mask:0xf"
SPIN = 1 << 20

def gen(NX=4, prof=False, S0=104, offT=48, offF=24, offQ=12, thr1=8, slp1=4, qslp=4, LA=2, t8=128, t4=48, t1=0, b0=8,
        cstride=256, kf='nt', vf='nt', wf='', mlsh=4, cut=0, local=True, pretouch=True, tT=64, diag=0, codepf=True, outpf=True, h2pre=False, opre=None, osf='sc1', ew=8, ewx=0, PS=0, pgap=0, flat2=True, flat3=True, skipoob=True, hw=-2, yw=0, stx=True, noround=0, trace=False, tlbpf=0, tS=0, sm=8, XT=0, W=0, qprof=False, qhold=True, X2=2):
    A = Asm()
    RA, RX = 56, 88
    WO, WGU = 88, 152
    WDR = [72, 80, 244, 40]
    FS = [232, 6, 252]
    TC = 216
    OOB = 0x1000000
    D0 = (4096 - 32 * S0 + 8 * offQ + 4 * offT) // 4
    assert offF % 4 == 0
    D1 = D0 - offF // 4
    assert LA + D0 + 64 + 64 <= 512
    seen = {}
    def stamp(i):
        if prof: A(f"s_memrealtime s[{80+2*i}:{81+2*i}]")
        seen[i] = seen.get(i, 0) + 1
        if diag == (i, seen[i]): A("s_memrealtime s[80:81]")
    def rr4(a, b, c, d):
        A(f"v_permlane32_swap_b32 v{a}, v{b}")
        A(f"v_permlane32_swap_b32 v{c}, v{d}")
        A(f"v_add_f32 v{a}, v{a}, v{b}")
        A(f"v_add_f32 v{c}, v{c}, v{d}")
        A(f"v_permlane16_swap_b32 v{a}, v{c}")
        A(f"v_add_f32 v{a}, v{a}, v{c}")
    def rows_all(x, t, op):
        A(f"v_mov_b32 v{t}, v{x}")
        A(f"v_permlane32_swap_b32 v{x}, v{t}")
        A(f"{op} v{x}, v{x}, v{t}")
        A(f"v_mov_b32 v{t}, v{x}")
        A(f"v_permlane16_swap_b32 v{x}, v{t}")
        A(f"{op} v{x}, v{x}, v{t}")
    def dpp(op, d, s, o, ctl): A(f"{op}_dpp v{d}, v{s}, v{o} {ctl} {DPPF}")
    def quad_all(x, op):
        dpp(op, x, x, x, "quad_perm:[1,0,3,2]"); dpp(op, x, x, x, "quad_perm:[2,3,0,1]")
    def wave_all(x, t, op):
        quad_all(x, op); dpp(op, x, x, x, "row_ror:8"); dpp(op, x, x, x, "row_ror:4"); rows_all(x, t, op)
    def rbf(d, s): A(f"v_cvt_pk_bf16_f32 v{d}, 0, v{s}")
    def ln_fin(mean, var):
        rbf(var, var)
        rbf(mean, mean)
        A(f"v_add_f32 v{var}, 0x37280000, v{var}")
        rbf(var, var)
        A(f"v_sqrt_f32 v{var}, v{var}")
        rbf(var, var)
        A(f"v_rcp_f32 v{var}, v{var}")
    def ln_stats(vals, mean, rinv, t):
        A(f"v_add_f32 v{mean}, v{vals[0]}, v{vals[1]}")
        A(f"v_add_f32 v{t}, v{vals[2]}, v{vals[3]}")
        A(f"v_add_f32 v{rinv}, v{vals[4]}, v{vals[5]}")
        A(f"v_add_f32 v{mean}, v{mean}, v{t}")
        A(f"v_add_f32 v{t}, v{vals[6]}, v{vals[7]}")
        A(f"v_add_f32 v{rinv}, v{rinv}, v{t}")
        A(f"v_add_f32 v{mean}, v{mean}, v{rinv}")
        wave_all(mean, t, "v_add_f32")
        A(f"v_mul_f32 v{mean}, 0x3b000000, v{mean}")
        for v in vals: A(f"v_sub_f32 v{v}, v{v}, v{mean}")
        A(f"v_mul_f32 v{rinv}, v{vals[0]}, v{vals[0]}")
        A(f"v_mul_f32 v{t}, v{vals[1]}, v{vals[1]}")
        for k in range(2, 8, 2):
            A(f"v_fmac_f32 v{rinv}, v{vals[k]}, v{vals[k]}")
            A(f"v_fmac_f32 v{t}, v{vals[k+1]}, v{vals[k+1]}")
        A(f"v_add_f32 v{rinv}, v{rinv}, v{t}")
        wave_all(rinv, t, "v_add_f32")
        A(f"v_mul_f32 v{rinv}, 0x3b000000, v{rinv}")
        ln_fin(mean, rinv)
    def srd(d, lo, hi, n):
        A(f"s_mov_b32 s{d}, s{lo}"); A(f"s_mov_b32 s{d+1}, s{hi}"); A(f"s_mov_b32 s{d+2}, {hex(n)}"); A(f"s_mov_b32 s{d+3}, 0x20000")
    def spin(label, slp=0):
        A("s_sub_u32 s72, s72, 1")
        A("s_cbranch_scc1 L_end")
        if slp: A(f"s_sleep {slp}")
        A(f"s_branch {label}")
    MREG = [4, 6, 8, 10, 28, 30, 32, 34, 40]
    def gather(name, groups, init_masks=None, check_first=False):
        ng = len(groups)
        for j in range(ng):
            m = -1 if init_masks is None else init_masks[j]; M = MREG[j]
            if m == -1: A(f"s_mov_b64 s[{M}:{M+1}], -1")
            else: A(f"s_mov_b32 s{M}, {hex(m & 0xffffffff)}"); A(f"s_mov_b32 s{M+1}, {hex(m >> 32)}")
        if check_first: A(f"s_branch {name}_chk")
        A.label(f"{name}_rnd")
        for j, g in enumerate(groups):
            M = MREG[j]
            A(f"s_mov_b64 exec, s[{M}:{M+1}]")
            A(f"s_cbranch_execz {name}_i{j}")
            for (r, va, so, imm) in g:
                A(f"buffer_load_dwordx4 v[{r}:{r+3}], v{va}, s[36:39], s{so} offen offset:{imm} sc1")
            A.label(f"{name}_i{j}")
        A.label(f"{name}_chk")
        A("s_mov_b64 s[12:13], 0")
        A("s_waitcnt vmcnt(0)")
        for j, g in enumerate(groups):
            M = MREG[j]
            A(f"s_mov_b64 exec, s[{M}:{M+1}]")
            A(f"s_cbranch_execz {name}_c{j}")
            regs = [r + k for (r, _, _, _) in g for k in range(4)]
            for k, r in enumerate(regs): A(f"v_xor_b32 v{r}, s{53+(k&3)}, v{r}")
            A(f"v_or3_b32 v55, v{regs[0]}, v{regs[1]}, v{regs[2]}")
            rest = regs[3:]
            while len(rest) >= 2:
                A(f"v_or3_b32 v55, v55, v{rest[0]}, v{rest[1]}"); rest = rest[2:]
            A(f"v_or_b32 v55, v55, v{rest[0]}")
            A("v_and_b32 v55, 0xff, v55")
            A(f"v_cmp_ne_u32 s[{M}:{M+1}], 0, v55")
            A(f"s_or_b64 s[12:13], s[12:13], s[{M}:{M+1}]")
            A.label(f"{name}_c{j}")
        A("s_mov_b64 exec, -1")
        A("s_cmp_eq_u64 s[12:13], 0")
        A(f"s_cbranch_scc1 {name}_ok")
        spin(f"{name}_rnd")
        A.label(f"{name}_ok")
    def gatherp(name, groups, raws):
        ng = len(groups)
        for j in range(ng): A(f"s_mov_b64 s[{MREG[j]}:{MREG[j]+1}], -1")
        NL = sum(len(g) for g in groups)
        def issue(rb):
            n = 0
            for j, g in enumerate(groups):
                A(f"s_or_b64 exec, s[{MREG[j]}:{MREG[j]+1}], 1")
                for (r, va, so, imm) in g:
                    A(f"buffer_load_dwordx4 v[{rb+4*n}:{rb+4*n+3}], v{va}, s[36:39], s{so} offen offset:{imm} sc1")
                    n += 1
        for rb in raws: issue(rb)
        A.label(f"{name}_rnd")
        for k, rb in enumerate(raws):
            A("s_mov_b64 s[12:13], 0")
            A(f"s_waitcnt vmcnt({(len(raws)-1)*NL})")
            n = 0
            for j, g in enumerate(groups):
                M = MREG[j]
                A(f"s_mov_b64 exec, s[{M}:{M+1}]")
                A(f"s_cbranch_execz {name}_c{k}_{j}")
                regs = []
                for (r, _, _, _) in g:
                    for e in range(4):
                        A(f"v_xor_b32 v{r+e}, s{53+e}, v{rb+4*n+e}"); regs.append(r + e)
                    n += 1
                A(f"v_or3_b32 v55, v{regs[0]}, v{regs[1]}, v{regs[2]}")
                A(f"v_or_b32 v55, v55, v{regs[3]}")
                A("v_and_b32 v55, 0xff, v55")
                A(f"v_cmp_ne_u32 s[{M}:{M+1}], 0, v55")
                A(f"s_or_b64 s[12:13], s[12:13], s[{M}:{M+1}]")
                A.label(f"{name}_c{k}_{j}")
            A("s_cmp_eq_u64 s[12:13], 0")
            A(f"s_cbranch_scc1 {name}_ok")
            if pgap: A(f"s_sleep {pgap}")
            issue(rb)
        spin(f"{name}_rnd")
        A.label(f"{name}_ok")
        A("s_mov_b64 exec, -1")
    def gatherf(name, loads, last_half=False):
        A.label(f"{name}_rnd")
        for k, (r, va, so, imm) in enumerate(loads):
            if last_half and k == len(loads) - 1:
                for e in range(4): A(f"v_mov_b32 v{r+e}, s{53+e}")
                A("s_mov_b32 exec_hi, 0")
            A(f"buffer_load_dwordx4 v[{r}:{r+3}], v{va}, s[36:39], s{so} offen offset:{imm} sc1")
        if last_half: A("s_mov_b32 exec_hi, -1")
        n = len(loads)
        for k, (r, _, _, _) in enumerate(loads):
            A(f"s_waitcnt vmcnt({n-1-k})")
            for e in range(4): A(f"v_xor_b32 v{r+e}, s{53+e}, v{r+e}")
            if k == 0: A(f"v_or_b32 v55, v{r}, v{r+1}")
            else: A(f"v_or3_b32 v55, v55, v{r}, v{r+1}")
            A(f"v_or3_b32 v55, v55, v{r+2}, v{r+3}")
        A("v_and_b32 v55, 0xff, v55")
        A("v_cmp_ne_u32 vcc, 0, v55")
        A(f"s_cbranch_vccnz {name}_re")
        post.append((f"{name}_re", f"{name}_rnd"))
    def gathers(name, va, so):
        A.label(f"{name}_rnd")
        A(f"buffer_load_dwordx4 v[20:23], v{va}, s[36:39], s{so} offen sc1")
        A(f"buffer_load_dwordx4 v[24:27], v{va}, s[36:39], s{so+1} offen sc1")
        for r in range(4): A(f"v_mov_b32 v{28+r}, 0")
        A("s_waitcnt vmcnt(1)")
        A("v_pk_max_u16 v55, v20, v21"); A("v_pk_max_u16 v53, v22, v23"); A("v_pk_max_u16 v55, v55, v53")
        A("s_waitcnt vmcnt(0)")
        A("v_smfmac_f32_16x16x64_bf16 v[28:31], v[68:71], v[20:27], v4")
        for r in range(24, 28): A(f"v_pk_max_u16 v55, v55, v{r}")
        A("v_pk_max_u16 v55, v55, v55 op_sel:[1,0] op_sel_hi:[0,1]")
        A("v_cmp_eq_u32 vcc, -1, v55")
        A(f"s_cbranch_vccnz {name}_re")
        post.append((f"{name}_re", f"{name}_rnd"))
    post = []; post2 = []
    def lstore(name, text):
        A(f"s_cbranch_scc0 {name}_g")
        A(text)
        A.label(f"{name}_j")
        post2.append((name, text))
    thr = [None]
    def throttle():
        if thr[0] is not None:
            if thr[0] >= W: A(f"s_waitcnt vmcnt({W-1})")
            thr[0] += 1
    def issueK(base, so):
        for j in range(4):
            r = base + 4 * j
            throttle()
            A(f"buffer_load_dwordx4 v[{r}:{r+3}], v2, s[28:31], s{so} offen offset:{1024*j} {kf}")
    def issueV(base, so):
        for j in range(4):
            r = base + 16 + 4 * j
            throttle()
            A(f"buffer_load_dwordx4 v[{r}:{r+3}], v3, s[32:35], s{so} offen offset:{1024*j} {vf}")
    def common_setup():
        A("s_mov_b32 s60, 0x22222222"); A("s_mov_b32 s61, 0x22222222")
        A("s_mov_b32 s62, 0x44444444"); A("s_mov_b32 s63, 0x44444444")
        A("s_mov_b32 s64, 0x88888888"); A("s_mov_b32 s65, 0x88888888")
        A("s_mov_b32 s74, 0x3db504f3"); A("s_mov_b32 s75, 0x3fb8aa3b")
        A(f"s_mov_b32 s72, {SPIN}")
        A("v_mov_b32 v44, 0xffff"); A("v_mov_b32 v45, 0xffff0000")
        A("v_mov_b32 v4, 0"); A("v_mov_b32 v5, 0")
        A("v_cmp_eq_u32 vcc, 0, v47")
        A("v_cndmask_b32 v4, v4, v44, vcc")
        A("v_cndmask_b32 v4, v4, v45, s[60:61]")
        A("v_cndmask_b32 v5, v5, v44, s[62:63]")
        A("v_cndmask_b32 v5, v5, v45, s[64:65]")
        for r in range(10, 18): A(f"v_mov_b32 v{r}, 0")
        A("v_mov_b32 v18, 0xff7fffff"); A("v_mov_b32 v19, 0")
    def k32masks(b):
        A("v_bfe_u32 v51, v1, 2, 1"); A("v_cmp_eq_u32 vcc, 0, v51")
        A(f"v_cndmask_b32 v{b}, 0, v4, vcc"); A(f"v_cndmask_b32 v{b+1}, 0, v5, vcc")
        A(f"v_cndmask_b32 v{b+2}, v4, 0, vcc"); A(f"v_cndmask_b32 v{b+3}, v5, 0, vcc")
    def tags():
        A("s_add_u32 s52, s52, 0x9e3779b9")
        A("s_and_b32 s53, s52, 0xff"); A("s_bfe_u32 s54, s52, 0x80008"); A("s_bfe_u32 s55, s52, 0x80010"); A("s_lshr_b32 s56, s52, 24")
        A("s_and_b32 s57, s52, 0xffff"); A("s_lshr_b32 s58, s52, 16")
    def sum4x4():
        A("v_pk_add_f32 v[20:21], v[20:21], v[24:25]"); A("v_pk_add_f32 v[22:23], v[22:23], v[26:27]")
        A("v_pk_add_f32 v[28:29], v[28:29], v[32:33]"); A("v_pk_add_f32 v[30:31], v[30:31], v[34:35]")
        A("v_pk_add_f32 v[20:21], v[20:21], v[28:29]"); A("v_pk_add_f32 v[22:23], v[22:23], v[30:31]")
        rr4(20, 21, 22, 23)
    def sum2x4():
        A("v_pk_add_f32 v[20:21], v[20:21], v[24:25]"); A("v_pk_add_f32 v[22:23], v[22:23], v[26:27]")
        rr4(20, 21, 22, 23)
    def tr():
        A("s_memrealtime s[96:97]"); A("s_mov_b32 m0, s98"); A("s_waitcnt lgkmcnt(0)"); A("v_writelane_b32 v244, s96, m0"); A("s_add_u32 s98, s98, 1")
    uid = [0]
    def chunk(base, refill):
        KB, VB = base, base + 16
        uid[0] += 1; u = uid[0]
        if refill:
            A("s_cmp_ge_u32 s66, s30")
            A("s_cbranch_scc1 L_done")
            if ew < 8:
                A("s_cmp_ge_u32 s66, s101")
                A("s_cbranch_scc1 L_nodraw")
            A("s_mov_b64 exec, 1")
            A("ds_add_rtn_u32 v54, v52, v53")
            A("s_mov_b64 exec, -1")
            if ew < 8: A.label("L_nodraw")
            A("s_waitcnt vmcnt(4) lgkmcnt(0)")
            A("v_readfirstlane_b32 s71, v54")
        for j in range(4):
            A(f"v_mfma_f32_16x16x32_bf16 v[{20+4*j}:{23+4*j}], v[{KB+4*j}:{KB+4*j+3}], v[6:9], 0")
        if refill:
            if ew < 8:
                A("s_cmp_ge_u32 s66, s101")
                A("s_mov_b32 s66, s30")
                A("s_cbranch_scc1 L_go")
            A("s_add_u32 s66, s71, s59")
            A("s_cmp_ge_u32 s71, s70")
            A("s_cbranch_scc1 L_dyn")
            A.label("L_go")
            issueK(base, 66)
            A.label("L_gox")
        D = lambda j, r: 20 + 4 * (j & 3) + r
        for rho in range(4): A(f"v_cndmask_b32 v{44+rho}, v{D(rho,0)}, v{D(rho+1,1)}, s[60:61]")
        for rho in range(4): A(f"v_cndmask_b32 v{44+rho}, v{44+rho}, v{D(rho+2,2)}, s[62:63]")
        for rho in (1, 2, 3, 0): A(f"v_cndmask_b32 v{44+rho}, v{44+rho}, v{D(rho+3,3)}, s[64:65]")
        for rho in range(1, 4):
            qp = ",".join(str((q - rho) & 3) for q in range(4))
            dpp("v_add_f32", 44, 44 + rho, 44, f"quad_perm:[{qp}]")
        if noround < 1: rbf(44, 44)
        A("v_mul_f32 v44, s74, v44")
        if noround < 2: rbf(44, 44)
        A("v_mul_f32 v44, s75, v44")
        A("v_cmp_gt_f32 vcc, v44, v18")
        A(f"s_cbranch_vccz L_nors{u}")
        A("v_max_f32 v45, v44, v18")
        quad_all(45, "v_max_f32")
        rows_all(45, 46, "v_max_f32")
        A("v_sub_f32 v46, v18, v45")
        A("v_exp_f32 v46, v46")
        A("v_mov_b32 v18, v45")
        A("v_mul_f32 v19, v19, v46")
        for h in range(4): A(f"v_mov_b32_dpp v47, v46 row_newbcast:{4*h} row_mask:{hex(1<<h)} bank_mask:0xf")
        for r in range(10, 18): A(f"v_mul_f32 v{r}, v{r}, v47")
        A.label(f"L_nors{u}")
        A("v_sub_f32 v44, v44, v18")
        A("v_exp_f32 v44, v44")
        A("v_cvt_pk_bf16_f32 v45, v44, v44")
        A("v_add_f32 v19, v19, v44")
        for j in range(4):
            dpp("v_and_b32", 36 + 2 * j, 45, 4, f"quad_perm:[{j},{j},{j},{j}]")
            dpp("v_and_b32", 37 + 2 * j, 45, 5, f"quad_perm:[{j},{j},{j},{j}]")
        if refill:
            if skipoob:
                A("s_cmp_ge_u32 s66, s30")
                A("s_cbranch_scc1 L_last")
            A("s_waitcnt vmcnt(4)")
            A.label("L_pv")
        if trace and refill: tr()
        for j in range(4):
            A(f"v_mfma_f32_16x16x16_bf16 v[10:13], v[{36+2*j}:{37+2*j}], v[{VB+4*j}:{VB+4*j+1}], v[10:13]")
            A(f"v_mfma_f32_16x16x16_bf16 v[14:17], v[{36+2*j}:{37+2*j}], v[{VB+4*j+2}:{VB+4*j+3}], v[14:17]")
        if refill: issueV(base, 66)

    A("s_cmp_ge_u32 s2, 256")
    A("s_cbranch_scc1 L_exit")
    A("s_load_dwordx16 s[4:19], s[0:1], 0")
    A("s_load_dwordx8 s[20:27], s[0:1], 64")
    stamp(0)
    if XT: A(f"s_xor_b32 s2, s2, {XT}")
    A("v_and_b32 v1, 63, v0")
    A("v_lshrrev_b32 v44, 6, v0")
    A("v_lshlrev_b32 v3, 4, v1")
    A("v_readfirstlane_b32 s3, v44")
    A("v_bfe_u32 v45, v1, 2, 2")
    A("v_lshrrev_b32 v46, 4, v1")
    A("v_and_b32 v47, 3, v1")
    A("v_lshlrev_b32 v2, 8, v45")
    A("v_lshl_add_u32 v2, v46, 6, v2")
    A("v_lshl_add_u32 v2, v47, 4, v2")
    A("s_lshr_b32 s77, s2, 3"); A("s_and_b32 s76, s77, 7"); A("s_and_b32 s73, s2, 7"); A("s_lshr_b32 s78, s2, 6")
    A("s_lshl3_add_u32 s79, s78, s73")
    A("s_cmp_ge_u32 s76, 4"); A(f"s_cselect_b32 s67, {D0-D1}, 0"); A(f"s_sub_u32 s67, {D0}, s67")
    assert S0 - offT - offQ - LA >= 8 + 7 * NX and offT + offQ <= 64
    A(f"s_mul_i32 s59, s78, {8*S0-offT-2*offQ}"); A(f"s_mul_i32 s71, s73, {S0}"); A("s_add_u32 s59, s59, s71")
    A("s_cmp_ge_u32 s77, 28"); A(f"s_cselect_b32 s68, {offT-offF+offQ}, {offT+offQ}")
    A("s_cmp_eq_u32 s73, 0"); A("s_cselect_b32 s71, 0, s68"); A("s_cselect_b32 s70, s68, 0"); A("s_sub_u32 s59, s59, s71")
    A(f"s_cmp_gt_u32 s73, {X2}"); A(f"s_cselect_b32 s71, {offQ}, 0"); A("s_sub_u32 s59, s59, s71")
    A(f"s_cmp_eq_u32 s73, {X2}"); A(f"s_cselect_b32 s70, {offQ}, s70"); A("s_cselect_b32 s65, 1, 0")
    A(f"s_sub_u32 s70, {S0-LA}, s70")
    A("s_lshl_b32 s59, s59, 12"); A("s_lshl_b32 s70, s70, 12")
    A("s_lshl_b32 s66, s3, 12"); A("s_add_u32 s66, s66, s59")
    A("s_lshl_b32 s71, s76, 24")
    A(f"s_mov_b32 s30, {OOB}"); A("s_mov_b32 s31, 0x20000"); A(f"s_mov_b32 s34, {OOB}"); A("s_mov_b32 s35, 0x20000")
    A(f"s_cmp_lg_u32 s70, {(S0-LA)*4096}")
    A("s_cbranch_scc1 L_qprod")
    A("s_waitcnt lgkmcnt(0)")
    A("s_add_u32 s28, s6, s71"); A("s_addc_u32 s29, s7, 0")
    A("s_add_u32 s32, s8, s71"); A("s_addc_u32 s33, s9, 0")
    A("s_load_dword s52, s[26:27], 0")
    A("s_cmp_eq_u32 s3, 0")
    A("s_cbranch_scc1 L_w0")
    A.label("L_ring")
    if W: thr[0] = 0
    if prof: A("s_memrealtime s[94:95]")
    issueK(RA, 66); issueV(RA, 66)
    if prof: A("s_memrealtime s[96:97]")
    A(f"s_add_u32 s68, s66, {7*4096}")
    for k in range(NX):
        issueK(RX + 32 * k, 68); issueV(RX + 32 * k, 68)
        if k < NX - 1: A(f"s_add_u32 s68, s68, {7*4096}")
    thr[0] = None
    srd(48, 4, 5, 1024)
    srd(36, 26, 27, WS_END)
    common_setup()
    A("s_waitcnt lgkmcnt(0)")
    tags()
    stamp(1)
    A("s_barrier")
    A("s_branch L_qj")
    A.label("L_qprod")
    A("v_lshrrev_b32 v44, 3, v1"); A("v_and_b32 v45, 7, v1")
    A("v_lshlrev_b32 v50, 16, v44")
    A("v_lshl_add_u32 v50, v45, 4, v50")
    A("v_lshlrev_b32 v51, 4, v44")
    A("s_lshl1_add_u32 s69, s78, s65"); A("s_lshl3_add_u32 s69, s76, s69")
    A("s_lshl_b32 s68, s69, 7"); A("s_lshl_b32 s73, s3, 19"); A("s_add_u32 s68, s68, s73")
    A("s_lshl_b32 s73, s3, 7")
    A("s_mov_b32 s50, 1024"); A("s_mov_b32 s51, 0x20000"); A(f"s_mov_b32 s42, {4<<20}"); A("s_mov_b32 s43, 0x20000")
    for i in range(1, 8): A(f"v_add_u32 v{35+i}, {8192*i}, v50")
    A("s_waitcnt lgkmcnt(0)")
    A("s_mov_b32 s48, s4"); A("s_mov_b32 s49, s5"); A("s_mov_b32 s40, s10"); A("s_mov_b32 s41, s11")
    A("buffer_load_dwordx4 v[52:55], v3, s[48:51], 0 offen")
    A("buffer_load_dwordx4 v[32:35], v51, s[48:51], s73 offen")
    for i in range(8):
        va = 50 if i == 0 else 35 + i
        A(f"buffer_load_dwordx4 v[{RA+4*i}:{RA+4*i+3}], v{va}, s[40:43], s68 offen {wf}")
    A("s_load_dword s52, s[26:27], 0")
    A("s_add_u32 s28, s6, s71"); A("s_addc_u32 s29, s7, 0")
    A("s_add_u32 s32, s8, s71"); A("s_addc_u32 s33, s9, 0")
    A("s_cmp_lg_u32 s3, 0"); A("s_cbranch_scc1 L_nz")
    A("s_cmp_lg_u32 s65, 0"); A("s_cbranch_scc1 L_nz")
    A(f"s_mul_i32 s73, s77, {cstride}"); A(f"s_add_u32 s73, s73, {CBUF}")
    A("v_mov_b32 v49, s73"); A("v_mov_b32 v48, 0")
    A("s_mov_b64 exec, 1")
    A("global_store_dword v49, v48, s[26:27] sc1")
    A("s_mov_b64 exec, -1")
    A.label("L_nz")
    A("v_lshrrev_b32 v49, 5, v1"); A("v_and_b32 v44, 1, v46")
    A("v_lshlrev_b32 v48, 8, v49"); A("v_lshl_add_u32 v48, v45, 5, v48"); A("v_lshl_add_u32 v48, v44, 4, v48")
    A("s_lshl_b32 s73, s3, 9"); A("v_add_u32 v48, s73, v48")
    common_setup()
    k32masks(6)
    if qprof: A("s_memrealtime s[90:91]")
    A("s_waitcnt vmcnt(8)")
    if qprof: A("s_memrealtime s[92:93]")
    for k in range(4):
        A(f"v_lshlrev_b32 v{36+2*k}, 16, v{52+k}")
        A(f"v_and_b32 v{37+2*k}, 0xffff0000, v{52+k}")
    for k in range(4):
        A(f"v_lshlrev_b32 v{20+2*k}, 16, v{32+k}")
        A(f"v_and_b32 v{21+2*k}, 0xffff0000, v{32+k}")
    ln_stats(list(range(36, 44)), 44, 45, 51)
    for k in range(8): A(f"v_sub_f32 v{20+k}, v{20+k}, v44")
    for k in range(8): rbf(20 + k, 20 + k)
    for k in range(8): A(f"v_mul_f32 v{20+k}, v{20+k}, v45")
    for k in range(8): A(f"v_cvt_pk_bf16_f32 v{20+k}, v{20+k}, v{20+k}")
    for i in range(8):
        for r in range(4): A(f"v_and_b32 v{RX+4*i+r}, v{20+i}, v{6+r}")
    A("s_waitcnt vmcnt(0)")
    if qprof: A("s_memrealtime s[98:99]")
    for i in range(8):
        c = "0" if i == 0 else "v[28:31]"
        A(f"v_mfma_f32_16x16x32_bf16 v[28:31], v[{RX+4*i}:{RX+4*i+3}], v[{RA+4*i}:{RA+4*i+3}], {c}")
    A("s_mov_b32 exec_lo, 0x00ff00ff"); A("s_mov_b32 exec_hi, 0xff00ff00")
    A(f"ds_write_b128 v48, v[28:31] offset:{L_RED}")
    A("s_mov_b64 exec, -1")
    A("s_waitcnt lgkmcnt(0)")
    A("s_barrier")
    A("s_cmp_lg_u32 s3, 0")
    A("s_cbranch_scc1 L_ringb" if qhold else "s_cbranch_scc1 L_ring")
    A("s_setprio 3")
    A("v_and_b32 v50, 15, v1"); A("v_lshlrev_b32 v49, 10, v46"); A("v_lshl_add_u32 v49, v50, 4, v49")
    for k in range(4): A(f"ds_read_b128 v[{20+4*k}:{23+4*k}], v49 offset:{L_RED+256*k}")
    srd(36, 26, 27, WS_END)
    tags()
    A("v_and_b32 v45, 1, v46"); A("v_lshlrev_b32 v45, 1, v45"); A("v_lshrrev_b32 v44, 1, v46"); A("v_or_b32 v45, v45, v44")
    A("v_lshl_add_u32 v45, v50, 2, v45"); A("v_lshlrev_b32 v45, 2, v45")
    A("v_mov_b32 v49, s57"); A("v_mov_b32 v51, s58")
    A("v_cmp_eq_u32 vcc, 0, v44")
    A("v_cndmask_b32 v49, v51, v49, vcc")
    A("s_lshl_b32 s71, s69, 8"); A(f"s_add_u32 s71, s71, {QBUF}")
    A("s_waitcnt lgkmcnt(0)")
    sum4x4()
    rbf(20, 20)
    A("v_or_b32 v20, v20, v49")
    A("buffer_store_dword v20, v45, s[36:39], s71 offen sc1")
    stamp(2)
    if qhold: A("s_barrier")
    if qprof: A("s_waitcnt vmcnt(0)"); A("s_memrealtime s[96:97]")
    A("s_branch L_w0b")
    if qhold:
        A.label("L_ringb")
        A("s_barrier")
        A("s_branch L_ring")
    A.label("L_w0")
    A("s_setprio 3")
    srd(48, 4, 5, 1024)
    srd(36, 26, 27, WS_END)
    common_setup()
    A("s_waitcnt lgkmcnt(0)")
    tags()
    A.label("L_w0b")
    A(f"v_mov_b32 v52, {L_TK}"); A(f"v_mov_b32 v48, {(8+7*NX)*4096}")
    A("ds_write_b32 v52, v48")
    for r in range(4): A(f"v_mov_b32 v{24+r}, -1")
    A(f"ds_write_b128 v3, v[24:27] offset:{L_TB}")
    A(f"ds_write_b128 v3, v[24:27] offset:{L_TB+1024}")
    A("s_add_u32 s73, s59, s70")
    A("v_lshlrev_b32 v28, 12, v1"); A("v_add_u32 v28, s73, v28"); A("v_lshlrev_b32 v29, 2, v1")
    A("v_cmp_eq_u32 vcc, 0, v1"); A("v_addc_co_u32 v28, vcc, 0, v28, vcc")
    A(f"s_mov_b64 exec, {(1 << LA) - 1}")
    A(f"ds_write_b32 v29, v28 offset:{L_TB}")
    A("s_mov_b64 exec, -1")
    A("v_lshlrev_b32 v44, 1, v2")
    A("s_lshl_b32 s71, s76, 11"); A(f"s_add_u32 s71, s71, {QBUF}")
    A("s_add_u32 s14, s26, s71"); A("s_addc_u32 s15, s27, 0")
    A.label("L_qhint")
    for k in range(8): A(f"s_load_dword s{40+k}, s[14:15], {256*k} glc")
    A("s_waitcnt lgkmcnt(0)")
    for k in range(8): A(f"s_xor_b32 s{40+k}, s{40+k}, s57")
    for k in range(1, 8): A(f"s_or_b32 s40, s40, s{40+k}")
    A("s_and_b32 s40, s40, 0xffff")
    A("s_cbranch_scc0 L_qpoll")
    spin("L_qhint", qslp)
    A.label("L_qpoll")
    if qprof: A("s_memrealtime s[94:95]")
    A("buffer_load_dwordx4 v[20:23], v44, s[36:39], s71 offen sc1")
    A("buffer_load_dwordx4 v[24:27], v44, s[36:39], s71 offen offset:16 sc1")
    A("s_mov_b32 s73, 0x07060302")
    A("s_waitcnt vmcnt(0)")
    for e in range(8): A(f"v_xor_b32 v{20+e}, s{57+(e&1)}, v{20+e}")
    A("v_or3_b32 v45, v20, v21, v22"); A("v_or3_b32 v45, v45, v23, v24"); A("v_or3_b32 v45, v45, v25, v26"); A("v_or_b32 v45, v45, v27")
    A("v_and_b32 v45, 0xffff, v45")
    A("v_cmp_ne_u32 vcc, 0, v45")
    A("s_cbranch_vccz L_q_ok")
    spin("L_qpoll")
    A.label("L_q_ok")
    for k in range(4): A(f"v_perm_b32 v{6+k}, v{21+2*k}, v{20+2*k}, s73")
    A(f"ds_write_b128 v3, v[6:9] offset:{L_QF}")
    A("s_waitcnt lgkmcnt(0)")
    stamp(1)
    A("s_barrier")
    issueK(RA, 66); issueV(RA, 66)
    A("s_setprio 0")
    A.label("L_qj")
    A(f"ds_read_b128 v[6:9], v3 offset:{L_QF}")
    A(f"v_mov_b32 v52, {L_TK}"); A("v_mov_b32 v53, 4096")
    A("s_mov_b32 s69, 3")
    if trace: A("s_mov_b32 s98, 0"); A("v_mov_b32 v244, 0")
    A(f"s_mul_i32 s58, s77, {cstride}"); A(f"s_add_u32 s58, s58, {CBUF}")
    A("s_sub_u32 s57, 4, s78"); A("s_mul_i32 s57, s57, s67"); A("s_sub_u32 s57, 4096, s57"); A("s_lshl_b32 s57, s57, 12")
    if ew < 8:
        A(f"s_sub_u32 s101, s67, {ewx}"); A("s_lshl_b32 s101, s101, 12"); A("s_add_u32 s101, s101, s57")
        A(f"s_cmp_ge_u32 s3, {ew}"); A("s_cselect_b32 s101, s101, -1")
    stamp(3)
    A.label("L_loop")
    chunk(RA, True)
    A("s_cmp_lg_u32 s69, 3")
    A("s_cbranch_scc1 L_loop")
    A("s_mov_b32 s69, 0")
    A("s_cmp_eq_u32 s3, 0")
    A("s_cbranch_scc1 L_setup")
    A("s_waitcnt vmcnt(8)")
    for k in range(NX): chunk(RX + 32 * k, False)
    A.label("L_setup")
    A("v_lshrrev_b32 v46, 4, v1"); A("v_and_b32 v47, 3, v1"); A("v_bfe_u32 v45, v1, 2, 2"); A("v_and_b32 v50, 15, v1")
    A("v_and_b32 v48, 1, v46"); A("v_lshlrev_b32 v48, 1, v48"); A("v_lshrrev_b32 v49, 1, v46"); A("v_or_b32 v48, v48, v49")
    A("s_lshl_b32 s71, s3, 11"); A(f"v_lshlrev_b32 v{TC}, 5, v1"); A(f"v_add_u32 v{TC}, s71, v{TC}")
    A("s_lshl_b32 s71, s3, 3"); A(f"v_lshlrev_b32 v{TC+1}, 6, v45"); A(f"v_add_u32 v{TC+1}, s71, v{TC+1}")
    A(f"v_lshrrev_b32 v{TC+2}, 1, v{TC+1}")
    A("s_lshl_b32 s71, s3, 8"); A(f"v_lshlrev_b32 v{TC+3}, 12, v46"); A(f"v_lshl_add_u32 v{TC+3}, v50, 4, v{TC+3}"); A(f"v_add_u32 v{TC+3}, s71, v{TC+3}")
    A("s_lshr_b32 s71, s3, 1"); A("s_lshl_b32 s73, s71, 6"); A(f"v_lshlrev_b32 v{TC+4}, 4, v46"); A(f"v_add_u32 v{TC+4}, s73, v{TC+4}")
    A("s_lshl_b32 s73, s71, 5"); A(f"v_mov_b32 v{TC+5}, s73")
    A(f"v_lshl_add_u32 v{TC+6}, v50, 2, v48"); A(f"v_lshlrev_b32 v{TC+6}, 1, v{TC+6}")
    A("s_lshl_b32 s0, s76, 16"); A("s_lshl_b32 s73, s79, 11"); A("s_add_u32 s0, s0, s73")
    A("s_lshl_b32 s73, s3, 8"); A("s_add_u32 s0, s0, s73"); A(f"s_add_u32 s0, s0, {OBUF}")
    A("s_lshr_b32 s73, s3, 1"); A("s_lshl2_add_u32 s1, s76, s73"); A("s_lshl_b32 s1, s1, 5"); A("s_add_u32 s1, s1, s79")
    A(f"s_lshl_b32 s1, s1, {mlsh}"); A(f"s_add_u32 s1, s1, {MLBUF}")
    A(f"v_lshlrev_b32 v{TC+10}, 2, v1")
    A(f"v_lshlrev_b32 v{TC+27}, 3, v47"); A(f"v_lshrrev_b32 v{TC+27}, v{TC+27}, s52"); A(f"v_and_b32 v{TC+27}, 0xff, v{TC+27}")
    if opre is not None:
        A(f"buffer_load_dword v44, v{TC+10}, s[36:39], s0 offen {opre}")
        A("s_mov_b64 exec, 1")
        A(f"buffer_load_dword v45, v3, s[36:39], s1 offen {opre}")
        A("s_mov_b64 exec, -1")
        A("s_waitcnt vmcnt(0)")
    if tlbpf:
        A("s_cmp_lg_u32 s3, 0"); A("s_cbranch_scc1 L_notlb")
        A(f"v_lshlrev_b32 v44, {tlbpf}, v1")
        A(f"s_mov_b64 exec, {(1 << ((1 << (20 - tlbpf)) + 1)) - 1}")
        A("buffer_load_dword v245, v44, s[28:31], s57 offen nt")
        A("buffer_load_dword v246, v44, s[32:35], s57 offen nt")
        A("s_mov_b64 exec, -1")
        A.label("L_notlb")
    A("s_and_b32 s71, s2, 7")
    A("s_cbranch_scc1 L_loop")
    A("s_mov_b32 s69, 2")
    A("s_getreg_b32 s78, hwreg(HW_REG_XCC_ID, 0, 4)"); A("s_lshl_b32 s78, s78, 8")
    A("s_cmp_lg_u32 s3, 0"); A("s_cbranch_scc1 L_nox")
    for r in range(4): A(f"v_mov_b32 v{24+r}, -1")
    A("s_cmp_ge_u32 s77, 28"); A("s_cselect_b32 s71, 0, -1")
    for r in range(4): A(f"v_mov_b32 v{28+r}, s71")
    A("s_lshl_b32 s71, s77, 11"); A(f"s_add_u32 s71, s71, {YBUF}")
    A("buffer_store_dwordx4 v[28:31], v3, s[36:39], s71 offen sc1")
    A("buffer_store_dwordx4 v[28:31], v3, s[36:39], s71 offen offset:1024 sc1")
    A("s_lshl_b32 s71, s77, 9"); A(f"s_add_u32 s71, s71, {HBUF}")
    A("s_mov_b32 exec_hi, 0")
    A("buffer_store_dwordx4 v[24:27], v3, s[36:39], s71 offen sc1")
    A("s_mov_b32 exec_hi, -1")
    A("s_waitcnt vmcnt(0)")
    A("s_or_b32 s71, s78, s53")
    A("v_mov_b32 v20, s71"); A("v_mov_b32 v21, s54"); A("v_mov_b32 v22, s55"); A("v_mov_b32 v23, s56")

    A("s_lshl_b32 s71, s77, 4"); A(f"s_add_u32 s71, s71, {XBUF}")
    A("s_mov_b64 exec, 1")
    A("buffer_store_dwordx4 v[20:23], v3, s[36:39], s71 offen sc1")
    A("s_mov_b64 exec, -1")
    A.label("L_nox")
    srd(40, 12, 13, 4 << 20)
    A("s_lshr_b32 s68, s77, 1")
    A("s_lshl_b32 s71, s68, 18"); A("s_lshr_b32 s73, s3, 1"); A("s_lshl_b32 s73, s73, 16"); A("s_add_u32 s71, s71, s73")
    A("s_and_b32 s73, s3, 1"); A("s_lshl_b32 s73, s73, 10"); A("s_add_u32 s71, s71, s73")
    A("s_and_b32 s73, s77, 1"); A("s_lshl_b32 s73, s73, 9"); A("s_add_u32 s71, s71, s73")
    A("v_lshlrev_b32 v44, 4, v50"); A("v_lshl_add_u32 v45, v48, 13, v44"); A("v_lshl_add_u32 v44, v48, 11, v44")
    for jl in range(2):
        for half in range(2):
            for jh in range(2):
                for c2 in range(2):
                    r = WO + 8 * (4 * c2 + 2 * jh + jl) + 4 * half
                    A(f"buffer_load_dwordx4 v[{r}:{r+3}], v45, s[40:43], s71 offen offset:{2048*jh+256*c2} {wf}")
            if (jl, half) != (1, 1): A(f"s_add_u32 s71, s71, {4096 if half == 0 else 32768-4096}")
    A("v_and_b32 v51, 7, v1"); A("v_bfe_u32 v49, v1, 3, 1")
    A(f"v_lshl_add_u32 v{TC+25}, v48, 1, v49"); A(f"v_lshl_add_u32 v{TC+25}, v51, 3, v{TC+25}")
    A("s_lshl_b32 s71, s3, 6"); A(f"v_add_lshl_u32 v{TC+25}, v{TC+25}, s71, 1")
    A(f"buffer_load_ushort v{TC+13}, v{TC+25}, s[48:51], 0 offen")
    A("v_and_b32 v51, 7, v1"); A("v_and_b32 v45, 1, v46"); A("v_lshrrev_b32 v49, 5, v1")
    A(f"v_lshrrev_b32 v{TC+9}, 3, v1")
    A(f"v_lshlrev_b32 v{TC+8}, 13, v{TC+9}"); A(f"v_lshl_add_u32 v{TC+8}, v51, 4, v{TC+8}")
    A(f"v_lshl_add_u32 v{TC+9}, v{TC+9}, 2, v47"); A(f"v_lshlrev_b32 v{TC+9}, {mlsh}, v{TC+9}")
    A(f"v_lshlrev_b32 v{TC+24}, 4, v45"); A(f"v_lshl_add_u32 v{TC+24}, v50, 5, v{TC+24}")
    A(f"v_lshl_add_u32 v{TC+11}, v49, 9, v{TC+24}"); A("s_lshl_b32 s71, s3, 10"); A(f"v_add_u32 v{TC+11}, s71, v{TC+11}")
    A(f"v_lshrrev_b32 v{TC+24}, 1, v{TC+24}")
    A(f"v_lshrrev_b32 v{TC+14}, 3, v1"); A(f"v_lshlrev_b32 v{TC+14}, 10, v{TC+14}"); A(f"v_lshl_add_u32 v{TC+14}, v51, 4, v{TC+14}")
    A(f"v_lshrrev_b32 v{TC+12}, 3, v1"); A(f"v_lshlrev_b32 v{TC+12}, 10, v{TC+12}"); A(f"v_lshl_add_u32 v{TC+12}, v51, 4, v{TC+12}"); A("s_lshl_b32 s71, s3, 7"); A(f"v_add_u32 v{TC+12}, s71, v{TC+12}")
    A("s_lshl_b32 s71, s3, 4"); A(f"v_lshlrev_b32 v{TC+20}, 3, v49"); A(f"v_add_u32 v{TC+20}, s71, v{TC+20}"); A(f"v_lshlrev_b32 v{TC+21}, 4, v51")
    A("v_bfe_u32 v49, v1, 3, 1")
    A(f"v_lshlrev_b32 v{TC+23}, 11, v46"); A(f"v_lshl_add_u32 v{TC+23}, v49, 8, v{TC+23}"); A(f"v_lshl_add_u32 v{TC+23}, v51, 4, v{TC+23}")
    A("s_lshr_b32 s71, s3, 2"); A("s_lshl_b32 s71, s71, 7"); A(f"v_add_u32 v{TC+23}, s71, v{TC+23}")
    A("s_lshl_b32 s71, s3, 13"); A(f"s_add_u32 s71, s71, {L_WD}"); A(f"v_add_u32 v{TC+26}, s71, v3")
    A("s_mov_b32 m0, s71")
    A(f"v_lshrrev_b32 v{TC+22}, 1, v1"); A(f"v_lshlrev_b32 v{TC+22}, 10, v{TC+22}"); A("v_and_b32 v45, 1, v1"); A(f"v_lshl_add_u32 v{TC+22}, v45, 4, v{TC+22}")
    srd(44, 22, 23, 1024)
    A("s_cmp_ge_u32 s77, 28")
    A("s_cbranch_scc1 L_suj")
    A("s_mov_b32 s69, 1")
    A("s_lshl_b32 s71, s3, 6"); A("v_lshl_add_u32 v45, v48, 2, s71")
    A("v_mul_u32_u24 v45, 3584, v45"); A("v_lshl_add_u32 v45, v51, 4, v45"); A("s_lshl_b32 s71, s77, 7"); A("v_add_u32 v45, s71, v45")
    A("v_cmp_eq_u32 vcc, 0, v49")
    A("v_mov_b32 v20, s16"); A("v_mov_b32 v21, s18"); A("v_cndmask_b32 v20, v21, v20, vcc")
    A("v_mov_b32 v21, s17"); A("v_mov_b32 v22, s19"); A("v_cndmask_b32 v21, v22, v21, vcc")
    A("v_add_co_u32 v20, vcc, v20, v45"); A("v_addc_co_u32 v21, vcc, 0, v21, vcc")
    for j in range(4):
        for half in range(2):
            for v in range(2):
                r = WGU + 8 * (4 * v + j) + 4 * half
                A(f"global_load_dwordx4 v[{r}:{r+3}], v[20:21], off offset:{3584*v} {wf}")
            if (j, half) != (3, 1): A(f"v_add_co_u32 v20, vcc, {(2 if half == 0 else 14)*3584}, v20"); A("v_addc_co_u32 v21, vcc, 0, v21, vcc")
    srd(40, 20, 21, 1792 * 1024)
    A("s_lshl_b32 s71, s77, 16"); A("s_lshr_b32 s73, s3, 2"); A("s_lshl_b32 s73, s73, 15"); A("s_add_u32 s71, s71, s73")
    A("s_and_b32 s73, s3, 3"); A("s_lshl_b32 s73, s73, 8"); A("s_add_u32 s71, s71, s73")
    for i in range(8):
        A(f"buffer_load_dwordx4 v44, s[40:43], s71 offen {wf} lds")
        if i < 7: A(f"s_add_u32 s71, s71, {1024 if i % 2 == 0 else 7168}"); A("s_add_u32 m0, m0, 1024")
    A.label("L_suj")
    A("s_lshl_b32 s22, s77, 5"); A(f"s_add_u32 s22, s22, {YBUF}")
    A("s_add_u32 s23, s22, 32768")
    A("s_lshl_b32 s24, s3, 7"); A(f"s_add_u32 s24, s24, {HBUF}"); A("s_add_u32 s25, s24, 8192")
    A("s_lshr_b32 s16, s68, 1"); A("s_lshl_b32 s16, s16, 16"); A("s_and_b32 s71, s68, 1"); A("s_lshl_b32 s71, s71, 10"); A("s_add_u32 s16, s16, s71")
    A("s_lshl_b32 s71, s3, 7"); A("s_add_u32 s16, s16, s71"); A(f"s_add_u32 s16, s16, {OBUF}")
    A("s_add_u32 s17, s16, 4096")
    A("s_lshr_b32 s71, s3, 2"); A("s_lshl1_add_u32 s20, s68, s71"); A(f"s_lshl_b32 s20, s20, {5+mlsh}"); A(f"s_add_u32 s20, s20, {MLBUF}")
    A("s_lshl_b32 s21, s77, 9"); A("s_lshl_b32 s73, s3, 6"); A("s_add_u32 s21, s21, s73"); A(f"s_add_u32 s21, s21, {HBUF}")
    A("s_lshl_b32 s18, s77, 11"); A("s_lshl_b32 s71, s3, 8"); A("s_add_u32 s18, s18, s71"); A(f"s_add_u32 s18, s18, {YBUF}")
    A("s_lshr_b32 s68, s77, 2")
    A("s_branch L_loop")

    A.label("L_dyn")
    A("s_sub_u32 s73, s71, s70"); A("s_lshr_b32 s73, s73, 10")
    A("v_mov_b32 v48, s73")
    A.label("L_dynw")
    A(f"ds_read_b32 v49, v48 offset:{L_TB}")
    A("s_waitcnt lgkmcnt(0)")
    A("v_readfirstlane_b32 s66, v49")
    A("s_cmp_lg_u32 s66, -1")
    A("s_cbranch_scc1 L_dyng")
    spin("L_dynw")
    A.label("L_dyng")
    if t1:
        A("s_cmp_eq_u32 s66, 2")
        A("s_cbranch_scc1 L_self")
    if skipoob:
        A("s_cmp_ge_u32 s66, s30")
        A("s_cbranch_scc1 L_gox")
    A("s_bitcmp1_b32 s66, 0")
    A("s_cbranch_scc0 L_go")
    A("s_and_b32 s66, s66, -2")
    A("s_max_u32 s71, s66, s57"); A("s_sub_u32 s71, s71, s57"); A("s_lshr_b32 s71, s71, 12"); A("s_sub_u32 s71, s67, s71")
    if tT:
        if tS:
            A(f"s_mul_i32 s14, s73, {sm}"); A("s_lshr_b32 s14, s14, 2"); A("s_add_u32 s14, s14, s71")
            A("s_cmp_lt_u32 s14, s67"); A(f"s_cselect_b32 s15, {tS}, 0")
            A("s_and_b32 s14, s2, 7"); A("s_cmp_eq_u32 s14, 2"); A("s_cselect_b32 s15, 0, s15")
            A("s_cmp_lg_u32 s14, 0"); A(f"s_cselect_b32 s14, s15, {tT}")
        else:
            A("s_and_b32 s14, s2, 7"); A(f"s_cselect_b32 s14, 0, {tT}")
        A("s_cmp_gt_u32 s71, s14")
        A("s_cbranch_scc1 L_dynt")
        A("v_lshl_add_u32 v48, v1, 2, v48")
        A("v_mov_b32 v51, s30")
        A(f"ds_write_b32 v48, v51 offset:{L_TB+4*LA}")
        A("s_branch L_go")
        A.label("L_dynt")
    A(f"s_cmp_gt_u32 s71, {t4}"); A("s_cselect_b32 s15, 4, 2")
    A(f"s_cmp_gt_u32 s71, {t8}"); A(f"s_cselect_b32 s15, {b0}, s15")
    A("s_mov_b32 s14, s15")
    A("s_atomic_add s14, s[26:27], s58 glc")
    A("v_lshl_add_u32 v48, v1, 2, v48")
    A(f"s_sub_u32 s73, s15, {LA}")
    A("s_waitcnt lgkmcnt(0)")
    A("v_add_u32 v49, s14, v1")
    A("v_lshlrev_b32 v50, 12, v49"); A("v_add_u32 v50, s57, v50")
    A("s_add_u32 s14, s14, s15")
    A("s_cmp_ge_u32 s14, s67")
    A("s_cbranch_scc1 L_dynx")
    if t1:
        A(f"s_add_u32 s14, s14, {t1}")
        A("s_cmp_ge_u32 s14, s67")
        A("s_cbranch_scc1 L_dyns")
    A("v_cmp_eq_u32 vcc, s73, v1"); A("v_addc_co_u32 v50, vcc, 0, v50, vcc")
    A("v_cmp_gt_u32 vcc, s15, v1")
    A("s_mov_b64 exec, vcc")
    A(f"ds_write_b32 v48, v50 offset:{L_TB+4*LA}")
    A("s_mov_b64 exec, -1")
    A("s_branch L_go")
    A.label("L_dynx")
    A("v_mov_b32 v51, s30")
    A("v_cmp_gt_u32 vcc, s67, v49")
    A("v_cndmask_b32 v50, v51, v50, vcc")
    A(f"ds_write_b32 v48, v50 offset:{L_TB+4*LA}")
    A("s_branch L_go")
    if t1:
        A.label("L_dyns")
        A("v_cmp_gt_u32 vcc, s15, v1")
        A("v_cndmask_b32 v50, 2, v50, vcc")
        A(f"ds_write_b32 v48, v50 offset:{L_TB+4*LA}")
        A("s_branch L_go")
        A.label("L_self")
        A("s_mov_b32 s14, 1")
        A("s_atomic_add s14, s[26:27], s58 glc")
        A("v_lshl_add_u32 v48, v1, 2, v48")
        A("v_mov_b32 v51, s30")
        A("s_waitcnt lgkmcnt(0)")
        A("s_lshl_b32 s66, s14, 12"); A("s_add_u32 s66, s66, s57")
        A("s_cmp_lt_u32 s14, s67")
        A("s_cbranch_scc1 L_go")
        A("s_mov_b32 s66, s30")
        A(f"ds_write_b32 v48, v51 offset:{L_TB+4}")
        A("s_branch L_go")

    def lred():
        quad_all(19, "v_add_f32")
        A(f"ds_write_b32 v{TC+2}, v18 offset:{L_MX}")
        rows_all(19, 49, "v_add_f32")
        A(f"ds_write_b64 v{TC+1}, v[18:19] offset:{L_ML}")
    A.label("L_done")
    A("s_cmp_eq_u32 s69, 3")
    A("s_cbranch_scc1 L_end")
    lred()
    if skipoob:
        A("s_branch L_done2")
        A.label("L_first")
        A("s_waitcnt vmcnt(0)")
        A("s_branch L_pv")
        A.label("L_last")
        A("s_cmp_eq_u32 s69, 3")
        A("s_cbranch_scc1 L_first")
        lred()
        A("s_waitcnt vmcnt(0)")
        if trace: tr()
        VB = RA + 16
        for j in range(4):
            A(f"v_mfma_f32_16x16x16_bf16 v[10:13], v[{36+2*j}:{37+2*j}], v[{VB+4*j}:{VB+4*j+1}], v[10:13]")
            A(f"v_mfma_f32_16x16x16_bf16 v[14:17], v[{36+2*j}:{37+2*j}], v[{VB+4*j+2}:{VB+4*j+3}], v[14:17]")
        A.label("L_done2")
    stamp(4)
    if trace:
        A("s_lshl_b32 s71, s2, 3"); A("s_add_u32 s71, s71, s3"); A("s_lshl_b32 s71, s71, 8"); A("s_add_u32 s71, s71, 0x200000")
        A("v_lshlrev_b32 v48, 2, v1"); A("v_add_u32 v48, s71, v48")
        A("global_store_dword v48, v244, s[26:27]")
    if cut == 1: A("s_branch L_end")
    A("s_mov_b32 s73, 0xffffff00")
    A("v_mov_b32 v47, s53"); A("v_mov_b32 v48, s54"); A("v_mov_b32 v39, s56")
    A(f"ds_write_b128 v{TC}, v[10:13] offset:{L_OM}")
    A(f"ds_write_b128 v{TC}, v[14:17] offset:{L_OM+16}")
    A("s_cmp_eq_u32 s69, 1")
    A("s_cbranch_scc1 L_cs")
    A.label("L_csr")
    A("s_waitcnt lgkmcnt(0)")
    A("s_barrier")
    stamp(5)
    A(f"ds_read_b128 v[20:23], v{TC+5} offset:{L_MX}")
    A(f"ds_read_b128 v[24:27], v{TC+5} offset:{L_MX+16}")
    A(f"ds_read_b128 v[28:31], v{TC+4} offset:{L_ML}")
    A(f"ds_read_b128 v[10:13], v{TC+3} offset:{L_OM}")
    A(f"ds_read_b128 v[14:17], v{TC+3} offset:{L_OM+2048}")
    A("s_waitcnt lgkmcnt(3)")
    A("v_max3_f32 v36, v20, v21, v22"); A("v_max3_f32 v37, v23, v24, v25"); A("v_max3_f32 v36, v36, v26, v27"); A("v_max_f32 v36, v36, v37")
    A("s_waitcnt lgkmcnt(2)")
    A("v_sub_f32 v28, v28, v36"); A("v_sub_f32 v30, v30, v36")
    A("v_exp_f32 v28, v28"); A("v_exp_f32 v30, v30")
    A("v_lshl_or_b32 v38, v36, 24, s55")
    A("v_mul_f32 v37, v28, v29")
    A("v_fmac_f32 v37, v30, v31")
    A("s_waitcnt lgkmcnt(0)")
    A("v_mov_b32 v49, v37")
    for r in range(4): A(f"v_mul_f32 v{10+r}, v{10+r}, v28")
    A("v_permlane32_swap_b32 v37, v49")
    for r in range(2): A(f"v_fmac_f32 v{10+r}, v{14+r}, v30")
    A("v_add_f32 v37, v37, v49")
    for r in range(2, 4): A(f"v_fmac_f32 v{10+r}, v{14+r}, v30")
    A("v_mov_b32 v49, v37")
    A("v_permlane32_swap_b32 v10, v11")
    A("v_permlane32_swap_b32 v12, v13")
    A("v_add_f32 v10, v10, v11")
    A("v_add_f32 v12, v12, v13")
    A("v_permlane16_swap_b32 v37, v49")
    A("v_add_f32 v37, v37, v49")
    A("v_permlane16_swap_b32 v10, v12")
    A("v_add_f32 v10, v10, v12")
    A(f"v_and_or_b32 v10, v10, s73, v{TC+27}")
    A(f"buffer_store_dword v10, v{TC+10}, s[36:39], s0 offen {osf}")
    A("s_bitcmp1_b32 s3, 0")
    A("s_cbranch_scc1 L_mj")
    A("v_and_or_b32 v37, v37, s73, v48"); A("v_and_or_b32 v36, v36, s73, v47")
    A("s_mov_b64 exec, 1")
    A(f"buffer_store_dwordx4 v[36:39], v3, s[36:39], s1 offen {osf}")
    A("s_mov_b64 exec, -1")
    A.label("L_mj")
    stamp(6)
    A("s_cmp_eq_u32 s69, 0")
    A("s_cbranch_scc1 L_end")
    A("v_and_b32 v54, 0x1f0, v3")
    A(f"buffer_load_dwordx4 v[40:43], v54, s[36:39], 0 offen offset:{XBUF} sc1")
    if codepf:
        A("s_getpc_b64 s[12:13]")
        A.label("L_pcref")
        A("s_lshl_b32 s71, s3, 9"); A("s_add_u32 s12, s12, s71"); A("s_addc_u32 s13, s13, 0")
        A(f"v_lshlrev_b32 v48, 3, v1")
        A("global_load_dwordx2 v[44:45], v48, s[12:13]")
    if outpf:
        A("buffer_load_dword v44, v3, s[44:47], 0 offen")
    if pretouch:
        A("s_lshl_b32 s71, s3, 5"); A("s_add_u32 s71, s71, s77")
        A("s_cmp_ge_u32 s71, 80")
        A("s_cbranch_scc1 L_nopt")
        A("s_lshl_b32 s71, s71, 10"); A(f"s_add_u32 s71, s71, {HBUF}")
        A("buffer_load_dwordx4 v[44:47], v3, s[36:39], s71 offen sc1")
        A.label("L_nopt")
    A("s_mov_b32 s60, 0xfffefffe")
    OB = RA
    for k in range(4): A(f"ds_read_b128 v[{20+4*k}:{23+4*k}], v{TC+23} offset:{L_RED2+512*k}")
    A("s_waitcnt lgkmcnt(0)")
    sum4x4()
    A("v_mov_b32 v51, v20")
    A("s_waitcnt vmcnt(0)")
    A.label("L_xchk")
    for k in range(4): A(f"v_xor_b32 v{40+k}, s{53+k}, v{40+k}")
    A("v_or3_b32 v55, v41, v42, v43")
    A("v_and_b32 v53, 0xff, v40"); A("v_or_b32 v55, v55, v53")
    A("v_cmp_ne_u32 vcc, 0, v55")
    A("s_cbranch_vccz L_xok")
    A(f"buffer_load_dwordx4 v[40:43], v54, s[36:39], 0 offen offset:{XBUF} sc1")
    A("s_waitcnt vmcnt(0)")
    spin("L_xchk")
    A.label("L_xok")
    A("v_cmp_ne_u32 vcc, s78, v40")
    A("s_mov_b32 s64, 0")
    if local:
        A("s_cbranch_vccnz L_xg")
        A("s_mov_b32 s64, 1")
        A.label("L_xg")
    A(f"v_lshlrev_b32 v{TC+13}, 16, v{TC+13}")
    for i in range(8):
        r = WDR[i >> 1] + 4 * (i & 1)
        A(f"ds_read_b128 v[{r}:{r+3}], v{TC+26} offset:{1024*i}")
    for F in FS:
        for r in range(4): A(f"v_mov_b32 v{F+r}, 0")
    for r in range(10, 18): A(f"v_mov_b32 v{r}, 0")
    A("v_and_b32 v4, 3, v1"); A("v_mul_u32_u24 v4, 0x5555, v4")
    OG = [(OB + 4 * j, TC + 8, 16 + (j >> 1), 2048 * (j & 1)) for j in range(4)]
    A.label("L_h1pre")
    A(f"buffer_load_dword v23, v{TC+9}, s[36:39], s20 offen offset:12 sc1")
    A("s_waitcnt vmcnt(0)")
    A("v_cmp_eq_u32 vcc, s56, v23")
    A("s_bcnt1_i32_b64 s71, vcc")
    A(f"s_cmp_ge_u32 s71, {2*thr1}")
    A("s_cbranch_scc1 L_h1go")
    spin("L_h1pre", slp1)
    A.label("L_h1go")
    gather("L_h1", [[(20, TC + 9, 20, 0)]] + [[g] for g in OG])
    stamp(7)
    A("v_or_b32_sdwa v20, v20, v22 dst_sel:DWORD dst_unused:UNUSED_PAD src0_sel:DWORD src1_sel:BYTE_3")
    dpp("v_max_f32", 22, 20, 20, "quad_perm:[1,0,3,2]")
    for ctl in ("quad_perm:[2,3,0,1]", "row_ror:8"): dpp("v_max_f32", 22, 22, 22, ctl)
    rows_all(22, 23, "v_max_f32")
    A("v_sub_f32 v20, v20, v22")
    A("v_exp_f32 v20, v20")
    A("v_mul_f32 v21, v20, v21")
    fm = []
    for j in range(4):
        for r in range(4):
            op = "v_mul_f32" if j == 0 else "v_fmac_f32"
            fm.append(f"{op}_dpp v{24+r}, v20, v{OB+4*j+r} quad_perm:[{j},{j},{j},{j}] {DPPF}")
    lr = [f"v_add_f32_dpp v21, v21, v21 {c} {DPPF}" for c in ("quad_perm:[1,0,3,2]", "quad_perm:[2,3,0,1]", "row_ror:8")]
    lr += ["v_mov_b32 v22, v21", "v_permlane32_swap_b32 v21, v22", "v_add_f32 v21, v21, v22\nv_mov_b32 v22, v21"]
    for k in range(len(fm)):
        A(fm[k])
        if k % 2 == 1 and k >= 1 and lr: A(lr.pop(0))
    assert not lr
    A("v_permlane16_swap_b32 v21, v22")
    A("v_add_f32 v21, v21, v22")
    A("v_permlane32_swap_b32 v24, v25")
    A("v_permlane32_swap_b32 v26, v27")
    A("v_add_f32 v24, v24, v25")
    A("v_add_f32 v26, v26, v27")
    A("v_rcp_f32 v21, v21")
    A("v_permlane16_swap_b32 v24, v26")
    A("v_add_f32 v24, v24, v26")
    dpp("v_add_f32", 24, 24, 24, "row_ror:8")
    A("v_mul_f32 v20, v24, v21")
    rbf(20, 20)
    def frag(j, src):
        F = FS[j % 3]
        for r in range(4):
            A(f"v_mov_b32_dpp v{F+r}, v{src} row_newbcast:{2*j+(r>>1)} row_mask:0xf bank_mask:{'0x5' if r % 2 == 0 else '0xa'}")
        return F
    def frag2(j):
        F = FS[j % 3]
        for r in range(4):
            q = 2 * j + (r >> 1); second = r & 1
            src, p = (20, q & 3) if (q >> 2) == second else (21, 3 - (q & 3))
            A(f"v_mov_b32_dpp v{F+r}, v{src} quad_perm:[{p},{p},{p},{p}] row_mask:0xf bank_mask:{'0xa' if second else '0x5'}")
        return F
    def gemv16(W, red, pair=True):
        fr = frag2 if pair else (lambda i: frag(i, 20))
        if pair: A(f"v_mov_b32_dpp v21, v20 row_half_mirror {DPPF}")
        Fs = {0: fr(0)}
        for j in range(4):
            if j < 3: Fs[j + 1] = fr(j + 1)
            for v in range(2):
                acc = 10 + 4 * v; b = W + 8 * (4 * v + j)
                A(f"v_smfmac_f32_16x16x64_bf16 v[{acc}:{acc+3}], v[{Fs[j]}:{Fs[j]+3}], v[{b}:{b+7}], v4")
        A("s_mov_b32 exec_hi, 0")
        A(f"ds_write_b128 v{TC+11}, v[10:13] offset:{red}")
        A("s_mov_b32 exec_lo, 0"); A("s_mov_b32 exec_hi, -1")
        A(f"ds_write_b128 v{TC+11}, v[14:17] offset:{red}")
        A("s_mov_b64 exec, -1")
        A("s_waitcnt lgkmcnt(0)")
        A("s_barrier")
    gemv16(WO, L_RED, pair=False)
    A(f"ds_read_b128 v[20:23], v{TC+12} offset:{L_RED}")
    A("s_cmp_eq_u32 s64, 1")
    A("s_waitcnt lgkmcnt(0)")
    rr4(20, 21, 22, 23)
    dpp("v_add_f32", 20, 20, 20, "row_ror:8")
    A("s_mov_b32 exec_lo, 0x00ff00ff"); A("s_mov_b32 exec_hi, 0x00ff00ff")
    rbf(36, 20)
    A("v_min_u32 v36, s60, v36")
    lstore("L_hs", f"buffer_store_short_d16_hi v36, v{TC+6}, s[36:39], s21 offen")
    A("s_mov_b64 exec, -1")
    stamp(8)
    if hw == -1: A("s_waitcnt vmcnt(0)")
    elif hw == -2: A("s_barrier")
    elif hw: A(f"s_sleep {hw}")
    A.label("L_h2")
    A("s_cmp_lg_u32 s69, 2")
    A("s_cbranch_scc1 L_h2f")
    A("s_cmp_lg_u32 s3, 7")
    A("s_cbranch_scc1 L_end")
    A.label("L_h2f")
    for r in list(range(10, 18)) + list(range(56, 60)): A(f"v_mov_b32 v{r}, 0")
    for r in range(4): A(f"v_mov_b32 v{68+r}, 0")
    A("v_mov_b32 v52, 1.0")
    for r in range(4): A(f"v_mov_b32_dpp v{68+r}, v52 quad_perm:[0,0,0,0] row_mask:0xf bank_mask:{'0x5' if r % 2 == 0 else '0xa'}")
    gathers("L_h2", TC + 14, 24)
    stamp(2)
    for r in range(4): A(f"v_add_f32_dpp v20, v{28+r}, v{28+r} row_ror:8 row_mask:{'0x3' if r < 2 else '0xc'} bank_mask:{'0xc' if r & 1 else '0x3'}")
    A(f"v_add_f32 v20, v20, v{TC+13}")
    rbf(20, 20)
    A("s_cmp_eq_u32 s69, 2")
    A("v_mov_b32 v50, v20")
    A("s_cbranch_scc1 L_fin0")
    A("v_readfirstlane_b32 s71, v20")
    A(f"v_mov_b32_dpp v21, v20 row_half_mirror {DPPF}")
    st = ["v_subrev_f32 v25, s71, v20\nv_mov_b32 v24, s71\nv_mul_f32 v26, v25, v25", "v_permlane32_swap_b32 v25, v26\nv_add_f32 v25, v25, v26"]
    st += [f"v_add_f32_dpp v25, v25, v25 {c} {DPPF}" for c in ("quad_perm:[1,0,3,2]", "quad_perm:[2,3,0,1]", "row_ror:8")]
    st += [f"v_add_f32_dpp v25, v25, v25 row_ror:4 {DPPF}\nv_mov_b32 v26, v25", "v_permlane16_swap_b32 v25, v26\nv_add_f32 v25, v25, v26"]
    A(st.pop(0))
    Fs = {0: frag2(0)}
    A(st.pop(0))
    for j in range(4):
        if j < 3: Fs[j + 1] = frag2(j + 1); A(st.pop(0))
        for v in range(2):
            acc = 10 + 4 * v; b = WGU + 8 * (4 * v + j)
            A(f"v_smfmac_f32_16x16x64_bf16 v[{acc}:{acc+3}], v[{Fs[j]}:{Fs[j]+3}], v[{b}:{b+7}], v4")
        if j >= 2: A(st.pop(0))
    assert not st
    A("s_mov_b32 exec_lo, 1"); A("s_mov_b32 exec_hi, 1")
    A(f"ds_write_b64 v{TC+20}, v[24:25] offset:{L_ST}")
    A("s_mov_b32 exec_lo, -1"); A("s_mov_b32 exec_hi, 0")
    A(f"ds_write_b128 v{TC+11}, v[10:13] offset:{L_RED2}")
    A("s_mov_b32 exec_lo, 0"); A("s_mov_b32 exec_hi, -1")
    A(f"ds_write_b128 v{TC+11}, v[14:17] offset:{L_RED2}")
    A("s_mov_b64 exec, -1")
    A("s_waitcnt lgkmcnt(0)")
    A("s_barrier")
    stamp(3)
    A(f"ds_read_b128 v[60:63], v{TC+21} offset:{L_ST}")
    for k in range(4): A(f"ds_read_b128 v[{20+4*k}:{23+4*k}], v{TC+23} offset:{L_RED2+512*k}")
    A("s_waitcnt lgkmcnt(4)")
    A("v_readfirstlane_b32 s71, v60")
    A("v_subrev_f32 v60, s71, v60")
    A("v_fmamk_f32 v64, v60, 0x42800000, v61")
    A("v_add_f32 v61, v61, v64")
    A("v_fma_f32 v62, v60, v61, v63")
    A("s_waitcnt lgkmcnt(0)")
    c3 = ("quad_perm:[1,0,3,2]", "quad_perm:[2,3,0,1]", "row_half_mirror")
    pk = ["v_pk_add_f32 v[20:21], v[20:21], v[24:25]", "v_pk_add_f32 v[22:23], v[22:23], v[26:27]", "v_pk_add_f32 v[28:29], v[28:29], v[32:33]",
          "v_pk_add_f32 v[30:31], v[30:31], v[34:35]", "v_pk_add_f32 v[20:21], v[20:21], v[28:29]", "v_pk_add_f32 v[22:23], v[22:23], v[30:31]"]
    for k in range(3):
        A(pk[2 * k]); dpp("v_add_f32", 64, 64, 64, c3[k]); A(pk[2 * k + 1]); dpp("v_add_f32", 62, 62, 62, c3[k])
    A("v_mul_f32 v64, 0x3b000000, v64")
    A("v_permlane32_swap_b32 v20, v21")
    A("v_permlane32_swap_b32 v22, v23")
    A("v_mul_f32 v62, 0x3b000000, v62")
    A("v_add_f32 v20, v20, v21")
    A("v_add_f32 v22, v22, v23")
    A("v_fma_f32 v62, -v64, v64, v62")
    A("v_max_f32 v62, 0, v62")
    A("v_permlane16_swap_b32 v20, v22")
    A("v_add_f32 v62, 0x3727c5ac, v62")
    A("v_add_f32 v64, s71, v64")
    A("v_rsq_f32 v62, v62")
    A("v_add_f32 v20, v20, v22")
    A("v_fma_f32 v20, -v64, v51, v20")
    A("v_mul_f32 v20, v20, v62")
    dpp("v_mul_f32", 21, 20, 20, "row_ror:8")
    rbf(21, 21)
    Fs = {0: frag(0, 21)}
    for j in range(4):
        if j < 3: Fs[j + 1] = frag(j + 1, 21)
        A(f"v_smfmac_f32_16x16x64_bf16 v[56:59], v[{Fs[j]}:{Fs[j]+3}], v[{WDR[j]}:{WDR[j]+7}], v4")
    A("s_mov_b32 exec_hi, 0")
    A("s_cmp_eq_u32 s64, 1")
    A("v_cvt_pk_bf16_f32 v56, v56, v57"); A("v_cvt_pk_bf16_f32 v57, v58, v59")
    A("v_pk_min_u16 v56, s60, v56"); A("v_pk_min_u16 v57, s60, v57")
    lstore("L_ys", f"buffer_store_dwordx2 v[56:57], v{TC+24}, s[36:39], s18 offen")
    stamp(9)
    A("s_cmp_lg_u32 s3, s68")
    A("s_cbranch_scc1 L_end")
    A("s_mov_b64 exec, -1")
    if yw == -1: A("s_waitcnt vmcnt(0)")
    elif yw: A(f"s_sleep {yw}")
    A("s_branch L_fin")
    A.label("L_fin0")
    A("s_cmp_lg_u32 s77, 28"); A("s_cbranch_scc1 L_fin")
    A("s_mov_b64 exec, 1")
    A("v_mov_b32 v36, s52")
    A("buffer_store_dword v36, v3, s[36:39], 0 offen sc1")
    A("s_mov_b64 exec, -1")
    A.label("L_fin")
    A("s_and_b32 s71, s77, 3"); A("s_lshl_b32 s71, s71, 1"); A("s_lshl_b32 s71, 0x03030303, s71")
    gathers("L_h3", TC + 22, 22)
    stamp(5)
    for r in range(4): A(f"v_add_f32_dpp v{20+(r&1)}, v{28+r}, v{28+r} quad_perm:[2,3,0,1] row_mask:{'0x3' if r < 2 else '0xc'} bank_mask:0xf")
    dpp("v_add_f32", 20, 20, 20, "row_ror:4"); dpp("v_add_f32", 21, 21, 21, "row_ror:4")
    A("v_add_f32_dpp v22, v20, v20 row_ror:8 row_mask:0xf bank_mask:0x3")
    A("v_add_f32_dpp v22, v21, v21 row_ror:8 row_mask:0xf bank_mask:0xc")
    A("v_add_f32 v20, v22, v50")
    rbf(20, 20)
    if diag:
        A.label("L_dg1")
        A("s_memrealtime s[82:83]"); A("s_waitcnt lgkmcnt(0)")
        A("s_sub_u32 s82, s82, s80"); A("s_cmp_lt_u32 s82, 6000"); A("s_cbranch_scc1 L_dg1")
    A("s_mov_b32 exec_lo, s71"); A("s_mov_b32 exec_hi, s71")
    A(f"buffer_store_short_d16_hi v20, v{TC+25}, s[44:47], 0 offen")
    A("s_branch L_end")
    A.label("L_cs")
    A("v_and_b32 v4, 3, v1"); A("v_mul_u32_u24 v4, 0x5555, v4")
    for r in range(20, 32): A(f"v_mov_b32 v{r}, 0")
    A("v_mov_b32 v32, 1.0")
    A("s_waitcnt vmcnt(0)")
    for r in range(4): A(f"v_mov_b32_dpp v{28+r}, v32 quad_perm:[0,0,0,0] row_mask:0xf bank_mask:{'0x5' if r % 2 == 0 else '0xa'}")
    for j in range(4):
        for v in range(2):
            b = WGU + 8 * (4 * v + j)
            A(f"v_smfmac_f32_16x16x64_bf16 v[{20+4*v}:{23+4*v}], v[28:31], v[{b}:{b+7}], v4")
    A("s_mov_b32 exec_hi, 0")
    A(f"ds_write_b128 v{TC+11}, v[20:23] offset:{L_RED2}")
    A("s_mov_b32 exec_lo, 0"); A("s_mov_b32 exec_hi, -1")
    A(f"ds_write_b128 v{TC+11}, v[24:27] offset:{L_RED2}")
    A("s_mov_b64 exec, -1")
    A("s_branch L_csr")
    for (lab, back) in post:
        A.label(lab); spin(back)
    for (name, text) in post2:
        A.label(f"{name}_g"); A(text + " sc1"); A(f"s_branch {name}_j")
    A.label("L_end")
    if prof:
        A("s_waitcnt vmcnt(0)")
        stamp(10)
        A("s_mov_b64 exec, -1")
        A("s_waitcnt lgkmcnt(0)")
        for i in range(11): A(f"v_writelane_b32 v20, s{80+2*i}, {i}")
        A("v_writelane_b32 v20, s64, 11")
        A("s_getreg_b32 s71, hwreg(HW_REG_XCC_ID)"); A("v_writelane_b32 v20, s71, 12")
        A("s_lshl_b32 s71, s2, 3"); A("s_add_u32 s71, s71, s3"); A("s_lshl_b32 s71, s71, 6"); A(f"s_add_u32 s71, s71, {PROF}")
        A("v_lshlrev_b32 v21, 2, v1")
        A("s_mov_b64 exec, 0xffff")
        A("buffer_store_dword v20, v21, s[36:39], s71 offen")
    A.label("L_exit")
    A("s_endpgm")
    body = A.finish()
    nv = max(A.maxv + 1, 136)
    txt = HEADER + f"; @launch grid=(256,1,1) block=(512,1,1) lds={L_END}\n"
    txt += f'.amdgcn_target "amdgcn-amd-amdhsa--gfx950"\n.text\n.globl {KNAME}\n.p2align 8\n.type {KNAME},@function\n{KNAME}:\n'
    txt += body
    txt += ".fill 256, 4, 0xbf800000\n"
    txt += f'.section .rodata,"a"\n.p2align 6\n.amdhsa_kernel {KNAME}\n  .amdhsa_next_free_vgpr {nv}\n  .amdhsa_next_free_sgpr 102\n'
    txt += f"  .amdhsa_accum_offset {(nv+3)//4*4}\n  .amdhsa_group_segment_fixed_size 0\n  .amdhsa_kernarg_size 96\n  .amdhsa_user_sgpr_count 2\n"
    txt += "  .amdhsa_user_sgpr_kernarg_segment_ptr 1\n  .amdhsa_system_sgpr_workgroup_id_x 1\n  .amdhsa_float_denorm_mode_32 3\n.end_amdhsa_kernel\n"
    return txt

if __name__ == "__main__":
    import argparse
    p = argparse.ArgumentParser(); p.add_argument("-o"); p.add_argument("kv", nargs="*")
    a = p.parse_args()
    kw = {k: eval(v) for k, v in (x.split("=") for x in a.kv)}
    open(a.o, "w").write(gen(**kw))
```

```python
import sys, struct
sys.path.insert(0, "gen")
from asmlib import Asm

KNAME = "sequential_preLN__gqa_block_cached__glu_gated_bilinear__decode_kernel"
HEADER = open("sequential_preLN__gqa_block_cached__glu_gated_bilinear__decode.s.ref").read().split("; Override launch")[0]

XBUF, QBUF, OBUF, HBUF, YBUF, CBUF, MLBUF, WS_END = 0x800, 0x1000, 0x10000, 0xAC000, 0xB0000, 0xD0000, 0x140000, 0x180000
PROF = 0x100000
L_OM, L_ML, L_MX, L_QF, L_TK, L_ST, L_RED, L_RED2, L_HL, L_TB, L_WD, L_END = 0, 0x4000, 0x4100, 0x4600, 0x4A00, 0x4B00, 0x5000, 0x7000, 0x4C00, 0x9000, 0x9800, 0x19800
DPPF = "row_mask:0xf bank_mask:0xf"
SPIN = 1 << 20

def gen(NX=4, prof=False, S0=104, offT=48, offF=24, offQ=12, thr1=8, slp1=4, qslp=4, LA=2, t8=128, t4=48, t1=0, b0=8,
        cstride=256, kf='nt', vf='nt', wf='', mlsh=4, cut=0, local=True, pretouch=True, tT=64, diag=0, codepf=True, outpf=True, h2pre=False, opre=None, osf='sc1', ew=8, ewx=0, PS=0, pgap=0, flat2=True, flat3=True, skipoob=True, hw=-2, yw=0, stx=True, noround=0, trace=False, tlbpf=0, tS=0, sm=8, XT=0, W=0, qprof=False, qhold=True, X2=2):
    A = Asm()
    RA, RX = 56, 88
    WO, WGU = 88, 152
    WDR = [72, 80, 244, 40]
    FS = [232, 6, 252]
    TC = 216
    OOB = 0x1000000
    D0 = (4096 - 32 * S0 + 8 * offQ + 4 * offT) // 4
    assert offF % 4 == 0
    D1 = D0 - offF // 4
    assert LA + D0 + 64 + 64 <= 512
    seen = {}
    def stamp(i):
        if prof: A(f"s_memrealtime s[{80+2*i}:{81+2*i}]")
        seen[i] = seen.get(i, 0) + 1
        if diag:
            if (i, seen[i]) == (0, 1): A("s_memrealtime s[80:81]")
            if diag[0] == (i, seen[i]): A("s_memrealtime s[84:85]")
            if diag[1] == (i, seen[i]): A("s_memrealtime s[86:87]")
    def rr4(a, b, c, d):
        A(f"v_permlane32_swap_b32 v{a}, v{b}")
        A(f"v_permlane32_swap_b32 v{c}, v{d}")
        A(f"v_add_f32 v{a}, v{a}, v{b}")
        A(f"v_add_f32 v{c}, v{c}, v{d}")
        A(f"v_permlane16_swap_b32 v{a}, v{c}")
        A(f"v_add_f32 v{a}, v{a}, v{c}")
    def rows_all(x, t, op):
        A(f"v_mov_b32 v{t}, v{x}")
        A(f"v_permlane32_swap_b32 v{x}, v{t}")
        A(f"{op} v{x}, v{x}, v{t}")
        A(f"v_mov_b32 v{t}, v{x}")
        A(f"v_permlane16_swap_b32 v{x}, v{t}")
        A(f"{op} v{x}, v{x}, v{t}")
    def dpp(op, d, s, o, ctl): A(f"{op}_dpp v{d}, v{s}, v{o} {ctl} {DPPF}")
    def quad_all(x, op):
        dpp(op, x, x, x, "quad_perm:[1,0,3,2]"); dpp(op, x, x, x, "quad_perm:[2,3,0,1]")
    def wave_all(x, t, op):
        quad_all(x, op); dpp(op, x, x, x, "row_ror:8"); dpp(op, x, x, x, "row_ror:4"); rows_all(x, t, op)
    def rbf(d, s): A(f"v_cvt_pk_bf16_f32 v{d}, 0, v{s}")
    def ln_fin(mean, var):
        rbf(var, var)
        rbf(mean, mean)
        A(f"v_add_f32 v{var}, 0x37280000, v{var}")
        rbf(var, var)
        A(f"v_sqrt_f32 v{var}, v{var}")
        rbf(var, var)
        A(f"v_rcp_f32 v{var}, v{var}")
    def ln_stats(vals, mean, rinv, t):
        A(f"v_add_f32 v{mean}, v{vals[0]}, v{vals[1]}")
        A(f"v_add_f32 v{t}, v{vals[2]}, v{vals[3]}")
        A(f"v_add_f32 v{rinv}, v{vals[4]}, v{vals[5]}")
        A(f"v_add_f32 v{mean}, v{mean}, v{t}")
        A(f"v_add_f32 v{t}, v{vals[6]}, v{vals[7]}")
        A(f"v_add_f32 v{rinv}, v{rinv}, v{t}")
        A(f"v_add_f32 v{mean}, v{mean}, v{rinv}")
        wave_all(mean, t, "v_add_f32")
        A(f"v_mul_f32 v{mean}, 0x3b000000, v{mean}")
        for v in vals: A(f"v_sub_f32 v{v}, v{v}, v{mean}")
        A(f"v_mul_f32 v{rinv}, v{vals[0]}, v{vals[0]}")
        A(f"v_mul_f32 v{t}, v{vals[1]}, v{vals[1]}")
        for k in range(2, 8, 2):
            A(f"v_fmac_f32 v{rinv}, v{vals[k]}, v{vals[k]}")
            A(f"v_fmac_f32 v{t}, v{vals[k+1]}, v{vals[k+1]}")
        A(f"v_add_f32 v{rinv}, v{rinv}, v{t}")
        wave_all(rinv, t, "v_add_f32")
        A(f"v_mul_f32 v{rinv}, 0x3b000000, v{rinv}")
        ln_fin(mean, rinv)
    def srd(d, lo, hi, n):
        A(f"s_mov_b32 s{d}, s{lo}"); A(f"s_mov_b32 s{d+1}, s{hi}"); A(f"s_mov_b32 s{d+2}, {hex(n)}"); A(f"s_mov_b32 s{d+3}, 0x20000")
    def spin(label, slp=0):
        A("s_sub_u32 s72, s72, 1")
        A("s_cbranch_scc1 L_end")
        if slp: A(f"s_sleep {slp}")
        A(f"s_branch {label}")
    MREG = [4, 6, 8, 10, 28, 30, 32, 34, 40]
    def gather(name, groups, init_masks=None, check_first=False):
        ng = len(groups)
        for j in range(ng):
            m = -1 if init_masks is None else init_masks[j]; M = MREG[j]
            if m == -1: A(f"s_mov_b64 s[{M}:{M+1}], -1")
            else: A(f"s_mov_b32 s{M}, {hex(m & 0xffffffff)}"); A(f"s_mov_b32 s{M+1}, {hex(m >> 32)}")
        if check_first: A(f"s_branch {name}_chk")
        A.label(f"{name}_rnd")
        for j, g in enumerate(groups):
            M = MREG[j]
            A(f"s_mov_b64 exec, s[{M}:{M+1}]")
            A(f"s_cbranch_execz {name}_i{j}")
            for (r, va, so, imm) in g:
                A(f"buffer_load_dwordx4 v[{r}:{r+3}], v{va}, s[36:39], s{so} offen offset:{imm} sc1")
            A.label(f"{name}_i{j}")
        A.label(f"{name}_chk")
        A("s_mov_b64 s[12:13], 0")
        A("s_waitcnt vmcnt(0)")
        for j, g in enumerate(groups):
            M = MREG[j]
            A(f"s_mov_b64 exec, s[{M}:{M+1}]")
            A(f"s_cbranch_execz {name}_c{j}")
            regs = [r + k for (r, _, _, _) in g for k in range(4)]
            for k, r in enumerate(regs): A(f"v_xor_b32 v{r}, s{53+(k&3)}, v{r}")
            A(f"v_or3_b32 v55, v{regs[0]}, v{regs[1]}, v{regs[2]}")
            rest = regs[3:]
            while len(rest) >= 2:
                A(f"v_or3_b32 v55, v55, v{rest[0]}, v{rest[1]}"); rest = rest[2:]
            A(f"v_or_b32 v55, v55, v{rest[0]}")
            A("v_and_b32 v55, 0xff, v55")
            A(f"v_cmp_ne_u32 s[{M}:{M+1}], 0, v55")
            A(f"s_or_b64 s[12:13], s[12:13], s[{M}:{M+1}]")
            A.label(f"{name}_c{j}")
        A("s_mov_b64 exec, -1")
        A("s_cmp_eq_u64 s[12:13], 0")
        A(f"s_cbranch_scc1 {name}_ok")
        spin(f"{name}_rnd")
        A.label(f"{name}_ok")
    def gatherp(name, groups, raws):
        ng = len(groups)
        for j in range(ng): A(f"s_mov_b64 s[{MREG[j]}:{MREG[j]+1}], -1")
        NL = sum(len(g) for g in groups)
        def issue(rb):
            n = 0
            for j, g in enumerate(groups):
                A(f"s_or_b64 exec, s[{MREG[j]}:{MREG[j]+1}], 1")
                for (r, va, so, imm) in g:
                    A(f"buffer_load_dwordx4 v[{rb+4*n}:{rb+4*n+3}], v{va}, s[36:39], s{so} offen offset:{imm} sc1")
                    n += 1
        for rb in raws: issue(rb)
        A.label(f"{name}_rnd")
        for k, rb in enumerate(raws):
            A("s_mov_b64 s[12:13], 0")
            A(f"s_waitcnt vmcnt({(len(raws)-1)*NL})")
            n = 0
            for j, g in enumerate(groups):
                M = MREG[j]
                A(f"s_mov_b64 exec, s[{M}:{M+1}]")
                A(f"s_cbranch_execz {name}_c{k}_{j}")
                regs = []
                for (r, _, _, _) in g:
                    for e in range(4):
                        A(f"v_xor_b32 v{r+e}, s{53+e}, v{rb+4*n+e}"); regs.append(r + e)
                    n += 1
                A(f"v_or3_b32 v55, v{regs[0]}, v{regs[1]}, v{regs[2]}")
                A(f"v_or_b32 v55, v55, v{regs[3]}")
                A("v_and_b32 v55, 0xff, v55")
                A(f"v_cmp_ne_u32 s[{M}:{M+1}], 0, v55")
                A(f"s_or_b64 s[12:13], s[12:13], s[{M}:{M+1}]")
                A.label(f"{name}_c{k}_{j}")
            A("s_cmp_eq_u64 s[12:13], 0")
            A(f"s_cbranch_scc1 {name}_ok")
            if pgap: A(f"s_sleep {pgap}")
            issue(rb)
        spin(f"{name}_rnd")
        A.label(f"{name}_ok")
        A("s_mov_b64 exec, -1")
    def gatherf(name, loads, last_half=False):
        A.label(f"{name}_rnd")
        for k, (r, va, so, imm) in enumerate(loads):
            if last_half and k == len(loads) - 1:
                for e in range(4): A(f"v_mov_b32 v{r+e}, s{53+e}")
                A("s_mov_b32 exec_hi, 0")
            A(f"buffer_load_dwordx4 v[{r}:{r+3}], v{va}, s[36:39], s{so} offen offset:{imm} sc1")
        if last_half: A("s_mov_b32 exec_hi, -1")
        n = len(loads)
        for k, (r, _, _, _) in enumerate(loads):
            A(f"s_waitcnt vmcnt({n-1-k})")
            for e in range(4): A(f"v_xor_b32 v{r+e}, s{53+e}, v{r+e}")
            if k == 0: A(f"v_or_b32 v55, v{r}, v{r+1}")
            else: A(f"v_or3_b32 v55, v55, v{r}, v{r+1}")
            A(f"v_or3_b32 v55, v55, v{r+2}, v{r+3}")
        A("v_and_b32 v55, 0xff, v55")
        A("v_cmp_ne_u32 vcc, 0, v55")
        A(f"s_cbranch_vccnz {name}_re")
        post.append((f"{name}_re", f"{name}_rnd"))
    def gathers(name, va, so):
        A.label(f"{name}_rnd")
        A(f"buffer_load_dwordx4 v[20:23], v{va}, s[36:39], s{so} offen sc1")
        A(f"buffer_load_dwordx4 v[24:27], v{va}, s[36:39], s{so+1} offen sc1")
        for r in range(4): A(f"v_mov_b32 v{28+r}, 0")
        A("s_waitcnt vmcnt(1)")
        A("v_pk_max_u16 v55, v20, v21"); A("v_pk_max_u16 v53, v22, v23"); A("v_pk_max_u16 v55, v55, v53")
        A("s_waitcnt vmcnt(0)")
        A("v_smfmac_f32_16x16x64_bf16 v[28:31], v[68:71], v[20:27], v4")
        for r in range(24, 28): A(f"v_pk_max_u16 v55, v55, v{r}")
        A("v_pk_max_u16 v55, v55, v55 op_sel:[1,0] op_sel_hi:[0,1]")
        A("v_cmp_eq_u32 vcc, -1, v55")
        A(f"s_cbranch_vccnz {name}_re")
        post.append((f"{name}_re", f"{name}_rnd"))
    post = []; post2 = []
    def lstore(name, text):
        A(f"s_cbranch_scc0 {name}_g")
        A(text)
        A.label(f"{name}_j")
        post2.append((name, text))
    thr = [None]
    def throttle():
        if thr[0] is not None:
            if thr[0] >= W: A(f"s_waitcnt vmcnt({W-1})")
            thr[0] += 1
    def issueK(base, so):
        for j in range(4):
            r = base + 4 * j
            throttle()
            A(f"buffer_load_dwordx4 v[{r}:{r+3}], v2, s[28:31], s{so} offen offset:{1024*j} {kf}")
    def issueV(base, so):
        for j in range(4):
            r = base + 16 + 4 * j
            throttle()
            A(f"buffer_load_dwordx4 v[{r}:{r+3}], v3, s[32:35], s{so} offen offset:{1024*j} {vf}")
    def common_setup():
        A("s_mov_b32 s60, 0x22222222"); A("s_mov_b32 s61, 0x22222222")
        A("s_mov_b32 s62, 0x44444444"); A("s_mov_b32 s63, 0x44444444")
        A("s_mov_b32 s64, 0x88888888"); A("s_mov_b32 s65, 0x88888888")
        A("s_mov_b32 s74, 0x3db504f3"); A("s_mov_b32 s75, 0x3fb8aa3b")
        A(f"s_mov_b32 s72, {SPIN}")
        A("v_mov_b32 v44, 0xffff"); A("v_mov_b32 v45, 0xffff0000")
        A("v_mov_b32 v4, 0"); A("v_mov_b32 v5, 0")
        A("v_cmp_eq_u32 vcc, 0, v47")
        A("v_cndmask_b32 v4, v4, v44, vcc")
        A("v_cndmask_b32 v4, v4, v45, s[60:61]")
        A("v_cndmask_b32 v5, v5, v44, s[62:63]")
        A("v_cndmask_b32 v5, v5, v45, s[64:65]")
        for r in range(10, 18): A(f"v_mov_b32 v{r}, 0")
        A("v_mov_b32 v18, 0xff7fffff"); A("v_mov_b32 v19, 0")
    def k32masks(b):
        A("v_bfe_u32 v51, v1, 2, 1"); A("v_cmp_eq_u32 vcc, 0, v51")
        A(f"v_cndmask_b32 v{b}, 0, v4, vcc"); A(f"v_cndmask_b32 v{b+1}, 0, v5, vcc")
        A(f"v_cndmask_b32 v{b+2}, v4, 0, vcc"); A(f"v_cndmask_b32 v{b+3}, v5, 0, vcc")
    def tags():
        A("s_add_u32 s52, s52, 0x9e3779b9")
        A("s_and_b32 s53, s52, 0xff"); A("s_bfe_u32 s54, s52, 0x80008"); A("s_bfe_u32 s55, s52, 0x80010"); A("s_lshr_b32 s56, s52, 24")
        A("s_and_b32 s57, s52, 0xffff"); A("s_lshr_b32 s58, s52, 16")
    def sum4x4():
        A("v_pk_add_f32 v[20:21], v[20:21], v[24:25]"); A("v_pk_add_f32 v[22:23], v[22:23], v[26:27]")
        A("v_pk_add_f32 v[28:29], v[28:29], v[32:33]"); A("v_pk_add_f32 v[30:31], v[30:31], v[34:35]")
        A("v_pk_add_f32 v[20:21], v[20:21], v[28:29]"); A("v_pk_add_f32 v[22:23], v[22:23], v[30:31]")
        rr4(20, 21, 22, 23)
    def sum2x4():
        A("v_pk_add_f32 v[20:21], v[20:21], v[24:25]"); A("v_pk_add_f32 v[22:23], v[22:23], v[26:27]")
        rr4(20, 21, 22, 23)
    def tr():
        A("s_memrealtime s[96:97]"); A("s_mov_b32 m0, s98"); A("s_waitcnt lgkmcnt(0)"); A("v_writelane_b32 v244, s96, m0"); A("s_add_u32 s98, s98, 1")
    uid = [0]
    def chunk(base, refill):
        KB, VB = base, base + 16
        uid[0] += 1; u = uid[0]
        if refill:
            A("s_cmp_ge_u32 s66, s30")
            A("s_cbranch_scc1 L_done")
            if ew < 8:
                A("s_cmp_ge_u32 s66, s101")
                A("s_cbranch_scc1 L_nodraw")
            A("s_mov_b64 exec, 1")
            A("ds_add_rtn_u32 v54, v52, v53")
            A("s_mov_b64 exec, -1")
            if ew < 8: A.label("L_nodraw")
            A("s_waitcnt vmcnt(4) lgkmcnt(0)")
            A("v_readfirstlane_b32 s71, v54")
        for j in range(4):
            A(f"v_mfma_f32_16x16x32_bf16 v[{20+4*j}:{23+4*j}], v[{KB+4*j}:{KB+4*j+3}], v[6:9], 0")
        if refill:
            if ew < 8:
                A("s_cmp_ge_u32 s66, s101")
                A("s_mov_b32 s66, s30")
                A("s_cbranch_scc1 L_go")
            A("s_add_u32 s66, s71, s59")
            A("s_cmp_ge_u32 s71, s70")
            A("s_cbranch_scc1 L_dyn")
            A.label("L_go")
            issueK(base, 66)
            A.label("L_gox")
        D = lambda j, r: 20 + 4 * (j & 3) + r
        for rho in range(4): A(f"v_cndmask_b32 v{44+rho}, v{D(rho,0)}, v{D(rho+1,1)}, s[60:61]")
        for rho in range(4): A(f"v_cndmask_b32 v{44+rho}, v{44+rho}, v{D(rho+2,2)}, s[62:63]")
        for rho in (1, 2, 3, 0): A(f"v_cndmask_b32 v{44+rho}, v{44+rho}, v{D(rho+3,3)}, s[64:65]")
        for rho in range(1, 4):
            qp = ",".join(str((q - rho) & 3) for q in range(4))
            dpp("v_add_f32", 44, 44 + rho, 44, f"quad_perm:[{qp}]")
        if noround < 1: rbf(44, 44)
        A("v_mul_f32 v44, s74, v44")
        if noround < 2: rbf(44, 44)
        A("v_mul_f32 v44, s75, v44")
        A("v_cmp_gt_f32 vcc, v44, v18")
        A(f"s_cbranch_vccz L_nors{u}")
        A("v_max_f32 v45, v44, v18")
        quad_all(45, "v_max_f32")
        rows_all(45, 46, "v_max_f32")
        A("v_sub_f32 v46, v18, v45")
        A("v_exp_f32 v46, v46")
        A("v_mov_b32 v18, v45")
        A("v_mul_f32 v19, v19, v46")
        for h in range(4): A(f"v_mov_b32_dpp v47, v46 row_newbcast:{4*h} row_mask:{hex(1<<h)} bank_mask:0xf")
        for r in range(10, 18): A(f"v_mul_f32 v{r}, v{r}, v47")
        A.label(f"L_nors{u}")
        A("v_sub_f32 v44, v44, v18")
        A("v_exp_f32 v44, v44")
        A("v_cvt_pk_bf16_f32 v45, v44, v44")
        A("v_add_f32 v19, v19, v44")
        for j in range(4):
            dpp("v_and_b32", 36 + 2 * j, 45, 4, f"quad_perm:[{j},{j},{j},{j}]")
            dpp("v_and_b32", 37 + 2 * j, 45, 5, f"quad_perm:[{j},{j},{j},{j}]")
        if refill:
            if skipoob:
                A("s_cmp_ge_u32 s66, s30")
                A("s_cbranch_scc1 L_last")
            A("s_waitcnt vmcnt(4)")
            A.label("L_pv")
        if trace and refill: tr()
        for j in range(4):
            A(f"v_mfma_f32_16x16x16_bf16 v[10:13], v[{36+2*j}:{37+2*j}], v[{VB+4*j}:{VB+4*j+1}], v[10:13]")
            A(f"v_mfma_f32_16x16x16_bf16 v[14:17], v[{36+2*j}:{37+2*j}], v[{VB+4*j+2}:{VB+4*j+3}], v[14:17]")
        if refill: issueV(base, 66)

    A("s_cmp_ge_u32 s2, 256")
    A("s_cbranch_scc1 L_exit")
    A("s_load_dwordx16 s[4:19], s[0:1], 0")
    A("s_load_dwordx8 s[20:27], s[0:1], 64")
    stamp(0)
    if XT: A(f"s_xor_b32 s2, s2, {XT}")
    A("v_and_b32 v1, 63, v0")
    A("v_lshrrev_b32 v44, 6, v0")
    A("v_lshlrev_b32 v3, 4, v1")
    A("v_readfirstlane_b32 s3, v44")
    A("v_bfe_u32 v45, v1, 2, 2")
    A("v_lshrrev_b32 v46, 4, v1")
    A("v_and_b32 v47, 3, v1")
    A("v_lshlrev_b32 v2, 8, v45")
    A("v_lshl_add_u32 v2, v46, 6, v2")
    A("v_lshl_add_u32 v2, v47, 4, v2")
    A("s_lshr_b32 s77, s2, 3"); A("s_and_b32 s76, s77, 7"); A("s_and_b32 s73, s2, 7"); A("s_lshr_b32 s78, s2, 6")
    A("s_lshl3_add_u32 s79, s78, s73")
    A("s_cmp_ge_u32 s76, 4"); A(f"s_cselect_b32 s67, {D0-D1}, 0"); A(f"s_sub_u32 s67, {D0}, s67")
    assert S0 - offT - offQ - LA >= 8 + 7 * NX and offT + offQ <= 64
    A(f"s_mul_i32 s59, s78, {8*S0-offT-2*offQ}"); A(f"s_mul_i32 s71, s73, {S0}"); A("s_add_u32 s59, s59, s71")
    A("s_cmp_ge_u32 s77, 28"); A(f"s_cselect_b32 s68, {offT-offF+offQ}, {offT+offQ}")
    A("s_cmp_eq_u32 s73, 0"); A("s_cselect_b32 s71, 0, s68"); A("s_cselect_b32 s70, s68, 0"); A("s_sub_u32 s59, s59, s71")
    A(f"s_cmp_gt_u32 s73, {X2}"); A(f"s_cselect_b32 s71, {offQ}, 0"); A("s_sub_u32 s59, s59, s71")
    A(f"s_cmp_eq_u32 s73, {X2}"); A(f"s_cselect_b32 s70, {offQ}, s70"); A("s_cselect_b32 s65, 1, 0")
    A(f"s_sub_u32 s70, {S0-LA}, s70")
    A("s_lshl_b32 s59, s59, 12"); A("s_lshl_b32 s70, s70, 12")
    A("s_lshl_b32 s66, s3, 12"); A("s_add_u32 s66, s66, s59")
    A("s_lshl_b32 s71, s76, 24")
    A(f"s_mov_b32 s30, {OOB}"); A("s_mov_b32 s31, 0x20000"); A(f"s_mov_b32 s34, {OOB}"); A("s_mov_b32 s35, 0x20000")
    A(f"s_cmp_lg_u32 s70, {(S0-LA)*4096}")
    A("s_cbranch_scc1 L_qprod")
    A("s_waitcnt lgkmcnt(0)")
    A("s_add_u32 s28, s6, s71"); A("s_addc_u32 s29, s7, 0")
    A("s_add_u32 s32, s8, s71"); A("s_addc_u32 s33, s9, 0")
    A("s_load_dword s52, s[26:27], 0")
    A("s_cmp_eq_u32 s3, 0")
    A("s_cbranch_scc1 L_w0")
    A.label("L_ring")
    if W: thr[0] = 0
    if prof: A("s_memrealtime s[94:95]")
    issueK(RA, 66); issueV(RA, 66)
    if prof: A("s_memrealtime s[96:97]")
    A(f"s_add_u32 s68, s66, {7*4096}")
    for k in range(NX):
        issueK(RX + 32 * k, 68); issueV(RX + 32 * k, 68)
        if k < NX - 1: A(f"s_add_u32 s68, s68, {7*4096}")
    thr[0] = None
    srd(48, 4, 5, 1024)
    srd(36, 26, 27, WS_END)
    common_setup()
    A("s_waitcnt lgkmcnt(0)")
    tags()
    stamp(1)
    A("s_barrier")
    A("s_branch L_qj")
    A.label("L_qprod")
    A("v_lshrrev_b32 v44, 3, v1"); A("v_and_b32 v45, 7, v1")
    A("v_lshlrev_b32 v50, 16, v44")
    A("v_lshl_add_u32 v50, v45, 4, v50")
    A("v_lshlrev_b32 v51, 4, v44")
    A("s_lshl1_add_u32 s69, s78, s65"); A("s_lshl3_add_u32 s69, s76, s69")
    A("s_lshl_b32 s68, s69, 7"); A("s_lshl_b32 s73, s3, 19"); A("s_add_u32 s68, s68, s73")
    A("s_lshl_b32 s73, s3, 7")
    A("s_mov_b32 s50, 1024"); A("s_mov_b32 s51, 0x20000"); A(f"s_mov_b32 s42, {4<<20}"); A("s_mov_b32 s43, 0x20000")
    for i in range(1, 8): A(f"v_add_u32 v{35+i}, {8192*i}, v50")
    A("s_waitcnt lgkmcnt(0)")
    A("s_mov_b32 s48, s4"); A("s_mov_b32 s49, s5"); A("s_mov_b32 s40, s10"); A("s_mov_b32 s41, s11")
    A("buffer_load_dwordx4 v[52:55], v3, s[48:51], 0 offen")
    A("buffer_load_dwordx4 v[32:35], v51, s[48:51], s73 offen")
    for i in range(8):
        va = 50 if i == 0 else 35 + i
        A(f"buffer_load_dwordx4 v[{RA+4*i}:{RA+4*i+3}], v{va}, s[40:43], s68 offen {wf}")
    A("s_load_dword s52, s[26:27], 0")
    A("s_add_u32 s28, s6, s71"); A("s_addc_u32 s29, s7, 0")
    A("s_add_u32 s32, s8, s71"); A("s_addc_u32 s33, s9, 0")
    A("s_cmp_lg_u32 s3, 0"); A("s_cbranch_scc1 L_nz")
    A("s_cmp_lg_u32 s65, 0"); A("s_cbranch_scc1 L_nz")
    A(f"s_mul_i32 s73, s77, {cstride}"); A(f"s_add_u32 s73, s73, {CBUF}")
    A("v_mov_b32 v49, s73"); A("v_mov_b32 v48, 0")
    A("s_mov_b64 exec, 1")
    A("global_store_dword v49, v48, s[26:27] sc1")
    A("s_mov_b64 exec, -1")
    A.label("L_nz")
    A("v_lshrrev_b32 v49, 5, v1"); A("v_and_b32 v44, 1, v46")
    A("v_lshlrev_b32 v48, 8, v49"); A("v_lshl_add_u32 v48, v45, 5, v48"); A("v_lshl_add_u32 v48, v44, 4, v48")
    A("s_lshl_b32 s73, s3, 9"); A("v_add_u32 v48, s73, v48")
    common_setup()
    k32masks(6)
    if qprof: A("s_memrealtime s[90:91]")
    A("s_waitcnt vmcnt(8)")
    if qprof: A("s_memrealtime s[92:93]")
    for k in range(4):
        A(f"v_lshlrev_b32 v{36+2*k}, 16, v{52+k}")
        A(f"v_and_b32 v{37+2*k}, 0xffff0000, v{52+k}")
    for k in range(4):
        A(f"v_lshlrev_b32 v{20+2*k}, 16, v{32+k}")
        A(f"v_and_b32 v{21+2*k}, 0xffff0000, v{32+k}")
    ln_stats(list(range(36, 44)), 44, 45, 51)
    for k in range(8): A(f"v_sub_f32 v{20+k}, v{20+k}, v44")
    for k in range(8): rbf(20 + k, 20 + k)
    for k in range(8): A(f"v_mul_f32 v{20+k}, v{20+k}, v45")
    for k in range(8): A(f"v_cvt_pk_bf16_f32 v{20+k}, v{20+k}, v{20+k}")
    for i in range(8):
        for r in range(4): A(f"v_and_b32 v{RX+4*i+r}, v{20+i}, v{6+r}")
    A("s_waitcnt vmcnt(0)")
    if qprof: A("s_memrealtime s[98:99]")
    for i in range(8):
        c = "0" if i == 0 else "v[28:31]"
        A(f"v_mfma_f32_16x16x32_bf16 v[28:31], v[{RX+4*i}:{RX+4*i+3}], v[{RA+4*i}:{RA+4*i+3}], {c}")
    A("s_mov_b32 exec_lo, 0x00ff00ff"); A("s_mov_b32 exec_hi, 0xff00ff00")
    A(f"ds_write_b128 v48, v[28:31] offset:{L_RED}")
    A("s_mov_b64 exec, -1")
    A("s_waitcnt lgkmcnt(0)")
    A("s_barrier")
    A("s_cmp_lg_u32 s3, 0")
    A("s_cbranch_scc1 L_ringb" if qhold else "s_cbranch_scc1 L_ring")
    A("s_setprio 3")
    A("v_and_b32 v50, 15, v1"); A("v_lshlrev_b32 v49, 10, v46"); A("v_lshl_add_u32 v49, v50, 4, v49")
    for k in range(4): A(f"ds_read_b128 v[{20+4*k}:{23+4*k}], v49 offset:{L_RED+256*k}")
    srd(36, 26, 27, WS_END)
    tags()
    A("v_and_b32 v45, 1, v46"); A("v_lshlrev_b32 v45, 1, v45"); A("v_lshrrev_b32 v44, 1, v46"); A("v_or_b32 v45, v45, v44")
    A("v_lshl_add_u32 v45, v50, 2, v45"); A("v_lshlrev_b32 v45, 2, v45")
    A("v_mov_b32 v49, s57"); A("v_mov_b32 v51, s58")
    A("v_cmp_eq_u32 vcc, 0, v44")
    A("v_cndmask_b32 v49, v51, v49, vcc")
    A("s_lshl_b32 s71, s69, 8"); A(f"s_add_u32 s71, s71, {QBUF}")
    A("s_waitcnt lgkmcnt(0)")
    sum4x4()
    rbf(20, 20)
    A("v_or_b32 v20, v20, v49")
    A("buffer_store_dword v20, v45, s[36:39], s71 offen sc1")
    stamp(2)
    if qhold: A("s_barrier")
    if qprof: A("s_waitcnt vmcnt(0)"); A("s_memrealtime s[96:97]")
    A("s_branch L_w0b")
    if qhold:
        A.label("L_ringb")
        A("s_barrier")
        A("s_branch L_ring")
    A.label("L_w0")
    A("s_setprio 3")
    srd(48, 4, 5, 1024)
    srd(36, 26, 27, WS_END)
    common_setup()
    A("s_waitcnt lgkmcnt(0)")
    tags()
    A.label("L_w0b")
    A(f"v_mov_b32 v52, {L_TK}"); A(f"v_mov_b32 v48, {(8+7*NX)*4096}")
    A("ds_write_b32 v52, v48")
    for r in range(4): A(f"v_mov_b32 v{24+r}, -1")
    A(f"ds_write_b128 v3, v[24:27] offset:{L_TB}")
    A(f"ds_write_b128 v3, v[24:27] offset:{L_TB+1024}")
    A("s_add_u32 s73, s59, s70")
    A("v_lshlrev_b32 v28, 12, v1"); A("v_add_u32 v28, s73, v28"); A("v_lshlrev_b32 v29, 2, v1")
    A("v_cmp_eq_u32 vcc, 0, v1"); A("v_addc_co_u32 v28, vcc, 0, v28, vcc")
    A(f"s_mov_b64 exec, {(1 << LA) - 1}")
    A(f"ds_write_b32 v29, v28 offset:{L_TB}")
    A("s_mov_b64 exec, -1")
    A("v_lshlrev_b32 v44, 1, v2")
    A("s_lshl_b32 s71, s76, 11"); A(f"s_add_u32 s71, s71, {QBUF}")
    A("s_add_u32 s14, s26, s71"); A("s_addc_u32 s15, s27, 0")
    A.label("L_qhint")
    for k in range(8): A(f"s_load_dword s{40+k}, s[14:15], {256*k} glc")
    A("s_waitcnt lgkmcnt(0)")
    for k in range(8): A(f"s_xor_b32 s{40+k}, s{40+k}, s57")
    for k in range(1, 8): A(f"s_or_b32 s40, s40, s{40+k}")
    A("s_and_b32 s40, s40, 0xffff")
    A("s_cbranch_scc0 L_qpoll")
    spin("L_qhint", qslp)
    A.label("L_qpoll")
    if qprof: A("s_memrealtime s[94:95]")
    A("buffer_load_dwordx4 v[20:23], v44, s[36:39], s71 offen sc1")
    A("buffer_load_dwordx4 v[24:27], v44, s[36:39], s71 offen offset:16 sc1")
    A("s_mov_b32 s73, 0x07060302")
    A("s_waitcnt vmcnt(0)")
    for e in range(8): A(f"v_xor_b32 v{20+e}, s{57+(e&1)}, v{20+e}")
    A("v_or3_b32 v45, v20, v21, v22"); A("v_or3_b32 v45, v45, v23, v24"); A("v_or3_b32 v45, v45, v25, v26"); A("v_or_b32 v45, v45, v27")
    A("v_and_b32 v45, 0xffff, v45")
    A("v_cmp_ne_u32 vcc, 0, v45")
    A("s_cbranch_vccz L_q_ok")
    spin("L_qpoll")
    A.label("L_q_ok")
    for k in range(4): A(f"v_perm_b32 v{6+k}, v{21+2*k}, v{20+2*k}, s73")
    A(f"ds_write_b128 v3, v[6:9] offset:{L_QF}")
    A("s_waitcnt lgkmcnt(0)")
    stamp(1)
    A("s_barrier")
    issueK(RA, 66); issueV(RA, 66)
    A("s_setprio 0")
    A.label("L_qj")
    A(f"ds_read_b128 v[6:9], v3 offset:{L_QF}")
    A(f"v_mov_b32 v52, {L_TK}"); A("v_mov_b32 v53, 4096")
    A("s_mov_b32 s69, 3")
    if trace: A("s_mov_b32 s98, 0"); A("v_mov_b32 v244, 0")
    A(f"s_mul_i32 s58, s77, {cstride}"); A(f"s_add_u32 s58, s58, {CBUF}")
    A("s_sub_u32 s57, 4, s78"); A("s_mul_i32 s57, s57, s67"); A("s_sub_u32 s57, 4096, s57"); A("s_lshl_b32 s57, s57, 12")
    if ew < 8:
        A(f"s_sub_u32 s101, s67, {ewx}"); A("s_lshl_b32 s101, s101, 12"); A("s_add_u32 s101, s101, s57")
        A(f"s_cmp_ge_u32 s3, {ew}"); A("s_cselect_b32 s101, s101, -1")
    stamp(3)
    A.label("L_loop")
    chunk(RA, True)
    A("s_cmp_lg_u32 s69, 3")
    A("s_cbranch_scc1 L_loop")
    A("s_mov_b32 s69, 0")
    A("s_cmp_eq_u32 s3, 0")
    A("s_cbranch_scc1 L_setup")
    A("s_waitcnt vmcnt(8)")
    for k in range(NX): chunk(RX + 32 * k, False)
    A.label("L_setup")
    A("v_lshrrev_b32 v46, 4, v1"); A("v_and_b32 v47, 3, v1"); A("v_bfe_u32 v45, v1, 2, 2"); A("v_and_b32 v50, 15, v1")
    A("v_and_b32 v48, 1, v46"); A("v_lshlrev_b32 v48, 1, v48"); A("v_lshrrev_b32 v49, 1, v46"); A("v_or_b32 v48, v48, v49")
    A("s_lshl_b32 s71, s3, 11"); A(f"v_lshlrev_b32 v{TC}, 5, v1"); A(f"v_add_u32 v{TC}, s71, v{TC}")
    A("s_lshl_b32 s71, s3, 3"); A(f"v_lshlrev_b32 v{TC+1}, 6, v45"); A(f"v_add_u32 v{TC+1}, s71, v{TC+1}")
    A(f"v_lshrrev_b32 v{TC+2}, 1, v{TC+1}")
    A("s_lshl_b32 s71, s3, 8"); A(f"v_lshlrev_b32 v{TC+3}, 12, v46"); A(f"v_lshl_add_u32 v{TC+3}, v50, 4, v{TC+3}"); A(f"v_add_u32 v{TC+3}, s71, v{TC+3}")
    A("s_lshr_b32 s71, s3, 1"); A("s_lshl_b32 s73, s71, 6"); A(f"v_lshlrev_b32 v{TC+4}, 4, v46"); A(f"v_add_u32 v{TC+4}, s73, v{TC+4}")
    A("s_lshl_b32 s73, s71, 5"); A(f"v_mov_b32 v{TC+5}, s73")
    A(f"v_lshl_add_u32 v{TC+6}, v50, 2, v48"); A(f"v_lshlrev_b32 v{TC+6}, 1, v{TC+6}")
    A("s_lshl_b32 s0, s76, 16"); A("s_lshl_b32 s73, s79, 11"); A("s_add_u32 s0, s0, s73")
    A("s_lshl_b32 s73, s3, 8"); A("s_add_u32 s0, s0, s73"); A(f"s_add_u32 s0, s0, {OBUF}")
    A("s_lshr_b32 s73, s3, 1"); A("s_lshl2_add_u32 s1, s76, s73"); A("s_lshl_b32 s1, s1, 5"); A("s_add_u32 s1, s1, s79")
    A(f"s_lshl_b32 s1, s1, {mlsh}"); A(f"s_add_u32 s1, s1, {MLBUF}")
    A(f"v_lshlrev_b32 v{TC+10}, 2, v1")
    A(f"v_lshlrev_b32 v{TC+27}, 3, v47"); A(f"v_lshrrev_b32 v{TC+27}, v{TC+27}, s52"); A(f"v_and_b32 v{TC+27}, 0xff, v{TC+27}")
    if opre is not None:
        A(f"buffer_load_dword v44, v{TC+10}, s[36:39], s0 offen {opre}")
        A("s_mov_b64 exec, 1")
        A(f"buffer_load_dword v45, v3, s[36:39], s1 offen {opre}")
        A("s_mov_b64 exec, -1")
        A("s_waitcnt vmcnt(0)")
    if tlbpf:
        A("s_cmp_lg_u32 s3, 0"); A("s_cbranch_scc1 L_notlb")
        A(f"v_lshlrev_b32 v44, {tlbpf}, v1")
        A(f"s_mov_b64 exec, {(1 << ((1 << (20 - tlbpf)) + 1)) - 1}")
        A("buffer_load_dword v245, v44, s[28:31], s57 offen nt")
        A("buffer_load_dword v246, v44, s[32:35], s57 offen nt")
        A("s_mov_b64 exec, -1")
        A.label("L_notlb")
    A("s_and_b32 s71, s2, 7")
    A("s_cbranch_scc1 L_loop")
    A("s_mov_b32 s69, 2")
    A("s_getreg_b32 s78, hwreg(HW_REG_XCC_ID, 0, 4)"); A("s_lshl_b32 s78, s78, 8")
    A("s_cmp_lg_u32 s3, 0"); A("s_cbranch_scc1 L_nox")
    for r in range(4): A(f"v_mov_b32 v{24+r}, -1")
    A("s_cmp_ge_u32 s77, 28"); A("s_cselect_b32 s71, 0, -1")
    for r in range(4): A(f"v_mov_b32 v{28+r}, s71")
    A("s_lshl_b32 s71, s77, 11"); A(f"s_add_u32 s71, s71, {YBUF}")
    A("buffer_store_dwordx4 v[28:31], v3, s[36:39], s71 offen sc1")
    A("buffer_store_dwordx4 v[28:31], v3, s[36:39], s71 offen offset:1024 sc1")
    A("s_lshl_b32 s71, s77, 9"); A(f"s_add_u32 s71, s71, {HBUF}")
    A("s_mov_b32 exec_hi, 0")
    A("buffer_store_dwordx4 v[24:27], v3, s[36:39], s71 offen sc1")
    A("s_mov_b32 exec_hi, -1")
    A("s_waitcnt vmcnt(0)")
    A("s_or_b32 s71, s78, s53")
    A("v_mov_b32 v20, s71"); A("v_mov_b32 v21, s54"); A("v_mov_b32 v22, s55"); A("v_mov_b32 v23, s56")

    A("s_lshl_b32 s71, s77, 4"); A(f"s_add_u32 s71, s71, {XBUF}")
    A("s_mov_b64 exec, 1")
    A("buffer_store_dwordx4 v[20:23], v3, s[36:39], s71 offen sc1")
    A("s_mov_b64 exec, -1")
    A.label("L_nox")
    srd(40, 12, 13, 4 << 20)
    A("s_lshr_b32 s68, s77, 1")
    A("s_lshl_b32 s71, s68, 18"); A("s_lshr_b32 s73, s3, 1"); A("s_lshl_b32 s73, s73, 16"); A("s_add_u32 s71, s71, s73")
    A("s_and_b32 s73, s3, 1"); A("s_lshl_b32 s73, s73, 10"); A("s_add_u32 s71, s71, s73")
    A("s_and_b32 s73, s77, 1"); A("s_lshl_b32 s73, s73, 9"); A("s_add_u32 s71, s71, s73")
    A("v_lshlrev_b32 v44, 4, v50"); A("v_lshl_add_u32 v45, v48, 13, v44"); A("v_lshl_add_u32 v44, v48, 11, v44")
    for jl in range(2):
        for half in range(2):
            for jh in range(2):
                for c2 in range(2):
                    r = WO + 8 * (4 * c2 + 2 * jh + jl) + 4 * half
                    A(f"buffer_load_dwordx4 v[{r}:{r+3}], v45, s[40:43], s71 offen offset:{2048*jh+256*c2} {wf}")
            if (jl, half) != (1, 1): A(f"s_add_u32 s71, s71, {4096 if half == 0 else 32768-4096}")
    A("v_and_b32 v51, 7, v1"); A("v_bfe_u32 v49, v1, 3, 1")
    A(f"v_lshl_add_u32 v{TC+25}, v48, 1, v49"); A(f"v_lshl_add_u32 v{TC+25}, v51, 3, v{TC+25}")
    A("s_lshl_b32 s71, s3, 6"); A(f"v_add_lshl_u32 v{TC+25}, v{TC+25}, s71, 1")
    A(f"buffer_load_ushort v{TC+13}, v{TC+25}, s[48:51], 0 offen")
    A("v_and_b32 v51, 7, v1"); A("v_and_b32 v45, 1, v46"); A("v_lshrrev_b32 v49, 5, v1")
    A(f"v_lshrrev_b32 v{TC+9}, 3, v1")
    A(f"v_lshlrev_b32 v{TC+8}, 13, v{TC+9}"); A(f"v_lshl_add_u32 v{TC+8}, v51, 4, v{TC+8}")
    A(f"v_lshl_add_u32 v{TC+9}, v{TC+9}, 2, v47"); A(f"v_lshlrev_b32 v{TC+9}, {mlsh}, v{TC+9}")
    A(f"v_lshlrev_b32 v{TC+24}, 4, v45"); A(f"v_lshl_add_u32 v{TC+24}, v50, 5, v{TC+24}")
    A(f"v_lshl_add_u32 v{TC+11}, v49, 9, v{TC+24}"); A("s_lshl_b32 s71, s3, 10"); A(f"v_add_u32 v{TC+11}, s71, v{TC+11}")
    A(f"v_lshrrev_b32 v{TC+24}, 1, v{TC+24}")
    A(f"v_lshrrev_b32 v{TC+14}, 3, v1"); A(f"v_lshlrev_b32 v{TC+14}, 10, v{TC+14}"); A(f"v_lshl_add_u32 v{TC+14}, v51, 4, v{TC+14}")
    A(f"v_lshrrev_b32 v{TC+12}, 3, v1"); A(f"v_lshlrev_b32 v{TC+12}, 10, v{TC+12}"); A(f"v_lshl_add_u32 v{TC+12}, v51, 4, v{TC+12}"); A("s_lshl_b32 s71, s3, 7"); A(f"v_add_u32 v{TC+12}, s71, v{TC+12}")
    A("s_lshl_b32 s71, s3, 4"); A(f"v_lshlrev_b32 v{TC+20}, 3, v49"); A(f"v_add_u32 v{TC+20}, s71, v{TC+20}"); A(f"v_lshlrev_b32 v{TC+21}, 4, v51")
    A("v_bfe_u32 v49, v1, 3, 1")
    A(f"v_lshlrev_b32 v{TC+23}, 11, v46"); A(f"v_lshl_add_u32 v{TC+23}, v49, 8, v{TC+23}"); A(f"v_lshl_add_u32 v{TC+23}, v51, 4, v{TC+23}")
    A("s_lshr_b32 s71, s3, 2"); A("s_lshl_b32 s71, s71, 7"); A(f"v_add_u32 v{TC+23}, s71, v{TC+23}")
    A("s_lshl_b32 s71, s3, 13"); A(f"s_add_u32 s71, s71, {L_WD}"); A(f"v_add_u32 v{TC+26}, s71, v3")
    A("s_mov_b32 m0, s71")
    A(f"v_lshrrev_b32 v{TC+22}, 1, v1"); A(f"v_lshlrev_b32 v{TC+22}, 10, v{TC+22}"); A("v_and_b32 v45, 1, v1"); A(f"v_lshl_add_u32 v{TC+22}, v45, 4, v{TC+22}")
    srd(44, 22, 23, 1024)
    A("s_cmp_ge_u32 s77, 28")
    A("s_cbranch_scc1 L_suj")
    A("s_mov_b32 s69, 1")
    A("s_lshl_b32 s71, s3, 6"); A("v_lshl_add_u32 v45, v48, 2, s71")
    A("v_mul_u32_u24 v45, 3584, v45"); A("v_lshl_add_u32 v45, v51, 4, v45"); A("s_lshl_b32 s71, s77, 7"); A("v_add_u32 v45, s71, v45")
    A("v_cmp_eq_u32 vcc, 0, v49")
    A("v_mov_b32 v20, s16"); A("v_mov_b32 v21, s18"); A("v_cndmask_b32 v20, v21, v20, vcc")
    A("v_mov_b32 v21, s17"); A("v_mov_b32 v22, s19"); A("v_cndmask_b32 v21, v22, v21, vcc")
    A("v_add_co_u32 v20, vcc, v20, v45"); A("v_addc_co_u32 v21, vcc, 0, v21, vcc")
    for j in range(4):
        for half in range(2):
            for v in range(2):
                r = WGU + 8 * (4 * v + j) + 4 * half
                A(f"global_load_dwordx4 v[{r}:{r+3}], v[20:21], off offset:{3584*v} {wf}")
            if (j, half) != (3, 1): A(f"v_add_co_u32 v20, vcc, {(2 if half == 0 else 14)*3584}, v20"); A("v_addc_co_u32 v21, vcc, 0, v21, vcc")
    srd(40, 20, 21, 1792 * 1024)
    A("s_lshl_b32 s71, s77, 16"); A("s_lshr_b32 s73, s3, 2"); A("s_lshl_b32 s73, s73, 15"); A("s_add_u32 s71, s71, s73")
    A("s_and_b32 s73, s3, 3"); A("s_lshl_b32 s73, s73, 8"); A("s_add_u32 s71, s71, s73")
    for i in range(8):
        A(f"buffer_load_dwordx4 v44, s[40:43], s71 offen {wf} lds")
        if i < 7: A(f"s_add_u32 s71, s71, {1024 if i % 2 == 0 else 7168}"); A("s_add_u32 m0, m0, 1024")
    A.label("L_suj")
    A("s_lshl_b32 s22, s77, 5"); A(f"s_add_u32 s22, s22, {YBUF}")
    A("s_add_u32 s23, s22, 32768")
    A("s_lshl_b32 s24, s3, 7"); A(f"s_add_u32 s24, s24, {HBUF}"); A("s_add_u32 s25, s24, 8192")
    A("s_lshr_b32 s16, s68, 1"); A("s_lshl_b32 s16, s16, 16"); A("s_and_b32 s71, s68, 1"); A("s_lshl_b32 s71, s71, 10"); A("s_add_u32 s16, s16, s71")
    A("s_lshl_b32 s71, s3, 7"); A("s_add_u32 s16, s16, s71"); A(f"s_add_u32 s16, s16, {OBUF}")
    A("s_add_u32 s17, s16, 4096")
    A("s_lshr_b32 s71, s3, 2"); A("s_lshl1_add_u32 s20, s68, s71"); A(f"s_lshl_b32 s20, s20, {5+mlsh}"); A(f"s_add_u32 s20, s20, {MLBUF}")
    A("s_lshl_b32 s21, s77, 9"); A("s_lshl_b32 s73, s3, 6"); A("s_add_u32 s21, s21, s73"); A(f"s_add_u32 s21, s21, {HBUF}")
    A("s_lshl_b32 s18, s77, 11"); A("s_lshl_b32 s71, s3, 8"); A("s_add_u32 s18, s18, s71"); A(f"s_add_u32 s18, s18, {YBUF}")
    A("s_lshr_b32 s68, s77, 2")
    A("s_branch L_loop")

    A.label("L_dyn")
    A("s_sub_u32 s73, s71, s70"); A("s_lshr_b32 s73, s73, 10")
    A("v_mov_b32 v48, s73")
    A.label("L_dynw")
    A(f"ds_read_b32 v49, v48 offset:{L_TB}")
    A("s_waitcnt lgkmcnt(0)")
    A("v_readfirstlane_b32 s66, v49")
    A("s_cmp_lg_u32 s66, -1")
    A("s_cbranch_scc1 L_dyng")
    spin("L_dynw")
    A.label("L_dyng")
    if t1:
        A("s_cmp_eq_u32 s66, 2")
        A("s_cbranch_scc1 L_self")
    if skipoob:
        A("s_cmp_ge_u32 s66, s30")
        A("s_cbranch_scc1 L_gox")
    A("s_bitcmp1_b32 s66, 0")
    A("s_cbranch_scc0 L_go")
    A("s_and_b32 s66, s66, -2")
    A("s_max_u32 s71, s66, s57"); A("s_sub_u32 s71, s71, s57"); A("s_lshr_b32 s71, s71, 12"); A("s_sub_u32 s71, s67, s71")
    if tT:
        if tS:
            A(f"s_mul_i32 s14, s73, {sm}"); A("s_lshr_b32 s14, s14, 2"); A("s_add_u32 s14, s14, s71")
            A("s_cmp_lt_u32 s14, s67"); A(f"s_cselect_b32 s15, {tS}, 0")
            A("s_and_b32 s14, s2, 7"); A("s_cmp_eq_u32 s14, 2"); A("s_cselect_b32 s15, 0, s15")
            A("s_cmp_lg_u32 s14, 0"); A(f"s_cselect_b32 s14, s15, {tT}")
        else:
            A("s_and_b32 s14, s2, 7"); A(f"s_cselect_b32 s14, 0, {tT}")
        A("s_cmp_gt_u32 s71, s14")
        A("s_cbranch_scc1 L_dynt")
        A("v_lshl_add_u32 v48, v1, 2, v48")
        A("v_mov_b32 v51, s30")
        A(f"ds_write_b32 v48, v51 offset:{L_TB+4*LA}")
        A("s_branch L_go")
        A.label("L_dynt")
    A(f"s_cmp_gt_u32 s71, {t4}"); A("s_cselect_b32 s15, 4, 2")
    A(f"s_cmp_gt_u32 s71, {t8}"); A(f"s_cselect_b32 s15, {b0}, s15")
    A("s_mov_b32 s14, s15")
    A("s_atomic_add s14, s[26:27], s58 glc")
    A("v_lshl_add_u32 v48, v1, 2, v48")
    A(f"s_sub_u32 s73, s15, {LA}")
    A("s_waitcnt lgkmcnt(0)")
    A("v_add_u32 v49, s14, v1")
    A("v_lshlrev_b32 v50, 12, v49"); A("v_add_u32 v50, s57, v50")
    A("s_add_u32 s14, s14, s15")
    A("s_cmp_ge_u32 s14, s67")
    A("s_cbranch_scc1 L_dynx")
    if t1:
        A(f"s_add_u32 s14, s14, {t1}")
        A("s_cmp_ge_u32 s14, s67")
        A("s_cbranch_scc1 L_dyns")
    A("v_cmp_eq_u32 vcc, s73, v1"); A("v_addc_co_u32 v50, vcc, 0, v50, vcc")
    A("v_cmp_gt_u32 vcc, s15, v1")
    A("s_mov_b64 exec, vcc")
    A(f"ds_write_b32 v48, v50 offset:{L_TB+4*LA}")
    A("s_mov_b64 exec, -1")
    A("s_branch L_go")
    A.label("L_dynx")
    A("v_mov_b32 v51, s30")
    A("v_cmp_gt_u32 vcc, s67, v49")
    A("v_cndmask_b32 v50, v51, v50, vcc")
    A(f"ds_write_b32 v48, v50 offset:{L_TB+4*LA}")
    A("s_branch L_go")
    if t1:
        A.label("L_dyns")
        A("v_cmp_gt_u32 vcc, s15, v1")
        A("v_cndmask_b32 v50, 2, v50, vcc")
        A(f"ds_write_b32 v48, v50 offset:{L_TB+4*LA}")
        A("s_branch L_go")
        A.label("L_self")
        A("s_mov_b32 s14, 1")
        A("s_atomic_add s14, s[26:27], s58 glc")
        A("v_lshl_add_u32 v48, v1, 2, v48")
        A("v_mov_b32 v51, s30")
        A("s_waitcnt lgkmcnt(0)")
        A("s_lshl_b32 s66, s14, 12"); A("s_add_u32 s66, s66, s57")
        A("s_cmp_lt_u32 s14, s67")
        A("s_cbranch_scc1 L_go")
        A("s_mov_b32 s66, s30")
        A(f"ds_write_b32 v48, v51 offset:{L_TB+4}")
        A("s_branch L_go")

    def lred():
        quad_all(19, "v_add_f32")
        A(f"ds_write_b32 v{TC+2}, v18 offset:{L_MX}")
        rows_all(19, 49, "v_add_f32")
        A(f"ds_write_b64 v{TC+1}, v[18:19] offset:{L_ML}")
    A.label("L_done")
    A("s_cmp_eq_u32 s69, 3")
    A("s_cbranch_scc1 L_end")
    lred()
    if skipoob:
        A("s_branch L_done2")
        A.label("L_first")
        A("s_waitcnt vmcnt(0)")
        A("s_branch L_pv")
        A.label("L_last")
        A("s_cmp_eq_u32 s69, 3")
        A("s_cbranch_scc1 L_first")
        lred()
        A("s_waitcnt vmcnt(0)")
        if trace: tr()
        VB = RA + 16
        for j in range(4):
            A(f"v_mfma_f32_16x16x16_bf16 v[10:13], v[{36+2*j}:{37+2*j}], v[{VB+4*j}:{VB+4*j+1}], v[10:13]")
            A(f"v_mfma_f32_16x16x16_bf16 v[14:17], v[{36+2*j}:{37+2*j}], v[{VB+4*j+2}:{VB+4*j+3}], v[14:17]")
        A.label("L_done2")
    stamp(4)
    if trace:
        A("s_lshl_b32 s71, s2, 3"); A("s_add_u32 s71, s71, s3"); A("s_lshl_b32 s71, s71, 8"); A("s_add_u32 s71, s71, 0x200000")
        A("v_lshlrev_b32 v48, 2, v1"); A("v_add_u32 v48, s71, v48")
        A("global_store_dword v48, v244, s[26:27]")
    if cut == 1: A("s_branch L_end")
    A("s_mov_b32 s73, 0xffffff00")
    A("v_mov_b32 v47, s53"); A("v_mov_b32 v48, s54"); A("v_mov_b32 v39, s56")
    A(f"ds_write_b128 v{TC}, v[10:13] offset:{L_OM}")
    A(f"ds_write_b128 v{TC}, v[14:17] offset:{L_OM+16}")
    A("s_cmp_eq_u32 s69, 1")
    A("s_cbranch_scc1 L_cs")
    A.label("L_csr")
    A("s_waitcnt lgkmcnt(0)")
    A("s_barrier")
    stamp(5)
    A(f"ds_read_b128 v[20:23], v{TC+5} offset:{L_MX}")
    A(f"ds_read_b128 v[24:27], v{TC+5} offset:{L_MX+16}")
    A(f"ds_read_b128 v[28:31], v{TC+4} offset:{L_ML}")
    A(f"ds_read_b128 v[10:13], v{TC+3} offset:{L_OM}")
    A(f"ds_read_b128 v[14:17], v{TC+3} offset:{L_OM+2048}")
    A("s_waitcnt lgkmcnt(3)")
    A("v_max3_f32 v36, v20, v21, v22"); A("v_max3_f32 v37, v23, v24, v25"); A("v_max3_f32 v36, v36, v26, v27"); A("v_max_f32 v36, v36, v37")
    A("s_waitcnt lgkmcnt(2)")
    A("v_sub_f32 v28, v28, v36"); A("v_sub_f32 v30, v30, v36")
    A("v_exp_f32 v28, v28"); A("v_exp_f32 v30, v30")
    A("v_lshl_or_b32 v38, v36, 24, s55")
    A("v_mul_f32 v37, v28, v29")
    A("v_fmac_f32 v37, v30, v31")
    A("s_waitcnt lgkmcnt(0)")
    A("v_mov_b32 v49, v37")
    for r in range(4): A(f"v_mul_f32 v{10+r}, v{10+r}, v28")
    A("v_permlane32_swap_b32 v37, v49")
    for r in range(2): A(f"v_fmac_f32 v{10+r}, v{14+r}, v30")
    A("v_add_f32 v37, v37, v49")
    for r in range(2, 4): A(f"v_fmac_f32 v{10+r}, v{14+r}, v30")
    A("v_mov_b32 v49, v37")
    A("v_permlane32_swap_b32 v10, v11")
    A("v_permlane32_swap_b32 v12, v13")
    A("v_add_f32 v10, v10, v11")
    A("v_add_f32 v12, v12, v13")
    A("v_permlane16_swap_b32 v37, v49")
    A("v_add_f32 v37, v37, v49")
    A("v_permlane16_swap_b32 v10, v12")
    A("v_add_f32 v10, v10, v12")
    A(f"v_and_or_b32 v10, v10, s73, v{TC+27}")
    A(f"buffer_store_dword v10, v{TC+10}, s[36:39], s0 offen {osf}")
    A("s_bitcmp1_b32 s3, 0")
    A("s_cbranch_scc1 L_mj")
    A("v_and_or_b32 v37, v37, s73, v48"); A("v_and_or_b32 v36, v36, s73, v47")
    A("s_mov_b64 exec, 1")
    A(f"buffer_store_dwordx4 v[36:39], v3, s[36:39], s1 offen {osf}")
    A("s_mov_b64 exec, -1")
    A.label("L_mj")
    stamp(6)
    A("s_cmp_eq_u32 s69, 0")
    A("s_cbranch_scc1 L_end")
    A("v_and_b32 v54, 0x1f0, v3")
    A(f"buffer_load_dwordx4 v[40:43], v54, s[36:39], 0 offen offset:{XBUF} sc1")
    if codepf:
        A("s_getpc_b64 s[12:13]")
        A.label("L_pcref")
        A("s_lshl_b32 s71, s3, 9"); A("s_add_u32 s12, s12, s71"); A("s_addc_u32 s13, s13, 0")
        A(f"v_lshlrev_b32 v48, 3, v1")
        A("global_load_dwordx2 v[44:45], v48, s[12:13]")
    if outpf:
        A("buffer_load_dword v44, v3, s[44:47], 0 offen")
    if pretouch:
        A("s_lshl_b32 s71, s3, 5"); A("s_add_u32 s71, s71, s77")
        A("s_cmp_ge_u32 s71, 80")
        A("s_cbranch_scc1 L_nopt")
        A("s_lshl_b32 s71, s71, 10"); A(f"s_add_u32 s71, s71, {HBUF}")
        A("buffer_load_dwordx4 v[44:47], v3, s[36:39], s71 offen sc1")
        A.label("L_nopt")
    A("s_mov_b32 s60, 0xfffefffe")
    OB = RA
    for k in range(4): A(f"ds_read_b128 v[{20+4*k}:{23+4*k}], v{TC+23} offset:{L_RED2+512*k}")
    A("s_waitcnt lgkmcnt(0)")
    sum4x4()
    A("v_mov_b32 v51, v20")
    A("s_waitcnt vmcnt(0)")
    A.label("L_xchk")
    for k in range(4): A(f"v_xor_b32 v{40+k}, s{53+k}, v{40+k}")
    A("v_or3_b32 v55, v41, v42, v43")
    A("v_and_b32 v53, 0xff, v40"); A("v_or_b32 v55, v55, v53")
    A("v_cmp_ne_u32 vcc, 0, v55")
    A("s_cbranch_vccz L_xok")
    A(f"buffer_load_dwordx4 v[40:43], v54, s[36:39], 0 offen offset:{XBUF} sc1")
    A("s_waitcnt vmcnt(0)")
    spin("L_xchk")
    A.label("L_xok")
    A("v_cmp_ne_u32 vcc, s78, v40")
    A("s_mov_b32 s64, 0")
    if local:
        A("s_cbranch_vccnz L_xg")
        A("s_mov_b32 s64, 1")
        A.label("L_xg")
    A(f"v_lshlrev_b32 v{TC+13}, 16, v{TC+13}")
    for i in range(8):
        r = WDR[i >> 1] + 4 * (i & 1)
        A(f"ds_read_b128 v[{r}:{r+3}], v{TC+26} offset:{1024*i}")
    for F in FS:
        for r in range(4): A(f"v_mov_b32 v{F+r}, 0")
    for r in range(10, 18): A(f"v_mov_b32 v{r}, 0")
    A("v_and_b32 v4, 3, v1"); A("v_mul_u32_u24 v4, 0x5555, v4")
    OG = [(OB + 4 * j, TC + 8, 16 + (j >> 1), 2048 * (j & 1)) for j in range(4)]
    A.label("L_h1pre")
    A(f"buffer_load_dword v23, v{TC+9}, s[36:39], s20 offen offset:12 sc1")
    A("s_waitcnt vmcnt(0)")
    A("v_cmp_eq_u32 vcc, s56, v23")
    A("s_bcnt1_i32_b64 s71, vcc")
    A(f"s_cmp_ge_u32 s71, {2*thr1}")
    A("s_cbranch_scc1 L_h1go")
    spin("L_h1pre", slp1)
    A.label("L_h1go")
    gather("L_h1", [[(20, TC + 9, 20, 0)]] + [[g] for g in OG])
    stamp(7)
    A("v_or_b32_sdwa v20, v20, v22 dst_sel:DWORD dst_unused:UNUSED_PAD src0_sel:DWORD src1_sel:BYTE_3")
    dpp("v_max_f32", 22, 20, 20, "quad_perm:[1,0,3,2]")
    for ctl in ("quad_perm:[2,3,0,1]", "row_ror:8"): dpp("v_max_f32", 22, 22, 22, ctl)
    rows_all(22, 23, "v_max_f32")
    A("v_sub_f32 v20, v20, v22")
    A("v_exp_f32 v20, v20")
    A("v_mul_f32 v21, v20, v21")
    fm = []
    for j in range(4):
        for r in range(4):
            op = "v_mul_f32" if j == 0 else "v_fmac_f32"
            fm.append(f"{op}_dpp v{24+r}, v20, v{OB+4*j+r} quad_perm:[{j},{j},{j},{j}] {DPPF}")
    lr = [f"v_add_f32_dpp v21, v21, v21 {c} {DPPF}" for c in ("quad_perm:[1,0,3,2]", "quad_perm:[2,3,0,1]", "row_ror:8")]
    lr += ["v_mov_b32 v22, v21", "v_permlane32_swap_b32 v21, v22", "v_add_f32 v21, v21, v22\nv_mov_b32 v22, v21"]
    for k in range(len(fm)):
        A(fm[k])
        if k % 2 == 1 and k >= 1 and lr: A(lr.pop(0))
    assert not lr
    A("v_permlane16_swap_b32 v21, v22")
    A("v_add_f32 v21, v21, v22")
    A("v_permlane32_swap_b32 v24, v25")
    A("v_permlane32_swap_b32 v26, v27")
    A("v_add_f32 v24, v24, v25")
    A("v_add_f32 v26, v26, v27")
    A("v_rcp_f32 v21, v21")
    A("v_permlane16_swap_b32 v24, v26")
    A("v_add_f32 v24, v24, v26")
    dpp("v_add_f32", 24, 24, 24, "row_ror:8")
    A("v_mul_f32 v20, v24, v21")
    rbf(20, 20)
    def frag(j, src):
        F = FS[j % 3]
        for r in range(4):
            A(f"v_mov_b32_dpp v{F+r}, v{src} row_newbcast:{2*j+(r>>1)} row_mask:0xf bank_mask:{'0x5' if r % 2 == 0 else '0xa'}")
        return F
    def frag2(j):
        F = FS[j % 3]
        for r in range(4):
            q = 2 * j + (r >> 1); second = r & 1
            src, p = (20, q & 3) if (q >> 2) == second else (21, 3 - (q & 3))
            A(f"v_mov_b32_dpp v{F+r}, v{src} quad_perm:[{p},{p},{p},{p}] row_mask:0xf bank_mask:{'0xa' if second else '0x5'}")
        return F
    def gemv16(W, red, pair=True):
        fr = frag2 if pair else (lambda i: frag(i, 20))
        if pair: A(f"v_mov_b32_dpp v21, v20 row_half_mirror {DPPF}")
        Fs = {0: fr(0)}
        for j in range(4):
            if j < 3: Fs[j + 1] = fr(j + 1)
            for v in range(2):
                acc = 10 + 4 * v; b = W + 8 * (4 * v + j)
                A(f"v_smfmac_f32_16x16x64_bf16 v[{acc}:{acc+3}], v[{Fs[j]}:{Fs[j]+3}], v[{b}:{b+7}], v4")
        A("s_mov_b32 exec_hi, 0")
        A(f"ds_write_b128 v{TC+11}, v[10:13] offset:{red}")
        A("s_mov_b32 exec_lo, 0"); A("s_mov_b32 exec_hi, -1")
        A(f"ds_write_b128 v{TC+11}, v[14:17] offset:{red}")
        A("s_mov_b64 exec, -1")
        A("s_waitcnt lgkmcnt(0)")
        A("s_barrier")
    gemv16(WO, L_RED, pair=False)
    A(f"ds_read_b128 v[20:23], v{TC+12} offset:{L_RED}")
    A("s_cmp_eq_u32 s64, 1")
    A("s_waitcnt lgkmcnt(0)")
    rr4(20, 21, 22, 23)
    dpp("v_add_f32", 20, 20, 20, "row_ror:8")
    A("s_mov_b32 exec_lo, 0x00ff00ff"); A("s_mov_b32 exec_hi, 0x00ff00ff")
    rbf(36, 20)
    A("v_min_u32 v36, s60, v36")
    lstore("L_hs", f"buffer_store_short_d16_hi v36, v{TC+6}, s[36:39], s21 offen")
    A("s_mov_b64 exec, -1")
    stamp(8)
    if hw == -1: A("s_waitcnt vmcnt(0)")
    elif hw == -2: A("s_barrier")
    elif hw: A(f"s_sleep {hw}")
    A.label("L_h2")
    A("s_cmp_lg_u32 s69, 2")
    A("s_cbranch_scc1 L_h2f")
    A("s_cmp_lg_u32 s3, 7")
    A("s_cbranch_scc1 L_end")
    A.label("L_h2f")
    for r in list(range(10, 18)) + list(range(56, 60)): A(f"v_mov_b32 v{r}, 0")
    for r in range(4): A(f"v_mov_b32 v{68+r}, 0")
    A("v_mov_b32 v52, 1.0")
    for r in range(4): A(f"v_mov_b32_dpp v{68+r}, v52 quad_perm:[0,0,0,0] row_mask:0xf bank_mask:{'0x5' if r % 2 == 0 else '0xa'}")
    gathers("L_h2", TC + 14, 24)
    stamp(2)
    for r in range(4): A(f"v_add_f32_dpp v20, v{28+r}, v{28+r} row_ror:8 row_mask:{'0x3' if r < 2 else '0xc'} bank_mask:{'0xc' if r & 1 else '0x3'}")
    A(f"v_add_f32 v20, v20, v{TC+13}")
    rbf(20, 20)
    A("s_cmp_eq_u32 s69, 2")
    A("v_mov_b32 v50, v20")
    A("s_cbranch_scc1 L_fin0")
    A("v_readfirstlane_b32 s71, v20")
    A(f"v_mov_b32_dpp v21, v20 row_half_mirror {DPPF}")
    st = ["v_subrev_f32 v25, s71, v20\nv_mov_b32 v24, s71\nv_mul_f32 v26, v25, v25", "v_permlane32_swap_b32 v25, v26\nv_add_f32 v25, v25, v26"]
    st += [f"v_add_f32_dpp v25, v25, v25 {c} {DPPF}" for c in ("quad_perm:[1,0,3,2]", "quad_perm:[2,3,0,1]", "row_ror:8")]
    st += [f"v_add_f32_dpp v25, v25, v25 row_ror:4 {DPPF}\nv_mov_b32 v26, v25", "v_permlane16_swap_b32 v25, v26\nv_add_f32 v25, v25, v26"]
    A(st.pop(0))
    Fs = {0: frag2(0)}
    A(st.pop(0))
    for j in range(4):
        if j < 3: Fs[j + 1] = frag2(j + 1); A(st.pop(0))
        for v in range(2):
            acc = 10 + 4 * v; b = WGU + 8 * (4 * v + j)
            A(f"v_smfmac_f32_16x16x64_bf16 v[{acc}:{acc+3}], v[{Fs[j]}:{Fs[j]+3}], v[{b}:{b+7}], v4")
        if j >= 2: A(st.pop(0))
    assert not st
    A("s_mov_b32 exec_lo, 1"); A("s_mov_b32 exec_hi, 1")
    A(f"ds_write_b64 v{TC+20}, v[24:25] offset:{L_ST}")
    A("s_mov_b32 exec_lo, -1"); A("s_mov_b32 exec_hi, 0")
    A(f"ds_write_b128 v{TC+11}, v[10:13] offset:{L_RED2}")
    A("s_mov_b32 exec_lo, 0"); A("s_mov_b32 exec_hi, -1")
    A(f"ds_write_b128 v{TC+11}, v[14:17] offset:{L_RED2}")
    A("s_mov_b64 exec, -1")
    A("s_waitcnt lgkmcnt(0)")
    A("s_barrier")
    stamp(3)
    A(f"ds_read_b128 v[60:63], v{TC+21} offset:{L_ST}")
    for k in range(4): A(f"ds_read_b128 v[{20+4*k}:{23+4*k}], v{TC+23} offset:{L_RED2+512*k}")
    A("s_waitcnt lgkmcnt(4)")
    A("v_readfirstlane_b32 s71, v60")
    A("v_subrev_f32 v60, s71, v60")
    A("v_fmamk_f32 v64, v60, 0x42800000, v61")
    A("v_add_f32 v61, v61, v64")
    A("v_fma_f32 v62, v60, v61, v63")
    A("s_waitcnt lgkmcnt(0)")
    c3 = ("quad_perm:[1,0,3,2]", "quad_perm:[2,3,0,1]", "row_half_mirror")
    pk = ["v_pk_add_f32 v[20:21], v[20:21], v[24:25]", "v_pk_add_f32 v[22:23], v[22:23], v[26:27]", "v_pk_add_f32 v[28:29], v[28:29], v[32:33]",
          "v_pk_add_f32 v[30:31], v[30:31], v[34:35]", "v_pk_add_f32 v[20:21], v[20:21], v[28:29]", "v_pk_add_f32 v[22:23], v[22:23], v[30:31]"]
    for k in range(3):
        A(pk[2 * k]); dpp("v_add_f32", 64, 64, 64, c3[k]); A(pk[2 * k + 1]); dpp("v_add_f32", 62, 62, 62, c3[k])
    A("v_mul_f32 v64, 0x3b000000, v64")
    A("v_permlane32_swap_b32 v20, v21")
    A("v_permlane32_swap_b32 v22, v23")
    A("v_mul_f32 v62, 0x3b000000, v62")
    A("v_add_f32 v20, v20, v21")
    A("v_add_f32 v22, v22, v23")
    A("v_fma_f32 v62, -v64, v64, v62")
    A("v_max_f32 v62, 0, v62")
    A("v_permlane16_swap_b32 v20, v22")
    A("v_add_f32 v62, 0x3727c5ac, v62")
    A("v_add_f32 v64, s71, v64")
    A("v_rsq_f32 v62, v62")
    A("v_add_f32 v20, v20, v22")
    A("v_fma_f32 v20, -v64, v51, v20")
    A("v_mul_f32 v20, v20, v62")
    dpp("v_mul_f32", 21, 20, 20, "row_ror:8")
    rbf(21, 21)
    Fs = {0: frag(0, 21)}
    for j in range(4):
        if j < 3: Fs[j + 1] = frag(j + 1, 21)
        A(f"v_smfmac_f32_16x16x64_bf16 v[56:59], v[{Fs[j]}:{Fs[j]+3}], v[{WDR[j]}:{WDR[j]+7}], v4")
    A("s_mov_b32 exec_hi, 0")
    A("s_cmp_eq_u32 s64, 1")
    A("v_cvt_pk_bf16_f32 v56, v56, v57"); A("v_cvt_pk_bf16_f32 v57, v58, v59")
    A("v_pk_min_u16 v56, s60, v56"); A("v_pk_min_u16 v57, s60, v57")
    lstore("L_ys", f"buffer_store_dwordx2 v[56:57], v{TC+24}, s[36:39], s18 offen")
    stamp(9)
    A("s_cmp_lg_u32 s3, s68")
    A("s_cbranch_scc1 L_end")
    A("s_mov_b64 exec, -1")
    if yw == -1: A("s_waitcnt vmcnt(0)")
    elif yw: A(f"s_sleep {yw}")
    A("s_branch L_fin")
    A.label("L_fin0")
    A("s_cmp_lg_u32 s77, 28"); A("s_cbranch_scc1 L_fin")
    A("s_mov_b64 exec, 1")
    A("v_mov_b32 v36, s52")
    A("buffer_store_dword v36, v3, s[36:39], 0 offen sc1")
    A("s_mov_b64 exec, -1")
    A.label("L_fin")
    A("s_and_b32 s71, s77, 3"); A("s_lshl_b32 s71, s71, 1"); A("s_lshl_b32 s71, 0x03030303, s71")
    gathers("L_h3", TC + 22, 22)
    stamp(5)
    for r in range(4): A(f"v_add_f32_dpp v{20+(r&1)}, v{28+r}, v{28+r} quad_perm:[2,3,0,1] row_mask:{'0x3' if r < 2 else '0xc'} bank_mask:0xf")
    dpp("v_add_f32", 20, 20, 20, "row_ror:4"); dpp("v_add_f32", 21, 21, 21, "row_ror:4")
    A("v_add_f32_dpp v22, v20, v20 row_ror:8 row_mask:0xf bank_mask:0x3")
    A("v_add_f32_dpp v22, v21, v21 row_ror:8 row_mask:0xf bank_mask:0xc")
    A("v_add_f32 v20, v22, v50")
    rbf(20, 20)
    if diag:
        A("s_waitcnt lgkmcnt(0)")
        A("s_sub_u32 s84, s86, s84"); A(f"s_mul_i32 s84, s84, {diag[2]}"); A("s_add_u32 s84, s84, 6000"); A("s_min_u32 s84, s84, 100000")
        A.label("L_dg1")
        A("s_memrealtime s[82:83]"); A("s_waitcnt lgkmcnt(0)")
        A("s_sub_u32 s82, s82, s80"); A("s_cmp_lt_u32 s82, s84"); A("s_cbranch_scc1 L_dg1")
    A("s_mov_b32 exec_lo, s71"); A("s_mov_b32 exec_hi, s71")
    A(f"buffer_store_short_d16_hi v20, v{TC+25}, s[44:47], 0 offen")
    A("s_branch L_end")
    A.label("L_cs")
    A("v_and_b32 v4, 3, v1"); A("v_mul_u32_u24 v4, 0x5555, v4")
    for r in range(20, 32): A(f"v_mov_b32 v{r}, 0")
    A("v_mov_b32 v32, 1.0")
    A("s_waitcnt vmcnt(0)")
    for r in range(4): A(f"v_mov_b32_dpp v{28+r}, v32 quad_perm:[0,0,0,0] row_mask:0xf bank_mask:{'0x5' if r % 2 == 0 else '0xa'}")
    for j in range(4):
        for v in range(2):
            b = WGU + 8 * (4 * v + j)
            A(f"v_smfmac_f32_16x16x64_bf16 v[{20+4*v}:{23+4*v}], v[28:31], v[{b}:{b+7}], v4")
    A("s_mov_b32 exec_hi, 0")
    A(f"ds_write_b128 v{TC+11}, v[20:23] offset:{L_RED2}")
    A("s_mov_b32 exec_lo, 0"); A("s_mov_b32 exec_hi, -1")
    A(f"ds_write_b128 v{TC+11}, v[24:27] offset:{L_RED2}")
    A("s_mov_b64 exec, -1")
    A("s_branch L_csr")
    for (lab, back) in post:
        A.label(lab); spin(back)
    for (name, text) in post2:
        A.label(f"{name}_g"); A(text + " sc1"); A(f"s_branch {name}_j")
    A.label("L_end")
    if prof:
        A("s_waitcnt vmcnt(0)")
        stamp(10)
        A("s_mov_b64 exec, -1")
        A("s_waitcnt lgkmcnt(0)")
        for i in range(11): A(f"v_writelane_b32 v20, s{80+2*i}, {i}")
        A("v_writelane_b32 v20, s64, 11")
        A("s_getreg_b32 s71, hwreg(HW_REG_XCC_ID)"); A("v_writelane_b32 v20, s71, 12")
        A("s_lshl_b32 s71, s2, 3"); A("s_add_u32 s71, s71, s3"); A("s_lshl_b32 s71, s71, 6"); A(f"s_add_u32 s71, s71, {PROF}")
        A("v_lshlrev_b32 v21, 2, v1")
        A("s_mov_b64 exec, 0xffff")
        A("buffer_store_dword v20, v21, s[36:39], s71 offen")
    A.label("L_exit")
    A("s_endpgm")
    body = A.finish()
    nv = max(A.maxv + 1, 136)
    txt = HEADER + f"; @launch grid=(256,1,1) block=(512,1,1) lds={L_END}\n"
    txt += f'.amdgcn_target "amdgcn-amd-amdhsa--gfx950"\n.text\n.globl {KNAME}\n.p2align 8\n.type {KNAME},@function\n{KNAME}:\n'
    txt += body
    txt += ".fill 256, 4, 0xbf800000\n"
    txt += f'.section .rodata,"a"\n.p2align 6\n.amdhsa_kernel {KNAME}\n  .amdhsa_next_free_vgpr {nv}\n  .amdhsa_next_free_sgpr 102\n'
    txt += f"  .amdhsa_accum_offset {(nv+3)//4*4}\n  .amdhsa_group_segment_fixed_size 0\n  .amdhsa_kernarg_size 96\n  .amdhsa_user_sgpr_count 2\n"
    txt += "  .amdhsa_user_sgpr_kernarg_segment_ptr 1\n  .amdhsa_system_sgpr_workgroup_id_x 1\n  .amdhsa_float_denorm_mode_32 3\n.end_amdhsa_kernel\n"
    return txt

if __name__ == "__main__":
    import argparse
    p = argparse.ArgumentParser(); p.add_argument("-o"); p.add_argument("kv", nargs="*")
    a = p.parse_args()
    kw = {k: eval(v) for k, v in (x.split("=") for x in a.kv)}
    open(a.o, "w").write(gen(**kw))
```

```python
import sys, struct
sys.path.insert(0, "gen")
from asmlib import Asm

KNAME = "sequential_preLN__gqa_block_cached__glu_gated_bilinear__decode_kernel"
HEADER = open("sequential_preLN__gqa_block_cached__glu_gated_bilinear__decode.s.ref").read().split("; Override launch")[0]

XBUF, QBUF, OBUF, HBUF, YBUF, CBUF, MLBUF, WS_END = 0x800, 0x1000, 0x10000, 0xAC000, 0xB0000, 0xD0000, 0x140000, 0x180000
PROF = 0x100000
L_OM, L_ML, L_MX, L_QF, L_TK, L_ST, L_RED, L_RED2, L_HL, L_TB, L_WD, L_S, L_END = 0, 0x4000, 0x4100, 0x4600, 0x4A00, 0x4B00, 0x5000, 0x7000, 0x4C00, 0x9000, 0x9800, 0x19800, 0x21800
DPPF = "row_mask:0xf bank_mask:0xf"
SPIN = 1 << 20
L_MX2 = 0x4200

def gen(NX=4, prof=False, S0=104, offT=48, offF=24, offQ=12, thr1=8, slp1=4, qslp=4, LA=2, t8=128, t4=48, t1=0, b0=8,
        cstride=256, kf='nt', vf='nt', wf='', mlsh=4, cut=0, local=True, pretouch=True, tT=64, diag=0, codepf=True, outpf=True, h2pre=False, opre=None, osf='sc1', ew=8, ewx=0, PS=0, pgap=0, flat2=True, flat3=True, skipoob=True, hw=-2, yw=0, stx=True, noround=0, trace=False, tlbpf=0, tS=0, sm=8, XT=0, W=0, qprof=False, qhold=True, X2=2, NXT=1, wpf=False, wf2=None, wsplit=False):
    A = Asm()
    RA, RX = 56, 88
    WO, WGU = 88, 152
    WDR = [72, 80, 244, 40]
    FS = [232, 6, 252]
    TC = 216
    OOB = 0x1000000
    D0 = (4096 - 32 * S0 + 8 * offQ + 4 * offT) // 4
    assert offF % 4 == 0
    D1 = D0 - offF // 4
    assert LA + D0 + 64 + 64 <= 512
    seen = {}
    def stamp(i):
        if prof: A(f"s_memrealtime s[{80+2*i}:{81+2*i}]")
        seen[i] = seen.get(i, 0) + 1
        if diag:
            if (i, seen[i]) == (0, 1): A("s_memrealtime s[80:81]")
            if diag[0] == (i, seen[i]): A("s_memrealtime s[84:85]")
            if diag[1] == (i, seen[i]): A("s_memrealtime s[86:87]")
    def rr4(a, b, c, d):
        A(f"v_permlane32_swap_b32 v{a}, v{b}")
        A(f"v_permlane32_swap_b32 v{c}, v{d}")
        A(f"v_add_f32 v{a}, v{a}, v{b}")
        A(f"v_add_f32 v{c}, v{c}, v{d}")
        A(f"v_permlane16_swap_b32 v{a}, v{c}")
        A(f"v_add_f32 v{a}, v{a}, v{c}")
    def rows_all(x, t, op):
        A(f"v_mov_b32 v{t}, v{x}")
        A(f"v_permlane32_swap_b32 v{x}, v{t}")
        A(f"{op} v{x}, v{x}, v{t}")
        A(f"v_mov_b32 v{t}, v{x}")
        A(f"v_permlane16_swap_b32 v{x}, v{t}")
        A(f"{op} v{x}, v{x}, v{t}")
    def dpp(op, d, s, o, ctl): A(f"{op}_dpp v{d}, v{s}, v{o} {ctl} {DPPF}")
    def quad_all(x, op):
        dpp(op, x, x, x, "quad_perm:[1,0,3,2]"); dpp(op, x, x, x, "quad_perm:[2,3,0,1]")
    def wave_all(x, t, op):
        quad_all(x, op); dpp(op, x, x, x, "row_ror:8"); dpp(op, x, x, x, "row_ror:4"); rows_all(x, t, op)
    def rbf(d, s): A(f"v_cvt_pk_bf16_f32 v{d}, 0, v{s}")
    def ln_fin(mean, var):
        rbf(var, var)
        rbf(mean, mean)
        A(f"v_add_f32 v{var}, 0x37280000, v{var}")
        rbf(var, var)
        A(f"v_sqrt_f32 v{var}, v{var}")
        rbf(var, var)
        A(f"v_rcp_f32 v{var}, v{var}")
    def ln_stats(vals, mean, rinv, t):
        A(f"v_add_f32 v{mean}, v{vals[0]}, v{vals[1]}")
        A(f"v_add_f32 v{t}, v{vals[2]}, v{vals[3]}")
        A(f"v_add_f32 v{rinv}, v{vals[4]}, v{vals[5]}")
        A(f"v_add_f32 v{mean}, v{mean}, v{t}")
        A(f"v_add_f32 v{t}, v{vals[6]}, v{vals[7]}")
        A(f"v_add_f32 v{rinv}, v{rinv}, v{t}")
        A(f"v_add_f32 v{mean}, v{mean}, v{rinv}")
        wave_all(mean, t, "v_add_f32")
        A(f"v_mul_f32 v{mean}, 0x3b000000, v{mean}")
        for v in vals: A(f"v_sub_f32 v{v}, v{v}, v{mean}")
        A(f"v_mul_f32 v{rinv}, v{vals[0]}, v{vals[0]}")
        A(f"v_mul_f32 v{t}, v{vals[1]}, v{vals[1]}")
        for k in range(2, 8, 2):
            A(f"v_fmac_f32 v{rinv}, v{vals[k]}, v{vals[k]}")
            A(f"v_fmac_f32 v{t}, v{vals[k+1]}, v{vals[k+1]}")
        A(f"v_add_f32 v{rinv}, v{rinv}, v{t}")
        wave_all(rinv, t, "v_add_f32")
        A(f"v_mul_f32 v{rinv}, 0x3b000000, v{rinv}")
        ln_fin(mean, rinv)
    def srd(d, lo, hi, n):
        A(f"s_mov_b32 s{d}, s{lo}"); A(f"s_mov_b32 s{d+1}, s{hi}"); A(f"s_mov_b32 s{d+2}, {hex(n)}"); A(f"s_mov_b32 s{d+3}, 0x20000")
    def spin(label, slp=0):
        A("s_sub_u32 s72, s72, 1")
        A("s_cbranch_scc1 L_end")
        if slp: A(f"s_sleep {slp}")
        A(f"s_branch {label}")
    MREG = [4, 6, 8, 10, 28, 30, 32, 34, 40]
    def gather(name, groups, init_masks=None, check_first=False):
        ng = len(groups)
        for j in range(ng):
            m = -1 if init_masks is None else init_masks[j]; M = MREG[j]
            if m == -1: A(f"s_mov_b64 s[{M}:{M+1}], -1")
            else: A(f"s_mov_b32 s{M}, {hex(m & 0xffffffff)}"); A(f"s_mov_b32 s{M+1}, {hex(m >> 32)}")
        if check_first: A(f"s_branch {name}_chk")
        A.label(f"{name}_rnd")
        for j, g in enumerate(groups):
            M = MREG[j]
            A(f"s_mov_b64 exec, s[{M}:{M+1}]")
            A(f"s_cbranch_execz {name}_i{j}")
            for (r, va, so, imm) in g:
                A(f"buffer_load_dwordx4 v[{r}:{r+3}], v{va}, s[36:39], s{so} offen offset:{imm} sc1")
            A.label(f"{name}_i{j}")
        A.label(f"{name}_chk")
        A("s_mov_b64 s[12:13], 0")
        A("s_waitcnt vmcnt(0)")
        for j, g in enumerate(groups):
            M = MREG[j]
            A(f"s_mov_b64 exec, s[{M}:{M+1}]")
            A(f"s_cbranch_execz {name}_c{j}")
            regs = [r + k for (r, _, _, _) in g for k in range(4)]
            for k, r in enumerate(regs): A(f"v_xor_b32 v{r}, s{53+(k&3)}, v{r}")
            A(f"v_or3_b32 v55, v{regs[0]}, v{regs[1]}, v{regs[2]}")
            rest = regs[3:]
            while len(rest) >= 2:
                A(f"v_or3_b32 v55, v55, v{rest[0]}, v{rest[1]}"); rest = rest[2:]
            A(f"v_or_b32 v55, v55, v{rest[0]}")
            A("v_and_b32 v55, 0xff, v55")
            A(f"v_cmp_ne_u32 s[{M}:{M+1}], 0, v55")
            A(f"s_or_b64 s[12:13], s[12:13], s[{M}:{M+1}]")
            A.label(f"{name}_c{j}")
        A("s_mov_b64 exec, -1")
        A("s_cmp_eq_u64 s[12:13], 0")
        A(f"s_cbranch_scc1 {name}_ok")
        spin(f"{name}_rnd")
        A.label(f"{name}_ok")
    def gatherp(name, groups, raws):
        ng = len(groups)
        for j in range(ng): A(f"s_mov_b64 s[{MREG[j]}:{MREG[j]+1}], -1")
        NL = sum(len(g) for g in groups)
        def issue(rb):
            n = 0
            for j, g in enumerate(groups):
                A(f"s_or_b64 exec, s[{MREG[j]}:{MREG[j]+1}], 1")
                for (r, va, so, imm) in g:
                    A(f"buffer_load_dwordx4 v[{rb+4*n}:{rb+4*n+3}], v{va}, s[36:39], s{so} offen offset:{imm} sc1")
                    n += 1
        for rb in raws: issue(rb)
        A.label(f"{name}_rnd")
        for k, rb in enumerate(raws):
            A("s_mov_b64 s[12:13], 0")
            A(f"s_waitcnt vmcnt({(len(raws)-1)*NL})")
            n = 0
            for j, g in enumerate(groups):
                M = MREG[j]
                A(f"s_mov_b64 exec, s[{M}:{M+1}]")
                A(f"s_cbranch_execz {name}_c{k}_{j}")
                regs = []
                for (r, _, _, _) in g:
                    for e in range(4):
                        A(f"v_xor_b32 v{r+e}, s{53+e}, v{rb+4*n+e}"); regs.append(r + e)
                    n += 1
                A(f"v_or3_b32 v55, v{regs[0]}, v{regs[1]}, v{regs[2]}")
                A(f"v_or_b32 v55, v55, v{regs[3]}")
                A("v_and_b32 v55, 0xff, v55")
                A(f"v_cmp_ne_u32 s[{M}:{M+1}], 0, v55")
                A(f"s_or_b64 s[12:13], s[12:13], s[{M}:{M+1}]")
                A.label(f"{name}_c{k}_{j}")
            A("s_cmp_eq_u64 s[12:13], 0")
            A(f"s_cbranch_scc1 {name}_ok")
            if pgap: A(f"s_sleep {pgap}")
            issue(rb)
        spin(f"{name}_rnd")
        A.label(f"{name}_ok")
        A("s_mov_b64 exec, -1")
    def gatherf(name, loads, last_half=False):
        A.label(f"{name}_rnd")
        for k, (r, va, so, imm) in enumerate(loads):
            if last_half and k == len(loads) - 1:
                for e in range(4): A(f"v_mov_b32 v{r+e}, s{53+e}")
                A("s_mov_b32 exec_hi, 0")
            A(f"buffer_load_dwordx4 v[{r}:{r+3}], v{va}, s[36:39], s{so} offen offset:{imm} sc1")
        if last_half: A("s_mov_b32 exec_hi, -1")
        n = len(loads)
        for k, (r, _, _, _) in enumerate(loads):
            A(f"s_waitcnt vmcnt({n-1-k})")
            for e in range(4): A(f"v_xor_b32 v{r+e}, s{53+e}, v{r+e}")
            if k == 0: A(f"v_or_b32 v55, v{r}, v{r+1}")
            else: A(f"v_or3_b32 v55, v55, v{r}, v{r+1}")
            A(f"v_or3_b32 v55, v55, v{r+2}, v{r+3}")
        A("v_and_b32 v55, 0xff, v55")
        A("v_cmp_ne_u32 vcc, 0, v55")
        A(f"s_cbranch_vccnz {name}_re")
        post.append((f"{name}_re", f"{name}_rnd"))
    def gathers(name, va, so):
        A.label(f"{name}_rnd")
        A(f"buffer_load_dwordx4 v[20:23], v{va}, s[36:39], s{so} offen sc1")
        A(f"buffer_load_dwordx4 v[24:27], v{va}, s[36:39], s{so+1} offen sc1")
        for r in range(4): A(f"v_mov_b32 v{28+r}, 0")
        A("s_waitcnt vmcnt(1)")
        A("v_pk_max_u16 v55, v20, v21"); A("v_pk_max_u16 v53, v22, v23"); A("v_pk_max_u16 v55, v55, v53")
        A("s_waitcnt vmcnt(0)")
        A("v_smfmac_f32_16x16x64_bf16 v[28:31], v[68:71], v[20:27], v4")
        for r in range(24, 28): A(f"v_pk_max_u16 v55, v55, v{r}")
        A("v_pk_max_u16 v55, v55, v55 op_sel:[1,0] op_sel_hi:[0,1]")
        A("v_cmp_eq_u32 vcc, -1, v55")
        A(f"s_cbranch_vccnz {name}_re")
        post.append((f"{name}_re", f"{name}_rnd"))
    post = []; post2 = []
    def lstore(name, text):
        A(f"s_cbranch_scc0 {name}_g")
        A(text)
        A.label(f"{name}_j")
        post2.append((name, text))
    thr = [None]
    def throttle():
        if thr[0] is not None:
            if thr[0] >= W: A(f"s_waitcnt vmcnt({W-1})")
            thr[0] += 1
    def issueK(base, so):
        for j in range(4):
            r = base + 4 * j
            throttle()
            A(f"buffer_load_dwordx4 v[{r}:{r+3}], v2, s[28:31], s{so} offen offset:{1024*j} {kf}")
    def issueV(base, so):
        for j in range(4):
            r = base + 16 + 4 * j
            throttle()
            A(f"buffer_load_dwordx4 v[{r}:{r+3}], v3, s[32:35], s{so} offen offset:{1024*j} {vf}")
    def common_setup():
        A("s_mov_b32 s60, 0x22222222"); A("s_mov_b32 s61, 0x22222222")
        A("s_mov_b32 s62, 0x44444444"); A("s_mov_b32 s63, 0x44444444")
        A("s_mov_b32 s64, 0x88888888"); A("s_mov_b32 s65, 0x88888888")
        A("s_mov_b32 s74, 0x3db504f3"); A("s_mov_b32 s75, 0x3fb8aa3b")
        A(f"s_mov_b32 s72, {SPIN}")
        A("v_mov_b32 v44, 0xffff"); A("v_mov_b32 v45, 0xffff0000")
        A("v_mov_b32 v4, 0"); A("v_mov_b32 v5, 0")
        A("v_cmp_eq_u32 vcc, 0, v47")
        A("v_cndmask_b32 v4, v4, v44, vcc")
        A("v_cndmask_b32 v4, v4, v45, s[60:61]")
        A("v_cndmask_b32 v5, v5, v44, s[62:63]")
        A("v_cndmask_b32 v5, v5, v45, s[64:65]")
        for r in range(10, 18): A(f"v_mov_b32 v{r}, 0")
        A("v_mov_b32 v18, 0xff7fffff"); A("v_mov_b32 v19, 0")
    def k32masks(b):
        A("v_bfe_u32 v51, v1, 2, 1"); A("v_cmp_eq_u32 vcc, 0, v51")
        A(f"v_cndmask_b32 v{b}, 0, v4, vcc"); A(f"v_cndmask_b32 v{b+1}, 0, v5, vcc")
        A(f"v_cndmask_b32 v{b+2}, v4, 0, vcc"); A(f"v_cndmask_b32 v{b+3}, v5, 0, vcc")
    def tags():
        A("s_add_u32 s52, s52, 0x9e3779b9")
        A("s_and_b32 s53, s52, 0xff"); A("s_bfe_u32 s54, s52, 0x80008"); A("s_bfe_u32 s55, s52, 0x80010"); A("s_lshr_b32 s56, s52, 24")
        A("s_and_b32 s57, s52, 0xffff"); A("s_lshr_b32 s58, s52, 16")
    def sum4x4():
        A("v_pk_add_f32 v[20:21], v[20:21], v[24:25]"); A("v_pk_add_f32 v[22:23], v[22:23], v[26:27]")
        A("v_pk_add_f32 v[28:29], v[28:29], v[32:33]"); A("v_pk_add_f32 v[30:31], v[30:31], v[34:35]")
        A("v_pk_add_f32 v[20:21], v[20:21], v[28:29]"); A("v_pk_add_f32 v[22:23], v[22:23], v[30:31]")
        rr4(20, 21, 22, 23)
    def sum2x4():
        A("v_pk_add_f32 v[20:21], v[20:21], v[24:25]"); A("v_pk_add_f32 v[22:23], v[22:23], v[26:27]")
        rr4(20, 21, 22, 23)
    def tr():
        A("s_memrealtime s[96:97]"); A("s_mov_b32 m0, s98"); A("s_waitcnt lgkmcnt(0)"); A("v_writelane_b32 v244, s96, m0"); A("s_add_u32 s98, s98, 1")
    uid = [0]
    def ld4(base, va, srd_, so, fl):
        for j in range(4):
            r = base + 4 * j
            A(f"buffer_load_dwordx4 v[{r}:{r+3}], v{va}, s[{srd_}:{srd_+3}], s{so} offen offset:{1024*j} {fl}")
    def draw():
        A("s_mov_b64 exec, 1")
        A("ds_add_rtn_u32 v54, v52, v53")
        A("s_mov_b64 exec, -1")
    def qk(KB):
        for j in range(4):
            A(f"v_mfma_f32_16x16x32_bf16 v[{20+4*j}:{23+4*j}], v[{KB+4*j}:{KB+4*j+3}], v[6:9], 0")
    def extract():
        D = lambda j, r: 20 + 4 * (j & 3) + r
        for rho in range(4): A(f"v_cndmask_b32 v{44+rho}, v{D(rho,0)}, v{D(rho+1,1)}, s[60:61]")
        for rho in range(4): A(f"v_cndmask_b32 v{44+rho}, v{44+rho}, v{D(rho+2,2)}, s[62:63]")
        for rho in (1, 2, 3, 0): A(f"v_cndmask_b32 v{44+rho}, v{44+rho}, v{D(rho+3,3)}, s[64:65]")
        for rho in range(1, 4):
            qp = ",".join(str((q - rho) & 3) for q in range(4))
            dpp("v_add_f32", 44, 44 + rho, 44, f"quad_perm:[{qp}]")
        rbf(44, 44)
        A("v_mul_f32 v44, s74, v44")
        rbf(44, 44)
        A("v_mul_f32 v44, s75, v44")
    def keep(off):
        A(f"ds_write_b32 v48, v44 offset:{off}")
        A("v_max_f32 v18, v18, v44")
    def pfrag(z):
        A(f"v_sub_f32 v44, v{z}, v18")
        A("v_exp_f32 v44, v44")
        A("v_cvt_pk_bf16_f32 v45, v44, v44")
        A("v_add_f32 v19, v19, v44")
        for j in range(4):
            dpp("v_and_b32", 36 + 2 * j, 45, 4, f"quad_perm:[{j},{j},{j},{j}]")
            dpp("v_and_b32", 37 + 2 * j, 45, 5, f"quad_perm:[{j},{j},{j},{j}]")
    def pv(VB):
        for j in range(4):
            A(f"v_mfma_f32_16x16x16_bf16 v[10:13], v[{36+2*j}:{37+2*j}], v[{VB+4*j}:{VB+4*j+1}], v[10:13]")
            A(f"v_mfma_f32_16x16x16_bf16 v[14:17], v[{36+2*j}:{37+2*j}], v[{VB+4*j+2}:{VB+4*j+3}], v[14:17]")
    def unitK(base, so):
        ld4(base, 2, 28, so, kf); ld4(base + 16, 244, 28, so, kf)

    A("s_cmp_ge_u32 s2, 256")
    A("s_cbranch_scc1 L_exit")
    A("s_load_dwordx16 s[4:19], s[0:1], 0")
    A("s_load_dwordx8 s[20:27], s[0:1], 64")
    stamp(0)
    if XT: A(f"s_xor_b32 s2, s2, {XT}")
    A("v_and_b32 v1, 63, v0")
    A("v_lshrrev_b32 v44, 6, v0")
    A("v_lshlrev_b32 v3, 4, v1")
    A("v_readfirstlane_b32 s3, v44")
    A("v_bfe_u32 v45, v1, 2, 2")
    A("v_lshrrev_b32 v46, 4, v1")
    A("v_and_b32 v47, 3, v1")
    A("v_lshlrev_b32 v2, 8, v45")
    A("v_lshl_add_u32 v2, v46, 6, v2")
    A("v_lshl_add_u32 v2, v47, 4, v2")
    A("v_add_u32 v244, 4096, v2")
    A("s_lshr_b32 s77, s2, 3"); A("s_and_b32 s76, s77, 7"); A("s_and_b32 s73, s2, 7"); A("s_lshr_b32 s78, s2, 6")
    A("s_lshl3_add_u32 s79, s78, s73")
    A("s_cmp_ge_u32 s76, 4"); A(f"s_cselect_b32 s67, {D0-D1}, 0"); A(f"s_sub_u32 s67, {D0}, s67")
    assert S0 - offT - offQ - LA >= 2 * (8 + 7 * NXT) and S0 - offQ - LA >= 2 * (8 + 7 * NX) and offT + offQ <= 64
    assert (S0 - LA) % 2 == 0 and offT % 2 == 0 and offQ % 2 == 0 and S0 * 256 <= L_END - L_S
    A(f"s_mul_i32 s59, s78, {8*S0-offT-2*offQ}"); A(f"s_mul_i32 s71, s73, {S0}"); A("s_add_u32 s59, s59, s71")
    A("s_cmp_ge_u32 s77, 28"); A(f"s_cselect_b32 s68, {offT-offF+offQ}, {offT+offQ}")
    A("s_cmp_eq_u32 s73, 0"); A("s_cselect_b32 s71, 0, s68"); A("s_cselect_b32 s70, s68, 0"); A("s_sub_u32 s59, s59, s71")
    A(f"s_cmp_gt_u32 s73, {X2}"); A(f"s_cselect_b32 s71, {offQ}, 0"); A("s_sub_u32 s59, s59, s71")
    A(f"s_cmp_eq_u32 s73, {X2}"); A(f"s_cselect_b32 s70, {offQ}, s70"); A("s_cselect_b32 s65, 1, 0")
    A(f"s_sub_u32 s70, {S0-LA}, s70")
    A("s_lshl_b32 s59, s59, 12"); A("s_lshl_b32 s70, s70, 12")
    A("s_lshl_b32 s66, s3, 13"); A("s_add_u32 s66, s66, s59")
    A("s_lshl_b32 s71, s76, 24")
    A(f"s_mov_b32 s30, {OOB}"); A("s_mov_b32 s31, 0x20000"); A(f"s_mov_b32 s34, {OOB}"); A("s_mov_b32 s35, 0x20000")
    A(f"s_cmp_lg_u32 s70, {(S0-LA)*4096}")
    A("s_cbranch_scc1 L_qprod")
    A("s_waitcnt lgkmcnt(0)")
    A("s_add_u32 s28, s6, s71"); A("s_addc_u32 s29, s7, 0")
    A("s_add_u32 s32, s8, s71"); A("s_addc_u32 s33, s9, 0")
    A("s_load_dword s52, s[26:27], 0")
    A("s_cmp_eq_u32 s3, 0")
    A("s_cbranch_scc1 L_w0")
    if wpf:
        A(f"s_cmp_gt_u32 s73, {X2}"); A("s_subb_u32 s73, s73, 1"); A("s_mul_i32 s68, s77, 6"); A("s_add_u32 s73, s73, s68")
        A("s_mul_i32 s73, s73, 7"); A("s_add_u32 s73, s73, s3"); A("s_sub_u32 s73, s73, 1"); A("s_lshl_b32 s73, s73, 10")
        A("v_add_u32 v48, s73, v3")
        for k in range(1, 4): A(f"v_add_u32 v{48+k}, {k*1344*1024}, v48")
        n = 0
        for (lo, size) in ((12, 4 << 20), (16, 512 * 3584), (18, 512 * 3584), (20, 1792 * 1024)):
            d = 40 + 4 * (n & 1); n += 1
            srd(d, lo, lo + 1, size)
            for k in range(4 if lo == 12 else 2):
                A(f"buffer_load_dwordx4 v[{RA}:{RA+3}], v{48+k}, s[{d}:{d+3}], 0 offen")
    A.label("L_ring")
    unitK(RA, 66)
    A(f"s_add_u32 s68, s66, {7*8192}")
    for k in range(NX):
        if k == NXT:
            A("s_and_b32 s71, s2, 7"); A("s_cbranch_scc0 L_ringe")
        unitK(RX + 32 * k, 68)
        if k < NX - 1: A(f"s_add_u32 s68, s68, {7*8192}")
    A.label("L_ringe")
    thr[0] = None
    srd(48, 4, 5, 1024)
    srd(36, 26, 27, WS_END)
    common_setup()
    A("s_waitcnt lgkmcnt(0)")
    tags()
    stamp(1)
    A("s_barrier")
    A("s_branch L_qj")
    A.label("L_qprod")
    A("v_lshrrev_b32 v44, 3, v1"); A("v_and_b32 v45, 7, v1")
    A("v_lshlrev_b32 v50, 16, v44")
    A("v_lshl_add_u32 v50, v45, 4, v50")
    A("v_lshlrev_b32 v51, 4, v44")
    A("s_lshl1_add_u32 s69, s78, s65"); A("s_lshl3_add_u32 s69, s76, s69")
    A("s_lshl_b32 s68, s69, 7"); A("s_lshl_b32 s73, s3, 19"); A("s_add_u32 s68, s68, s73")
    A("s_lshl_b32 s73, s3, 7")
    A("s_mov_b32 s50, 1024"); A("s_mov_b32 s51, 0x20000"); A(f"s_mov_b32 s42, {4<<20}"); A("s_mov_b32 s43, 0x20000")
    for i in range(1, 8): A(f"v_add_u32 v{35+i}, {8192*i}, v50")
    A("s_waitcnt lgkmcnt(0)")
    A("s_mov_b32 s48, s4"); A("s_mov_b32 s49, s5"); A("s_mov_b32 s40, s10"); A("s_mov_b32 s41, s11")
    A("buffer_load_dwordx4 v[52:55], v3, s[48:51], 0 offen")
    A("buffer_load_dwordx4 v[32:35], v51, s[48:51], s73 offen")
    for i in range(8):
        va = 50 if i == 0 else 35 + i
        A(f"buffer_load_dwordx4 v[{RA+4*i}:{RA+4*i+3}], v{va}, s[40:43], s68 offen {wf}")
    A("s_load_dword s52, s[26:27], 0")
    A("s_add_u32 s28, s6, s71"); A("s_addc_u32 s29, s7, 0")
    A("s_add_u32 s32, s8, s71"); A("s_addc_u32 s33, s9, 0")
    A("s_cmp_lg_u32 s3, 0"); A("s_cbranch_scc1 L_nz")
    A("s_cmp_lg_u32 s65, 0"); A("s_cbranch_scc1 L_nz")
    A(f"s_mul_i32 s73, s77, {cstride}"); A(f"s_add_u32 s73, s73, {CBUF}")
    A("v_mov_b32 v49, s73"); A("v_mov_b32 v48, 0")
    A("s_mov_b64 exec, 1")
    A("global_store_dword v49, v48, s[26:27] sc1")
    A("s_mov_b64 exec, -1")
    A.label("L_nz")
    A("v_lshrrev_b32 v49, 5, v1"); A("v_and_b32 v44, 1, v46")
    A("v_lshlrev_b32 v48, 8, v49"); A("v_lshl_add_u32 v48, v45, 5, v48"); A("v_lshl_add_u32 v48, v44, 4, v48")
    A("s_lshl_b32 s73, s3, 9"); A("v_add_u32 v48, s73, v48")
    common_setup()
    k32masks(6)
    if qprof: A("s_memrealtime s[90:91]")
    A("s_waitcnt vmcnt(8)")
    if qprof: A("s_memrealtime s[92:93]")
    for k in range(4):
        A(f"v_lshlrev_b32 v{36+2*k}, 16, v{52+k}")
        A(f"v_and_b32 v{37+2*k}, 0xffff0000, v{52+k}")
    for k in range(4):
        A(f"v_lshlrev_b32 v{20+2*k}, 16, v{32+k}")
        A(f"v_and_b32 v{21+2*k}, 0xffff0000, v{32+k}")
    ln_stats(list(range(36, 44)), 44, 45, 51)
    for k in range(8): A(f"v_sub_f32 v{20+k}, v{20+k}, v44")
    for k in range(8): rbf(20 + k, 20 + k)
    for k in range(8): A(f"v_mul_f32 v{20+k}, v{20+k}, v45")
    for k in range(8): A(f"v_cvt_pk_bf16_f32 v{20+k}, v{20+k}, v{20+k}")
    for i in range(8):
        for r in range(4): A(f"v_and_b32 v{RX+4*i+r}, v{20+i}, v{6+r}")
    A("s_waitcnt vmcnt(0)")
    if qprof: A("s_memrealtime s[98:99]")
    for i in range(8):
        c = "0" if i == 0 else "v[28:31]"
        A(f"v_mfma_f32_16x16x32_bf16 v[28:31], v[{RX+4*i}:{RX+4*i+3}], v[{RA+4*i}:{RA+4*i+3}], {c}")
    A("s_mov_b32 exec_lo, 0x00ff00ff"); A("s_mov_b32 exec_hi, 0xff00ff00")
    A(f"ds_write_b128 v48, v[28:31] offset:{L_RED}")
    A("s_mov_b64 exec, -1")
    A("s_waitcnt lgkmcnt(0)")
    A("s_barrier")
    A("s_cmp_lg_u32 s3, 0")
    A("s_cbranch_scc1 L_ringb" if qhold else "s_cbranch_scc1 L_ring")
    A("s_setprio 3")
    A("v_and_b32 v50, 15, v1"); A("v_lshlrev_b32 v49, 10, v46"); A("v_lshl_add_u32 v49, v50, 4, v49")
    for k in range(4): A(f"ds_read_b128 v[{20+4*k}:{23+4*k}], v49 offset:{L_RED+256*k}")
    srd(36, 26, 27, WS_END)
    tags()
    A("v_and_b32 v45, 1, v46"); A("v_lshlrev_b32 v45, 1, v45"); A("v_lshrrev_b32 v44, 1, v46"); A("v_or_b32 v45, v45, v44")
    A("v_lshl_add_u32 v45, v50, 2, v45"); A("v_lshlrev_b32 v45, 2, v45")
    A("v_mov_b32 v49, s57"); A("v_mov_b32 v51, s58")
    A("v_cmp_eq_u32 vcc, 0, v44")
    A("v_cndmask_b32 v49, v51, v49, vcc")
    A("s_lshl_b32 s71, s69, 8"); A(f"s_add_u32 s71, s71, {QBUF}")
    A("s_waitcnt lgkmcnt(0)")
    sum4x4()
    rbf(20, 20)
    A("v_or_b32 v20, v20, v49")
    A("buffer_store_dword v20, v45, s[36:39], s71 offen sc1")
    stamp(2)
    if qhold: A("s_barrier")
    if qprof: A("s_waitcnt vmcnt(0)"); A("s_memrealtime s[96:97]")
    A("s_branch L_w0b")
    if qhold:
        A.label("L_ringb")
        A("s_barrier")
        A("s_branch L_ring")
    A.label("L_w0")
    A("s_setprio 3")
    srd(48, 4, 5, 1024)
    srd(36, 26, 27, WS_END)
    common_setup()
    A("s_waitcnt lgkmcnt(0)")
    tags()
    A.label("L_w0b")
    A("s_and_b32 s71, s2, 7"); A(f"s_cselect_b32 s71, {8+7*NX}, {8+7*NXT}"); A("s_lshl_b32 s71, s71, 13")
    A(f"v_mov_b32 v52, {L_TK}"); A("v_mov_b32 v48, s71")
    A("ds_write_b32 v52, v48")
    for r in range(4): A(f"v_mov_b32 v{24+r}, -1")
    A(f"ds_write_b128 v3, v[24:27] offset:{L_TB}")
    A(f"ds_write_b128 v3, v[24:27] offset:{L_TB+1024}")
    A("s_add_u32 s73, s59, s70")
    A("v_lshlrev_b32 v28, 12, v1"); A("v_add_u32 v28, s73, v28"); A("v_lshlrev_b32 v29, 2, v1")
    A("v_cmp_eq_u32 vcc, 0, v1"); A("v_addc_co_u32 v28, vcc, 0, v28, vcc")
    A(f"s_mov_b64 exec, {(1 << LA) - 1}")
    A(f"ds_write_b32 v29, v28 offset:{L_TB}")
    A("s_mov_b64 exec, -1")
    A("v_lshlrev_b32 v44, 1, v2")
    A("s_lshl_b32 s71, s76, 11"); A(f"s_add_u32 s71, s71, {QBUF}")
    A("s_add_u32 s14, s26, s71"); A("s_addc_u32 s15, s27, 0")
    A.label("L_qhint")
    for k in range(8): A(f"s_load_dword s{40+k}, s[14:15], {256*k} glc")
    A("s_waitcnt lgkmcnt(0)")
    for k in range(8): A(f"s_xor_b32 s{40+k}, s{40+k}, s57")
    for k in range(1, 8): A(f"s_or_b32 s40, s40, s{40+k}")
    A("s_and_b32 s40, s40, 0xffff")
    A("s_cbranch_scc0 L_qpoll")
    spin("L_qhint", qslp)
    A.label("L_qpoll")
    if qprof: A("s_memrealtime s[94:95]")
    A("buffer_load_dwordx4 v[20:23], v44, s[36:39], s71 offen sc1")
    A("buffer_load_dwordx4 v[24:27], v44, s[36:39], s71 offen offset:16 sc1")
    A("s_mov_b32 s73, 0x07060302")
    A("s_waitcnt vmcnt(0)")
    for e in range(8): A(f"v_xor_b32 v{20+e}, s{57+(e&1)}, v{20+e}")
    A("v_or3_b32 v45, v20, v21, v22"); A("v_or3_b32 v45, v45, v23, v24"); A("v_or3_b32 v45, v45, v25, v26"); A("v_or_b32 v45, v45, v27")
    A("v_and_b32 v45, 0xffff, v45")
    A("v_cmp_ne_u32 vcc, 0, v45")
    A("s_cbranch_vccz L_q_ok")
    spin("L_qpoll")
    A.label("L_q_ok")
    for k in range(4): A(f"v_perm_b32 v{6+k}, v{21+2*k}, v{20+2*k}, s73")
    A(f"ds_write_b128 v3, v[6:9] offset:{L_QF}")
    A("s_waitcnt lgkmcnt(0)")
    stamp(1)
    A("s_barrier")
    unitK(RA, 66)
    A("s_setprio 0")
    A.label("L_qj")
    A(f"ds_read_b128 v[6:9], v3 offset:{L_QF}")
    A(f"v_mov_b32 v52, {L_TK}"); A("v_mov_b32 v53, 8192")
    A("s_mov_b32 s69, 3"); A("s_mov_b32 s11, 0"); A("s_lshl_b32 s10, s70, 1")
    A("v_add_u32 v245, 4096, v3")
    A("s_lshr_b32 s71, s59, 4"); A(f"s_sub_u32 s71, {L_S}, s71"); A("v_lshl_add_u32 v246, v1, 2, s71")
    if trace: A("s_mov_b32 s98, 0"); A("v_mov_b32 v244, 0")
    A(f"s_mul_i32 s58, s77, {cstride}"); A(f"s_add_u32 s58, s58, {CBUF}")
    A("s_sub_u32 s57, 4, s78"); A("s_mul_i32 s57, s57, s67"); A("s_sub_u32 s57, 4096, s57"); A("s_lshl_b32 s57, s57, 12")
    if ew < 8:
        A(f"s_sub_u32 s101, s67, {ewx}"); A("s_lshl_b32 s101, s101, 12"); A("s_add_u32 s101, s101, s57")
        A(f"s_cmp_ge_u32 s3, {ew}"); A("s_cselect_b32 s101, s101, -1")
    stamp(3)
    A.label("L_k")
    draw()
    A("s_lshr_b32 s73, s66, 4"); A("v_add_u32 v48, s73, v246")
    A("s_waitcnt vmcnt(4) lgkmcnt(0)")
    A("v_readfirstlane_b32 s71, v54")
    qk(RA)
    A("s_add_u32 s66, s71, s59")
    A("s_cmp_ge_u32 s71, s70")
    A("s_cbranch_scc1 L_k2v0")
    ld4(RA, 2, 28, 66, kf)
    A.label("L_k0r")
    extract(); keep(0)
    A("s_waitcnt vmcnt(4)")
    qk(RA + 16)
    A("s_cmp_lg_u32 s11, 0")
    A("s_cbranch_scc1 L_k2v1")
    ld4(RA + 16, 244, 28, 66, kf)
    A.label("L_k1r")
    extract(); keep(256)
    A("s_cmp_eq_u32 s69, 3")
    A("s_cbranch_scc1 L_first")
    A.label("L_kn")
    A("s_cmp_eq_u32 s11, 0")
    A("s_cbranch_scc1 L_k")
    quad_all(18, "v_max_f32")
    rows_all(18, 49, "v_max_f32")
    A(f"ds_write_b32 v{TC+2}, v18 offset:{L_MX2}")
    if wsplit:
        A("s_cmp_lg_u32 s69, 0")
        A("s_cbranch_scc1 L_setup2")
        A.label("L_s2r")
    A(f"v_and_b32 v49, 0x60, v{TC+2}")
    A("s_waitcnt lgkmcnt(0)")
    A("s_barrier")
    A(f"ds_read_b128 v[20:23], v49 offset:{L_MX2}")
    A(f"ds_read_b128 v[24:27], v49 offset:{L_MX2+16}")
    A("s_waitcnt lgkmcnt(0)")
    A("v_max3_f32 v18, v20, v21, v22"); A("v_max3_f32 v18, v18, v23, v24"); A("v_max3_f32 v18, v18, v25, v26"); A("v_max_f32 v18, v18, v27")
    A.label("L_v")
    draw()
    A("s_lshr_b32 s73, s66, 4"); A("v_add_u32 v48, s73, v246")
    A("ds_read2_b32 v[20:21], v48 offset0:0 offset1:64")
    A("s_waitcnt lgkmcnt(0)")
    A("v_readfirstlane_b32 s71, v54")
    pfrag(20)
    A("s_waitcnt vmcnt(4)")
    pv(RA)
    A("s_add_u32 s66, s71, s59"); A("s_sub_u32 s66, s66, s70")
    A("s_cmp_ge_u32 s71, s10")
    A("s_cbranch_scc1 L_v2c")
    ld4(RA, 3, 32, 66, vf)
    pfrag(21)
    A("s_waitcnt vmcnt(4)")
    pv(RA + 16)
    ld4(RA + 16, 245, 32, 66, vf)
    A("s_branch L_v")
    A.label("L_k2v0")
    A("s_sub_u32 s66, s66, s70"); A("s_mov_b32 s11, 1")
    ld4(RA, 3, 32, 66, vf)
    A("s_branch L_k0r")
    A.label("L_k2v1")
    ld4(RA + 16, 245, 32, 66, vf)
    A("s_branch L_k1r")
    A.label("L_v2c")
    A("s_mov_b32 s11, 2")
    A("s_branch L_dyn")
    A.label("L_vc0")
    A("s_mov_b32 s11, 3")
    ld4(RA, 2, 28, 66, kf)
    pfrag(21)
    A("s_waitcnt vmcnt(4)")
    pv(RA + 16)
    ld4(RA + 16, 3, 32, 66, vf)
    A("s_cmp_ge_u32 s66, s30")
    A("s_cbranch_scc1 L_done")
    A.label("L_loop")
    draw()
    A("s_waitcnt vmcnt(4) lgkmcnt(0)")
    A("v_readfirstlane_b32 s71, v54")
    qk(RA)
    A("s_branch L_dyn")
    A.label("L_go")
    ld4(RA, 2, 28, 66, kf)
    A.label("L_gox")
    extract()
    A("v_cmp_gt_f32 vcc, v44, v18")
    A("s_cbranch_vccz L_nors")
    A("v_max_f32 v45, v44, v18")
    quad_all(45, "v_max_f32")
    rows_all(45, 46, "v_max_f32")
    A("v_sub_f32 v46, v18, v45")
    A("v_exp_f32 v46, v46")
    A("v_mov_b32 v18, v45")
    A("v_mul_f32 v19, v19, v46")
    for h in range(4): A(f"v_mov_b32_dpp v47, v46 row_newbcast:{4*h} row_mask:{hex(1<<h)} bank_mask:0xf")
    for r in range(10, 18): A(f"v_mul_f32 v{r}, v{r}, v47")
    A.label("L_nors")
    pfrag(44)
    A("s_cmp_ge_u32 s66, s30")
    A("s_cbranch_scc1 L_last")
    A("s_waitcnt vmcnt(4)")
    pv(RA + 16)
    ld4(RA + 16, 3, 32, 66, vf)
    A("s_branch L_loop")
    A.label("L_first")
    A("s_mov_b32 s69, 0")
    A("s_cmp_eq_u32 s3, 0")
    A("s_cbranch_scc1 L_setup")
    A("s_lshl_b32 s71, s3, 9"); A(f"s_add_u32 s71, s71, {L_S}"); A("v_lshl_add_u32 v48, v1, 2, s71")
    A("s_waitcnt vmcnt(8)")
    for k in range(NX):
        if k == NXT:
            A("s_and_b32 s71, s2, 7"); A("s_cbranch_scc0 L_setup")
        for hf in range(2):
            qk(RX + 32 * k + 16 * hf); extract(); keep((7 + 7 * k) * 512 + 256 * hf)
    A.label("L_setup")
    A("v_lshrrev_b32 v46, 4, v1"); A("v_and_b32 v47, 3, v1"); A("v_bfe_u32 v45, v1, 2, 2"); A("v_and_b32 v50, 15, v1")
    A("v_and_b32 v48, 1, v46"); A("v_lshlrev_b32 v48, 1, v48"); A("v_lshrrev_b32 v49, 1, v46"); A("v_or_b32 v48, v48, v49")
    A("s_lshl_b32 s71, s3, 11"); A(f"v_lshlrev_b32 v{TC}, 5, v1"); A(f"v_add_u32 v{TC}, s71, v{TC}")
    A("s_lshl_b32 s71, s3, 3"); A(f"v_lshlrev_b32 v{TC+1}, 6, v45"); A(f"v_add_u32 v{TC+1}, s71, v{TC+1}")
    A(f"v_lshrrev_b32 v{TC+2}, 1, v{TC+1}")
    A("s_lshl_b32 s71, s3, 8"); A(f"v_lshlrev_b32 v{TC+3}, 12, v46"); A(f"v_lshl_add_u32 v{TC+3}, v50, 4, v{TC+3}"); A(f"v_add_u32 v{TC+3}, s71, v{TC+3}")
    A("s_lshr_b32 s71, s3, 1"); A("s_lshl_b32 s73, s71, 6"); A(f"v_lshlrev_b32 v{TC+4}, 4, v46"); A(f"v_add_u32 v{TC+4}, s73, v{TC+4}")
    A("s_lshl_b32 s73, s71, 5"); A(f"v_mov_b32 v{TC+5}, s73")
    A(f"v_lshl_add_u32 v{TC+6}, v50, 2, v48"); A(f"v_lshlrev_b32 v{TC+6}, 1, v{TC+6}")
    A("s_lshl_b32 s0, s76, 16"); A("s_lshl_b32 s73, s79, 11"); A("s_add_u32 s0, s0, s73")
    A("s_lshl_b32 s73, s3, 8"); A("s_add_u32 s0, s0, s73"); A(f"s_add_u32 s0, s0, {OBUF}")
    A("s_lshr_b32 s73, s3, 1"); A("s_lshl2_add_u32 s1, s76, s73"); A("s_lshl_b32 s1, s1, 5"); A("s_add_u32 s1, s1, s79")
    A(f"s_lshl_b32 s1, s1, {mlsh}"); A(f"s_add_u32 s1, s1, {MLBUF}")
    A(f"v_lshlrev_b32 v{TC+10}, 2, v1")
    A(f"v_lshlrev_b32 v{TC+27}, 3, v47"); A(f"v_lshrrev_b32 v{TC+27}, v{TC+27}, s52"); A(f"v_and_b32 v{TC+27}, 0xff, v{TC+27}")
    if opre is not None:
        A(f"buffer_load_dword v44, v{TC+10}, s[36:39], s0 offen {opre}")
        A("s_mov_b64 exec, 1")
        A(f"buffer_load_dword v45, v3, s[36:39], s1 offen {opre}")
        A("s_mov_b64 exec, -1")
        A("s_waitcnt vmcnt(0)")
    if tlbpf:
        A("s_cmp_lg_u32 s3, 0"); A("s_cbranch_scc1 L_notlb")
        A(f"v_lshlrev_b32 v44, {tlbpf}, v1")
        A(f"s_mov_b64 exec, {(1 << ((1 << (20 - tlbpf)) + 1)) - 1}")
        A("buffer_load_dword v245, v44, s[28:31], s57 offen nt")
        A("buffer_load_dword v246, v44, s[32:35], s57 offen nt")
        A("s_mov_b64 exec, -1")
        A.label("L_notlb")
    A("s_and_b32 s71, s2, 7")
    A("s_cbranch_scc1 L_kn")
    A("s_mov_b32 s69, 2")
    A("s_getreg_b32 s78, hwreg(HW_REG_XCC_ID, 0, 4)"); A("s_lshl_b32 s78, s78, 8")
    A("s_cmp_lg_u32 s3, 0"); A("s_cbranch_scc1 L_nox")
    for r in range(4): A(f"v_mov_b32 v{24+r}, -1")
    A("s_cmp_ge_u32 s77, 28"); A("s_cselect_b32 s71, 0, -1")
    for r in range(4): A(f"v_mov_b32 v{28+r}, s71")
    A("s_lshl_b32 s71, s77, 11"); A(f"s_add_u32 s71, s71, {YBUF}")
    A("buffer_store_dwordx4 v[28:31], v3, s[36:39], s71 offen sc1")
    A("buffer_store_dwordx4 v[28:31], v3, s[36:39], s71 offen offset:1024 sc1")
    A("s_lshl_b32 s71, s77, 9"); A(f"s_add_u32 s71, s71, {HBUF}")
    A("s_mov_b32 exec_hi, 0")
    A("buffer_store_dwordx4 v[24:27], v3, s[36:39], s71 offen sc1")
    A("s_mov_b32 exec_hi, -1")
    A("s_waitcnt vmcnt(0)")
    A("s_or_b32 s71, s78, s53")
    A("v_mov_b32 v20, s71"); A("v_mov_b32 v21, s54"); A("v_mov_b32 v22, s55"); A("v_mov_b32 v23, s56")

    A("s_lshl_b32 s71, s77, 4"); A(f"s_add_u32 s71, s71, {XBUF}")
    A("s_mov_b64 exec, 1")
    A("buffer_store_dwordx4 v[20:23], v3, s[36:39], s71 offen sc1")
    A("s_mov_b64 exec, -1")
    A.label("L_nox")
    srd(40, 12, 13, 4 << 20)
    A("s_lshr_b32 s68, s77, 1")
    A("s_lshl_b32 s71, s68, 18"); A("s_lshr_b32 s73, s3, 1"); A("s_lshl_b32 s73, s73, 16"); A("s_add_u32 s71, s71, s73")
    A("s_and_b32 s73, s3, 1"); A("s_lshl_b32 s73, s73, 10"); A("s_add_u32 s71, s71, s73")
    A("s_and_b32 s73, s77, 1"); A("s_lshl_b32 s73, s73, 9"); A("s_add_u32 s71, s71, s73")
    A("v_lshlrev_b32 v44, 4, v50"); A("v_lshl_add_u32 v45, v48, 13, v44"); A("v_lshl_add_u32 v44, v48, 11, v44")
    for jl in range(2):
        for half in range(2):
            for jh in range(2):
                for c2 in range(2):
                    r = WO + 8 * (4 * c2 + 2 * jh + jl) + 4 * half
                    A(f"buffer_load_dwordx4 v[{r}:{r+3}], v45, s[40:43], s71 offen offset:{2048*jh+256*c2} {wf}")
            if (jl, half) != (1, 1): A(f"s_add_u32 s71, s71, {4096 if half == 0 else 32768-4096}")
    A("v_and_b32 v51, 7, v1"); A("v_bfe_u32 v49, v1, 3, 1")
    A(f"v_lshl_add_u32 v{TC+25}, v48, 1, v49"); A(f"v_lshl_add_u32 v{TC+25}, v51, 3, v{TC+25}")
    A("s_lshl_b32 s71, s3, 6"); A(f"v_add_lshl_u32 v{TC+25}, v{TC+25}, s71, 1")
    A(f"buffer_load_ushort v{TC+13}, v{TC+25}, s[48:51], 0 offen")
    A("v_and_b32 v51, 7, v1"); A("v_and_b32 v45, 1, v46"); A("v_lshrrev_b32 v49, 5, v1")
    A(f"v_lshrrev_b32 v{TC+9}, 3, v1")
    A(f"v_lshlrev_b32 v{TC+8}, 13, v{TC+9}"); A(f"v_lshl_add_u32 v{TC+8}, v51, 4, v{TC+8}")
    A(f"v_lshl_add_u32 v{TC+9}, v{TC+9}, 2, v47"); A(f"v_lshlrev_b32 v{TC+9}, {mlsh}, v{TC+9}")
    A(f"v_lshlrev_b32 v{TC+24}, 4, v45"); A(f"v_lshl_add_u32 v{TC+24}, v50, 5, v{TC+24}")
    A(f"v_lshl_add_u32 v{TC+11}, v49, 9, v{TC+24}"); A("s_lshl_b32 s71, s3, 10"); A(f"v_add_u32 v{TC+11}, s71, v{TC+11}")
    A(f"v_lshrrev_b32 v{TC+24}, 1, v{TC+24}")
    A(f"v_lshrrev_b32 v{TC+14}, 3, v1"); A(f"v_lshlrev_b32 v{TC+14}, 10, v{TC+14}"); A(f"v_lshl_add_u32 v{TC+14}, v51, 4, v{TC+14}")
    A(f"v_lshrrev_b32 v{TC+12}, 3, v1"); A(f"v_lshlrev_b32 v{TC+12}, 10, v{TC+12}"); A(f"v_lshl_add_u32 v{TC+12}, v51, 4, v{TC+12}"); A("s_lshl_b32 s71, s3, 7"); A(f"v_add_u32 v{TC+12}, s71, v{TC+12}")
    A("s_lshl_b32 s71, s3, 4"); A(f"v_lshlrev_b32 v{TC+20}, 3, v49"); A(f"v_add_u32 v{TC+20}, s71, v{TC+20}"); A(f"v_lshlrev_b32 v{TC+21}, 4, v51")
    A("v_bfe_u32 v49, v1, 3, 1")
    A(f"v_lshlrev_b32 v{TC+23}, 11, v46"); A(f"v_lshl_add_u32 v{TC+23}, v49, 8, v{TC+23}"); A(f"v_lshl_add_u32 v{TC+23}, v51, 4, v{TC+23}")
    A("s_lshr_b32 s71, s3, 2"); A("s_lshl_b32 s71, s71, 7"); A(f"v_add_u32 v{TC+23}, s71, v{TC+23}")
    A("s_lshl_b32 s71, s3, 13"); A(f"s_add_u32 s71, s71, {L_WD}"); A(f"v_add_u32 v{TC+26}, s71, v3")
    A("s_mov_b32 m0, s71")
    A(f"v_lshrrev_b32 v{TC+22}, 1, v1"); A(f"v_lshlrev_b32 v{TC+22}, 10, v{TC+22}"); A("v_and_b32 v45, 1, v1"); A(f"v_lshl_add_u32 v{TC+22}, v45, 4, v{TC+22}")
    srd(44, 22, 23, 1024)
    if wsplit:
        A("s_branch L_kn")
        A.label("L_setup2")
        A("v_lshrrev_b32 v46, 4, v1"); A("v_and_b32 v50, 15, v1"); A("v_and_b32 v51, 7, v1")
        A("v_and_b32 v48, 1, v46"); A("v_lshlrev_b32 v48, 1, v48"); A("v_lshrrev_b32 v49, 1, v46"); A("v_or_b32 v48, v48, v49")
        A("v_lshlrev_b32 v44, 4, v50"); A("v_lshl_add_u32 v44, v48, 11, v44"); A("v_bfe_u32 v49, v1, 3, 1")
    A("s_cmp_ge_u32 s77, 28")
    A("s_cbranch_scc1 L_suj")
    A("s_mov_b32 s69, 1")
    A("s_lshl_b32 s71, s3, 6"); A("v_lshl_add_u32 v45, v48, 2, s71")
    A("v_mul_u32_u24 v45, 3584, v45"); A("v_lshl_add_u32 v45, v51, 4, v45"); A("s_lshl_b32 s71, s77, 7"); A("v_add_u32 v45, s71, v45")
    A("v_cmp_eq_u32 vcc, 0, v49")
    A("v_mov_b32 v20, s16"); A("v_mov_b32 v21, s18"); A("v_cndmask_b32 v20, v21, v20, vcc")
    A("v_mov_b32 v21, s17"); A("v_mov_b32 v22, s19"); A("v_cndmask_b32 v21, v22, v21, vcc")
    A("v_add_co_u32 v20, vcc, v20, v45"); A("v_addc_co_u32 v21, vcc, 0, v21, vcc")
    for j in range(4):
        for half in range(2):
            for v in range(2):
                r = WGU + 8 * (4 * v + j) + 4 * half
                A(f"global_load_dwordx4 v[{r}:{r+3}], v[20:21], off offset:{3584*v} {wf}")
            if (j, half) != (3, 1): A(f"v_add_co_u32 v20, vcc, {(2 if half == 0 else 14)*3584}, v20"); A("v_addc_co_u32 v21, vcc, 0, v21, vcc")
    srd(40, 20, 21, 1792 * 1024)
    A("s_lshl_b32 s71, s77, 16"); A("s_lshr_b32 s73, s3, 2"); A("s_lshl_b32 s73, s73, 15"); A("s_add_u32 s71, s71, s73")
    A("s_and_b32 s73, s3, 3"); A("s_lshl_b32 s73, s73, 8"); A("s_add_u32 s71, s71, s73")
    for i in range(8):
        A(f"buffer_load_dwordx4 v44, s[40:43], s71 offen {wf} lds")
        if i < 7: A(f"s_add_u32 s71, s71, {1024 if i % 2 == 0 else 7168}"); A("s_add_u32 m0, m0, 1024")
    A.label("L_suj")
    A("s_lshl_b32 s22, s77, 5"); A(f"s_add_u32 s22, s22, {YBUF}")
    A("s_add_u32 s23, s22, 32768")
    A("s_lshl_b32 s24, s3, 7"); A(f"s_add_u32 s24, s24, {HBUF}"); A("s_add_u32 s25, s24, 8192")
    A("s_lshr_b32 s16, s68, 1"); A("s_lshl_b32 s16, s16, 16"); A("s_and_b32 s71, s68, 1"); A("s_lshl_b32 s71, s71, 10"); A("s_add_u32 s16, s16, s71")
    A("s_lshl_b32 s71, s3, 7"); A("s_add_u32 s16, s16, s71"); A(f"s_add_u32 s16, s16, {OBUF}")
    A("s_add_u32 s17, s16, 4096")
    A("s_lshr_b32 s71, s3, 2"); A("s_lshl1_add_u32 s20, s68, s71"); A(f"s_lshl_b32 s20, s20, {5+mlsh}"); A(f"s_add_u32 s20, s20, {MLBUF}")
    A("s_lshl_b32 s21, s77, 9"); A("s_lshl_b32 s73, s3, 6"); A("s_add_u32 s21, s21, s73"); A(f"s_add_u32 s21, s21, {HBUF}")
    A("s_lshl_b32 s18, s77, 11"); A("s_lshl_b32 s71, s3, 8"); A("s_add_u32 s18, s18, s71"); A(f"s_add_u32 s18, s18, {YBUF}")
    A("s_lshr_b32 s68, s77, 2")
    A("s_branch L_s2r" if wsplit else "s_branch L_kn")

    A.label("L_dyn")
    A("s_sub_u32 s73, s71, s10"); A("s_lshr_b32 s73, s73, 11")
    A("v_mov_b32 v48, s73")
    A.label("L_dynw")
    A(f"ds_read_b32 v49, v48 offset:{L_TB}")
    A("s_waitcnt lgkmcnt(0)")
    A("v_readfirstlane_b32 s66, v49")
    A("s_cmp_lg_u32 s66, -1")
    A("s_cbranch_scc1 L_dyng")
    spin("L_dynw")
    A.label("L_dyng")
    if t1:
        A("s_cmp_eq_u32 s66, 2")
        A("s_cbranch_scc1 L_self")
    if skipoob:
        A("s_cmp_ge_u32 s66, s30")
        A("s_cbranch_scc1 L_dretx")
    A("s_bitcmp1_b32 s66, 0")
    A("s_cbranch_scc0 L_dret")
    A("s_and_b32 s66, s66, -2")
    A("s_max_u32 s71, s66, s57"); A("s_sub_u32 s71, s71, s57"); A("s_lshr_b32 s71, s71, 12"); A("s_sub_u32 s71, s67, s71")
    if tT:
        if tS:
            A(f"s_mul_i32 s14, s73, {sm}"); A("s_lshr_b32 s14, s14, 2"); A("s_add_u32 s14, s14, s71")
            A("s_cmp_lt_u32 s14, s67"); A(f"s_cselect_b32 s15, {tS}, 0")
            A("s_and_b32 s14, s2, 7"); A("s_cmp_eq_u32 s14, 2"); A("s_cselect_b32 s15, 0, s15")
            A("s_cmp_lg_u32 s14, 0"); A(f"s_cselect_b32 s14, s15, {tT}")
        else:
            A("s_and_b32 s14, s2, 7"); A(f"s_cselect_b32 s14, 0, {tT}")
        A("s_cmp_gt_u32 s71, s14")
        A("s_cbranch_scc1 L_dynt")
        A("v_lshl_add_u32 v48, v1, 2, v48")
        A("v_mov_b32 v51, s30")
        A(f"ds_write_b32 v48, v51 offset:{L_TB+4*LA}")
        A("s_branch L_dret")
        A.label("L_dynt")
    A(f"s_cmp_gt_u32 s71, {t4}"); A("s_cselect_b32 s15, 4, 2")
    A(f"s_cmp_gt_u32 s71, {t8}"); A(f"s_cselect_b32 s15, {b0}, s15")
    A("s_mov_b32 s14, s15")
    A("s_atomic_add s14, s[26:27], s58 glc")
    A("v_lshl_add_u32 v48, v1, 2, v48")
    A(f"s_sub_u32 s73, s15, {LA}")
    A("s_waitcnt lgkmcnt(0)")
    A("v_add_u32 v49, s14, v1")
    A("v_lshlrev_b32 v50, 12, v49"); A("v_add_u32 v50, s57, v50")
    A("s_add_u32 s14, s14, s15")
    A("s_cmp_ge_u32 s14, s67")
    A("s_cbranch_scc1 L_dynx")
    if t1:
        A(f"s_add_u32 s14, s14, {t1}")
        A("s_cmp_ge_u32 s14, s67")
        A("s_cbranch_scc1 L_dyns")
    A("v_cmp_eq_u32 vcc, s73, v1"); A("v_addc_co_u32 v50, vcc, 0, v50, vcc")
    A("v_cmp_gt_u32 vcc, s15, v1")
    A("s_mov_b64 exec, vcc")
    A(f"ds_write_b32 v48, v50 offset:{L_TB+4*LA}")
    A("s_mov_b64 exec, -1")
    A("s_branch L_dret")
    A.label("L_dynx")
    A("v_mov_b32 v51, s30")
    A("v_cmp_gt_u32 vcc, s67, v49")
    A("v_cndmask_b32 v50, v51, v50, vcc")
    A(f"ds_write_b32 v48, v50 offset:{L_TB+4*LA}")
    A("s_branch L_dret")
    if t1:
        A.label("L_dyns")
        A("v_cmp_gt_u32 vcc, s15, v1")
        A("v_cndmask_b32 v50, 2, v50, vcc")
        A(f"ds_write_b32 v48, v50 offset:{L_TB+4*LA}")
        A("s_branch L_dret")
        A.label("L_self")
        A("s_mov_b32 s14, 1")
        A("s_atomic_add s14, s[26:27], s58 glc")
        A("v_lshl_add_u32 v48, v1, 2, v48")
        A("v_mov_b32 v51, s30")
        A("s_waitcnt lgkmcnt(0)")
        A("s_lshl_b32 s66, s14, 12"); A("s_add_u32 s66, s66, s57")
        A("s_cmp_lt_u32 s14, s67")
        A("s_cbranch_scc1 L_dret")
        A("s_mov_b32 s66, s30")
        A(f"ds_write_b32 v48, v51 offset:{L_TB+4}")
        A("s_branch L_dret")

    A.label("L_dret")
    A("s_cmp_eq_u32 s11, 3")
    A("s_cbranch_scc1 L_go")
    A("s_branch L_vc0")
    A.label("L_dretx")
    A("s_cmp_eq_u32 s11, 3")
    A("s_cbranch_scc1 L_gox")
    A("s_branch L_vc0")
    def lred():
        quad_all(19, "v_add_f32")
        A(f"ds_write_b32 v{TC+2}, v18 offset:{L_MX}")
        rows_all(19, 49, "v_add_f32")
        A(f"ds_write_b64 v{TC+1}, v[18:19] offset:{L_ML}")
    A.label("L_done")
    lred()
    if skipoob:
        A("s_branch L_done2")
        A.label("L_last")
        lred()
        A("s_waitcnt vmcnt(0)")
        if trace: tr()
        VB = RA + 16
        for j in range(4):
            A(f"v_mfma_f32_16x16x16_bf16 v[10:13], v[{36+2*j}:{37+2*j}], v[{VB+4*j}:{VB+4*j+1}], v[10:13]")
            A(f"v_mfma_f32_16x16x16_bf16 v[14:17], v[{36+2*j}:{37+2*j}], v[{VB+4*j+2}:{VB+4*j+3}], v[14:17]")
        A.label("L_done2")
    stamp(4)
    if trace:
        A("s_lshl_b32 s71, s2, 3"); A("s_add_u32 s71, s71, s3"); A("s_lshl_b32 s71, s71, 8"); A("s_add_u32 s71, s71, 0x200000")
        A("v_lshlrev_b32 v48, 2, v1"); A("v_add_u32 v48, s71, v48")
        A("global_store_dword v48, v244, s[26:27]")
    if cut == 1: A("s_branch L_end")
    A("s_mov_b32 s73, 0xffffff00")
    A("v_mov_b32 v47, s53"); A("v_mov_b32 v48, s54"); A("v_mov_b32 v39, s56")
    A(f"ds_write_b128 v{TC}, v[10:13] offset:{L_OM}")
    A(f"ds_write_b128 v{TC}, v[14:17] offset:{L_OM+16}")
    A("s_cmp_eq_u32 s69, 1")
    A("s_cbranch_scc1 L_cs")
    A.label("L_csr")
    A("s_waitcnt lgkmcnt(0)")
    A("s_barrier")
    stamp(5)
    A(f"ds_read_b128 v[20:23], v{TC+5} offset:{L_MX}")
    A(f"ds_read_b128 v[24:27], v{TC+5} offset:{L_MX+16}")
    A(f"ds_read_b128 v[28:31], v{TC+4} offset:{L_ML}")
    A(f"ds_read_b128 v[10:13], v{TC+3} offset:{L_OM}")
    A(f"ds_read_b128 v[14:17], v{TC+3} offset:{L_OM+2048}")
    A("s_waitcnt lgkmcnt(3)")
    A("v_max3_f32 v36, v20, v21, v22"); A("v_max3_f32 v37, v23, v24, v25"); A("v_max3_f32 v36, v36, v26, v27"); A("v_max_f32 v36, v36, v37")
    A("s_waitcnt lgkmcnt(2)")
    A("v_sub_f32 v28, v28, v36"); A("v_sub_f32 v30, v30, v36")
    A("v_exp_f32 v28, v28"); A("v_exp_f32 v30, v30")
    A("v_lshl_or_b32 v38, v36, 24, s55")
    A("v_mul_f32 v37, v28, v29")
    A("v_fmac_f32 v37, v30, v31")
    A("s_waitcnt lgkmcnt(0)")
    A("v_mov_b32 v49, v37")
    for r in range(4): A(f"v_mul_f32 v{10+r}, v{10+r}, v28")
    A("v_permlane32_swap_b32 v37, v49")
    for r in range(2): A(f"v_fmac_f32 v{10+r}, v{14+r}, v30")
    A("v_add_f32 v37, v37, v49")
    for r in range(2, 4): A(f"v_fmac_f32 v{10+r}, v{14+r}, v30")
    A("v_mov_b32 v49, v37")
    A("v_permlane32_swap_b32 v10, v11")
    A("v_permlane32_swap_b32 v12, v13")
    A("v_add_f32 v10, v10, v11")
    A("v_add_f32 v12, v12, v13")
    A("v_permlane16_swap_b32 v37, v49")
    A("v_add_f32 v37, v37, v49")
    A("v_permlane16_swap_b32 v10, v12")
    A("v_add_f32 v10, v10, v12")
    A(f"v_and_or_b32 v10, v10, s73, v{TC+27}")
    A(f"buffer_store_dword v10, v{TC+10}, s[36:39], s0 offen {osf}")
    A("s_bitcmp1_b32 s3, 0")
    A("s_cbranch_scc1 L_mj")
    A("v_and_or_b32 v37, v37, s73, v48"); A("v_and_or_b32 v36, v36, s73, v47")
    A("s_mov_b64 exec, 1")
    A(f"buffer_store_dwordx4 v[36:39], v3, s[36:39], s1 offen {osf}")
    A("s_mov_b64 exec, -1")
    A.label("L_mj")
    stamp(6)
    A("s_cmp_eq_u32 s69, 0")
    A("s_cbranch_scc1 L_end")
    A("v_and_b32 v54, 0x1f0, v3")
    A(f"buffer_load_dwordx4 v[40:43], v54, s[36:39], 0 offen offset:{XBUF} sc1")
    if codepf:
        A("s_getpc_b64 s[12:13]")
        A.label("L_pcref")
        A("s_lshl_b32 s71, s3, 9"); A("s_add_u32 s12, s12, s71"); A("s_addc_u32 s13, s13, 0")
        A(f"v_lshlrev_b32 v48, 3, v1")
        A("global_load_dwordx2 v[44:45], v48, s[12:13]")
    if outpf:
        A("buffer_load_dword v44, v3, s[44:47], 0 offen")
    if pretouch:
        A("s_lshl_b32 s71, s3, 5"); A("s_add_u32 s71, s71, s77")
        A("s_cmp_ge_u32 s71, 80")
        A("s_cbranch_scc1 L_nopt")
        A("s_lshl_b32 s71, s71, 10"); A(f"s_add_u32 s71, s71, {HBUF}")
        A("buffer_load_dwordx4 v[44:47], v3, s[36:39], s71 offen sc1")
        A.label("L_nopt")
    A("s_mov_b32 s60, 0xfffefffe")
    OB = RA
    for k in range(4): A(f"ds_read_b128 v[{20+4*k}:{23+4*k}], v{TC+23} offset:{L_RED2+512*k}")
    A("s_waitcnt lgkmcnt(0)")
    sum4x4()
    A("v_mov_b32 v51, v20")
    A("s_waitcnt vmcnt(0)")
    A.label("L_xchk")
    for k in range(4): A(f"v_xor_b32 v{40+k}, s{53+k}, v{40+k}")
    A("v_or3_b32 v55, v41, v42, v43")
    A("v_and_b32 v53, 0xff, v40"); A("v_or_b32 v55, v55, v53")
    A("v_cmp_ne_u32 vcc, 0, v55")
    A("s_cbranch_vccz L_xok")
    A(f"buffer_load_dwordx4 v[40:43], v54, s[36:39], 0 offen offset:{XBUF} sc1")
    A("s_waitcnt vmcnt(0)")
    spin("L_xchk")
    A.label("L_xok")
    A("v_cmp_ne_u32 vcc, s78, v40")
    A("s_mov_b32 s64, 0")
    if local:
        A("s_cbranch_vccnz L_xg")
        A("s_mov_b32 s64, 1")
        A.label("L_xg")
    A(f"v_lshlrev_b32 v{TC+13}, 16, v{TC+13}")
    for i in range(8):
        r = WDR[i >> 1] + 4 * (i & 1)
        A(f"ds_read_b128 v[{r}:{r+3}], v{TC+26} offset:{1024*i}")
    for F in FS:
        for r in range(4): A(f"v_mov_b32 v{F+r}, 0")
    for r in range(10, 18): A(f"v_mov_b32 v{r}, 0")
    A("v_and_b32 v4, 3, v1"); A("v_mul_u32_u24 v4, 0x5555, v4")
    OG = [(OB + 4 * j, TC + 8, 16 + (j >> 1), 2048 * (j & 1)) for j in range(4)]
    A.label("L_h1pre")
    A(f"buffer_load_dword v23, v{TC+9}, s[36:39], s20 offen offset:12 sc1")
    A("s_waitcnt vmcnt(0)")
    A("v_cmp_eq_u32 vcc, s56, v23")
    A("s_bcnt1_i32_b64 s71, vcc")
    A(f"s_cmp_ge_u32 s71, {2*thr1}")
    A("s_cbranch_scc1 L_h1go")
    spin("L_h1pre", slp1)
    A.label("L_h1go")
    gather("L_h1", [[(20, TC + 9, 20, 0)]] + [[g] for g in OG])
    stamp(7)
    A("v_or_b32_sdwa v20, v20, v22 dst_sel:DWORD dst_unused:UNUSED_PAD src0_sel:DWORD src1_sel:BYTE_3")
    dpp("v_max_f32", 22, 20, 20, "quad_perm:[1,0,3,2]")
    for ctl in ("quad_perm:[2,3,0,1]", "row_ror:8"): dpp("v_max_f32", 22, 22, 22, ctl)
    rows_all(22, 23, "v_max_f32")
    A("v_sub_f32 v20, v20, v22")
    A("v_exp_f32 v20, v20")
    A("v_mul_f32 v21, v20, v21")
    fm = []
    for j in range(4):
        for r in range(4):
            op = "v_mul_f32" if j == 0 else "v_fmac_f32"
            fm.append(f"{op}_dpp v{24+r}, v20, v{OB+4*j+r} quad_perm:[{j},{j},{j},{j}] {DPPF}")
    lr = [f"v_add_f32_dpp v21, v21, v21 {c} {DPPF}" for c in ("quad_perm:[1,0,3,2]", "quad_perm:[2,3,0,1]", "row_ror:8")]
    lr += ["v_mov_b32 v22, v21", "v_permlane32_swap_b32 v21, v22", "v_add_f32 v21, v21, v22\nv_mov_b32 v22, v21"]
    for k in range(len(fm)):
        A(fm[k])
        if k % 2 == 1 and k >= 1 and lr: A(lr.pop(0))
    assert not lr
    A("v_permlane16_swap_b32 v21, v22")
    A("v_add_f32 v21, v21, v22")
    A("v_permlane32_swap_b32 v24, v25")
    A("v_permlane32_swap_b32 v26, v27")
    A("v_add_f32 v24, v24, v25")
    A("v_add_f32 v26, v26, v27")
    A("v_rcp_f32 v21, v21")
    A("v_permlane16_swap_b32 v24, v26")
    A("v_add_f32 v24, v24, v26")
    dpp("v_add_f32", 24, 24, 24, "row_ror:8")
    A("v_mul_f32 v20, v24, v21")
    rbf(20, 20)
    def frag(j, src):
        F = FS[j % 3]
        for r in range(4):
            A(f"v_mov_b32_dpp v{F+r}, v{src} row_newbcast:{2*j+(r>>1)} row_mask:0xf bank_mask:{'0x5' if r % 2 == 0 else '0xa'}")
        return F
    def frag2(j):
        F = FS[j % 3]
        for r in range(4):
            q = 2 * j + (r >> 1); second = r & 1
            src, p = (20, q & 3) if (q >> 2) == second else (21, 3 - (q & 3))
            A(f"v_mov_b32_dpp v{F+r}, v{src} quad_perm:[{p},{p},{p},{p}] row_mask:0xf bank_mask:{'0xa' if second else '0x5'}")
        return F
    def gemv16(W, red, pair=True):
        fr = frag2 if pair else (lambda i: frag(i, 20))
        if pair: A(f"v_mov_b32_dpp v21, v20 row_half_mirror {DPPF}")
        Fs = {0: fr(0)}
        for j in range(4):
            if j < 3: Fs[j + 1] = fr(j + 1)
            for v in range(2):
                acc = 10 + 4 * v; b = W + 8 * (4 * v + j)
                A(f"v_smfmac_f32_16x16x64_bf16 v[{acc}:{acc+3}], v[{Fs[j]}:{Fs[j]+3}], v[{b}:{b+7}], v4")
        A("s_mov_b32 exec_hi, 0")
        A(f"ds_write_b128 v{TC+11}, v[10:13] offset:{red}")
        A("s_mov_b32 exec_lo, 0"); A("s_mov_b32 exec_hi, -1")
        A(f"ds_write_b128 v{TC+11}, v[14:17] offset:{red}")
        A("s_mov_b64 exec, -1")
        A("s_waitcnt lgkmcnt(0)")
        A("s_barrier")
    gemv16(WO, L_RED, pair=False)
    A(f"ds_read_b128 v[20:23], v{TC+12} offset:{L_RED}")
    A("s_cmp_eq_u32 s64, 1")
    A("s_waitcnt lgkmcnt(0)")
    rr4(20, 21, 22, 23)
    dpp("v_add_f32", 20, 20, 20, "row_ror:8")
    A("s_mov_b32 exec_lo, 0x00ff00ff"); A("s_mov_b32 exec_hi, 0x00ff00ff")
    rbf(36, 20)
    A("v_min_u32 v36, s60, v36")
    lstore("L_hs", f"buffer_store_short_d16_hi v36, v{TC+6}, s[36:39], s21 offen")
    A("s_mov_b64 exec, -1")
    stamp(8)
    if hw == -1: A("s_waitcnt vmcnt(0)")
    elif hw == -2: A("s_barrier")
    elif hw: A(f"s_sleep {hw}")
    A.label("L_h2")
    A("s_cmp_lg_u32 s69, 2")
    A("s_cbranch_scc1 L_h2f")
    A("s_cmp_lg_u32 s3, 7")
    A("s_cbranch_scc1 L_end")
    A.label("L_h2f")
    for r in list(range(10, 18)) + list(range(56, 60)): A(f"v_mov_b32 v{r}, 0")
    for r in range(4): A(f"v_mov_b32 v{68+r}, 0")
    A("v_mov_b32 v52, 1.0")
    for r in range(4): A(f"v_mov_b32_dpp v{68+r}, v52 quad_perm:[0,0,0,0] row_mask:0xf bank_mask:{'0x5' if r % 2 == 0 else '0xa'}")
    gathers("L_h2", TC + 14, 24)
    stamp(2)
    for r in range(4): A(f"v_add_f32_dpp v20, v{28+r}, v{28+r} row_ror:8 row_mask:{'0x3' if r < 2 else '0xc'} bank_mask:{'0xc' if r & 1 else '0x3'}")
    A(f"v_add_f32 v20, v20, v{TC+13}")
    rbf(20, 20)
    A("s_cmp_eq_u32 s69, 2")
    A("v_mov_b32 v50, v20")
    A("s_cbranch_scc1 L_fin0")
    A("v_readfirstlane_b32 s71, v20")
    A(f"v_mov_b32_dpp v21, v20 row_half_mirror {DPPF}")
    st = ["v_subrev_f32 v25, s71, v20\nv_mov_b32 v24, s71\nv_mul_f32 v26, v25, v25", "v_permlane32_swap_b32 v25, v26\nv_add_f32 v25, v25, v26"]
    st += [f"v_add_f32_dpp v25, v25, v25 {c} {DPPF}" for c in ("quad_perm:[1,0,3,2]", "quad_perm:[2,3,0,1]", "row_ror:8")]
    st += [f"v_add_f32_dpp v25, v25, v25 row_ror:4 {DPPF}\nv_mov_b32 v26, v25", "v_permlane16_swap_b32 v25, v26\nv_add_f32 v25, v25, v26"]
    A(st.pop(0))
    Fs = {0: frag2(0)}
    A(st.pop(0))
    for j in range(4):
        if j < 3: Fs[j + 1] = frag2(j + 1); A(st.pop(0))
        for v in range(2):
            acc = 10 + 4 * v; b = WGU + 8 * (4 * v + j)
            A(f"v_smfmac_f32_16x16x64_bf16 v[{acc}:{acc+3}], v[{Fs[j]}:{Fs[j]+3}], v[{b}:{b+7}], v4")
        if j >= 2: A(st.pop(0))
    assert not st
    A("s_mov_b32 exec_lo, 1"); A("s_mov_b32 exec_hi, 1")
    A(f"ds_write_b64 v{TC+20}, v[24:25] offset:{L_ST}")
    A("s_mov_b32 exec_lo, -1"); A("s_mov_b32 exec_hi, 0")
    A(f"ds_write_b128 v{TC+11}, v[10:13] offset:{L_RED2}")
    A("s_mov_b32 exec_lo, 0"); A("s_mov_b32 exec_hi, -1")
    A(f"ds_write_b128 v{TC+11}, v[14:17] offset:{L_RED2}")
    A("s_mov_b64 exec, -1")
    A("s_waitcnt lgkmcnt(0)")
    A("s_barrier")
    stamp(3)
    A(f"ds_read_b128 v[60:63], v{TC+21} offset:{L_ST}")
    for k in range(4): A(f"ds_read_b128 v[{20+4*k}:{23+4*k}], v{TC+23} offset:{L_RED2+512*k}")
    A("s_waitcnt lgkmcnt(4)")
    A("v_readfirstlane_b32 s71, v60")
    A("v_subrev_f32 v60, s71, v60")
    A("v_fmamk_f32 v64, v60, 0x42800000, v61")
    A("v_add_f32 v61, v61, v64")
    A("v_fma_f32 v62, v60, v61, v63")
    A("s_waitcnt lgkmcnt(0)")
    c3 = ("quad_perm:[1,0,3,2]", "quad_perm:[2,3,0,1]", "row_half_mirror")
    pk = ["v_pk_add_f32 v[20:21], v[20:21], v[24:25]", "v_pk_add_f32 v[22:23], v[22:23], v[26:27]", "v_pk_add_f32 v[28:29], v[28:29], v[32:33]",
          "v_pk_add_f32 v[30:31], v[30:31], v[34:35]", "v_pk_add_f32 v[20:21], v[20:21], v[28:29]", "v_pk_add_f32 v[22:23], v[22:23], v[30:31]"]
    for k in range(3):
        A(pk[2 * k]); dpp("v_add_f32", 64, 64, 64, c3[k]); A(pk[2 * k + 1]); dpp("v_add_f32", 62, 62, 62, c3[k])
    A("v_mul_f32 v64, 0x3b000000, v64")
    A("v_permlane32_swap_b32 v20, v21")
    A("v_permlane32_swap_b32 v22, v23")
    A("v_mul_f32 v62, 0x3b000000, v62")
    A("v_add_f32 v20, v20, v21")
    A("v_add_f32 v22, v22, v23")
    A("v_fma_f32 v62, -v64, v64, v62")
    A("v_max_f32 v62, 0, v62")
    A("v_permlane16_swap_b32 v20, v22")
    A("v_add_f32 v62, 0x3727c5ac, v62")
    A("v_add_f32 v64, s71, v64")
    A("v_rsq_f32 v62, v62")
    A("v_add_f32 v20, v20, v22")
    A("v_fma_f32 v20, -v64, v51, v20")
    A("v_mul_f32 v20, v20, v62")
    dpp("v_mul_f32", 21, 20, 20, "row_ror:8")
    rbf(21, 21)
    Fs = {0: frag(0, 21)}
    for j in range(4):
        if j < 3: Fs[j + 1] = frag(j + 1, 21)
        A(f"v_smfmac_f32_16x16x64_bf16 v[56:59], v[{Fs[j]}:{Fs[j]+3}], v[{WDR[j]}:{WDR[j]+7}], v4")
    A("s_mov_b32 exec_hi, 0")
    A("s_cmp_eq_u32 s64, 1")
    A("v_cvt_pk_bf16_f32 v56, v56, v57"); A("v_cvt_pk_bf16_f32 v57, v58, v59")
    A("v_pk_min_u16 v56, s60, v56"); A("v_pk_min_u16 v57, s60, v57")
    lstore("L_ys", f"buffer_store_dwordx2 v[56:57], v{TC+24}, s[36:39], s18 offen")
    stamp(9)
    A("s_cmp_lg_u32 s3, s68")
    A("s_cbranch_scc1 L_end")
    A("s_mov_b64 exec, -1")
    if yw == -1: A("s_waitcnt vmcnt(0)")
    elif yw: A(f"s_sleep {yw}")
    A("s_branch L_fin")
    A.label("L_fin0")
    A("s_cmp_lg_u32 s77, 28"); A("s_cbranch_scc1 L_fin")
    A("s_mov_b64 exec, 1")
    A("v_mov_b32 v36, s52")
    A("buffer_store_dword v36, v3, s[36:39], 0 offen sc1")
    A("s_mov_b64 exec, -1")
    A.label("L_fin")
    A("s_and_b32 s71, s77, 3"); A("s_lshl_b32 s71, s71, 1"); A("s_lshl_b32 s71, 0x03030303, s71")
    gathers("L_h3", TC + 22, 22)
    stamp(5)
    for r in range(4): A(f"v_add_f32_dpp v{20+(r&1)}, v{28+r}, v{28+r} quad_perm:[2,3,0,1] row_mask:{'0x3' if r < 2 else '0xc'} bank_mask:0xf")
    dpp("v_add_f32", 20, 20, 20, "row_ror:4"); dpp("v_add_f32", 21, 21, 21, "row_ror:4")
    A("v_add_f32_dpp v22, v20, v20 row_ror:8 row_mask:0xf bank_mask:0x3")
    A("v_add_f32_dpp v22, v21, v21 row_ror:8 row_mask:0xf bank_mask:0xc")
    A("v_add_f32 v20, v22, v50")
    rbf(20, 20)
    if diag:
        A("s_waitcnt lgkmcnt(0)")
        A("s_sub_u32 s84, s86, s84"); A(f"s_mul_i32 s84, s84, {diag[2]}"); A("s_add_u32 s84, s84, 6000"); A("s_min_u32 s84, s84, 100000")
        A.label("L_dg1")
        A("s_memrealtime s[82:83]"); A("s_waitcnt lgkmcnt(0)")
        A("s_sub_u32 s82, s82, s80"); A("s_cmp_lt_u32 s82, s84"); A("s_cbranch_scc1 L_dg1")
    A("s_mov_b32 exec_lo, s71"); A("s_mov_b32 exec_hi, s71")
    A(f"buffer_store_short_d16_hi v20, v{TC+25}, s[44:47], 0 offen")
    A("s_branch L_end")
    A.label("L_cs")
    A("v_and_b32 v4, 3, v1"); A("v_mul_u32_u24 v4, 0x5555, v4")
    for r in range(20, 32): A(f"v_mov_b32 v{r}, 0")
    A("v_mov_b32 v32, 1.0")
    A("s_waitcnt vmcnt(0)")
    for r in range(4): A(f"v_mov_b32_dpp v{28+r}, v32 quad_perm:[0,0,0,0] row_mask:0xf bank_mask:{'0x5' if r % 2 == 0 else '0xa'}")
    for j in range(4):
        for v in range(2):
            b = WGU + 8 * (4 * v + j)
            A(f"v_smfmac_f32_16x16x64_bf16 v[{20+4*v}:{23+4*v}], v[28:31], v[{b}:{b+7}], v4")
    A("s_mov_b32 exec_hi, 0")
    A(f"ds_write_b128 v{TC+11}, v[20:23] offset:{L_RED2}")
    A("s_mov_b32 exec_lo, 0"); A("s_mov_b32 exec_hi, -1")
    A(f"ds_write_b128 v{TC+11}, v[24:27] offset:{L_RED2}")
    A("s_mov_b64 exec, -1")
    A("s_branch L_csr")
    for (lab, back) in post:
        A.label(lab); spin(back)
    for (name, text) in post2:
        A.label(f"{name}_g"); A(text + " sc1"); A(f"s_branch {name}_j")
    A.label("L_end")
    if prof:
        A("s_waitcnt vmcnt(0)")
        stamp(10)
        A("s_mov_b64 exec, -1")
        A("s_waitcnt lgkmcnt(0)")
        for i in range(11): A(f"v_writelane_b32 v20, s{80+2*i}, {i}")
        A("v_writelane_b32 v20, s64, 11")
        A("s_getreg_b32 s71, hwreg(HW_REG_XCC_ID)"); A("v_writelane_b32 v20, s71, 12")
        A("s_lshl_b32 s71, s2, 3"); A("s_add_u32 s71, s71, s3"); A("s_lshl_b32 s71, s71, 6"); A(f"s_add_u32 s71, s71, {PROF}")
        A("v_lshlrev_b32 v21, 2, v1")
        A("s_mov_b64 exec, 0xffff")
        A("buffer_store_dword v20, v21, s[36:39], s71 offen")
    A.label("L_exit")
    A("s_endpgm")
    body = A.finish()
    nv = max(A.maxv + 1, 136)
    txt = HEADER + f"; @launch grid=(256,1,1) block=(512,1,1) lds={L_END}\n"
    txt += f'.amdgcn_target "amdgcn-amd-amdhsa--gfx950"\n.text\n.globl {KNAME}\n.p2align 8\n.type {KNAME},@function\n{KNAME}:\n'
    txt += body
    txt += ".fill 256, 4, 0xbf800000\n"
    txt += f'.section .rodata,"a"\n.p2align 6\n.amdhsa_kernel {KNAME}\n  .amdhsa_next_free_vgpr {nv}\n  .amdhsa_next_free_sgpr 102\n'
    txt += f"  .amdhsa_accum_offset {(nv+3)//4*4}\n  .amdhsa_group_segment_fixed_size 0\n  .amdhsa_kernarg_size 96\n  .amdhsa_user_sgpr_count 2\n"
    txt += "  .amdhsa_user_sgpr_kernarg_segment_ptr 1\n  .amdhsa_system_sgpr_workgroup_id_x 1\n  .amdhsa_float_denorm_mode_32 3\n.end_amdhsa_kernel\n"
    return txt

if __name__ == "__main__":
    import argparse
    p = argparse.ArgumentParser(); p.add_argument("-o"); p.add_argument("kv", nargs="*")
    a = p.parse_args()
    kw = {k: eval(v) for k, v in (x.split("=") for x in a.kv)}
    open(a.o, "w").write(gen(**kw))
```

```python
import sys, struct
sys.path.insert(0, "gen")
from asmlib import Asm

KNAME = "sequential_preLN__gqa_block_cached__glu_gated_bilinear__decode_kernel"
HEADER = open("sequential_preLN__gqa_block_cached__glu_gated_bilinear__decode.s.ref").read().split("; Override launch")[0]

XBUF, QBUF, OBUF, HBUF, YBUF, CBUF, MLBUF, WS_END = 0x800, 0x1000, 0x10000, 0xAC000, 0xB0000, 0xD0000, 0x140000, 0x180000
PROF = 0x100000
L_OM, L_ML, L_MX, L_QF, L_TK, L_ST, L_RED, L_RED2, L_HL, L_TB, L_WD, L_S, L_END = 0, 0x4000, 0x4100, 0x4600, 0x4A00, 0x4B00, 0x5000, 0x7000, 0x4C00, 0x9000, 0x9800, 0x19800, 0x21800
DPPF = "row_mask:0xf bank_mask:0xf"
SPIN = 1 << 20
L_MX2 = 0x4200

def gen(NX=4, prof=False, S0=104, offT=48, offF=24, offQ=12, thr1=8, slp1=4, qslp=4, LA=2, t8=128, t4=48, t1=0, b0=8,
        cstride=256, kf='nt', vf='nt', wf='', mlsh=4, cut=0, local=True, pretouch=True, tT=64, diag=0, codepf=True, outpf=True, h2pre=False, opre=None, osf='sc1', ew=8, ewx=0, PS=0, pgap=0, flat2=True, flat3=True, skipoob=True, hw=-2, yw=0, stx=True, noround=0, trace=False, tlbpf=0, tS=0, sm=8, XT=0, W=0, qprof=False, qhold=True, X2=2, NXT=1, wpf=False, wf2=None, wsplit=False):
    A = Asm()
    RA, RX = 56, 88
    WO, WGU = 88, 152
    WDR = [72, 80, 244, 40]
    FS = [232, 6, 252]
    TC = 216
    OOB = 0x1000000
    D0 = (4096 - 32 * S0 + 8 * offQ + 4 * offT) // 4
    assert offF % 4 == 0
    D1 = D0 - offF // 4
    assert LA + D0 + 64 + 64 <= 512
    seen = {}
    def stamp(i):
        if prof: A(f"s_memrealtime s[{80+2*i}:{81+2*i}]")
        seen[i] = seen.get(i, 0) + 1
        if diag:
            if (i, seen[i]) == (0, 1): A("s_memrealtime s[80:81]")
            if diag[0] == (i, seen[i]): A("s_memrealtime s[84:85]")
            if diag[1] == (i, seen[i]): A("s_memrealtime s[86:87]")
    def rr4(a, b, c, d):
        A(f"v_permlane32_swap_b32 v{a}, v{b}")
        A(f"v_permlane32_swap_b32 v{c}, v{d}")
        A(f"v_add_f32 v{a}, v{a}, v{b}")
        A(f"v_add_f32 v{c}, v{c}, v{d}")
        A(f"v_permlane16_swap_b32 v{a}, v{c}")
        A(f"v_add_f32 v{a}, v{a}, v{c}")
    def rows_all(x, t, op):
        A(f"v_mov_b32 v{t}, v{x}")
        A(f"v_permlane32_swap_b32 v{x}, v{t}")
        A(f"{op} v{x}, v{x}, v{t}")
        A(f"v_mov_b32 v{t}, v{x}")
        A(f"v_permlane16_swap_b32 v{x}, v{t}")
        A(f"{op} v{x}, v{x}, v{t}")
    def dpp(op, d, s, o, ctl): A(f"{op}_dpp v{d}, v{s}, v{o} {ctl} {DPPF}")
    def quad_all(x, op):
        dpp(op, x, x, x, "quad_perm:[1,0,3,2]"); dpp(op, x, x, x, "quad_perm:[2,3,0,1]")
    def wave_all(x, t, op):
        quad_all(x, op); dpp(op, x, x, x, "row_ror:8"); dpp(op, x, x, x, "row_ror:4"); rows_all(x, t, op)
    def rbf(d, s): A(f"v_cvt_pk_bf16_f32 v{d}, 0, v{s}")
    def ln_fin(mean, var):
        rbf(var, var)
        rbf(mean, mean)
        A(f"v_add_f32 v{var}, 0x37280000, v{var}")
        rbf(var, var)
        A(f"v_sqrt_f32 v{var}, v{var}")
        rbf(var, var)
        A(f"v_rcp_f32 v{var}, v{var}")
    def ln_stats(vals, mean, rinv, t):
        A(f"v_add_f32 v{mean}, v{vals[0]}, v{vals[1]}")
        A(f"v_add_f32 v{t}, v{vals[2]}, v{vals[3]}")
        A(f"v_add_f32 v{rinv}, v{vals[4]}, v{vals[5]}")
        A(f"v_add_f32 v{mean}, v{mean}, v{t}")
        A(f"v_add_f32 v{t}, v{vals[6]}, v{vals[7]}")
        A(f"v_add_f32 v{rinv}, v{rinv}, v{t}")
        A(f"v_add_f32 v{mean}, v{mean}, v{rinv}")
        wave_all(mean, t, "v_add_f32")
        A(f"v_mul_f32 v{mean}, 0x3b000000, v{mean}")
        for v in vals: A(f"v_sub_f32 v{v}, v{v}, v{mean}")
        A(f"v_mul_f32 v{rinv}, v{vals[0]}, v{vals[0]}")
        A(f"v_mul_f32 v{t}, v{vals[1]}, v{vals[1]}")
        for k in range(2, 8, 2):
            A(f"v_fmac_f32 v{rinv}, v{vals[k]}, v{vals[k]}")
            A(f"v_fmac_f32 v{t}, v{vals[k+1]}, v{vals[k+1]}")
        A(f"v_add_f32 v{rinv}, v{rinv}, v{t}")
        wave_all(rinv, t, "v_add_f32")
        A(f"v_mul_f32 v{rinv}, 0x3b000000, v{rinv}")
        ln_fin(mean, rinv)
    def srd(d, lo, hi, n):
        A(f"s_mov_b32 s{d}, s{lo}"); A(f"s_mov_b32 s{d+1}, s{hi}"); A(f"s_mov_b32 s{d+2}, {hex(n)}"); A(f"s_mov_b32 s{d+3}, 0x20000")
    def spin(label, slp=0):
        A("s_sub_u32 s72, s72, 1")
        A("s_cbranch_scc1 L_end")
        if slp: A(f"s_sleep {slp}")
        A(f"s_branch {label}")
    MREG = [4, 6, 8, 10, 28, 30, 32, 34, 40]
    def gather(name, groups, init_masks=None, check_first=False):
        ng = len(groups)
        for j in range(ng):
            m = -1 if init_masks is None else init_masks[j]; M = MREG[j]
            if m == -1: A(f"s_mov_b64 s[{M}:{M+1}], -1")
            else: A(f"s_mov_b32 s{M}, {hex(m & 0xffffffff)}"); A(f"s_mov_b32 s{M+1}, {hex(m >> 32)}")
        if check_first: A(f"s_branch {name}_chk")
        A.label(f"{name}_rnd")
        for j, g in enumerate(groups):
            M = MREG[j]
            A(f"s_mov_b64 exec, s[{M}:{M+1}]")
            A(f"s_cbranch_execz {name}_i{j}")
            for (r, va, so, imm) in g:
                A(f"buffer_load_dwordx4 v[{r}:{r+3}], v{va}, s[36:39], s{so} offen offset:{imm} sc1")
            A.label(f"{name}_i{j}")
        A.label(f"{name}_chk")
        A("s_mov_b64 s[12:13], 0")
        A("s_waitcnt vmcnt(0)")
        for j, g in enumerate(groups):
            M = MREG[j]
            A(f"s_mov_b64 exec, s[{M}:{M+1}]")
            A(f"s_cbranch_execz {name}_c{j}")
            regs = [r + k for (r, _, _, _) in g for k in range(4)]
            for k, r in enumerate(regs): A(f"v_xor_b32 v{r}, s{53+(k&3)}, v{r}")
            A(f"v_or3_b32 v55, v{regs[0]}, v{regs[1]}, v{regs[2]}")
            rest = regs[3:]
            while len(rest) >= 2:
                A(f"v_or3_b32 v55, v55, v{rest[0]}, v{rest[1]}"); rest = rest[2:]
            A(f"v_or_b32 v55, v55, v{rest[0]}")
            A("v_and_b32 v55, 0xff, v55")
            A(f"v_cmp_ne_u32 s[{M}:{M+1}], 0, v55")
            A(f"s_or_b64 s[12:13], s[12:13], s[{M}:{M+1}]")
            A.label(f"{name}_c{j}")
        A("s_mov_b64 exec, -1")
        A("s_cmp_eq_u64 s[12:13], 0")
        A(f"s_cbranch_scc1 {name}_ok")
        spin(f"{name}_rnd")
        A.label(f"{name}_ok")
    def gatherp(name, groups, raws):
        ng = len(groups)
        for j in range(ng): A(f"s_mov_b64 s[{MREG[j]}:{MREG[j]+1}], -1")
        NL = sum(len(g) for g in groups)
        def issue(rb):
            n = 0
            for j, g in enumerate(groups):
                A(f"s_or_b64 exec, s[{MREG[j]}:{MREG[j]+1}], 1")
                for (r, va, so, imm) in g:
                    A(f"buffer_load_dwordx4 v[{rb+4*n}:{rb+4*n+3}], v{va}, s[36:39], s{so} offen offset:{imm} sc1")
                    n += 1
        for rb in raws: issue(rb)
        A.label(f"{name}_rnd")
        for k, rb in enumerate(raws):
            A("s_mov_b64 s[12:13], 0")
            A(f"s_waitcnt vmcnt({(len(raws)-1)*NL})")
            n = 0
            for j, g in enumerate(groups):
                M = MREG[j]
                A(f"s_mov_b64 exec, s[{M}:{M+1}]")
                A(f"s_cbranch_execz {name}_c{k}_{j}")
                regs = []
                for (r, _, _, _) in g:
                    for e in range(4):
                        A(f"v_xor_b32 v{r+e}, s{53+e}, v{rb+4*n+e}"); regs.append(r + e)
                    n += 1
                A(f"v_or3_b32 v55, v{regs[0]}, v{regs[1]}, v{regs[2]}")
                A(f"v_or_b32 v55, v55, v{regs[3]}")
                A("v_and_b32 v55, 0xff, v55")
                A(f"v_cmp_ne_u32 s[{M}:{M+1}], 0, v55")
                A(f"s_or_b64 s[12:13], s[12:13], s[{M}:{M+1}]")
                A.label(f"{name}_c{k}_{j}")
            A("s_cmp_eq_u64 s[12:13], 0")
            A(f"s_cbranch_scc1 {name}_ok")
            if pgap: A(f"s_sleep {pgap}")
            issue(rb)
        spin(f"{name}_rnd")
        A.label(f"{name}_ok")
        A("s_mov_b64 exec, -1")
    def gatherf(name, loads, last_half=False):
        A.label(f"{name}_rnd")
        for k, (r, va, so, imm) in enumerate(loads):
            if last_half and k == len(loads) - 1:
                for e in range(4): A(f"v_mov_b32 v{r+e}, s{53+e}")
                A("s_mov_b32 exec_hi, 0")
            A(f"buffer_load_dwordx4 v[{r}:{r+3}], v{va}, s[36:39], s{so} offen offset:{imm} sc1")
        if last_half: A("s_mov_b32 exec_hi, -1")
        n = len(loads)
        for k, (r, _, _, _) in enumerate(loads):
            A(f"s_waitcnt vmcnt({n-1-k})")
            for e in range(4): A(f"v_xor_b32 v{r+e}, s{53+e}, v{r+e}")
            if k == 0: A(f"v_or_b32 v55, v{r}, v{r+1}")
            else: A(f"v_or3_b32 v55, v55, v{r}, v{r+1}")
            A(f"v_or3_b32 v55, v55, v{r+2}, v{r+3}")
        A("v_and_b32 v55, 0xff, v55")
        A("v_cmp_ne_u32 vcc, 0, v55")
        A(f"s_cbranch_vccnz {name}_re")
        post.append((f"{name}_re", f"{name}_rnd"))
    def gathers(name, va, so):
        A.label(f"{name}_rnd")
        A(f"buffer_load_dwordx4 v[20:23], v{va}, s[36:39], s{so} offen sc1")
        A(f"buffer_load_dwordx4 v[24:27], v{va}, s[36:39], s{so+1} offen sc1")
        for r in range(4): A(f"v_mov_b32 v{28+r}, 0")
        A("s_waitcnt vmcnt(1)")
        A("v_pk_max_u16 v55, v20, v21"); A("v_pk_max_u16 v53, v22, v23"); A("v_pk_max_u16 v55, v55, v53")
        A("s_waitcnt vmcnt(0)")
        A("v_smfmac_f32_16x16x64_bf16 v[28:31], v[68:71], v[20:27], v4")
        for r in range(24, 28): A(f"v_pk_max_u16 v55, v55, v{r}")
        A("v_pk_max_u16 v55, v55, v55 op_sel:[1,0] op_sel_hi:[0,1]")
        A("v_cmp_eq_u32 vcc, -1, v55")
        A(f"s_cbranch_vccnz {name}_re")
        post.append((f"{name}_re", f"{name}_rnd"))
    post = []; post2 = []
    def lstore(name, text):
        A(f"s_cbranch_scc0 {name}_g")
        A(text)
        A.label(f"{name}_j")
        post2.append((name, text))
    thr = [None]
    def throttle():
        if thr[0] is not None:
            if thr[0] >= W: A(f"s_waitcnt vmcnt({W-1})")
            thr[0] += 1
    def issueK(base, so):
        for j in range(4):
            r = base + 4 * j
            throttle()
            A(f"buffer_load_dwordx4 v[{r}:{r+3}], v2, s[28:31], s{so} offen offset:{1024*j} {kf}")
    def issueV(base, so):
        for j in range(4):
            r = base + 16 + 4 * j
            throttle()
            A(f"buffer_load_dwordx4 v[{r}:{r+3}], v3, s[32:35], s{so} offen offset:{1024*j} {vf}")
    def common_setup():
        A("s_mov_b32 s60, 0x22222222"); A("s_mov_b32 s61, 0x22222222")
        A("s_mov_b32 s62, 0x44444444"); A("s_mov_b32 s63, 0x44444444")
        A("s_mov_b32 s64, 0x88888888"); A("s_mov_b32 s65, 0x88888888")
        A("s_mov_b32 s74, 0x3db504f3"); A("s_mov_b32 s75, 0x3fb8aa3b")
        A(f"s_mov_b32 s72, {SPIN}")
        A("v_mov_b32 v44, 0xffff"); A("v_mov_b32 v45, 0xffff0000")
        A("v_mov_b32 v4, 0"); A("v_mov_b32 v5, 0")
        A("v_cmp_eq_u32 vcc, 0, v47")
        A("v_cndmask_b32 v4, v4, v44, vcc")
        A("v_cndmask_b32 v4, v4, v45, s[60:61]")
        A("v_cndmask_b32 v5, v5, v44, s[62:63]")
        A("v_cndmask_b32 v5, v5, v45, s[64:65]")
        for r in range(10, 18): A(f"v_mov_b32 v{r}, 0")
        A("v_mov_b32 v18, 0xff7fffff"); A("v_mov_b32 v19, 0")
    def k32masks(b):
        A("v_bfe_u32 v51, v1, 2, 1"); A("v_cmp_eq_u32 vcc, 0, v51")
        A(f"v_cndmask_b32 v{b}, 0, v4, vcc"); A(f"v_cndmask_b32 v{b+1}, 0, v5, vcc")
        A(f"v_cndmask_b32 v{b+2}, v4, 0, vcc"); A(f"v_cndmask_b32 v{b+3}, v5, 0, vcc")
    def tags():
        A("s_add_u32 s52, s52, 0x9e3779b9")
        A("s_and_b32 s53, s52, 0xff"); A("s_bfe_u32 s54, s52, 0x80008"); A("s_bfe_u32 s55, s52, 0x80010"); A("s_lshr_b32 s56, s52, 24")
        A("s_and_b32 s57, s52, 0xffff"); A("s_lshr_b32 s58, s52, 16")
    def sum4x4():
        A("v_pk_add_f32 v[20:21], v[20:21], v[24:25]"); A("v_pk_add_f32 v[22:23], v[22:23], v[26:27]")
        A("v_pk_add_f32 v[28:29], v[28:29], v[32:33]"); A("v_pk_add_f32 v[30:31], v[30:31], v[34:35]")
        A("v_pk_add_f32 v[20:21], v[20:21], v[28:29]"); A("v_pk_add_f32 v[22:23], v[22:23], v[30:31]")
        rr4(20, 21, 22, 23)
    def sum2x4():
        A("v_pk_add_f32 v[20:21], v[20:21], v[24:25]"); A("v_pk_add_f32 v[22:23], v[22:23], v[26:27]")
        rr4(20, 21, 22, 23)
    def tr():
        A("s_memrealtime s[96:97]"); A("s_mov_b32 m0, s98"); A("s_waitcnt lgkmcnt(0)"); A("v_writelane_b32 v244, s96, m0"); A("s_add_u32 s98, s98, 1")
    uid = [0]
    def ld4(base, va, srd_, so, fl):
        for j in range(4):
            r = base + 4 * j
            A(f"buffer_load_dwordx4 v[{r}:{r+3}], v{va}, s[{srd_}:{srd_+3}], s{so} offen offset:{1024*j} {fl}")
    def draw():
        A("s_mov_b64 exec, 1")
        A("ds_add_rtn_u32 v54, v52, v53")
        A("s_mov_b64 exec, -1")
    def qk(KB):
        for j in range(4):
            A(f"v_mfma_f32_16x16x32_bf16 v[{20+4*j}:{23+4*j}], v[{KB+4*j}:{KB+4*j+3}], v[6:9], 0")
    def extract():
        D = lambda j, r: 20 + 4 * (j & 3) + r
        for rho in range(4): A(f"v_cndmask_b32 v{44+rho}, v{D(rho,0)}, v{D(rho+1,1)}, s[60:61]")
        for rho in range(4): A(f"v_cndmask_b32 v{44+rho}, v{44+rho}, v{D(rho+2,2)}, s[62:63]")
        for rho in (1, 2, 3, 0): A(f"v_cndmask_b32 v{44+rho}, v{44+rho}, v{D(rho+3,3)}, s[64:65]")
        for rho in range(1, 4):
            qp = ",".join(str((q - rho) & 3) for q in range(4))
            dpp("v_add_f32", 44, 44 + rho, 44, f"quad_perm:[{qp}]")
        rbf(44, 44)
        A("v_mul_f32 v44, s74, v44")
        rbf(44, 44)
        A("v_mul_f32 v44, s75, v44")
    def keep(off):
        A(f"ds_write_b32 v48, v44 offset:{off}")
        A("v_max_f32 v18, v18, v44")
    def pfrag(z):
        A(f"v_sub_f32 v44, v{z}, v18")
        A("v_exp_f32 v44, v44")
        A("v_cvt_pk_bf16_f32 v45, v44, v44")
        A("v_add_f32 v19, v19, v44")
        for j in range(4):
            dpp("v_and_b32", 36 + 2 * j, 45, 4, f"quad_perm:[{j},{j},{j},{j}]")
            dpp("v_and_b32", 37 + 2 * j, 45, 5, f"quad_perm:[{j},{j},{j},{j}]")
    def pv(VB):
        for j in range(4):
            A(f"v_mfma_f32_16x16x16_bf16 v[10:13], v[{36+2*j}:{37+2*j}], v[{VB+4*j}:{VB+4*j+1}], v[10:13]")
            A(f"v_mfma_f32_16x16x16_bf16 v[14:17], v[{36+2*j}:{37+2*j}], v[{VB+4*j+2}:{VB+4*j+3}], v[14:17]")
    def unitK(base, so):
        ld4(base, 2, 28, so, kf); ld4(base + 16, 244, 28, so, kf)

    A("s_cmp_ge_u32 s2, 256")
    A("s_cbranch_scc1 L_exit")
    A("s_load_dwordx16 s[4:19], s[0:1], 0")
    A("s_load_dwordx8 s[20:27], s[0:1], 64")
    stamp(0)
    if XT: A(f"s_xor_b32 s2, s2, {XT}")
    A("v_and_b32 v1, 63, v0")
    A("v_lshrrev_b32 v44, 6, v0")
    A("v_lshlrev_b32 v3, 4, v1")
    A("v_readfirstlane_b32 s3, v44")
    A("v_bfe_u32 v45, v1, 2, 2")
    A("v_lshrrev_b32 v46, 4, v1")
    A("v_and_b32 v47, 3, v1")
    A("v_lshlrev_b32 v2, 8, v45")
    A("v_lshl_add_u32 v2, v46, 6, v2")
    A("v_lshl_add_u32 v2, v47, 4, v2")
    A("v_add_u32 v244, 4096, v2")
    A("s_lshr_b32 s77, s2, 3"); A("s_and_b32 s76, s77, 7"); A("s_and_b32 s73, s2, 7"); A("s_lshr_b32 s78, s2, 6")
    A("s_lshl3_add_u32 s79, s78, s73")
    A("s_cmp_ge_u32 s76, 4"); A(f"s_cselect_b32 s67, {D0-D1}, 0"); A(f"s_sub_u32 s67, {D0}, s67")
    assert S0 - offT - offQ - LA >= 2 * (8 + 7 * NXT) and S0 - offQ - LA >= 2 * (8 + 7 * NX) and offT + offQ <= 64
    assert (S0 - LA) % 2 == 0 and offT % 2 == 0 and offQ % 2 == 0 and S0 * 256 <= L_END - L_S
    A(f"s_mul_i32 s59, s78, {8*S0-offT-2*offQ}"); A(f"s_mul_i32 s71, s73, {S0}"); A("s_add_u32 s59, s59, s71")
    A("s_cmp_ge_u32 s77, 28"); A(f"s_cselect_b32 s68, {offT-offF+offQ}, {offT+offQ}")
    A("s_cmp_eq_u32 s73, 0"); A("s_cselect_b32 s71, 0, s68"); A("s_cselect_b32 s70, s68, 0"); A("s_sub_u32 s59, s59, s71")
    A(f"s_cmp_gt_u32 s73, {X2}"); A(f"s_cselect_b32 s71, {offQ}, 0"); A("s_sub_u32 s59, s59, s71")
    A(f"s_cmp_eq_u32 s73, {X2}"); A(f"s_cselect_b32 s70, {offQ}, s70"); A("s_cselect_b32 s65, 1, 0")
    A(f"s_sub_u32 s70, {S0-LA}, s70")
    A("s_lshl_b32 s59, s59, 12"); A("s_lshl_b32 s70, s70, 12")
    A("s_lshl_b32 s66, s3, 13"); A("s_add_u32 s66, s66, s59")
    A("s_lshl_b32 s71, s76, 24")
    A(f"s_mov_b32 s30, {OOB}"); A("s_mov_b32 s31, 0x20000"); A(f"s_mov_b32 s34, {OOB}"); A("s_mov_b32 s35, 0x20000")
    A(f"s_cmp_lg_u32 s70, {(S0-LA)*4096}")
    A("s_cbranch_scc1 L_qprod")
    A("s_waitcnt lgkmcnt(0)")
    A("s_add_u32 s28, s6, s71"); A("s_addc_u32 s29, s7, 0")
    A("s_add_u32 s32, s8, s71"); A("s_addc_u32 s33, s9, 0")
    A("s_load_dword s52, s[26:27], 0")
    A("s_cmp_eq_u32 s3, 0")
    A("s_cbranch_scc1 L_w0")
    if wpf:
        A(f"s_cmp_gt_u32 s73, {X2}"); A("s_subb_u32 s73, s73, 1"); A("s_mul_i32 s68, s77, 6"); A("s_add_u32 s73, s73, s68")
        A("s_mul_i32 s73, s73, 7"); A("s_add_u32 s73, s73, s3"); A("s_sub_u32 s73, s73, 1"); A("s_lshl_b32 s73, s73, 10")
        A("v_add_u32 v48, s73, v3")
        for k in range(1, 4): A(f"v_add_u32 v{48+k}, {k*1344*1024}, v48")
        n = 0
        for (lo, size) in ((12, 4 << 20), (16, 512 * 3584), (18, 512 * 3584), (20, 1792 * 1024)):
            d = 40 + 4 * (n & 1); n += 1
            srd(d, lo, lo + 1, size)
            for k in range(4 if lo == 12 else 2):
                A(f"buffer_load_dwordx4 v[{RA}:{RA+3}], v{48+k}, s[{d}:{d+3}], 0 offen")
    A.label("L_ring")
    unitK(RA, 66)
    A(f"s_add_u32 s68, s66, {7*8192}")
    for k in range(NX):
        if k == NXT:
            A("s_and_b32 s71, s2, 7"); A("s_cbranch_scc0 L_ringe")
        unitK(RX + 32 * k, 68)
        if k < NX - 1: A(f"s_add_u32 s68, s68, {7*8192}")
    A.label("L_ringe")
    thr[0] = None
    srd(48, 4, 5, 1024)
    srd(36, 26, 27, WS_END)
    common_setup()
    A("s_waitcnt lgkmcnt(0)")
    tags()
    stamp(1)
    A("s_barrier")
    A("s_branch L_qj")
    A.label("L_qprod")
    A("v_lshrrev_b32 v44, 3, v1"); A("v_and_b32 v45, 7, v1")
    A("v_lshlrev_b32 v50, 16, v44")
    A("v_lshl_add_u32 v50, v45, 4, v50")
    A("v_lshlrev_b32 v51, 4, v44")
    A("s_lshl1_add_u32 s69, s78, s65"); A("s_lshl3_add_u32 s69, s76, s69")
    A("s_lshl_b32 s68, s69, 7"); A("s_lshl_b32 s73, s3, 19"); A("s_add_u32 s68, s68, s73")
    A("s_lshl_b32 s73, s3, 7")
    A("s_mov_b32 s50, 1024"); A("s_mov_b32 s51, 0x20000"); A(f"s_mov_b32 s42, {4<<20}"); A("s_mov_b32 s43, 0x20000")
    for i in range(1, 8): A(f"v_add_u32 v{35+i}, {8192*i}, v50")
    A("s_waitcnt lgkmcnt(0)")
    A("s_mov_b32 s48, s4"); A("s_mov_b32 s49, s5"); A("s_mov_b32 s40, s10"); A("s_mov_b32 s41, s11")
    A("buffer_load_dwordx4 v[52:55], v3, s[48:51], 0 offen")
    A("buffer_load_dwordx4 v[32:35], v51, s[48:51], s73 offen")
    for i in range(8):
        va = 50 if i == 0 else 35 + i
        A(f"buffer_load_dwordx4 v[{RA+4*i}:{RA+4*i+3}], v{va}, s[40:43], s68 offen {wf}")
    A("s_load_dword s52, s[26:27], 0")
    A("s_add_u32 s28, s6, s71"); A("s_addc_u32 s29, s7, 0")
    A("s_add_u32 s32, s8, s71"); A("s_addc_u32 s33, s9, 0")
    A("s_cmp_lg_u32 s3, 0"); A("s_cbranch_scc1 L_nz")
    A("s_cmp_lg_u32 s65, 0"); A("s_cbranch_scc1 L_nz")
    A(f"s_mul_i32 s73, s77, {cstride}"); A(f"s_add_u32 s73, s73, {CBUF}")
    A("v_mov_b32 v49, s73"); A("v_mov_b32 v48, 0")
    A("s_mov_b64 exec, 1")
    A("global_store_dword v49, v48, s[26:27] sc1")
    A("s_mov_b64 exec, -1")
    A.label("L_nz")
    A("v_lshrrev_b32 v49, 5, v1"); A("v_and_b32 v44, 1, v46")
    A("v_lshlrev_b32 v48, 8, v49"); A("v_lshl_add_u32 v48, v45, 5, v48"); A("v_lshl_add_u32 v48, v44, 4, v48")
    A("s_lshl_b32 s73, s3, 9"); A("v_add_u32 v48, s73, v48")
    common_setup()
    k32masks(6)
    if qprof: A("s_memrealtime s[90:91]")
    A("s_waitcnt vmcnt(8)")
    if qprof: A("s_memrealtime s[92:93]")
    for k in range(4):
        A(f"v_lshlrev_b32 v{36+2*k}, 16, v{52+k}")
        A(f"v_and_b32 v{37+2*k}, 0xffff0000, v{52+k}")
    for k in range(4):
        A(f"v_lshlrev_b32 v{20+2*k}, 16, v{32+k}")
        A(f"v_and_b32 v{21+2*k}, 0xffff0000, v{32+k}")
    ln_stats(list(range(36, 44)), 44, 45, 51)
    for k in range(8): A(f"v_sub_f32 v{20+k}, v{20+k}, v44")
    for k in range(8): rbf(20 + k, 20 + k)
    for k in range(8): A(f"v_mul_f32 v{20+k}, v{20+k}, v45")
    for k in range(8): A(f"v_cvt_pk_bf16_f32 v{20+k}, v{20+k}, v{20+k}")
    for i in range(8):
        for r in range(4): A(f"v_and_b32 v{RX+4*i+r}, v{20+i}, v{6+r}")
    A("s_waitcnt vmcnt(0)")
    if qprof: A("s_memrealtime s[98:99]")
    for i in range(8):
        c = "0" if i == 0 else "v[28:31]"
        A(f"v_mfma_f32_16x16x32_bf16 v[28:31], v[{RX+4*i}:{RX+4*i+3}], v[{RA+4*i}:{RA+4*i+3}], {c}")
    A("s_mov_b32 exec_lo, 0x00ff00ff"); A("s_mov_b32 exec_hi, 0xff00ff00")
    A(f"ds_write_b128 v48, v[28:31] offset:{L_RED}")
    A("s_mov_b64 exec, -1")
    A("s_waitcnt lgkmcnt(0)")
    A("s_barrier")
    A("s_cmp_lg_u32 s3, 0")
    A("s_cbranch_scc1 L_ringb" if qhold else "s_cbranch_scc1 L_ring")
    A("s_setprio 3")
    A("v_and_b32 v50, 15, v1"); A("v_lshlrev_b32 v49, 10, v46"); A("v_lshl_add_u32 v49, v50, 4, v49")
    for k in range(4): A(f"ds_read_b128 v[{20+4*k}:{23+4*k}], v49 offset:{L_RED+256*k}")
    srd(36, 26, 27, WS_END)
    tags()
    A("v_and_b32 v45, 1, v46"); A("v_lshlrev_b32 v45, 1, v45"); A("v_lshrrev_b32 v44, 1, v46"); A("v_or_b32 v45, v45, v44")
    A("v_lshl_add_u32 v45, v50, 2, v45"); A("v_lshlrev_b32 v45, 2, v45")
    A("v_mov_b32 v49, s57"); A("v_mov_b32 v51, s58")
    A("v_cmp_eq_u32 vcc, 0, v44")
    A("v_cndmask_b32 v49, v51, v49, vcc")
    A("s_lshl_b32 s71, s69, 8"); A(f"s_add_u32 s71, s71, {QBUF}")
    A("s_waitcnt lgkmcnt(0)")
    sum4x4()
    rbf(20, 20)
    A("v_or_b32 v20, v20, v49")
    A("buffer_store_dword v20, v45, s[36:39], s71 offen sc1")
    stamp(2)
    if qhold: A("s_barrier")
    if qprof: A("s_waitcnt vmcnt(0)"); A("s_memrealtime s[96:97]")
    A("s_branch L_w0b")
    if qhold:
        A.label("L_ringb")
        A("s_barrier")
        A("s_branch L_ring")
    A.label("L_w0")
    A("s_setprio 3")
    srd(48, 4, 5, 1024)
    srd(36, 26, 27, WS_END)
    common_setup()
    A("s_waitcnt lgkmcnt(0)")
    tags()
    A.label("L_w0b")
    A("s_and_b32 s71, s2, 7"); A(f"s_cselect_b32 s71, {8+7*NX}, {8+7*NXT}"); A("s_lshl_b32 s71, s71, 13")
    A(f"v_mov_b32 v52, {L_TK}"); A("v_mov_b32 v48, s71")
    A("ds_write_b32 v52, v48")
    for r in range(4): A(f"v_mov_b32 v{24+r}, -1")
    A(f"ds_write_b128 v3, v[24:27] offset:{L_TB}")
    A(f"ds_write_b128 v3, v[24:27] offset:{L_TB+1024}")
    A("s_add_u32 s73, s59, s70")
    A("v_lshlrev_b32 v28, 12, v1"); A("v_add_u32 v28, s73, v28"); A("v_lshlrev_b32 v29, 2, v1")
    A("v_cmp_eq_u32 vcc, 0, v1"); A("v_addc_co_u32 v28, vcc, 0, v28, vcc")
    A(f"s_mov_b64 exec, {(1 << LA) - 1}")
    A(f"ds_write_b32 v29, v28 offset:{L_TB}")
    A("s_mov_b64 exec, -1")
    A("v_lshlrev_b32 v44, 1, v2")
    A("s_lshl_b32 s71, s76, 11"); A(f"s_add_u32 s71, s71, {QBUF}")
    A("s_add_u32 s14, s26, s71"); A("s_addc_u32 s15, s27, 0")
    A.label("L_qhint")
    for k in range(8): A(f"s_load_dword s{40+k}, s[14:15], {256*k} glc")
    A("s_waitcnt lgkmcnt(0)")
    for k in range(8): A(f"s_xor_b32 s{40+k}, s{40+k}, s57")
    for k in range(1, 8): A(f"s_or_b32 s40, s40, s{40+k}")
    A("s_and_b32 s40, s40, 0xffff")
    A("s_cbranch_scc0 L_qpoll")
    spin("L_qhint", qslp)
    A.label("L_qpoll")
    if qprof: A("s_memrealtime s[94:95]")
    A("buffer_load_dwordx4 v[20:23], v44, s[36:39], s71 offen sc1")
    A("buffer_load_dwordx4 v[24:27], v44, s[36:39], s71 offen offset:16 sc1")
    A("s_mov_b32 s73, 0x07060302")
    A("s_waitcnt vmcnt(0)")
    for e in range(8): A(f"v_xor_b32 v{20+e}, s{57+(e&1)}, v{20+e}")
    A("v_or3_b32 v45, v20, v21, v22"); A("v_or3_b32 v45, v45, v23, v24"); A("v_or3_b32 v45, v45, v25, v26"); A("v_or_b32 v45, v45, v27")
    A("v_and_b32 v45, 0xffff, v45")
    A("v_cmp_ne_u32 vcc, 0, v45")
    A("s_cbranch_vccz L_q_ok")
    spin("L_qpoll")
    A.label("L_q_ok")
    for k in range(4): A(f"v_perm_b32 v{6+k}, v{21+2*k}, v{20+2*k}, s73")
    A(f"ds_write_b128 v3, v[6:9] offset:{L_QF}")
    A("s_waitcnt lgkmcnt(0)")
    stamp(1)
    A("s_barrier")
    unitK(RA, 66)
    A("s_setprio 0")
    A.label("L_qj")
    A(f"ds_read_b128 v[6:9], v3 offset:{L_QF}")
    A(f"v_mov_b32 v52, {L_TK}"); A("v_mov_b32 v53, 8192")
    A("s_mov_b32 s69, 3"); A("s_mov_b32 s11, 0"); A("s_lshl_b32 s10, s70, 1")
    A("v_add_u32 v245, 4096, v3")
    A("s_lshr_b32 s71, s59, 4"); A(f"s_sub_u32 s71, {L_S}, s71"); A("v_lshl_add_u32 v246, v1, 2, s71")
    if trace: A("s_mov_b32 s98, 0"); A("v_mov_b32 v244, 0")
    A(f"s_mul_i32 s58, s77, {cstride}"); A(f"s_add_u32 s58, s58, {CBUF}")
    A("s_sub_u32 s57, 4, s78"); A("s_mul_i32 s57, s57, s67"); A("s_sub_u32 s57, 4096, s57"); A("s_lshl_b32 s57, s57, 12")
    if ew < 8:
        A(f"s_sub_u32 s101, s67, {ewx}"); A("s_lshl_b32 s101, s101, 12"); A("s_add_u32 s101, s101, s57")
        A(f"s_cmp_ge_u32 s3, {ew}"); A("s_cselect_b32 s101, s101, -1")
    stamp(3)
    A.label("L_k")
    draw()
    A("s_lshr_b32 s73, s66, 4"); A("v_add_u32 v48, s73, v246")
    A("s_waitcnt vmcnt(4) lgkmcnt(0)")
    A("v_readfirstlane_b32 s71, v54")
    qk(RA)
    A("s_add_u32 s66, s71, s59")
    A("s_cmp_ge_u32 s71, s70")
    A("s_cbranch_scc1 L_k2v0")
    ld4(RA, 2, 28, 66, kf)
    A.label("L_k0r")
    extract(); keep(0)
    A("s_waitcnt vmcnt(4)")
    qk(RA + 16)
    A("s_cmp_lg_u32 s11, 0")
    A("s_cbranch_scc1 L_k2v1")
    ld4(RA + 16, 244, 28, 66, kf)
    A.label("L_k1r")
    extract(); keep(256)
    A("s_cmp_eq_u32 s69, 3")
    A("s_cbranch_scc1 L_first")
    A.label("L_kn")
    A("s_cmp_eq_u32 s11, 0")
    A("s_cbranch_scc1 L_k")
    quad_all(18, "v_max_f32")
    rows_all(18, 49, "v_max_f32")
    A(f"ds_write_b32 v{TC+2}, v18 offset:{L_MX2}")
    if wsplit:
        A("s_cmp_lg_u32 s69, 0")
        A("s_cbranch_scc1 L_setup2")
        A.label("L_s2r")
    A(f"v_and_b32 v49, 0x60, v{TC+2}")
    A("s_waitcnt lgkmcnt(0)")
    A("s_barrier")
    A(f"ds_read_b128 v[20:23], v49 offset:{L_MX2}")
    A(f"ds_read_b128 v[24:27], v49 offset:{L_MX2+16}")
    A("s_waitcnt lgkmcnt(0)")
    A("v_max3_f32 v18, v20, v21, v22"); A("v_max3_f32 v18, v18, v23, v24"); A("v_max3_f32 v18, v18, v25, v26"); A("v_max_f32 v18, v18, v27")
    A.label("L_v")
    draw()
    A("s_lshr_b32 s73, s66, 4"); A("v_add_u32 v48, s73, v246")
    A("ds_read2_b32 v[20:21], v48 offset0:0 offset1:64")
    A("s_waitcnt lgkmcnt(0)")
    A("v_readfirstlane_b32 s71, v54")
    pfrag(20)
    A("s_waitcnt vmcnt(4)")
    pv(RA)
    A("s_add_u32 s66, s71, s59"); A("s_sub_u32 s66, s66, s70")
    A("s_cmp_ge_u32 s71, s10")
    A("s_cbranch_scc1 L_v2c")
    ld4(RA, 3, 32, 66, vf)
    pfrag(21)
    A("s_waitcnt vmcnt(4)")
    pv(RA + 16)
    ld4(RA + 16, 245, 32, 66, vf)
    A("s_branch L_v")
    A.label("L_k2v0")
    A("s_sub_u32 s66, s66, s70"); A("s_mov_b32 s11, 1")
    ld4(RA, 3, 32, 66, vf)
    A("s_branch L_k0r")
    A.label("L_k2v1")
    ld4(RA + 16, 245, 32, 66, vf)
    A("s_branch L_k1r")
    A.label("L_v2c")
    A("s_mov_b32 s11, 2")
    A("s_branch L_dyn")
    A.label("L_vc0")
    A("s_mov_b32 s11, 3")
    ld4(RA, 2, 28, 66, kf)
    pfrag(21)
    A("s_waitcnt vmcnt(4)")
    pv(RA + 16)
    ld4(RA + 16, 3, 32, 66, vf)
    A("s_cmp_ge_u32 s66, s30")
    A("s_cbranch_scc1 L_done")
    A.label("L_loop")
    draw()
    A("s_waitcnt vmcnt(4) lgkmcnt(0)")
    A("v_readfirstlane_b32 s71, v54")
    qk(RA)
    A("s_branch L_dyn")
    A.label("L_go")
    ld4(RA, 2, 28, 66, kf)
    A.label("L_gox")
    extract()
    A("v_cmp_gt_f32 vcc, v44, v18")
    A("s_cbranch_vccz L_nors")
    A("v_max_f32 v45, v44, v18")
    quad_all(45, "v_max_f32")
    rows_all(45, 46, "v_max_f32")
    A("v_sub_f32 v46, v18, v45")
    A("v_exp_f32 v46, v46")
    A("v_mov_b32 v18, v45")
    A("v_mul_f32 v19, v19, v46")
    for h in range(4): A(f"v_mov_b32_dpp v47, v46 row_newbcast:{4*h} row_mask:{hex(1<<h)} bank_mask:0xf")
    for r in range(10, 18): A(f"v_mul_f32 v{r}, v{r}, v47")
    A.label("L_nors")
    pfrag(44)
    A("s_cmp_ge_u32 s66, s30")
    A("s_cbranch_scc1 L_last")
    A("s_waitcnt vmcnt(4)")
    pv(RA + 16)
    ld4(RA + 16, 3, 32, 66, vf)
    A("s_branch L_loop")
    A.label("L_first")
    A("s_mov_b32 s69, 0")
    A("s_cmp_eq_u32 s3, 0")
    A("s_cbranch_scc1 L_setup")
    A("s_lshl_b32 s71, s3, 9"); A(f"s_add_u32 s71, s71, {L_S}"); A("v_lshl_add_u32 v48, v1, 2, s71")
    A("s_waitcnt vmcnt(8)")
    for k in range(NX):
        if k == NXT:
            A("s_and_b32 s71, s2, 7"); A("s_cbranch_scc0 L_setup")
        for hf in range(2):
            qk(RX + 32 * k + 16 * hf); extract(); keep((7 + 7 * k) * 512 + 256 * hf)
    A.label("L_setup")
    A("v_lshrrev_b32 v46, 4, v1"); A("v_and_b32 v47, 3, v1"); A("v_bfe_u32 v45, v1, 2, 2"); A("v_and_b32 v50, 15, v1")
    A("v_and_b32 v48, 1, v46"); A("v_lshlrev_b32 v48, 1, v48"); A("v_lshrrev_b32 v49, 1, v46"); A("v_or_b32 v48, v48, v49")
    A("s_lshl_b32 s71, s3, 11"); A(f"v_lshlrev_b32 v{TC}, 5, v1"); A(f"v_add_u32 v{TC}, s71, v{TC}")
    A("s_lshl_b32 s71, s3, 3"); A(f"v_lshlrev_b32 v{TC+1}, 6, v45"); A(f"v_add_u32 v{TC+1}, s71, v{TC+1}")
    A(f"v_lshrrev_b32 v{TC+2}, 1, v{TC+1}")
    A("s_lshl_b32 s71, s3, 8"); A(f"v_lshlrev_b32 v{TC+3}, 12, v46"); A(f"v_lshl_add_u32 v{TC+3}, v50, 4, v{TC+3}"); A(f"v_add_u32 v{TC+3}, s71, v{TC+3}")
    A("s_lshr_b32 s71, s3, 1"); A("s_lshl_b32 s73, s71, 6"); A(f"v_lshlrev_b32 v{TC+4}, 4, v46"); A(f"v_add_u32 v{TC+4}, s73, v{TC+4}")
    A("s_lshl_b32 s73, s71, 5"); A(f"v_mov_b32 v{TC+5}, s73")
    A(f"v_lshl_add_u32 v{TC+6}, v50, 2, v48"); A(f"v_lshlrev_b32 v{TC+6}, 1, v{TC+6}")
    A("s_lshl_b32 s0, s76, 16"); A("s_lshl_b32 s73, s79, 11"); A("s_add_u32 s0, s0, s73")
    A("s_lshl_b32 s73, s3, 8"); A("s_add_u32 s0, s0, s73"); A(f"s_add_u32 s0, s0, {OBUF}")
    A("s_lshr_b32 s73, s3, 1"); A("s_lshl2_add_u32 s1, s76, s73"); A("s_lshl_b32 s1, s1, 5"); A("s_add_u32 s1, s1, s79")
    A(f"s_lshl_b32 s1, s1, {mlsh}"); A(f"s_add_u32 s1, s1, {MLBUF}")
    A(f"v_lshlrev_b32 v{TC+10}, 2, v1")
    A(f"v_lshlrev_b32 v{TC+27}, 3, v47"); A(f"v_lshrrev_b32 v{TC+27}, v{TC+27}, s52"); A(f"v_and_b32 v{TC+27}, 0xff, v{TC+27}")
    if opre is not None:
        A(f"buffer_load_dword v44, v{TC+10}, s[36:39], s0 offen {opre}")
        A("s_mov_b64 exec, 1")
        A(f"buffer_load_dword v45, v3, s[36:39], s1 offen {opre}")
        A("s_mov_b64 exec, -1")
        A("s_waitcnt vmcnt(0)")
    if tlbpf:
        A("s_cmp_lg_u32 s3, 0"); A("s_cbranch_scc1 L_notlb")
        A(f"v_lshlrev_b32 v44, {tlbpf}, v1")
        A(f"s_mov_b64 exec, {(1 << ((1 << (20 - tlbpf)) + 1)) - 1}")
        A("buffer_load_dword v245, v44, s[28:31], s57 offen nt")
        A("buffer_load_dword v246, v44, s[32:35], s57 offen nt")
        A("s_mov_b64 exec, -1")
        A.label("L_notlb")
    A("s_and_b32 s71, s2, 7")
    A("s_cbranch_scc1 L_kn")
    A("s_mov_b32 s69, 2")
    A("s_getreg_b32 s78, hwreg(HW_REG_XCC_ID, 0, 4)"); A("s_lshl_b32 s78, s78, 8")
    A("s_cmp_lg_u32 s3, 0"); A("s_cbranch_scc1 L_nox")
    for r in range(4): A(f"v_mov_b32 v{24+r}, -1")
    A("s_cmp_ge_u32 s77, 28"); A("s_cselect_b32 s71, 0, -1")
    for r in range(4): A(f"v_mov_b32 v{28+r}, s71")
    A("s_lshl_b32 s71, s77, 11"); A(f"s_add_u32 s71, s71, {YBUF}")
    A("buffer_store_dwordx4 v[28:31], v3, s[36:39], s71 offen sc1")
    A("buffer_store_dwordx4 v[28:31], v3, s[36:39], s71 offen offset:1024 sc1")
    A("s_lshl_b32 s71, s77, 9"); A(f"s_add_u32 s71, s71, {HBUF}")
    A("s_mov_b32 exec_hi, 0")
    A("buffer_store_dwordx4 v[24:27], v3, s[36:39], s71 offen sc1")
    A("s_mov_b32 exec_hi, -1")
    A("s_waitcnt vmcnt(0)")
    A("s_or_b32 s71, s78, s53")
    A("v_mov_b32 v20, s71"); A("v_mov_b32 v21, s54"); A("v_mov_b32 v22, s55"); A("v_mov_b32 v23, s56")

    A("s_lshl_b32 s71, s77, 4"); A(f"s_add_u32 s71, s71, {XBUF}")
    A("s_mov_b64 exec, 1")
    A("buffer_store_dwordx4 v[20:23], v3, s[36:39], s71 offen sc1")
    A("s_mov_b64 exec, -1")
    A.label("L_nox")
    srd(40, 12, 13, 4 << 20)
    A("s_lshr_b32 s68, s77, 1")
    A("s_lshl_b32 s71, s68, 18"); A("s_lshr_b32 s73, s3, 1"); A("s_lshl_b32 s73, s73, 16"); A("s_add_u32 s71, s71, s73")
    A("s_and_b32 s73, s3, 1"); A("s_lshl_b32 s73, s73, 10"); A("s_add_u32 s71, s71, s73")
    A("s_and_b32 s73, s77, 1"); A("s_lshl_b32 s73, s73, 9"); A("s_add_u32 s71, s71, s73")
    A("v_lshlrev_b32 v44, 4, v50"); A("v_lshl_add_u32 v45, v48, 13, v44"); A("v_lshl_add_u32 v44, v48, 11, v44")
    for jl in range(2):
        for half in range(2):
            for jh in range(2):
                for c2 in range(2):
                    r = WO + 8 * (4 * c2 + 2 * jh + jl) + 4 * half
                    A(f"buffer_load_dwordx4 v[{r}:{r+3}], v45, s[40:43], s71 offen offset:{2048*jh+256*c2} {wf}")
            if (jl, half) != (1, 1): A(f"s_add_u32 s71, s71, {4096 if half == 0 else 32768-4096}")
    A("v_and_b32 v51, 7, v1"); A("v_bfe_u32 v49, v1, 3, 1")
    A(f"v_lshl_add_u32 v{TC+25}, v48, 1, v49"); A(f"v_lshl_add_u32 v{TC+25}, v51, 3, v{TC+25}")
    A("s_lshl_b32 s71, s3, 6"); A(f"v_add_lshl_u32 v{TC+25}, v{TC+25}, s71, 1")
    A(f"buffer_load_ushort v{TC+13}, v{TC+25}, s[48:51], 0 offen")
    A("v_and_b32 v51, 7, v1"); A("v_and_b32 v45, 1, v46"); A("v_lshrrev_b32 v49, 5, v1")
    A(f"v_lshrrev_b32 v{TC+9}, 3, v1")
    A(f"v_lshlrev_b32 v{TC+8}, 13, v{TC+9}"); A(f"v_lshl_add_u32 v{TC+8}, v51, 4, v{TC+8}")
    A(f"v_lshl_add_u32 v{TC+9}, v{TC+9}, 2, v47"); A(f"v_lshlrev_b32 v{TC+9}, {mlsh}, v{TC+9}")
    A(f"v_lshlrev_b32 v{TC+24}, 4, v45"); A(f"v_lshl_add_u32 v{TC+24}, v50, 5, v{TC+24}")
    A(f"v_lshl_add_u32 v{TC+11}, v49, 9, v{TC+24}"); A("s_lshl_b32 s71, s3, 10"); A(f"v_add_u32 v{TC+11}, s71, v{TC+11}")
    A(f"v_lshrrev_b32 v{TC+24}, 1, v{TC+24}")
    A(f"v_lshrrev_b32 v{TC+14}, 3, v1"); A(f"v_lshlrev_b32 v{TC+14}, 10, v{TC+14}"); A(f"v_lshl_add_u32 v{TC+14}, v51, 4, v{TC+14}")
    A(f"v_lshrrev_b32 v{TC+12}, 3, v1"); A(f"v_lshlrev_b32 v{TC+12}, 10, v{TC+12}"); A(f"v_lshl_add_u32 v{TC+12}, v51, 4, v{TC+12}"); A("s_lshl_b32 s71, s3, 7"); A(f"v_add_u32 v{TC+12}, s71, v{TC+12}")
    A("s_lshl_b32 s71, s3, 4"); A(f"v_lshlrev_b32 v{TC+20}, 3, v49"); A(f"v_add_u32 v{TC+20}, s71, v{TC+20}"); A(f"v_lshlrev_b32 v{TC+21}, 4, v51")
    A("v_bfe_u32 v49, v1, 3, 1")
    A(f"v_lshlrev_b32 v{TC+23}, 11, v46"); A(f"v_lshl_add_u32 v{TC+23}, v49, 8, v{TC+23}"); A(f"v_lshl_add_u32 v{TC+23}, v51, 4, v{TC+23}")
    A("s_lshr_b32 s71, s3, 2"); A("s_lshl_b32 s71, s71, 7"); A(f"v_add_u32 v{TC+23}, s71, v{TC+23}")
    A("s_lshl_b32 s71, s3, 13"); A(f"s_add_u32 s71, s71, {L_WD}"); A(f"v_add_u32 v{TC+26}, s71, v3")
    A("s_mov_b32 m0, s71")
    A(f"v_lshrrev_b32 v{TC+22}, 1, v1"); A(f"v_lshlrev_b32 v{TC+22}, 10, v{TC+22}"); A("v_and_b32 v45, 1, v1"); A(f"v_lshl_add_u32 v{TC+22}, v45, 4, v{TC+22}")
    srd(44, 22, 23, 1024)
    if wsplit:
        A("s_branch L_kn")
        A.label("L_setup2")
        A("v_lshrrev_b32 v46, 4, v1"); A("v_and_b32 v50, 15, v1"); A("v_and_b32 v51, 7, v1")
        A("v_and_b32 v48, 1, v46"); A("v_lshlrev_b32 v48, 1, v48"); A("v_lshrrev_b32 v49, 1, v46"); A("v_or_b32 v48, v48, v49")
        A("v_lshlrev_b32 v44, 4, v50"); A("v_lshl_add_u32 v44, v48, 11, v44"); A("v_bfe_u32 v49, v1, 3, 1")
    A("s_cmp_ge_u32 s77, 28")
    A("s_cbranch_scc1 L_suj")
    A("s_mov_b32 s69, 1")
    A("s_lshl_b32 s71, s3, 6"); A("v_lshl_add_u32 v45, v48, 2, s71")
    A("v_mul_u32_u24 v45, 3584, v45"); A("v_lshl_add_u32 v45, v51, 4, v45"); A("s_lshl_b32 s71, s77, 7"); A("v_add_u32 v45, s71, v45")
    A("v_cmp_eq_u32 vcc, 0, v49")
    A("v_mov_b32 v20, s16"); A("v_mov_b32 v21, s18"); A("v_cndmask_b32 v20, v21, v20, vcc")
    A("v_mov_b32 v21, s17"); A("v_mov_b32 v22, s19"); A("v_cndmask_b32 v21, v22, v21, vcc")
    A("v_add_co_u32 v20, vcc, v20, v45"); A("v_addc_co_u32 v21, vcc, 0, v21, vcc")
    for j in range(4):
        for half in range(2):
            for v in range(2):
                r = WGU + 8 * (4 * v + j) + 4 * half
                A(f"global_load_dwordx4 v[{r}:{r+3}], v[20:21], off offset:{3584*v} {wf}")
            if (j, half) != (3, 1): A(f"v_add_co_u32 v20, vcc, {(2 if half == 0 else 14)*3584}, v20"); A("v_addc_co_u32 v21, vcc, 0, v21, vcc")
    srd(40, 20, 21, 1792 * 1024)
    A("s_lshl_b32 s71, s77, 16"); A("s_lshr_b32 s73, s3, 2"); A("s_lshl_b32 s73, s73, 15"); A("s_add_u32 s71, s71, s73")
    A("s_and_b32 s73, s3, 3"); A("s_lshl_b32 s73, s73, 8"); A("s_add_u32 s71, s71, s73")
    for i in range(8):
        A(f"buffer_load_dwordx4 v44, s[40:43], s71 offen {wf} lds")
        if i < 7: A(f"s_add_u32 s71, s71, {1024 if i % 2 == 0 else 7168}"); A("s_add_u32 m0, m0, 1024")
    A.label("L_suj")
    A("s_lshl_b32 s22, s77, 5"); A(f"s_add_u32 s22, s22, {YBUF}")
    A("s_add_u32 s23, s22, 32768")
    A("s_lshl_b32 s24, s3, 7"); A(f"s_add_u32 s24, s24, {HBUF}"); A("s_add_u32 s25, s24, 8192")
    A("s_lshr_b32 s16, s68, 1"); A("s_lshl_b32 s16, s16, 16"); A("s_and_b32 s71, s68, 1"); A("s_lshl_b32 s71, s71, 10"); A("s_add_u32 s16, s16, s71")
    A("s_lshl_b32 s71, s3, 7"); A("s_add_u32 s16, s16, s71"); A(f"s_add_u32 s16, s16, {OBUF}")
    A("s_add_u32 s17, s16, 4096")
    A("s_lshr_b32 s71, s3, 2"); A("s_lshl1_add_u32 s20, s68, s71"); A(f"s_lshl_b32 s20, s20, {5+mlsh}"); A(f"s_add_u32 s20, s20, {MLBUF}")
    A("s_lshl_b32 s21, s77, 9"); A("s_lshl_b32 s73, s3, 6"); A("s_add_u32 s21, s21, s73"); A(f"s_add_u32 s21, s21, {HBUF}")
    A("s_lshl_b32 s18, s77, 11"); A("s_lshl_b32 s71, s3, 8"); A("s_add_u32 s18, s18, s71"); A(f"s_add_u32 s18, s18, {YBUF}")
    A("s_lshr_b32 s68, s77, 2")
    A("s_branch L_s2r" if wsplit else "s_branch L_kn")

    A.label("L_dyn")
    A("s_sub_u32 s73, s71, s10"); A("s_lshr_b32 s73, s73, 11")
    A("v_mov_b32 v48, s73")
    A.label("L_dynw")
    A(f"ds_read_b32 v49, v48 offset:{L_TB}")
    A("s_waitcnt lgkmcnt(0)")
    A("v_readfirstlane_b32 s66, v49")
    A("s_cmp_lg_u32 s66, -1")
    A("s_cbranch_scc1 L_dyng")
    spin("L_dynw")
    A.label("L_dyng")
    if t1:
        A("s_cmp_eq_u32 s66, 2")
        A("s_cbranch_scc1 L_self")
    if skipoob:
        A("s_cmp_ge_u32 s66, s30")
        A("s_cbranch_scc1 L_dretx")
    A("s_bitcmp1_b32 s66, 0")
    A("s_cbranch_scc0 L_dret")
    A("s_and_b32 s66, s66, -2")
    A("s_max_u32 s71, s66, s57"); A("s_sub_u32 s71, s71, s57"); A("s_lshr_b32 s71, s71, 12"); A("s_sub_u32 s71, s67, s71")
    if tT:
        if tS:
            A(f"s_mul_i32 s14, s73, {sm}"); A("s_lshr_b32 s14, s14, 2"); A("s_add_u32 s14, s14, s71")
            A("s_cmp_lt_u32 s14, s67"); A(f"s_cselect_b32 s15, {tS}, 0")
            A("s_and_b32 s14, s2, 7"); A("s_cmp_eq_u32 s14, 2"); A("s_cselect_b32 s15, 0, s15")
            A("s_cmp_lg_u32 s14, 0"); A(f"s_cselect_b32 s14, s15, {tT}")
        else:
            A("s_and_b32 s14, s2, 7"); A(f"s_cselect_b32 s14, 0, {tT}")
        A("s_cmp_gt_u32 s71, s14")
        A("s_cbranch_scc1 L_dynt")
        A("v_lshl_add_u32 v48, v1, 2, v48")
        A("v_mov_b32 v51, s30")
        A(f"ds_write_b32 v48, v51 offset:{L_TB+4*LA}")
        A("s_branch L_dret")
        A.label("L_dynt")
    A(f"s_cmp_gt_u32 s71, {t4}"); A("s_cselect_b32 s15, 4, 2")
    A(f"s_cmp_gt_u32 s71, {t8}"); A(f"s_cselect_b32 s15, {b0}, s15")
    A("s_mov_b32 s14, s15")
    A("s_atomic_add s14, s[26:27], s58 glc")
    A("v_lshl_add_u32 v48, v1, 2, v48")
    A(f"s_sub_u32 s73, s15, {LA}")
    A("s_waitcnt lgkmcnt(0)")
    A("v_add_u32 v49, s14, v1")
    A("v_lshlrev_b32 v50, 12, v49"); A("v_add_u32 v50, s57, v50")
    A("s_add_u32 s14, s14, s15")
    A("s_cmp_ge_u32 s14, s67")
    A("s_cbranch_scc1 L_dynx")
    if t1:
        A(f"s_add_u32 s14, s14, {t1}")
        A("s_cmp_ge_u32 s14, s67")
        A("s_cbranch_scc1 L_dyns")
    A("v_cmp_eq_u32 vcc, s73, v1"); A("v_addc_co_u32 v50, vcc, 0, v50, vcc")
    A("v_cmp_gt_u32 vcc, s15, v1")
    A("s_mov_b64 exec, vcc")
    A(f"ds_write_b32 v48, v50 offset:{L_TB+4*LA}")
    A("s_mov_b64 exec, -1")
    A("s_branch L_dret")
    A.label("L_dynx")
    A("v_mov_b32 v51, s30")
    A("v_cmp_gt_u32 vcc, s67, v49")
    A("v_cndmask_b32 v50, v51, v50, vcc")
    A(f"ds_write_b32 v48, v50 offset:{L_TB+4*LA}")
    A("s_branch L_dret")
    if t1:
        A.label("L_dyns")
        A("v_cmp_gt_u32 vcc, s15, v1")
        A("v_cndmask_b32 v50, 2, v50, vcc")
        A(f"ds_write_b32 v48, v50 offset:{L_TB+4*LA}")
        A("s_branch L_dret")
        A.label("L_self")
        A("s_mov_b32 s14, 1")
        A("s_atomic_add s14, s[26:27], s58 glc")
        A("v_lshl_add_u32 v48, v1, 2, v48")
        A("v_mov_b32 v51, s30")
        A("s_waitcnt lgkmcnt(0)")
        A("s_lshl_b32 s66, s14, 12"); A("s_add_u32 s66, s66, s57")
        A("s_cmp_lt_u32 s14, s67")
        A("s_cbranch_scc1 L_dret")
        A("s_mov_b32 s66, s30")
        A(f"ds_write_b32 v48, v51 offset:{L_TB+4}")
        A("s_branch L_dret")

    A.label("L_dret")
    A("s_cmp_eq_u32 s11, 3")
    A("s_cbranch_scc1 L_go")
    A("s_branch L_vc0")
    A.label("L_dretx")
    A("s_cmp_eq_u32 s11, 3")
    A("s_cbranch_scc1 L_gox")
    A("s_branch L_vc0")
    def lred():
        quad_all(19, "v_add_f32")
        A(f"ds_write_b32 v{TC+2}, v18 offset:{L_MX}")
        rows_all(19, 49, "v_add_f32")
        A(f"ds_write_b64 v{TC+1}, v[18:19] offset:{L_ML}")
    A.label("L_done")
    lred()
    if skipoob:
        A("s_branch L_done2")
        A.label("L_last")
        lred()
        A("s_waitcnt vmcnt(0)")
        if trace: tr()
        VB = RA + 16
        for j in range(4):
            A(f"v_mfma_f32_16x16x16_bf16 v[10:13], v[{36+2*j}:{37+2*j}], v[{VB+4*j}:{VB+4*j+1}], v[10:13]")
            A(f"v_mfma_f32_16x16x16_bf16 v[14:17], v[{36+2*j}:{37+2*j}], v[{VB+4*j+2}:{VB+4*j+3}], v[14:17]")
        A.label("L_done2")
    stamp(4)
    if trace:
        A("s_lshl_b32 s71, s2, 3"); A("s_add_u32 s71, s71, s3"); A("s_lshl_b32 s71, s71, 8"); A("s_add_u32 s71, s71, 0x200000")
        A("v_lshlrev_b32 v48, 2, v1"); A("v_add_u32 v48, s71, v48")
        A("global_store_dword v48, v244, s[26:27]")
    if cut == 1: A("s_branch L_end")
    A("s_mov_b32 s73, 0xffffff00")
    A("v_mov_b32 v47, s53"); A("v_mov_b32 v48, s54"); A("v_mov_b32 v39, s56")
    A(f"ds_write_b128 v{TC}, v[10:13] offset:{L_OM}")
    A(f"ds_write_b128 v{TC}, v[14:17] offset:{L_OM+16}")
    A("s_cmp_eq_u32 s69, 1")
    A("s_cbranch_scc1 L_cs")
    A.label("L_csr")
    A("s_waitcnt lgkmcnt(0)")
    A("s_barrier")
    stamp(5)
    A(f"ds_read_b128 v[20:23], v{TC+5} offset:{L_MX}")
    A(f"ds_read_b128 v[24:27], v{TC+5} offset:{L_MX+16}")
    A(f"ds_read_b128 v[28:31], v{TC+4} offset:{L_ML}")
    A(f"ds_read_b128 v[10:13], v{TC+3} offset:{L_OM}")
    A(f"ds_read_b128 v[14:17], v{TC+3} offset:{L_OM+2048}")
    A("s_waitcnt lgkmcnt(3)")
    A("v_max3_f32 v36, v20, v21, v22"); A("v_max3_f32 v37, v23, v24, v25"); A("v_max3_f32 v36, v36, v26, v27"); A("v_max_f32 v36, v36, v37")
    A("s_waitcnt lgkmcnt(2)")
    A("v_sub_f32 v28, v28, v36"); A("v_sub_f32 v30, v30, v36")
    A("v_exp_f32 v28, v28"); A("v_exp_f32 v30, v30")
    A("v_lshl_or_b32 v38, v36, 24, s55")
    A("v_mul_f32 v37, v28, v29")
    A("v_fmac_f32 v37, v30, v31")
    A("s_waitcnt lgkmcnt(0)")
    A("v_mov_b32 v49, v37")
    for r in range(4): A(f"v_mul_f32 v{10+r}, v{10+r}, v28")
    A("v_permlane32_swap_b32 v37, v49")
    for r in range(2): A(f"v_fmac_f32 v{10+r}, v{14+r}, v30")
    A("v_add_f32 v37, v37, v49")
    for r in range(2, 4): A(f"v_fmac_f32 v{10+r}, v{14+r}, v30")
    A("v_mov_b32 v49, v37")
    A("v_permlane32_swap_b32 v10, v11")
    A("v_permlane32_swap_b32 v12, v13")
    A("v_add_f32 v10, v10, v11")
    A("v_add_f32 v12, v12, v13")
    A("v_permlane16_swap_b32 v37, v49")
    A("v_add_f32 v37, v37, v49")
    A("v_permlane16_swap_b32 v10, v12")
    A("v_add_f32 v10, v10, v12")
    A(f"v_and_or_b32 v10, v10, s73, v{TC+27}")
    A(f"buffer_store_dword v10, v{TC+10}, s[36:39], s0 offen {osf}")
    A("s_bitcmp1_b32 s3, 0")
    A("s_cbranch_scc1 L_mj")
    A("v_and_or_b32 v37, v37, s73, v48"); A("v_and_or_b32 v36, v36, s73, v47")
    A("s_mov_b64 exec, 1")
    A(f"buffer_store_dwordx4 v[36:39], v3, s[36:39], s1 offen {osf}")
    A("s_mov_b64 exec, -1")
    A.label("L_mj")
    stamp(6)
    A("s_cmp_eq_u32 s69, 0")
    A("s_cbranch_scc1 L_end")
    A("v_and_b32 v54, 0x1f0, v3")
    A(f"buffer_load_dwordx4 v[40:43], v54, s[36:39], 0 offen offset:{XBUF} sc1")
    if codepf:
        A("s_getpc_b64 s[12:13]")
        A.label("L_pcref")
        A("s_lshl_b32 s71, s3, 9"); A("s_add_u32 s12, s12, s71"); A("s_addc_u32 s13, s13, 0")
        A(f"v_lshlrev_b32 v48, 3, v1")
        A("global_load_dwordx2 v[44:45], v48, s[12:13]")
    if outpf:
        A("buffer_load_dword v44, v3, s[44:47], 0 offen")
    if pretouch:
        A("s_lshl_b32 s71, s3, 5"); A("s_add_u32 s71, s71, s77")
        A("s_cmp_ge_u32 s71, 80")
        A("s_cbranch_scc1 L_nopt")
        A("s_lshl_b32 s71, s71, 10"); A(f"s_add_u32 s71, s71, {HBUF}")
        A("buffer_load_dwordx4 v[44:47], v3, s[36:39], s71 offen sc1")
        A.label("L_nopt")
    A("s_mov_b32 s60, 0xfffefffe")
    OB = RA
    for k in range(4): A(f"ds_read_b128 v[{20+4*k}:{23+4*k}], v{TC+23} offset:{L_RED2+512*k}")
    A("s_waitcnt lgkmcnt(0)")
    sum4x4()
    A("v_mov_b32 v51, v20")
    A("s_waitcnt vmcnt(0)")
    A.label("L_xchk")
    for k in range(4): A(f"v_xor_b32 v{40+k}, s{53+k}, v{40+k}")
    A("v_or3_b32 v55, v41, v42, v43")
    A("v_and_b32 v53, 0xff, v40"); A("v_or_b32 v55, v55, v53")
    A("v_cmp_ne_u32 vcc, 0, v55")
    A("s_cbranch_vccz L_xok")
    A(f"buffer_load_dwordx4 v[40:43], v54, s[36:39], 0 offen offset:{XBUF} sc1")
    A("s_waitcnt vmcnt(0)")
    spin("L_xchk")
    A.label("L_xok")
    A("v_cmp_ne_u32 vcc, s78, v40")
    A("s_mov_b32 s64, 0")
    if local:
        A("s_cbranch_vccnz L_xg")
        A("s_mov_b32 s64, 1")
        A.label("L_xg")
    A(f"v_lshlrev_b32 v{TC+13}, 16, v{TC+13}")
    for i in range(8):
        r = WDR[i >> 1] + 4 * (i & 1)
        A(f"ds_read_b128 v[{r}:{r+3}], v{TC+26} offset:{1024*i}")
    for F in FS:
        for r in range(4): A(f"v_mov_b32 v{F+r}, 0")
    for r in range(10, 18): A(f"v_mov_b32 v{r}, 0")
    A("v_and_b32 v4, 3, v1"); A("v_mul_u32_u24 v4, 0x5555, v4")
    OG = [(OB + 4 * j, TC + 8, 16 + (j >> 1), 2048 * (j & 1)) for j in range(4)]
    A.label("L_h1pre")
    A(f"buffer_load_dword v23, v{TC+9}, s[36:39], s20 offen offset:12 sc1")
    A("s_waitcnt vmcnt(0)")
    A("v_cmp_eq_u32 vcc, s56, v23")
    A("s_bcnt1_i32_b64 s71, vcc")
    A(f"s_cmp_ge_u32 s71, {2*thr1}")
    A("s_cbranch_scc1 L_h1go")
    spin("L_h1pre", slp1)
    A.label("L_h1go")
    gather("L_h1", [[(20, TC + 9, 20, 0)]] + [[g] for g in OG])
    stamp(7)
    A("v_or_b32_sdwa v20, v20, v22 dst_sel:DWORD dst_unused:UNUSED_PAD src0_sel:DWORD src1_sel:BYTE_3")
    dpp("v_max_f32", 22, 20, 20, "quad_perm:[1,0,3,2]")
    for ctl in ("quad_perm:[2,3,0,1]", "row_ror:8"): dpp("v_max_f32", 22, 22, 22, ctl)
    rows_all(22, 23, "v_max_f32")
    A("v_sub_f32 v20, v20, v22")
    A("v_exp_f32 v20, v20")
    A("v_mul_f32 v21, v20, v21")
    fm = []
    for j in range(4):
        for r in range(4):
            op = "v_mul_f32" if j == 0 else "v_fmac_f32"
            fm.append(f"{op}_dpp v{24+r}, v20, v{OB+4*j+r} quad_perm:[{j},{j},{j},{j}] {DPPF}")
    lr = [f"v_add_f32_dpp v21, v21, v21 {c} {DPPF}" for c in ("quad_perm:[1,0,3,2]", "quad_perm:[2,3,0,1]", "row_ror:8")]
    lr += ["v_mov_b32 v22, v21", "v_permlane32_swap_b32 v21, v22", "v_add_f32 v21, v21, v22\nv_mov_b32 v22, v21"]
    for k in range(len(fm)):
        A(fm[k])
        if k % 2 == 1 and k >= 1 and lr: A(lr.pop(0))
    assert not lr
    A("v_permlane16_swap_b32 v21, v22")
    A("v_add_f32 v21, v21, v22")
    A("v_permlane32_swap_b32 v24, v25")
    A("v_permlane32_swap_b32 v26, v27")
    A("v_add_f32 v24, v24, v25")
    A("v_add_f32 v26, v26, v27")
    A("v_rcp_f32 v21, v21")
    A("v_permlane16_swap_b32 v24, v26")
    A("v_add_f32 v24, v24, v26")
    dpp("v_add_f32", 24, 24, 24, "row_ror:8")
    A("v_mul_f32 v20, v24, v21")
    rbf(20, 20)
    def frag(j, src):
        F = FS[j % 3]
        for r in range(4):
            A(f"v_mov_b32_dpp v{F+r}, v{src} row_newbcast:{2*j+(r>>1)} row_mask:0xf bank_mask:{'0x5' if r % 2 == 0 else '0xa'}")
        return F
    def frag2(j):
        F = FS[j % 3]
        for r in range(4):
            q = 2 * j + (r >> 1); second = r & 1
            src, p = (20, q & 3) if (q >> 2) == second else (21, 3 - (q & 3))
            A(f"v_mov_b32_dpp v{F+r}, v{src} quad_perm:[{p},{p},{p},{p}] row_mask:0xf bank_mask:{'0xa' if second else '0x5'}")
        return F
    def gemv16(W, red, pair=True):
        fr = frag2 if pair else (lambda i: frag(i, 20))
        if pair: A(f"v_mov_b32_dpp v21, v20 row_half_mirror {DPPF}")
        Fs = {0: fr(0)}
        for j in range(4):
            if j < 3: Fs[j + 1] = fr(j + 1)
            for v in range(2):
                acc = 10 + 4 * v; b = W + 8 * (4 * v + j)
                A(f"v_smfmac_f32_16x16x64_bf16 v[{acc}:{acc+3}], v[{Fs[j]}:{Fs[j]+3}], v[{b}:{b+7}], v4")
        A("s_mov_b32 exec_hi, 0")
        A(f"ds_write_b128 v{TC+11}, v[10:13] offset:{red}")
        A("s_mov_b32 exec_lo, 0"); A("s_mov_b32 exec_hi, -1")
        A(f"ds_write_b128 v{TC+11}, v[14:17] offset:{red}")
        A("s_mov_b64 exec, -1")
        A("s_waitcnt lgkmcnt(0)")
        A("s_barrier")
    gemv16(WO, L_RED, pair=False)
    A(f"ds_read_b128 v[20:23], v{TC+12} offset:{L_RED}")
    A("s_cmp_eq_u32 s64, 1")
    A("s_waitcnt lgkmcnt(0)")
    rr4(20, 21, 22, 23)
    dpp("v_add_f32", 20, 20, 20, "row_ror:8")
    A("s_mov_b32 exec_lo, 0x00ff00ff"); A("s_mov_b32 exec_hi, 0x00ff00ff")
    rbf(36, 20)
    A("v_min_u32 v36, s60, v36")
    lstore("L_hs", f"buffer_store_short_d16_hi v36, v{TC+6}, s[36:39], s21 offen")
    A("s_mov_b64 exec, -1")
    stamp(8)
    if hw == -1: A("s_waitcnt vmcnt(0)")
    elif hw == -2: A("s_barrier")
    elif hw: A(f"s_sleep {hw}")
    A.label("L_h2")
    A("s_cmp_lg_u32 s69, 2")
    A("s_cbranch_scc1 L_h2f")
    A("s_cmp_lg_u32 s3, 7")
    A("s_cbranch_scc1 L_end")
    A.label("L_h2f")
    for r in list(range(10, 18)) + list(range(56, 60)): A(f"v_mov_b32 v{r}, 0")
    for r in range(4): A(f"v_mov_b32 v{68+r}, 0")
    A("v_mov_b32 v52, 1.0")
    for r in range(4): A(f"v_mov_b32_dpp v{68+r}, v52 quad_perm:[0,0,0,0] row_mask:0xf bank_mask:{'0x5' if r % 2 == 0 else '0xa'}")
    gathers("L_h2", TC + 14, 24)
    stamp(2)
    for r in range(4): A(f"v_add_f32_dpp v20, v{28+r}, v{28+r} row_ror:8 row_mask:{'0x3' if r < 2 else '0xc'} bank_mask:{'0xc' if r & 1 else '0x3'}")
    A(f"v_add_f32 v20, v20, v{TC+13}")
    rbf(20, 20)
    A("s_cmp_eq_u32 s69, 2")
    A("v_mov_b32 v50, v20")
    A("s_cbranch_scc1 L_fin0")
    A("v_readfirstlane_b32 s71, v20")
    A(f"v_mov_b32_dpp v21, v20 row_half_mirror {DPPF}")
    st = ["v_subrev_f32 v25, s71, v20\nv_mov_b32 v24, s71\nv_mul_f32 v26, v25, v25", "v_permlane32_swap_b32 v25, v26\nv_add_f32 v25, v25, v26"]
    st += [f"v_add_f32_dpp v25, v25, v25 {c} {DPPF}" for c in ("quad_perm:[1,0,3,2]", "quad_perm:[2,3,0,1]", "row_ror:8")]
    st += [f"v_add_f32_dpp v25, v25, v25 row_ror:4 {DPPF}\nv_mov_b32 v26, v25", "v_permlane16_swap_b32 v25, v26\nv_add_f32 v25, v25, v26"]
    A(st.pop(0))
    Fs = {0: frag2(0)}
    A(st.pop(0))
    for j in range(4):
        if j < 3: Fs[j + 1] = frag2(j + 1); A(st.pop(0))
        for v in range(2):
            acc = 10 + 4 * v; b = WGU + 8 * (4 * v + j)
            A(f"v_smfmac_f32_16x16x64_bf16 v[{acc}:{acc+3}], v[{Fs[j]}:{Fs[j]+3}], v[{b}:{b+7}], v4")
        if j >= 2: A(st.pop(0))
    assert not st
    A("s_mov_b32 exec_lo, 1"); A("s_mov_b32 exec_hi, 1")
    A(f"ds_write_b64 v{TC+20}, v[24:25] offset:{L_ST}")
    A("s_mov_b32 exec_lo, -1"); A("s_mov_b32 exec_hi, 0")
    A(f"ds_write_b128 v{TC+11}, v[10:13] offset:{L_RED2}")
    A("s_mov_b32 exec_lo, 0"); A("s_mov_b32 exec_hi, -1")
    A(f"ds_write_b128 v{TC+11}, v[14:17] offset:{L_RED2}")
    A("s_mov_b64 exec, -1")
    A("s_waitcnt lgkmcnt(0)")
    A("s_barrier")
    stamp(3)
    A(f"ds_read_b128 v[60:63], v{TC+21} offset:{L_ST}")
    for k in range(4): A(f"ds_read_b128 v[{20+4*k}:{23+4*k}], v{TC+23} offset:{L_RED2+512*k}")
    A("s_waitcnt lgkmcnt(4)")
    A("v_readfirstlane_b32 s71, v60")
    A("v_subrev_f32 v60, s71, v60")
    A("v_fmamk_f32 v64, v60, 0x42800000, v61")
    A("v_add_f32 v61, v61, v64")
    A("v_fma_f32 v62, v60, v61, v63")
    A("s_waitcnt lgkmcnt(0)")
    c3 = ("quad_perm:[1,0,3,2]", "quad_perm:[2,3,0,1]", "row_half_mirror")
    pk = ["v_pk_add_f32 v[20:21], v[20:21], v[24:25]", "v_pk_add_f32 v[22:23], v[22:23], v[26:27]", "v_pk_add_f32 v[28:29], v[28:29], v[32:33]",
          "v_pk_add_f32 v[30:31], v[30:31], v[34:35]", "v_pk_add_f32 v[20:21], v[20:21], v[28:29]", "v_pk_add_f32 v[22:23], v[22:23], v[30:31]"]
    for k in range(3):
        A(pk[2 * k]); dpp("v_add_f32", 64, 64, 64, c3[k]); A(pk[2 * k + 1]); dpp("v_add_f32", 62, 62, 62, c3[k])
    A("v_mul_f32 v64, 0x3b000000, v64")
    A("v_permlane32_swap_b32 v20, v21")
    A("v_permlane32_swap_b32 v22, v23")
    A("v_mul_f32 v62, 0x3b000000, v62")
    A("v_add_f32 v20, v20, v21")
    A("v_add_f32 v22, v22, v23")
    A("v_fma_f32 v62, -v64, v64, v62")
    A("v_max_f32 v62, 0, v62")
    A("v_permlane16_swap_b32 v20, v22")
    A("v_add_f32 v62, 0x3727c5ac, v62")
    A("v_add_f32 v64, s71, v64")
    A("v_rsq_f32 v62, v62")
    A("v_add_f32 v20, v20, v22")
    A("v_fma_f32 v20, -v64, v51, v20")
    A("v_mul_f32 v20, v20, v62")
    dpp("v_mul_f32", 21, 20, 20, "row_ror:8")
    rbf(21, 21)
    Fs = {0: frag(0, 21)}
    for j in range(4):
        if j < 3: Fs[j + 1] = frag(j + 1, 21)
        A(f"v_smfmac_f32_16x16x64_bf16 v[56:59], v[{Fs[j]}:{Fs[j]+3}], v[{WDR[j]}:{WDR[j]+7}], v4")
    A("s_mov_b32 exec_hi, 0")
    A("s_cmp_eq_u32 s64, 1")
    A("v_cvt_pk_bf16_f32 v56, v56, v57"); A("v_cvt_pk_bf16_f32 v57, v58, v59")
    A("v_pk_min_u16 v56, s60, v56"); A("v_pk_min_u16 v57, s60, v57")
    lstore("L_ys", f"buffer_store_dwordx2 v[56:57], v{TC+24}, s[36:39], s18 offen")
    stamp(9)
    A("s_cmp_lg_u32 s3, s68")
    A("s_cbranch_scc1 L_end")
    A("s_mov_b64 exec, -1")
    if yw == -1: A("s_waitcnt vmcnt(0)")
    elif yw: A(f"s_sleep {yw}")
    A("s_branch L_fin")
    A.label("L_fin0")
    A("s_cmp_lg_u32 s77, 28"); A("s_cbranch_scc1 L_fin")
    A("s_mov_b64 exec, 1")
    A("v_mov_b32 v36, s52")
    A("buffer_store_dword v36, v3, s[36:39], 0 offen sc1")
    A("s_mov_b64 exec, -1")
    A.label("L_fin")
    A("s_and_b32 s71, s77, 3"); A("s_lshl_b32 s71, s71, 1"); A("s_lshl_b32 s71, 0x03030303, s71")
    gathers("L_h3", TC + 22, 22)
    stamp(5)
    for r in range(4): A(f"v_add_f32_dpp v{20+(r&1)}, v{28+r}, v{28+r} quad_perm:[2,3,0,1] row_mask:{'0x3' if r < 2 else '0xc'} bank_mask:0xf")
    dpp("v_add_f32", 20, 20, 20, "row_ror:4"); dpp("v_add_f32", 21, 21, 21, "row_ror:4")
    A("v_add_f32_dpp v22, v20, v20 row_ror:8 row_mask:0xf bank_mask:0x3")
    A("v_add_f32_dpp v22, v21, v21 row_ror:8 row_mask:0xf bank_mask:0xc")
    A("v_add_f32 v20, v22, v50")
    rbf(20, 20)
    if diag and diag[1] == "ack":
        A("s_mov_b32 exec_lo, s71"); A("s_mov_b32 exec_hi, s71")
        A(f"buffer_store_short_d16_hi v20, v{TC+25}, s[44:47], 0 offen")
        A("s_waitcnt vmcnt(0)")
        A("s_memrealtime s[86:87]")
    if diag:
        A("s_waitcnt lgkmcnt(0)")
        A("s_sub_u32 s84, s86, s84"); A(f"s_mul_i32 s84, s84, {diag[2]}"); A("s_add_u32 s84, s84, 6000"); A("s_min_u32 s84, s84, 100000")
        A.label("L_dg1")
        A("s_memrealtime s[82:83]"); A("s_waitcnt lgkmcnt(0)")
        A("s_sub_u32 s82, s82, s80"); A("s_cmp_lt_u32 s82, s84"); A("s_cbranch_scc1 L_dg1")
    A("s_mov_b32 exec_lo, s71"); A("s_mov_b32 exec_hi, s71")
    A(f"buffer_store_short_d16_hi v20, v{TC+25}, s[44:47], 0 offen")
    A("s_branch L_end")
    A.label("L_cs")
    A("v_and_b32 v4, 3, v1"); A("v_mul_u32_u24 v4, 0x5555, v4")
    for r in range(20, 32): A(f"v_mov_b32 v{r}, 0")
    A("v_mov_b32 v32, 1.0")
    A("s_waitcnt vmcnt(0)")
    for r in range(4): A(f"v_mov_b32_dpp v{28+r}, v32 quad_perm:[0,0,0,0] row_mask:0xf bank_mask:{'0x5' if r % 2 == 0 else '0xa'}")
    for j in range(4):
        for v in range(2):
            b = WGU + 8 * (4 * v + j)
            A(f"v_smfmac_f32_16x16x64_bf16 v[{20+4*v}:{23+4*v}], v[28:31], v[{b}:{b+7}], v4")
    A("s_mov_b32 exec_hi, 0")
    A(f"ds_write_b128 v{TC+11}, v[20:23] offset:{L_RED2}")
    A("s_mov_b32 exec_lo, 0"); A("s_mov_b32 exec_hi, -1")
    A(f"ds_write_b128 v{TC+11}, v[24:27] offset:{L_RED2}")
    A("s_mov_b64 exec, -1")
    A("s_branch L_csr")
    for (lab, back) in post:
        A.label(lab); spin(back)
    for (name, text) in post2:
        A.label(f"{name}_g"); A(text + " sc1"); A(f"s_branch {name}_j")
    A.label("L_end")
    if prof:
        A("s_waitcnt vmcnt(0)")
        stamp(10)
        A("s_mov_b64 exec, -1")
        A("s_waitcnt lgkmcnt(0)")
        for i in range(11): A(f"v_writelane_b32 v20, s{80+2*i}, {i}")
        A("v_writelane_b32 v20, s64, 11")
        A("s_getreg_b32 s71, hwreg(HW_REG_XCC_ID)"); A("v_writelane_b32 v20, s71, 12")
        A("s_lshl_b32 s71, s2, 3"); A("s_add_u32 s71, s71, s3"); A("s_lshl_b32 s71, s71, 6"); A(f"s_add_u32 s71, s71, {PROF}")
        A("v_lshlrev_b32 v21, 2, v1")
        A("s_mov_b64 exec, 0xffff")
        A("buffer_store_dword v20, v21, s[36:39], s71 offen")
    A.label("L_exit")
    A("s_endpgm")
    body = A.finish()
    nv = max(A.maxv + 1, 136)
    txt = HEADER + f"; @launch grid=(256,1,1) block=(512,1,1) lds={L_END}\n"
    txt += f'.amdgcn_target "amdgcn-amd-amdhsa--gfx950"\n.text\n.globl {KNAME}\n.p2align 8\n.type {KNAME},@function\n{KNAME}:\n'
    txt += body
    txt += ".fill 256, 4, 0xbf800000\n"
    txt += f'.section .rodata,"a"\n.p2align 6\n.amdhsa_kernel {KNAME}\n  .amdhsa_next_free_vgpr {nv}\n  .amdhsa_next_free_sgpr 102\n'
    txt += f"  .amdhsa_accum_offset {(nv+3)//4*4}\n  .amdhsa_group_segment_fixed_size 0\n  .amdhsa_kernarg_size 96\n  .amdhsa_user_sgpr_count 2\n"
    txt += "  .amdhsa_user_sgpr_kernarg_segment_ptr 1\n  .amdhsa_system_sgpr_workgroup_id_x 1\n  .amdhsa_float_denorm_mode_32 3\n.end_amdhsa_kernel\n"
    return txt

if __name__ == "__main__":
    import argparse
    p = argparse.ArgumentParser(); p.add_argument("-o"); p.add_argument("kv", nargs="*")
    a = p.parse_args()
    kw = {k: eval(v) for k, v in (x.split("=") for x in a.kv)}
    open(a.o, "w").write(gen(**kw))
```

```python
import re

TRANS = ("v_exp_f32", "v_log_f32", "v_rcp_f32", "v_rsq_f32", "v_sqrt_f32", "v_sin_f32", "v_cos_f32")

def regs_of(tok):
    t = tok.strip()
    t = re.sub(r"^(neg|abs)\((.*)\)$", r"\2", t).lstrip("-").strip("|")
    if t == "vcc": return {("s", 106), ("s", 107)}
    if t == "vcc_lo": return {("s", 106)}
    if t == "vcc_hi": return {("s", 107)}
    if t == "exec": return {("s", 126), ("s", 127)}
    if t == "m0": return {("s", 124)}
    m = re.match(r"^([vsa])(\d+)$", t)
    if m: return {(m.group(1), int(m.group(2)))}
    m = re.match(r"^([vsa])\[(\d+):(\d+)\]$", t)
    if m: return {(m.group(1), i) for i in range(int(m.group(2)), int(m.group(3)) + 1)}
    return set()

class Ins:
    def __init__(self, text):
        self.text = text
        body = text.split(";")[0].strip()
        self.is_label = body.endswith(":")
        self.is_dir = body.startswith(".") or body == ""
        self.op = ""; self.dst = set(); self.src = set(); self.ops = []
        self.kind = "none"; self.dpp = False; self.dppsrc = set(); self.srcC = set(); self.srcAB = set()
        self.states = 0; self.sdata = set(); self.ldsdma = False
        if self.is_label or self.is_dir: return
        parts = body.split(None, 1)
        self.op = op = parts[0]
        rest = parts[1] if len(parts) > 1 else ""
        ops = []; cur = ""; depth = 0
        for ch in rest:
            if ch == "[": depth += 1
            if ch == "]": depth -= 1
            if ch == "," and depth == 0: ops.append(cur.strip()); cur = ""
            else: cur += ch
        if cur.strip(): ops.append(cur.strip())
        mods = ""
        if ops:
            last = ops[-1].split(None, 1)
            ops[-1] = last[0]
            mods = last[1] if len(last) > 1 else ""
        self.ops = ops; self.mods = mods
        self.states = 1
        R = [regs_of(o) for o in ops]
        if op == "s_nop":
            self.kind = "salu"; self.states = int(ops[0], 0) + 1; return
        if op.startswith("v_smfmac"):
            self.kind = "mfma"; self.dst = R[0]; self.srcAB = R[1] | R[2] | R[3]; self.srcC = R[0]; self.src = self.srcAB | self.srcC
            self.passes = 8 if "32x32" in op else 4
            return
        if op.startswith("v_mfma"):
            self.kind = "mfma"; self.dst = R[0]; self.srcAB = R[1] | R[2]; self.srcC = R[3]; self.src = self.srcAB | self.srcC
            self.passes = 8 if "32x32" in op else 4
            return
        if op.startswith("v_"):
            self.kind = "valu"
            self.dpp = "_dpp" in op
            if op.startswith("v_permlane"):
                self.dst = R[0] | R[1]; self.src = R[0] | R[1]; return
            if op.startswith("v_cmp"):
                self.dst = R[0]; self.src = set().union(*R[1:]); return
            if op in ("v_add_co_u32", "v_sub_co_u32", "v_addc_co_u32", "v_subb_co_u32", "v_mad_u64_u32"):
                self.dst = R[0] | R[1]; self.src = set().union(*R[2:]); return
            self.dst = R[0]; self.src = set().union(*R[1:]) if len(R) > 1 else set()
            if op.startswith(("v_fmac", "v_dot2c", "v_writelane")) or self.dpp: self.src |= R[0]
            if self.dpp: self.dppsrc = R[1]
            return
        if op.startswith(("buffer_", "global_")):
            self.kind = "vmem"
            if "load" in op and re.search(r"\blds\b", mods):
                self.src = set().union(*R) | regs_of("m0"); self.ldsdma = True
            elif "load" in op:
                self.dst = R[0]; self.src = set().union(*R[1:])
                if "d16" in op: self.src |= R[0]
            elif "store" in op:
                self.src = set().union(*R)
                d = R[0] if op.startswith("buffer_") else R[1]
                if "x3" in op or "x4" in op: self.sdata = d
            else:
                self.src = set().union(*R)
                if "sc0" in mods: self.dst = R[0]
            return
        if op.startswith("ds_"):
            self.kind = "ds"
            if op.startswith(("ds_read", "ds_bpermute", "ds_permute", "ds_swizzle")) or "_rtn" in op:
                self.dst = R[0]; self.src = set().union(*R[1:])
            else:
                self.src = set().union(*R)
            return
        if op.startswith("s_"):
            self.kind = "salu"
            if op.startswith(("s_cmp", "s_cbranch", "s_branch", "s_waitcnt", "s_barrier", "s_endpgm", "s_sleep", "s_setprio", "s_bitcmp")):
                self.src = set().union(*R) if R else set()
            else:
                self.dst = R[0] if R else set(); self.src = set().union(*R[1:]) if len(R) > 1 else set()
                if "saveexec" in op: self.dst |= regs_of("exec")
            return
        raise ValueError("unknown instr " + text)

def need(p, c):
    n = 0
    pv = {r for r in p.dst if r[0] in "va"}
    ps = {r for r in p.dst if r[0] == "s"}
    if p.kind == "valu":
        if c.kind == "valu":
            if c.dpp and (pv & c.dppsrc): n = max(n, 2)
            if c.op.startswith("v_permlane") and (pv & c.src): n = max(n, 2)
            if c.op.startswith(("v_readlane", "v_readfirstlane")) and (pv & c.src): n = max(n, 1)
            if p.op.replace("_e32", "").replace("_e64", "") in TRANS and (pv & c.src): n = max(n, 1)
            if "sdwa" in p.op and (pv & (c.src | c.dst)): n = max(n, 1)
            cs = set(c.src)
            if c.op.startswith("v_cndmask") and len(c.ops) == 4: cs |= regs_of(c.ops[3])
            if ps & cs:
                n = max(n, 4 if c.op.startswith(("v_readlane", "v_writelane")) else 2)
            if (ps & regs_of("exec")):
                n = max(n, 5 if c.dpp else (4 if c.op.startswith(("v_readlane", "v_readfirstlane", "v_writelane", "v_permlane")) else 0))
        if c.kind == "mfma":
            if pv & c.src: n = max(n, 2)
            if ps & regs_of("exec"): n = max(n, 4)
        if c.kind == "vmem" and (ps & c.src): n = max(n, 5)
        if c.kind == "salu" and (ps & c.src) and not c.op.startswith("s_cbranch"): n = max(n, 1)
    if p.kind == "mfma":
        big = {4: 8, 8: 12}[p.passes]
        if c.kind == "mfma":
            if pv & c.srcAB: n = max(n, big)
            if pv & c.srcC and not (c.srcC == p.dst and c.passes == p.passes): n = max(n, {4: 6, 8: 10}[p.passes])
            elif (pv & c.dst) and not (pv & c.srcC): n = max(n, big)
        elif c.kind in ("valu", "vmem", "ds"):
            if pv & (c.src | c.dst): n = max(n, big)
            if c.kind == "valu" and (p.srcC & c.dst): n = max(n, {4: 3, 8: 7}[p.passes])
    if p.kind == "salu" and c.ldsdma and (ps & regs_of("m0")): n = max(n, 1)
    if p.kind == "vmem" and p.sdata:
        if c.kind in ("valu", "mfma") and (p.sdata & c.dst): n = max(n, 2)
        elif p.sdata & c.dst: n = max(n, 1)
    return n

class Asm:
    def __init__(self):
        self.lines = []
    def __call__(self, text):
        for t in text.strip("\n").split("\n"):
            t = t.strip()
            if t: self.lines.append(t)
    def label(self, name): self.lines.append(name + ":")
    warm = None
    @staticmethod
    def size(o):
        if o.kind == "none": return 0
        if o.kind in ("vmem", "ds", "mfma"): return 8
        lit = any(re.match(r"^-?(0x[0-9a-f]+|\d+)$", t) and not (-16 <= int(t, 0) <= 64) for t in o.ops)
        if o.kind == "salu":
            if o.op.startswith(("s_load", "s_atomic", "s_memrealtime", "s_memtime")): return 8
            if o.op.startswith(("s_waitcnt", "s_nop", "s_sleep", "s_branch", "s_cbranch", "s_barrier")): return 4
            return 8 if lit else 4
        v4 = ("v_mov_b32", "v_add_f32", "v_sub_f32", "v_subrev_f32", "v_mul_f32", "v_max_f32", "v_fmac_f32", "v_and_b32", "v_or_b32", "v_xor_b32", "v_exp_f32",
              "v_rcp_f32", "v_rsq_f32", "v_lshlrev_b32", "v_lshrrev_b32", "v_add_u32", "v_min_u32", "v_readfirstlane_b32", "v_permlane32_swap_b32", "v_permlane16_swap_b32")
        if o.op in v4 or (o.op.startswith("v_cmp") and o.ops[0] == "vcc"): return 8 if lit else 4
        return 8
    def add_pads(self, out):
        if not self.warm: return [o for o in out if not o.text.startswith(".warm")]
        sp, fin = self.warm
        res = []; on = False; n = 0; since = 0
        i = 0
        while i < len(out):
            o = out[i]
            if o.text.startswith(".warm_on"): on = True; since = sp; i += 1; continue
            if o.text.startswith(".warm_off"): on = False; i += 1; continue
            if on and o.kind != "none":
                place = False
                if o.op == "s_nop" and since >= sp * 0.55: place = True
                elif since >= sp:
                    place = True
                assert not (o.ops and o.ops[0] in ("exec_lo", "exec") and o.ops[1] == "0"), o.text
                if place:
                    res.append(Ins(f"L_wp{n}:")); res.append(Ins(f"s_cbranch_execz L_wp{n+1}")); n += 1; since = 4
                    if o.op == "s_nop":
                        k = int(o.ops[0], 0)
                        if k > 0: res.append(Ins(f"s_nop {k-1}")); since += 4
                        i += 1; continue
                since += self.size(o)
            res.append(o); i += 1
        for k in range(len(res) - 1, -1, -1):
            if res[k].text == f"s_cbranch_execz L_wp{n}": res[k] = Ins(f"s_cbranch_execz {fin}"); break
        self.npads = n
        return res
    def finish(self):
        ins = [Ins(t) for t in self.lines]
        out = []
        W = 14
        for c in ins:
            if c.kind != "none":
                dist = 0; req = 0
                for p in reversed(out):
                    if p.kind == "none": continue
                    if p.op in ("s_branch", "s_endpgm", "s_setpc_b64"): break
                    r = need(p, c) - dist
                    req = max(req, r)
                    dist += p.states
                    if dist >= W: break
                if req > 0:
                    out.append(Ins(f"s_nop {req - 1}"))
            out.append(c)
        out = self.add_pads(out)
        labels = {o.text.split(":")[0]: i for i, o in enumerate(out) if o.is_label}
        errs = []
        for i, b in enumerate(out):
            if b.op.startswith(("s_cbranch", "s_branch")) and not b.ops[0].startswith(("L_wp", "L_wret")):
                tgt = labels[b.ops[0]]
                pre = [o for o in out[max(0, i - 2 * W): i + 1] if o.kind != "none"]
                for k in range(len(pre) - 2, -1, -1):
                    if pre[k].op in ("s_branch", "s_endpgm"): pre = pre[k + 1:]; break
                post = []
                for o in out[tgt: tgt + 2 * W]:
                    if o.kind == "none": continue
                    post.append(o)
                    if o.op in ("s_branch", "s_endpgm"): break
                d0 = 0
                for c in post:
                    dist = d0
                    for p in reversed(pre):
                        if need(p, c) > dist: errs.append(f"branch hazard: [{p.text}] -> {b.text} -> [{c.text}] need {need(p, c)} have {dist}")
                        dist += p.states
                        if dist >= W: break
                    d0 += c.states
                    if d0 >= W: break
        if errs: raise RuntimeError("\n".join(errs))
        self.maxv = max([r[1] for o in out for r in (o.dst | o.src) if r[0] == "v"] + [0])
        self.maxs = max([r[1] for o in out for r in (o.dst | o.src) if r[0] == "s" and r[1] < 102] + [0])
        return "\n".join(("" if (o.is_label or o.is_dir) else "    ") + o.text for o in out) + "\n"
```

```python
import sys, struct
sys.path.insert(0, "gen")
from asmlib import Asm

KNAME = "sequential_preLN__gqa_block_cached__glu_gated_bilinear__decode_kernel"
HEADER = open("sequential_preLN__gqa_block_cached__glu_gated_bilinear__decode.s.ref").read().split("; Override launch")[0]

XBUF, QBUF, OBUF, HBUF, YBUF, CBUF, MLBUF, WS_END = 0x800, 0x1000, 0x10000, 0xAC000, 0xB0000, 0xD0000, 0x140000, 0x180000
PROF = 0x100000
L_OM, L_ML, L_MX, L_QF, L_TK, L_ST, L_RED, L_RED2, L_HL, L_TB, L_WD, L_S, L_END = 0, 0x4000, 0x4100, 0x4600, 0x4A00, 0x4B00, 0x5000, 0x7000, 0x4C00, 0x9000, 0x9800, 0x19800, 0x21800
DPPF = "row_mask:0xf bank_mask:0xf"
SPIN = 1 << 20
L_MX2 = 0x4200

def gen(NX=4, prof=False, S0=104, offT=48, offF=24, offQ=12, thr1=8, slp1=4, qslp=4, LA=2, t8=128, t4=48, t1=0, b0=8,
        cstride=256, kf='nt', vf='nt', wf='', mlsh=4, cut=0, local=True, pretouch=True, tT=64, diag=0, codepf=True, outpf=False, h2pre=False, opre=None, osf='sc1', ew=8, ewx=0, PS=0, pgap=0, flat2=True, flat3=True, skipoob=True, hw=-2, yw=0, stx=True, noround=0, trace=False, tlbpf=0, tS=0, sm=8, XT=0, W=0, qprof=False, qhold=True, X2=2, NXT=1, wpf=False, wf2=None, wsplit=False, warm=0, wwave=7):
    A = Asm()
    if warm: A.warm = (warm, 'L_wret')
    RA, RX = 56, 88
    WO, WGU = 88, 152
    WDR = [72, 80, 244, 40]
    FS = [232, 6, 252]
    TC = 216
    OOB = 0x1000000
    D0 = (4096 - 32 * S0 + 8 * offQ + 4 * offT) // 4
    assert offF % 4 == 0
    D1 = D0 - offF // 4
    assert LA + D0 + 64 + 64 <= 512
    seen = {}
    def stamp(i):
        if prof: A(f"s_memrealtime s[{80+2*i}:{81+2*i}]")
        seen[i] = seen.get(i, 0) + 1
        if diag:
            if (i, seen[i]) == (0, 1): A("s_memrealtime s[80:81]")
            if diag[0] == (i, seen[i]): A("s_memrealtime s[84:85]")
            if diag[1] == (i, seen[i]): A("s_memrealtime s[86:87]")
    def rr4(a, b, c, d):
        A(f"v_permlane32_swap_b32 v{a}, v{b}")
        A(f"v_permlane32_swap_b32 v{c}, v{d}")
        A(f"v_add_f32 v{a}, v{a}, v{b}")
        A(f"v_add_f32 v{c}, v{c}, v{d}")
        A(f"v_permlane16_swap_b32 v{a}, v{c}")
        A(f"v_add_f32 v{a}, v{a}, v{c}")
    def rows_all(x, t, op):
        A(f"v_mov_b32 v{t}, v{x}")
        A(f"v_permlane32_swap_b32 v{x}, v{t}")
        A(f"{op} v{x}, v{x}, v{t}")
        A(f"v_mov_b32 v{t}, v{x}")
        A(f"v_permlane16_swap_b32 v{x}, v{t}")
        A(f"{op} v{x}, v{x}, v{t}")
    def dpp(op, d, s, o, ctl): A(f"{op}_dpp v{d}, v{s}, v{o} {ctl} {DPPF}")
    def quad_all(x, op):
        dpp(op, x, x, x, "quad_perm:[1,0,3,2]"); dpp(op, x, x, x, "quad_perm:[2,3,0,1]")
    def wave_all(x, t, op):
        quad_all(x, op); dpp(op, x, x, x, "row_ror:8"); dpp(op, x, x, x, "row_ror:4"); rows_all(x, t, op)
    def rbf(d, s): A(f"v_cvt_pk_bf16_f32 v{d}, 0, v{s}")
    def ln_fin(mean, var):
        rbf(var, var)
        rbf(mean, mean)
        A(f"v_add_f32 v{var}, 0x37280000, v{var}")
        rbf(var, var)
        A(f"v_sqrt_f32 v{var}, v{var}")
        rbf(var, var)
        A(f"v_rcp_f32 v{var}, v{var}")
    def ln_stats(vals, mean, rinv, t):
        A(f"v_add_f32 v{mean}, v{vals[0]}, v{vals[1]}")
        A(f"v_add_f32 v{t}, v{vals[2]}, v{vals[3]}")
        A(f"v_add_f32 v{rinv}, v{vals[4]}, v{vals[5]}")
        A(f"v_add_f32 v{mean}, v{mean}, v{t}")
        A(f"v_add_f32 v{t}, v{vals[6]}, v{vals[7]}")
        A(f"v_add_f32 v{rinv}, v{rinv}, v{t}")
        A(f"v_add_f32 v{mean}, v{mean}, v{rinv}")
        wave_all(mean, t, "v_add_f32")
        A(f"v_mul_f32 v{mean}, 0x3b000000, v{mean}")
        for v in vals: A(f"v_sub_f32 v{v}, v{v}, v{mean}")
        A(f"v_mul_f32 v{rinv}, v{vals[0]}, v{vals[0]}")
        A(f"v_mul_f32 v{t}, v{vals[1]}, v{vals[1]}")
        for k in range(2, 8, 2):
            A(f"v_fmac_f32 v{rinv}, v{vals[k]}, v{vals[k]}")
            A(f"v_fmac_f32 v{t}, v{vals[k+1]}, v{vals[k+1]}")
        A(f"v_add_f32 v{rinv}, v{rinv}, v{t}")
        wave_all(rinv, t, "v_add_f32")
        A(f"v_mul_f32 v{rinv}, 0x3b000000, v{rinv}")
        ln_fin(mean, rinv)
    def srd(d, lo, hi, n):
        A(f"s_mov_b32 s{d}, s{lo}"); A(f"s_mov_b32 s{d+1}, s{hi}"); A(f"s_mov_b32 s{d+2}, {hex(n)}"); A(f"s_mov_b32 s{d+3}, 0x20000")
    def spin(label, slp=0):
        A("s_sub_u32 s72, s72, 1")
        A("s_cbranch_scc1 L_end")
        if slp: A(f"s_sleep {slp}")
        A(f"s_branch {label}")
    MREG = [4, 6, 8, 14, 62]
    def gather(name, groups, init_masks=None, check_first=False):
        ng = len(groups)
        for j in range(ng):
            m = -1 if init_masks is None else init_masks[j]; M = MREG[j]
            if m == -1: A(f"s_mov_b64 s[{M}:{M+1}], -1")
            else: A(f"s_mov_b32 s{M}, {hex(m & 0xffffffff)}"); A(f"s_mov_b32 s{M+1}, {hex(m >> 32)}")
        if check_first: A(f"s_branch {name}_chk")
        A.label(f"{name}_rnd")
        for j, g in enumerate(groups):
            M = MREG[j]
            A(f"s_mov_b64 exec, s[{M}:{M+1}]")
            A(f"s_cbranch_execz {name}_i{j}")
            for (r, va, so, imm) in g:
                A(f"buffer_load_dwordx4 v[{r}:{r+3}], v{va}, s[36:39], s{so} offen offset:{imm} sc1")
            A.label(f"{name}_i{j}")
        A.label(f"{name}_chk")
        A("s_mov_b64 s[12:13], 0")
        A("s_waitcnt vmcnt(0)")
        for j, g in enumerate(groups):
            M = MREG[j]
            A(f"s_mov_b64 exec, s[{M}:{M+1}]")
            A(f"s_cbranch_execz {name}_c{j}")
            regs = [r + k for (r, _, _, _) in g for k in range(4)]
            for k, r in enumerate(regs): A(f"v_xor_b32 v{r}, s{53+(k&3)}, v{r}")
            A(f"v_or3_b32 v55, v{regs[0]}, v{regs[1]}, v{regs[2]}")
            rest = regs[3:]
            while len(rest) >= 2:
                A(f"v_or3_b32 v55, v55, v{rest[0]}, v{rest[1]}"); rest = rest[2:]
            A(f"v_or_b32 v55, v55, v{rest[0]}")
            A("v_and_b32 v55, 0xff, v55")
            A(f"v_cmp_ne_u32 s[{M}:{M+1}], 0, v55")
            A(f"s_or_b64 s[12:13], s[12:13], s[{M}:{M+1}]")
            A.label(f"{name}_c{j}")
        A("s_mov_b64 exec, -1")
        A("s_cmp_eq_u64 s[12:13], 0")
        A(f"s_cbranch_scc1 {name}_ok")
        spin(f"{name}_rnd")
        A.label(f"{name}_ok")
    def gatherp(name, groups, raws):
        ng = len(groups)
        for j in range(ng): A(f"s_mov_b64 s[{MREG[j]}:{MREG[j]+1}], -1")
        NL = sum(len(g) for g in groups)
        def issue(rb):
            n = 0
            for j, g in enumerate(groups):
                A(f"s_or_b64 exec, s[{MREG[j]}:{MREG[j]+1}], 1")
                for (r, va, so, imm) in g:
                    A(f"buffer_load_dwordx4 v[{rb+4*n}:{rb+4*n+3}], v{va}, s[36:39], s{so} offen offset:{imm} sc1")
                    n += 1
        for rb in raws: issue(rb)
        A.label(f"{name}_rnd")
        for k, rb in enumerate(raws):
            A("s_mov_b64 s[12:13], 0")
            A(f"s_waitcnt vmcnt({(len(raws)-1)*NL})")
            n = 0
            for j, g in enumerate(groups):
                M = MREG[j]
                A(f"s_mov_b64 exec, s[{M}:{M+1}]")
                A(f"s_cbranch_execz {name}_c{k}_{j}")
                regs = []
                for (r, _, _, _) in g:
                    for e in range(4):
                        A(f"v_xor_b32 v{r+e}, s{53+e}, v{rb+4*n+e}"); regs.append(r + e)
                    n += 1
                A(f"v_or3_b32 v55, v{regs[0]}, v{regs[1]}, v{regs[2]}")
                A(f"v_or_b32 v55, v55, v{regs[3]}")
                A("v_and_b32 v55, 0xff, v55")
                A(f"v_cmp_ne_u32 s[{M}:{M+1}], 0, v55")
                A(f"s_or_b64 s[12:13], s[12:13], s[{M}:{M+1}]")
                A.label(f"{name}_c{k}_{j}")
            A("s_cmp_eq_u64 s[12:13], 0")
            A(f"s_cbranch_scc1 {name}_ok")
            if pgap: A(f"s_sleep {pgap}")
            issue(rb)
        spin(f"{name}_rnd")
        A.label(f"{name}_ok")
        A("s_mov_b64 exec, -1")
    def gatherf(name, loads, last_half=False):
        A.label(f"{name}_rnd")
        for k, (r, va, so, imm) in enumerate(loads):
            if last_half and k == len(loads) - 1:
                for e in range(4): A(f"v_mov_b32 v{r+e}, s{53+e}")
                A("s_mov_b32 exec_hi, 0")
            A(f"buffer_load_dwordx4 v[{r}:{r+3}], v{va}, s[36:39], s{so} offen offset:{imm} sc1")
        if last_half: A("s_mov_b32 exec_hi, -1")
        n = len(loads)
        for k, (r, _, _, _) in enumerate(loads):
            A(f"s_waitcnt vmcnt({n-1-k})")
            for e in range(4): A(f"v_xor_b32 v{r+e}, s{53+e}, v{r+e}")
            if k == 0: A(f"v_or_b32 v55, v{r}, v{r+1}")
            else: A(f"v_or3_b32 v55, v55, v{r}, v{r+1}")
            A(f"v_or3_b32 v55, v55, v{r+2}, v{r+3}")
        A("v_and_b32 v55, 0xff, v55")
        A("v_cmp_ne_u32 vcc, 0, v55")
        A(f"s_cbranch_vccnz {name}_re")
        post.append((f"{name}_re", f"{name}_rnd"))
    def gathers(name, va, so):
        A.label(f"{name}_rnd")
        A(f"buffer_load_dwordx4 v[20:23], v{va}, s[36:39], s{so} offen sc1")
        A(f"buffer_load_dwordx4 v[24:27], v{va}, s[36:39], s{so+1} offen sc1")
        for r in range(4): A(f"v_mov_b32 v{28+r}, 0")
        A("s_waitcnt vmcnt(1)")
        A("v_pk_max_u16 v55, v20, v21"); A("v_pk_max_u16 v53, v22, v23"); A("v_pk_max_u16 v55, v55, v53")
        A("s_waitcnt vmcnt(0)")
        A("v_smfmac_f32_16x16x64_bf16 v[28:31], v[68:71], v[20:27], v4")
        for r in range(24, 28): A(f"v_pk_max_u16 v55, v55, v{r}")
        A("v_pk_max_u16 v55, v55, v55 op_sel:[1,0] op_sel_hi:[0,1]")
        A("v_cmp_eq_u32 vcc, -1, v55")
        A(f"s_cbranch_vccnz {name}_re")
        post.append((f"{name}_re", f"{name}_rnd"))
    post = []; post2 = []
    def lstore(name, text):
        A(f"s_cbranch_scc0 {name}_g")
        A(text)
        A.label(f"{name}_j")
        post2.append((name, text))
    thr = [None]
    def throttle():
        if thr[0] is not None:
            if thr[0] >= W: A(f"s_waitcnt vmcnt({W-1})")
            thr[0] += 1
    def issueK(base, so):
        for j in range(4):
            r = base + 4 * j
            throttle()
            A(f"buffer_load_dwordx4 v[{r}:{r+3}], v2, s[28:31], s{so} offen offset:{1024*j} {kf}")
    def issueV(base, so):
        for j in range(4):
            r = base + 16 + 4 * j
            throttle()
            A(f"buffer_load_dwordx4 v[{r}:{r+3}], v3, s[32:35], s{so} offen offset:{1024*j} {vf}")
    def common_setup():
        A("s_mov_b32 s60, 0x22222222"); A("s_mov_b32 s61, 0x22222222")
        A("s_mov_b32 s62, 0x44444444"); A("s_mov_b32 s63, 0x44444444")
        A("s_mov_b32 s64, 0x88888888"); A("s_mov_b32 s65, 0x88888888")
        A("s_mov_b32 s74, 0x3db504f3"); A("s_mov_b32 s75, 0x3fb8aa3b")
        A(f"s_mov_b32 s72, {SPIN}")
        A("v_mov_b32 v44, 0xffff"); A("v_mov_b32 v45, 0xffff0000")
        A("v_mov_b32 v4, 0"); A("v_mov_b32 v5, 0")
        A("v_cmp_eq_u32 vcc, 0, v47")
        A("v_cndmask_b32 v4, v4, v44, vcc")
        A("v_cndmask_b32 v4, v4, v45, s[60:61]")
        A("v_cndmask_b32 v5, v5, v44, s[62:63]")
        A("v_cndmask_b32 v5, v5, v45, s[64:65]")
        for r in range(10, 18): A(f"v_mov_b32 v{r}, 0")
        A("v_mov_b32 v18, 0xff7fffff"); A("v_mov_b32 v19, 0")
    def k32masks(b):
        A("v_bfe_u32 v51, v1, 2, 1"); A("v_cmp_eq_u32 vcc, 0, v51")
        A(f"v_cndmask_b32 v{b}, 0, v4, vcc"); A(f"v_cndmask_b32 v{b+1}, 0, v5, vcc")
        A(f"v_cndmask_b32 v{b+2}, v4, 0, vcc"); A(f"v_cndmask_b32 v{b+3}, v5, 0, vcc")
    def tags():
        A("s_add_u32 s52, s52, 0x9e3779b9")
        A("s_and_b32 s53, s52, 0xff"); A("s_bfe_u32 s54, s52, 0x80008"); A("s_bfe_u32 s55, s52, 0x80010"); A("s_lshr_b32 s56, s52, 24")
        A("s_and_b32 s57, s52, 0xffff"); A("s_lshr_b32 s58, s52, 16")
    def sum4x4():
        A("v_pk_add_f32 v[20:21], v[20:21], v[24:25]"); A("v_pk_add_f32 v[22:23], v[22:23], v[26:27]")
        A("v_pk_add_f32 v[28:29], v[28:29], v[32:33]"); A("v_pk_add_f32 v[30:31], v[30:31], v[34:35]")
        A("v_pk_add_f32 v[20:21], v[20:21], v[28:29]"); A("v_pk_add_f32 v[22:23], v[22:23], v[30:31]")
        rr4(20, 21, 22, 23)
    def sum2x4():
        A("v_pk_add_f32 v[20:21], v[20:21], v[24:25]"); A("v_pk_add_f32 v[22:23], v[22:23], v[26:27]")
        rr4(20, 21, 22, 23)
    def tr():
        A("s_memrealtime s[96:97]"); A("s_mov_b32 m0, s98"); A("s_waitcnt lgkmcnt(0)"); A("v_writelane_b32 v244, s96, m0"); A("s_add_u32 s98, s98, 1")
    uid = [0]
    def ld4(base, va, srd_, so, fl):
        for j in range(4):
            r = base + 4 * j
            A(f"buffer_load_dwordx4 v[{r}:{r+3}], v{va}, s[{srd_}:{srd_+3}], s{so} offen offset:{1024*j} {fl}")
    def draw():
        A("s_mov_b64 exec, 1")
        A("ds_add_rtn_u32 v54, v52, v53")
        A("s_mov_b64 exec, -1")
    def qk(KB):
        for j in range(4):
            A(f"v_mfma_f32_16x16x32_bf16 v[{20+4*j}:{23+4*j}], v[{KB+4*j}:{KB+4*j+3}], v[6:9], 0")
    def extract():
        D = lambda j, r: 20 + 4 * (j & 3) + r
        for rho in range(4): A(f"v_cndmask_b32 v{44+rho}, v{D(rho,0)}, v{D(rho+1,1)}, s[60:61]")
        for rho in range(4): A(f"v_cndmask_b32 v{44+rho}, v{44+rho}, v{D(rho+2,2)}, s[62:63]")
        for rho in (1, 2, 3, 0): A(f"v_cndmask_b32 v{44+rho}, v{44+rho}, v{D(rho+3,3)}, s[64:65]")
        for rho in range(1, 4):
            qp = ",".join(str((q - rho) & 3) for q in range(4))
            dpp("v_add_f32", 44, 44 + rho, 44, f"quad_perm:[{qp}]")
        rbf(44, 44)
        A("v_mul_f32 v44, s74, v44")
        rbf(44, 44)
        A("v_mul_f32 v44, s75, v44")
    def keep(off):
        A(f"ds_write_b32 v48, v44 offset:{off}")
        A("v_max_f32 v18, v18, v44")
    def pfrag(z):
        A(f"v_sub_f32 v44, v{z}, v18")
        A("v_exp_f32 v44, v44")
        A("v_cvt_pk_bf16_f32 v45, v44, v44")
        A("v_add_f32 v19, v19, v44")
        for j in range(4):
            dpp("v_and_b32", 36 + 2 * j, 45, 4, f"quad_perm:[{j},{j},{j},{j}]")
            dpp("v_and_b32", 37 + 2 * j, 45, 5, f"quad_perm:[{j},{j},{j},{j}]")
    def pv(VB):
        for j in range(4):
            A(f"v_mfma_f32_16x16x16_bf16 v[10:13], v[{36+2*j}:{37+2*j}], v[{VB+4*j}:{VB+4*j+1}], v[10:13]")
            A(f"v_mfma_f32_16x16x16_bf16 v[14:17], v[{36+2*j}:{37+2*j}], v[{VB+4*j+2}:{VB+4*j+3}], v[14:17]")
    def unitK(base, so):
        ld4(base, 2, 28, so, kf); ld4(base + 16, 244, 28, so, kf)

    A("s_cmp_ge_u32 s2, 256")
    A("s_cbranch_scc1 L_exit")
    A("s_load_dwordx16 s[4:19], s[0:1], 0")
    A("s_load_dwordx8 s[20:27], s[0:1], 64")
    stamp(0)
    if XT: A(f"s_xor_b32 s2, s2, {XT}")
    A("v_and_b32 v1, 63, v0")
    A("v_lshrrev_b32 v44, 6, v0")
    A("v_lshlrev_b32 v3, 4, v1")
    A("v_readfirstlane_b32 s3, v44")
    A("v_bfe_u32 v45, v1, 2, 2")
    A("v_lshrrev_b32 v46, 4, v1")
    A("v_and_b32 v47, 3, v1")
    A("v_lshlrev_b32 v2, 8, v45")
    A("v_lshl_add_u32 v2, v46, 6, v2")
    A("v_lshl_add_u32 v2, v47, 4, v2")
    A("v_add_u32 v244, 4096, v2")
    A("s_lshr_b32 s77, s2, 3"); A("s_and_b32 s76, s77, 7"); A("s_and_b32 s73, s2, 7"); A("s_lshr_b32 s78, s2, 6")
    A("s_lshl3_add_u32 s79, s78, s73")
    A("s_cmp_ge_u32 s76, 4"); A(f"s_cselect_b32 s67, {D0-D1}, 0"); A(f"s_sub_u32 s67, {D0}, s67")
    assert S0 - offT - offQ - LA >= 2 * (8 + 7 * NXT) and S0 - offQ - LA >= 2 * (8 + 7 * NX) and offT + offQ <= 64
    assert (S0 - LA) % 2 == 0 and offT % 2 == 0 and offQ % 2 == 0 and S0 * 256 <= L_END - L_S
    A(f"s_mul_i32 s59, s78, {8*S0-offT-2*offQ}"); A(f"s_mul_i32 s71, s73, {S0}"); A("s_add_u32 s59, s59, s71")
    A("s_cmp_ge_u32 s77, 28"); A(f"s_cselect_b32 s68, {offT-offF+offQ}, {offT+offQ}")
    A("s_cmp_eq_u32 s73, 0"); A("s_cselect_b32 s71, 0, s68"); A("s_cselect_b32 s70, s68, 0"); A("s_sub_u32 s59, s59, s71")
    A(f"s_cmp_gt_u32 s73, {X2}"); A(f"s_cselect_b32 s71, {offQ}, 0"); A("s_sub_u32 s59, s59, s71")
    A(f"s_cmp_eq_u32 s73, {X2}"); A(f"s_cselect_b32 s70, {offQ}, s70"); A("s_cselect_b32 s65, 1, 0")
    A(f"s_sub_u32 s70, {S0-LA}, s70")
    A("s_lshl_b32 s59, s59, 12"); A("s_lshl_b32 s70, s70, 12")
    A("s_lshl_b32 s66, s3, 13"); A("s_add_u32 s66, s66, s59")
    A("s_lshl_b32 s71, s76, 24")
    A(f"s_mov_b32 s30, {OOB}"); A("s_mov_b32 s31, 0x20000"); A(f"s_mov_b32 s34, {OOB}"); A("s_mov_b32 s35, 0x20000")
    A(f"s_cmp_lg_u32 s70, {(S0-LA)*4096}")
    A("s_cbranch_scc1 L_qprod")
    A("s_waitcnt lgkmcnt(0)")
    A("s_add_u32 s28, s6, s71"); A("s_addc_u32 s29, s7, 0")
    A("s_add_u32 s32, s8, s71"); A("s_addc_u32 s33, s9, 0")
    A("s_load_dword s52, s[26:27], 0")
    A("s_cmp_eq_u32 s3, 0")
    A("s_cbranch_scc1 L_w0")
    if wpf:
        A(f"s_cmp_gt_u32 s73, {X2}"); A("s_subb_u32 s73, s73, 1"); A("s_mul_i32 s68, s77, 6"); A("s_add_u32 s73, s73, s68")
        A("s_mul_i32 s73, s73, 7"); A("s_add_u32 s73, s73, s3"); A("s_sub_u32 s73, s73, 1"); A("s_lshl_b32 s73, s73, 10")
        A("v_add_u32 v48, s73, v3")
        for k in range(1, 4): A(f"v_add_u32 v{48+k}, {k*1344*1024}, v48")
        n = 0
        for (lo, size) in ((12, 4 << 20), (16, 512 * 3584), (18, 512 * 3584), (20, 1792 * 1024)):
            d = 40 + 4 * (n & 1); n += 1
            srd(d, lo, lo + 1, size)
            for k in range(4 if lo == 12 else 2):
                A(f"buffer_load_dwordx4 v[{RA}:{RA+3}], v{48+k}, s[{d}:{d+3}], 0 offen")
    A.label("L_ring")
    unitK(RA, 66)
    A(f"s_add_u32 s68, s66, {7*8192}")
    for k in range(NX):
        if k == NXT:
            A("s_and_b32 s71, s2, 7"); A("s_cbranch_scc0 L_ringe")
        unitK(RX + 32 * k, 68)
        if k < NX - 1: A(f"s_add_u32 s68, s68, {7*8192}")
    A.label("L_ringe")
    thr[0] = None
    srd(48, 4, 5, 1024)
    srd(36, 26, 27, WS_END)
    common_setup()
    A("s_waitcnt lgkmcnt(0)")
    tags()
    stamp(1)
    A("s_barrier")
    A("s_branch L_qj")
    A.label("L_qprod")
    A("v_lshrrev_b32 v44, 3, v1"); A("v_and_b32 v45, 7, v1")
    A("v_lshlrev_b32 v50, 16, v44")
    A("v_lshl_add_u32 v50, v45, 4, v50")
    A("v_lshlrev_b32 v51, 4, v44")
    A("s_lshl1_add_u32 s69, s78, s65"); A("s_lshl3_add_u32 s69, s76, s69")
    A("s_lshl_b32 s68, s69, 7"); A("s_lshl_b32 s73, s3, 19"); A("s_add_u32 s68, s68, s73")
    A("s_lshl_b32 s73, s3, 7")
    A("s_mov_b32 s50, 1024"); A("s_mov_b32 s51, 0x20000"); A(f"s_mov_b32 s42, {4<<20}"); A("s_mov_b32 s43, 0x20000")
    for i in range(1, 8): A(f"v_add_u32 v{35+i}, {8192*i}, v50")
    A("s_waitcnt lgkmcnt(0)")
    A("s_mov_b32 s48, s4"); A("s_mov_b32 s49, s5"); A("s_mov_b32 s40, s10"); A("s_mov_b32 s41, s11")
    A("buffer_load_dwordx4 v[52:55], v3, s[48:51], 0 offen")
    A("buffer_load_dwordx4 v[32:35], v51, s[48:51], s73 offen")
    for i in range(8):
        va = 50 if i == 0 else 35 + i
        A(f"buffer_load_dwordx4 v[{RA+4*i}:{RA+4*i+3}], v{va}, s[40:43], s68 offen {wf}")
    A("s_load_dword s52, s[26:27], 0")
    A("s_add_u32 s28, s6, s71"); A("s_addc_u32 s29, s7, 0")
    A("s_add_u32 s32, s8, s71"); A("s_addc_u32 s33, s9, 0")
    A("s_cmp_lg_u32 s3, 0"); A("s_cbranch_scc1 L_nz")
    A("s_cmp_lg_u32 s65, 0"); A("s_cbranch_scc1 L_nz")
    A(f"s_mul_i32 s73, s77, {cstride}"); A(f"s_add_u32 s73, s73, {CBUF}")
    A("v_mov_b32 v49, s73"); A("v_mov_b32 v48, 0")
    A("s_mov_b64 exec, 1")
    A("global_store_dword v49, v48, s[26:27] sc1")
    A("s_mov_b64 exec, -1")
    A.label("L_nz")
    A("v_lshrrev_b32 v49, 5, v1"); A("v_and_b32 v44, 1, v46")
    A("v_lshlrev_b32 v48, 8, v49"); A("v_lshl_add_u32 v48, v45, 5, v48"); A("v_lshl_add_u32 v48, v44, 4, v48")
    A("s_lshl_b32 s73, s3, 9"); A("v_add_u32 v48, s73, v48")
    common_setup()
    k32masks(6)
    if qprof: A("s_memrealtime s[90:91]")
    A("s_waitcnt vmcnt(8)")
    if qprof: A("s_memrealtime s[92:93]")
    for k in range(4):
        A(f"v_lshlrev_b32 v{36+2*k}, 16, v{52+k}")
        A(f"v_and_b32 v{37+2*k}, 0xffff0000, v{52+k}")
    for k in range(4):
        A(f"v_lshlrev_b32 v{20+2*k}, 16, v{32+k}")
        A(f"v_and_b32 v{21+2*k}, 0xffff0000, v{32+k}")
    ln_stats(list(range(36, 44)), 44, 45, 51)
    for k in range(8): A(f"v_sub_f32 v{20+k}, v{20+k}, v44")
    for k in range(8): rbf(20 + k, 20 + k)
    for k in range(8): A(f"v_mul_f32 v{20+k}, v{20+k}, v45")
    for k in range(8): A(f"v_cvt_pk_bf16_f32 v{20+k}, v{20+k}, v{20+k}")
    for i in range(8):
        for r in range(4): A(f"v_and_b32 v{RX+4*i+r}, v{20+i}, v{6+r}")
    A("s_waitcnt vmcnt(0)")
    if qprof: A("s_memrealtime s[98:99]")
    for i in range(8):
        c = "0" if i == 0 else "v[28:31]"
        A(f"v_mfma_f32_16x16x32_bf16 v[28:31], v[{RX+4*i}:{RX+4*i+3}], v[{RA+4*i}:{RA+4*i+3}], {c}")
    A("s_mov_b32 exec_lo, 0x00ff00ff"); A("s_mov_b32 exec_hi, 0xff00ff00")
    A(f"ds_write_b128 v48, v[28:31] offset:{L_RED}")
    A("s_mov_b64 exec, -1")
    A("s_waitcnt lgkmcnt(0)")
    A("s_barrier")
    A("s_cmp_lg_u32 s3, 0")
    A("s_cbranch_scc1 L_ringb" if qhold else "s_cbranch_scc1 L_ring")
    A("s_setprio 3")
    A("v_and_b32 v50, 15, v1"); A("v_lshlrev_b32 v49, 10, v46"); A("v_lshl_add_u32 v49, v50, 4, v49")
    for k in range(4): A(f"ds_read_b128 v[{20+4*k}:{23+4*k}], v49 offset:{L_RED+256*k}")
    srd(36, 26, 27, WS_END)
    tags()
    A("v_and_b32 v45, 1, v46"); A("v_lshlrev_b32 v45, 1, v45"); A("v_lshrrev_b32 v44, 1, v46"); A("v_or_b32 v45, v45, v44")
    A("v_lshl_add_u32 v45, v50, 2, v45"); A("v_lshlrev_b32 v45, 2, v45")
    A("v_mov_b32 v49, s57"); A("v_mov_b32 v51, s58")
    A("v_cmp_eq_u32 vcc, 0, v44")
    A("v_cndmask_b32 v49, v51, v49, vcc")
    A("s_lshl_b32 s71, s69, 8"); A(f"s_add_u32 s71, s71, {QBUF}")
    A("s_waitcnt lgkmcnt(0)")
    sum4x4()
    rbf(20, 20)
    A("v_or_b32 v20, v20, v49")
    A("buffer_store_dword v20, v45, s[36:39], s71 offen sc1")
    stamp(2)
    if qhold: A("s_barrier")
    if qprof: A("s_waitcnt vmcnt(0)"); A("s_memrealtime s[96:97]")
    A("s_branch L_w0b")
    if qhold:
        A.label("L_ringb")
        A("s_barrier")
        A("s_branch L_ring")
    A.label("L_w0")
    A("s_setprio 3")
    srd(48, 4, 5, 1024)
    srd(36, 26, 27, WS_END)
    common_setup()
    A("s_waitcnt lgkmcnt(0)")
    tags()
    A.label("L_w0b")
    A("s_and_b32 s71, s2, 7"); A(f"s_cselect_b32 s71, {8+7*NX}, {8+7*NXT}"); A("s_lshl_b32 s71, s71, 13")
    A(f"v_mov_b32 v52, {L_TK}"); A("v_mov_b32 v48, s71")
    A("ds_write_b32 v52, v48")
    for r in range(4): A(f"v_mov_b32 v{24+r}, -1")
    A(f"ds_write_b128 v3, v[24:27] offset:{L_TB}")
    A(f"ds_write_b128 v3, v[24:27] offset:{L_TB+1024}")
    A("s_add_u32 s73, s59, s70")
    A("v_lshlrev_b32 v28, 12, v1"); A("v_add_u32 v28, s73, v28"); A("v_lshlrev_b32 v29, 2, v1")
    A("v_cmp_eq_u32 vcc, 0, v1"); A("v_addc_co_u32 v28, vcc, 0, v28, vcc")
    A(f"s_mov_b64 exec, {(1 << LA) - 1}")
    A(f"ds_write_b32 v29, v28 offset:{L_TB}")
    A("s_mov_b64 exec, -1")
    A("v_lshlrev_b32 v44, 1, v2")
    A("s_lshl_b32 s71, s76, 11"); A(f"s_add_u32 s71, s71, {QBUF}")
    A("s_add_u32 s14, s26, s71"); A("s_addc_u32 s15, s27, 0")
    A.label("L_qhint")
    for k in range(8): A(f"s_load_dword s{40+k}, s[14:15], {256*k} glc")
    A("s_waitcnt lgkmcnt(0)")
    for k in range(8): A(f"s_xor_b32 s{40+k}, s{40+k}, s57")
    for k in range(1, 8): A(f"s_or_b32 s40, s40, s{40+k}")
    A("s_and_b32 s40, s40, 0xffff")
    A("s_cbranch_scc0 L_qpoll")
    spin("L_qhint", qslp)
    A.label("L_qpoll")
    if qprof: A("s_memrealtime s[94:95]")
    A("buffer_load_dwordx4 v[20:23], v44, s[36:39], s71 offen sc1")
    A("buffer_load_dwordx4 v[24:27], v44, s[36:39], s71 offen offset:16 sc1")
    A("s_mov_b32 s73, 0x07060302")
    A("s_waitcnt vmcnt(0)")
    for e in range(8): A(f"v_xor_b32 v{20+e}, s{57+(e&1)}, v{20+e}")
    A("v_or3_b32 v45, v20, v21, v22"); A("v_or3_b32 v45, v45, v23, v24"); A("v_or3_b32 v45, v45, v25, v26"); A("v_or_b32 v45, v45, v27")
    A("v_and_b32 v45, 0xffff, v45")
    A("v_cmp_ne_u32 vcc, 0, v45")
    A("s_cbranch_vccz L_q_ok")
    spin("L_qpoll")
    A.label("L_q_ok")
    for k in range(4): A(f"v_perm_b32 v{6+k}, v{21+2*k}, v{20+2*k}, s73")
    A(f"ds_write_b128 v3, v[6:9] offset:{L_QF}")
    A("s_waitcnt lgkmcnt(0)")
    stamp(1)
    A("s_barrier")
    unitK(RA, 66)
    A("s_setprio 0")
    A.label("L_qj")
    A(f"ds_read_b128 v[6:9], v3 offset:{L_QF}")
    A(f"v_mov_b32 v52, {L_TK}"); A("v_mov_b32 v53, 8192")
    A("s_mov_b32 s69, 3"); A("s_mov_b32 s11, 0"); A("s_lshl_b32 s10, s70, 1")
    A("v_add_u32 v245, 4096, v3")
    A("s_lshr_b32 s71, s59, 4"); A(f"s_sub_u32 s71, {L_S}, s71"); A("v_lshl_add_u32 v246, v1, 2, s71")
    if trace: A("s_mov_b32 s98, 0"); A("v_mov_b32 v244, 0")
    A(f"s_mul_i32 s58, s77, {cstride}"); A(f"s_add_u32 s58, s58, {CBUF}")
    A("s_sub_u32 s57, 4, s78"); A("s_mul_i32 s57, s57, s67"); A("s_sub_u32 s57, 4096, s57"); A("s_lshl_b32 s57, s57, 12")
    if ew < 8:
        A(f"s_sub_u32 s101, s67, {ewx}"); A("s_lshl_b32 s101, s101, 12"); A("s_add_u32 s101, s101, s57")
        A(f"s_cmp_ge_u32 s3, {ew}"); A("s_cselect_b32 s101, s101, -1")
    stamp(3)
    A.label("L_k")
    draw()
    A("s_lshr_b32 s73, s66, 4"); A("v_add_u32 v48, s73, v246")
    A("s_waitcnt vmcnt(4) lgkmcnt(0)")
    A("v_readfirstlane_b32 s71, v54")
    qk(RA)
    A("s_add_u32 s66, s71, s59")
    A("s_cmp_ge_u32 s71, s70")
    A("s_cbranch_scc1 L_k2v0")
    ld4(RA, 2, 28, 66, kf)
    A.label("L_k0r")
    extract(); keep(0)
    A("s_waitcnt vmcnt(4)")
    qk(RA + 16)
    A("s_cmp_lg_u32 s11, 0")
    A("s_cbranch_scc1 L_k2v1")
    ld4(RA + 16, 244, 28, 66, kf)
    A.label("L_k1r")
    extract(); keep(256)
    A("s_cmp_eq_u32 s69, 3")
    A("s_cbranch_scc1 L_first")
    A.label("L_kn")
    A("s_cmp_eq_u32 s11, 0")
    A("s_cbranch_scc1 L_k")
    quad_all(18, "v_max_f32")
    rows_all(18, 49, "v_max_f32")
    A(f"ds_write_b32 v{TC+2}, v18 offset:{L_MX2}")
    if wsplit:
        A("s_cmp_lg_u32 s69, 0")
        A("s_cbranch_scc1 L_setup2")
        A.label("L_s2r")
    A(f"v_and_b32 v49, 0x60, v{TC+2}")
    A("s_waitcnt lgkmcnt(0)")
    A("s_barrier")
    A(f"ds_read_b128 v[20:23], v49 offset:{L_MX2}")
    A(f"ds_read_b128 v[24:27], v49 offset:{L_MX2+16}")
    A("s_waitcnt lgkmcnt(0)")
    A("v_max3_f32 v18, v20, v21, v22"); A("v_max3_f32 v18, v18, v23, v24"); A("v_max3_f32 v18, v18, v25, v26"); A("v_max_f32 v18, v18, v27")
    if warm:
        A(f"s_cmp_lg_u32 s3, {wwave}")
        A("s_cbranch_scc1 L_v")
        A("s_mov_b32 s11, 4")
        A("s_mov_b64 exec, 0")
        A("s_branch L_wp0")
        A.label("L_wret")
        A("s_cmp_lg_u32 s11, 4")
        A("s_cbranch_scc1 L_exit")
        A("s_mov_b32 s11, 1")
        A("s_mov_b64 exec, -1")
    A.label("L_v")
    draw()
    A("s_lshr_b32 s73, s66, 4"); A("v_add_u32 v48, s73, v246")
    A("ds_read2_b32 v[20:21], v48 offset0:0 offset1:64")
    A("s_waitcnt lgkmcnt(0)")
    A("v_readfirstlane_b32 s71, v54")
    pfrag(20)
    A("s_waitcnt vmcnt(4)")
    pv(RA)
    A("s_add_u32 s66, s71, s59"); A("s_sub_u32 s66, s66, s70")
    A("s_cmp_ge_u32 s71, s10")
    A("s_cbranch_scc1 L_v2c")
    ld4(RA, 3, 32, 66, vf)
    pfrag(21)
    A("s_waitcnt vmcnt(4)")
    pv(RA + 16)
    ld4(RA + 16, 245, 32, 66, vf)
    A("s_branch L_v")
    A.label("L_k2v0")
    A("s_sub_u32 s66, s66, s70"); A("s_mov_b32 s11, 1")
    ld4(RA, 3, 32, 66, vf)
    A("s_branch L_k0r")
    A.label("L_k2v1")
    ld4(RA + 16, 245, 32, 66, vf)
    A("s_branch L_k1r")
    A.label("L_v2c")
    A("s_mov_b32 s11, 2")
    A("s_branch L_dyn")
    A.label("L_vc0")
    A("s_mov_b32 s11, 3")
    ld4(RA, 2, 28, 66, kf)
    pfrag(21)
    A("s_waitcnt vmcnt(4)")
    pv(RA + 16)
    ld4(RA + 16, 3, 32, 66, vf)
    A("s_cmp_ge_u32 s66, s30")
    A("s_cbranch_scc1 L_done")
    A.label("L_loop")
    draw()
    A("s_waitcnt vmcnt(4) lgkmcnt(0)")
    A("v_readfirstlane_b32 s71, v54")
    qk(RA)
    A("s_branch L_dyn")
    A.label("L_go")
    ld4(RA, 2, 28, 66, kf)
    A.label("L_gox")
    extract()
    A("v_cmp_gt_f32 vcc, v44, v18")
    A("s_cbranch_vccz L_nors")
    A("v_max_f32 v45, v44, v18")
    quad_all(45, "v_max_f32")
    rows_all(45, 46, "v_max_f32")
    A("v_sub_f32 v46, v18, v45")
    A("v_exp_f32 v46, v46")
    A("v_mov_b32 v18, v45")
    A("v_mul_f32 v19, v19, v46")
    for h in range(4): A(f"v_mov_b32_dpp v47, v46 row_newbcast:{4*h} row_mask:{hex(1<<h)} bank_mask:0xf")
    for r in range(10, 18): A(f"v_mul_f32 v{r}, v{r}, v47")
    A.label("L_nors")
    pfrag(44)
    A("s_cmp_ge_u32 s66, s30")
    A("s_cbranch_scc1 L_last")
    A("s_waitcnt vmcnt(4)")
    pv(RA + 16)
    ld4(RA + 16, 3, 32, 66, vf)
    A("s_branch L_loop")
    A.label("L_first")
    A("s_mov_b32 s69, 0")
    A("s_cmp_eq_u32 s3, 0")
    A("s_cbranch_scc1 L_setup")
    A("s_lshl_b32 s71, s3, 9"); A(f"s_add_u32 s71, s71, {L_S}"); A("v_lshl_add_u32 v48, v1, 2, s71")
    A("s_waitcnt vmcnt(8)")
    for k in range(NX):
        if k == NXT:
            A("s_and_b32 s71, s2, 7"); A("s_cbranch_scc0 L_setup")
        for hf in range(2):
            qk(RX + 32 * k + 16 * hf); extract(); keep((7 + 7 * k) * 512 + 256 * hf)
    A.label("L_setup")
    A("v_lshrrev_b32 v46, 4, v1"); A("v_and_b32 v47, 3, v1"); A("v_bfe_u32 v45, v1, 2, 2"); A("v_and_b32 v50, 15, v1")
    A("v_and_b32 v48, 1, v46"); A("v_lshlrev_b32 v48, 1, v48"); A("v_lshrrev_b32 v49, 1, v46"); A("v_or_b32 v48, v48, v49")
    A("s_lshl_b32 s71, s3, 11"); A(f"v_lshlrev_b32 v{TC}, 5, v1"); A(f"v_add_u32 v{TC}, s71, v{TC}")
    A("s_lshl_b32 s71, s3, 3"); A(f"v_lshlrev_b32 v{TC+1}, 6, v45"); A(f"v_add_u32 v{TC+1}, s71, v{TC+1}")
    A(f"v_lshrrev_b32 v{TC+2}, 1, v{TC+1}")
    A("s_lshl_b32 s71, s3, 8"); A(f"v_lshlrev_b32 v{TC+3}, 12, v46"); A(f"v_lshl_add_u32 v{TC+3}, v50, 4, v{TC+3}"); A(f"v_add_u32 v{TC+3}, s71, v{TC+3}")
    A("s_lshr_b32 s71, s3, 1"); A("s_lshl_b32 s73, s71, 6"); A(f"v_lshlrev_b32 v{TC+4}, 4, v46"); A(f"v_add_u32 v{TC+4}, s73, v{TC+4}")
    A("s_lshl_b32 s73, s71, 5"); A(f"v_mov_b32 v{TC+5}, s73")
    A(f"v_lshl_add_u32 v{TC+6}, v50, 2, v48"); A(f"v_lshlrev_b32 v{TC+6}, 1, v{TC+6}")
    A("s_lshl_b32 s0, s76, 16"); A("s_lshl_b32 s73, s79, 11"); A("s_add_u32 s0, s0, s73")
    A("s_lshl_b32 s73, s3, 8"); A("s_add_u32 s0, s0, s73"); A(f"s_add_u32 s0, s0, {OBUF}")
    A("s_lshr_b32 s73, s3, 1"); A("s_lshl2_add_u32 s1, s76, s73"); A("s_lshl_b32 s1, s1, 5"); A("s_add_u32 s1, s1, s79")
    A(f"s_lshl_b32 s1, s1, {mlsh}"); A(f"s_add_u32 s1, s1, {MLBUF}")
    A(f"v_lshlrev_b32 v{TC+10}, 2, v1")
    A(f"v_lshlrev_b32 v{TC+27}, 3, v47"); A(f"v_lshrrev_b32 v{TC+27}, v{TC+27}, s52"); A(f"v_and_b32 v{TC+27}, 0xff, v{TC+27}")
    if opre is not None:
        A(f"buffer_load_dword v44, v{TC+10}, s[36:39], s0 offen {opre}")
        A("s_mov_b64 exec, 1")
        A(f"buffer_load_dword v45, v3, s[36:39], s1 offen {opre}")
        A("s_mov_b64 exec, -1")
        A("s_waitcnt vmcnt(0)")
    if tlbpf:
        A("s_cmp_lg_u32 s3, 0"); A("s_cbranch_scc1 L_notlb")
        A(f"v_lshlrev_b32 v44, {tlbpf}, v1")
        A(f"s_mov_b64 exec, {(1 << ((1 << (20 - tlbpf)) + 1)) - 1}")
        A("buffer_load_dword v245, v44, s[28:31], s57 offen nt")
        A("buffer_load_dword v246, v44, s[32:35], s57 offen nt")
        A("s_mov_b64 exec, -1")
        A.label("L_notlb")
    A("s_and_b32 s71, s2, 7")
    A("s_cbranch_scc1 L_kn")
    A("s_mov_b32 s69, 2")
    A("s_getreg_b32 s78, hwreg(HW_REG_XCC_ID, 0, 4)"); A("s_lshl_b32 s78, s78, 8")
    A("s_cmp_lg_u32 s3, 0"); A("s_cbranch_scc1 L_nox")
    for r in range(4): A(f"v_mov_b32 v{24+r}, -1")
    A("s_cmp_ge_u32 s77, 28"); A("s_cselect_b32 s71, 0, -1")
    for r in range(4): A(f"v_mov_b32 v{28+r}, s71")
    A("s_lshl_b32 s71, s77, 11"); A(f"s_add_u32 s71, s71, {YBUF}")
    A("buffer_store_dwordx4 v[28:31], v3, s[36:39], s71 offen sc1")
    A("buffer_store_dwordx4 v[28:31], v3, s[36:39], s71 offen offset:1024 sc1")
    A("s_lshl_b32 s71, s77, 9"); A(f"s_add_u32 s71, s71, {HBUF}")
    A("s_mov_b32 exec_hi, 0")
    A("buffer_store_dwordx4 v[24:27], v3, s[36:39], s71 offen sc1")
    A("s_mov_b32 exec_hi, -1")
    A("s_waitcnt vmcnt(0)")
    A("s_or_b32 s71, s78, s53")
    A("v_mov_b32 v20, s71"); A("v_mov_b32 v21, s54"); A("v_mov_b32 v22, s55"); A("v_mov_b32 v23, s56")

    A("s_lshl_b32 s71, s77, 4"); A(f"s_add_u32 s71, s71, {XBUF}")
    A("s_mov_b64 exec, 1")
    A("buffer_store_dwordx4 v[20:23], v3, s[36:39], s71 offen sc1")
    A("s_mov_b64 exec, -1")
    A.label("L_nox")
    srd(40, 12, 13, 4 << 20)
    A("s_lshr_b32 s68, s77, 1")
    A("s_lshl_b32 s71, s68, 18"); A("s_lshr_b32 s73, s3, 1"); A("s_lshl_b32 s73, s73, 16"); A("s_add_u32 s71, s71, s73")
    A("s_and_b32 s73, s3, 1"); A("s_lshl_b32 s73, s73, 10"); A("s_add_u32 s71, s71, s73")
    A("s_and_b32 s73, s77, 1"); A("s_lshl_b32 s73, s73, 9"); A("s_add_u32 s71, s71, s73")
    A("v_lshlrev_b32 v44, 4, v50"); A("v_lshl_add_u32 v45, v48, 13, v44"); A("v_lshl_add_u32 v44, v48, 11, v44")
    for jl in range(2):
        for half in range(2):
            for jh in range(2):
                for c2 in range(2):
                    r = WO + 8 * (4 * c2 + 2 * jh + jl) + 4 * half
                    A(f"buffer_load_dwordx4 v[{r}:{r+3}], v45, s[40:43], s71 offen offset:{2048*jh+256*c2} {wf}")
            if (jl, half) != (1, 1): A(f"s_add_u32 s71, s71, {4096 if half == 0 else 32768-4096}")
    A("v_and_b32 v51, 7, v1"); A("v_bfe_u32 v49, v1, 3, 1")
    A(f"v_lshl_add_u32 v{TC+25}, v48, 1, v49"); A(f"v_lshl_add_u32 v{TC+25}, v51, 3, v{TC+25}")
    A("s_lshl_b32 s71, s3, 6"); A(f"v_add_lshl_u32 v{TC+25}, v{TC+25}, s71, 1")
    A(f"buffer_load_ushort v{TC+13}, v{TC+25}, s[48:51], 0 offen")
    A("v_and_b32 v51, 7, v1"); A("v_and_b32 v45, 1, v46"); A("v_lshrrev_b32 v49, 5, v1")
    A(f"v_lshrrev_b32 v{TC+9}, 3, v1")
    A(f"v_lshlrev_b32 v{TC+8}, 13, v{TC+9}"); A(f"v_lshl_add_u32 v{TC+8}, v51, 4, v{TC+8}")
    A(f"v_lshl_add_u32 v{TC+9}, v{TC+9}, 2, v47"); A(f"v_lshlrev_b32 v{TC+9}, {mlsh}, v{TC+9}")
    A(f"v_lshlrev_b32 v{TC+24}, 4, v45"); A(f"v_lshl_add_u32 v{TC+24}, v50, 5, v{TC+24}")
    A(f"v_lshl_add_u32 v{TC+11}, v49, 9, v{TC+24}"); A("s_lshl_b32 s71, s3, 10"); A(f"v_add_u32 v{TC+11}, s71, v{TC+11}")
    A(f"v_lshrrev_b32 v{TC+24}, 1, v{TC+24}")
    A(f"v_lshrrev_b32 v{TC+14}, 3, v1"); A(f"v_lshlrev_b32 v{TC+14}, 10, v{TC+14}"); A(f"v_lshl_add_u32 v{TC+14}, v51, 4, v{TC+14}")
    A(f"v_lshrrev_b32 v{TC+12}, 3, v1"); A(f"v_lshlrev_b32 v{TC+12}, 10, v{TC+12}"); A(f"v_lshl_add_u32 v{TC+12}, v51, 4, v{TC+12}"); A("s_lshl_b32 s71, s3, 7"); A(f"v_add_u32 v{TC+12}, s71, v{TC+12}")
    A("s_lshl_b32 s71, s3, 4"); A(f"v_lshlrev_b32 v{TC+20}, 3, v49"); A(f"v_add_u32 v{TC+20}, s71, v{TC+20}"); A(f"v_lshlrev_b32 v{TC+21}, 4, v51")
    A("v_bfe_u32 v49, v1, 3, 1")
    A(f"v_lshlrev_b32 v{TC+23}, 11, v46"); A(f"v_lshl_add_u32 v{TC+23}, v49, 8, v{TC+23}"); A(f"v_lshl_add_u32 v{TC+23}, v51, 4, v{TC+23}")
    A("s_lshr_b32 s71, s3, 2"); A("s_lshl_b32 s71, s71, 7"); A(f"v_add_u32 v{TC+23}, s71, v{TC+23}")
    A("s_lshl_b32 s71, s3, 13"); A(f"s_add_u32 s71, s71, {L_WD}"); A(f"v_add_u32 v{TC+26}, s71, v3")
    A("s_mov_b32 m0, s71")
    A(f"v_lshrrev_b32 v{TC+22}, 1, v1"); A(f"v_lshlrev_b32 v{TC+22}, 10, v{TC+22}"); A("v_and_b32 v45, 1, v1"); A(f"v_lshl_add_u32 v{TC+22}, v45, 4, v{TC+22}")
    srd(44, 22, 23, 1024)
    if wsplit:
        A("s_branch L_kn")
        A.label("L_setup2")
        A("v_lshrrev_b32 v46, 4, v1"); A("v_and_b32 v50, 15, v1"); A("v_and_b32 v51, 7, v1")
        A("v_and_b32 v48, 1, v46"); A("v_lshlrev_b32 v48, 1, v48"); A("v_lshrrev_b32 v49, 1, v46"); A("v_or_b32 v48, v48, v49")
        A("v_lshlrev_b32 v44, 4, v50"); A("v_lshl_add_u32 v44, v48, 11, v44"); A("v_bfe_u32 v49, v1, 3, 1")
    A("s_cmp_ge_u32 s77, 28")
    A("s_cbranch_scc1 L_suj")
    A("s_mov_b32 s69, 1")
    A("s_lshl_b32 s71, s3, 6"); A("v_lshl_add_u32 v45, v48, 2, s71")
    A("v_mul_u32_u24 v45, 3584, v45"); A("v_lshl_add_u32 v45, v51, 4, v45"); A("s_lshl_b32 s71, s77, 7"); A("v_add_u32 v45, s71, v45")
    A("v_cmp_eq_u32 vcc, 0, v49")
    A("v_mov_b32 v20, s16"); A("v_mov_b32 v21, s18"); A("v_cndmask_b32 v20, v21, v20, vcc")
    A("v_mov_b32 v21, s17"); A("v_mov_b32 v22, s19"); A("v_cndmask_b32 v21, v22, v21, vcc")
    A("v_add_co_u32 v20, vcc, v20, v45"); A("v_addc_co_u32 v21, vcc, 0, v21, vcc")
    for j in range(4):
        for half in range(2):
            for v in range(2):
                r = WGU + 8 * (4 * v + j) + 4 * half
                A(f"global_load_dwordx4 v[{r}:{r+3}], v[20:21], off offset:{3584*v} {wf}")
            if (j, half) != (3, 1): A(f"v_add_co_u32 v20, vcc, {(2 if half == 0 else 14)*3584}, v20"); A("v_addc_co_u32 v21, vcc, 0, v21, vcc")
    srd(40, 20, 21, 1792 * 1024)
    A("s_lshl_b32 s71, s77, 16"); A("s_lshr_b32 s73, s3, 2"); A("s_lshl_b32 s73, s73, 15"); A("s_add_u32 s71, s71, s73")
    A("s_and_b32 s73, s3, 3"); A("s_lshl_b32 s73, s73, 8"); A("s_add_u32 s71, s71, s73")
    for i in range(8):
        A(f"buffer_load_dwordx4 v44, s[40:43], s71 offen {wf} lds")
        if i < 7: A(f"s_add_u32 s71, s71, {1024 if i % 2 == 0 else 7168}"); A("s_add_u32 m0, m0, 1024")
    A.label("L_suj")
    A("s_lshl_b32 s22, s77, 5"); A(f"s_add_u32 s22, s22, {YBUF}")
    A("s_add_u32 s23, s22, 32768")
    A("s_lshl_b32 s24, s3, 7"); A(f"s_add_u32 s24, s24, {HBUF}"); A("s_add_u32 s25, s24, 8192")
    A("s_lshr_b32 s16, s68, 1"); A("s_lshl_b32 s16, s16, 16"); A("s_and_b32 s71, s68, 1"); A("s_lshl_b32 s71, s71, 10"); A("s_add_u32 s16, s16, s71")
    A("s_lshl_b32 s71, s3, 7"); A("s_add_u32 s16, s16, s71"); A(f"s_add_u32 s16, s16, {OBUF}")
    A("s_add_u32 s17, s16, 4096")
    A("s_lshr_b32 s71, s3, 2"); A("s_lshl1_add_u32 s20, s68, s71"); A(f"s_lshl_b32 s20, s20, {5+mlsh}"); A(f"s_add_u32 s20, s20, {MLBUF}")
    A("s_lshl_b32 s21, s77, 9"); A("s_lshl_b32 s73, s3, 6"); A("s_add_u32 s21, s21, s73"); A(f"s_add_u32 s21, s21, {HBUF}")
    A("s_lshl_b32 s18, s77, 11"); A("s_lshl_b32 s71, s3, 8"); A("s_add_u32 s18, s18, s71"); A(f"s_add_u32 s18, s18, {YBUF}")
    A("s_lshr_b32 s68, s77, 2")
    A("s_branch L_s2r" if wsplit else "s_branch L_kn")

    A.label("L_dyn")
    A("s_sub_u32 s73, s71, s10"); A("s_lshr_b32 s73, s73, 11")
    A("v_mov_b32 v48, s73")
    A.label("L_dynw")
    A(f"ds_read_b32 v49, v48 offset:{L_TB}")
    A("s_waitcnt lgkmcnt(0)")
    A("v_readfirstlane_b32 s66, v49")
    A("s_cmp_lg_u32 s66, -1")
    A("s_cbranch_scc1 L_dyng")
    spin("L_dynw")
    A.label("L_dyng")
    if t1:
        A("s_cmp_eq_u32 s66, 2")
        A("s_cbranch_scc1 L_self")
    if skipoob:
        A("s_cmp_ge_u32 s66, s30")
        A("s_cbranch_scc1 L_dretx")
    A("s_bitcmp1_b32 s66, 0")
    A("s_cbranch_scc0 L_dret")
    A("s_and_b32 s66, s66, -2")
    A("s_max_u32 s71, s66, s57"); A("s_sub_u32 s71, s71, s57"); A("s_lshr_b32 s71, s71, 12"); A("s_sub_u32 s71, s67, s71")
    if tT:
        if tS:
            A(f"s_mul_i32 s14, s73, {sm}"); A("s_lshr_b32 s14, s14, 2"); A("s_add_u32 s14, s14, s71")
            A("s_cmp_lt_u32 s14, s67"); A(f"s_cselect_b32 s15, {tS}, 0")
            A("s_and_b32 s14, s2, 7"); A("s_cmp_eq_u32 s14, 2"); A("s_cselect_b32 s15, 0, s15")
            A("s_cmp_lg_u32 s14, 0"); A(f"s_cselect_b32 s14, s15, {tT}")
        else:
            A("s_and_b32 s14, s2, 7"); A(f"s_cselect_b32 s14, 0, {tT}")
        A("s_cmp_gt_u32 s71, s14")
        A("s_cbranch_scc1 L_dynt")
        A("v_lshl_add_u32 v48, v1, 2, v48")
        A("v_mov_b32 v51, s30")
        A(f"ds_write_b32 v48, v51 offset:{L_TB+4*LA}")
        A("s_branch L_dret")
        A.label("L_dynt")
    A(f"s_cmp_gt_u32 s71, {t4}"); A("s_cselect_b32 s15, 4, 2")
    A(f"s_cmp_gt_u32 s71, {t8}"); A(f"s_cselect_b32 s15, {b0}, s15")
    A("s_mov_b32 s14, s15")
    A("s_atomic_add s14, s[26:27], s58 glc")
    A("v_lshl_add_u32 v48, v1, 2, v48")
    A(f"s_sub_u32 s73, s15, {LA}")
    A("s_waitcnt lgkmcnt(0)")
    A("v_add_u32 v49, s14, v1")
    A("v_lshlrev_b32 v50, 12, v49"); A("v_add_u32 v50, s57, v50")
    A("s_add_u32 s14, s14, s15")
    A("s_cmp_ge_u32 s14, s67")
    A("s_cbranch_scc1 L_dynx")
    if t1:
        A(f"s_add_u32 s14, s14, {t1}")
        A("s_cmp_ge_u32 s14, s67")
        A("s_cbranch_scc1 L_dyns")
    A("v_cmp_eq_u32 vcc, s73, v1"); A("v_addc_co_u32 v50, vcc, 0, v50, vcc")
    A("v_cmp_gt_u32 vcc, s15, v1")
    A("s_mov_b64 exec, vcc")
    A(f"ds_write_b32 v48, v50 offset:{L_TB+4*LA}")
    A("s_mov_b64 exec, -1")
    A("s_branch L_dret")
    A.label("L_dynx")
    A("v_mov_b32 v51, s30")
    A("v_cmp_gt_u32 vcc, s67, v49")
    A("v_cndmask_b32 v50, v51, v50, vcc")
    A(f"ds_write_b32 v48, v50 offset:{L_TB+4*LA}")
    A("s_branch L_dret")
    if t1:
        A.label("L_dyns")
        A("v_cmp_gt_u32 vcc, s15, v1")
        A("v_cndmask_b32 v50, 2, v50, vcc")
        A(f"ds_write_b32 v48, v50 offset:{L_TB+4*LA}")
        A("s_branch L_dret")
        A.label("L_self")
        A("s_mov_b32 s14, 1")
        A("s_atomic_add s14, s[26:27], s58 glc")
        A("v_lshl_add_u32 v48, v1, 2, v48")
        A("v_mov_b32 v51, s30")
        A("s_waitcnt lgkmcnt(0)")
        A("s_lshl_b32 s66, s14, 12"); A("s_add_u32 s66, s66, s57")
        A("s_cmp_lt_u32 s14, s67")
        A("s_cbranch_scc1 L_dret")
        A("s_mov_b32 s66, s30")
        A(f"ds_write_b32 v48, v51 offset:{L_TB+4}")
        A("s_branch L_dret")

    A.label("L_dret")
    A("s_cmp_eq_u32 s11, 3")
    A("s_cbranch_scc1 L_go")
    A("s_branch L_vc0")
    A.label("L_dretx")
    A("s_cmp_eq_u32 s11, 3")
    A("s_cbranch_scc1 L_gox")
    A("s_branch L_vc0")
    def lred():
        quad_all(19, "v_add_f32")
        A(f"ds_write_b32 v{TC+2}, v18 offset:{L_MX}")
        rows_all(19, 49, "v_add_f32")
        A(f"ds_write_b64 v{TC+1}, v[18:19] offset:{L_ML}")
    A.label("L_done")
    lred()
    if skipoob:
        A("s_branch L_done2")
        A.label("L_last")
        A(".warm_on")
        lred()
        A("s_waitcnt vmcnt(0)")
        if trace: tr()
        VB = RA + 16
        for j in range(4):
            A(f"v_mfma_f32_16x16x16_bf16 v[10:13], v[{36+2*j}:{37+2*j}], v[{VB+4*j}:{VB+4*j+1}], v[10:13]")
            A(f"v_mfma_f32_16x16x16_bf16 v[14:17], v[{36+2*j}:{37+2*j}], v[{VB+4*j+2}:{VB+4*j+3}], v[14:17]")
        A.label("L_done2")
    stamp(4)
    if trace:
        A("s_lshl_b32 s71, s2, 3"); A("s_add_u32 s71, s71, s3"); A("s_lshl_b32 s71, s71, 8"); A("s_add_u32 s71, s71, 0x200000")
        A("v_lshlrev_b32 v48, 2, v1"); A("v_add_u32 v48, s71, v48")
        A("global_store_dword v48, v244, s[26:27]")
    if cut == 1: A("s_branch L_end")
    A("s_mov_b32 s73, 0xffffff00")
    A("v_mov_b32 v47, s53"); A("v_mov_b32 v48, s54"); A("v_mov_b32 v39, s56")
    A(f"ds_write_b128 v{TC}, v[10:13] offset:{L_OM}")
    A(f"ds_write_b128 v{TC}, v[14:17] offset:{L_OM+16}")
    A("s_cmp_eq_u32 s69, 1")
    A("s_cbranch_scc1 L_cs")
    A.label("L_csr")
    A("s_waitcnt lgkmcnt(0)")
    A("s_barrier")
    stamp(5)
    A(f"ds_read_b128 v[20:23], v{TC+5} offset:{L_MX}")
    A(f"ds_read_b128 v[24:27], v{TC+5} offset:{L_MX+16}")
    A(f"ds_read_b128 v[28:31], v{TC+4} offset:{L_ML}")
    A(f"ds_read_b128 v[10:13], v{TC+3} offset:{L_OM}")
    A(f"ds_read_b128 v[14:17], v{TC+3} offset:{L_OM+2048}")
    A("s_waitcnt lgkmcnt(3)")
    A("v_max3_f32 v36, v20, v21, v22"); A("v_max3_f32 v37, v23, v24, v25"); A("v_max3_f32 v36, v36, v26, v27"); A("v_max_f32 v36, v36, v37")
    A("s_waitcnt lgkmcnt(2)")
    A("v_sub_f32 v28, v28, v36"); A("v_sub_f32 v30, v30, v36")
    A("v_exp_f32 v28, v28"); A("v_exp_f32 v30, v30")
    A("v_lshl_or_b32 v38, v36, 24, s55")
    A("v_mul_f32 v37, v28, v29")
    A("v_fmac_f32 v37, v30, v31")
    A("s_waitcnt lgkmcnt(0)")
    A("v_mov_b32 v49, v37")
    for r in range(4): A(f"v_mul_f32 v{10+r}, v{10+r}, v28")
    A("v_permlane32_swap_b32 v37, v49")
    for r in range(2): A(f"v_fmac_f32 v{10+r}, v{14+r}, v30")
    A("v_add_f32 v37, v37, v49")
    for r in range(2, 4): A(f"v_fmac_f32 v{10+r}, v{14+r}, v30")
    A("v_mov_b32 v49, v37")
    A("v_permlane32_swap_b32 v10, v11")
    A("v_permlane32_swap_b32 v12, v13")
    A("v_add_f32 v10, v10, v11")
    A("v_add_f32 v12, v12, v13")
    A("v_permlane16_swap_b32 v37, v49")
    A("v_add_f32 v37, v37, v49")
    A("v_permlane16_swap_b32 v10, v12")
    A("v_add_f32 v10, v10, v12")
    A(f"v_and_or_b32 v10, v10, s73, v{TC+27}")
    A(f"buffer_store_dword v10, v{TC+10}, s[36:39], s0 offen {osf}")
    A("s_bitcmp1_b32 s3, 0")
    A("s_cbranch_scc1 L_mj")
    A("v_and_or_b32 v37, v37, s73, v48"); A("v_and_or_b32 v36, v36, s73, v47")
    A("s_mov_b64 exec, 1")
    A(f"buffer_store_dwordx4 v[36:39], v3, s[36:39], s1 offen {osf}")
    A("s_mov_b64 exec, -1")
    A(".warm_off")
    A.label("L_mj")
    stamp(6)
    A("s_cmp_eq_u32 s69, 0")
    A("s_cbranch_scc1 L_end")
    A("v_and_b32 v54, 0x1f0, v3")
    A(f"buffer_load_dwordx4 v[40:43], v54, s[36:39], 0 offen offset:{XBUF} sc1")
    if codepf:
        A("s_getpc_b64 s[12:13]")
        A.label("L_pcref")
        A("s_lshl_b32 s71, s3, 9"); A("s_add_u32 s12, s12, s71"); A("s_addc_u32 s13, s13, 0")
        A(f"v_lshlrev_b32 v48, 3, v1")
        A("global_load_dwordx2 v[44:45], v48, s[12:13]")
    if outpf:
        A("buffer_load_dword v44, v3, s[44:47], 0 offen")
    if pretouch:
        A("s_lshl_b32 s71, s3, 5"); A("s_add_u32 s71, s71, s77")
        A("s_cmp_ge_u32 s71, 80")
        A("s_cbranch_scc1 L_nopt")
        A("s_lshl_b32 s71, s71, 10"); A(f"s_add_u32 s71, s71, {HBUF}")
        A("buffer_load_dwordx4 v[44:47], v3, s[36:39], s71 offen sc1")
        A.label("L_nopt")
    A("s_mov_b32 s60, 0xfffefffe")
    OB = RA
    for k in range(4): A(f"ds_read_b128 v[{20+4*k}:{23+4*k}], v{TC+23} offset:{L_RED2+512*k}")
    A("s_waitcnt lgkmcnt(0)")
    sum4x4()
    A("v_mov_b32 v51, v20")
    A("s_waitcnt vmcnt(0)")
    A.label("L_xchk")
    for k in range(4): A(f"v_xor_b32 v{40+k}, s{53+k}, v{40+k}")
    A("v_or3_b32 v55, v41, v42, v43")
    A("v_and_b32 v53, 0xff, v40"); A("v_or_b32 v55, v55, v53")
    A("v_cmp_ne_u32 vcc, 0, v55")
    A("s_cbranch_vccz L_xok")
    A(f"buffer_load_dwordx4 v[40:43], v54, s[36:39], 0 offen offset:{XBUF} sc1")
    A("s_waitcnt vmcnt(0)")
    spin("L_xchk")
    A.label("L_xok")
    A("v_cmp_ne_u32 vcc, s78, v40")
    A("s_mov_b32 s64, 0")
    if local:
        A("s_cbranch_vccnz L_xg")
        A("s_mov_b32 s64, 1")
        A.label("L_xg")
    A(f"v_lshlrev_b32 v{TC+13}, 16, v{TC+13}")
    for i in range(8):
        r = WDR[i >> 1] + 4 * (i & 1)
        A(f"ds_read_b128 v[{r}:{r+3}], v{TC+26} offset:{1024*i}")
    for F in FS:
        for r in range(4): A(f"v_mov_b32 v{F+r}, 0")
    for r in range(10, 18): A(f"v_mov_b32 v{r}, 0")
    A("v_and_b32 v4, 3, v1"); A("v_mul_u32_u24 v4, 0x5555, v4")
    OG = [(OB + 4 * j, TC + 8, 16 + (j >> 1), 2048 * (j & 1)) for j in range(4)]
    A.label("L_h1pre")
    A(f"buffer_load_dword v23, v{TC+9}, s[36:39], s20 offen offset:12 sc1")
    A("s_waitcnt vmcnt(0)")
    A("v_cmp_eq_u32 vcc, s56, v23")
    A("s_bcnt1_i32_b64 s71, vcc")
    A(f"s_cmp_ge_u32 s71, {2*thr1}")
    A("s_cbranch_scc1 L_h1go")
    spin("L_h1pre", slp1)
    A.label("L_h1go")
    gather("L_h1", [[(20, TC + 9, 20, 0)]] + [[g] for g in OG])
    stamp(7)
    A(".warm_on")
    A("v_or_b32_sdwa v20, v20, v22 dst_sel:DWORD dst_unused:UNUSED_PAD src0_sel:DWORD src1_sel:BYTE_3")
    dpp("v_max_f32", 22, 20, 20, "quad_perm:[1,0,3,2]")
    for ctl in ("quad_perm:[2,3,0,1]", "row_ror:8"): dpp("v_max_f32", 22, 22, 22, ctl)
    rows_all(22, 23, "v_max_f32")
    A("v_sub_f32 v20, v20, v22")
    A("v_exp_f32 v20, v20")
    A("v_mul_f32 v21, v20, v21")
    fm = []
    for j in range(4):
        for r in range(4):
            op = "v_mul_f32" if j == 0 else "v_fmac_f32"
            fm.append(f"{op}_dpp v{24+r}, v20, v{OB+4*j+r} quad_perm:[{j},{j},{j},{j}] {DPPF}")
    lr = [f"v_add_f32_dpp v21, v21, v21 {c} {DPPF}" for c in ("quad_perm:[1,0,3,2]", "quad_perm:[2,3,0,1]", "row_ror:8")]
    lr += ["v_mov_b32 v22, v21", "v_permlane32_swap_b32 v21, v22", "v_add_f32 v21, v21, v22\nv_mov_b32 v22, v21"]
    for k in range(len(fm)):
        A(fm[k])
        if k % 2 == 1 and k >= 1 and lr: A(lr.pop(0))
    assert not lr
    A("v_permlane16_swap_b32 v21, v22")
    A("v_add_f32 v21, v21, v22")
    A("v_permlane32_swap_b32 v24, v25")
    A("v_permlane32_swap_b32 v26, v27")
    A("v_add_f32 v24, v24, v25")
    A("v_add_f32 v26, v26, v27")
    A("v_rcp_f32 v21, v21")
    A("v_permlane16_swap_b32 v24, v26")
    A("v_add_f32 v24, v24, v26")
    dpp("v_add_f32", 24, 24, 24, "row_ror:8")
    A("v_mul_f32 v20, v24, v21")
    rbf(20, 20)
    def frag(j, src):
        F = FS[j % 3]
        for r in range(4):
            A(f"v_mov_b32_dpp v{F+r}, v{src} row_newbcast:{2*j+(r>>1)} row_mask:0xf bank_mask:{'0x5' if r % 2 == 0 else '0xa'}")
        return F
    def frag2(j):
        F = FS[j % 3]
        for r in range(4):
            q = 2 * j + (r >> 1); second = r & 1
            src, p = (20, q & 3) if (q >> 2) == second else (21, 3 - (q & 3))
            A(f"v_mov_b32_dpp v{F+r}, v{src} quad_perm:[{p},{p},{p},{p}] row_mask:0xf bank_mask:{'0xa' if second else '0x5'}")
        return F
    def gemv16(W, red, pair=True):
        fr = frag2 if pair else (lambda i: frag(i, 20))
        if pair: A(f"v_mov_b32_dpp v21, v20 row_half_mirror {DPPF}")
        Fs = {0: fr(0)}
        for j in range(4):
            if j < 3: Fs[j + 1] = fr(j + 1)
            for v in range(2):
                acc = 10 + 4 * v; b = W + 8 * (4 * v + j)
                A(f"v_smfmac_f32_16x16x64_bf16 v[{acc}:{acc+3}], v[{Fs[j]}:{Fs[j]+3}], v[{b}:{b+7}], v4")
        A("s_mov_b32 exec_hi, 0")
        A(f"ds_write_b128 v{TC+11}, v[10:13] offset:{red}")
        A("s_not_b64 exec, exec")
        A(f"ds_write_b128 v{TC+11}, v[14:17] offset:{red}")
        A("s_mov_b64 exec, -1")
        A("s_waitcnt lgkmcnt(0)")
        A("s_barrier")
    gemv16(WO, L_RED, pair=False)
    A(f"ds_read_b128 v[20:23], v{TC+12} offset:{L_RED}")
    A("s_cmp_eq_u32 s64, 1")
    A("s_waitcnt lgkmcnt(0)")
    rr4(20, 21, 22, 23)
    dpp("v_add_f32", 20, 20, 20, "row_ror:8")
    A("s_mov_b32 exec_lo, 0x00ff00ff"); A("s_mov_b32 exec_hi, 0x00ff00ff")
    rbf(36, 20)
    A("v_min_u32 v36, s60, v36")
    lstore("L_hs", f"buffer_store_short_d16_hi v36, v{TC+6}, s[36:39], s21 offen")
    A("s_mov_b64 exec, -1")
    stamp(8)
    if hw == -1: A("s_waitcnt vmcnt(0)")
    elif hw == -2: A("s_barrier")
    elif hw: A(f"s_sleep {hw}")
    A.label("L_h2")
    A("s_cmp_lg_u32 s69, 2")
    A("s_cbranch_scc1 L_h2f")
    A("s_cmp_lg_u32 s3, 7")
    A("s_cbranch_scc1 L_end")
    A.label("L_h2f")
    for r in list(range(10, 18)) + list(range(56, 60)): A(f"v_mov_b32 v{r}, 0")
    for r in range(4): A(f"v_mov_b32 v{68+r}, 0")
    A("v_mov_b32 v52, 1.0")
    for r in range(4): A(f"v_mov_b32_dpp v{68+r}, v52 quad_perm:[0,0,0,0] row_mask:0xf bank_mask:{'0x5' if r % 2 == 0 else '0xa'}")
    gathers("L_h2", TC + 14, 24)
    stamp(2)
    for r in range(4): A(f"v_add_f32_dpp v20, v{28+r}, v{28+r} row_ror:8 row_mask:{'0x3' if r < 2 else '0xc'} bank_mask:{'0xc' if r & 1 else '0x3'}")
    A(f"v_add_f32 v20, v20, v{TC+13}")
    rbf(20, 20)
    A("s_cmp_eq_u32 s69, 2")
    A("v_mov_b32 v50, v20")
    A("s_cbranch_scc1 L_fin0")
    A("v_readfirstlane_b32 s71, v20")
    A(f"v_mov_b32_dpp v21, v20 row_half_mirror {DPPF}")
    st = ["v_subrev_f32 v25, s71, v20\nv_mov_b32 v24, s71\nv_mul_f32 v26, v25, v25", "v_permlane32_swap_b32 v25, v26\nv_add_f32 v25, v25, v26"]
    st += [f"v_add_f32_dpp v25, v25, v25 {c} {DPPF}" for c in ("quad_perm:[1,0,3,2]", "quad_perm:[2,3,0,1]", "row_ror:8")]
    st += [f"v_add_f32_dpp v25, v25, v25 row_ror:4 {DPPF}\nv_mov_b32 v26, v25", "v_permlane16_swap_b32 v25, v26\nv_add_f32 v25, v25, v26"]
    A(st.pop(0))
    Fs = {0: frag2(0)}
    A(st.pop(0))
    for j in range(4):
        if j < 3: Fs[j + 1] = frag2(j + 1); A(st.pop(0))
        for v in range(2):
            acc = 10 + 4 * v; b = WGU + 8 * (4 * v + j)
            A(f"v_smfmac_f32_16x16x64_bf16 v[{acc}:{acc+3}], v[{Fs[j]}:{Fs[j]+3}], v[{b}:{b+7}], v4")
        if j >= 2: A(st.pop(0))
    assert not st
    A("s_mov_b32 exec_lo, 1"); A("s_mov_b32 exec_hi, 1")
    A(f"ds_write_b64 v{TC+20}, v[24:25] offset:{L_ST}")
    A("s_mov_b32 exec_lo, -1"); A("s_mov_b32 exec_hi, 0")
    A(f"ds_write_b128 v{TC+11}, v[10:13] offset:{L_RED2}")
    A("s_not_b64 exec, exec")
    A(f"ds_write_b128 v{TC+11}, v[14:17] offset:{L_RED2}")
    A("s_mov_b64 exec, -1")
    A("s_waitcnt lgkmcnt(0)")
    A("s_barrier")
    stamp(3)
    A(f"ds_read_b128 v[60:63], v{TC+21} offset:{L_ST}")
    for k in range(4): A(f"ds_read_b128 v[{20+4*k}:{23+4*k}], v{TC+23} offset:{L_RED2+512*k}")
    A("s_waitcnt lgkmcnt(4)")
    A("v_readfirstlane_b32 s71, v60")
    A("v_subrev_f32 v60, s71, v60")
    A("v_fmamk_f32 v64, v60, 0x42800000, v61")
    A("v_add_f32 v61, v61, v64")
    A("v_fma_f32 v62, v60, v61, v63")
    A("s_waitcnt lgkmcnt(0)")
    c3 = ("quad_perm:[1,0,3,2]", "quad_perm:[2,3,0,1]", "row_half_mirror")
    pk = ["v_pk_add_f32 v[20:21], v[20:21], v[24:25]", "v_pk_add_f32 v[22:23], v[22:23], v[26:27]", "v_pk_add_f32 v[28:29], v[28:29], v[32:33]",
          "v_pk_add_f32 v[30:31], v[30:31], v[34:35]", "v_pk_add_f32 v[20:21], v[20:21], v[28:29]", "v_pk_add_f32 v[22:23], v[22:23], v[30:31]"]
    for k in range(3):
        A(pk[2 * k]); dpp("v_add_f32", 64, 64, 64, c3[k]); A(pk[2 * k + 1]); dpp("v_add_f32", 62, 62, 62, c3[k])
    A("v_mul_f32 v64, 0x3b000000, v64")
    A("v_permlane32_swap_b32 v20, v21")
    A("v_permlane32_swap_b32 v22, v23")
    A("v_mul_f32 v62, 0x3b000000, v62")
    A("v_add_f32 v20, v20, v21")
    A("v_add_f32 v22, v22, v23")
    A("v_fma_f32 v62, -v64, v64, v62")
    A("v_max_f32 v62, 0, v62")
    A("v_permlane16_swap_b32 v20, v22")
    A("v_add_f32 v62, 0x3727c5ac, v62")
    A("v_add_f32 v64, s71, v64")
    A("v_rsq_f32 v62, v62")
    A("v_add_f32 v20, v20, v22")
    A("v_fma_f32 v20, -v64, v51, v20")
    A("v_mul_f32 v20, v20, v62")
    dpp("v_mul_f32", 21, 20, 20, "row_ror:8")
    rbf(21, 21)
    Fs = {0: frag(0, 21)}
    for j in range(4):
        if j < 3: Fs[j + 1] = frag(j + 1, 21)
        A(f"v_smfmac_f32_16x16x64_bf16 v[56:59], v[{Fs[j]}:{Fs[j]+3}], v[{WDR[j]}:{WDR[j]+7}], v4")
    A("s_mov_b32 exec_hi, 0")
    A("s_cmp_eq_u32 s64, 1")
    A("v_cvt_pk_bf16_f32 v56, v56, v57"); A("v_cvt_pk_bf16_f32 v57, v58, v59")
    A("v_pk_min_u16 v56, s60, v56"); A("v_pk_min_u16 v57, s60, v57")
    lstore("L_ys", f"buffer_store_dwordx2 v[56:57], v{TC+24}, s[36:39], s18 offen")
    stamp(9)
    A("s_cmp_lg_u32 s3, s68")
    A("s_cbranch_scc1 L_end")
    A("s_mov_b64 exec, -1")
    if yw == -1: A("s_waitcnt vmcnt(0)")
    elif yw: A(f"s_sleep {yw}")
    A("s_branch L_fin")
    A.label("L_fin0")
    A("s_cmp_lg_u32 s77, 28"); A("s_cbranch_scc1 L_fin")
    A("s_mov_b64 exec, 1")
    A("v_mov_b32 v36, s52")
    A("buffer_store_dword v36, v3, s[36:39], 0 offen sc1")
    A("s_mov_b64 exec, -1")
    A.label("L_fin")
    A("s_and_b32 s71, s77, 3"); A("s_lshl_b32 s71, s71, 1"); A("s_lshl_b32 s71, 0x03030303, s71")
    gathers("L_h3", TC + 22, 22)
    stamp(5)
    for r in range(4): A(f"v_add_f32_dpp v{20+(r&1)}, v{28+r}, v{28+r} quad_perm:[2,3,0,1] row_mask:{'0x3' if r < 2 else '0xc'} bank_mask:0xf")
    dpp("v_add_f32", 20, 20, 20, "row_ror:4"); dpp("v_add_f32", 21, 21, 21, "row_ror:4")
    A("v_add_f32_dpp v22, v20, v20 row_ror:8 row_mask:0xf bank_mask:0x3")
    A("v_add_f32_dpp v22, v21, v21 row_ror:8 row_mask:0xf bank_mask:0xc")
    A("v_add_f32 v20, v22, v50")
    rbf(20, 20)
    if diag and diag[1] == "ack":
        A("s_mov_b32 exec_lo, s71"); A("s_mov_b32 exec_hi, s71")
        A(f"buffer_store_short_d16_hi v20, v{TC+25}, s[44:47], 0 offen")
        A("s_waitcnt vmcnt(0)")
        A("s_memrealtime s[86:87]")
    if diag:
        A("s_waitcnt lgkmcnt(0)")
        A("s_sub_u32 s84, s86, s84"); A(f"s_mul_i32 s84, s84, {diag[2]}"); A("s_add_u32 s84, s84, 6000"); A("s_min_u32 s84, s84, 100000")
        A.label("L_dg1")
        A("s_memrealtime s[82:83]"); A("s_waitcnt lgkmcnt(0)")
        A("s_sub_u32 s82, s82, s80"); A("s_cmp_lt_u32 s82, s84"); A("s_cbranch_scc1 L_dg1")
    A("s_mov_b32 exec_lo, s71"); A("s_mov_b32 exec_hi, s71")
    A(f"buffer_store_short_d16_hi v20, v{TC+25}, s[44:47], 0 offen")
    A(".warm_off")
    A("s_branch L_end")
    A.label("L_cs")
    A("v_and_b32 v4, 3, v1"); A("v_mul_u32_u24 v4, 0x5555, v4")
    for r in range(20, 32): A(f"v_mov_b32 v{r}, 0")
    A("v_mov_b32 v32, 1.0")
    A("s_waitcnt vmcnt(0)")
    for r in range(4): A(f"v_mov_b32_dpp v{28+r}, v32 quad_perm:[0,0,0,0] row_mask:0xf bank_mask:{'0x5' if r % 2 == 0 else '0xa'}")
    for j in range(4):
        for v in range(2):
            b = WGU + 8 * (4 * v + j)
            A(f"v_smfmac_f32_16x16x64_bf16 v[{20+4*v}:{23+4*v}], v[28:31], v[{b}:{b+7}], v4")
    A("s_mov_b32 exec_hi, 0")
    A(f"ds_write_b128 v{TC+11}, v[20:23] offset:{L_RED2}")
    A("s_not_b64 exec, exec")
    A(f"ds_write_b128 v{TC+11}, v[24:27] offset:{L_RED2}")
    A("s_mov_b64 exec, -1")
    A("s_branch L_csr")
    for (lab, back) in post:
        A.label(lab); spin(back)
    for (name, text) in post2:
        A.label(f"{name}_g"); A(text + " sc1"); A(f"s_branch {name}_j")
    A.label("L_end")
    if prof:
        A("s_waitcnt vmcnt(0)")
        stamp(10)
        A("s_mov_b64 exec, -1")
        A("s_waitcnt lgkmcnt(0)")
        for i in range(11): A(f"v_writelane_b32 v20, s{80+2*i}, {i}")
        A("v_writelane_b32 v20, s64, 11")
        A("s_getreg_b32 s71, hwreg(HW_REG_XCC_ID)"); A("v_writelane_b32 v20, s71, 12")
        A("s_lshl_b32 s71, s2, 3"); A("s_add_u32 s71, s71, s3"); A("s_lshl_b32 s71, s71, 6"); A(f"s_add_u32 s71, s71, {PROF}")
        A("v_lshlrev_b32 v21, 2, v1")
        A("s_mov_b64 exec, 0xffff")
        A("buffer_store_dword v20, v21, s[36:39], s71 offen")
    A.label("L_exit")
    A("s_endpgm")
    body = A.finish()
    nv = max(A.maxv + 1, 136)
    txt = HEADER + f"; @launch grid=(256,1,1) block=(512,1,1) lds={L_END}\n"
    txt += f'.amdgcn_target "amdgcn-amd-amdhsa--gfx950"\n.text\n.globl {KNAME}\n.p2align 8\n.type {KNAME},@function\n{KNAME}:\n'
    txt += body
    txt += ".fill 256, 4, 0xbf800000\n"
    txt += f'.section .rodata,"a"\n.p2align 6\n.amdhsa_kernel {KNAME}\n  .amdhsa_next_free_vgpr {nv}\n  .amdhsa_next_free_sgpr 102\n'
    txt += f"  .amdhsa_accum_offset {(nv+3)//4*4}\n  .amdhsa_group_segment_fixed_size 0\n  .amdhsa_kernarg_size 96\n  .amdhsa_user_sgpr_count 2\n"
    txt += "  .amdhsa_user_sgpr_kernarg_segment_ptr 1\n  .amdhsa_system_sgpr_workgroup_id_x 1\n  .amdhsa_float_denorm_mode_32 3\n.end_amdhsa_kernel\n"
    return txt

if __name__ == "__main__":
    import argparse
    p = argparse.ArgumentParser(); p.add_argument("-o"); p.add_argument("kv", nargs="*")
    a = p.parse_args()
    kw = {k: eval(v) for k, v in (x.split("=") for x in a.kv)}
    open(a.o, "w").write(gen(**kw))
```

```python
import sys, struct
sys.path.insert(0, "gen")
from asmlib import Asm

KNAME = "sequential_preLN__gqa_block_cached__glu_gated_bilinear__decode_kernel"
HEADER = open("sequential_preLN__gqa_block_cached__glu_gated_bilinear__decode.s.ref").read().split("; Override launch")[0]

DOC = """; ---------------------------------------------------------------------------------------------
; ---------------------------------------------------------------------------------------------
"""
XBUF, QBUF, OBUF, HBUF, YBUF, CBUF, MLBUF, WS_END = 0x800, 0x1000, 0x10000, 0xAC000, 0xB0000, 0xD0000, 0x140000, 0x180000
PROF = 0x100000
L_OM, L_ML, L_MX, L_QF, L_TK, L_ST, L_RED, L_RED2, L_HL, L_TB, L_WD, L_S, L_END = 0, 0x4000, 0x4100, 0x4600, 0x4A00, 0x4B00, 0x5000, 0x7000, 0x4C00, 0x9000, 0x9800, 0x19800, 0x21800
DPPF = "row_mask:0xf bank_mask:0xf"
SPIN = 1 << 20
L_MX2 = 0x4200

def gen(NX=4, prof=False, S0=104, offT=48, offF=24, offQ=12, thr1=8, slp1=4, qslp=4, LA=2, t8=128, t4=48, t1=0, b0=8,
        cstride=256, kf='nt', vf='nt', wf='nt', mlsh=4, cut=0, local=True, pretouch=True, tT=64, diag=0, codepf=True, outpf=False, h2pre=False, opre=None, osf='sc1', ew=8, ewx=0, PS=0, pgap=0, flat2=True, flat3=True, skipoob=True, hw=-2, yw=0, stx=True, noround=0, trace=False, tlbpf=0, tS=0, sm=8, XT=0, W=0, qprof=False, qhold=True, X2=2, NXT=1, wpf=False, wf2=None, wsplit=False, warm=0, wwave=7, contig=False, spread=False, rot=0, perm=None):
    A = Asm()
    if warm: A.warm = (warm, 'L_wret')
    CM = {'L_ring': 'prefetch K units of the static range (q is not needed yet)', 'L_qprod': 'q producers: LayerNorm(x), 64 columns of x @ wq, 64 rows per wave', 'L_w0b': "wave 0: LDS counters / chunk table, wait for this head's q", 'L_k': 'phase K: two 16-key chunks per ticket, scores (log2 domain) to LDS', 'L_v': 'phase V: P = exp2(z - max), O += P @ V', 'L_loop': 'phase C: K and V of one pool chunk, online softmax', 'L_first': 'first pass: scores of the prefetched extra units', 'L_setup': 'one-time address constants; tail workgroups also clear their slots and load weights', 'L_dyn': 'pool hand-out: LDS table refilled in batches from the pool counter', 'L_done': "merge the 8 waves' partials and publish them", 'L_xchk': 'tail workgroups: placement check', 'L_h1pre': 'gather the 32 partials of two heads, combine, apply wo', 'L_h2': 'gather partial sums of h, gate/up, LayerNorm statistics, w_down', 'L_fin': 'gather partial outputs, residual, store', 'L_cs': 'column sums of the gate/up slice'}
    _lab = A.label
    def label(name):
        if name in CM: A.lines.append("; ---- " + CM[name])
        _lab(name)
    A.label = label
    RA, RX = 56, 88
    WO, WGU = 88, 152
    WDR = [72, 80, 244, 40]
    FS = [232, 6, 252]
    TC = 216
    OOB = 0x1000000
    D0 = (4096 - 32 * S0 + 8 * offQ + 4 * offT) // 4
    assert offF % 4 == 0
    D1 = D0 - offF // 4
    assert LA + D0 + 64 + 64 <= 512
    seen = {}
    def stamp(i):
        if prof: A(f"s_memrealtime s[{80+2*i}:{81+2*i}]")
        seen[i] = seen.get(i, 0) + 1
        if diag:
            if (i, seen[i]) == (0, 1): A("s_memrealtime s[80:81]")
            if diag[0] == (i, seen[i]): A("s_memrealtime s[84:85]")
            if diag[1] == (i, seen[i]): A("s_memrealtime s[86:87]")
    def rr4(a, b, c, d):
        A(f"v_permlane32_swap_b32 v{a}, v{b}")
        A(f"v_permlane32_swap_b32 v{c}, v{d}")
        A(f"v_add_f32 v{a}, v{a}, v{b}")
        A(f"v_add_f32 v{c}, v{c}, v{d}")
        A(f"v_permlane16_swap_b32 v{a}, v{c}")
        A(f"v_add_f32 v{a}, v{a}, v{c}")
    def rows_all(x, t, op):
        A(f"v_mov_b32 v{t}, v{x}")
        A(f"v_permlane32_swap_b32 v{x}, v{t}")
        A(f"{op} v{x}, v{x}, v{t}")
        A(f"v_mov_b32 v{t}, v{x}")
        A(f"v_permlane16_swap_b32 v{x}, v{t}")
        A(f"{op} v{x}, v{x}, v{t}")
    def dpp(op, d, s, o, ctl): A(f"{op}_dpp v{d}, v{s}, v{o} {ctl} {DPPF}")
    def quad_all(x, op):
        dpp(op, x, x, x, "quad_perm:[1,0,3,2]"); dpp(op, x, x, x, "quad_perm:[2,3,0,1]")
    def wave_all(x, t, op):
        quad_all(x, op); dpp(op, x, x, x, "row_ror:8"); dpp(op, x, x, x, "row_ror:4"); rows_all(x, t, op)
    def rbf(d, s): A(f"v_cvt_pk_bf16_f32 v{d}, 0, v{s}")
    def ln_fin(mean, var):
        rbf(var, var)
        rbf(mean, mean)
        A(f"v_add_f32 v{var}, 0x37280000, v{var}")
        rbf(var, var)
        A(f"v_sqrt_f32 v{var}, v{var}")
        rbf(var, var)
        A(f"v_rcp_f32 v{var}, v{var}")
    def ln_stats(vals, mean, rinv, t):
        A(f"v_add_f32 v{mean}, v{vals[0]}, v{vals[1]}")
        A(f"v_add_f32 v{t}, v{vals[2]}, v{vals[3]}")
        A(f"v_add_f32 v{rinv}, v{vals[4]}, v{vals[5]}")
        A(f"v_add_f32 v{mean}, v{mean}, v{t}")
        A(f"v_add_f32 v{t}, v{vals[6]}, v{vals[7]}")
        A(f"v_add_f32 v{rinv}, v{rinv}, v{t}")
        A(f"v_add_f32 v{mean}, v{mean}, v{rinv}")
        wave_all(mean, t, "v_add_f32")
        A(f"v_mul_f32 v{mean}, 0x3b000000, v{mean}")
        for v in vals: A(f"v_sub_f32 v{v}, v{v}, v{mean}")
        A(f"v_mul_f32 v{rinv}, v{vals[0]}, v{vals[0]}")
        A(f"v_mul_f32 v{t}, v{vals[1]}, v{vals[1]}")
        for k in range(2, 8, 2):
            A(f"v_fmac_f32 v{rinv}, v{vals[k]}, v{vals[k]}")
            A(f"v_fmac_f32 v{t}, v{vals[k+1]}, v{vals[k+1]}")
        A(f"v_add_f32 v{rinv}, v{rinv}, v{t}")
        wave_all(rinv, t, "v_add_f32")
        A(f"v_mul_f32 v{rinv}, 0x3b000000, v{rinv}")
        ln_fin(mean, rinv)
    def srd(d, lo, hi, n):
        A(f"s_mov_b32 s{d}, s{lo}"); A(f"s_mov_b32 s{d+1}, s{hi}"); A(f"s_mov_b32 s{d+2}, {hex(n)}"); A(f"s_mov_b32 s{d+3}, 0x20000")
    def spin(label, slp=0):
        A("s_sub_u32 s72, s72, 1")
        A("s_cbranch_scc1 L_end")
        if slp: A(f"s_sleep {slp}")
        A(f"s_branch {label}")
    MREG = [4, 6, 8, 14, 62]
    def gather(name, groups, init_masks=None, check_first=False):
        ng = len(groups)
        for j in range(ng):
            m = -1 if init_masks is None else init_masks[j]; M = MREG[j]
            if m == -1: A(f"s_mov_b64 s[{M}:{M+1}], -1")
            else: A(f"s_mov_b32 s{M}, {hex(m & 0xffffffff)}"); A(f"s_mov_b32 s{M+1}, {hex(m >> 32)}")
        if check_first: A(f"s_branch {name}_chk")
        A.label(f"{name}_rnd")
        for j, g in enumerate(groups):
            M = MREG[j]
            A(f"s_mov_b64 exec, s[{M}:{M+1}]")
            A(f"s_cbranch_execz {name}_i{j}")
            for (r, va, so, imm) in g:
                A(f"buffer_load_dwordx4 v[{r}:{r+3}], v{va}, s[36:39], s{so} offen offset:{imm} sc1")
            A.label(f"{name}_i{j}")
        A.label(f"{name}_chk")
        A("s_mov_b64 s[12:13], 0")
        A("s_waitcnt vmcnt(0)")
        for j, g in enumerate(groups):
            M = MREG[j]
            A(f"s_mov_b64 exec, s[{M}:{M+1}]")
            A(f"s_cbranch_execz {name}_c{j}")
            regs = [r + k for (r, _, _, _) in g for k in range(4)]
            for k, r in enumerate(regs): A(f"v_xor_b32 v{r}, s{53+(k&3)}, v{r}")
            A(f"v_or3_b32 v55, v{regs[0]}, v{regs[1]}, v{regs[2]}")
            rest = regs[3:]
            while len(rest) >= 2:
                A(f"v_or3_b32 v55, v55, v{rest[0]}, v{rest[1]}"); rest = rest[2:]
            A(f"v_or_b32 v55, v55, v{rest[0]}")
            A("v_and_b32 v55, 0xff, v55")
            A(f"v_cmp_ne_u32 s[{M}:{M+1}], 0, v55")
            A(f"s_or_b64 s[12:13], s[12:13], s[{M}:{M+1}]")
            A.label(f"{name}_c{j}")
        A("s_mov_b64 exec, -1")
        A("s_cmp_eq_u64 s[12:13], 0")
        A(f"s_cbranch_scc1 {name}_ok")
        spin(f"{name}_rnd")
        A.label(f"{name}_ok")
    def gatherp(name, groups, raws):
        ng = len(groups)
        for j in range(ng): A(f"s_mov_b64 s[{MREG[j]}:{MREG[j]+1}], -1")
        NL = sum(len(g) for g in groups)
        def issue(rb):
            n = 0
            for j, g in enumerate(groups):
                A(f"s_or_b64 exec, s[{MREG[j]}:{MREG[j]+1}], 1")
                for (r, va, so, imm) in g:
                    A(f"buffer_load_dwordx4 v[{rb+4*n}:{rb+4*n+3}], v{va}, s[36:39], s{so} offen offset:{imm} sc1")
                    n += 1
        for rb in raws: issue(rb)
        A.label(f"{name}_rnd")
        for k, rb in enumerate(raws):
            A("s_mov_b64 s[12:13], 0")
            A(f"s_waitcnt vmcnt({(len(raws)-1)*NL})")
            n = 0
            for j, g in enumerate(groups):
                M = MREG[j]
                A(f"s_mov_b64 exec, s[{M}:{M+1}]")
                A(f"s_cbranch_execz {name}_c{k}_{j}")
                regs = []
                for (r, _, _, _) in g:
                    for e in range(4):
                        A(f"v_xor_b32 v{r+e}, s{53+e}, v{rb+4*n+e}"); regs.append(r + e)
                    n += 1
                A(f"v_or3_b32 v55, v{regs[0]}, v{regs[1]}, v{regs[2]}")
                A(f"v_or_b32 v55, v55, v{regs[3]}")
                A("v_and_b32 v55, 0xff, v55")
                A(f"v_cmp_ne_u32 s[{M}:{M+1}], 0, v55")
                A(f"s_or_b64 s[12:13], s[12:13], s[{M}:{M+1}]")
                A.label(f"{name}_c{k}_{j}")
            A("s_cmp_eq_u64 s[12:13], 0")
            A(f"s_cbranch_scc1 {name}_ok")
            if pgap: A(f"s_sleep {pgap}")
            issue(rb)
        spin(f"{name}_rnd")
        A.label(f"{name}_ok")
        A("s_mov_b64 exec, -1")
    def gatherf(name, loads, last_half=False):
        A.label(f"{name}_rnd")
        for k, (r, va, so, imm) in enumerate(loads):
            if last_half and k == len(loads) - 1:
                for e in range(4): A(f"v_mov_b32 v{r+e}, s{53+e}")
                A("s_mov_b32 exec_hi, 0")
            A(f"buffer_load_dwordx4 v[{r}:{r+3}], v{va}, s[36:39], s{so} offen offset:{imm} sc1")
        if last_half: A("s_mov_b32 exec_hi, -1")
        n = len(loads)
        for k, (r, _, _, _) in enumerate(loads):
            A(f"s_waitcnt vmcnt({n-1-k})")
            for e in range(4): A(f"v_xor_b32 v{r+e}, s{53+e}, v{r+e}")
            if k == 0: A(f"v_or_b32 v55, v{r}, v{r+1}")
            else: A(f"v_or3_b32 v55, v55, v{r}, v{r+1}")
            A(f"v_or3_b32 v55, v55, v{r+2}, v{r+3}")
        A("v_and_b32 v55, 0xff, v55")
        A("v_cmp_ne_u32 vcc, 0, v55")
        A(f"s_cbranch_vccnz {name}_re")
        post.append((f"{name}_re", f"{name}_rnd"))
    def gathers(name, va, so):
        A.label(f"{name}_rnd")
        A(f"buffer_load_dwordx4 v[20:23], v{va}, s[36:39], s{so} offen sc1")
        A(f"buffer_load_dwordx4 v[24:27], v{va}, s[36:39], s{so+1} offen sc1")
        for r in range(4): A(f"v_mov_b32 v{28+r}, 0")
        A("s_waitcnt vmcnt(1)")
        A("v_pk_max_u16 v55, v20, v21"); A("v_pk_max_u16 v53, v22, v23"); A("v_pk_max_u16 v55, v55, v53")
        A("s_waitcnt vmcnt(0)")
        A("v_smfmac_f32_16x16x64_bf16 v[28:31], v[68:71], v[20:27], v4")
        for r in range(24, 28): A(f"v_pk_max_u16 v55, v55, v{r}")
        A("v_pk_max_u16 v55, v55, v55 op_sel:[1,0] op_sel_hi:[0,1]")
        A("v_cmp_eq_u32 vcc, -1, v55")
        A(f"s_cbranch_vccnz {name}_re")
        post.append((f"{name}_re", f"{name}_rnd"))
    post = []; post2 = []
    def lstore(name, text):
        A(f"s_cbranch_scc0 {name}_g")
        A(text)
        A.label(f"{name}_j")
        post2.append((name, text))
    thr = [None]
    def throttle():
        if thr[0] is not None:
            if thr[0] >= W: A(f"s_waitcnt vmcnt({W-1})")
            thr[0] += 1
    def issueK(base, so):
        for j in range(4):
            r = base + 4 * j
            throttle()
            A(f"buffer_load_dwordx4 v[{r}:{r+3}], v2, s[28:31], s{so} offen offset:{1024*j} {kf}")
    def issueV(base, so):
        for j in range(4):
            r = base + 16 + 4 * j
            throttle()
            A(f"buffer_load_dwordx4 v[{r}:{r+3}], v3, s[32:35], s{so} offen offset:{1024*j} {vf}")
    def common_setup():
        A("s_mov_b32 s60, 0x22222222"); A("s_mov_b32 s61, 0x22222222")
        A("s_mov_b32 s62, 0x44444444"); A("s_mov_b32 s63, 0x44444444")
        A("s_mov_b32 s64, 0x88888888"); A("s_mov_b32 s65, 0x88888888")
        A("s_mov_b32 s74, 0x3db504f3"); A("s_mov_b32 s75, 0x3fb8aa3b")
        A(f"s_mov_b32 s72, {SPIN}")
        A("v_mov_b32 v44, 0xffff"); A("v_mov_b32 v45, 0xffff0000")
        A("v_mov_b32 v4, 0"); A("v_mov_b32 v5, 0")
        A("v_cmp_eq_u32 vcc, 0, v47")
        A("v_cndmask_b32 v4, v4, v44, vcc")
        A("v_cndmask_b32 v4, v4, v45, s[60:61]")
        A("v_cndmask_b32 v5, v5, v44, s[62:63]")
        A("v_cndmask_b32 v5, v5, v45, s[64:65]")
        for r in range(10, 18): A(f"v_mov_b32 v{r}, 0")
        A("v_mov_b32 v18, 0xff7fffff"); A("v_mov_b32 v19, 0")
    def k32masks(b):
        A("v_bfe_u32 v51, v1, 2, 1"); A("v_cmp_eq_u32 vcc, 0, v51")
        A(f"v_cndmask_b32 v{b}, 0, v4, vcc"); A(f"v_cndmask_b32 v{b+1}, 0, v5, vcc")
        A(f"v_cndmask_b32 v{b+2}, v4, 0, vcc"); A(f"v_cndmask_b32 v{b+3}, v5, 0, vcc")
    def tags():
        A("s_add_u32 s52, s52, 0x9e3779b9")
        A("s_and_b32 s53, s52, 0xff"); A("s_bfe_u32 s54, s52, 0x80008"); A("s_bfe_u32 s55, s52, 0x80010"); A("s_lshr_b32 s56, s52, 24")
        A("s_and_b32 s57, s52, 0xffff"); A("s_lshr_b32 s58, s52, 16")
    def sum4x4():
        A("v_pk_add_f32 v[20:21], v[20:21], v[24:25]"); A("v_pk_add_f32 v[22:23], v[22:23], v[26:27]")
        A("v_pk_add_f32 v[28:29], v[28:29], v[32:33]"); A("v_pk_add_f32 v[30:31], v[30:31], v[34:35]")
        A("v_pk_add_f32 v[20:21], v[20:21], v[28:29]"); A("v_pk_add_f32 v[22:23], v[22:23], v[30:31]")
        rr4(20, 21, 22, 23)
    def sum2x4():
        A("v_pk_add_f32 v[20:21], v[20:21], v[24:25]"); A("v_pk_add_f32 v[22:23], v[22:23], v[26:27]")
        rr4(20, 21, 22, 23)
    def tr():
        A("s_memrealtime s[96:97]"); A("s_mov_b32 m0, s98"); A("s_waitcnt lgkmcnt(0)"); A("v_writelane_b32 v244, s96, m0"); A("s_add_u32 s98, s98, 1")
    uid = [0]
    def ld4(base, va, srd_, so, fl):
        if rot:
            A(f"s_add_u32 s9, s{so}, s8"); A("s_and_b32 s9, s9, 0xffffff"); so = 9
        for j in range(4):
            r = base + 4 * j
            A(f"buffer_load_dwordx4 v[{r}:{r+3}], v{va}, s[{srd_}:{srd_+3}], s{so} offen offset:{1024*j} {fl}")
    def draw():
        A("s_mov_b64 exec, 1")
        A("ds_add_rtn_u32 v54, v52, v53")
        A("s_mov_b64 exec, -1")
    def qk(KB):
        for j in range(4):
            A(f"v_mfma_f32_16x16x32_bf16 v[{20+4*j}:{23+4*j}], v[{KB+4*j}:{KB+4*j+3}], v[6:9], 0")
    def extract():
        D = lambda j, r: 20 + 4 * (j & 3) + r
        for rho in range(4): A(f"v_cndmask_b32 v{44+rho}, v{D(rho,0)}, v{D(rho+1,1)}, s[60:61]")
        for rho in range(4): A(f"v_cndmask_b32 v{44+rho}, v{44+rho}, v{D(rho+2,2)}, s[62:63]")
        for rho in (1, 2, 3, 0): A(f"v_cndmask_b32 v{44+rho}, v{44+rho}, v{D(rho+3,3)}, s[64:65]")
        for rho in range(1, 4):
            qp = ",".join(str((q - rho) & 3) for q in range(4))
            dpp("v_add_f32", 44, 44 + rho, 44, f"quad_perm:[{qp}]")
        rbf(44, 44)
        A("v_mul_f32 v44, s74, v44")
        rbf(44, 44)
        A("v_mul_f32 v44, s75, v44")
    def keep(off):
        A(f"ds_write_b32 v48, v44 offset:{off}")
        A("v_max_f32 v18, v18, v44")
    def pfrag(z):
        A(f"v_sub_f32 v44, v{z}, v18")
        A("v_exp_f32 v44, v44")
        A("v_cvt_pk_bf16_f32 v45, v44, v44")
        A("v_add_f32 v19, v19, v44")
        for j in range(4):
            dpp("v_and_b32", 36 + 2 * j, 45, 4, f"quad_perm:[{j},{j},{j},{j}]")
            dpp("v_and_b32", 37 + 2 * j, 45, 5, f"quad_perm:[{j},{j},{j},{j}]")
    def pv(VB):
        for j in range(4):
            A(f"v_mfma_f32_16x16x16_bf16 v[10:13], v[{36+2*j}:{37+2*j}], v[{VB+4*j}:{VB+4*j+1}], v[10:13]")
            A(f"v_mfma_f32_16x16x16_bf16 v[14:17], v[{36+2*j}:{37+2*j}], v[{VB+4*j+2}:{VB+4*j+3}], v[14:17]")
    def unitK(base, so):
        ld4(base, 2, 28, so, kf); ld4(base + 16, 244, 28, so, kf)

    A("s_cmp_ge_u32 s2, 256")
    A("s_cbranch_scc1 L_exit")
    A("s_load_dwordx16 s[4:19], s[0:1], 0")
    A("s_load_dwordx8 s[20:27], s[0:1], 64")
    stamp(0)
    if XT: A(f"s_xor_b32 s2, s2, {XT}")
    A("v_and_b32 v1, 63, v0")
    A("v_lshrrev_b32 v44, 6, v0")
    A("v_lshlrev_b32 v3, 4, v1")
    A("v_readfirstlane_b32 s3, v44")
    A("v_bfe_u32 v45, v1, 2, 2")
    A("v_lshrrev_b32 v46, 4, v1")
    A("v_and_b32 v47, 3, v1")
    A("v_lshlrev_b32 v2, 8, v45")
    A("v_lshl_add_u32 v2, v46, 6, v2")
    A("v_lshl_add_u32 v2, v47, 4, v2")
    A("v_add_u32 v244, 4096, v2")
    A("s_lshr_b32 s77, s2, 3"); A("s_and_b32 s76, s77, 7"); A("s_and_b32 s73, s2, 7"); A("s_lshr_b32 s78, s2, 6")
    A("s_lshl3_add_u32 s79, s78, s73")
    A("s_cmp_ge_u32 s76, 4"); A(f"s_cselect_b32 s67, {D0-D1}, 0"); A(f"s_sub_u32 s67, {D0}, s67")
    assert S0 - offT - offQ - LA >= 2 * (8 + 7 * NXT) and S0 - offQ - LA >= 2 * (8 + 7 * NX) and offT + offQ <= 64
    assert (S0 - LA) % 2 == 0 and offT % 2 == 0 and offQ % 2 == 0 and S0 * 256 <= L_END - L_S
    A(f"s_mul_i32 s59, s78, {8*S0-offT-2*offQ}"); A(f"s_mul_i32 s71, s73, {S0}"); A("s_add_u32 s59, s59, s71")
    if spread: A("s_mul_i32 s71, s78, s67"); A("s_add_u32 s59, s59, s71")
    A("s_cmp_ge_u32 s77, 28"); A(f"s_cselect_b32 s68, {offT-offF+offQ}, {offT+offQ}")
    A("s_cmp_eq_u32 s73, 0"); A("s_cselect_b32 s71, 0, s68"); A("s_cselect_b32 s70, s68, 0"); A("s_sub_u32 s59, s59, s71")
    A(f"s_cmp_gt_u32 s73, {X2}"); A(f"s_cselect_b32 s71, {offQ}, 0"); A("s_sub_u32 s59, s59, s71")
    A(f"s_cmp_eq_u32 s73, {X2}"); A(f"s_cselect_b32 s70, {offQ}, s70"); A("s_cselect_b32 s65, 1, 0")
    A(f"s_sub_u32 s70, {S0-LA}, s70")
    A("s_lshl_b32 s59, s59, 12"); A("s_lshl_b32 s70, s70, 12")
    if contig:
        A("s_cmp_eq_u32 s73, 0"); A(f"s_cselect_b32 s71, {NXT}, {NX}"); A("s_max_u32 s66, s3, 1"); A("s_sub_u32 s66, s66, 1"); A("s_mul_i32 s66, s66, s71"); A("s_add_u32 s66, s66, s3")
        A("s_lshl_b32 s66, s66, 13"); A("s_add_u32 s66, s66, s59")
    else:
        A("s_lshl_b32 s66, s3, 13"); A("s_add_u32 s66, s66, s59")
    XS = 1 if contig else 7
    A("s_lshl_b32 s71, s76, 24")
    A(f"s_mov_b32 s30, {OOB}"); A("s_mov_b32 s31, 0x20000"); A(f"s_mov_b32 s34, {OOB}"); A("s_mov_b32 s35, 0x20000")
    A(f"s_cmp_lg_u32 s70, {(S0-LA)*4096}")
    A("s_cbranch_scc1 L_qprod")
    A("s_waitcnt lgkmcnt(0)")
    A("s_add_u32 s28, s6, s71"); A("s_addc_u32 s29, s7, 0")
    A("s_add_u32 s32, s8, s71"); A("s_addc_u32 s33, s9, 0")
    if rot: A(f"s_mul_i32 s8, s76, {rot*4096}")
    A("s_load_dword s52, s[26:27], 0")
    A("s_cmp_eq_u32 s3, 0")
    A("s_cbranch_scc1 L_w0")
    if wpf:
        A(f"s_cmp_gt_u32 s73, {X2}"); A("s_subb_u32 s73, s73, 1"); A("s_mul_i32 s68, s77, 6"); A("s_add_u32 s73, s73, s68")
        A("s_mul_i32 s73, s73, 7"); A("s_add_u32 s73, s73, s3"); A("s_sub_u32 s73, s73, 1"); A("s_lshl_b32 s73, s73, 10")
        A("v_add_u32 v48, s73, v3")
        for k in range(1, 4): A(f"v_add_u32 v{48+k}, {k*1344*1024}, v48")
        n = 0
        for (lo, size) in ((12, 4 << 20), (16, 512 * 3584), (18, 512 * 3584), (20, 1792 * 1024)):
            d = 40 + 4 * (n & 1); n += 1
            srd(d, lo, lo + 1, size)
            for k in range(4 if lo == 12 else 2):
                A(f"buffer_load_dwordx4 v[{RA}:{RA+3}], v{48+k}, s[{d}:{d+3}], 0 offen")
    A.label("L_ring")
    unitK(RA, 66)
    A(f"s_add_u32 s68, s66, {XS*8192}")
    for k in range(NX):
        if k == NXT:
            A("s_and_b32 s71, s2, 7"); A("s_cbranch_scc0 L_ringe")
        unitK(RX + 32 * k, 68)
        if k < NX - 1: A(f"s_add_u32 s68, s68, {XS*8192}")
    A.label("L_ringe")
    thr[0] = None
    srd(48, 4, 5, 1024)
    srd(36, 26, 27, WS_END)
    common_setup()
    A("s_waitcnt lgkmcnt(0)")
    tags()
    stamp(1)
    A("s_barrier")
    A("s_branch L_qj")
    A.label("L_qprod")
    A("v_lshrrev_b32 v44, 3, v1"); A("v_and_b32 v45, 7, v1")
    A("v_lshlrev_b32 v50, 16, v44")
    A("v_lshl_add_u32 v50, v45, 4, v50")
    A("v_lshlrev_b32 v51, 4, v44")
    A("s_lshl1_add_u32 s69, s78, s65"); A("s_lshl3_add_u32 s69, s76, s69")
    A("s_lshl_b32 s68, s69, 7"); A("s_lshl_b32 s73, s3, 19"); A("s_add_u32 s68, s68, s73")
    A("s_lshl_b32 s73, s3, 7")
    A("s_mov_b32 s50, 1024"); A("s_mov_b32 s51, 0x20000"); A(f"s_mov_b32 s42, {4<<20}"); A("s_mov_b32 s43, 0x20000")
    for i in range(1, 8): A(f"v_add_u32 v{35+i}, {8192*i}, v50")
    A("s_waitcnt lgkmcnt(0)")
    A("s_mov_b32 s48, s4"); A("s_mov_b32 s49, s5"); A("s_mov_b32 s40, s10"); A("s_mov_b32 s41, s11")
    A("buffer_load_dwordx4 v[52:55], v3, s[48:51], 0 offen")
    A("buffer_load_dwordx4 v[32:35], v51, s[48:51], s73 offen")
    for i in range(8):
        va = 50 if i == 0 else 35 + i
        A(f"buffer_load_dwordx4 v[{RA+4*i}:{RA+4*i+3}], v{va}, s[40:43], s68 offen {wf}")
    A("s_load_dword s52, s[26:27], 0")
    A("s_add_u32 s28, s6, s71"); A("s_addc_u32 s29, s7, 0")
    A("s_add_u32 s32, s8, s71"); A("s_addc_u32 s33, s9, 0")
    if rot: A(f"s_mul_i32 s8, s76, {rot*4096}")
    A("s_cmp_lg_u32 s3, 0"); A("s_cbranch_scc1 L_nz")
    A("s_cmp_lg_u32 s65, 0"); A("s_cbranch_scc1 L_nz")
    A(f"s_mul_i32 s73, s77, {cstride}"); A(f"s_add_u32 s73, s73, {CBUF}")
    A("v_mov_b32 v49, s73"); A("v_mov_b32 v48, 0")
    A("s_mov_b64 exec, 1")
    A("global_store_dword v49, v48, s[26:27] sc1")
    A("s_mov_b64 exec, -1")
    A.label("L_nz")
    A("v_lshrrev_b32 v49, 5, v1"); A("v_and_b32 v44, 1, v46")
    A("v_lshlrev_b32 v48, 8, v49"); A("v_lshl_add_u32 v48, v45, 5, v48"); A("v_lshl_add_u32 v48, v44, 4, v48")
    A("s_lshl_b32 s73, s3, 9"); A("v_add_u32 v48, s73, v48")
    common_setup()
    k32masks(6)
    if qprof: A("s_memrealtime s[90:91]")
    A("s_waitcnt vmcnt(8)")
    if qprof: A("s_memrealtime s[92:93]")
    for k in range(4):
        A(f"v_lshlrev_b32 v{36+2*k}, 16, v{52+k}")
        A(f"v_and_b32 v{37+2*k}, 0xffff0000, v{52+k}")
    for k in range(4):
        A(f"v_lshlrev_b32 v{20+2*k}, 16, v{32+k}")
        A(f"v_and_b32 v{21+2*k}, 0xffff0000, v{32+k}")
    ln_stats(list(range(36, 44)), 44, 45, 51)
    for k in range(8): A(f"v_sub_f32 v{20+k}, v{20+k}, v44")
    for k in range(8): rbf(20 + k, 20 + k)
    for k in range(8): A(f"v_mul_f32 v{20+k}, v{20+k}, v45")
    for k in range(8): A(f"v_cvt_pk_bf16_f32 v{20+k}, v{20+k}, v{20+k}")
    for i in range(8):
        for r in range(4): A(f"v_and_b32 v{RX+4*i+r}, v{20+i}, v{6+r}")
    A("s_waitcnt vmcnt(0)")
    if qprof: A("s_memrealtime s[98:99]")
    for i in range(8):
        c = "0" if i == 0 else "v[28:31]"
        A(f"v_mfma_f32_16x16x32_bf16 v[28:31], v[{RX+4*i}:{RX+4*i+3}], v[{RA+4*i}:{RA+4*i+3}], {c}")
    A("s_mov_b32 exec_lo, 0x00ff00ff"); A("s_mov_b32 exec_hi, 0xff00ff00")
    A(f"ds_write_b128 v48, v[28:31] offset:{L_RED}")
    A("s_mov_b64 exec, -1")
    A("s_waitcnt lgkmcnt(0)")
    A("s_barrier")
    A("s_cmp_lg_u32 s3, 0")
    A("s_cbranch_scc1 L_ringb" if qhold else "s_cbranch_scc1 L_ring")
    A("s_setprio 3")
    A("v_and_b32 v50, 15, v1"); A("v_lshlrev_b32 v49, 10, v46"); A("v_lshl_add_u32 v49, v50, 4, v49")
    for k in range(4): A(f"ds_read_b128 v[{20+4*k}:{23+4*k}], v49 offset:{L_RED+256*k}")
    srd(36, 26, 27, WS_END)
    tags()
    A("v_and_b32 v45, 1, v46"); A("v_lshlrev_b32 v45, 1, v45"); A("v_lshrrev_b32 v44, 1, v46"); A("v_or_b32 v45, v45, v44")
    A("v_lshl_add_u32 v45, v50, 2, v45"); A("v_lshlrev_b32 v45, 2, v45")
    A("v_mov_b32 v49, s57"); A("v_mov_b32 v51, s58")
    A("v_cmp_eq_u32 vcc, 0, v44")
    A("v_cndmask_b32 v49, v51, v49, vcc")
    A("s_lshl_b32 s71, s69, 8"); A(f"s_add_u32 s71, s71, {QBUF}")
    A("s_waitcnt lgkmcnt(0)")
    sum4x4()
    rbf(20, 20)
    A("v_or_b32 v20, v20, v49")
    A("buffer_store_dword v20, v45, s[36:39], s71 offen sc1")
    stamp(2)
    if qhold: A("s_barrier")
    if qprof: A("s_waitcnt vmcnt(0)"); A("s_memrealtime s[96:97]")
    A("s_branch L_w0b")
    if qhold:
        A.label("L_ringb")
        A("s_barrier")
        A("s_branch L_ring")
    A.label("L_w0")
    A("s_setprio 3")
    srd(48, 4, 5, 1024)
    srd(36, 26, 27, WS_END)
    common_setup()
    A("s_waitcnt lgkmcnt(0)")
    tags()
    A.label("L_w0b")
    A("s_and_b32 s71, s2, 7"); A(f"s_cselect_b32 s71, {8+7*NX}, {8+7*NXT}"); A("s_lshl_b32 s71, s71, 13")
    A(f"v_mov_b32 v52, {L_TK}"); A("v_mov_b32 v48, s71")
    A("ds_write_b32 v52, v48")
    for r in range(4): A(f"v_mov_b32 v{24+r}, -1")
    A(f"ds_write_b128 v3, v[24:27] offset:{L_TB}")
    A(f"ds_write_b128 v3, v[24:27] offset:{L_TB+1024}")
    A("s_add_u32 s73, s59, s70")
    A("v_lshlrev_b32 v28, 12, v1"); A("v_add_u32 v28, s73, v28"); A("v_lshlrev_b32 v29, 2, v1")
    A("v_cmp_eq_u32 vcc, 0, v1"); A("v_addc_co_u32 v28, vcc, 0, v28, vcc")
    A(f"s_mov_b64 exec, {(1 << LA) - 1}")
    A(f"ds_write_b32 v29, v28 offset:{L_TB}")
    A("s_mov_b64 exec, -1")
    A("v_lshlrev_b32 v44, 1, v2")
    A("s_lshl_b32 s71, s76, 11"); A(f"s_add_u32 s71, s71, {QBUF}")
    A("s_add_u32 s14, s26, s71"); A("s_addc_u32 s15, s27, 0")
    A.label("L_qhint")
    for k in range(8): A(f"s_load_dword s{40+k}, s[14:15], {256*k} glc")
    A("s_waitcnt lgkmcnt(0)")
    for k in range(8): A(f"s_xor_b32 s{40+k}, s{40+k}, s57")
    for k in range(1, 8): A(f"s_or_b32 s40, s40, s{40+k}")
    A("s_and_b32 s40, s40, 0xffff")
    A("s_cbranch_scc0 L_qpoll")
    spin("L_qhint", qslp)
    A.label("L_qpoll")
    if qprof: A("s_memrealtime s[94:95]")
    A("buffer_load_dwordx4 v[20:23], v44, s[36:39], s71 offen sc1")
    A("buffer_load_dwordx4 v[24:27], v44, s[36:39], s71 offen offset:16 sc1")
    A("s_mov_b32 s73, 0x07060302")
    A("s_waitcnt vmcnt(0)")
    for e in range(8): A(f"v_xor_b32 v{20+e}, s{57+(e&1)}, v{20+e}")
    A("v_or3_b32 v45, v20, v21, v22"); A("v_or3_b32 v45, v45, v23, v24"); A("v_or3_b32 v45, v45, v25, v26"); A("v_or_b32 v45, v45, v27")
    A("v_and_b32 v45, 0xffff, v45")
    A("v_cmp_ne_u32 vcc, 0, v45")
    A("s_cbranch_vccz L_q_ok")
    spin("L_qpoll")
    A.label("L_q_ok")
    for k in range(4): A(f"v_perm_b32 v{6+k}, v{21+2*k}, v{20+2*k}, s73")
    A(f"ds_write_b128 v3, v[6:9] offset:{L_QF}")
    A("s_waitcnt lgkmcnt(0)")
    stamp(1)
    A("s_barrier")
    unitK(RA, 66)
    A("s_setprio 0")
    A.label("L_qj")
    A(f"ds_read_b128 v[6:9], v3 offset:{L_QF}")
    A(f"v_mov_b32 v52, {L_TK}"); A("v_mov_b32 v53, 8192")
    A("s_mov_b32 s69, 3"); A("s_mov_b32 s11, 0"); A("s_lshl_b32 s10, s70, 1")
    A("v_add_u32 v245, 4096, v3")
    A("s_lshr_b32 s71, s59, 4"); A(f"s_sub_u32 s71, {L_S}, s71"); A("v_lshl_add_u32 v246, v1, 2, s71")
    if trace: A("s_mov_b32 s98, 0"); A("v_mov_b32 v244, 0")
    A(f"s_mul_i32 s58, s77, {cstride}"); A(f"s_add_u32 s58, s58, {CBUF}")
    if spread:
        A(f"s_add_u32 s57, s67, {8*S0-offT-2*offQ}"); A("s_add_u32 s71, s78, 1"); A("s_mul_i32 s57, s57, s71")
        A("s_cmp_eq_u32 s78, 3"); A("s_cselect_b32 s57, 4096, s57"); A("s_sub_u32 s57, s57, s67"); A("s_lshl_b32 s57, s57, 12")
    else:
        A("s_sub_u32 s57, 4, s78"); A("s_mul_i32 s57, s57, s67"); A("s_sub_u32 s57, 4096, s57"); A("s_lshl_b32 s57, s57, 12")
    if ew < 8:
        A(f"s_sub_u32 s101, s67, {ewx}"); A("s_lshl_b32 s101, s101, 12"); A("s_add_u32 s101, s101, s57")
        A(f"s_cmp_ge_u32 s3, {ew}"); A("s_cselect_b32 s101, s101, -1")
    stamp(3)
    A.label("L_k")
    draw()
    A("s_lshr_b32 s73, s66, 4"); A("v_add_u32 v48, s73, v246")
    A("s_waitcnt vmcnt(4) lgkmcnt(0)")
    A("v_readfirstlane_b32 s71, v54")
    qk(RA)
    A("s_add_u32 s66, s71, s59")
    A("s_cmp_ge_u32 s71, s70")
    A("s_cbranch_scc1 L_k2v0")
    ld4(RA, 2, 28, 66, kf)
    A.label("L_k0r")
    extract(); keep(0)
    A("s_waitcnt vmcnt(4)")
    qk(RA + 16)
    A("s_cmp_lg_u32 s11, 0")
    A("s_cbranch_scc1 L_k2v1")
    ld4(RA + 16, 244, 28, 66, kf)
    A.label("L_k1r")
    extract(); keep(256)
    A("s_cmp_eq_u32 s69, 3")
    A("s_cbranch_scc1 L_first")
    A.label("L_kn")
    A("s_cmp_eq_u32 s11, 0")
    A("s_cbranch_scc1 L_k")
    quad_all(18, "v_max_f32")
    rows_all(18, 49, "v_max_f32")
    A(f"ds_write_b32 v{TC+2}, v18 offset:{L_MX2}")
    if wsplit:
        A("s_cmp_lg_u32 s69, 0")
        A("s_cbranch_scc1 L_setup2")
        A.label("L_s2r")
    A(f"v_and_b32 v49, 0x60, v{TC+2}")
    A("s_waitcnt lgkmcnt(0)")
    A("s_barrier")
    A(f"ds_read_b128 v[20:23], v49 offset:{L_MX2}")
    A(f"ds_read_b128 v[24:27], v49 offset:{L_MX2+16}")
    A("s_waitcnt lgkmcnt(0)")
    A("v_max3_f32 v18, v20, v21, v22"); A("v_max3_f32 v18, v18, v23, v24"); A("v_max3_f32 v18, v18, v25, v26"); A("v_max_f32 v18, v18, v27")
    if warm:
        A(f"s_cmp_lg_u32 s3, {wwave}")
        A("s_cbranch_scc1 L_v")
        A("s_mov_b32 s11, 4")
        A("s_mov_b64 exec, 0")
        A("s_branch L_wp0")
        A.label("L_wret")
        A("s_cmp_lg_u32 s11, 4")
        A("s_cbranch_scc1 L_exit")
        A("s_mov_b32 s11, 1")
        A("s_mov_b64 exec, -1")
    A.label("L_v")
    draw()
    A("s_lshr_b32 s73, s66, 4"); A("v_add_u32 v48, s73, v246")
    A("ds_read2_b32 v[20:21], v48 offset0:0 offset1:64")
    A("s_waitcnt lgkmcnt(0)")
    A("v_readfirstlane_b32 s71, v54")
    pfrag(20)
    A("s_waitcnt vmcnt(4)")
    pv(RA)
    A("s_add_u32 s66, s71, s59"); A("s_sub_u32 s66, s66, s70")
    A("s_cmp_ge_u32 s71, s10")
    A("s_cbranch_scc1 L_v2c")
    ld4(RA, 3, 32, 66, vf)
    pfrag(21)
    A("s_waitcnt vmcnt(4)")
    pv(RA + 16)
    ld4(RA + 16, 245, 32, 66, vf)
    A("s_branch L_v")
    A.label("L_k2v0")
    A("s_sub_u32 s66, s66, s70"); A("s_mov_b32 s11, 1")
    ld4(RA, 3, 32, 66, vf)
    A("s_branch L_k0r")
    A.label("L_k2v1")
    ld4(RA + 16, 245, 32, 66, vf)
    A("s_branch L_k1r")
    A.label("L_v2c")
    A("s_mov_b32 s11, 2")
    A("s_branch L_dyn")
    A.label("L_vc0")
    A("s_mov_b32 s11, 3")
    ld4(RA, 2, 28, 66, kf)
    pfrag(21)
    A("s_waitcnt vmcnt(4)")
    pv(RA + 16)
    ld4(RA + 16, 3, 32, 66, vf)
    A("s_cmp_ge_u32 s66, s30")
    A("s_cbranch_scc1 L_done")
    A.label("L_loop")
    draw()
    A("s_waitcnt vmcnt(4) lgkmcnt(0)")
    A("v_readfirstlane_b32 s71, v54")
    qk(RA)
    A("s_branch L_dyn")
    A.label("L_go")
    ld4(RA, 2, 28, 66, kf)
    A.label("L_gox")
    extract()
    A("v_cmp_gt_f32 vcc, v44, v18")
    A("s_cbranch_vccz L_nors")
    A("v_max_f32 v45, v44, v18")
    quad_all(45, "v_max_f32")
    rows_all(45, 46, "v_max_f32")
    A("v_sub_f32 v46, v18, v45")
    A("v_exp_f32 v46, v46")
    A("v_mov_b32 v18, v45")
    A("v_mul_f32 v19, v19, v46")
    for h in range(4): A(f"v_mov_b32_dpp v47, v46 row_newbcast:{4*h} row_mask:{hex(1<<h)} bank_mask:0xf")
    for r in range(10, 18): A(f"v_mul_f32 v{r}, v{r}, v47")
    A.label("L_nors")
    pfrag(44)
    A("s_cmp_ge_u32 s66, s30")
    A("s_cbranch_scc1 L_last")
    A("s_waitcnt vmcnt(4)")
    pv(RA + 16)
    ld4(RA + 16, 3, 32, 66, vf)
    A("s_branch L_loop")
    A.label("L_first")
    A("s_mov_b32 s69, 0")
    A("s_cmp_eq_u32 s3, 0")
    A("s_cbranch_scc1 L_setup")
    A("s_waitcnt vmcnt(8)")
    for k in range(NX):
        if k == NXT:
            A("s_and_b32 s71, s2, 7"); A("s_cbranch_scc0 L_setup")
        for hf in range(2):
            qk(RX + 32 * k + 16 * hf); extract(); keep((XS + XS * k) * 512 + 256 * hf)
    A.label("L_setup")
    A("v_lshrrev_b32 v46, 4, v1"); A("v_and_b32 v47, 3, v1"); A("v_bfe_u32 v45, v1, 2, 2"); A("v_and_b32 v50, 15, v1")
    A("v_and_b32 v48, 1, v46"); A("v_lshlrev_b32 v48, 1, v48"); A("v_lshrrev_b32 v49, 1, v46"); A("v_or_b32 v48, v48, v49")
    A("s_lshl_b32 s71, s3, 11"); A(f"v_lshlrev_b32 v{TC}, 5, v1"); A(f"v_add_u32 v{TC}, s71, v{TC}")
    A("s_lshl_b32 s71, s3, 3"); A(f"v_lshlrev_b32 v{TC+1}, 6, v45"); A(f"v_add_u32 v{TC+1}, s71, v{TC+1}")
    A(f"v_lshrrev_b32 v{TC+2}, 1, v{TC+1}")
    A("s_lshl_b32 s71, s3, 8"); A(f"v_lshlrev_b32 v{TC+3}, 12, v46"); A(f"v_lshl_add_u32 v{TC+3}, v50, 4, v{TC+3}"); A(f"v_add_u32 v{TC+3}, s71, v{TC+3}")
    A("s_lshr_b32 s71, s3, 1"); A("s_lshl_b32 s73, s71, 6"); A(f"v_lshlrev_b32 v{TC+4}, 4, v46"); A(f"v_add_u32 v{TC+4}, s73, v{TC+4}")
    A("s_lshl_b32 s73, s71, 5"); A(f"v_mov_b32 v{TC+5}, s73")
    A(f"v_lshl_add_u32 v{TC+6}, v50, 2, v48"); A(f"v_lshlrev_b32 v{TC+6}, 1, v{TC+6}")
    A("s_lshl_b32 s0, s76, 16"); A("s_lshl_b32 s73, s79, 11"); A("s_add_u32 s0, s0, s73")
    A("s_lshl_b32 s73, s3, 8"); A("s_add_u32 s0, s0, s73"); A(f"s_add_u32 s0, s0, {OBUF}")
    A("s_lshr_b32 s73, s3, 1"); A("s_lshl2_add_u32 s1, s76, s73"); A("s_lshl_b32 s1, s1, 5"); A("s_add_u32 s1, s1, s79")
    A(f"s_lshl_b32 s1, s1, {mlsh}"); A(f"s_add_u32 s1, s1, {MLBUF}")
    A(f"v_lshlrev_b32 v{TC+10}, 2, v1")
    A(f"v_lshlrev_b32 v{TC+27}, 3, v47"); A(f"v_lshrrev_b32 v{TC+27}, v{TC+27}, s52"); A(f"v_and_b32 v{TC+27}, 0xff, v{TC+27}")
    if opre is not None:
        A(f"buffer_load_dword v44, v{TC+10}, s[36:39], s0 offen {opre}")
        A("s_mov_b64 exec, 1")
        A(f"buffer_load_dword v45, v3, s[36:39], s1 offen {opre}")
        A("s_mov_b64 exec, -1")
        A("s_waitcnt vmcnt(0)")
    if tlbpf:
        A("s_cmp_lg_u32 s3, 0"); A("s_cbranch_scc1 L_notlb")
        A(f"v_lshlrev_b32 v44, {tlbpf}, v1")
        A(f"s_mov_b64 exec, {(1 << ((1 << (20 - tlbpf)) + 1)) - 1}")
        A("buffer_load_dword v245, v44, s[28:31], s57 offen nt")
        A("buffer_load_dword v246, v44, s[32:35], s57 offen nt")
        A("s_mov_b64 exec, -1")
        A.label("L_notlb")
    A("s_and_b32 s71, s2, 7")
    A("s_cbranch_scc1 L_kn")
    A("s_mov_b32 s69, 2")
    A("s_getreg_b32 s78, hwreg(HW_REG_XCC_ID, 0, 4)"); A("s_lshl_b32 s78, s78, 8")
    A("s_cmp_lg_u32 s3, 0"); A("s_cbranch_scc1 L_nox")
    for r in range(4): A(f"v_mov_b32 v{24+r}, -1")
    A("s_cmp_ge_u32 s77, 28"); A("s_cselect_b32 s71, 0, -1")
    for r in range(4): A(f"v_mov_b32 v{28+r}, s71")
    A("s_lshl_b32 s71, s77, 11"); A(f"s_add_u32 s71, s71, {YBUF}")
    A("buffer_store_dwordx4 v[28:31], v3, s[36:39], s71 offen sc1")
    A("buffer_store_dwordx4 v[28:31], v3, s[36:39], s71 offen offset:1024 sc1")
    A("s_lshl_b32 s71, s77, 9"); A(f"s_add_u32 s71, s71, {HBUF}")
    A("s_mov_b32 exec_hi, 0")
    A("buffer_store_dwordx4 v[24:27], v3, s[36:39], s71 offen sc1")
    A("s_mov_b32 exec_hi, -1")
    A("s_waitcnt vmcnt(0)")
    A("s_or_b32 s71, s78, s53")
    A("v_mov_b32 v20, s71"); A("v_mov_b32 v21, s54"); A("v_mov_b32 v22, s55"); A("v_mov_b32 v23, s56")

    A("s_lshl_b32 s71, s77, 4"); A(f"s_add_u32 s71, s71, {XBUF}")
    A("s_mov_b64 exec, 1")
    A("buffer_store_dwordx4 v[20:23], v3, s[36:39], s71 offen sc1")
    A("s_mov_b64 exec, -1")
    A.label("L_nox")
    srd(40, 12, 13, 4 << 20)
    A("s_lshr_b32 s68, s77, 1")
    A("s_lshl_b32 s71, s68, 18"); A("s_lshr_b32 s73, s3, 1"); A("s_lshl_b32 s73, s73, 16"); A("s_add_u32 s71, s71, s73")
    A("s_and_b32 s73, s3, 1"); A("s_lshl_b32 s73, s73, 10"); A("s_add_u32 s71, s71, s73")
    A("s_and_b32 s73, s77, 1"); A("s_lshl_b32 s73, s73, 9"); A("s_add_u32 s71, s71, s73")
    A("v_lshlrev_b32 v44, 4, v50"); A("v_lshl_add_u32 v45, v48, 13, v44"); A("v_lshl_add_u32 v44, v48, 11, v44")
    for jl in range(2):
        for half in range(2):
            for jh in range(2):
                for c2 in range(2):
                    r = WO + 8 * (4 * c2 + 2 * jh + jl) + 4 * half
                    A(f"buffer_load_dwordx4 v[{r}:{r+3}], v45, s[40:43], s71 offen offset:{2048*jh+256*c2} {wf}")
            if (jl, half) != (1, 1): A(f"s_add_u32 s71, s71, {4096 if half == 0 else 32768-4096}")
    A("v_and_b32 v51, 7, v1"); A("v_bfe_u32 v49, v1, 3, 1")
    A(f"v_lshl_add_u32 v{TC+25}, v48, 1, v49"); A(f"v_lshl_add_u32 v{TC+25}, v51, 3, v{TC+25}")
    A("s_lshl_b32 s71, s3, 6"); A(f"v_add_lshl_u32 v{TC+25}, v{TC+25}, s71, 1")
    A(f"buffer_load_ushort v{TC+13}, v{TC+25}, s[48:51], 0 offen")
    A("v_and_b32 v51, 7, v1"); A("v_and_b32 v45, 1, v46"); A("v_lshrrev_b32 v49, 5, v1")
    A(f"v_lshrrev_b32 v{TC+9}, 3, v1")
    A(f"v_lshlrev_b32 v{TC+8}, 13, v{TC+9}"); A(f"v_lshl_add_u32 v{TC+8}, v51, 4, v{TC+8}")
    A(f"v_lshl_add_u32 v{TC+9}, v{TC+9}, 2, v47"); A(f"v_lshlrev_b32 v{TC+9}, {mlsh}, v{TC+9}")
    A(f"v_lshlrev_b32 v{TC+24}, 4, v45"); A(f"v_lshl_add_u32 v{TC+24}, v50, 5, v{TC+24}")
    A(f"v_lshl_add_u32 v{TC+11}, v49, 9, v{TC+24}"); A("s_lshl_b32 s71, s3, 10"); A(f"v_add_u32 v{TC+11}, s71, v{TC+11}")
    A(f"v_lshrrev_b32 v{TC+24}, 1, v{TC+24}")
    A(f"v_lshrrev_b32 v{TC+14}, 3, v1"); A(f"v_lshlrev_b32 v{TC+14}, 10, v{TC+14}"); A(f"v_lshl_add_u32 v{TC+14}, v51, 4, v{TC+14}")
    A(f"v_lshrrev_b32 v{TC+12}, 3, v1"); A(f"v_lshlrev_b32 v{TC+12}, 10, v{TC+12}"); A(f"v_lshl_add_u32 v{TC+12}, v51, 4, v{TC+12}"); A("s_lshl_b32 s71, s3, 7"); A(f"v_add_u32 v{TC+12}, s71, v{TC+12}")
    A("s_lshl_b32 s71, s3, 4"); A(f"v_lshlrev_b32 v{TC+20}, 3, v49"); A(f"v_add_u32 v{TC+20}, s71, v{TC+20}"); A(f"v_lshlrev_b32 v{TC+21}, 4, v51")
    A("v_bfe_u32 v49, v1, 3, 1")
    A(f"v_lshlrev_b32 v{TC+23}, 11, v46"); A(f"v_lshl_add_u32 v{TC+23}, v49, 8, v{TC+23}"); A(f"v_lshl_add_u32 v{TC+23}, v51, 4, v{TC+23}")
    A("s_lshr_b32 s71, s3, 2"); A("s_lshl_b32 s71, s71, 7"); A(f"v_add_u32 v{TC+23}, s71, v{TC+23}")
    A("s_lshl_b32 s71, s3, 13"); A(f"s_add_u32 s71, s71, {L_WD}"); A(f"v_add_u32 v{TC+26}, s71, v3")
    A("s_mov_b32 m0, s71")
    A(f"v_lshrrev_b32 v{TC+22}, 1, v1"); A(f"v_lshlrev_b32 v{TC+22}, 10, v{TC+22}"); A("v_and_b32 v45, 1, v1"); A(f"v_lshl_add_u32 v{TC+22}, v45, 4, v{TC+22}")
    srd(44, 22, 23, 1024)
    if wsplit:
        A("s_branch L_kn")
        A.label("L_setup2")
        A("v_lshrrev_b32 v46, 4, v1"); A("v_and_b32 v50, 15, v1"); A("v_and_b32 v51, 7, v1")
        A("v_and_b32 v48, 1, v46"); A("v_lshlrev_b32 v48, 1, v48"); A("v_lshrrev_b32 v49, 1, v46"); A("v_or_b32 v48, v48, v49")
        A("v_lshlrev_b32 v44, 4, v50"); A("v_lshl_add_u32 v44, v48, 11, v44"); A("v_bfe_u32 v49, v1, 3, 1")
    A("s_cmp_ge_u32 s77, 28")
    A("s_cbranch_scc1 L_suj")
    A("s_mov_b32 s69, 1")
    A("s_lshl_b32 s71, s3, 6"); A("v_lshl_add_u32 v45, v48, 2, s71")
    A("v_mul_u32_u24 v45, 3584, v45"); A("v_lshl_add_u32 v45, v51, 4, v45"); A("s_lshl_b32 s71, s77, 7"); A("v_add_u32 v45, s71, v45")
    A("v_cmp_eq_u32 vcc, 0, v49")
    A("v_mov_b32 v20, s16"); A("v_mov_b32 v21, s18"); A("v_cndmask_b32 v20, v21, v20, vcc")
    A("v_mov_b32 v21, s17"); A("v_mov_b32 v22, s19"); A("v_cndmask_b32 v21, v22, v21, vcc")
    A("v_add_co_u32 v20, vcc, v20, v45"); A("v_addc_co_u32 v21, vcc, 0, v21, vcc")
    for j in range(4):
        for half in range(2):
            for v in range(2):
                r = WGU + 8 * (4 * v + j) + 4 * half
                A(f"global_load_dwordx4 v[{r}:{r+3}], v[20:21], off offset:{3584*v} {wf}")
            if (j, half) != (3, 1): A(f"v_add_co_u32 v20, vcc, {(2 if half == 0 else 14)*3584}, v20"); A("v_addc_co_u32 v21, vcc, 0, v21, vcc")
    srd(40, 20, 21, 1792 * 1024)
    A("s_lshl_b32 s71, s77, 16"); A("s_lshr_b32 s73, s3, 2"); A("s_lshl_b32 s73, s73, 15"); A("s_add_u32 s71, s71, s73")
    A("s_and_b32 s73, s3, 3"); A("s_lshl_b32 s73, s73, 8"); A("s_add_u32 s71, s71, s73")
    for i in range(8):
        A(f"buffer_load_dwordx4 v44, s[40:43], s71 offen {wf} lds")
        if i < 7: A(f"s_add_u32 s71, s71, {1024 if i % 2 == 0 else 7168}"); A("s_add_u32 m0, m0, 1024")
    A.label("L_suj")
    A("s_lshl_b32 s22, s77, 5"); A(f"s_add_u32 s22, s22, {YBUF}")
    A("s_add_u32 s23, s22, 32768")
    A("s_lshl_b32 s24, s3, 7"); A(f"s_add_u32 s24, s24, {HBUF}"); A("s_add_u32 s25, s24, 8192")
    A("s_lshr_b32 s16, s68, 1"); A("s_lshl_b32 s16, s16, 16"); A("s_and_b32 s71, s68, 1"); A("s_lshl_b32 s71, s71, 10"); A("s_add_u32 s16, s16, s71")
    A("s_lshl_b32 s71, s3, 7"); A("s_add_u32 s16, s16, s71"); A(f"s_add_u32 s16, s16, {OBUF}")
    A("s_add_u32 s17, s16, 4096")
    A("s_lshr_b32 s71, s3, 2"); A("s_lshl1_add_u32 s20, s68, s71"); A(f"s_lshl_b32 s20, s20, {5+mlsh}"); A(f"s_add_u32 s20, s20, {MLBUF}")
    A("s_lshl_b32 s21, s77, 9"); A("s_lshl_b32 s73, s3, 6"); A("s_add_u32 s21, s21, s73"); A(f"s_add_u32 s21, s21, {HBUF}")
    A("s_lshl_b32 s18, s77, 11"); A("s_lshl_b32 s71, s3, 8"); A("s_add_u32 s18, s18, s71"); A(f"s_add_u32 s18, s18, {YBUF}")
    A("s_lshr_b32 s68, s77, 2")
    A("s_branch L_s2r" if wsplit else "s_branch L_kn")

    A.label("L_dyn")
    A("s_sub_u32 s73, s71, s10"); A("s_lshr_b32 s73, s73, 11")
    A("v_mov_b32 v48, s73")
    A.label("L_dynw")
    A(f"ds_read_b32 v49, v48 offset:{L_TB}")
    A("s_waitcnt lgkmcnt(0)")
    A("v_readfirstlane_b32 s66, v49")
    A("s_cmp_lg_u32 s66, -1")
    A("s_cbranch_scc1 L_dyng")
    spin("L_dynw")
    A.label("L_dyng")
    if t1:
        A("s_cmp_eq_u32 s66, 2")
        A("s_cbranch_scc1 L_self")
    if skipoob:
        A("s_cmp_ge_u32 s66, s30")
        A("s_cbranch_scc1 L_dretx")
    if perm is None:
        A("s_bitcmp1_b32 s66, 0")
        A("s_cbranch_scc0 L_dret")
        A("s_and_b32 s66, s66, -2")
        A("s_max_u32 s71, s66, s57"); A("s_sub_u32 s71, s71, s57"); A("s_lshr_b32 s71, s71, 12"); A("s_sub_u32 s71, s67, s71")
    else:
        A("s_and_b32 s71, s66, 0xfff")
        A("s_and_b32 s66, s66, 0xfffff000")
        A("s_bitcmp1_b32 s71, 0")
        A("s_cbranch_scc0 L_dret")
        A("s_lshr_b32 s71, s71, 1"); A("s_sub_u32 s71, s67, s71")
    if tT:
        if tS:
            A(f"s_mul_i32 s14, s73, {sm}"); A("s_lshr_b32 s14, s14, 2"); A("s_add_u32 s14, s14, s71")
            A("s_cmp_lt_u32 s14, s67"); A(f"s_cselect_b32 s15, {tS}, 0")
            A("s_and_b32 s14, s2, 7"); A("s_cmp_eq_u32 s14, 2"); A("s_cselect_b32 s15, 0, s15")
            A("s_cmp_lg_u32 s14, 0"); A(f"s_cselect_b32 s14, s15, {tT}")
        else:
            A("s_and_b32 s14, s2, 7"); A(f"s_cselect_b32 s14, 0, {tT}")
        A("s_cmp_gt_u32 s71, s14")
        A("s_cbranch_scc1 L_dynt")
        A("v_lshl_add_u32 v48, v1, 2, v48")
        A("v_mov_b32 v51, s30")
        A(f"ds_write_b32 v48, v51 offset:{L_TB+4*LA}")
        A("s_branch L_dret")
        A.label("L_dynt")
    A(f"s_cmp_gt_u32 s71, {t4}"); A("s_cselect_b32 s15, 4, 2")
    A(f"s_cmp_gt_u32 s71, {t8}"); A(f"s_cselect_b32 s15, {b0}, s15")
    A("s_mov_b32 s14, s15")
    A("s_atomic_add s14, s[26:27], s58 glc")
    A("v_lshl_add_u32 v48, v1, 2, v48")
    A(f"s_sub_u32 s73, s15, {LA}")
    A("s_waitcnt lgkmcnt(0)")
    A("v_add_u32 v49, s14, v1")
    if perm is None:
        A("v_lshlrev_b32 v50, 12, v49"); A("v_add_u32 v50, s57, v50")
    else:
        lg = perm
        A(f"v_lshrrev_b32 v50, {lg}, v49"); A("v_bfrev_b32 v50, v50"); A(f"v_lshrrev_b32 v50, 24, v50")
        A(f"v_and_or_b32 v50, v49, {(1 << lg) - 1}, v50")
        A("v_cmp_gt_u32 vcc, 0x100, v49"); A("v_cndmask_b32 v50, v49, v50, vcc")
        A("v_lshlrev_b32 v50, 12, v50"); A("v_add_u32 v50, s57, v50"); A("v_lshl_add_u32 v50, v49, 1, v50")
    A("s_add_u32 s14, s14, s15")
    A("s_cmp_ge_u32 s14, s67")
    A("s_cbranch_scc1 L_dynx")
    if t1:
        A(f"s_add_u32 s14, s14, {t1}")
        A("s_cmp_ge_u32 s14, s67")
        A("s_cbranch_scc1 L_dyns")
    A("v_cmp_eq_u32 vcc, s73, v1"); A("v_addc_co_u32 v50, vcc, 0, v50, vcc")
    A("v_cmp_gt_u32 vcc, s15, v1")
    A("s_mov_b64 exec, vcc")
    A(f"ds_write_b32 v48, v50 offset:{L_TB+4*LA}")
    A("s_mov_b64 exec, -1")
    A("s_branch L_dret")
    A.label("L_dynx")
    A("v_mov_b32 v51, s30")
    A("v_cmp_gt_u32 vcc, s67, v49")
    A("v_cndmask_b32 v50, v51, v50, vcc")
    A(f"ds_write_b32 v48, v50 offset:{L_TB+4*LA}")
    A("s_branch L_dret")
    if t1:
        A.label("L_dyns")
        A("v_cmp_gt_u32 vcc, s15, v1")
        A("v_cndmask_b32 v50, 2, v50, vcc")
        A(f"ds_write_b32 v48, v50 offset:{L_TB+4*LA}")
        A("s_branch L_dret")
        A.label("L_self")
        A("s_mov_b32 s14, 1")
        A("s_atomic_add s14, s[26:27], s58 glc")
        A("v_lshl_add_u32 v48, v1, 2, v48")
        A("v_mov_b32 v51, s30")
        A("s_waitcnt lgkmcnt(0)")
        A("s_lshl_b32 s66, s14, 12"); A("s_add_u32 s66, s66, s57")
        A("s_cmp_lt_u32 s14, s67")
        A("s_cbranch_scc1 L_dret")
        A("s_mov_b32 s66, s30")
        A(f"ds_write_b32 v48, v51 offset:{L_TB+4}")
        A("s_branch L_dret")

    A.label("L_dret")
    A("s_cmp_eq_u32 s11, 3")
    A("s_cbranch_scc1 L_go")
    A("s_branch L_vc0")
    A.label("L_dretx")
    A("s_cmp_eq_u32 s11, 3")
    A("s_cbranch_scc1 L_gox")
    A("s_branch L_vc0")
    def lred():
        quad_all(19, "v_add_f32")
        A(f"ds_write_b32 v{TC+2}, v18 offset:{L_MX}")
        rows_all(19, 49, "v_add_f32")
        A(f"ds_write_b64 v{TC+1}, v[18:19] offset:{L_ML}")
    A.label("L_done")
    lred()
    if skipoob:
        A("s_branch L_done2")
        A.label("L_last")
        A(".warm_on")
        lred()
        A("s_waitcnt vmcnt(0)")
        if trace: tr()
        VB = RA + 16
        for j in range(4):
            A(f"v_mfma_f32_16x16x16_bf16 v[10:13], v[{36+2*j}:{37+2*j}], v[{VB+4*j}:{VB+4*j+1}], v[10:13]")
            A(f"v_mfma_f32_16x16x16_bf16 v[14:17], v[{36+2*j}:{37+2*j}], v[{VB+4*j+2}:{VB+4*j+3}], v[14:17]")
        A.label("L_done2")
    stamp(4)
    if trace:
        A("s_lshl_b32 s71, s2, 3"); A("s_add_u32 s71, s71, s3"); A("s_lshl_b32 s71, s71, 8"); A("s_add_u32 s71, s71, 0x200000")
        A("v_lshlrev_b32 v48, 2, v1"); A("v_add_u32 v48, s71, v48")
        A("global_store_dword v48, v244, s[26:27]")
    if cut == 1: A("s_branch L_end")
    A("s_mov_b32 s73, 0xffffff00")
    A("v_mov_b32 v47, s53"); A("v_mov_b32 v48, s54"); A("v_mov_b32 v39, s56")
    A(f"ds_write_b128 v{TC}, v[10:13] offset:{L_OM}")
    A(f"ds_write_b128 v{TC}, v[14:17] offset:{L_OM+16}")
    A("s_cmp_eq_u32 s69, 1")
    A("s_cbranch_scc1 L_cs")
    A.label("L_csr")
    A("s_waitcnt lgkmcnt(0)")
    A("s_barrier")
    stamp(5)
    A(f"ds_read_b128 v[20:23], v{TC+5} offset:{L_MX}")
    A(f"ds_read_b128 v[24:27], v{TC+5} offset:{L_MX+16}")
    A(f"ds_read_b128 v[28:31], v{TC+4} offset:{L_ML}")
    A(f"ds_read_b128 v[10:13], v{TC+3} offset:{L_OM}")
    A(f"ds_read_b128 v[14:17], v{TC+3} offset:{L_OM+2048}")
    A("s_waitcnt lgkmcnt(3)")
    A("v_max3_f32 v36, v20, v21, v22"); A("v_max3_f32 v37, v23, v24, v25"); A("v_max3_f32 v36, v36, v26, v27"); A("v_max_f32 v36, v36, v37")
    A("s_waitcnt lgkmcnt(2)")
    A("v_sub_f32 v28, v28, v36"); A("v_sub_f32 v30, v30, v36")
    A("v_exp_f32 v28, v28"); A("v_exp_f32 v30, v30")
    A("v_lshl_or_b32 v38, v36, 24, s55")
    A("v_mul_f32 v37, v28, v29")
    A("v_fmac_f32 v37, v30, v31")
    A("s_waitcnt lgkmcnt(0)")
    A("v_mov_b32 v49, v37")
    for r in range(4): A(f"v_mul_f32 v{10+r}, v{10+r}, v28")
    A("v_permlane32_swap_b32 v37, v49")
    for r in range(2): A(f"v_fmac_f32 v{10+r}, v{14+r}, v30")
    A("v_add_f32 v37, v37, v49")
    for r in range(2, 4): A(f"v_fmac_f32 v{10+r}, v{14+r}, v30")
    A("v_mov_b32 v49, v37")
    A("v_permlane32_swap_b32 v10, v11")
    A("v_permlane32_swap_b32 v12, v13")
    A("v_add_f32 v10, v10, v11")
    A("v_add_f32 v12, v12, v13")
    A("v_permlane16_swap_b32 v37, v49")
    A("v_add_f32 v37, v37, v49")
    A("v_permlane16_swap_b32 v10, v12")
    A("v_add_f32 v10, v10, v12")
    A(f"v_and_or_b32 v10, v10, s73, v{TC+27}")
    A(f"buffer_store_dword v10, v{TC+10}, s[36:39], s0 offen {osf}")
    A("s_bitcmp1_b32 s3, 0")
    A("s_cbranch_scc1 L_mj")
    A("v_and_or_b32 v37, v37, s73, v48"); A("v_and_or_b32 v36, v36, s73, v47")
    A("s_mov_b64 exec, 1")
    A(f"buffer_store_dwordx4 v[36:39], v3, s[36:39], s1 offen {osf}")
    A("s_mov_b64 exec, -1")
    A(".warm_off")
    A.label("L_mj")
    stamp(6)
    A("s_cmp_eq_u32 s69, 0")
    A("s_cbranch_scc1 L_end")
    A("v_and_b32 v54, 0x1f0, v3")
    A(f"buffer_load_dwordx4 v[40:43], v54, s[36:39], 0 offen offset:{XBUF} sc1")
    if codepf:
        A("s_getpc_b64 s[12:13]")
        A.label("L_pcref")
        A("s_lshl_b32 s71, s3, 9"); A("s_add_u32 s12, s12, s71"); A("s_addc_u32 s13, s13, 0")
        A(f"v_lshlrev_b32 v48, 3, v1")
        A("global_load_dwordx2 v[44:45], v48, s[12:13]")
    if outpf:
        A("buffer_load_dword v44, v3, s[44:47], 0 offen")
    if pretouch:
        A("s_lshl_b32 s71, s3, 5"); A("s_add_u32 s71, s71, s77")
        A("s_cmp_ge_u32 s71, 80")
        A("s_cbranch_scc1 L_nopt")
        A("s_lshl_b32 s71, s71, 10"); A(f"s_add_u32 s71, s71, {HBUF}")
        A("buffer_load_dwordx4 v[44:47], v3, s[36:39], s71 offen sc1")
        A.label("L_nopt")
    A("s_mov_b32 s60, 0xfffefffe")
    OB = RA
    for k in range(4): A(f"ds_read_b128 v[{20+4*k}:{23+4*k}], v{TC+23} offset:{L_RED2+512*k}")
    A("s_waitcnt lgkmcnt(0)")
    sum4x4()
    A("v_mov_b32 v51, v20")
    A("s_waitcnt vmcnt(0)")
    A.label("L_xchk")
    for k in range(4): A(f"v_xor_b32 v{40+k}, s{53+k}, v{40+k}")
    A("v_or3_b32 v55, v41, v42, v43")
    A("v_and_b32 v53, 0xff, v40"); A("v_or_b32 v55, v55, v53")
    A("v_cmp_ne_u32 vcc, 0, v55")
    A("s_cbranch_vccz L_xok")
    A(f"buffer_load_dwordx4 v[40:43], v54, s[36:39], 0 offen offset:{XBUF} sc1")
    A("s_waitcnt vmcnt(0)")
    spin("L_xchk")
    A.label("L_xok")
    A("v_cmp_ne_u32 vcc, s78, v40")
    A("s_mov_b32 s64, 0")
    if local:
        A("s_cbranch_vccnz L_xg")
        A("s_mov_b32 s64, 1")
        A.label("L_xg")
    A(f"v_lshlrev_b32 v{TC+13}, 16, v{TC+13}")
    for i in range(8):
        r = WDR[i >> 1] + 4 * (i & 1)
        A(f"ds_read_b128 v[{r}:{r+3}], v{TC+26} offset:{1024*i}")
    for F in FS:
        for r in range(4): A(f"v_mov_b32 v{F+r}, 0")
    for r in range(10, 18): A(f"v_mov_b32 v{r}, 0")
    A("v_and_b32 v4, 3, v1"); A("v_mul_u32_u24 v4, 0x5555, v4")
    OG = [(OB + 4 * j, TC + 8, 16 + (j >> 1), 2048 * (j & 1)) for j in range(4)]
    A.label("L_h1pre")
    A(f"buffer_load_dword v23, v{TC+9}, s[36:39], s20 offen offset:12 sc1")
    A("s_waitcnt vmcnt(0)")
    A("v_cmp_eq_u32 vcc, s56, v23")
    A("s_bcnt1_i32_b64 s71, vcc")
    A(f"s_cmp_ge_u32 s71, {2*thr1}")
    A("s_cbranch_scc1 L_h1go")
    spin("L_h1pre", slp1)
    A.label("L_h1go")
    gather("L_h1", [[(20, TC + 9, 20, 0)]] + [[g] for g in OG])
    stamp(7)
    A(".warm_on")
    A("v_or_b32_sdwa v20, v20, v22 dst_sel:DWORD dst_unused:UNUSED_PAD src0_sel:DWORD src1_sel:BYTE_3")
    dpp("v_max_f32", 22, 20, 20, "quad_perm:[1,0,3,2]")
    for ctl in ("quad_perm:[2,3,0,1]", "row_ror:8"): dpp("v_max_f32", 22, 22, 22, ctl)
    rows_all(22, 23, "v_max_f32")
    A("v_sub_f32 v20, v20, v22")
    A("v_exp_f32 v20, v20")
    A("v_mul_f32 v21, v20, v21")
    fm = []
    for j in range(4):
        for r in range(4):
            op = "v_mul_f32" if j == 0 else "v_fmac_f32"
            fm.append(f"{op}_dpp v{24+r}, v20, v{OB+4*j+r} quad_perm:[{j},{j},{j},{j}] {DPPF}")
    lr = [f"v_add_f32_dpp v21, v21, v21 {c} {DPPF}" for c in ("quad_perm:[1,0,3,2]", "quad_perm:[2,3,0,1]", "row_ror:8")]
    lr += ["v_mov_b32 v22, v21", "v_permlane32_swap_b32 v21, v22", "v_add_f32 v21, v21, v22\nv_mov_b32 v22, v21"]
    for k in range(len(fm)):
        A(fm[k])
        if k % 2 == 1 and k >= 1 and lr: A(lr.pop(0))
    assert not lr
    A("v_permlane16_swap_b32 v21, v22")
    A("v_add_f32 v21, v21, v22")
    A("v_permlane32_swap_b32 v24, v25")
    A("v_permlane32_swap_b32 v26, v27")
    A("v_add_f32 v24, v24, v25")
    A("v_add_f32 v26, v26, v27")
    A("v_rcp_f32 v21, v21")
    A("v_permlane16_swap_b32 v24, v26")
    A("v_add_f32 v24, v24, v26")
    dpp("v_add_f32", 24, 24, 24, "row_ror:8")
    A("v_mul_f32 v20, v24, v21")
    rbf(20, 20)
    def frag(j, src):
        F = FS[j % 3]
        for r in range(4):
            A(f"v_mov_b32_dpp v{F+r}, v{src} row_newbcast:{2*j+(r>>1)} row_mask:0xf bank_mask:{'0x5' if r % 2 == 0 else '0xa'}")
        return F
    def frag2(j):
        F = FS[j % 3]
        for r in range(4):
            q = 2 * j + (r >> 1); second = r & 1
            src, p = (20, q & 3) if (q >> 2) == second else (21, 3 - (q & 3))
            A(f"v_mov_b32_dpp v{F+r}, v{src} quad_perm:[{p},{p},{p},{p}] row_mask:0xf bank_mask:{'0xa' if second else '0x5'}")
        return F
    def gemv16(W, red, pair=True):
        fr = frag2 if pair else (lambda i: frag(i, 20))
        if pair: A(f"v_mov_b32_dpp v21, v20 row_half_mirror {DPPF}")
        Fs = {0: fr(0)}
        for j in range(4):
            if j < 3: Fs[j + 1] = fr(j + 1)
            for v in range(2):
                acc = 10 + 4 * v; b = W + 8 * (4 * v + j)
                A(f"v_smfmac_f32_16x16x64_bf16 v[{acc}:{acc+3}], v[{Fs[j]}:{Fs[j]+3}], v[{b}:{b+7}], v4")
        A("s_mov_b32 exec_hi, 0")
        A(f"ds_write_b128 v{TC+11}, v[10:13] offset:{red}")
        A("s_not_b64 exec, exec")
        A(f"ds_write_b128 v{TC+11}, v[14:17] offset:{red}")
        A("s_mov_b64 exec, -1")
        A("s_waitcnt lgkmcnt(0)")
        A("s_barrier")
    gemv16(WO, L_RED, pair=False)
    A(f"ds_read_b128 v[20:23], v{TC+12} offset:{L_RED}")
    A("s_cmp_eq_u32 s64, 1")
    A("s_waitcnt lgkmcnt(0)")
    rr4(20, 21, 22, 23)
    dpp("v_add_f32", 20, 20, 20, "row_ror:8")
    A("s_mov_b32 exec_lo, 0x00ff00ff"); A("s_mov_b32 exec_hi, 0x00ff00ff")
    rbf(36, 20)
    A("v_min_u32 v36, s60, v36")
    lstore("L_hs", f"buffer_store_short_d16_hi v36, v{TC+6}, s[36:39], s21 offen")
    A("s_mov_b64 exec, -1")
    stamp(8)
    if hw == -1: A("s_waitcnt vmcnt(0)")
    elif hw == -2: A("s_barrier")
    elif hw: A(f"s_sleep {hw}")
    A.label("L_h2")
    A("s_cmp_lg_u32 s69, 2")
    A("s_cbranch_scc1 L_h2f")
    A("s_cmp_lg_u32 s3, 7")
    A("s_cbranch_scc1 L_end")
    A.label("L_h2f")
    for r in list(range(10, 18)) + list(range(56, 60)): A(f"v_mov_b32 v{r}, 0")
    for r in range(4): A(f"v_mov_b32 v{68+r}, 0")
    A("v_mov_b32 v52, 1.0")
    for r in range(4): A(f"v_mov_b32_dpp v{68+r}, v52 quad_perm:[0,0,0,0] row_mask:0xf bank_mask:{'0x5' if r % 2 == 0 else '0xa'}")
    gathers("L_h2", TC + 14, 24)
    stamp(2)
    for r in range(4): A(f"v_add_f32_dpp v20, v{28+r}, v{28+r} row_ror:8 row_mask:{'0x3' if r < 2 else '0xc'} bank_mask:{'0xc' if r & 1 else '0x3'}")
    A(f"v_add_f32 v20, v20, v{TC+13}")
    rbf(20, 20)
    A("s_cmp_eq_u32 s69, 2")
    A("v_mov_b32 v50, v20")
    A("s_cbranch_scc1 L_fin0")
    A("v_readfirstlane_b32 s71, v20")
    A(f"v_mov_b32_dpp v21, v20 row_half_mirror {DPPF}")
    st = ["v_subrev_f32 v25, s71, v20\nv_mov_b32 v24, s71\nv_mul_f32 v26, v25, v25", "v_permlane32_swap_b32 v25, v26\nv_add_f32 v25, v25, v26"]
    st += [f"v_add_f32_dpp v25, v25, v25 {c} {DPPF}" for c in ("quad_perm:[1,0,3,2]", "quad_perm:[2,3,0,1]", "row_ror:8")]
    st += [f"v_add_f32_dpp v25, v25, v25 row_ror:4 {DPPF}\nv_mov_b32 v26, v25", "v_permlane16_swap_b32 v25, v26\nv_add_f32 v25, v25, v26"]
    A(st.pop(0))
    Fs = {0: frag2(0)}
    A(st.pop(0))
    for j in range(4):
        if j < 3: Fs[j + 1] = frag2(j + 1); A(st.pop(0))
        for v in range(2):
            acc = 10 + 4 * v; b = WGU + 8 * (4 * v + j)
            A(f"v_smfmac_f32_16x16x64_bf16 v[{acc}:{acc+3}], v[{Fs[j]}:{Fs[j]+3}], v[{b}:{b+7}], v4")
        if j >= 2: A(st.pop(0))
    assert not st
    A("s_mov_b32 exec_lo, 1"); A("s_mov_b32 exec_hi, 1")
    A(f"ds_write_b64 v{TC+20}, v[24:25] offset:{L_ST}")
    A("s_mov_b32 exec_lo, -1"); A("s_mov_b32 exec_hi, 0")
    A(f"ds_write_b128 v{TC+11}, v[10:13] offset:{L_RED2}")
    A("s_not_b64 exec, exec")
    A(f"ds_write_b128 v{TC+11}, v[14:17] offset:{L_RED2}")
    A("s_mov_b64 exec, -1")
    A("s_waitcnt lgkmcnt(0)")
    A("s_barrier")
    stamp(3)
    A(f"ds_read_b128 v[60:63], v{TC+21} offset:{L_ST}")
    for k in range(4): A(f"ds_read_b128 v[{20+4*k}:{23+4*k}], v{TC+23} offset:{L_RED2+512*k}")
    A("s_waitcnt lgkmcnt(4)")
    A("v_readfirstlane_b32 s71, v60")
    A("v_subrev_f32 v60, s71, v60")
    A("v_fmamk_f32 v64, v60, 0x42800000, v61")
    A("v_add_f32 v61, v61, v64")
    A("v_fma_f32 v62, v60, v61, v63")
    A("s_waitcnt lgkmcnt(0)")
    c3 = ("quad_perm:[1,0,3,2]", "quad_perm:[2,3,0,1]", "row_half_mirror")
    pk = ["v_pk_add_f32 v[20:21], v[20:21], v[24:25]", "v_pk_add_f32 v[22:23], v[22:23], v[26:27]", "v_pk_add_f32 v[28:29], v[28:29], v[32:33]",
          "v_pk_add_f32 v[30:31], v[30:31], v[34:35]", "v_pk_add_f32 v[20:21], v[20:21], v[28:29]", "v_pk_add_f32 v[22:23], v[22:23], v[30:31]"]
    for k in range(3):
        A(pk[2 * k]); dpp("v_add_f32", 64, 64, 64, c3[k]); A(pk[2 * k + 1]); dpp("v_add_f32", 62, 62, 62, c3[k])
    A("v_mul_f32 v64, 0x3b000000, v64")
    A("v_permlane32_swap_b32 v20, v21")
    A("v_permlane32_swap_b32 v22, v23")
    A("v_mul_f32 v62, 0x3b000000, v62")
    A("v_add_f32 v20, v20, v21")
    A("v_add_f32 v22, v22, v23")
    A("v_fma_f32 v62, -v64, v64, v62")
    A("v_max_f32 v62, 0, v62")
    A("v_permlane16_swap_b32 v20, v22")
    A("v_add_f32 v62, 0x3727c5ac, v62")
    A("v_add_f32 v64, s71, v64")
    A("v_rsq_f32 v62, v62")
    A("v_add_f32 v20, v20, v22")
    A("v_fma_f32 v20, -v64, v51, v20")
    A("v_mul_f32 v20, v20, v62")
    dpp("v_mul_f32", 21, 20, 20, "row_ror:8")
    rbf(21, 21)
    Fs = {0: frag(0, 21)}
    for j in range(4):
        if j < 3: Fs[j + 1] = frag(j + 1, 21)
        A(f"v_smfmac_f32_16x16x64_bf16 v[56:59], v[{Fs[j]}:{Fs[j]+3}], v[{WDR[j]}:{WDR[j]+7}], v4")
    A("s_mov_b32 exec_hi, 0")
    A("s_cmp_eq_u32 s64, 1")
    A("v_cvt_pk_bf16_f32 v56, v56, v57"); A("v_cvt_pk_bf16_f32 v57, v58, v59")
    A("v_pk_min_u16 v56, s60, v56"); A("v_pk_min_u16 v57, s60, v57")
    lstore("L_ys", f"buffer_store_dwordx2 v[56:57], v{TC+24}, s[36:39], s18 offen")
    stamp(9)
    A("s_cmp_lg_u32 s3, s68")
    A("s_cbranch_scc1 L_end")
    A("s_mov_b64 exec, -1")
    if yw == -1: A("s_waitcnt vmcnt(0)")
    elif yw: A(f"s_sleep {yw}")
    A("s_branch L_fin")
    A.label("L_fin0")
    A("s_cmp_lg_u32 s77, 28"); A("s_cbranch_scc1 L_fin")
    A("s_mov_b64 exec, 1")
    A("v_mov_b32 v36, s52")
    A("buffer_store_dword v36, v3, s[36:39], 0 offen sc1")
    A("s_mov_b64 exec, -1")
    A.label("L_fin")
    A("s_and_b32 s71, s77, 3"); A("s_lshl_b32 s71, s71, 1"); A("s_lshl_b32 s71, 0x03030303, s71")
    gathers("L_h3", TC + 22, 22)
    stamp(5)
    for r in range(4): A(f"v_add_f32_dpp v{20+(r&1)}, v{28+r}, v{28+r} quad_perm:[2,3,0,1] row_mask:{'0x3' if r < 2 else '0xc'} bank_mask:0xf")
    dpp("v_add_f32", 20, 20, 20, "row_ror:4"); dpp("v_add_f32", 21, 21, 21, "row_ror:4")
    A("v_add_f32_dpp v22, v20, v20 row_ror:8 row_mask:0xf bank_mask:0x3")
    A("v_add_f32_dpp v22, v21, v21 row_ror:8 row_mask:0xf bank_mask:0xc")
    A("v_add_f32 v20, v22, v50")
    rbf(20, 20)
    if diag and diag[1] == "ack":
        A("s_mov_b32 exec_lo, s71"); A("s_mov_b32 exec_hi, s71")
        A(f"buffer_store_short_d16_hi v20, v{TC+25}, s[44:47], 0 offen")
        A("s_waitcnt vmcnt(0)")
        A("s_memrealtime s[86:87]")
    if diag:
        A("s_waitcnt lgkmcnt(0)")
        A("s_sub_u32 s84, s86, s84"); A(f"s_mul_i32 s84, s84, {diag[2]}"); A("s_add_u32 s84, s84, 6000"); A("s_min_u32 s84, s84, 100000")
        A.label("L_dg1")
        A("s_memrealtime s[82:83]"); A("s_waitcnt lgkmcnt(0)")
        A("s_sub_u32 s82, s82, s80"); A("s_cmp_lt_u32 s82, s84"); A("s_cbranch_scc1 L_dg1")
    A("s_mov_b32 exec_lo, s71"); A("s_mov_b32 exec_hi, s71")
    A(f"buffer_store_short_d16_hi v20, v{TC+25}, s[44:47], 0 offen")
    A(".warm_off")
    A("s_branch L_end")
    A.label("L_cs")
    A("v_and_b32 v4, 3, v1"); A("v_mul_u32_u24 v4, 0x5555, v4")
    for r in range(20, 32): A(f"v_mov_b32 v{r}, 0")
    A("v_mov_b32 v32, 1.0")
    A("s_waitcnt vmcnt(0)")
    for r in range(4): A(f"v_mov_b32_dpp v{28+r}, v32 quad_perm:[0,0,0,0] row_mask:0xf bank_mask:{'0x5' if r % 2 == 0 else '0xa'}")
    for j in range(4):
        for v in range(2):
            b = WGU + 8 * (4 * v + j)
            A(f"v_smfmac_f32_16x16x64_bf16 v[{20+4*v}:{23+4*v}], v[28:31], v[{b}:{b+7}], v4")
    A("s_mov_b32 exec_hi, 0")
    A(f"ds_write_b128 v{TC+11}, v[20:23] offset:{L_RED2}")
    A("s_not_b64 exec, exec")
    A(f"ds_write_b128 v{TC+11}, v[24:27] offset:{L_RED2}")
    A("s_mov_b64 exec, -1")
    A("s_branch L_csr")
    for (lab, back) in post:
        A.label(lab); spin(back)
    for (name, text) in post2:
        A.label(f"{name}_g"); A(text + " sc1"); A(f"s_branch {name}_j")
    A.label("L_end")
    if prof:
        A("s_waitcnt vmcnt(0)")
        stamp(10)
        A("s_mov_b64 exec, -1")
        A("s_waitcnt lgkmcnt(0)")
        for i in range(11): A(f"v_writelane_b32 v20, s{80+2*i}, {i}")
        A("v_writelane_b32 v20, s64, 11")
        A("s_getreg_b32 s71, hwreg(HW_REG_XCC_ID)"); A("v_writelane_b32 v20, s71, 12")
        A("s_lshl_b32 s71, s2, 3"); A("s_add_u32 s71, s71, s3"); A("s_lshl_b32 s71, s71, 6"); A(f"s_add_u32 s71, s71, {PROF}")
        A("v_lshlrev_b32 v21, 2, v1")
        A("s_mov_b64 exec, 0xffff")
        A("buffer_store_dword v20, v21, s[36:39], s71 offen")
    A.label("L_exit")
    A("s_endpgm")
    body = A.finish()
    nv = max(A.maxv + 1, 136)
    txt = HEADER + f"; @launch grid=(256,1,1) block=(512,1,1) lds={L_END}\n"
    txt += DOC
    txt += f'.amdgcn_target "amdgcn-amd-amdhsa--gfx950"\n.text\n.globl {KNAME}\n.p2align 8\n.type {KNAME},@function\n{KNAME}:\n'
    txt += body
    txt += ".fill 256, 4, 0xbf800000\n"
    txt += f'.section .rodata,"a"\n.p2align 6\n.amdhsa_kernel {KNAME}\n  .amdhsa_next_free_vgpr {nv}\n  .amdhsa_next_free_sgpr 102\n'
    txt += f"  .amdhsa_accum_offset {(nv+3)//4*4}\n  .amdhsa_group_segment_fixed_size 0\n  .amdhsa_kernarg_size 96\n  .amdhsa_user_sgpr_count 2\n"
    txt += "  .amdhsa_user_sgpr_kernarg_segment_ptr 1\n  .amdhsa_system_sgpr_workgroup_id_x 1\n  .amdhsa_float_denorm_mode_32 3\n.end_amdhsa_kernel\n"
    return txt

if __name__ == "__main__":
    import argparse
    p = argparse.ArgumentParser(); p.add_argument("-o"); p.add_argument("kv", nargs="*")
    a = p.parse_args()
    kw = {k: eval(v) for k, v in (x.split("=") for x in a.kv)}
    open(a.o, "w").write(gen(**kw))
```

```python
import re

TRANS = ("v_exp_f32", "v_log_f32", "v_rcp_f32", "v_rsq_f32", "v_sqrt_f32", "v_sin_f32", "v_cos_f32")

def regs_of(tok):
    t = tok.strip()
    t = re.sub(r"^(neg|abs)\((.*)\)$", r"\2", t).lstrip("-").strip("|")
    if t == "vcc": return {("s", 106), ("s", 107)}
    if t == "vcc_lo": return {("s", 106)}
    if t == "vcc_hi": return {("s", 107)}
    if t == "exec": return {("s", 126), ("s", 127)}
    if t == "m0": return {("s", 124)}
    m = re.match(r"^([vsa])(\d+)$", t)
    if m: return {(m.group(1), int(m.group(2)))}
    m = re.match(r"^([vsa])\[(\d+):(\d+)\]$", t)
    if m: return {(m.group(1), i) for i in range(int(m.group(2)), int(m.group(3)) + 1)}
    return set()

class Ins:
    def __init__(self, text):
        self.text = text
        body = text.split(";")[0].strip()
        self.is_label = body.endswith(":")
        self.is_dir = body.startswith(".") or body == ""
        self.op = ""; self.dst = set(); self.src = set(); self.ops = []
        self.kind = "none"; self.dpp = False; self.dppsrc = set(); self.srcC = set(); self.srcAB = set()
        self.states = 0; self.sdata = set(); self.ldsdma = False
        if self.is_label or self.is_dir: return
        parts = body.split(None, 1)
        self.op = op = parts[0]
        rest = parts[1] if len(parts) > 1 else ""
        ops = []; cur = ""; depth = 0
        for ch in rest:
            if ch == "[": depth += 1
            if ch == "]": depth -= 1
            if ch == "," and depth == 0: ops.append(cur.strip()); cur = ""
            else: cur += ch
        if cur.strip(): ops.append(cur.strip())
        mods = ""
        if ops:
            last = ops[-1].split(None, 1)
            ops[-1] = last[0]
            mods = last[1] if len(last) > 1 else ""
        self.ops = ops; self.mods = mods
        self.states = 1
        R = [regs_of(o) for o in ops]
        if op == "s_nop":
            self.kind = "salu"; self.states = int(ops[0], 0) + 1; return
        if op.startswith("v_smfmac"):
            self.kind = "mfma"; self.dst = R[0]; self.srcAB = R[1] | R[2] | R[3]; self.srcC = R[0]; self.src = self.srcAB | self.srcC
            self.passes = 8 if "32x32" in op else 4
            return
        if op.startswith("v_mfma"):
            self.kind = "mfma"; self.dst = R[0]; self.srcAB = R[1] | R[2]; self.srcC = R[3]; self.src = self.srcAB | self.srcC
            self.passes = 8 if "32x32" in op else 4
            return
        if op.startswith("v_"):
            self.kind = "valu"
            self.dpp = "_dpp" in op
            if op.startswith("v_permlane"):
                self.dst = R[0] | R[1]; self.src = R[0] | R[1]; return
            if op.startswith("v_cmp"):
                self.dst = R[0]; self.src = set().union(*R[1:]); return
            if op in ("v_add_co_u32", "v_sub_co_u32", "v_addc_co_u32", "v_subb_co_u32", "v_mad_u64_u32"):
                self.dst = R[0] | R[1]; self.src = set().union(*R[2:]); return
            self.dst = R[0]; self.src = set().union(*R[1:]) if len(R) > 1 else set()
            if op.startswith(("v_fmac", "v_dot2c", "v_writelane")) or self.dpp: self.src |= R[0]
            if self.dpp: self.dppsrc = R[1]
            return
        if op.startswith(("buffer_", "global_")):
            self.kind = "vmem"
            if "load" in op and re.search(r"\blds\b", mods):
                self.src = set().union(*R) | regs_of("m0"); self.ldsdma = True
            elif "load" in op:
                self.dst = R[0]; self.src = set().union(*R[1:])
                if "d16" in op: self.src |= R[0]
            elif "store" in op:
                self.src = set().union(*R)
                d = R[0] if op.startswith("buffer_") else R[1]
                if "x3" in op or "x4" in op: self.sdata = d
            else:
                self.src = set().union(*R)
                if "sc0" in mods: self.dst = R[0]
            return
        if op.startswith("ds_"):
            self.kind = "ds"
            if op.startswith(("ds_read", "ds_bpermute", "ds_permute", "ds_swizzle")) or "_rtn" in op:
                self.dst = R[0]; self.src = set().union(*R[1:])
            else:
                self.src = set().union(*R)
            return
        if op.startswith("s_"):
            self.kind = "salu"
            if op.startswith(("s_cmp", "s_cbranch", "s_branch", "s_waitcnt", "s_barrier", "s_endpgm", "s_sleep", "s_setprio", "s_bitcmp")):
                self.src = set().union(*R) if R else set()
            else:
                self.dst = R[0] if R else set(); self.src = set().union(*R[1:]) if len(R) > 1 else set()
                if "saveexec" in op: self.dst |= regs_of("exec")
            return
        raise ValueError("unknown instr " + text)

def need(p, c):
    n = 0
    pv = {r for r in p.dst if r[0] in "va"}
    ps = {r for r in p.dst if r[0] == "s"}
    if p.kind == "valu" and p.op.startswith("v_dot") and c.kind in ("valu", "mfma", "vmem", "ds"):
        same = c.op.replace("_dpp", "") == p.op.replace("_dpp", "")
        ab = set().union(*[regs_of(o) for o in c.ops[1:3]]) if same else (c.src | c.dst)
        if pv & ab: n = max(n, 3)
    if p.kind == "valu":
        if c.kind == "valu":
            if c.dpp and (pv & c.dppsrc): n = max(n, 2)
            if c.op.startswith("v_permlane") and (pv & c.src): n = max(n, 2)
            if c.op.startswith(("v_readlane", "v_readfirstlane")) and (pv & c.src): n = max(n, 1)
            if p.op.replace("_e32", "").replace("_e64", "") in TRANS and (pv & c.src): n = max(n, 1)
            if "sdwa" in p.op and (pv & (c.src | c.dst)): n = max(n, 1)
            cs = set(c.src)
            if c.op.startswith("v_cndmask") and len(c.ops) == 4: cs |= regs_of(c.ops[3])
            if ps & cs:
                n = max(n, 4 if c.op.startswith(("v_readlane", "v_writelane")) else 2)
            if (ps & regs_of("exec")):
                n = max(n, 5 if c.dpp else (4 if c.op.startswith(("v_readlane", "v_readfirstlane", "v_writelane", "v_permlane")) else 0))
        if c.kind == "mfma":
            if pv & c.src: n = max(n, 2)
            if ps & regs_of("exec"): n = max(n, 4)
        if c.kind == "vmem" and (ps & c.src): n = max(n, 5)
        if c.kind == "salu" and (ps & c.src) and not c.op.startswith("s_cbranch"): n = max(n, 1)
    if p.kind == "mfma":
        big = {4: 8, 8: 12}[p.passes]
        if c.kind == "mfma":
            if pv & c.srcAB: n = max(n, big)
            if pv & c.srcC and not (c.srcC == p.dst and c.passes == p.passes): n = max(n, {4: 6, 8: 10}[p.passes])
            elif (pv & c.dst) and not (pv & c.srcC): n = max(n, big)
        elif c.kind in ("valu", "vmem", "ds"):
            if pv & (c.src | c.dst): n = max(n, big)
            if c.kind == "valu" and (p.srcC & c.dst): n = max(n, {4: 3, 8: 7}[p.passes])
    if p.kind == "salu" and c.ldsdma and (ps & regs_of("m0")): n = max(n, 1)
    if p.kind == "vmem" and p.sdata:
        if c.kind in ("valu", "mfma") and (p.sdata & c.dst): n = max(n, 2)
        elif p.sdata & c.dst: n = max(n, 1)
    return n

class Asm:
    def __init__(self):
        self.lines = []
    def __call__(self, text):
        for t in text.strip("\n").split("\n"):
            t = t.strip()
            if t: self.lines.append(t)
    def label(self, name): self.lines.append(name + ":")
    warm = None
    @staticmethod
    def size(o):
        if o.kind == "none": return 0
        if o.kind in ("vmem", "ds", "mfma"): return 8
        lit = any(re.match(r"^-?(0x[0-9a-f]+|\d+)$", t) and not (-16 <= int(t, 0) <= 64) for t in o.ops)
        if o.kind == "salu":
            if o.op.startswith(("s_load", "s_atomic", "s_memrealtime", "s_memtime")): return 8
            if o.op.startswith(("s_waitcnt", "s_nop", "s_sleep", "s_branch", "s_cbranch", "s_barrier")): return 4
            return 8 if lit else 4
        v4 = ("v_mov_b32", "v_add_f32", "v_sub_f32", "v_subrev_f32", "v_mul_f32", "v_max_f32", "v_fmac_f32", "v_and_b32", "v_or_b32", "v_xor_b32", "v_exp_f32",
              "v_rcp_f32", "v_rsq_f32", "v_lshlrev_b32", "v_lshrrev_b32", "v_add_u32", "v_min_u32", "v_readfirstlane_b32", "v_permlane32_swap_b32", "v_permlane16_swap_b32")
        if o.op in v4 or (o.op.startswith("v_cmp") and o.ops[0] == "vcc"): return 8 if lit else 4
        return 8
    def add_pads(self, out):
        if not self.warm: return [o for o in out if not o.text.startswith(".warm")]
        sp, fin = self.warm
        res = []; on = False; n = 0; since = 0
        i = 0
        while i < len(out):
            o = out[i]
            if o.text.startswith(".warm_on"): on = True; since = sp; i += 1; continue
            if o.text.startswith(".warm_off"): on = False; i += 1; continue
            if on and o.kind != "none":
                place = False
                if o.op == "s_nop" and since >= sp * 0.55: place = True
                elif since >= sp:
                    place = True
                assert not (o.ops and o.ops[0] in ("exec_lo", "exec") and o.ops[1] == "0"), o.text
                if place:
                    res.append(Ins(f"L_wp{n}:")); res.append(Ins(f"s_cbranch_execz L_wp{n+1}")); n += 1; since = 4
                    if o.op == "s_nop":
                        k = int(o.ops[0], 0)
                        if k > 0: res.append(Ins(f"s_nop {k-1}")); since += 4
                        i += 1; continue
                since += self.size(o)
            res.append(o); i += 1
        for k in range(len(res) - 1, -1, -1):
            if res[k].text == f"s_cbranch_execz L_wp{n}": res[k] = Ins(f"s_cbranch_execz {fin}"); break
        self.npads = n
        return res
    def finish(self):
        ins = [Ins(t) for t in self.lines]
        out = []
        W = 14
        for c in ins:
            if c.kind != "none":
                dist = 0; req = 0
                for p in reversed(out):
                    if p.kind == "none": continue
                    if p.op in ("s_branch", "s_endpgm", "s_setpc_b64"): break
                    r = need(p, c) - dist
                    req = max(req, r)
                    dist += p.states
                    if dist >= W: break
                if req > 0:
                    out.append(Ins(f"s_nop {req - 1}"))
            out.append(c)
        out = self.add_pads(out)
        labels = {o.text.split(":")[0]: i for i, o in enumerate(out) if o.is_label}
        errs = []
        for i, b in enumerate(out):
            if b.op.startswith(("s_cbranch", "s_branch")) and not b.ops[0].startswith(("L_wp", "L_wret")):
                tgt = labels[b.ops[0]]
                pre = [o for o in out[max(0, i - 2 * W): i + 1] if o.kind != "none"]
                for k in range(len(pre) - 2, -1, -1):
                    if pre[k].op in ("s_branch", "s_endpgm"): pre = pre[k + 1:]; break
                post = []
                for o in out[tgt: tgt + 2 * W]:
                    if o.kind == "none": continue
                    post.append(o)
                    if o.op in ("s_branch", "s_endpgm"): break
                d0 = 0
                for c in post:
                    dist = d0
                    for p in reversed(pre):
                        if need(p, c) > dist: errs.append(f"branch hazard: [{p.text}] -> {b.text} -> [{c.text}] need {need(p, c)} have {dist}")
                        dist += p.states
                        if dist >= W: break
                    d0 += c.states
                    if d0 >= W: break
        if errs: raise RuntimeError("\n".join(errs))
        self.maxv = max([r[1] for o in out for r in (o.dst | o.src) if r[0] == "v"] + [0])
        self.maxs = max([r[1] for o in out for r in (o.dst | o.src) if r[0] == "s" and r[1] < 102] + [0])
        return "\n".join(("" if (o.is_label or o.is_dir) else "    ") + o.text for o in out) + "\n"
```

```python
import sys, struct
sys.path.insert(0, "gen")
from asmlib import Asm

KNAME = "sequential_preLN__gqa_block_cached__glu_gated_bilinear__decode_kernel"
HEADER = open("sequential_preLN__gqa_block_cached__glu_gated_bilinear__decode.s.ref").read().split("; Override launch")[0]

DOC = """; ---------------------------------------------------------------------------------------------
; ---------------------------------------------------------------------------------------------
"""
XBUF, QBUF, OBUF, HBUF, YBUF, CBUF, MLBUF, WS_END = 0x800, 0x1000, 0x10000, 0xAC000, 0xB0000, 0xD0000, 0x140000, 0x180000
PROF = 0x100000
L_OM, L_ML, L_MX, L_QF, L_TK, L_ST, L_RED, L_RED2, L_HL, L_TB, L_WD, L_S, L_END = 0, 0x4000, 0x4100, 0x4600, 0x4A00, 0x4B00, 0x5000, 0x7000, 0x4C00, 0x9000, 0x9800, 0x19800, 0x21800
DPPF = "row_mask:0xf bank_mask:0xf"
SPIN = 1 << 20
L_MX2 = 0x4200

def gen(NX=4, prof=False, S0=104, offT=48, offF=24, offQ=12, thr1=8, slp1=4, qslp=4, LA=2, t8=128, t4=48, t1=0, b0=8,
        cstride=256, kf='nt', vf='nt', wf='nt', mlsh=5, cut=0, local=True, pretouch=True, tT=64, diag=0, codepf=True, outpf=False, h2pre=False, opre=None, osf='sc1', ew=8, ewx=0, PS=0, pgap=0, flat2=True, flat3=True, skipoob=True, hw=-2, yw=0, stx=True, noround=0, trace=False, tlbpf=0, tS=0, sm=8, XT=0, W=0, qprof=False, qhold=True, X2=2, NXT=1, wpf=False, wf2=None, wsplit=False, warm=0, wwave=7, contig=False, spread=False, rot=0, perm=None, h1t=0, h1f='sc1', wmap=0, eo=1):
    A = Asm()
    if warm: A.warm = (warm, 'L_wret')
    CM = {'L_ring': 'prefetch K units of the static range (q is not needed yet)', 'L_qprod': 'q producers: LayerNorm(x), 64 columns of x @ wq, 64 rows per wave', 'L_w0b': "wave 0: LDS counters / chunk table, wait for this head's q", 'L_k': 'phase K: two 16-key chunks per ticket, scores (log2 domain) to LDS', 'L_v': 'phase V: P = exp2(z - max), O += P @ V', 'L_loop': 'phase C: K and V of one pool chunk, online softmax', 'L_first': 'first pass: scores of the prefetched extra units', 'L_setup': 'one-time address constants; tail workgroups also clear their slots and load weights', 'L_dyn': 'pool hand-out: LDS table refilled in batches from the pool counter', 'L_done': "merge the 8 waves' partials and publish them", 'L_xchk': 'tail workgroups: placement check', 'L_h1pre': 'gather the 32 partials of two heads, combine, apply wo', 'L_h2': 'gather partial sums of h, gate/up, LayerNorm statistics, w_down', 'L_fin': 'gather partial outputs, residual, store', 'L_cs': 'column sums of the gate/up slice'}
    _lab = A.label
    def label(name):
        if name in CM: A.lines.append("; ---- " + CM[name])
        _lab(name)
    A.label = label
    RA, RX = 56, 88
    WO, WGU = 88, 152
    WDR = [72, 80, 244, 40]
    FS = [232, 6, 252]
    TC = 216
    OOB = 0x1000000
    D0 = (4096 - 32 * S0 + 8 * offQ + 4 * offT) // 4
    assert offF % 4 == 0
    D1 = D0 - offF // 4
    assert LA + D0 + 64 + 64 <= 512
    seen = {}
    def stamp(i):
        if prof: A(f"s_memrealtime s[{80+2*i}:{81+2*i}]")
        seen[i] = seen.get(i, 0) + 1
        if diag:
            if (i, seen[i]) == (0, 1): A("s_memrealtime s[80:81]")
            if diag[0] == (i, seen[i]): A("s_memrealtime s[84:85]")
            if diag[1] == (i, seen[i]): A("s_memrealtime s[86:87]")
    def rr4(a, b, c, d):
        A(f"v_permlane32_swap_b32 v{a}, v{b}")
        A(f"v_permlane32_swap_b32 v{c}, v{d}")
        A(f"v_add_f32 v{a}, v{a}, v{b}")
        A(f"v_add_f32 v{c}, v{c}, v{d}")
        A(f"v_permlane16_swap_b32 v{a}, v{c}")
        A(f"v_add_f32 v{a}, v{a}, v{c}")
    def rows_all(x, t, op):
        A(f"v_mov_b32 v{t}, v{x}")
        A(f"v_permlane32_swap_b32 v{x}, v{t}")
        A(f"{op} v{x}, v{x}, v{t}")
        A(f"v_mov_b32 v{t}, v{x}")
        A(f"v_permlane16_swap_b32 v{x}, v{t}")
        A(f"{op} v{x}, v{x}, v{t}")
    def dpp(op, d, s, o, ctl): A(f"{op}_dpp v{d}, v{s}, v{o} {ctl} {DPPF}")
    def quad_all(x, op):
        dpp(op, x, x, x, "quad_perm:[1,0,3,2]"); dpp(op, x, x, x, "quad_perm:[2,3,0,1]")
    def wave_all(x, t, op):
        quad_all(x, op); dpp(op, x, x, x, "row_ror:8"); dpp(op, x, x, x, "row_ror:4"); rows_all(x, t, op)
    def rbf(d, s): A(f"v_cvt_pk_bf16_f32 v{d}, 0, v{s}")
    def ln_fin(mean, var):
        rbf(var, var)
        rbf(mean, mean)
        A(f"v_add_f32 v{var}, 0x37280000, v{var}")
        rbf(var, var)
        A(f"v_sqrt_f32 v{var}, v{var}")
        rbf(var, var)
        A(f"v_rcp_f32 v{var}, v{var}")
    def ln_stats(vals, mean, rinv, t):
        A(f"v_add_f32 v{mean}, v{vals[0]}, v{vals[1]}")
        A(f"v_add_f32 v{t}, v{vals[2]}, v{vals[3]}")
        A(f"v_add_f32 v{rinv}, v{vals[4]}, v{vals[5]}")
        A(f"v_add_f32 v{mean}, v{mean}, v{t}")
        A(f"v_add_f32 v{t}, v{vals[6]}, v{vals[7]}")
        A(f"v_add_f32 v{rinv}, v{rinv}, v{t}")
        A(f"v_add_f32 v{mean}, v{mean}, v{rinv}")
        wave_all(mean, t, "v_add_f32")
        A(f"v_mul_f32 v{mean}, 0x3b000000, v{mean}")
        for v in vals: A(f"v_sub_f32 v{v}, v{v}, v{mean}")
        A(f"v_mul_f32 v{rinv}, v{vals[0]}, v{vals[0]}")
        A(f"v_mul_f32 v{t}, v{vals[1]}, v{vals[1]}")
        for k in range(2, 8, 2):
            A(f"v_fmac_f32 v{rinv}, v{vals[k]}, v{vals[k]}")
            A(f"v_fmac_f32 v{t}, v{vals[k+1]}, v{vals[k+1]}")
        A(f"v_add_f32 v{rinv}, v{rinv}, v{t}")
        wave_all(rinv, t, "v_add_f32")
        A(f"v_mul_f32 v{rinv}, 0x3b000000, v{rinv}")
        ln_fin(mean, rinv)
    def srd(d, lo, hi, n):
        A(f"s_mov_b32 s{d}, s{lo}"); A(f"s_mov_b32 s{d+1}, s{hi}"); A(f"s_mov_b32 s{d+2}, {hex(n)}"); A(f"s_mov_b32 s{d+3}, 0x20000")
    def spin(label, slp=0):
        A("s_sub_u32 s72, s72, 1")
        A("s_cbranch_scc1 L_end")
        if slp: A(f"s_sleep {slp}")
        A(f"s_branch {label}")
    MREG = [4, 6, 8, 14, 62]
    def gather(name, groups, init_masks=None, check_first=False):
        ng = len(groups)
        for j in range(ng):
            m = -1 if init_masks is None else init_masks[j]; M = MREG[j]
            if m == -1: A(f"s_mov_b64 s[{M}:{M+1}], -1")
            else: A(f"s_mov_b32 s{M}, {hex(m & 0xffffffff)}"); A(f"s_mov_b32 s{M+1}, {hex(m >> 32)}")
        if check_first: A(f"s_branch {name}_chk")
        A.label(f"{name}_rnd")
        for j, g in enumerate(groups):
            M = MREG[j]
            A(f"s_mov_b64 exec, s[{M}:{M+1}]")
            A(f"s_cbranch_execz {name}_i{j}")
            for (r, va, so, imm) in g:
                A(f"buffer_load_dwordx4 v[{r}:{r+3}], v{va}, s[36:39], s{so} offen offset:{imm} sc1")
            A.label(f"{name}_i{j}")
        A.label(f"{name}_chk")
        A("s_mov_b64 s[12:13], 0")
        A("s_waitcnt vmcnt(0)")
        for j, g in enumerate(groups):
            M = MREG[j]
            A(f"s_mov_b64 exec, s[{M}:{M+1}]")
            A(f"s_cbranch_execz {name}_c{j}")
            regs = [r + k for (r, _, _, _) in g for k in range(4)]
            for k, r in enumerate(regs): A(f"v_xor_b32 v{r}, s{53+(k&3)}, v{r}")
            A(f"v_or3_b32 v55, v{regs[0]}, v{regs[1]}, v{regs[2]}")
            rest = regs[3:]
            while len(rest) >= 2:
                A(f"v_or3_b32 v55, v55, v{rest[0]}, v{rest[1]}"); rest = rest[2:]
            A(f"v_or_b32 v55, v55, v{rest[0]}")
            A("v_and_b32 v55, 0xff, v55")
            A(f"v_cmp_ne_u32 s[{M}:{M+1}], 0, v55")
            A(f"s_or_b64 s[12:13], s[12:13], s[{M}:{M+1}]")
            A.label(f"{name}_c{j}")
        A("s_mov_b64 exec, -1")
        A("s_cmp_eq_u64 s[12:13], 0")
        A(f"s_cbranch_scc1 {name}_ok")
        spin(f"{name}_rnd")
        A.label(f"{name}_ok")
    def gatherp(name, groups, raws):
        ng = len(groups)
        for j in range(ng): A(f"s_mov_b64 s[{MREG[j]}:{MREG[j]+1}], -1")
        NL = sum(len(g) for g in groups)
        def issue(rb):
            n = 0
            for j, g in enumerate(groups):
                A(f"s_or_b64 exec, s[{MREG[j]}:{MREG[j]+1}], 1")
                for (r, va, so, imm) in g:
                    A(f"buffer_load_dwordx4 v[{rb+4*n}:{rb+4*n+3}], v{va}, s[36:39], s{so} offen offset:{imm} sc1")
                    n += 1
        for rb in raws: issue(rb)
        A.label(f"{name}_rnd")
        for k, rb in enumerate(raws):
            A("s_mov_b64 s[12:13], 0")
            A(f"s_waitcnt vmcnt({(len(raws)-1)*NL})")
            n = 0
            for j, g in enumerate(groups):
                M = MREG[j]
                A(f"s_mov_b64 exec, s[{M}:{M+1}]")
                A(f"s_cbranch_execz {name}_c{k}_{j}")
                regs = []
                for (r, _, _, _) in g:
                    for e in range(4):
                        A(f"v_xor_b32 v{r+e}, s{53+e}, v{rb+4*n+e}"); regs.append(r + e)
                    n += 1
                A(f"v_or3_b32 v55, v{regs[0]}, v{regs[1]}, v{regs[2]}")
                A(f"v_or_b32 v55, v55, v{regs[3]}")
                A("v_and_b32 v55, 0xff, v55")
                A(f"v_cmp_ne_u32 s[{M}:{M+1}], 0, v55")
                A(f"s_or_b64 s[12:13], s[12:13], s[{M}:{M+1}]")
                A.label(f"{name}_c{k}_{j}")
            A("s_cmp_eq_u64 s[12:13], 0")
            A(f"s_cbranch_scc1 {name}_ok")
            if pgap: A(f"s_sleep {pgap}")
            issue(rb)
        spin(f"{name}_rnd")
        A.label(f"{name}_ok")
        A("s_mov_b64 exec, -1")
    def gatherf(name, loads, last_half=False):
        A.label(f"{name}_rnd")
        for k, (r, va, so, imm) in enumerate(loads):
            if last_half and k == len(loads) - 1:
                for e in range(4): A(f"v_mov_b32 v{r+e}, s{53+e}")
                A("s_mov_b32 exec_hi, 0")
            A(f"buffer_load_dwordx4 v[{r}:{r+3}], v{va}, s[36:39], s{so} offen offset:{imm} sc1")
        if last_half: A("s_mov_b32 exec_hi, -1")
        n = len(loads)
        for k, (r, _, _, _) in enumerate(loads):
            A(f"s_waitcnt vmcnt({n-1-k})")
            for e in range(4): A(f"v_xor_b32 v{r+e}, s{53+e}, v{r+e}")
            if k == 0: A(f"v_or_b32 v55, v{r}, v{r+1}")
            else: A(f"v_or3_b32 v55, v55, v{r}, v{r+1}")
            A(f"v_or3_b32 v55, v55, v{r+2}, v{r+3}")
        A("v_and_b32 v55, 0xff, v55")
        A("v_cmp_ne_u32 vcc, 0, v55")
        A(f"s_cbranch_vccnz {name}_re")
        post.append((f"{name}_re", f"{name}_rnd"))
    def gathers(name, va, so):
        A.label(f"{name}_rnd")
        A(f"buffer_load_dwordx4 v[20:23], v{va}, s[36:39], s{so} offen sc1")
        A(f"buffer_load_dwordx4 v[24:27], v{va}, s[36:39], s{so+1} offen sc1")
        for r in range(4): A(f"v_mov_b32 v{28+r}, 0")
        A("s_waitcnt vmcnt(1)")
        A("v_pk_max_u16 v55, v20, v21"); A("v_pk_max_u16 v53, v22, v23"); A("v_pk_max_u16 v55, v55, v53")
        A("s_waitcnt vmcnt(0)")
        A("v_smfmac_f32_16x16x64_bf16 v[28:31], v[68:71], v[20:27], v4")
        for r in range(24, 28): A(f"v_pk_max_u16 v55, v55, v{r}")
        A("v_pk_max_u16 v55, v55, v55 op_sel:[1,0] op_sel_hi:[0,1]")
        A("v_cmp_eq_u32 vcc, -1, v55")
        A(f"s_cbranch_vccnz {name}_re")
        post.append((f"{name}_re", f"{name}_rnd"))
    post = []; post2 = []
    def lstore(name, text):
        A(f"s_cbranch_scc0 {name}_g")
        A(text)
        A.label(f"{name}_j")
        post2.append((name, text))
    thr = [None]
    def throttle():
        if thr[0] is not None:
            if thr[0] >= W: A(f"s_waitcnt vmcnt({W-1})")
            thr[0] += 1
    def issueK(base, so):
        for j in range(4):
            r = base + 4 * j
            throttle()
            A(f"buffer_load_dwordx4 v[{r}:{r+3}], v2, s[28:31], s{so} offen offset:{1024*j} {kf}")
    def issueV(base, so):
        for j in range(4):
            r = base + 16 + 4 * j
            throttle()
            A(f"buffer_load_dwordx4 v[{r}:{r+3}], v3, s[32:35], s{so} offen offset:{1024*j} {vf}")
    def common_setup():
        A("s_mov_b32 s60, 0x22222222"); A("s_mov_b32 s61, 0x22222222")
        A("s_mov_b32 s62, 0x44444444"); A("s_mov_b32 s63, 0x44444444")
        A("s_mov_b32 s64, 0x88888888"); A("s_mov_b32 s65, 0x88888888")
        A("s_mov_b32 s74, 0x3db504f3"); A("s_mov_b32 s75, 0x3fb8aa3b")
        A(f"s_mov_b32 s72, {SPIN}")
        A("v_mov_b32 v44, 0xffff"); A("v_mov_b32 v45, 0xffff0000")
        A("v_mov_b32 v4, 0"); A("v_mov_b32 v5, 0")
        A("v_cmp_eq_u32 vcc, 0, v47")
        A("v_cndmask_b32 v4, v4, v44, vcc")
        A("v_cndmask_b32 v4, v4, v45, s[60:61]")
        A("v_cndmask_b32 v5, v5, v44, s[62:63]")
        A("v_cndmask_b32 v5, v5, v45, s[64:65]")
        for r in range(10, 18): A(f"v_mov_b32 v{r}, 0")
        A("v_mov_b32 v18, 0xff7fffff"); A("v_mov_b32 v19, 0")
    def k32masks(b):
        A("v_bfe_u32 v51, v1, 2, 1"); A("v_cmp_eq_u32 vcc, 0, v51")
        A(f"v_cndmask_b32 v{b}, 0, v4, vcc"); A(f"v_cndmask_b32 v{b+1}, 0, v5, vcc")
        A(f"v_cndmask_b32 v{b+2}, v4, 0, vcc"); A(f"v_cndmask_b32 v{b+3}, v5, 0, vcc")
    def tags():
        A("s_add_u32 s52, s52, 0x9e3779b9")
        A("s_and_b32 s53, s52, 0xff"); A("s_bfe_u32 s54, s52, 0x80008"); A("s_bfe_u32 s55, s52, 0x80010"); A("s_lshr_b32 s56, s52, 24")
        A("s_and_b32 s57, s52, 0xffff"); A("s_lshr_b32 s58, s52, 16")
    def sum4x4():
        A("v_pk_add_f32 v[20:21], v[20:21], v[24:25]"); A("v_pk_add_f32 v[22:23], v[22:23], v[26:27]")
        A("v_pk_add_f32 v[28:29], v[28:29], v[32:33]"); A("v_pk_add_f32 v[30:31], v[30:31], v[34:35]")
        A("v_pk_add_f32 v[20:21], v[20:21], v[28:29]"); A("v_pk_add_f32 v[22:23], v[22:23], v[30:31]")
        rr4(20, 21, 22, 23)
    def sum2x4():
        A("v_pk_add_f32 v[20:21], v[20:21], v[24:25]"); A("v_pk_add_f32 v[22:23], v[22:23], v[26:27]")
        rr4(20, 21, 22, 23)
    def tr():
        A("s_memrealtime s[96:97]"); A("s_mov_b32 m0, s98"); A("s_waitcnt lgkmcnt(0)"); A("v_writelane_b32 v244, s96, m0"); A("s_add_u32 s98, s98, 1")
    uid = [0]
    def ld4(base, va, srd_, so, fl):
        if rot:
            A(f"s_add_u32 s9, s{so}, s8"); A("s_and_b32 s9, s9, 0xffffff"); so = 9
        for j in range(4):
            r = base + 4 * j
            A(f"buffer_load_dwordx4 v[{r}:{r+3}], v{va}, s[{srd_}:{srd_+3}], s{so} offen offset:{1024*j} {fl}")
    def draw():
        A("s_mov_b64 exec, 1")
        A("ds_add_rtn_u32 v54, v52, v53")
        A("s_mov_b64 exec, -1")
    def qk(KB):
        for j in range(4):
            A(f"v_mfma_f32_16x16x32_bf16 v[{20+4*j}:{23+4*j}], v[{KB+4*j}:{KB+4*j+3}], v[6:9], 0")
    def extract():
        D = lambda j, r: 20 + 4 * (j & 3) + r
        for rho in range(4): A(f"v_cndmask_b32 v{44+rho}, v{D(rho,0)}, v{D(rho+1,1)}, s[60:61]")
        for rho in range(4): A(f"v_cndmask_b32 v{44+rho}, v{44+rho}, v{D(rho+2,2)}, s[62:63]")
        for rho in (1, 2, 3, 0): A(f"v_cndmask_b32 v{44+rho}, v{44+rho}, v{D(rho+3,3)}, s[64:65]")
        for rho in range(1, 4):
            qp = ",".join(str((q - rho) & 3) for q in range(4))
            dpp("v_add_f32", 44, 44 + rho, 44, f"quad_perm:[{qp}]")
        rbf(44, 44)
        A("v_mul_f32 v44, s74, v44")
        rbf(44, 44)
        A("v_mul_f32 v44, s75, v44")
    def keep(off):
        A(f"ds_write_b32 v48, v44 offset:{off}")
        A("v_max_f32 v18, v18, v44")
    def pfrag(z):
        A(f"v_sub_f32 v44, v{z}, v18")
        A("v_exp_f32 v44, v44")
        A("v_cvt_pk_bf16_f32 v45, v44, v44")
        A("v_add_f32 v19, v19, v44")
        for j in range(4):
            dpp("v_and_b32", 36 + 2 * j, 45, 4, f"quad_perm:[{j},{j},{j},{j}]")
            dpp("v_and_b32", 37 + 2 * j, 45, 5, f"quad_perm:[{j},{j},{j},{j}]")
    def pv(VB):
        for j in range(4):
            A(f"v_mfma_f32_16x16x16_bf16 v[10:13], v[{36+2*j}:{37+2*j}], v[{VB+4*j}:{VB+4*j+1}], v[10:13]")
            A(f"v_mfma_f32_16x16x16_bf16 v[14:17], v[{36+2*j}:{37+2*j}], v[{VB+4*j+2}:{VB+4*j+3}], v[14:17]")
    def unitK(base, so):
        ld4(base, 2, 28, so, kf); ld4(base + 16, 244, 28, so, kf)

    A("s_cmp_ge_u32 s2, 256")
    A("s_cbranch_scc1 L_exit")
    A("s_load_dwordx16 s[4:19], s[0:1], 0")
    A("s_load_dwordx8 s[20:27], s[0:1], 64")
    stamp(0)
    if XT: A(f"s_xor_b32 s2, s2, {XT}")
    A("v_and_b32 v1, 63, v0")
    A("v_lshrrev_b32 v44, 6, v0")
    A("v_lshlrev_b32 v3, 4, v1")
    A("v_readfirstlane_b32 s3, v44")
    A("v_bfe_u32 v45, v1, 2, 2")
    A("v_lshrrev_b32 v46, 4, v1")
    A("v_and_b32 v47, 3, v1")
    A("v_lshlrev_b32 v2, 8, v45")
    A("v_lshl_add_u32 v2, v46, 6, v2")
    A("v_lshl_add_u32 v2, v47, 4, v2")
    A("v_add_u32 v244, 4096, v2")
    A("s_lshr_b32 s77, s2, 3"); A("s_and_b32 s76, s77, 7"); A("s_and_b32 s73, s2, 7"); A("s_lshr_b32 s78, s2, 6")
    A("s_lshl3_add_u32 s79, s78, s73")
    A("s_cmp_ge_u32 s76, 4"); A(f"s_cselect_b32 s67, {D0-D1}, 0"); A(f"s_sub_u32 s67, {D0}, s67")
    assert S0 - offT - offQ - LA >= 2 * (8 + 7 * NXT) and S0 - offQ - LA >= 2 * (8 + 7 * NX) and offT + offQ <= 64
    assert (S0 - LA) % 2 == 0 and offT % 2 == 0 and offQ % 2 == 0 and S0 * 256 <= L_END - L_S
    A(f"s_mul_i32 s59, s78, {8*S0-offT-2*offQ}"); A(f"s_mul_i32 s71, s73, {S0}"); A("s_add_u32 s59, s59, s71")
    if spread: A("s_mul_i32 s71, s78, s67"); A("s_add_u32 s59, s59, s71")
    A("s_cmp_ge_u32 s77, 28"); A(f"s_cselect_b32 s68, {offT-offF+offQ}, {offT+offQ}")
    A("s_cmp_eq_u32 s73, 0"); A("s_cselect_b32 s71, 0, s68"); A("s_cselect_b32 s70, s68, 0"); A("s_sub_u32 s59, s59, s71")
    A(f"s_cmp_gt_u32 s73, {X2}"); A(f"s_cselect_b32 s71, {offQ}, 0"); A("s_sub_u32 s59, s59, s71")
    A(f"s_cmp_eq_u32 s73, {X2}"); A(f"s_cselect_b32 s70, {offQ}, s70"); A("s_cselect_b32 s65, 1, 0")
    A(f"s_sub_u32 s70, {S0-LA}, s70")
    A("s_lshl_b32 s59, s59, 12"); A("s_lshl_b32 s70, s70, 12")
    if contig:
        A("s_cmp_eq_u32 s73, 0"); A(f"s_cselect_b32 s71, {NXT}, {NX}"); A("s_max_u32 s66, s3, 1"); A("s_sub_u32 s66, s66, 1"); A("s_mul_i32 s66, s66, s71"); A("s_add_u32 s66, s66, s3")
        A("s_lshl_b32 s66, s66, 13"); A("s_add_u32 s66, s66, s59")
    else:
        A("s_lshl_b32 s66, s3, 13"); A("s_add_u32 s66, s66, s59")
    XS = 1 if contig else 7
    A("s_lshl_b32 s71, s76, 24")
    A(f"s_mov_b32 s30, {OOB}"); A("s_mov_b32 s31, 0x20000"); A(f"s_mov_b32 s34, {OOB}"); A("s_mov_b32 s35, 0x20000")
    A(f"s_cmp_lg_u32 s70, {(S0-LA)*4096}")
    A("s_cbranch_scc1 L_qprod")
    A("s_waitcnt lgkmcnt(0)")
    A("s_add_u32 s28, s6, s71"); A("s_addc_u32 s29, s7, 0")
    A("s_add_u32 s32, s8, s71"); A("s_addc_u32 s33, s9, 0")
    if rot: A(f"s_mul_i32 s8, s76, {rot*4096}")
    A("s_load_dword s52, s[26:27], 0")
    A("s_cmp_eq_u32 s3, 0")
    A("s_cbranch_scc1 L_w0")
    if wpf:
        A(f"s_cmp_gt_u32 s73, {X2}"); A("s_subb_u32 s73, s73, 1"); A("s_mul_i32 s68, s77, 6"); A("s_add_u32 s73, s73, s68")
        A("s_mul_i32 s73, s73, 7"); A("s_add_u32 s73, s73, s3"); A("s_sub_u32 s73, s73, 1"); A("s_lshl_b32 s73, s73, 10")
        A("v_add_u32 v48, s73, v3")
        for k in range(1, 4): A(f"v_add_u32 v{48+k}, {k*1344*1024}, v48")
        n = 0
        for (lo, size) in ((12, 4 << 20), (16, 512 * 3584), (18, 512 * 3584), (20, 1792 * 1024)):
            d = 40 + 4 * (n & 1); n += 1
            srd(d, lo, lo + 1, size)
            for k in range(4 if lo == 12 else 2):
                A(f"buffer_load_dwordx4 v[{RA}:{RA+3}], v{48+k}, s[{d}:{d+3}], 0 offen")
    A.label("L_ring")
    unitK(RA, 66)
    A(f"s_add_u32 s68, s66, {XS*8192}")
    for k in range(NX):
        if k == NXT:
            A("s_and_b32 s71, s2, 7"); A("s_cbranch_scc0 L_ringe")
        unitK(RX + 32 * k, 68)
        if k < NX - 1: A(f"s_add_u32 s68, s68, {XS*8192}")
    A.label("L_ringe")
    thr[0] = None
    srd(48, 4, 5, 1024)
    srd(36, 26, 27, WS_END)
    common_setup()
    A("s_waitcnt lgkmcnt(0)")
    tags()
    stamp(1)
    A("s_barrier")
    A("s_branch L_qj")
    A.label("L_qprod")
    A("v_lshrrev_b32 v44, 3, v1"); A("v_and_b32 v45, 7, v1")
    A("v_lshlrev_b32 v50, 16, v44")
    A("v_lshl_add_u32 v50, v45, 4, v50")
    A("v_lshlrev_b32 v51, 4, v44")
    A("s_lshl1_add_u32 s69, s78, s65"); A("s_lshl3_add_u32 s69, s76, s69")
    A("s_lshl_b32 s68, s69, 7"); A("s_lshl_b32 s73, s3, 19"); A("s_add_u32 s68, s68, s73")
    A("s_lshl_b32 s73, s3, 7")
    A("s_mov_b32 s50, 1024"); A("s_mov_b32 s51, 0x20000"); A(f"s_mov_b32 s42, {4<<20}"); A("s_mov_b32 s43, 0x20000")
    for i in range(1, 8): A(f"v_add_u32 v{35+i}, {8192*i}, v50")
    A("s_waitcnt lgkmcnt(0)")
    A("s_mov_b32 s48, s4"); A("s_mov_b32 s49, s5"); A("s_mov_b32 s40, s10"); A("s_mov_b32 s41, s11")
    A("buffer_load_dwordx4 v[52:55], v3, s[48:51], 0 offen")
    A("buffer_load_dwordx4 v[32:35], v51, s[48:51], s73 offen")
    for i in range(8):
        va = 50 if i == 0 else 35 + i
        A(f"buffer_load_dwordx4 v[{RA+4*i}:{RA+4*i+3}], v{va}, s[40:43], s68 offen {wf}")
    A("s_load_dword s52, s[26:27], 0")
    A("s_add_u32 s28, s6, s71"); A("s_addc_u32 s29, s7, 0")
    A("s_add_u32 s32, s8, s71"); A("s_addc_u32 s33, s9, 0")
    if rot: A(f"s_mul_i32 s8, s76, {rot*4096}")
    A("s_cmp_lg_u32 s3, 0"); A("s_cbranch_scc1 L_nz")
    A("s_cmp_lg_u32 s65, 0"); A("s_cbranch_scc1 L_nz")
    A(f"s_mul_i32 s73, s77, {cstride}"); A(f"s_add_u32 s73, s73, {CBUF}")
    A("v_mov_b32 v49, s73"); A("v_mov_b32 v48, 0")
    A("s_mov_b64 exec, 1")
    A("global_store_dword v49, v48, s[26:27] sc1")
    A("s_mov_b64 exec, -1")
    A.label("L_nz")
    A("v_lshrrev_b32 v49, 5, v1"); A("v_and_b32 v44, 1, v46")
    A("v_lshlrev_b32 v48, 8, v49"); A("v_lshl_add_u32 v48, v45, 5, v48"); A("v_lshl_add_u32 v48, v44, 4, v48")
    A("s_lshl_b32 s73, s3, 9"); A("v_add_u32 v48, s73, v48")
    common_setup()
    k32masks(6)
    if qprof: A("s_memrealtime s[90:91]")
    A("s_waitcnt vmcnt(8)")
    if qprof: A("s_memrealtime s[92:93]")
    for k in range(4):
        A(f"v_lshlrev_b32 v{36+2*k}, 16, v{52+k}")
        A(f"v_and_b32 v{37+2*k}, 0xffff0000, v{52+k}")
    for k in range(4):
        A(f"v_lshlrev_b32 v{20+2*k}, 16, v{32+k}")
        A(f"v_and_b32 v{21+2*k}, 0xffff0000, v{32+k}")
    ln_stats(list(range(36, 44)), 44, 45, 51)
    for k in range(8): A(f"v_sub_f32 v{20+k}, v{20+k}, v44")
    for k in range(8): rbf(20 + k, 20 + k)
    for k in range(8): A(f"v_mul_f32 v{20+k}, v{20+k}, v45")
    for k in range(8): A(f"v_cvt_pk_bf16_f32 v{20+k}, v{20+k}, v{20+k}")
    for i in range(8):
        for r in range(4): A(f"v_and_b32 v{RX+4*i+r}, v{20+i}, v{6+r}")
    A("s_waitcnt vmcnt(0)")
    if qprof: A("s_memrealtime s[98:99]")
    for i in range(8):
        c = "0" if i == 0 else "v[28:31]"
        A(f"v_mfma_f32_16x16x32_bf16 v[28:31], v[{RX+4*i}:{RX+4*i+3}], v[{RA+4*i}:{RA+4*i+3}], {c}")
    A("s_mov_b32 exec_lo, 0x00ff00ff"); A("s_mov_b32 exec_hi, 0xff00ff00")
    A(f"ds_write_b128 v48, v[28:31] offset:{L_RED}")
    A("s_mov_b64 exec, -1")
    A("s_waitcnt lgkmcnt(0)")
    A("s_barrier")
    A("s_cmp_lg_u32 s3, 0")
    A("s_cbranch_scc1 L_ringb" if qhold else "s_cbranch_scc1 L_ring")
    A("s_setprio 3")
    A("v_and_b32 v50, 15, v1"); A("v_lshlrev_b32 v49, 10, v46"); A("v_lshl_add_u32 v49, v50, 4, v49")
    for k in range(4): A(f"ds_read_b128 v[{20+4*k}:{23+4*k}], v49 offset:{L_RED+256*k}")
    srd(36, 26, 27, WS_END)
    tags()
    A("v_and_b32 v45, 1, v46"); A("v_lshlrev_b32 v45, 1, v45"); A("v_lshrrev_b32 v44, 1, v46"); A("v_or_b32 v45, v45, v44")
    A("v_lshl_add_u32 v45, v50, 2, v45"); A("v_lshlrev_b32 v45, 2, v45")
    A("v_mov_b32 v49, s57"); A("v_mov_b32 v51, s58")
    A("v_cmp_eq_u32 vcc, 0, v44")
    A("v_cndmask_b32 v49, v51, v49, vcc")
    A("s_lshl_b32 s71, s69, 8"); A(f"s_add_u32 s71, s71, {QBUF}")
    A("s_waitcnt lgkmcnt(0)")
    sum4x4()
    rbf(20, 20)
    A("v_or_b32 v20, v20, v49")
    A("buffer_store_dword v20, v45, s[36:39], s71 offen sc1")
    stamp(2)
    if qhold: A("s_barrier")
    if qprof: A("s_waitcnt vmcnt(0)"); A("s_memrealtime s[96:97]")
    A("s_branch L_w0b")
    if qhold:
        A.label("L_ringb")
        A("s_barrier")
        A("s_branch L_ring")
    A.label("L_w0")
    A("s_setprio 3")
    srd(48, 4, 5, 1024)
    srd(36, 26, 27, WS_END)
    common_setup()
    A("s_waitcnt lgkmcnt(0)")
    tags()
    A.label("L_w0b")
    A("s_and_b32 s71, s2, 7"); A(f"s_cselect_b32 s71, {8+7*NX}, {8+7*NXT}"); A("s_lshl_b32 s71, s71, 13")
    A(f"v_mov_b32 v52, {L_TK}"); A("v_mov_b32 v48, s71")
    A("ds_write_b32 v52, v48")
    for r in range(4): A(f"v_mov_b32 v{24+r}, -1")
    A("s_lshl_b32 s71, s76, 15"); A("s_lshl_b32 s73, s79, 10"); A("s_add_u32 s71, s71, s73"); A(f"s_add_u32 s71, s71, {OBUF}")
    A("buffer_store_dwordx4 v[24:27], v3, s[36:39], s71 offen sc1")
    A(f"ds_write_b128 v3, v[24:27] offset:{L_TB}")
    A(f"ds_write_b128 v3, v[24:27] offset:{L_TB+1024}")
    A("s_add_u32 s73, s59, s70")
    A("v_lshlrev_b32 v28, 12, v1"); A("v_add_u32 v28, s73, v28"); A("v_lshlrev_b32 v29, 2, v1")
    A("v_cmp_eq_u32 vcc, 0, v1"); A("v_addc_co_u32 v28, vcc, 0, v28, vcc")
    A(f"s_mov_b64 exec, {(1 << LA) - 1}")
    A(f"ds_write_b32 v29, v28 offset:{L_TB}")
    A("s_mov_b64 exec, -1")
    A("v_lshlrev_b32 v44, 1, v2")
    A("s_lshl_b32 s71, s76, 11"); A(f"s_add_u32 s71, s71, {QBUF}")
    A("s_add_u32 s14, s26, s71"); A("s_addc_u32 s15, s27, 0")
    A.label("L_qhint")
    for k in range(8): A(f"s_load_dword s{40+k}, s[14:15], {256*k} glc")
    A("s_waitcnt lgkmcnt(0)")
    for k in range(8): A(f"s_xor_b32 s{40+k}, s{40+k}, s57")
    for k in range(1, 8): A(f"s_or_b32 s40, s40, s{40+k}")
    A("s_and_b32 s40, s40, 0xffff")
    A("s_cbranch_scc0 L_qpoll")
    spin("L_qhint", qslp)
    A.label("L_qpoll")
    if qprof: A("s_memrealtime s[94:95]")
    A("buffer_load_dwordx4 v[20:23], v44, s[36:39], s71 offen sc1")
    A("buffer_load_dwordx4 v[24:27], v44, s[36:39], s71 offen offset:16 sc1")
    A("s_mov_b32 s73, 0x07060302")
    A("s_waitcnt vmcnt(0)")
    for e in range(8): A(f"v_xor_b32 v{20+e}, s{57+(e&1)}, v{20+e}")
    A("v_or3_b32 v45, v20, v21, v22"); A("v_or3_b32 v45, v45, v23, v24"); A("v_or3_b32 v45, v45, v25, v26"); A("v_or_b32 v45, v45, v27")
    A("v_and_b32 v45, 0xffff, v45")
    A("v_cmp_ne_u32 vcc, 0, v45")
    A("s_cbranch_vccz L_q_ok")
    spin("L_qpoll")
    A.label("L_q_ok")
    for k in range(4): A(f"v_perm_b32 v{6+k}, v{21+2*k}, v{20+2*k}, s73")
    A(f"ds_write_b128 v3, v[6:9] offset:{L_QF}")
    A("s_waitcnt lgkmcnt(0)")
    stamp(1)
    A("s_barrier")
    unitK(RA, 66)
    A("s_setprio 0")
    A.label("L_qj")
    A(f"ds_read_b128 v[6:9], v3 offset:{L_QF}")
    A(f"v_mov_b32 v52, {L_TK}"); A("v_mov_b32 v53, 8192")
    A("s_mov_b32 s69, 3"); A("s_mov_b32 s11, 0"); A("s_lshl_b32 s10, s70, 1")
    A("v_add_u32 v245, 4096, v3")
    A("s_lshr_b32 s71, s59, 4"); A(f"s_sub_u32 s71, {L_S}, s71"); A("v_lshl_add_u32 v246, v1, 2, s71")
    if trace: A("s_mov_b32 s98, 0"); A("v_mov_b32 v244, 0")
    A(f"s_mul_i32 s58, s77, {cstride}"); A(f"s_add_u32 s58, s58, {CBUF}")
    if spread:
        A(f"s_add_u32 s57, s67, {8*S0-offT-2*offQ}"); A("s_add_u32 s71, s78, 1"); A("s_mul_i32 s57, s57, s71")
        A("s_cmp_eq_u32 s78, 3"); A("s_cselect_b32 s57, 4096, s57"); A("s_sub_u32 s57, s57, s67"); A("s_lshl_b32 s57, s57, 12")
    else:
        A("s_sub_u32 s57, 4, s78"); A("s_mul_i32 s57, s57, s67"); A("s_sub_u32 s57, 4096, s57"); A("s_lshl_b32 s57, s57, 12")
    if ew < 8:
        A(f"s_sub_u32 s101, s67, {ewx}"); A("s_lshl_b32 s101, s101, 12"); A("s_add_u32 s101, s101, s57")
        A(f"s_cmp_ge_u32 s3, {ew}"); A("s_cselect_b32 s101, s101, -1")
    stamp(3)
    A.label("L_k")
    draw()
    A("s_lshr_b32 s73, s66, 4"); A("v_add_u32 v48, s73, v246")
    A("s_waitcnt vmcnt(4) lgkmcnt(0)")
    A("v_readfirstlane_b32 s71, v54")
    qk(RA)
    A("s_add_u32 s66, s71, s59")
    A("s_cmp_ge_u32 s71, s70")
    A("s_cbranch_scc1 L_k2v0")
    ld4(RA, 2, 28, 66, kf)
    A.label("L_k0r")
    extract(); keep(0)
    A("s_waitcnt vmcnt(4)")
    qk(RA + 16)
    A("s_cmp_lg_u32 s11, 0")
    A("s_cbranch_scc1 L_k2v1")
    ld4(RA + 16, 244, 28, 66, kf)
    A.label("L_k1r")
    extract(); keep(256)
    A("s_cmp_eq_u32 s69, 3")
    A("s_cbranch_scc1 L_first")
    A.label("L_kn")
    A("s_cmp_eq_u32 s11, 0")
    A("s_cbranch_scc1 L_k")
    quad_all(18, "v_max_f32")
    rows_all(18, 49, "v_max_f32")
    A(f"ds_write_b32 v{TC+2}, v18 offset:{L_MX2}")
    if wsplit:
        A("s_cmp_lg_u32 s69, 0")
        A("s_cbranch_scc1 L_setup2")
        A.label("L_s2r")
    A(f"v_and_b32 v49, 0x60, v{TC+2}")
    A("s_waitcnt lgkmcnt(0)")
    A("s_barrier")
    A(f"ds_read_b128 v[20:23], v49 offset:{L_MX2}")
    A(f"ds_read_b128 v[24:27], v49 offset:{L_MX2+16}")
    A("s_waitcnt lgkmcnt(0)")
    A("v_max3_f32 v18, v20, v21, v22"); A("v_max3_f32 v18, v18, v23, v24"); A("v_max3_f32 v18, v18, v25, v26"); A("v_max_f32 v18, v18, v27")
    if warm:
        A(f"s_cmp_lg_u32 s3, {wwave}")
        A("s_cbranch_scc1 L_v")
        A("s_mov_b32 s11, 4")
        A("s_mov_b64 exec, 0")
        A("s_branch L_wp0")
        A.label("L_wret")
        A("s_cmp_lg_u32 s11, 4")
        A("s_cbranch_scc1 L_exit")
        A("s_mov_b32 s11, 1")
        A("s_mov_b64 exec, -1")
    A.label("L_v")
    draw()
    A("s_lshr_b32 s73, s66, 4"); A("v_add_u32 v48, s73, v246")
    A("ds_read2_b32 v[20:21], v48 offset0:0 offset1:64")
    A("s_waitcnt lgkmcnt(0)")
    A("v_readfirstlane_b32 s71, v54")
    pfrag(20)
    A("s_waitcnt vmcnt(4)")
    pv(RA)
    A("s_add_u32 s66, s71, s59"); A("s_sub_u32 s66, s66, s70")
    A("s_cmp_ge_u32 s71, s10")
    A("s_cbranch_scc1 L_v2c")
    ld4(RA, 3, 32, 66, vf)
    pfrag(21)
    A("s_waitcnt vmcnt(4)")
    pv(RA + 16)
    ld4(RA + 16, 245, 32, 66, vf)
    A("s_branch L_v")
    A.label("L_k2v0")
    A("s_sub_u32 s66, s66, s70"); A("s_mov_b32 s11, 1")
    ld4(RA, 3, 32, 66, vf)
    A("s_branch L_k0r")
    A.label("L_k2v1")
    ld4(RA + 16, 245, 32, 66, vf)
    A("s_branch L_k1r")
    A.label("L_v2c")
    A("s_mov_b32 s11, 2")
    A("s_branch L_dyn")
    A.label("L_vc0")
    A("s_mov_b32 s11, 3")
    ld4(RA, 2, 28, 66, kf)
    pfrag(21)
    A("s_waitcnt vmcnt(4)")
    pv(RA + 16)
    ld4(RA + 16, 3, 32, 66, vf)
    A("s_cmp_ge_u32 s66, s30")
    A("s_cbranch_scc1 L_done")
    A.label("L_loop")
    draw()
    A("s_waitcnt vmcnt(4) lgkmcnt(0)")
    A("v_readfirstlane_b32 s71, v54")
    qk(RA)
    A("s_branch L_dyn")
    A.label("L_go")
    ld4(RA, 2, 28, 66, kf)
    A.label("L_gox")
    extract()
    A("v_cmp_gt_f32 vcc, v44, v18")
    A("s_cbranch_vccz L_nors")
    A("v_max_f32 v45, v44, v18")
    quad_all(45, "v_max_f32")
    rows_all(45, 46, "v_max_f32")
    A("v_sub_f32 v46, v18, v45")
    A("v_exp_f32 v46, v46")
    A("v_mov_b32 v18, v45")
    A("v_mul_f32 v19, v19, v46")
    for h in range(4): A(f"v_mov_b32_dpp v47, v46 row_newbcast:{4*h} row_mask:{hex(1<<h)} bank_mask:0xf")
    for r in range(10, 18): A(f"v_mul_f32 v{r}, v{r}, v47")
    A.label("L_nors")
    pfrag(44)
    A("s_cmp_ge_u32 s66, s30")
    A("s_cbranch_scc1 L_last")
    A("s_waitcnt vmcnt(4)")
    pv(RA + 16)
    ld4(RA + 16, 3, 32, 66, vf)
    A("s_branch L_loop")
    A.label("L_first")
    A("s_mov_b32 s69, 0")
    A("s_cmp_eq_u32 s3, 0")
    A("s_cbranch_scc1 L_setup")
    A("s_waitcnt vmcnt(8)")
    for k in range(NX):
        if k == NXT:
            A("s_and_b32 s71, s2, 7"); A("s_cbranch_scc0 L_setup")
        for hf in range(2):
            qk(RX + 32 * k + 16 * hf); extract(); keep((XS + XS * k) * 512 + 256 * hf)
    A.label("L_setup")
    A("v_lshrrev_b32 v46, 4, v1"); A("v_and_b32 v47, 3, v1"); A("v_bfe_u32 v45, v1, 2, 2"); A("v_and_b32 v50, 15, v1")
    A("v_and_b32 v48, 1, v46"); A("v_lshlrev_b32 v48, 1, v48"); A("v_lshrrev_b32 v49, 1, v46"); A("v_or_b32 v48, v48, v49")
    A("s_lshl_b32 s71, s3, 11"); A(f"v_lshlrev_b32 v{TC}, 5, v1"); A(f"v_add_u32 v{TC}, s71, v{TC}")
    A("s_lshl_b32 s71, s3, 3"); A(f"v_lshlrev_b32 v{TC+1}, 6, v45"); A(f"v_add_u32 v{TC+1}, s71, v{TC+1}")
    A(f"v_lshrrev_b32 v{TC+2}, 1, v{TC+1}")
    A("s_lshl_b32 s71, s3, 8"); A(f"v_lshlrev_b32 v{TC+3}, 12, v46"); A(f"v_lshl_add_u32 v{TC+3}, v50, 4, v{TC+3}"); A(f"v_add_u32 v{TC+3}, s71, v{TC+3}")
    A("s_lshr_b32 s71, s3, 1"); A("s_lshl_b32 s73, s71, 6"); A(f"v_lshlrev_b32 v{TC+4}, 4, v46"); A(f"v_add_u32 v{TC+4}, s73, v{TC+4}")
    A("s_lshl_b32 s73, s71, 5"); A(f"v_mov_b32 v{TC+5}, s73")
    A(f"v_lshl_add_u32 v{TC+6}, v50, 2, v48"); A(f"v_lshlrev_b32 v{TC+6}, 1, v{TC+6}")
    A("s_lshl_b32 s0, s76, 15"); A("s_lshl_b32 s73, s79, 10"); A("s_add_u32 s0, s0, s73")
    A("s_lshl_b32 s73, s3, 7"); A("s_add_u32 s0, s0, s73"); A(f"s_add_u32 s0, s0, {OBUF}")
    A("s_lshr_b32 s73, s3, 1"); A("s_lshl2_add_u32 s1, s76, s73"); A("s_lshl_b32 s1, s1, 5"); A("s_add_u32 s1, s1, s79")
    A(f"s_lshl_b32 s1, s1, {mlsh}"); A(f"s_add_u32 s1, s1, {MLBUF}")
    A(f"v_lshlrev_b32 v{TC+10}, 1, v1")
    if opre is not None:
        A(f"buffer_load_dword v44, v{TC+10}, s[36:39], s0 offen {opre}")
        A("s_mov_b64 exec, 1")
        A(f"buffer_load_dword v45, v3, s[36:39], s1 offen {opre}")
        A("s_mov_b64 exec, -1")
        A("s_waitcnt vmcnt(0)")
    if tlbpf:
        A("s_cmp_lg_u32 s3, 0"); A("s_cbranch_scc1 L_notlb")
        A(f"v_lshlrev_b32 v44, {tlbpf}, v1")
        A(f"s_mov_b64 exec, {(1 << ((1 << (20 - tlbpf)) + 1)) - 1}")
        A("buffer_load_dword v245, v44, s[28:31], s57 offen nt")
        A("buffer_load_dword v246, v44, s[32:35], s57 offen nt")
        A("s_mov_b64 exec, -1")
        A.label("L_notlb")
    A("s_and_b32 s71, s2, 7")
    A("s_cbranch_scc1 L_kn")
    A("s_mov_b32 s69, 2")
    A("s_getreg_b32 s78, hwreg(HW_REG_XCC_ID, 0, 4)"); A("s_lshl_b32 s78, s78, 8")
    A("s_cmp_lg_u32 s3, 0"); A("s_cbranch_scc1 L_nox")
    for r in range(4): A(f"v_mov_b32 v{24+r}, -1")
    A("s_cmp_ge_u32 s77, 28"); A("s_cselect_b32 s71, 0, -1")
    for r in range(4): A(f"v_mov_b32 v{28+r}, s71")
    A("s_lshl_b32 s71, s77, 11"); A(f"s_add_u32 s71, s71, {YBUF}")
    A("buffer_store_dwordx4 v[28:31], v3, s[36:39], s71 offen sc1")
    A("buffer_store_dwordx4 v[28:31], v3, s[36:39], s71 offen offset:1024 sc1")
    A("s_lshl_b32 s71, s77, 9"); A(f"s_add_u32 s71, s71, {HBUF}")
    A("s_mov_b32 exec_hi, 0")
    A("buffer_store_dwordx4 v[24:27], v3, s[36:39], s71 offen sc1")
    A("s_mov_b32 exec_hi, -1")
    A("s_waitcnt vmcnt(0)")
    A("s_or_b32 s71, s78, s53")
    A("v_mov_b32 v20, s71"); A("v_mov_b32 v21, s54"); A("v_mov_b32 v22, s55"); A("v_mov_b32 v23, s56")

    A("s_lshl_b32 s71, s77, 4"); A(f"s_add_u32 s71, s71, {XBUF}")
    A("s_mov_b64 exec, 1")
    A("buffer_store_dwordx4 v[20:23], v3, s[36:39], s71 offen sc1")
    A("s_mov_b64 exec, -1")
    A.label("L_nox")
    srd(40, 12, 13, 4 << 20)
    A("s_lshr_b32 s68, s77, 1")
    A("s_lshl_b32 s71, s68, 18"); A("s_lshr_b32 s73, s3, 1"); A("s_lshl_b32 s73, s73, 16"); A("s_add_u32 s71, s71, s73")
    A("s_and_b32 s73, s3, 1"); A("s_lshl_b32 s73, s73, 10"); A("s_add_u32 s71, s71, s73")
    A("s_and_b32 s73, s77, 1"); A("s_lshl_b32 s73, s73, 9"); A("s_add_u32 s71, s71, s73")
    A("v_and_b32 v45, 1, v46"); A("v_lshlrev_b32 v45, 15, v45"); A("v_lshl_add_u32 v45, v49, 13, v45")
    A("v_lshlrev_b32 v44, 4, v50"); A("v_add_u32 v45, v45, v44"); A("v_lshl_add_u32 v44, v48, 11, v44")
    for jh in range(2):
        for half in range(2):
            for jl in range(2):
                for c2 in range(2):
                    r = WO + 8 * (4 * c2 + 2 * jh + jl) + 4 * half
                    A(f"buffer_load_dwordx4 v[{r}:{r+3}], v45, s[40:43], s71 offen offset:{2048*jl+256*c2} {wf}")
            if (jh, half) != (1, 1): A(f"s_add_u32 s71, s71, {4096 if half == 0 else 16384-4096}")
    A("v_and_b32 v51, 7, v1"); A("v_bfe_u32 v49, v1, 3, 1")
    A(f"v_lshl_add_u32 v{TC+25}, v48, 1, v49"); A(f"v_lshl_add_u32 v{TC+25}, v51, 3, v{TC+25}")
    A("s_lshl_b32 s71, s3, 6"); A(f"v_add_lshl_u32 v{TC+25}, v{TC+25}, s71, 1")
    A(f"buffer_load_ushort v{TC+13}, v{TC+25}, s[48:51], 0 offen")
    A("v_and_b32 v51, 7, v1"); A("v_and_b32 v45, 1, v46"); A("v_lshrrev_b32 v49, 5, v1")
    A(f"v_lshrrev_b32 v{TC+9}, 2, v1")
    A(f"v_lshlrev_b32 v{TC+8}, 11, v{TC+9}"); A(f"v_lshl_add_u32 v{TC+8}, v47, 4, v{TC+8}")
    A(f"v_and_b32 v{TC+7}, 1, v1"); A(f"v_lshl_add_u32 v{TC+9}, v{TC+9}, 1, v{TC+7}"); A(f"v_lshlrev_b32 v{TC+9}, {mlsh}, v{TC+9}")
    A(f"v_lshlrev_b32 v{TC+24}, 4, v45"); A(f"v_lshl_add_u32 v{TC+24}, v50, 5, v{TC+24}")
    A(f"v_lshl_add_u32 v{TC+11}, v49, 9, v{TC+24}"); A("s_lshl_b32 s71, s3, 10"); A(f"v_add_u32 v{TC+11}, s71, v{TC+11}")
    A(f"v_lshrrev_b32 v{TC+24}, 1, v{TC+24}")
    A(f"v_lshrrev_b32 v{TC+14}, 3, v1"); A(f"v_lshlrev_b32 v{TC+14}, 10, v{TC+14}"); A(f"v_lshl_add_u32 v{TC+14}, v51, 4, v{TC+14}")
    A(f"v_lshrrev_b32 v{TC+12}, 3, v1"); A(f"v_lshlrev_b32 v{TC+12}, 10, v{TC+12}"); A(f"v_lshl_add_u32 v{TC+12}, v51, 4, v{TC+12}"); A("s_lshl_b32 s71, s3, 7"); A(f"v_add_u32 v{TC+12}, s71, v{TC+12}")
    A("s_lshl_b32 s71, s3, 4"); A(f"v_lshlrev_b32 v{TC+20}, 3, v49"); A(f"v_add_u32 v{TC+20}, s71, v{TC+20}"); A(f"v_lshlrev_b32 v{TC+21}, 4, v51")
    A("v_bfe_u32 v49, v1, 3, 1")
    A(f"v_lshlrev_b32 v{TC+23}, 11, v46"); A(f"v_lshl_add_u32 v{TC+23}, v49, 8, v{TC+23}"); A(f"v_lshl_add_u32 v{TC+23}, v51, 4, v{TC+23}")
    A("s_lshr_b32 s71, s3, 2"); A("s_lshl_b32 s71, s71, 7"); A(f"v_add_u32 v{TC+23}, s71, v{TC+23}")
    A("s_lshl_b32 s71, s3, 13"); A(f"s_add_u32 s71, s71, {L_WD}"); A(f"v_add_u32 v{TC+26}, s71, v3")
    A("s_mov_b32 m0, s71")
    A(f"v_lshrrev_b32 v{TC+22}, 1, v1"); A(f"v_lshlrev_b32 v{TC+22}, 10, v{TC+22}"); A("v_and_b32 v45, 1, v1"); A(f"v_lshl_add_u32 v{TC+22}, v45, 4, v{TC+22}")
    srd(44, 22, 23, 1024)
    if wsplit:
        A("s_branch L_kn")
        A.label("L_setup2")
        A("v_lshrrev_b32 v46, 4, v1"); A("v_and_b32 v50, 15, v1"); A("v_and_b32 v51, 7, v1")
        A("v_and_b32 v48, 1, v46"); A("v_lshlrev_b32 v48, 1, v48"); A("v_lshrrev_b32 v49, 1, v46"); A("v_or_b32 v48, v48, v49")
        A("v_lshlrev_b32 v44, 4, v50"); A("v_lshl_add_u32 v44, v48, 11, v44"); A("v_bfe_u32 v49, v1, 3, 1")
    A("s_cmp_ge_u32 s77, 28")
    A("s_cbranch_scc1 L_suj")
    A("s_mov_b32 s69, 1")
    A("s_lshl_b32 s71, s3, 6"); A("v_lshl_add_u32 v45, v48, 2, s71")
    A("v_mul_u32_u24 v45, 3584, v45"); A("v_lshl_add_u32 v45, v51, 4, v45"); A("s_lshl_b32 s71, s77, 7"); A("v_add_u32 v45, s71, v45")
    A("v_cmp_eq_u32 vcc, 0, v49")
    A("v_mov_b32 v20, s16"); A("v_mov_b32 v21, s18"); A("v_cndmask_b32 v20, v21, v20, vcc")
    A("v_mov_b32 v21, s17"); A("v_mov_b32 v22, s19"); A("v_cndmask_b32 v21, v22, v21, vcc")
    A("v_add_co_u32 v20, vcc, v20, v45"); A("v_addc_co_u32 v21, vcc, 0, v21, vcc")
    for j in range(4):
        for half in range(2):
            for v in range(2):
                r = WGU + 8 * (4 * v + j) + 4 * half
                A(f"global_load_dwordx4 v[{r}:{r+3}], v[20:21], off offset:{3584*v} {wf}")
            if (j, half) != (3, 1): A(f"v_add_co_u32 v20, vcc, {(2 if half == 0 else 14)*3584}, v20"); A("v_addc_co_u32 v21, vcc, 0, v21, vcc")
    srd(40, 20, 21, 1792 * 1024)
    A("s_lshl_b32 s71, s77, 16"); A("s_lshr_b32 s73, s3, 2"); A("s_lshl_b32 s73, s73, 15"); A("s_add_u32 s71, s71, s73")
    A("s_and_b32 s73, s3, 3"); A("s_lshl_b32 s73, s73, 8"); A("s_add_u32 s71, s71, s73")
    for i in range(8):
        A(f"buffer_load_dwordx4 v44, s[40:43], s71 offen {wf} lds")
        if i < 7: A(f"s_add_u32 s71, s71, {1024 if i % 2 == 0 else 7168}"); A("s_add_u32 m0, m0, 1024")
    A.label("L_suj")
    A("s_lshl_b32 s22, s77, 5"); A(f"s_add_u32 s22, s22, {YBUF}")
    A("s_add_u32 s23, s22, 32768")
    A("s_lshl_b32 s24, s3, 7"); A(f"s_add_u32 s24, s24, {HBUF}"); A("s_add_u32 s25, s24, 8192")
    A("s_lshr_b32 s16, s68, 1"); A("s_lshl_b32 s16, s16, 15"); A("s_and_b32 s71, s68, 1"); A("s_lshl_b32 s71, s71, 9"); A("s_add_u32 s16, s16, s71")
    A("s_lshl_b32 s71, s3, 6"); A("s_add_u32 s16, s16, s71"); A(f"s_add_u32 s16, s16, {OBUF}")
    A("s_lshr_b32 s71, s3, 2"); A("s_lshl1_add_u32 s20, s68, s71"); A(f"s_lshl_b32 s20, s20, {5+mlsh}"); A(f"s_add_u32 s20, s20, {MLBUF}")
    A("s_lshl_b32 s21, s77, 9"); A("s_lshl_b32 s73, s3, 6"); A("s_add_u32 s21, s21, s73"); A(f"s_add_u32 s21, s21, {HBUF}")
    A("s_lshl_b32 s18, s77, 11"); A("s_lshl_b32 s71, s3, 8"); A("s_add_u32 s18, s18, s71"); A(f"s_add_u32 s18, s18, {YBUF}")
    A("s_lshr_b32 s68, s77, 2")
    A("s_branch L_s2r" if wsplit else "s_branch L_kn")

    A.label("L_dyn")
    A("s_sub_u32 s73, s71, s10"); A("s_lshr_b32 s73, s73, 11")
    A("v_mov_b32 v48, s73")
    A.label("L_dynw")
    A(f"ds_read_b32 v49, v48 offset:{L_TB}")
    A("s_waitcnt lgkmcnt(0)")
    A("v_readfirstlane_b32 s66, v49")
    A("s_cmp_lg_u32 s66, -1")
    A("s_cbranch_scc1 L_dyng")
    spin("L_dynw")
    A.label("L_dyng")
    if t1:
        A("s_cmp_eq_u32 s66, 2")
        A("s_cbranch_scc1 L_self")
    if skipoob:
        A("s_cmp_ge_u32 s66, s30")
        A("s_cbranch_scc1 L_dretx")
    if perm is None:
        A("s_bitcmp1_b32 s66, 0")
        A("s_cbranch_scc0 L_dret")
        A("s_and_b32 s66, s66, -2")
        A("s_max_u32 s71, s66, s57"); A("s_sub_u32 s71, s71, s57"); A("s_lshr_b32 s71, s71, 12"); A("s_sub_u32 s71, s67, s71")
    else:
        A("s_and_b32 s71, s66, 0xfff")
        A("s_and_b32 s66, s66, 0xfffff000")
        A("s_bitcmp1_b32 s71, 0")
        A("s_cbranch_scc0 L_dret")
        A("s_lshr_b32 s71, s71, 1"); A("s_sub_u32 s71, s67, s71")
    if tT:
        if tS:
            A(f"s_mul_i32 s14, s73, {sm}"); A("s_lshr_b32 s14, s14, 2"); A("s_add_u32 s14, s14, s71")
            A("s_cmp_lt_u32 s14, s67"); A(f"s_cselect_b32 s15, {tS}, 0")
            A("s_and_b32 s14, s2, 7"); A("s_cmp_eq_u32 s14, 2"); A("s_cselect_b32 s15, 0, s15")
            A("s_cmp_lg_u32 s14, 0"); A(f"s_cselect_b32 s14, s15, {tT}")
        else:
            A("s_and_b32 s14, s2, 7"); A(f"s_cselect_b32 s14, 0, {tT}")
        A("s_cmp_gt_u32 s71, s14")
        A("s_cbranch_scc1 L_dynt")
        A("v_lshl_add_u32 v48, v1, 2, v48")
        A("v_mov_b32 v51, s30")
        A(f"ds_write_b32 v48, v51 offset:{L_TB+4*LA}")
        A("s_branch L_dret")
        A.label("L_dynt")
    A(f"s_cmp_gt_u32 s71, {t4}"); A("s_cselect_b32 s15, 4, 2")
    A(f"s_cmp_gt_u32 s71, {t8}"); A(f"s_cselect_b32 s15, {b0}, s15")
    A("s_mov_b32 s14, s15")
    A("s_atomic_add s14, s[26:27], s58 glc")
    A("v_lshl_add_u32 v48, v1, 2, v48")
    A(f"s_sub_u32 s73, s15, {LA}")
    A("s_waitcnt lgkmcnt(0)")
    A("v_add_u32 v49, s14, v1")
    if perm is None:
        A("v_lshlrev_b32 v50, 12, v49"); A("v_add_u32 v50, s57, v50")
    else:
        lg = perm
        A(f"v_lshrrev_b32 v50, {lg}, v49"); A("v_bfrev_b32 v50, v50"); A(f"v_lshrrev_b32 v50, 24, v50")
        A(f"v_and_or_b32 v50, v49, {(1 << lg) - 1}, v50")
        A("v_cmp_gt_u32 vcc, 0x100, v49"); A("v_cndmask_b32 v50, v49, v50, vcc")
        A("v_lshlrev_b32 v50, 12, v50"); A("v_add_u32 v50, s57, v50"); A("v_lshl_add_u32 v50, v49, 1, v50")
    A("s_add_u32 s14, s14, s15")
    A("s_cmp_ge_u32 s14, s67")
    A("s_cbranch_scc1 L_dynx")
    if t1:
        A(f"s_add_u32 s14, s14, {t1}")
        A("s_cmp_ge_u32 s14, s67")
        A("s_cbranch_scc1 L_dyns")
    A("v_cmp_eq_u32 vcc, s73, v1"); A("v_addc_co_u32 v50, vcc, 0, v50, vcc")
    A("v_cmp_gt_u32 vcc, s15, v1")
    A("s_mov_b64 exec, vcc")
    A(f"ds_write_b32 v48, v50 offset:{L_TB+4*LA}")
    A("s_mov_b64 exec, -1")
    A("s_branch L_dret")
    A.label("L_dynx")
    A("v_mov_b32 v51, s30")
    A("v_cmp_gt_u32 vcc, s67, v49")
    A("v_cndmask_b32 v50, v51, v50, vcc")
    A(f"ds_write_b32 v48, v50 offset:{L_TB+4*LA}")
    A("s_branch L_dret")
    if t1:
        A.label("L_dyns")
        A("v_cmp_gt_u32 vcc, s15, v1")
        A("v_cndmask_b32 v50, 2, v50, vcc")
        A(f"ds_write_b32 v48, v50 offset:{L_TB+4*LA}")
        A("s_branch L_dret")
        A.label("L_self")
        A("s_mov_b32 s14, 1")
        A("s_atomic_add s14, s[26:27], s58 glc")
        A("v_lshl_add_u32 v48, v1, 2, v48")
        A("v_mov_b32 v51, s30")
        A("s_waitcnt lgkmcnt(0)")
        A("s_lshl_b32 s66, s14, 12"); A("s_add_u32 s66, s66, s57")
        A("s_cmp_lt_u32 s14, s67")
        A("s_cbranch_scc1 L_dret")
        A("s_mov_b32 s66, s30")
        A(f"ds_write_b32 v48, v51 offset:{L_TB+4}")
        A("s_branch L_dret")

    A.label("L_dret")
    A("s_cmp_eq_u32 s11, 3")
    A("s_cbranch_scc1 L_go")
    A("s_branch L_vc0")
    A.label("L_dretx")
    A("s_cmp_eq_u32 s11, 3")
    A("s_cbranch_scc1 L_gox")
    A("s_branch L_vc0")
    def lred():
        quad_all(19, "v_add_f32")
        A(f"ds_write_b32 v{TC+2}, v18 offset:{L_MX}")
        rows_all(19, 49, "v_add_f32")
        A(f"ds_write_b64 v{TC+1}, v[18:19] offset:{L_ML}")
    A.label("L_done")
    lred()
    if skipoob:
        A("s_branch L_done2")
        A.label("L_last")
        A(".warm_on")
        lred()
        A("s_waitcnt vmcnt(0)")
        if trace: tr()
        VB = RA + 16
        for j in range(4):
            A(f"v_mfma_f32_16x16x16_bf16 v[10:13], v[{36+2*j}:{37+2*j}], v[{VB+4*j}:{VB+4*j+1}], v[10:13]")
            A(f"v_mfma_f32_16x16x16_bf16 v[14:17], v[{36+2*j}:{37+2*j}], v[{VB+4*j+2}:{VB+4*j+3}], v[14:17]")
        A.label("L_done2")
    stamp(4)
    if trace:
        A("s_lshl_b32 s71, s2, 3"); A("s_add_u32 s71, s71, s3"); A("s_lshl_b32 s71, s71, 8"); A("s_add_u32 s71, s71, 0x200000")
        A("v_lshlrev_b32 v48, 2, v1"); A("v_add_u32 v48, s71, v48")
        A("global_store_dword v48, v244, s[26:27]")
    if cut == 1: A("s_branch L_end")
    A("s_mov_b32 s73, 0xffffff00"); A("s_mov_b32 s60, 0xfffefffe")
    A("v_mov_b32 v47, s53"); A("v_mov_b32 v48, s54"); A("v_mov_b32 v39, s56")
    A(f"ds_write_b128 v{TC}, v[10:13] offset:{L_OM}")
    A(f"ds_write_b128 v{TC}, v[14:17] offset:{L_OM+16}")
    A("s_cmp_eq_u32 s69, 1")
    A("s_cbranch_scc1 L_cs")
    A.label("L_csr")
    A("s_waitcnt lgkmcnt(0)")
    A("s_barrier")
    stamp(5)
    A(f"ds_read_b128 v[20:23], v{TC+5} offset:{L_MX}")
    A(f"ds_read_b128 v[24:27], v{TC+5} offset:{L_MX+16}")
    A(f"ds_read_b128 v[28:31], v{TC+4} offset:{L_ML}")
    A(f"ds_read_b128 v[10:13], v{TC+3} offset:{L_OM}")
    A(f"ds_read_b128 v[14:17], v{TC+3} offset:{L_OM+2048}")
    A("s_waitcnt lgkmcnt(3)")
    A("v_max3_f32 v36, v20, v21, v22"); A("v_max3_f32 v37, v23, v24, v25"); A("v_max3_f32 v36, v36, v26, v27"); A("v_max_f32 v36, v36, v37")
    A("s_waitcnt lgkmcnt(2)")
    A("v_sub_f32 v28, v28, v36"); A("v_sub_f32 v30, v30, v36")
    A("v_exp_f32 v28, v28"); A("v_exp_f32 v30, v30")
    A("v_lshl_or_b32 v38, v36, 24, s55")
    A("v_mul_f32 v37, v28, v29")
    A("v_fmac_f32 v37, v30, v31")
    A("s_waitcnt lgkmcnt(0)")
    A("v_mov_b32 v49, v37")
    for r in range(4): A(f"v_mul_f32 v{10+r}, v{10+r}, v28")
    A("v_permlane32_swap_b32 v37, v49")
    for r in range(2): A(f"v_fmac_f32 v{10+r}, v{14+r}, v30")
    A("v_add_f32 v37, v37, v49")
    for r in range(2, 4): A(f"v_fmac_f32 v{10+r}, v{14+r}, v30")
    A("v_mov_b32 v49, v37")
    A("v_permlane32_swap_b32 v10, v11")
    A("v_permlane32_swap_b32 v12, v13")
    A("v_add_f32 v10, v10, v11")
    A("v_add_f32 v12, v12, v13")
    A("v_permlane16_swap_b32 v37, v49")
    A("v_add_f32 v37, v37, v49")
    A("v_permlane16_swap_b32 v10, v12")
    A("v_add_f32 v10, v10, v12")
    rbf(10, 10)
    A("v_min_u32 v10, s60, v10")
    A(f"buffer_store_short_d16_hi v10, v{TC+10}, s[36:39], s0 offen {osf}")
    A("s_bitcmp1_b32 s3, 0")
    A("s_cbranch_scc1 L_mj")
    A("v_and_or_b32 v37, v37, s73, v48"); A("v_and_or_b32 v36, v36, s73, v47")
    A("s_mov_b64 exec, 1")
    A(f"buffer_store_dwordx4 v[36:39], v3, s[36:39], s1 offen {osf}")
    A("s_mov_b64 exec, -1")
    A(".warm_off")
    A.label("L_mj")
    stamp(6)
    A("s_cmp_eq_u32 s69, 0")
    A("s_cbranch_scc1 L_end")
    A("v_and_b32 v54, 0x1f0, v3")
    A(f"buffer_load_dwordx4 v[40:43], v54, s[36:39], 0 offen offset:{XBUF} sc1")
    if codepf:
        A("s_getpc_b64 s[12:13]")
        A.label("L_pcref")
        A("s_lshl_b32 s71, s3, 9"); A("s_add_u32 s12, s12, s71"); A("s_addc_u32 s13, s13, 0")
        A(f"v_lshlrev_b32 v48, 3, v1")
        A("global_load_dwordx2 v[44:45], v48, s[12:13]")
    if outpf:
        A("buffer_load_dword v44, v3, s[44:47], 0 offen")
    if pretouch:
        A("s_lshl_b32 s71, s3, 5"); A("s_add_u32 s71, s71, s77")
        A("s_cmp_ge_u32 s71, 80")
        A("s_cbranch_scc1 L_nopt")
        A("s_lshl_b32 s71, s71, 10"); A(f"s_add_u32 s71, s71, {HBUF}")
        A("buffer_load_dwordx4 v[44:47], v3, s[36:39], s71 offen sc1")
        A.label("L_nopt")
    OB = RA
    for k in range(4): A(f"ds_read_b128 v[{20+4*k}:{23+4*k}], v{TC+23} offset:{L_RED2+512*k}")
    A("s_waitcnt lgkmcnt(0)")
    sum4x4()
    A("v_mov_b32 v51, v20")
    A("s_waitcnt vmcnt(0)")
    A.label("L_xchk")
    for k in range(4): A(f"v_xor_b32 v{40+k}, s{53+k}, v{40+k}")
    A("v_or3_b32 v55, v41, v42, v43")
    A("v_and_b32 v53, 0xff, v40"); A("v_or_b32 v55, v55, v53")
    A("v_cmp_ne_u32 vcc, 0, v55")
    A("s_cbranch_vccz L_xok")
    A(f"buffer_load_dwordx4 v[40:43], v54, s[36:39], 0 offen offset:{XBUF} sc1")
    A("s_waitcnt vmcnt(0)")
    spin("L_xchk")
    A.label("L_xok")
    A("v_cmp_ne_u32 vcc, s78, v40")
    A("s_mov_b32 s64, 0")
    if local:
        A("s_cbranch_vccnz L_xg")
        A("s_mov_b32 s64, 1")
        A.label("L_xg")
    A(f"v_lshlrev_b32 v{TC+13}, 16, v{TC+13}")
    for i in range(8):
        r = WDR[i >> 1] + 4 * (i & 1)
        A(f"ds_read_b128 v[{r}:{r+3}], v{TC+26} offset:{1024*i}")
    for F in FS:
        for r in range(4): A(f"v_mov_b32 v{F+r}, 0")
    for r in range(10, 18): A(f"v_mov_b32 v{r}, 0")
    A("v_and_b32 v4, 3, v1"); A("v_mul_u32_u24 v4, 0x5555, v4")
    for r in list(range(64, 72)) + list(range(TC, TC + 4)) + list(range(36, 40)): A(f"v_mov_b32 v{r}, 0")
    A("v_mov_b32 v52, 1.0")
    for r in range(4): A(f"v_mov_b32_dpp v{68+r}, v52 quad_perm:[0,0,0,0] row_mask:0xf bank_mask:{'0x5' if r % 2 == 0 else '0xa'}")
    OG = [(OB + 4 * j, TC + 8, 16 + (j >> 1), 2048 * (j & 1)) for j in range(4)]
    A.label("L_h1pre")
    A(f"buffer_load_dword v23, v{TC+9}, s[36:39], s20 offen offset:12 sc1")
    A("s_waitcnt vmcnt(0)")
    A("v_cmp_eq_u32 vcc, s56, v23")
    A("s_bcnt1_i32_b64 s71, vcc")
    A(f"s_cmp_ge_u32 s71, {2*thr1}")
    A("s_cbranch_scc1 L_h1go")
    spin("L_h1pre", slp1)
    A.label("L_h1go")
    for r in range(24, 32): A(f"v_mov_b32 v{r}, 0")
    A.label("L_h1_rnd")
    A(f"buffer_load_dwordx4 v[20:23], v{TC+9}, s[36:39], s20 offen sc1")
    A(f"buffer_load_dwordx4 v[{OB}:{OB+3}], v{TC+8}, s[36:39], s16 offen sc1")
    A(f"buffer_load_dwordx4 v[{OB+4}:{OB+7}], v{TC+8}, s[36:39], s16 offen offset:1024 sc1")
    A("s_waitcnt vmcnt(2)")
    for e in range(4): A(f"v_xor_b32 v{20+e}, s{53+e}, v{20+e}")
    A("v_or3_b32 v55, v20, v21, v22"); A("v_or_b32 v55, v55, v23"); A("v_and_b32 v55, 0xff, v55")
    A("v_cmp_ne_u32 vcc, 0, v55" if eo else "v_cmp_ne_u32 s[4:5], 0, v55")
    A("v_or_b32_sdwa v20, v20, v22 dst_sel:DWORD dst_unused:UNUSED_PAD src0_sel:DWORD src1_sel:BYTE_3")
    if eo == 2: A("s_cbranch_vccnz L_h1_re")
    A("s_waitcnt vmcnt(0)")
    if eo == 1: A("s_cbranch_vccnz L_h1_re")
    A(f"v_pk_max_u16 v55, v{OB}, v{OB+1}")
    dpp("v_max_f32", 22, 20, 20, "quad_perm:[1,0,3,2]")
    A(f"v_pk_max_u16 v53, v{OB+2}, v{OB+3}"); A(f"v_pk_max_u16 v55, v55, v{OB+4}")
    dpp("v_max_f32", 22, 22, 22, "row_ror:8")
    A(f"v_pk_max_u16 v53, v53, v{OB+5}"); A(f"v_pk_max_u16 v55, v55, v{OB+6}")
    dpp("v_max_f32", 22, 22, 22, "row_ror:4")
    A("v_mov_b32 v23, v22")
    A(f"v_pk_max_u16 v53, v53, v{OB+7}"); A("v_pk_max_u16 v55, v55, v53")
    A("v_permlane32_swap_b32 v22, v23")
    A("v_max_f32 v22, v22, v23")
    A("v_mov_b32 v23, v22")
    A("v_pk_max_u16 v55, v55, v55 op_sel:[1,0] op_sel_hi:[0,1]")
    A("v_cmp_eq_u32 vcc, -1, v55")
    A("v_permlane16_swap_b32 v22, v23")
    if eo: A("s_cbranch_vccnz L_h1_re")
    else:
        A("s_or_b64 vcc, vcc, s[4:5]")
        A("s_cbranch_scc1 L_h1_re")
    post.append(("L_h1_re", "L_h1_rnd"))
    stamp(7)
    A("v_max_f32 v22, v22, v23")
    A("v_sub_f32 v20, v20, v22")
    A("v_exp_f32 v20, v20")
    rbf(22, 20)
    A("v_cvt_pk_bf16_f32 v23, v20, 0")
    A("v_mul_f32 v21, v22, v21")
    fm = [f"v_dot2c_f32_bf16_dpp v{24+2*r+h}, v{22 if h else 23}, v{OB+4*j+r} quad_perm:[{j},{j},{j},{j}] {DPPF}" for j in range(2) for r in range(4) for h in (1, 0)]
    lr = [f"v_add_f32_dpp v21, v21, v21 {c} {DPPF}" for c in ("quad_perm:[1,0,3,2]", "row_ror:8", "row_ror:4")]
    lr += ["v_mov_b32 v20, v21", "v_permlane32_swap_b32 v21, v20", "v_add_f32 v21, v21, v20\nv_mov_b32 v20, v21", "v_permlane16_swap_b32 v21, v20", "v_add_f32 v21, v21, v20"]
    for k in range(len(fm)):
        A(fm[k])
        if k % 2 == 1 and lr: A(lr.pop(0))
    assert not lr
    A("v_permlane32_swap_b32 v24, v25")
    A("v_permlane32_swap_b32 v26, v27")
    A("v_rcp_f32 v21, v21")
    A("v_permlane32_swap_b32 v28, v29")
    A("v_permlane32_swap_b32 v30, v31")
    A("v_add_f32 v24, v24, v25"); A("v_add_f32 v26, v26, v27"); A("v_add_f32 v28, v28, v29"); A("v_add_f32 v30, v30, v31")
    A("v_permlane16_swap_b32 v24, v26")
    A("v_permlane16_swap_b32 v28, v30")
    A("v_add_f32 v24, v24, v26"); A("v_add_f32 v28, v28, v30")
    dpp("v_add_f32", 24, 24, 24, "row_ror:4"); dpp("v_add_f32", 28, 28, 28, "row_ror:4")
    A("v_add_f32_dpp v20, v24, v24 row_ror:8 row_mask:0xf bank_mask:0x5")
    A("v_add_f32_dpp v20, v28, v28 row_ror:8 row_mask:0xf bank_mask:0xa")
    A("v_mul_f32 v20, v20, v21")
    rbf(20, 20)
    def frag(j, src):
        F = FS[j % 3]
        for r in range(4):
            A(f"v_mov_b32_dpp v{F+r}, v{src} row_newbcast:{2*j+(r>>1)} row_mask:0xf bank_mask:{'0x5' if r % 2 == 0 else '0xa'}")
        return F
    def frag2(j):
        F = FS[j % 3]
        for r in range(4):
            q = 2 * j + (r >> 1); second = r & 1
            src, p = (20, q & 3) if (q >> 2) == second else (21, 3 - (q & 3))
            A(f"v_mov_b32_dpp v{F+r}, v{src} quad_perm:[{p},{p},{p},{p}] row_mask:0xf bank_mask:{'0xa' if second else '0x5'}")
        return F
    def gemv16(W, red, pair=True):
        fr = frag2 if pair else (lambda i: frag(i, 20))
        if pair: A(f"v_mov_b32_dpp v21, v20 row_half_mirror {DPPF}")
        Fs = {0: fr(0)}
        for j in range(4):
            if j < 3: Fs[j + 1] = fr(j + 1)
            for v in range(2):
                acc = 10 + 4 * v; b = W + 8 * (4 * v + j)
                A(f"v_smfmac_f32_16x16x64_bf16 v[{acc}:{acc+3}], v[{Fs[j]}:{Fs[j]+3}], v[{b}:{b+7}], v4")
        A("s_mov_b32 exec_hi, 0")
        A(f"ds_write_b128 v{TC+11}, v[10:13] offset:{red}")
        A("s_not_b64 exec, exec")
        A(f"ds_write_b128 v{TC+11}, v[14:17] offset:{red}")
        A("s_mov_b64 exec, -1")
        A("s_waitcnt lgkmcnt(0)")
        A("s_barrier")
    gemv16(WO, L_RED, pair=False)
    A(f"ds_read_b128 v[20:23], v{TC+12} offset:{L_RED}")
    A("s_cmp_eq_u32 s64, 1")
    A("s_waitcnt lgkmcnt(0)")
    rr4(20, 21, 22, 23)
    dpp("v_add_f32", 20, 20, 20, "row_ror:8")
    A("s_mov_b32 exec_lo, 0x00ff00ff"); A("s_mov_b32 exec_hi, 0x00ff00ff")
    rbf(52, 20)
    A("v_min_u32 v52, s60, v52")
    lstore("L_hs", f"buffer_store_short_d16_hi v52, v{TC+6}, s[36:39], s21 offen")
    A("s_mov_b64 exec, -1")
    stamp(8)
    if hw == -1: A("s_waitcnt vmcnt(0)")
    elif hw == -2: A("s_barrier")
    elif hw: A(f"s_sleep {hw}")
    A.label("L_h2")
    A("s_cmp_lg_u32 s69, 2")
    A("s_cbranch_scc1 L_h2f")
    A("s_cmp_lg_u32 s3, 7")
    A("s_cbranch_scc1 L_end")
    A.label("L_h2f")
    gathers("L_h2", TC + 14, 24)
    stamp(2)
    for r in range(4): A(f"v_add_f32_dpp v20, v{28+r}, v{28+r} row_ror:8 row_mask:{'0x3' if r < 2 else '0xc'} bank_mask:{'0xc' if r & 1 else '0x3'}")
    A(f"v_add_f32 v20, v20, v{TC+13}")
    rbf(20, 20)
    A("s_cmp_eq_u32 s69, 2")
    A("v_mov_b32 v50, v20")
    A("s_cbranch_scc1 L_fin0")
    A("v_readfirstlane_b32 s71, v20")
    A(f"v_mov_b32_dpp v21, v20 row_half_mirror {DPPF}")
    st = ["v_subrev_f32 v25, s71, v20\nv_mov_b32 v24, s71\nv_mul_f32 v26, v25, v25", "v_permlane32_swap_b32 v25, v26\nv_add_f32 v25, v25, v26"]
    st += [f"v_add_f32_dpp v25, v25, v25 {c} {DPPF}" for c in ("quad_perm:[1,0,3,2]", "quad_perm:[2,3,0,1]", "row_ror:8")]
    st += [f"v_add_f32_dpp v25, v25, v25 row_ror:4 {DPPF}\nv_mov_b32 v26, v25", "v_permlane16_swap_b32 v25, v26\nv_add_f32 v25, v25, v26"]
    A(st.pop(0))
    Fs = {0: frag2(0)}
    A(st.pop(0))
    for j in range(4):
        if j < 3: Fs[j + 1] = frag2(j + 1); A(st.pop(0))
        for v in range(2):
            acc = (TC, 36)[v]; b = WGU + 8 * (4 * v + j)
            A(f"v_smfmac_f32_16x16x64_bf16 v[{acc}:{acc+3}], v[{Fs[j]}:{Fs[j]+3}], v[{b}:{b+7}], v4")
        if j >= 2: A(st.pop(0))
    assert not st
    A("s_mov_b32 exec_lo, 1"); A("s_mov_b32 exec_hi, 1")
    A(f"ds_write_b64 v{TC+20}, v[24:25] offset:{L_ST}")
    A("s_mov_b32 exec_lo, -1"); A("s_mov_b32 exec_hi, 0")
    A(f"ds_write_b128 v{TC+11}, v[{TC}:{TC+3}] offset:{L_RED2}")
    A("s_not_b64 exec, exec")
    A(f"ds_write_b128 v{TC+11}, v[36:39] offset:{L_RED2}")
    A("s_mov_b64 exec, -1")
    A("s_waitcnt lgkmcnt(0)")
    A("s_barrier")
    stamp(3)
    A(f"ds_read_b128 v[60:63], v{TC+21} offset:{L_ST}")
    for k in range(4): A(f"ds_read_b128 v[{20+4*k}:{23+4*k}], v{TC+23} offset:{L_RED2+512*k}")
    A("s_waitcnt lgkmcnt(4)")
    A("v_readfirstlane_b32 s71, v60")
    A("v_subrev_f32 v60, s71, v60")
    A("v_fmamk_f32 v59, v60, 0x42800000, v61")
    A("v_add_f32 v61, v61, v59")
    A("v_fma_f32 v62, v60, v61, v63")
    A("s_waitcnt lgkmcnt(0)")
    c3 = ("quad_perm:[1,0,3,2]", "quad_perm:[2,3,0,1]", "row_half_mirror")
    pk = ["v_pk_add_f32 v[20:21], v[20:21], v[24:25]", "v_pk_add_f32 v[22:23], v[22:23], v[26:27]", "v_pk_add_f32 v[28:29], v[28:29], v[32:33]",
          "v_pk_add_f32 v[30:31], v[30:31], v[34:35]", "v_pk_add_f32 v[20:21], v[20:21], v[28:29]", "v_pk_add_f32 v[22:23], v[22:23], v[30:31]"]
    for k in range(3):
        A(pk[2 * k]); dpp("v_add_f32", 59, 59, 59, c3[k]); A(pk[2 * k + 1]); dpp("v_add_f32", 62, 62, 62, c3[k])
    A("v_mul_f32 v59, 0x3b000000, v59")
    A("v_permlane32_swap_b32 v20, v21")
    A("v_permlane32_swap_b32 v22, v23")
    A("v_mul_f32 v62, 0x3b000000, v62")
    A("v_add_f32 v20, v20, v21")
    A("v_add_f32 v22, v22, v23")
    A("v_fma_f32 v62, -v59, v59, v62")
    A("v_max_f32 v62, 0, v62")
    A("v_permlane16_swap_b32 v20, v22")
    A("v_add_f32 v62, 0x3727c5ac, v62")
    A("v_add_f32 v59, s71, v59")
    A("v_rsq_f32 v62, v62")
    A("v_add_f32 v20, v20, v22")
    A("v_fma_f32 v20, -v59, v51, v20")
    A("v_mul_f32 v20, v20, v62")
    dpp("v_mul_f32", 21, 20, 20, "row_ror:8")
    rbf(21, 21)
    Fs = {0: frag(0, 21)}
    for j in range(4):
        if j < 3: Fs[j + 1] = frag(j + 1, 21)
        A(f"v_smfmac_f32_16x16x64_bf16 v[64:67], v[{Fs[j]}:{Fs[j]+3}], v[{WDR[j]}:{WDR[j]+7}], v4")
    A("s_mov_b32 exec_hi, 0")
    A("s_cmp_eq_u32 s64, 1")
    A("v_cvt_pk_bf16_f32 v56, v64, v65"); A("v_cvt_pk_bf16_f32 v57, v66, v67")
    A("v_pk_min_u16 v56, s60, v56"); A("v_pk_min_u16 v57, s60, v57")
    lstore("L_ys", f"buffer_store_dwordx2 v[56:57], v{TC+24}, s[36:39], s18 offen")
    stamp(9)
    A("s_cmp_lg_u32 s3, s68")
    A("s_cbranch_scc1 L_end")
    A("s_mov_b64 exec, -1")
    if yw == -1: A("s_waitcnt vmcnt(0)")
    elif yw: A(f"s_sleep {yw}")
    A("s_branch L_fin")
    A.label("L_fin0")
    A("s_cmp_lg_u32 s77, 28"); A("s_cbranch_scc1 L_fin")
    A("s_mov_b64 exec, 1")
    A("v_mov_b32 v48, s52")
    A("buffer_store_dword v48, v3, s[36:39], 0 offen sc1")
    A("s_mov_b64 exec, -1")
    A.label("L_fin")
    A("s_and_b32 s71, s77, 3"); A("s_lshl_b32 s71, s71, 1"); A("s_lshl_b32 s71, 0x03030303, s71")
    gathers("L_h3", TC + 22, 22)
    stamp(5)
    for r in range(4): A(f"v_add_f32_dpp v{20+(r&1)}, v{28+r}, v{28+r} quad_perm:[2,3,0,1] row_mask:{'0x3' if r < 2 else '0xc'} bank_mask:0xf")
    dpp("v_add_f32", 20, 20, 20, "row_ror:4"); dpp("v_add_f32", 21, 21, 21, "row_ror:4")
    A("v_add_f32_dpp v22, v20, v20 row_ror:8 row_mask:0xf bank_mask:0x3")
    A("v_add_f32_dpp v22, v21, v21 row_ror:8 row_mask:0xf bank_mask:0xc")
    A("v_add_f32 v20, v22, v50")
    rbf(20, 20)
    if diag and diag[1] == "ack":
        A("s_mov_b32 exec_lo, s71"); A("s_mov_b32 exec_hi, s71")
        A(f"buffer_store_short_d16_hi v20, v{TC+25}, s[44:47], 0 offen")
        A("s_waitcnt vmcnt(0)")
        A("s_memrealtime s[86:87]")
    if diag:
        A("s_waitcnt lgkmcnt(0)")
        A("s_sub_u32 s84, s86, s84"); A(f"s_mul_i32 s84, s84, {diag[2]}"); A("s_add_u32 s84, s84, 6000"); A("s_min_u32 s84, s84, 100000")
        A.label("L_dg1")
        A("s_memrealtime s[82:83]"); A("s_waitcnt lgkmcnt(0)")
        A("s_sub_u32 s82, s82, s80"); A("s_cmp_lt_u32 s82, s84"); A("s_cbranch_scc1 L_dg1")
    A("s_mov_b32 exec_lo, s71"); A("s_mov_b32 exec_hi, s71")
    A(f"buffer_store_short_d16_hi v20, v{TC+25}, s[44:47], 0 offen")
    A(".warm_off")
    A("s_branch L_end")
    A.label("L_cs")
    A("v_and_b32 v4, 3, v1"); A("v_mul_u32_u24 v4, 0x5555, v4")
    for r in range(20, 32): A(f"v_mov_b32 v{r}, 0")
    A("v_mov_b32 v32, 1.0")
    A("s_waitcnt vmcnt(0)")
    for r in range(4): A(f"v_mov_b32_dpp v{28+r}, v32 quad_perm:[0,0,0,0] row_mask:0xf bank_mask:{'0x5' if r % 2 == 0 else '0xa'}")
    for j in range(4):
        for v in range(2):
            b = WGU + 8 * (4 * v + j)
            A(f"v_smfmac_f32_16x16x64_bf16 v[{20+4*v}:{23+4*v}], v[28:31], v[{b}:{b+7}], v4")
    A("s_mov_b32 exec_hi, 0")
    A(f"ds_write_b128 v{TC+11}, v[20:23] offset:{L_RED2}")
    A("s_not_b64 exec, exec")
    A(f"ds_write_b128 v{TC+11}, v[24:27] offset:{L_RED2}")
    A("s_mov_b64 exec, -1")
    A("s_branch L_csr")
    for (lab, back) in post:
        A.label(lab); spin(back)
    for (name, text) in post2:
        A.label(f"{name}_g"); A(text + " sc1"); A(f"s_branch {name}_j")
    A.label("L_end")
    if prof:
        A("s_waitcnt vmcnt(0)")
        stamp(10)
        A("s_mov_b64 exec, -1")
        A("s_waitcnt lgkmcnt(0)")
        for i in range(11): A(f"v_writelane_b32 v20, s{80+2*i}, {i}")
        A("v_writelane_b32 v20, s64, 11")
        A("s_getreg_b32 s71, hwreg(HW_REG_XCC_ID)"); A("v_writelane_b32 v20, s71, 12")
        A("s_lshl_b32 s71, s2, 3"); A("s_add_u32 s71, s71, s3"); A("s_lshl_b32 s71, s71, 6"); A(f"s_add_u32 s71, s71, {PROF}")
        A("v_lshlrev_b32 v21, 2, v1")
        A("s_mov_b64 exec, 0xffff")
        A("buffer_store_dword v20, v21, s[36:39], s71 offen")
    A.label("L_exit")
    A("s_endpgm")
    body = A.finish()
    nv = max(A.maxv + 1, 136)
    txt = HEADER + f"; @launch grid=(256,1,1) block=(512,1,1) lds={L_END}\n"
    txt += DOC
    txt += f'.amdgcn_target "amdgcn-amd-amdhsa--gfx950"\n.text\n.globl {KNAME}\n.p2align 8\n.type {KNAME},@function\n{KNAME}:\n'
    txt += body
    txt += "; padding: instruction prefetch and the code read at L_pcref stay inside .text\n.fill 512, 4, 0xbf800000\n"
    txt += f'.section .rodata,"a"\n.p2align 6\n.amdhsa_kernel {KNAME}\n  .amdhsa_next_free_vgpr {nv}\n  .amdhsa_next_free_sgpr 102\n'
    txt += f"  .amdhsa_accum_offset {(nv+3)//4*4}\n  .amdhsa_group_segment_fixed_size 0\n  .amdhsa_kernarg_size 96\n  .amdhsa_user_sgpr_count 2\n"
    txt += "  .amdhsa_user_sgpr_kernarg_segment_ptr 1\n  .amdhsa_system_sgpr_workgroup_id_x 1\n  .amdhsa_float_denorm_mode_32 3\n.end_amdhsa_kernel\n"
    return txt

if __name__ == "__main__":
    import argparse
    p = argparse.ArgumentParser(); p.add_argument("-o"); p.add_argument("kv", nargs="*")
    a = p.parse_args()
    kw = {k: eval(v) for k, v in (x.split("=") for x in a.kv)}
    open(a.o, "w").write(gen(**kw))
```

```python
import sys, struct
sys.path.insert(0, "gen")
from asmlib import Asm

KNAME = "sequential_preLN__gqa_block_cached__glu_gated_bilinear__decode_kernel"
HEADER = open("sequential_preLN__gqa_block_cached__glu_gated_bilinear__decode.s.ref").read().split("; Override launch")[0]

DOC = """; ---------------------------------------------------------------------------------------------
; ---------------------------------------------------------------------------------------------
"""
XBUF, QBUF, OBUF, HBUF, YBUF, CBUF, MLBUF, WS_END = 0x800, 0x1000, 0x10000, 0xAC000, 0xB0000, 0xD0000, 0x140000, 0x180000
PROF = 0x100000
L_OM, L_ML, L_MX, L_QF, L_TK, L_ST, L_RED, L_RED2, L_HL, L_TB, L_WD, L_S, L_END = 0, 0x4000, 0x4100, 0x4600, 0x4A00, 0x4B00, 0x5000, 0x7000, 0x4C00, 0x9000, 0x9800, 0x19800, 0x21800
DPPF = "row_mask:0xf bank_mask:0xf"
SPIN = 1 << 20
L_MX2 = 0x4200

def gen(NX=4, prof=False, S0=104, offT=48, offF=24, offQ=12, thr1=8, slp1=4, qslp=4, LA=2, t8=128, t4=48, t1=0, b0=8,
        cstride=256, kf='nt', vf='nt', wf='nt', mlsh=5, cut=0, local=True, pretouch=True, tT=64, diag=0, codepf=True, outpf=False, h2pre=False, opre=None, osf='sc1', ew=8, ewx=0, PS=0, pgap=0, flat2=True, flat3=True, skipoob=True, hw=-2, yw=0, stx=True, noround=0, trace=False, tlbpf=0, tS=0, sm=8, XT=0, W=0, qprof=False, qhold=True, X2=2, NXT=1, wpf=False, wf2=None, wsplit=False, warm=0, wwave=7, contig=False, spread=False, rot=0, perm=None, h1t=0, h1f='sc1', wmap=0, eo=1, aw=8, gupf=False, wopf=False, early=True, dv=False):
    A = Asm()
    if warm: A.warm = (warm, 'L_wret')
    CM = {'L_ring': 'prefetch K units of the static range (q is not needed yet)', 'L_qprod': 'q producers: LayerNorm(x), 64 columns of x @ wq, 64 rows per wave', 'L_w0b': "wave 0: LDS counters / chunk table, wait for this head's q", 'L_k': 'phase K: two 16-key chunks per ticket, scores (log2 domain) to LDS', 'L_v': 'phase V: P = exp2(z - max), O += P @ V', 'L_loop': 'phase C: K and V of one pool chunk, online softmax', 'L_first': 'first pass: scores of the prefetched extra units', 'L_setup': 'one-time address constants; tail workgroups also clear their slots and load weights', 'L_dyn': 'pool hand-out: LDS table refilled in batches from the pool counter', 'L_done': "merge the 8 waves' partials and publish them", 'L_xchk': 'tail workgroups: placement check', 'L_h1pre': 'gather the 32 partials of two heads, combine, apply wo', 'L_h2': 'gather partial sums of h, gate/up, LayerNorm statistics, w_down', 'L_fin': 'gather partial outputs, residual, store', 'L_cs': 'column sums of the gate/up slice'}
    _lab = A.label
    def label(name):
        if name in CM: A.lines.append("; ---- " + CM[name])
        _lab(name)
    A.label = label
    RA, RX = 56, 88
    WO, WGU = 88, 152
    WDR = [72, 80, 244, 40]
    FS = [232, 6, 252]
    TC = 216
    OOB = 0x1000000
    D0 = (4096 - 32 * S0 + 8 * offQ + 4 * offT) // 4
    assert offF % 4 == 0
    D1 = D0 - offF // 4
    assert LA + D0 + 64 + 64 <= 512
    seen = {}
    def stamp(i):
        if prof: A(f"s_memrealtime s[{80+2*i}:{81+2*i}]")
        seen[i] = seen.get(i, 0) + 1
        if diag:
            if (i, seen[i]) == (0, 1): A("s_memrealtime s[80:81]")
            if diag[0] == (i, seen[i]): A("s_memrealtime s[84:85]")
            if diag[1] == (i, seen[i]): A("s_memrealtime s[86:87]")
    def rr4(a, b, c, d):
        A(f"v_permlane32_swap_b32 v{a}, v{b}")
        A(f"v_permlane32_swap_b32 v{c}, v{d}")
        A(f"v_add_f32 v{a}, v{a}, v{b}")
        A(f"v_add_f32 v{c}, v{c}, v{d}")
        A(f"v_permlane16_swap_b32 v{a}, v{c}")
        A(f"v_add_f32 v{a}, v{a}, v{c}")
    def rows_all(x, t, op):
        A(f"v_mov_b32 v{t}, v{x}")
        A(f"v_permlane32_swap_b32 v{x}, v{t}")
        A(f"{op} v{x}, v{x}, v{t}")
        A(f"v_mov_b32 v{t}, v{x}")
        A(f"v_permlane16_swap_b32 v{x}, v{t}")
        A(f"{op} v{x}, v{x}, v{t}")
    def dpp(op, d, s, o, ctl): A(f"{op}_dpp v{d}, v{s}, v{o} {ctl} {DPPF}")
    def quad_all(x, op):
        dpp(op, x, x, x, "quad_perm:[1,0,3,2]"); dpp(op, x, x, x, "quad_perm:[2,3,0,1]")
    def wave_all(x, t, op):
        quad_all(x, op); dpp(op, x, x, x, "row_ror:8"); dpp(op, x, x, x, "row_ror:4"); rows_all(x, t, op)
    def rbf(d, s): A(f"v_cvt_pk_bf16_f32 v{d}, 0, v{s}")
    def ln_fin(mean, var):
        rbf(var, var)
        rbf(mean, mean)
        A(f"v_add_f32 v{var}, 0x37280000, v{var}")
        rbf(var, var)
        A(f"v_sqrt_f32 v{var}, v{var}")
        rbf(var, var)
        A(f"v_rcp_f32 v{var}, v{var}")
    def ln_stats(vals, mean, rinv, t):
        A(f"v_add_f32 v{mean}, v{vals[0]}, v{vals[1]}")
        A(f"v_add_f32 v{t}, v{vals[2]}, v{vals[3]}")
        A(f"v_add_f32 v{rinv}, v{vals[4]}, v{vals[5]}")
        A(f"v_add_f32 v{mean}, v{mean}, v{t}")
        A(f"v_add_f32 v{t}, v{vals[6]}, v{vals[7]}")
        A(f"v_add_f32 v{rinv}, v{rinv}, v{t}")
        A(f"v_add_f32 v{mean}, v{mean}, v{rinv}")
        wave_all(mean, t, "v_add_f32")
        A(f"v_mul_f32 v{mean}, 0x3b000000, v{mean}")
        for v in vals: A(f"v_sub_f32 v{v}, v{v}, v{mean}")
        A(f"v_mul_f32 v{rinv}, v{vals[0]}, v{vals[0]}")
        A(f"v_mul_f32 v{t}, v{vals[1]}, v{vals[1]}")
        for k in range(2, 8, 2):
            A(f"v_fmac_f32 v{rinv}, v{vals[k]}, v{vals[k]}")
            A(f"v_fmac_f32 v{t}, v{vals[k+1]}, v{vals[k+1]}")
        A(f"v_add_f32 v{rinv}, v{rinv}, v{t}")
        wave_all(rinv, t, "v_add_f32")
        A(f"v_mul_f32 v{rinv}, 0x3b000000, v{rinv}")
        ln_fin(mean, rinv)
    def srd(d, lo, hi, n):
        A(f"s_mov_b32 s{d}, s{lo}"); A(f"s_mov_b32 s{d+1}, s{hi}"); A(f"s_mov_b32 s{d+2}, {hex(n)}"); A(f"s_mov_b32 s{d+3}, 0x20000")
    def spin(label, slp=0):
        A("s_sub_u32 s72, s72, 1")
        A("s_cbranch_scc1 L_end")
        if slp: A(f"s_sleep {slp}")
        A(f"s_branch {label}")
    MREG = [4, 6, 8, 14, 62]
    def gather(name, groups, init_masks=None, check_first=False):
        ng = len(groups)
        for j in range(ng):
            m = -1 if init_masks is None else init_masks[j]; M = MREG[j]
            if m == -1: A(f"s_mov_b64 s[{M}:{M+1}], -1")
            else: A(f"s_mov_b32 s{M}, {hex(m & 0xffffffff)}"); A(f"s_mov_b32 s{M+1}, {hex(m >> 32)}")
        if check_first: A(f"s_branch {name}_chk")
        A.label(f"{name}_rnd")
        for j, g in enumerate(groups):
            M = MREG[j]
            A(f"s_mov_b64 exec, s[{M}:{M+1}]")
            A(f"s_cbranch_execz {name}_i{j}")
            for (r, va, so, imm) in g:
                A(f"buffer_load_dwordx4 v[{r}:{r+3}], v{va}, s[36:39], s{so} offen offset:{imm} sc1")
            A.label(f"{name}_i{j}")
        A.label(f"{name}_chk")
        A("s_mov_b64 s[12:13], 0")
        A("s_waitcnt vmcnt(0)")
        for j, g in enumerate(groups):
            M = MREG[j]
            A(f"s_mov_b64 exec, s[{M}:{M+1}]")
            A(f"s_cbranch_execz {name}_c{j}")
            regs = [r + k for (r, _, _, _) in g for k in range(4)]
            for k, r in enumerate(regs): A(f"v_xor_b32 v{r}, s{53+(k&3)}, v{r}")
            A(f"v_or3_b32 v55, v{regs[0]}, v{regs[1]}, v{regs[2]}")
            rest = regs[3:]
            while len(rest) >= 2:
                A(f"v_or3_b32 v55, v55, v{rest[0]}, v{rest[1]}"); rest = rest[2:]
            A(f"v_or_b32 v55, v55, v{rest[0]}")
            A("v_and_b32 v55, 0xff, v55")
            A(f"v_cmp_ne_u32 s[{M}:{M+1}], 0, v55")
            A(f"s_or_b64 s[12:13], s[12:13], s[{M}:{M+1}]")
            A.label(f"{name}_c{j}")
        A("s_mov_b64 exec, -1")
        A("s_cmp_eq_u64 s[12:13], 0")
        A(f"s_cbranch_scc1 {name}_ok")
        spin(f"{name}_rnd")
        A.label(f"{name}_ok")
    def gatherp(name, groups, raws):
        ng = len(groups)
        for j in range(ng): A(f"s_mov_b64 s[{MREG[j]}:{MREG[j]+1}], -1")
        NL = sum(len(g) for g in groups)
        def issue(rb):
            n = 0
            for j, g in enumerate(groups):
                A(f"s_or_b64 exec, s[{MREG[j]}:{MREG[j]+1}], 1")
                for (r, va, so, imm) in g:
                    A(f"buffer_load_dwordx4 v[{rb+4*n}:{rb+4*n+3}], v{va}, s[36:39], s{so} offen offset:{imm} sc1")
                    n += 1
        for rb in raws: issue(rb)
        A.label(f"{name}_rnd")
        for k, rb in enumerate(raws):
            A("s_mov_b64 s[12:13], 0")
            A(f"s_waitcnt vmcnt({(len(raws)-1)*NL})")
            n = 0
            for j, g in enumerate(groups):
                M = MREG[j]
                A(f"s_mov_b64 exec, s[{M}:{M+1}]")
                A(f"s_cbranch_execz {name}_c{k}_{j}")
                regs = []
                for (r, _, _, _) in g:
                    for e in range(4):
                        A(f"v_xor_b32 v{r+e}, s{53+e}, v{rb+4*n+e}"); regs.append(r + e)
                    n += 1
                A(f"v_or3_b32 v55, v{regs[0]}, v{regs[1]}, v{regs[2]}")
                A(f"v_or_b32 v55, v55, v{regs[3]}")
                A("v_and_b32 v55, 0xff, v55")
                A(f"v_cmp_ne_u32 s[{M}:{M+1}], 0, v55")
                A(f"s_or_b64 s[12:13], s[12:13], s[{M}:{M+1}]")
                A.label(f"{name}_c{k}_{j}")
            A("s_cmp_eq_u64 s[12:13], 0")
            A(f"s_cbranch_scc1 {name}_ok")
            if pgap: A(f"s_sleep {pgap}")
            issue(rb)
        spin(f"{name}_rnd")
        A.label(f"{name}_ok")
        A("s_mov_b64 exec, -1")
    def gatherf(name, loads, last_half=False):
        A.label(f"{name}_rnd")
        for k, (r, va, so, imm) in enumerate(loads):
            if last_half and k == len(loads) - 1:
                for e in range(4): A(f"v_mov_b32 v{r+e}, s{53+e}")
                A("s_mov_b32 exec_hi, 0")
            A(f"buffer_load_dwordx4 v[{r}:{r+3}], v{va}, s[36:39], s{so} offen offset:{imm} sc1")
        if last_half: A("s_mov_b32 exec_hi, -1")
        n = len(loads)
        for k, (r, _, _, _) in enumerate(loads):
            A(f"s_waitcnt vmcnt({n-1-k})")
            for e in range(4): A(f"v_xor_b32 v{r+e}, s{53+e}, v{r+e}")
            if k == 0: A(f"v_or_b32 v55, v{r}, v{r+1}")
            else: A(f"v_or3_b32 v55, v55, v{r}, v{r+1}")
            A(f"v_or3_b32 v55, v55, v{r+2}, v{r+3}")
        A("v_and_b32 v55, 0xff, v55")
        A("v_cmp_ne_u32 vcc, 0, v55")
        A(f"s_cbranch_vccnz {name}_re")
        post.append((f"{name}_re", f"{name}_rnd"))
    def gathers(name, va, so):
        A.label(f"{name}_rnd")
        A(f"buffer_load_dwordx4 v[20:23], v{va}, s[36:39], s{so} offen sc1")
        A(f"buffer_load_dwordx4 v[24:27], v{va}, s[36:39], s{so+1} offen sc1")
        for r in range(4): A(f"v_mov_b32 v{28+r}, 0")
        A("s_waitcnt vmcnt(1)")
        A("v_pk_max_u16 v55, v20, v21"); A("v_pk_max_u16 v53, v22, v23"); A("v_pk_max_u16 v55, v55, v53")
        A("s_waitcnt vmcnt(0)")
        A("v_smfmac_f32_16x16x64_bf16 v[28:31], v[68:71], v[20:27], v4")
        for r in range(24, 28): A(f"v_pk_max_u16 v55, v55, v{r}")
        A("v_pk_max_u16 v55, v55, v55 op_sel:[1,0] op_sel_hi:[0,1]")
        A("v_cmp_eq_u32 vcc, -1, v55")
        A(f"s_cbranch_vccnz {name}_re")
        post.append((f"{name}_re", f"{name}_rnd"))
    post = []; post2 = []
    def lstore(name, text):
        A(f"s_cbranch_scc0 {name}_g")
        A(text)
        A.label(f"{name}_j")
        post2.append((name, text))
    thr = [None]
    def throttle():
        if thr[0] is not None:
            if thr[0] >= W: A(f"s_waitcnt vmcnt({W-1})")
            thr[0] += 1
    def issueK(base, so):
        for j in range(4):
            r = base + 4 * j
            throttle()
            A(f"buffer_load_dwordx4 v[{r}:{r+3}], v2, s[28:31], s{so} offen offset:{1024*j} {kf}")
    def issueV(base, so):
        for j in range(4):
            r = base + 16 + 4 * j
            throttle()
            A(f"buffer_load_dwordx4 v[{r}:{r+3}], v3, s[32:35], s{so} offen offset:{1024*j} {vf}")
    def common_setup():
        A("s_mov_b32 s60, 0x22222222"); A("s_mov_b32 s61, 0x22222222")
        A("s_mov_b32 s62, 0x44444444"); A("s_mov_b32 s63, 0x44444444")
        A("s_mov_b32 s64, 0x88888888"); A("s_mov_b32 s65, 0x88888888")
        A("s_mov_b32 s74, 0x3db504f3"); A("s_mov_b32 s75, 0x3fb8aa3b")
        A(f"s_mov_b32 s72, {SPIN}")
        A("v_mov_b32 v44, 0xffff"); A("v_mov_b32 v45, 0xffff0000")
        A("v_mov_b32 v4, 0"); A("v_mov_b32 v5, 0")
        A("v_cmp_eq_u32 vcc, 0, v47")
        A("v_cndmask_b32 v4, v4, v44, vcc")
        A("v_cndmask_b32 v4, v4, v45, s[60:61]")
        A("v_cndmask_b32 v5, v5, v44, s[62:63]")
        A("v_cndmask_b32 v5, v5, v45, s[64:65]")
        for r in range(10, 18): A(f"v_mov_b32 v{r}, 0")
        A("v_mov_b32 v18, 0xff7fffff"); A("v_mov_b32 v19, 0")
    def k32masks(b):
        A("v_bfe_u32 v51, v1, 2, 1"); A("v_cmp_eq_u32 vcc, 0, v51")
        A(f"v_cndmask_b32 v{b}, 0, v4, vcc"); A(f"v_cndmask_b32 v{b+1}, 0, v5, vcc")
        A(f"v_cndmask_b32 v{b+2}, v4, 0, vcc"); A(f"v_cndmask_b32 v{b+3}, v5, 0, vcc")
    def tags():
        A("s_add_u32 s52, s52, 0x9e3779b9")
        A("s_and_b32 s53, s52, 0xff"); A("s_bfe_u32 s54, s52, 0x80008"); A("s_bfe_u32 s55, s52, 0x80010"); A("s_lshr_b32 s56, s52, 24")
        A("s_and_b32 s57, s52, 0xffff"); A("s_lshr_b32 s58, s52, 16")
    def sum4x4():
        A("v_pk_add_f32 v[20:21], v[20:21], v[24:25]"); A("v_pk_add_f32 v[22:23], v[22:23], v[26:27]")
        A("v_pk_add_f32 v[28:29], v[28:29], v[32:33]"); A("v_pk_add_f32 v[30:31], v[30:31], v[34:35]")
        A("v_pk_add_f32 v[20:21], v[20:21], v[28:29]"); A("v_pk_add_f32 v[22:23], v[22:23], v[30:31]")
        rr4(20, 21, 22, 23)
    def sum2x4():
        A("v_pk_add_f32 v[20:21], v[20:21], v[24:25]"); A("v_pk_add_f32 v[22:23], v[22:23], v[26:27]")
        rr4(20, 21, 22, 23)
    def tr():
        A("s_memrealtime s[96:97]"); A("s_mov_b32 m0, s98"); A("s_waitcnt lgkmcnt(0)"); A("v_writelane_b32 v244, s96, m0"); A("s_add_u32 s98, s98, 1")
    uid = [0]
    def ld4(base, va, srd_, so, fl):
        if rot:
            A(f"s_add_u32 s9, s{so}, s8"); A("s_and_b32 s9, s9, 0xffffff"); so = 9
        for j in range(4):
            r = base + 4 * j
            throttle()
            A(f"buffer_load_dwordx4 v[{r}:{r+3}], v{va}, s[{srd_}:{srd_+3}], s{so} offen offset:{1024*j} {fl}")
    def draw():
        A("s_mov_b64 exec, 1")
        A("ds_add_rtn_u32 v54, v52, v53")
        A("s_mov_b64 exec, -1")
    def qk(KB):
        for j in range(4):
            A(f"v_mfma_f32_16x16x32_bf16 v[{20+4*j}:{23+4*j}], v[{KB+4*j}:{KB+4*j+3}], v[6:9], 0")
    def extract():
        D = lambda j, r: 20 + 4 * (j & 3) + r
        for rho in range(4): A(f"v_cndmask_b32 v{44+rho}, v{D(rho,0)}, v{D(rho+1,1)}, s[60:61]")
        for rho in range(4): A(f"v_cndmask_b32 v{44+rho}, v{44+rho}, v{D(rho+2,2)}, s[62:63]")
        for rho in (1, 2, 3, 0): A(f"v_cndmask_b32 v{44+rho}, v{44+rho}, v{D(rho+3,3)}, s[64:65]")
        for rho in range(1, 4):
            qp = ",".join(str((q - rho) & 3) for q in range(4))
            dpp("v_add_f32", 44, 44 + rho, 44, f"quad_perm:[{qp}]")
        rbf(44, 44)
        A("v_mul_f32 v44, s74, v44")
        rbf(44, 44)
        A("v_mul_f32 v44, s75, v44")
    def keep(off):
        A(f"ds_write_b32 v48, v44 offset:{off}")
        A("v_max_f32 v18, v18, v44")
    def pfrag(z):
        A(f"v_sub_f32 v44, v{z}, v18")
        A("v_exp_f32 v44, v44")
        A("v_cvt_pk_bf16_f32 v45, v44, v44")
        A("v_add_f32 v19, v19, v44")
        for j in range(4):
            dpp("v_and_b32", 36 + 2 * j, 45, 4, f"quad_perm:[{j},{j},{j},{j}]")
            dpp("v_and_b32", 37 + 2 * j, 45, 5, f"quad_perm:[{j},{j},{j},{j}]")
    def pv(VB):
        for j in range(4):
            A(f"v_mfma_f32_16x16x16_bf16 v[10:13], v[{36+2*j}:{37+2*j}], v[{VB+4*j}:{VB+4*j+1}], v[10:13]")
            A(f"v_mfma_f32_16x16x16_bf16 v[14:17], v[{36+2*j}:{37+2*j}], v[{VB+4*j+2}:{VB+4*j+3}], v[14:17]")
    def unitK(base, so):
        ld4(base, 2, 28, so, kf); ld4(base + 16, 244, 28, so, kf)

    A("s_cmp_ge_u32 s2, 256")
    A("s_cbranch_scc1 L_exit")
    A("s_load_dwordx16 s[4:19], s[0:1], 0")
    A("s_load_dwordx8 s[20:27], s[0:1], 64")
    stamp(0)
    if XT: A(f"s_xor_b32 s2, s2, {XT}")
    A("v_and_b32 v1, 63, v0")
    A("v_lshrrev_b32 v44, 6, v0")
    A("v_lshlrev_b32 v3, 4, v1")
    A("v_readfirstlane_b32 s3, v44")
    A("v_bfe_u32 v45, v1, 2, 2")
    A("v_lshrrev_b32 v46, 4, v1")
    A("v_and_b32 v47, 3, v1")
    A("v_lshlrev_b32 v2, 8, v45")
    A("v_lshl_add_u32 v2, v46, 6, v2")
    A("v_lshl_add_u32 v2, v47, 4, v2")
    A("v_add_u32 v244, 4096, v2")
    A("s_lshr_b32 s77, s2, 3"); A("s_and_b32 s76, s77, 7"); A("s_and_b32 s73, s2, 7"); A("s_lshr_b32 s78, s2, 6")
    A("s_lshl3_add_u32 s79, s78, s73")
    A("s_cmp_ge_u32 s76, 4"); A(f"s_cselect_b32 s67, {D0-D1}, 0"); A(f"s_sub_u32 s67, {D0}, s67")
    assert S0 - offT - offQ - LA >= 2 * (8 + 7 * NXT) and S0 - offQ - LA >= 2 * (8 + 7 * NX) and offT + offQ <= 64
    assert (S0 - LA) % 2 == 0 and offT % 2 == 0 and offQ % 2 == 0 and S0 * 256 <= L_END - L_S
    A(f"s_mul_i32 s59, s78, {8*S0-offT-2*offQ}"); A(f"s_mul_i32 s71, s73, {S0}"); A("s_add_u32 s59, s59, s71")
    if spread: A("s_mul_i32 s71, s78, s67"); A("s_add_u32 s59, s59, s71")
    A("s_cmp_ge_u32 s77, 28"); A(f"s_cselect_b32 s68, {offT-offF+offQ}, {offT+offQ}")
    A("s_cmp_eq_u32 s73, 0"); A("s_cselect_b32 s71, 0, s68"); A("s_cselect_b32 s70, s68, 0"); A("s_sub_u32 s59, s59, s71")
    A(f"s_cmp_gt_u32 s73, {X2}"); A(f"s_cselect_b32 s71, {offQ}, 0"); A("s_sub_u32 s59, s59, s71")
    A(f"s_cmp_eq_u32 s73, {X2}"); A(f"s_cselect_b32 s70, {offQ}, s70"); A("s_cselect_b32 s65, 1, 0")
    A(f"s_sub_u32 s70, {S0-LA}, s70")
    A("s_lshl_b32 s59, s59, 12"); A("s_lshl_b32 s70, s70, 12")
    if contig:
        A("s_cmp_eq_u32 s73, 0"); A(f"s_cselect_b32 s71, {NXT}, {NX}"); A("s_max_u32 s66, s3, 1"); A("s_sub_u32 s66, s66, 1"); A("s_mul_i32 s66, s66, s71"); A("s_add_u32 s66, s66, s3")
        A("s_lshl_b32 s66, s66, 13"); A("s_add_u32 s66, s66, s59")
    else:
        A("s_lshl_b32 s66, s3, 13"); A("s_add_u32 s66, s66, s59")
    XS = 1 if contig else 7
    A("s_lshl_b32 s71, s76, 24")
    A(f"s_mov_b32 s30, {OOB}"); A("s_mov_b32 s31, 0x20000"); A(f"s_mov_b32 s34, {OOB}"); A("s_mov_b32 s35, 0x20000")
    A(f"s_cmp_lg_u32 s70, {(S0-LA)*4096}")
    A("s_cbranch_scc1 L_qprod")
    A("s_waitcnt lgkmcnt(0)")
    A("s_add_u32 s28, s6, s71"); A("s_addc_u32 s29, s7, 0")
    A("s_add_u32 s32, s8, s71"); A("s_addc_u32 s33, s9, 0")
    if rot: A(f"s_mul_i32 s8, s76, {rot*4096}")
    A("s_load_dword s52, s[26:27], 0")
    A("s_cmp_eq_u32 s3, 0")
    A("s_cbranch_scc1 L_w0")
    if wpf:
        A(f"s_cmp_gt_u32 s73, {X2}"); A("s_subb_u32 s73, s73, 1"); A("s_mul_i32 s68, s77, 6"); A("s_add_u32 s73, s73, s68")
        A("s_mul_i32 s73, s73, 7"); A("s_add_u32 s73, s73, s3"); A("s_sub_u32 s73, s73, 1"); A("s_lshl_b32 s73, s73, 10")
        A("v_add_u32 v48, s73, v3")
        for k in range(1, 4): A(f"v_add_u32 v{48+k}, {k*1344*1024}, v48")
        n = 0
        for (lo, size) in ((12, 4 << 20), (16, 512 * 3584), (18, 512 * 3584), (20, 1792 * 1024)):
            d = 40 + 4 * (n & 1); n += 1
            srd(d, lo, lo + 1, size)
            for k in range(4 if lo == 12 else 2):
                A(f"buffer_load_dwordx4 v[{RA}:{RA+3}], v{48+k}, s[{d}:{d+3}], 0 offen")
    A.label("L_ring")
    if W: thr[0] = 0
    unitK(RA, 66)
    A(f"s_add_u32 s68, s66, {XS*8192}")
    for k in range(NX):
        if k == NXT:
            A("s_and_b32 s71, s2, 7"); A("s_cbranch_scc0 L_ringe")
        unitK(RX + 32 * k, 68)
        if k < NX - 1: A(f"s_add_u32 s68, s68, {XS*8192}")
    A.label("L_ringe")
    thr[0] = None
    srd(48, 4, 5, 1024)
    srd(36, 26, 27, WS_END)
    common_setup()
    A("s_waitcnt lgkmcnt(0)")
    tags()
    stamp(1)
    A("s_barrier")
    A("s_branch L_qj")
    A.label("L_qprod")
    A("v_lshrrev_b32 v44, 3, v1"); A("v_and_b32 v45, 7, v1")
    A("v_lshlrev_b32 v50, 16, v44")
    A("v_lshl_add_u32 v50, v45, 4, v50")
    A("v_lshlrev_b32 v51, 4, v44")
    A("s_lshl1_add_u32 s69, s78, s65"); A("s_lshl3_add_u32 s69, s76, s69")
    A("s_lshl_b32 s68, s69, 7"); A("s_lshl_b32 s73, s3, 19"); A("s_add_u32 s68, s68, s73")
    A("s_lshl_b32 s73, s3, 7")
    A("s_mov_b32 s50, 1024"); A("s_mov_b32 s51, 0x20000"); A(f"s_mov_b32 s42, {4<<20}"); A("s_mov_b32 s43, 0x20000")
    for i in range(1, 8): A(f"v_add_u32 v{35+i}, {8192*i}, v50")
    A("s_waitcnt lgkmcnt(0)")
    A("s_mov_b32 s48, s4"); A("s_mov_b32 s49, s5"); A("s_mov_b32 s40, s10"); A("s_mov_b32 s41, s11")
    A("buffer_load_dwordx4 v[52:55], v3, s[48:51], 0 offen")
    A("buffer_load_dwordx4 v[32:35], v51, s[48:51], s73 offen")
    for i in range(8):
        va = 50 if i == 0 else 35 + i
        A(f"buffer_load_dwordx4 v[{RA+4*i}:{RA+4*i+3}], v{va}, s[40:43], s68 offen {wf}")
    A("s_load_dword s52, s[26:27], 0")
    A("s_add_u32 s28, s6, s71"); A("s_addc_u32 s29, s7, 0")
    A("s_add_u32 s32, s8, s71"); A("s_addc_u32 s33, s9, 0")
    if rot: A(f"s_mul_i32 s8, s76, {rot*4096}")
    A("s_cmp_lg_u32 s3, 0"); A("s_cbranch_scc1 L_nz")
    A("s_cmp_lg_u32 s65, 0"); A("s_cbranch_scc1 L_nz")
    A(f"s_mul_i32 s73, s77, {cstride}"); A(f"s_add_u32 s73, s73, {CBUF}")
    A("v_mov_b32 v49, s73"); A("v_mov_b32 v48, 0")
    A("s_mov_b64 exec, 1")
    A("global_store_dword v49, v48, s[26:27] sc1")
    A("s_mov_b64 exec, -1")
    A.label("L_nz")
    A("v_lshrrev_b32 v49, 5, v1"); A("v_and_b32 v44, 1, v46")
    A("v_lshlrev_b32 v48, 8, v49"); A("v_lshl_add_u32 v48, v45, 5, v48"); A("v_lshl_add_u32 v48, v44, 4, v48")
    A("s_lshl_b32 s73, s3, 9"); A("v_add_u32 v48, s73, v48")
    common_setup()
    k32masks(6)
    if qprof: A("s_memrealtime s[90:91]")
    A("s_waitcnt vmcnt(8)")
    if qprof: A("s_memrealtime s[92:93]")
    for k in range(4):
        A(f"v_lshlrev_b32 v{36+2*k}, 16, v{52+k}")
        A(f"v_and_b32 v{37+2*k}, 0xffff0000, v{52+k}")
    for k in range(4):
        A(f"v_lshlrev_b32 v{20+2*k}, 16, v{32+k}")
        A(f"v_and_b32 v{21+2*k}, 0xffff0000, v{32+k}")
    ln_stats(list(range(36, 44)), 44, 45, 51)
    for k in range(8): A(f"v_sub_f32 v{20+k}, v{20+k}, v44")
    for k in range(8): rbf(20 + k, 20 + k)
    for k in range(8): A(f"v_mul_f32 v{20+k}, v{20+k}, v45")
    for k in range(8): A(f"v_cvt_pk_bf16_f32 v{20+k}, v{20+k}, v{20+k}")
    for i in range(8):
        for r in range(4): A(f"v_and_b32 v{RX+4*i+r}, v{20+i}, v{6+r}")
    A("s_waitcnt vmcnt(0)")
    if qprof: A("s_memrealtime s[98:99]")
    for i in range(8):
        c = "0" if i == 0 else "v[28:31]"
        A(f"v_mfma_f32_16x16x32_bf16 v[28:31], v[{RX+4*i}:{RX+4*i+3}], v[{RA+4*i}:{RA+4*i+3}], {c}")
    A("s_mov_b32 exec_lo, 0x00ff00ff"); A("s_mov_b32 exec_hi, 0xff00ff00")
    A(f"ds_write_b128 v48, v[28:31] offset:{L_RED}")
    A("s_mov_b64 exec, -1")
    A("s_waitcnt lgkmcnt(0)")
    A("s_barrier")
    A("s_cmp_lg_u32 s3, 0")
    A("s_cbranch_scc1 L_ringb" if qhold else "s_cbranch_scc1 L_ring")
    A("s_setprio 3")
    A("v_and_b32 v50, 15, v1"); A("v_lshlrev_b32 v49, 10, v46"); A("v_lshl_add_u32 v49, v50, 4, v49")
    for k in range(4): A(f"ds_read_b128 v[{20+4*k}:{23+4*k}], v49 offset:{L_RED+256*k}")
    srd(36, 26, 27, WS_END)
    tags()
    A("v_and_b32 v45, 1, v46"); A("v_lshlrev_b32 v45, 1, v45"); A("v_lshrrev_b32 v44, 1, v46"); A("v_or_b32 v45, v45, v44")
    A("v_lshl_add_u32 v45, v50, 2, v45"); A("v_lshlrev_b32 v45, 2, v45")
    A("v_mov_b32 v49, s57"); A("v_mov_b32 v51, s58")
    A("v_cmp_eq_u32 vcc, 0, v44")
    A("v_cndmask_b32 v49, v51, v49, vcc")
    A("s_lshl_b32 s71, s69, 8"); A(f"s_add_u32 s71, s71, {QBUF}")
    A("s_waitcnt lgkmcnt(0)")
    sum4x4()
    rbf(20, 20)
    A("v_or_b32 v20, v20, v49")
    A("buffer_store_dword v20, v45, s[36:39], s71 offen sc1")
    stamp(2)
    if qhold: A("s_barrier")
    if qprof: A("s_waitcnt vmcnt(0)"); A("s_memrealtime s[96:97]")
    A("s_branch L_w0b")
    if qhold:
        A.label("L_ringb")
        A("s_barrier")
        A("s_branch L_ring")
    A.label("L_w0")
    A("s_setprio 3")
    srd(48, 4, 5, 1024)
    srd(36, 26, 27, WS_END)
    common_setup()
    A("s_waitcnt lgkmcnt(0)")
    tags()
    A.label("L_w0b")
    A("s_and_b32 s71, s2, 7"); A(f"s_cselect_b32 s71, {8+7*NX}, {8+7*NXT}"); A("s_lshl_b32 s71, s71, 13")
    A(f"v_mov_b32 v52, {L_TK}"); A("v_mov_b32 v48, s71")
    A("ds_write_b32 v52, v48")
    for r in range(4): A(f"v_mov_b32 v{24+r}, -1")
    A("s_lshl_b32 s71, s76, 15"); A("s_lshl_b32 s73, s79, 10"); A("s_add_u32 s71, s71, s73"); A(f"s_add_u32 s71, s71, {OBUF}")
    A("buffer_store_dwordx4 v[24:27], v3, s[36:39], s71 offen sc1")
    A(f"ds_write_b128 v3, v[24:27] offset:{L_TB}")
    A(f"ds_write_b128 v3, v[24:27] offset:{L_TB+1024}")
    A("s_add_u32 s73, s59, s70")
    A("v_lshlrev_b32 v28, 12, v1"); A("v_add_u32 v28, s73, v28"); A("v_lshlrev_b32 v29, 2, v1")
    A("v_cmp_eq_u32 vcc, 0, v1"); A("v_addc_co_u32 v28, vcc, 0, v28, vcc")
    A(f"s_mov_b64 exec, {(1 << LA) - 1}")
    A(f"ds_write_b32 v29, v28 offset:{L_TB}")
    A("s_mov_b64 exec, -1")
    A("v_lshlrev_b32 v44, 1, v2")
    A("s_lshl_b32 s71, s76, 11"); A(f"s_add_u32 s71, s71, {QBUF}")
    A("s_add_u32 s14, s26, s71"); A("s_addc_u32 s15, s27, 0")
    A.label("L_qhint")
    for k in range(8): A(f"s_load_dword s{40+k}, s[14:15], {256*k} glc")
    A("s_waitcnt lgkmcnt(0)")
    for k in range(8): A(f"s_xor_b32 s{40+k}, s{40+k}, s57")
    for k in range(1, 8): A(f"s_or_b32 s40, s40, s{40+k}")
    A("s_and_b32 s40, s40, 0xffff")
    A("s_cbranch_scc0 L_qpoll")
    spin("L_qhint", qslp)
    A.label("L_qpoll")
    if qprof: A("s_memrealtime s[94:95]")
    A("buffer_load_dwordx4 v[20:23], v44, s[36:39], s71 offen sc1")
    A("buffer_load_dwordx4 v[24:27], v44, s[36:39], s71 offen offset:16 sc1")
    A("s_mov_b32 s73, 0x07060302")
    A("s_waitcnt vmcnt(0)")
    for e in range(8): A(f"v_xor_b32 v{20+e}, s{57+(e&1)}, v{20+e}")
    A("v_or3_b32 v45, v20, v21, v22"); A("v_or3_b32 v45, v45, v23, v24"); A("v_or3_b32 v45, v45, v25, v26"); A("v_or_b32 v45, v45, v27")
    A("v_and_b32 v45, 0xffff, v45")
    A("v_cmp_ne_u32 vcc, 0, v45")
    A("s_cbranch_vccz L_q_ok")
    spin("L_qpoll")
    A.label("L_q_ok")
    for k in range(4): A(f"v_perm_b32 v{6+k}, v{21+2*k}, v{20+2*k}, s73")
    A(f"ds_write_b128 v3, v[6:9] offset:{L_QF}")
    A("s_waitcnt lgkmcnt(0)")
    stamp(1)
    A("s_barrier")
    unitK(RA, 66)
    A("s_setprio 0")
    A.label("L_qj")
    A(f"ds_read_b128 v[6:9], v3 offset:{L_QF}")
    A(f"v_mov_b32 v52, {L_TK}"); A("v_mov_b32 v53, 8192")
    A("s_mov_b32 s69, 3"); A("s_mov_b32 s11, 0"); A("s_lshl_b32 s10, s70, 1")
    A("v_add_u32 v245, 4096, v3")
    A("s_lshr_b32 s71, s59, 4"); A(f"s_sub_u32 s71, {L_S}, s71"); A("v_lshl_add_u32 v246, v1, 2, s71")
    if trace: A("s_mov_b32 s98, 0"); A("v_mov_b32 v244, 0")
    A(f"s_mul_i32 s58, s77, {cstride}"); A(f"s_add_u32 s58, s58, {CBUF}")
    if spread:
        A(f"s_add_u32 s57, s67, {8*S0-offT-2*offQ}"); A("s_add_u32 s71, s78, 1"); A("s_mul_i32 s57, s57, s71")
        A("s_cmp_eq_u32 s78, 3"); A("s_cselect_b32 s57, 4096, s57"); A("s_sub_u32 s57, s57, s67"); A("s_lshl_b32 s57, s57, 12")
    else:
        A("s_sub_u32 s57, 4, s78"); A("s_mul_i32 s57, s57, s67"); A("s_sub_u32 s57, 4096, s57"); A("s_lshl_b32 s57, s57, 12")
    if ew < 8:
        A(f"s_sub_u32 s101, s67, {ewx}"); A("s_lshl_b32 s101, s101, 12"); A("s_add_u32 s101, s101, s57")
        A(f"s_cmp_ge_u32 s3, {ew}"); A("s_cselect_b32 s101, s101, -1")
    stamp(3)
    if aw < 8:
        A(f"s_cmp_lt_u32 s3, {aw}")
        A("s_cbranch_scc1 L_k")
        A("s_mov_b32 s11, 5")
        A("s_lshr_b32 s73, s66, 4"); A("v_add_u32 v48, s73, v246")
        A("s_waitcnt vmcnt(0) lgkmcnt(0)")
        for hf in range(2):
            qk(RA + 16 * hf); extract(); keep(256 * hf)
        A("s_branch L_first")
    A.label("L_k")
    draw()
    A("s_lshr_b32 s73, s66, 4"); A("v_add_u32 v48, s73, v246")
    A("s_waitcnt vmcnt(4) lgkmcnt(0)")
    A("v_readfirstlane_b32 s71, v54")
    qk(RA)
    A("s_add_u32 s66, s71, s59")
    A("s_cmp_ge_u32 s71, s70")
    A("s_cbranch_scc1 L_k2v0")
    ld4(RA, 2, 28, 66, kf)
    A.label("L_k0r")
    extract(); keep(0)
    A("s_waitcnt vmcnt(4)")
    qk(RA + 16)
    A("s_cmp_lg_u32 s11, 0")
    A("s_cbranch_scc1 L_k2v1")
    ld4(RA + 16, 244, 28, 66, kf)
    A.label("L_k1r")
    extract(); keep(256)
    A("s_cmp_eq_u32 s69, 3")
    A("s_cbranch_scc1 L_first")
    A.label("L_kn")
    A("s_cmp_eq_u32 s11, 0")
    A("s_cbranch_scc1 L_k")
    quad_all(18, "v_max_f32")
    rows_all(18, 49, "v_max_f32")
    A(f"ds_write_b32 v{TC+2}, v18 offset:{L_MX2}")
    if wsplit:
        A("s_cmp_lg_u32 s69, 0")
        A("s_cbranch_scc1 L_setup2")
        A.label("L_s2r")
    A(f"v_and_b32 v49, 0x60, v{TC+2}")
    A("s_waitcnt lgkmcnt(0)")
    A("s_barrier")
    A(f"ds_read_b128 v[20:23], v49 offset:{L_MX2}")
    A(f"ds_read_b128 v[24:27], v49 offset:{L_MX2+16}")
    A("s_waitcnt lgkmcnt(0)")
    A("v_max3_f32 v18, v20, v21, v22"); A("v_max3_f32 v18, v18, v23, v24"); A("v_max3_f32 v18, v18, v25, v26"); A("v_max_f32 v18, v18, v27")
    if warm:
        A(f"s_cmp_lg_u32 s3, {wwave}")
        A("s_cbranch_scc1 L_v")
        A("s_mov_b32 s11, 4")
        A("s_mov_b64 exec, 0")
        A("s_branch L_wp0")
        A.label("L_wret")
        A("s_cmp_lg_u32 s11, 4")
        A("s_cbranch_scc1 L_exit")
        A("s_mov_b32 s11, 1")
        A("s_mov_b64 exec, -1")
    if aw < 8:
        A("s_cmp_eq_u32 s11, 5")
        A("s_cbranch_scc1 L_done")
    A.label("L_v")
    draw()
    A("s_lshr_b32 s73, s66, 4"); A("v_add_u32 v48, s73, v246")
    A("ds_read2_b32 v[20:21], v48 offset0:0 offset1:64")
    A("s_waitcnt lgkmcnt(0)")
    A("v_readfirstlane_b32 s71, v54")
    pfrag(20)
    A("s_waitcnt vmcnt(4)")
    pv(RA)
    A("s_add_u32 s66, s71, s59"); A("s_sub_u32 s66, s66, s70")
    A("s_cmp_ge_u32 s71, s10")
    A("s_cbranch_scc1 L_v2c")
    ld4(RA, 3, 32, 66, vf)
    pfrag(21)
    A("s_waitcnt vmcnt(4)")
    pv(RA + 16)
    ld4(RA + 16, 245, 32, 66, vf)
    A("s_branch L_v")
    A.label("L_k2v0")
    A("s_sub_u32 s66, s66, s70"); A("s_mov_b32 s11, 1")
    ld4(RA, 3, 32, 66, vf)
    A("s_branch L_k0r")
    A.label("L_k2v1")
    ld4(RA + 16, 245, 32, 66, vf)
    A("s_branch L_k1r")
    A.label("L_v2c")
    A("s_mov_b32 s11, 2")
    A("s_branch L_dyn")
    A.label("L_vc0")
    A("s_mov_b32 s11, 3")
    ld4(RA, 2, 28, 66, kf)
    pfrag(21)
    A("s_waitcnt vmcnt(4)")
    pv(RA + 16)
    ld4(RA + 16, 3, 32, 66, vf)
    A("s_cmp_ge_u32 s66, s30")
    A("s_cbranch_scc1 L_done")
    def softmax(tag):
        extract()
        A("v_cmp_gt_f32 vcc, v44, v18")
        A(f"s_cbranch_vccz L_nors{tag}")
        A("v_max_f32 v45, v44, v18")
        quad_all(45, "v_max_f32")
        rows_all(45, 46, "v_max_f32")
        A("v_sub_f32 v46, v18, v45")
        A("v_exp_f32 v46, v46")
        A("v_mov_b32 v18, v45")
        A("v_mul_f32 v19, v19, v46")
        for h in range(4): A(f"v_mov_b32_dpp v47, v46 row_newbcast:{4*h} row_mask:{hex(1<<h)} bank_mask:0xf")
        for r in range(10, 18): A(f"v_mul_f32 v{r}, v{r}, v47")
        A.label(f"L_nors{tag}")
        pfrag(44)
    def cbody(tag, mode, vcur, vnext, last):
        A.label(f"L_loop{tag}")
        draw()
        A(f"s_mov_b32 s11, {mode}")
        A("s_waitcnt lgkmcnt(0)")
        A("v_readfirstlane_b32 s71, v54")
        A("s_branch L_dyn")
        A.label(f"L_gox{tag}")
        A("s_waitcnt vmcnt(4)")
        qk(RA)
        A(f"s_branch L_goy{tag}")
        A.label(f"L_go{tag}")
        A("s_waitcnt vmcnt(4)")
        qk(RA)
        ld4(RA, 2, 28, 66, kf)
        if vnext != vcur: ld4(vnext, 3, 32, 66, vf)
        A.label(f"L_goy{tag}")
        A("s_nop 4")
        softmax(tag)
        A("s_cmp_ge_u32 s66, s30")
        A(f"s_cbranch_scc1 {last}")
        A(f"s_waitcnt vmcnt({4 if vnext == vcur else 8})")
        pv(vcur)
        if vnext == vcur: ld4(vcur, 3, 32, 66, vf)
    if dv:
        A("s_cmp_eq_u32 s69, 0")
        A("s_cbranch_scc1 L_loopa")
    cbody("", 3, RA + 16, RA + 16, "L_last")
    A("s_branch L_loop")
    if dv:
        cbody("a", 6, RA + 16, RX, "L_last")
        cbody("b", 7, RX, RA + 16, "L_lastb")
        A("s_branch L_loopa")
    A.label("L_first")
    A("s_mov_b32 s69, 0")
    A("s_cmp_eq_u32 s3, 0")
    A("s_cbranch_scc1 L_setup")
    A("s_waitcnt vmcnt(8)")
    for k in range(NX):
        if k == NXT:
            A("s_and_b32 s71, s2, 7"); A("s_cbranch_scc0 L_setup")
        for hf in range(2):
            qk(RX + 32 * k + 16 * hf); extract(); keep((XS + XS * k) * 512 + 256 * hf)
    A.label("L_setup")
    A("v_lshrrev_b32 v46, 4, v1"); A("v_and_b32 v47, 3, v1"); A("v_bfe_u32 v45, v1, 2, 2"); A("v_and_b32 v50, 15, v1")
    A("v_and_b32 v48, 1, v46"); A("v_lshlrev_b32 v48, 1, v48"); A("v_lshrrev_b32 v49, 1, v46"); A("v_or_b32 v48, v48, v49")
    A("s_lshl_b32 s71, s3, 11"); A(f"v_lshlrev_b32 v{TC}, 5, v1"); A(f"v_add_u32 v{TC}, s71, v{TC}")
    A("s_lshl_b32 s71, s3, 3"); A(f"v_lshlrev_b32 v{TC+1}, 6, v45"); A(f"v_add_u32 v{TC+1}, s71, v{TC+1}")
    A(f"v_lshrrev_b32 v{TC+2}, 1, v{TC+1}")
    A("s_lshl_b32 s71, s3, 8"); A(f"v_lshlrev_b32 v{TC+3}, 12, v46"); A(f"v_lshl_add_u32 v{TC+3}, v50, 4, v{TC+3}"); A(f"v_add_u32 v{TC+3}, s71, v{TC+3}")
    A("s_lshr_b32 s71, s3, 1"); A("s_lshl_b32 s73, s71, 6"); A(f"v_lshlrev_b32 v{TC+4}, 4, v46"); A(f"v_add_u32 v{TC+4}, s73, v{TC+4}")
    A("s_lshl_b32 s73, s71, 5"); A(f"v_mov_b32 v{TC+5}, s73")
    A(f"v_lshl_add_u32 v{TC+6}, v50, 2, v48"); A(f"v_lshlrev_b32 v{TC+6}, 1, v{TC+6}")
    A("s_lshl_b32 s0, s76, 15"); A("s_lshl_b32 s73, s79, 10"); A("s_add_u32 s0, s0, s73")
    A("s_lshl_b32 s73, s3, 7"); A("s_add_u32 s0, s0, s73"); A(f"s_add_u32 s0, s0, {OBUF}")
    A("s_lshr_b32 s73, s3, 1"); A("s_lshl2_add_u32 s1, s76, s73"); A("s_lshl_b32 s1, s1, 5"); A("s_add_u32 s1, s1, s79")
    A(f"s_lshl_b32 s1, s1, {mlsh}"); A(f"s_add_u32 s1, s1, {MLBUF}")
    A(f"v_lshlrev_b32 v{TC+10}, 1, v1")
    if opre is not None:
        A(f"buffer_load_dword v44, v{TC+10}, s[36:39], s0 offen {opre}")
        A("s_mov_b64 exec, 1")
        A(f"buffer_load_dword v45, v3, s[36:39], s1 offen {opre}")
        A("s_mov_b64 exec, -1")
        A("s_waitcnt vmcnt(0)")
    if tlbpf:
        A("s_cmp_lg_u32 s3, 0"); A("s_cbranch_scc1 L_notlb")
        A(f"v_lshlrev_b32 v44, {tlbpf}, v1")
        A(f"s_mov_b64 exec, {(1 << ((1 << (20 - tlbpf)) + 1)) - 1}")
        A("buffer_load_dword v245, v44, s[28:31], s57 offen nt")
        A("buffer_load_dword v246, v44, s[32:35], s57 offen nt")
        A("s_mov_b64 exec, -1")
        A.label("L_notlb")
    A("s_and_b32 s71, s2, 7")
    A("s_cbranch_scc1 L_kn")
    A("s_mov_b32 s69, 2")
    A("s_getreg_b32 s78, hwreg(HW_REG_XCC_ID, 0, 4)"); A("s_lshl_b32 s78, s78, 8")
    A("s_cmp_lg_u32 s3, 0"); A("s_cbranch_scc1 L_nox")
    for r in range(4): A(f"v_mov_b32 v{24+r}, -1")
    A("s_cmp_ge_u32 s77, 28"); A("s_cselect_b32 s71, 0, -1")
    for r in range(4): A(f"v_mov_b32 v{28+r}, s71")
    A("s_lshl_b32 s71, s77, 11"); A(f"s_add_u32 s71, s71, {YBUF}")
    A("buffer_store_dwordx4 v[28:31], v3, s[36:39], s71 offen sc1")
    A("buffer_store_dwordx4 v[28:31], v3, s[36:39], s71 offen offset:1024 sc1")
    A("s_lshl_b32 s71, s77, 9"); A(f"s_add_u32 s71, s71, {HBUF}")
    A("s_mov_b32 exec_hi, 0")
    A("buffer_store_dwordx4 v[24:27], v3, s[36:39], s71 offen sc1")
    A("s_mov_b32 exec_hi, -1")
    A("s_waitcnt vmcnt(0)")
    A("s_or_b32 s71, s78, s53")
    A("v_mov_b32 v20, s71"); A("v_mov_b32 v21, s54"); A("v_mov_b32 v22, s55"); A("v_mov_b32 v23, s56")

    A("s_lshl_b32 s71, s77, 4"); A(f"s_add_u32 s71, s71, {XBUF}")
    A("s_mov_b64 exec, 1")
    A("buffer_store_dwordx4 v[20:23], v3, s[36:39], s71 offen sc1")
    A("s_mov_b64 exec, -1")
    A.label("L_nox")
    if gupf:
        A("s_lshl3_add_u32 s71, s77, s3"); A("s_mul_i32 s71, s71, 7168"); A("s_add_u32 s73, s71, 4096")
        for d, lo in ((40, 16), (44, 18)):
            srd(d, lo, lo + 1, 512 * 3584)
            for k in range(7):
                A(f"buffer_load_dwordx4 v[{WGU}:{WGU+3}], v3, s[{d}:{d+3}], s{71 if k < 4 else 73} offen offset:{1024*(k&3)}")
    srd(40, 12, 13, 4 << 20)
    A("s_lshr_b32 s68, s77, 1")
    A("s_lshl_b32 s71, s68, 18"); A("s_lshr_b32 s73, s3, 1"); A("s_lshl_b32 s73, s73, 16"); A("s_add_u32 s71, s71, s73")
    A("s_and_b32 s73, s3, 1"); A("s_lshl_b32 s73, s73, 10"); A("s_add_u32 s71, s71, s73")
    A("s_and_b32 s73, s77, 1"); A("s_lshl_b32 s73, s73, 9"); A("s_add_u32 s71, s71, s73")
    A("v_and_b32 v45, 1, v46"); A("v_lshlrev_b32 v45, 15, v45"); A("v_lshl_add_u32 v45, v49, 13, v45")
    A("v_lshlrev_b32 v44, 4, v50"); A("v_add_u32 v45, v45, v44"); A("v_lshl_add_u32 v44, v48, 11, v44")
    for jh in range(2):
        for half in range(2):
            for jl in range(2):
                for c2 in range(2):
                    r = WO + 8 * (4 * c2 + 2 * jh + jl) + 4 * half
                    A(f"buffer_load_dwordx4 v[{r}:{r+3}], v45, s[40:43], s71 offen offset:{2048*jl+256*c2} {wf}")
            if (jh, half) != (1, 1): A(f"s_add_u32 s71, s71, {4096 if half == 0 else 16384-4096}")
    A("v_and_b32 v51, 7, v1"); A("v_bfe_u32 v49, v1, 3, 1")
    A(f"v_lshl_add_u32 v{TC+25}, v48, 1, v49"); A(f"v_lshl_add_u32 v{TC+25}, v51, 3, v{TC+25}")
    A("s_lshl_b32 s71, s3, 6"); A(f"v_add_lshl_u32 v{TC+25}, v{TC+25}, s71, 1")
    A(f"buffer_load_ushort v{TC+13}, v{TC+25}, s[48:51], 0 offen")
    A("v_and_b32 v51, 7, v1"); A("v_and_b32 v45, 1, v46"); A("v_lshrrev_b32 v49, 5, v1")
    A(f"v_lshrrev_b32 v{TC+9}, 2, v1")
    A(f"v_lshlrev_b32 v{TC+8}, 11, v{TC+9}"); A(f"v_lshl_add_u32 v{TC+8}, v47, 4, v{TC+8}")
    A(f"v_and_b32 v{TC+7}, 1, v1"); A(f"v_lshl_add_u32 v{TC+9}, v{TC+9}, 1, v{TC+7}"); A(f"v_lshlrev_b32 v{TC+9}, {mlsh}, v{TC+9}")
    A(f"v_lshlrev_b32 v{TC+24}, 4, v45"); A(f"v_lshl_add_u32 v{TC+24}, v50, 5, v{TC+24}")
    A(f"v_lshl_add_u32 v{TC+11}, v49, 9, v{TC+24}"); A("s_lshl_b32 s71, s3, 10"); A(f"v_add_u32 v{TC+11}, s71, v{TC+11}")
    A(f"v_lshrrev_b32 v{TC+24}, 1, v{TC+24}")
    A(f"v_lshrrev_b32 v{TC+14}, 3, v1"); A(f"v_lshlrev_b32 v{TC+14}, 10, v{TC+14}"); A(f"v_lshl_add_u32 v{TC+14}, v51, 4, v{TC+14}")
    A(f"v_lshrrev_b32 v{TC+12}, 3, v1"); A(f"v_lshlrev_b32 v{TC+12}, 10, v{TC+12}"); A(f"v_lshl_add_u32 v{TC+12}, v51, 4, v{TC+12}"); A("s_lshl_b32 s71, s3, 7"); A(f"v_add_u32 v{TC+12}, s71, v{TC+12}")
    A("s_lshl_b32 s71, s3, 4"); A(f"v_lshlrev_b32 v{TC+20}, 3, v49"); A(f"v_add_u32 v{TC+20}, s71, v{TC+20}"); A(f"v_lshlrev_b32 v{TC+21}, 4, v51")
    A("v_bfe_u32 v49, v1, 3, 1")
    A(f"v_lshlrev_b32 v{TC+23}, 11, v46"); A(f"v_lshl_add_u32 v{TC+23}, v49, 8, v{TC+23}"); A(f"v_lshl_add_u32 v{TC+23}, v51, 4, v{TC+23}")
    A("s_lshr_b32 s71, s3, 2"); A("s_lshl_b32 s71, s71, 7"); A(f"v_add_u32 v{TC+23}, s71, v{TC+23}")
    A("s_lshl_b32 s71, s3, 13"); A(f"s_add_u32 s71, s71, {L_WD}"); A(f"v_add_u32 v{TC+26}, s71, v3")
    A("s_mov_b32 m0, s71")
    A(f"v_lshrrev_b32 v{TC+22}, 1, v1"); A(f"v_lshlrev_b32 v{TC+22}, 10, v{TC+22}"); A("v_and_b32 v45, 1, v1"); A(f"v_lshl_add_u32 v{TC+22}, v45, 4, v{TC+22}")
    srd(44, 22, 23, 1024)
    if wsplit:
        A("s_branch L_kn")
        A.label("L_setup2")
        A("v_lshrrev_b32 v46, 4, v1"); A("v_and_b32 v50, 15, v1"); A("v_and_b32 v51, 7, v1")
        A("v_and_b32 v48, 1, v46"); A("v_lshlrev_b32 v48, 1, v48"); A("v_lshrrev_b32 v49, 1, v46"); A("v_or_b32 v48, v48, v49")
        A("v_lshlrev_b32 v44, 4, v50"); A("v_lshl_add_u32 v44, v48, 11, v44"); A("v_bfe_u32 v49, v1, 3, 1")
    A("s_cmp_ge_u32 s77, 28")
    A("s_cbranch_scc1 L_suj")
    A("s_mov_b32 s69, 1")
    A("s_lshl_b32 s71, s3, 6"); A("v_lshl_add_u32 v45, v48, 2, s71")
    A("v_mul_u32_u24 v45, 3584, v45"); A("v_lshl_add_u32 v45, v51, 4, v45"); A("s_lshl_b32 s71, s77, 7"); A("v_add_u32 v45, s71, v45")
    A("v_cmp_eq_u32 vcc, 0, v49")
    A("v_mov_b32 v20, s16"); A("v_mov_b32 v21, s18"); A("v_cndmask_b32 v20, v21, v20, vcc")
    A("v_mov_b32 v21, s17"); A("v_mov_b32 v22, s19"); A("v_cndmask_b32 v21, v22, v21, vcc")
    A("v_add_co_u32 v20, vcc, v20, v45"); A("v_addc_co_u32 v21, vcc, 0, v21, vcc")
    srd(40, 20, 21, 1792 * 1024)
    A("s_lshl_b32 s71, s77, 16"); A("s_lshr_b32 s73, s3, 2"); A("s_lshl_b32 s73, s73, 15"); A("s_add_u32 s71, s71, s73")
    A("s_and_b32 s73, s3, 3"); A("s_lshl_b32 s73, s73, 8"); A("s_add_u32 s71, s71, s73")
    for i in range(8):
        A(f"buffer_load_dwordx4 v44, s[40:43], s71 offen {wf} lds")
        if i < 7: A(f"s_add_u32 s71, s71, {1024 if i % 2 == 0 else 7168}"); A("s_add_u32 m0, m0, 1024")
    if gupf: A("s_waitcnt vmcnt(24)")
    for j in range(4):
        for half in range(2):
            for v in range(2):
                r = WGU + 8 * (4 * v + j) + 4 * half
                A(f"global_load_dwordx4 v[{r}:{r+3}], v[20:21], off offset:{3584*v} {'' if gupf else wf}")
            if (j, half) != (3, 1): A(f"v_add_co_u32 v20, vcc, {(2 if half == 0 else 14)*3584}, v20"); A("v_addc_co_u32 v21, vcc, 0, v21, vcc")
    A.label("L_suj")
    A("s_lshl_b32 s22, s77, 5"); A(f"s_add_u32 s22, s22, {YBUF}")
    A("s_add_u32 s23, s22, 32768")
    A("s_lshl_b32 s24, s3, 7"); A(f"s_add_u32 s24, s24, {HBUF}"); A("s_add_u32 s25, s24, 8192")
    A("s_lshr_b32 s16, s68, 1"); A("s_lshl_b32 s16, s16, 15"); A("s_and_b32 s71, s68, 1"); A("s_lshl_b32 s71, s71, 9"); A("s_add_u32 s16, s16, s71")
    A("s_lshl_b32 s71, s3, 6"); A("s_add_u32 s16, s16, s71"); A(f"s_add_u32 s16, s16, {OBUF}")
    A("s_lshr_b32 s71, s3, 2"); A("s_lshl1_add_u32 s20, s68, s71"); A(f"s_lshl_b32 s20, s20, {5+mlsh}"); A(f"s_add_u32 s20, s20, {MLBUF}")
    A("s_lshl_b32 s21, s77, 9"); A("s_lshl_b32 s73, s3, 6"); A("s_add_u32 s21, s21, s73"); A(f"s_add_u32 s21, s21, {HBUF}")
    A("s_lshl_b32 s18, s77, 11"); A("s_lshl_b32 s71, s3, 8"); A("s_add_u32 s18, s18, s71"); A(f"s_add_u32 s18, s18, {YBUF}")
    A("s_lshr_b32 s68, s77, 2")
    A("s_branch L_s2r" if wsplit else "s_branch L_kn")

    A.label("L_dyn")
    A("s_sub_u32 s73, s71, s10"); A("s_lshr_b32 s73, s73, 11")
    A("v_mov_b32 v48, s73")
    A.label("L_dynw")
    A(f"ds_read_b32 v49, v48 offset:{L_TB}")
    A("s_waitcnt lgkmcnt(0)")
    A("v_readfirstlane_b32 s66, v49")
    A("s_cmp_lg_u32 s66, -1")
    A("s_cbranch_scc1 L_dyng")
    spin("L_dynw")
    A.label("L_dyng")
    if t1:
        A("s_cmp_eq_u32 s66, 2")
        A("s_cbranch_scc1 L_self")
    if skipoob:
        A("s_cmp_ge_u32 s66, s30")
        A("s_cbranch_scc1 L_dretx")
    if perm is None:
        A("s_bitcmp1_b32 s66, 0")
        A("s_cbranch_scc0 L_dret")
        A("s_and_b32 s66, s66, -2")
        A("s_max_u32 s71, s66, s57"); A("s_sub_u32 s71, s71, s57"); A("s_lshr_b32 s71, s71, 12"); A("s_sub_u32 s71, s67, s71")
    else:
        A("s_and_b32 s71, s66, 0xfff")
        A("s_and_b32 s66, s66, 0xfffff000")
        A("s_bitcmp1_b32 s71, 0")
        A("s_cbranch_scc0 L_dret")
        A("s_lshr_b32 s71, s71, 1"); A("s_sub_u32 s71, s67, s71")
    if tT:
        if tS:
            A(f"s_mul_i32 s14, s73, {sm}"); A("s_lshr_b32 s14, s14, 2"); A("s_add_u32 s14, s14, s71")
            A("s_cmp_lt_u32 s14, s67"); A(f"s_cselect_b32 s15, {tS}, 0")
            A("s_and_b32 s14, s2, 7"); A("s_cmp_eq_u32 s14, 2"); A("s_cselect_b32 s15, 0, s15")
            A("s_cmp_lg_u32 s14, 0"); A(f"s_cselect_b32 s14, s15, {tT}")
        else:
            A("s_and_b32 s14, s2, 7"); A(f"s_cselect_b32 s14, 0, {tT}")
        A("s_cmp_gt_u32 s71, s14")
        A("s_cbranch_scc1 L_dynt")
        A("v_lshl_add_u32 v48, v1, 2, v48")
        A("v_mov_b32 v51, s30")
        A(f"ds_write_b32 v48, v51 offset:{L_TB+4*LA}")
        A("s_branch L_dret")
        A.label("L_dynt")
    A(f"s_cmp_gt_u32 s71, {t4}"); A("s_cselect_b32 s15, 4, 2")
    A(f"s_cmp_gt_u32 s71, {t8}"); A(f"s_cselect_b32 s15, {b0}, s15")
    A("s_mov_b32 s14, s15")
    A("s_atomic_add s14, s[26:27], s58 glc")
    A("v_lshl_add_u32 v48, v1, 2, v48")
    A(f"s_sub_u32 s73, s15, {LA}")
    A("s_waitcnt lgkmcnt(0)")
    A("v_add_u32 v49, s14, v1")
    if perm is None:
        A("v_lshlrev_b32 v50, 12, v49"); A("v_add_u32 v50, s57, v50")
    else:
        lg = perm
        A(f"v_lshrrev_b32 v50, {lg}, v49"); A("v_bfrev_b32 v50, v50"); A(f"v_lshrrev_b32 v50, 24, v50")
        A(f"v_and_or_b32 v50, v49, {(1 << lg) - 1}, v50")
        A("v_cmp_gt_u32 vcc, 0x100, v49"); A("v_cndmask_b32 v50, v49, v50, vcc")
        A("v_lshlrev_b32 v50, 12, v50"); A("v_add_u32 v50, s57, v50"); A("v_lshl_add_u32 v50, v49, 1, v50")
    A("s_add_u32 s14, s14, s15")
    A("s_cmp_ge_u32 s14, s67")
    A("s_cbranch_scc1 L_dynx")
    if t1:
        A(f"s_add_u32 s14, s14, {t1}")
        A("s_cmp_ge_u32 s14, s67")
        A("s_cbranch_scc1 L_dyns")
    A("v_cmp_eq_u32 vcc, s73, v1"); A("v_addc_co_u32 v50, vcc, 0, v50, vcc")
    A("v_cmp_gt_u32 vcc, s15, v1")
    A("s_mov_b64 exec, vcc")
    A(f"ds_write_b32 v48, v50 offset:{L_TB+4*LA}")
    A("s_mov_b64 exec, -1")
    A("s_branch L_dret")
    A.label("L_dynx")
    A("v_mov_b32 v51, s30")
    A("v_cmp_gt_u32 vcc, s67, v49")
    A("v_cndmask_b32 v50, v51, v50, vcc")
    A(f"ds_write_b32 v48, v50 offset:{L_TB+4*LA}")
    A("s_branch L_dret")
    if t1:
        A.label("L_dyns")
        A("v_cmp_gt_u32 vcc, s15, v1")
        A("v_cndmask_b32 v50, 2, v50, vcc")
        A(f"ds_write_b32 v48, v50 offset:{L_TB+4*LA}")
        A("s_branch L_dret")
        A.label("L_self")
        A("s_mov_b32 s14, 1")
        A("s_atomic_add s14, s[26:27], s58 glc")
        A("v_lshl_add_u32 v48, v1, 2, v48")
        A("v_mov_b32 v51, s30")
        A("s_waitcnt lgkmcnt(0)")
        A("s_lshl_b32 s66, s14, 12"); A("s_add_u32 s66, s66, s57")
        A("s_cmp_lt_u32 s14, s67")
        A("s_cbranch_scc1 L_dret")
        A("s_mov_b32 s66, s30")
        A(f"ds_write_b32 v48, v51 offset:{L_TB+4}")
        A("s_branch L_dret")

    for sfx in ("", "x"):
        A.label(f"L_dret{sfx}")
        for mode, tag in ([(6, "a"), (7, "b")] if dv else []) + [(3, "")]:
            A(f"s_cmp_eq_u32 s11, {mode}")
            A(f"s_cbranch_scc1 L_go{sfx}{tag}")
        A("s_branch L_vc0")
    def lred():
        quad_all(19, "v_add_f32")
        A(f"ds_write_b32 v{TC+2}, v18 offset:{L_MX}")
        rows_all(19, 49, "v_add_f32")
        A(f"ds_write_b64 v{TC+1}, v[18:19] offset:{L_ML}")
    A.label("L_done")
    lred()
    if skipoob:
        A("s_branch L_done2")
        if dv:
            A.label("L_lastb")
            lred()
            A("s_waitcnt vmcnt(0)")
            pv(RX)
            A("s_branch L_done2")
        A.label("L_last")
        A(".warm_on")
        lred()
        A("s_waitcnt vmcnt(0)")
        if trace: tr()
        VB = RA + 16
        for j in range(4):
            A(f"v_mfma_f32_16x16x16_bf16 v[10:13], v[{36+2*j}:{37+2*j}], v[{VB+4*j}:{VB+4*j+1}], v[10:13]")
            A(f"v_mfma_f32_16x16x16_bf16 v[14:17], v[{36+2*j}:{37+2*j}], v[{VB+4*j+2}:{VB+4*j+3}], v[14:17]")
        A.label("L_done2")
    stamp(4)
    if trace:
        A("s_lshl_b32 s71, s2, 3"); A("s_add_u32 s71, s71, s3"); A("s_lshl_b32 s71, s71, 8"); A("s_add_u32 s71, s71, 0x200000")
        A("v_lshlrev_b32 v48, 2, v1"); A("v_add_u32 v48, s71, v48")
        A("global_store_dword v48, v244, s[26:27]")
    if cut == 1: A("s_branch L_end")
    A("s_mov_b32 s73, 0xffffff00"); A("s_mov_b32 s60, 0xfffefffe")
    A("v_mov_b32 v47, s53"); A("v_mov_b32 v48, s54"); A("v_mov_b32 v39, s56")
    A(f"ds_write_b128 v{TC}, v[10:13] offset:{L_OM}")
    A(f"ds_write_b128 v{TC}, v[14:17] offset:{L_OM+16}")
    A("s_cmp_eq_u32 s69, 1")
    A("s_cbranch_scc1 L_cs")
    A.label("L_csr")
    A("s_waitcnt lgkmcnt(0)")
    A("s_barrier")
    stamp(5)
    A(f"ds_read_b128 v[20:23], v{TC+5} offset:{L_MX}")
    A(f"ds_read_b128 v[24:27], v{TC+5} offset:{L_MX+16}")
    A(f"ds_read_b128 v[28:31], v{TC+4} offset:{L_ML}")
    A(f"ds_read_b128 v[10:13], v{TC+3} offset:{L_OM}")
    A(f"ds_read_b128 v[14:17], v{TC+3} offset:{L_OM+2048}")
    A("s_waitcnt lgkmcnt(3)")
    A("v_max3_f32 v36, v20, v21, v22"); A("v_max3_f32 v37, v23, v24, v25"); A("v_max3_f32 v36, v36, v26, v27"); A("v_max_f32 v36, v36, v37")
    A("s_waitcnt lgkmcnt(2)")
    A("v_sub_f32 v28, v28, v36"); A("v_sub_f32 v30, v30, v36")
    A("v_exp_f32 v28, v28"); A("v_exp_f32 v30, v30")
    A("v_lshl_or_b32 v38, v36, 24, s55")
    A("v_mul_f32 v37, v28, v29")
    A("v_fmac_f32 v37, v30, v31")
    A("s_waitcnt lgkmcnt(0)")
    A("v_mov_b32 v49, v37")
    for r in range(4): A(f"v_mul_f32 v{10+r}, v{10+r}, v28")
    A("v_permlane32_swap_b32 v37, v49")
    for r in range(2): A(f"v_fmac_f32 v{10+r}, v{14+r}, v30")
    A("v_add_f32 v37, v37, v49")
    for r in range(2, 4): A(f"v_fmac_f32 v{10+r}, v{14+r}, v30")
    A("v_mov_b32 v49, v37")
    A("v_permlane32_swap_b32 v10, v11")
    A("v_permlane32_swap_b32 v12, v13")
    A("v_add_f32 v10, v10, v11")
    A("v_add_f32 v12, v12, v13")
    A("v_permlane16_swap_b32 v37, v49")
    A("v_add_f32 v37, v37, v49")
    A("v_permlane16_swap_b32 v10, v12")
    A("v_add_f32 v10, v10, v12")
    rbf(10, 10)
    A("v_min_u32 v10, s60, v10")
    A(f"buffer_store_short_d16_hi v10, v{TC+10}, s[36:39], s0 offen {osf}")
    A("s_bitcmp1_b32 s3, 0")
    A("s_cbranch_scc1 L_mj")
    A("v_and_or_b32 v37, v37, s73, v48"); A("v_and_or_b32 v36, v36, s73, v47")
    A("s_mov_b64 exec, 1")
    A(f"buffer_store_dwordx4 v[36:39], v3, s[36:39], s1 offen {osf}")
    A("s_mov_b64 exec, -1")
    A(".warm_off")
    A.label("L_mj")
    stamp(6)
    A("s_cmp_eq_u32 s69, 0")
    A("s_cbranch_scc1 L_end")
    A("v_and_b32 v54, 0x1f0, v3")
    A(f"buffer_load_dwordx4 v[40:43], v54, s[36:39], 0 offen offset:{XBUF} sc1")
    if codepf:
        A("s_getpc_b64 s[12:13]")
        A.label("L_pcref")
        A("s_lshl_b32 s71, s3, 9"); A("s_add_u32 s12, s12, s71"); A("s_addc_u32 s13, s13, 0")
        A(f"v_lshlrev_b32 v48, 3, v1")
        A("global_load_dwordx2 v[44:45], v48, s[12:13]")
    if outpf:
        A("buffer_load_dword v44, v3, s[44:47], 0 offen")
    if pretouch:
        A("s_lshl_b32 s71, s3, 5"); A("s_add_u32 s71, s71, s77")
        A("s_cmp_ge_u32 s71, 80")
        A("s_cbranch_scc1 L_nopt")
        A("s_lshl_b32 s71, s71, 10"); A(f"s_add_u32 s71, s71, {HBUF}")
        A("buffer_load_dwordx4 v[44:47], v3, s[36:39], s71 offen sc1")
        A.label("L_nopt")
    OB = RA
    for k in range(4): A(f"ds_read_b128 v[{20+4*k}:{23+4*k}], v{TC+23} offset:{L_RED2+512*k}")
    A("s_waitcnt lgkmcnt(0)")
    sum4x4()
    A("v_mov_b32 v51, v20")
    A("s_waitcnt vmcnt(0)")
    A.label("L_xchk")
    for k in range(4): A(f"v_xor_b32 v{40+k}, s{53+k}, v{40+k}")
    A("v_or3_b32 v55, v41, v42, v43")
    A("v_and_b32 v53, 0xff, v40"); A("v_or_b32 v55, v55, v53")
    A("v_cmp_ne_u32 vcc, 0, v55")
    A("s_cbranch_vccz L_xok")
    A(f"buffer_load_dwordx4 v[40:43], v54, s[36:39], 0 offen offset:{XBUF} sc1")
    A("s_waitcnt vmcnt(0)")
    spin("L_xchk")
    A.label("L_xok")
    A("v_cmp_ne_u32 vcc, s78, v40")
    A("s_mov_b32 s64, 0")
    if local:
        A("s_cbranch_vccnz L_xg")
        A("s_mov_b32 s64, 1")
        A.label("L_xg")
    A(f"v_lshlrev_b32 v{TC+13}, 16, v{TC+13}")
    for i in range(8):
        r = WDR[i >> 1] + 4 * (i & 1)
        A(f"ds_read_b128 v[{r}:{r+3}], v{TC+26} offset:{1024*i}")
    for F in FS:
        for r in range(4): A(f"v_mov_b32 v{F+r}, 0")
    for r in range(10, 18): A(f"v_mov_b32 v{r}, 0")
    A("v_and_b32 v4, 3, v1"); A("v_mul_u32_u24 v4, 0x5555, v4")
    for r in list(range(64, 72)) + list(range(TC, TC + 4)) + list(range(36, 40)): A(f"v_mov_b32 v{r}, 0")
    A("v_mov_b32 v52, 1.0")
    for r in range(4): A(f"v_mov_b32_dpp v{68+r}, v52 quad_perm:[0,0,0,0] row_mask:0xf bank_mask:{'0x5' if r % 2 == 0 else '0xa'}")
    OG = [(OB + 4 * j, TC + 8, 16 + (j >> 1), 2048 * (j & 1)) for j in range(4)]
    A.label("L_h1pre")
    A(f"buffer_load_dword v23, v{TC+9}, s[36:39], s20 offen offset:12 sc1")
    A("s_waitcnt vmcnt(0)")
    A("v_cmp_eq_u32 vcc, s56, v23")
    A("s_bcnt1_i32_b64 s71, vcc")
    A(f"s_cmp_ge_u32 s71, {2*thr1}")
    A("s_cbranch_scc1 L_h1go")
    spin("L_h1pre", slp1)
    A.label("L_h1go")
    for r in range(24, 32): A(f"v_mov_b32 v{r}, 0")
    A.label("L_h1_rnd")
    A(f"buffer_load_dwordx4 v[20:23], v{TC+9}, s[36:39], s20 offen sc1")
    A(f"buffer_load_dwordx4 v[{OB}:{OB+3}], v{TC+8}, s[36:39], s16 offen sc1")
    A(f"buffer_load_dwordx4 v[{OB+4}:{OB+7}], v{TC+8}, s[36:39], s16 offen offset:1024 sc1")
    A("s_waitcnt vmcnt(2)")
    for e in range(4): A(f"v_xor_b32 v{20+e}, s{53+e}, v{20+e}")
    A("v_or3_b32 v55, v20, v21, v22"); A("v_or_b32 v55, v55, v23"); A("v_and_b32 v55, 0xff, v55")
    A("v_cmp_ne_u32 vcc, 0, v55" if eo else "v_cmp_ne_u32 s[4:5], 0, v55")
    A("v_or_b32_sdwa v20, v20, v22 dst_sel:DWORD dst_unused:UNUSED_PAD src0_sel:DWORD src1_sel:BYTE_3")
    if eo == 2: A("s_cbranch_vccnz L_h1_re")
    A("s_waitcnt vmcnt(0)")
    if eo == 1: A("s_cbranch_vccnz L_h1_re")
    A(f"v_pk_max_u16 v55, v{OB}, v{OB+1}")
    dpp("v_max_f32", 22, 20, 20, "quad_perm:[1,0,3,2]")
    A(f"v_pk_max_u16 v53, v{OB+2}, v{OB+3}"); A(f"v_pk_max_u16 v55, v55, v{OB+4}")
    dpp("v_max_f32", 22, 22, 22, "row_ror:8")
    A(f"v_pk_max_u16 v53, v53, v{OB+5}"); A(f"v_pk_max_u16 v55, v55, v{OB+6}")
    dpp("v_max_f32", 22, 22, 22, "row_ror:4")
    A("v_mov_b32 v23, v22")
    A(f"v_pk_max_u16 v53, v53, v{OB+7}"); A("v_pk_max_u16 v55, v55, v53")
    A("v_permlane32_swap_b32 v22, v23")
    A("v_max_f32 v22, v22, v23")
    A("v_mov_b32 v23, v22")
    A("v_pk_max_u16 v55, v55, v55 op_sel:[1,0] op_sel_hi:[0,1]")
    A("v_cmp_eq_u32 vcc, -1, v55")
    A("v_permlane16_swap_b32 v22, v23")
    if eo: A("s_cbranch_vccnz L_h1_re")
    else:
        A("s_or_b64 vcc, vcc, s[4:5]")
        A("s_cbranch_scc1 L_h1_re")
    post.append(("L_h1_re", "L_h1_rnd"))
    stamp(7)
    A("v_max_f32 v22, v22, v23")
    A("v_sub_f32 v20, v20, v22")
    A("v_exp_f32 v20, v20")
    rbf(22, 20)
    A("v_cvt_pk_bf16_f32 v23, v20, 0")
    A("v_mul_f32 v21, v22, v21")
    fm = [f"v_dot2c_f32_bf16_dpp v{24+2*r+h}, v{22 if h else 23}, v{OB+4*j+r} quad_perm:[{j},{j},{j},{j}] {DPPF}" for j in range(2) for r in range(4) for h in (1, 0)]
    lr = [f"v_add_f32_dpp v21, v21, v21 {c} {DPPF}" for c in ("quad_perm:[1,0,3,2]", "row_ror:8", "row_ror:4")]
    lr += ["v_mov_b32 v20, v21", "v_permlane32_swap_b32 v21, v20", "v_add_f32 v21, v21, v20\nv_mov_b32 v20, v21", "v_permlane16_swap_b32 v21, v20", "v_add_f32 v21, v21, v20"]
    for k in range(len(fm)):
        A(fm[k])
        if k % 2 == 1 and lr: A(lr.pop(0))
    assert not lr
    A("v_permlane32_swap_b32 v24, v25")
    A("v_permlane32_swap_b32 v26, v27")
    A("v_rcp_f32 v21, v21")
    A("v_permlane32_swap_b32 v28, v29")
    A("v_permlane32_swap_b32 v30, v31")
    A("v_add_f32 v24, v24, v25"); A("v_add_f32 v26, v26, v27"); A("v_add_f32 v28, v28, v29"); A("v_add_f32 v30, v30, v31")
    A("v_permlane16_swap_b32 v24, v26")
    A("v_permlane16_swap_b32 v28, v30")
    A("v_add_f32 v24, v24, v26"); A("v_add_f32 v28, v28, v30")
    dpp("v_add_f32", 24, 24, 24, "row_ror:4"); dpp("v_add_f32", 28, 28, 28, "row_ror:4")
    A("v_add_f32_dpp v20, v24, v24 row_ror:8 row_mask:0xf bank_mask:0x5")
    A("v_add_f32_dpp v20, v28, v28 row_ror:8 row_mask:0xf bank_mask:0xa")
    A("v_mul_f32 v20, v20, v21")
    rbf(20, 20)
    def frag(j, src):
        F = FS[j % 3]
        for r in range(4):
            A(f"v_mov_b32_dpp v{F+r}, v{src} row_newbcast:{2*j+(r>>1)} row_mask:0xf bank_mask:{'0x5' if r % 2 == 0 else '0xa'}")
        return F
    def frag2(j):
        F = FS[j % 3]
        for r in range(4):
            q = 2 * j + (r >> 1); second = r & 1
            src, p = (20, q & 3) if (q >> 2) == second else (21, 3 - (q & 3))
            A(f"v_mov_b32_dpp v{F+r}, v{src} quad_perm:[{p},{p},{p},{p}] row_mask:0xf bank_mask:{'0xa' if second else '0x5'}")
        return F
    def gemv16(W, red, pair=True):
        fr = frag2 if pair else (lambda i: frag(i, 20))
        if pair: A(f"v_mov_b32_dpp v21, v20 row_half_mirror {DPPF}")
        Fs = {0: fr(0)}
        for j in range(4):
            if j < 3: Fs[j + 1] = fr(j + 1)
            for v in range(2):
                acc = 10 + 4 * v; b = W + 8 * (4 * v + j)
                A(f"v_smfmac_f32_16x16x64_bf16 v[{acc}:{acc+3}], v[{Fs[j]}:{Fs[j]+3}], v[{b}:{b+7}], v4")
        A("s_mov_b32 exec_hi, 0")
        A(f"ds_write_b128 v{TC+11}, v[10:13] offset:{red}")
        A("s_not_b64 exec, exec")
        A(f"ds_write_b128 v{TC+11}, v[14:17] offset:{red}")
        A("s_mov_b64 exec, -1")
        A("s_waitcnt lgkmcnt(0)")
        A("s_barrier")
    gemv16(WO, L_RED, pair=False)
    A(f"ds_read_b128 v[20:23], v{TC+12} offset:{L_RED}")
    A("s_cmp_eq_u32 s64, 1")
    A("s_waitcnt lgkmcnt(0)")
    rr4(20, 21, 22, 23)
    dpp("v_add_f32", 20, 20, 20, "row_ror:8")
    A("s_mov_b32 exec_lo, 0x00ff00ff"); A("s_mov_b32 exec_hi, 0x00ff00ff")
    rbf(52, 20)
    A("v_min_u32 v52, s60, v52")
    lstore("L_hs", f"buffer_store_short_d16_hi v52, v{TC+6}, s[36:39], s21 offen")
    A("s_mov_b64 exec, -1")
    stamp(8)
    if hw == -1: A("s_waitcnt vmcnt(0)")
    elif hw == -2: A("s_barrier")
    elif hw: A(f"s_sleep {hw}")
    A.label("L_h2")
    A("s_cmp_lg_u32 s69, 2")
    A("s_cbranch_scc1 L_h2f")
    A("s_cmp_lg_u32 s3, 7")
    A("s_cbranch_scc1 L_end")
    A.label("L_h2f")
    gathers("L_h2", TC + 14, 24)
    stamp(2)
    for r in range(4): A(f"v_add_f32_dpp v20, v{28+r}, v{28+r} row_ror:8 row_mask:{'0x3' if r < 2 else '0xc'} bank_mask:{'0xc' if r & 1 else '0x3'}")
    A(f"v_add_f32 v20, v20, v{TC+13}")
    rbf(20, 20)
    A("s_cmp_eq_u32 s69, 2")
    A("v_mov_b32 v50, v20")
    A("s_cbranch_scc1 L_fin0")
    A("v_readfirstlane_b32 s71, v20")
    A(f"v_mov_b32_dpp v21, v20 row_half_mirror {DPPF}")
    st = ["v_subrev_f32 v25, s71, v20\nv_mov_b32 v24, s71\nv_mul_f32 v26, v25, v25", "v_permlane32_swap_b32 v25, v26\nv_add_f32 v25, v25, v26"]
    st += [f"v_add_f32_dpp v25, v25, v25 {c} {DPPF}" for c in ("quad_perm:[1,0,3,2]", "quad_perm:[2,3,0,1]", "row_ror:8")]
    st += [f"v_add_f32_dpp v25, v25, v25 row_ror:4 {DPPF}\nv_mov_b32 v26, v25", "v_permlane16_swap_b32 v25, v26\nv_add_f32 v25, v25, v26"]
    A(st.pop(0))
    Fs = {0: frag2(0)}
    A(st.pop(0))
    for j in range(4):
        if j < 3: Fs[j + 1] = frag2(j + 1); A(st.pop(0))
        for v in range(2):
            acc = (TC, 36)[v]; b = WGU + 8 * (4 * v + j)
            A(f"v_smfmac_f32_16x16x64_bf16 v[{acc}:{acc+3}], v[{Fs[j]}:{Fs[j]+3}], v[{b}:{b+7}], v4")
        if j >= 2: A(st.pop(0))
    assert not st
    A("s_mov_b32 exec_lo, 1"); A("s_mov_b32 exec_hi, 1")
    A(f"ds_write_b64 v{TC+20}, v[24:25] offset:{L_ST}")
    A("s_mov_b32 exec_lo, -1"); A("s_mov_b32 exec_hi, 0")
    A(f"ds_write_b128 v{TC+11}, v[{TC}:{TC+3}] offset:{L_RED2}")
    A("s_not_b64 exec, exec")
    A(f"ds_write_b128 v{TC+11}, v[36:39] offset:{L_RED2}")
    A("s_mov_b64 exec, -1")
    A("s_waitcnt lgkmcnt(0)")
    A("s_barrier")
    stamp(3)
    A(f"ds_read_b128 v[60:63], v{TC+21} offset:{L_ST}")
    for k in range(4): A(f"ds_read_b128 v[{20+4*k}:{23+4*k}], v{TC+23} offset:{L_RED2+512*k}")
    A("s_waitcnt lgkmcnt(4)")
    A("v_readfirstlane_b32 s71, v60")
    A("v_subrev_f32 v60, s71, v60")
    A("v_fmamk_f32 v59, v60, 0x42800000, v61")
    A("v_add_f32 v61, v61, v59")
    A("v_fma_f32 v62, v60, v61, v63")
    A("s_waitcnt lgkmcnt(0)")
    c3 = ("quad_perm:[1,0,3,2]", "quad_perm:[2,3,0,1]", "row_half_mirror")
    pk = ["v_pk_add_f32 v[20:21], v[20:21], v[24:25]", "v_pk_add_f32 v[22:23], v[22:23], v[26:27]", "v_pk_add_f32 v[28:29], v[28:29], v[32:33]",
          "v_pk_add_f32 v[30:31], v[30:31], v[34:35]", "v_pk_add_f32 v[20:21], v[20:21], v[28:29]", "v_pk_add_f32 v[22:23], v[22:23], v[30:31]"]
    for k in range(3):
        A(pk[2 * k]); dpp("v_add_f32", 59, 59, 59, c3[k]); A(pk[2 * k + 1]); dpp("v_add_f32", 62, 62, 62, c3[k])
    A("v_mul_f32 v59, 0x3b000000, v59")
    A("v_permlane32_swap_b32 v20, v21")
    A("v_permlane32_swap_b32 v22, v23")
    A("v_mul_f32 v62, 0x3b000000, v62")
    A("v_add_f32 v20, v20, v21")
    A("v_add_f32 v22, v22, v23")
    A("v_fma_f32 v62, -v59, v59, v62")
    A("v_max_f32 v62, 0, v62")
    A("v_permlane16_swap_b32 v20, v22")
    A("v_add_f32 v62, 0x3727c5ac, v62")
    A("v_add_f32 v59, s71, v59")
    A("v_rsq_f32 v62, v62")
    A("v_add_f32 v20, v20, v22")
    A("v_fma_f32 v20, -v59, v51, v20")
    A("v_mul_f32 v20, v20, v62")
    dpp("v_mul_f32", 21, 20, 20, "row_ror:8")
    rbf(21, 21)
    Fs = {0: frag(0, 21)}
    for j in range(4):
        if j < 3: Fs[j + 1] = frag(j + 1, 21)
        A(f"v_smfmac_f32_16x16x64_bf16 v[64:67], v[{Fs[j]}:{Fs[j]+3}], v[{WDR[j]}:{WDR[j]+7}], v4")
    A("s_mov_b32 exec_hi, 0")
    A("s_cmp_eq_u32 s64, 1")
    A("v_cvt_pk_bf16_f32 v56, v64, v65"); A("v_cvt_pk_bf16_f32 v57, v66, v67")
    A("v_pk_min_u16 v56, s60, v56"); A("v_pk_min_u16 v57, s60, v57")
    lstore("L_ys", f"buffer_store_dwordx2 v[56:57], v{TC+24}, s[36:39], s18 offen")
    stamp(9)
    A("s_cmp_lg_u32 s3, s68")
    A("s_cbranch_scc1 L_end")
    A("s_mov_b64 exec, -1")
    if yw == -1: A("s_waitcnt vmcnt(0)")
    elif yw: A(f"s_sleep {yw}")
    A("s_branch L_fin")
    A.label("L_fin0")
    A("s_cmp_lg_u32 s77, 28"); A("s_cbranch_scc1 L_fin")
    A("s_mov_b64 exec, 1")
    A("v_mov_b32 v48, s52")
    A("buffer_store_dword v48, v3, s[36:39], 0 offen sc1")
    A("s_mov_b64 exec, -1")
    A.label("L_fin")
    A("s_and_b32 s71, s77, 3"); A("s_lshl_b32 s71, s71, 1"); A("s_lshl_b32 s71, 0x03030303, s71")
    gathers("L_h3", TC + 22, 22)
    stamp(5)
    for r in range(4): A(f"v_add_f32_dpp v{20+(r&1)}, v{28+r}, v{28+r} quad_perm:[2,3,0,1] row_mask:{'0x3' if r < 2 else '0xc'} bank_mask:0xf")
    dpp("v_add_f32", 20, 20, 20, "row_ror:4"); dpp("v_add_f32", 21, 21, 21, "row_ror:4")
    A("v_add_f32_dpp v22, v20, v20 row_ror:8 row_mask:0xf bank_mask:0x3")
    A("v_add_f32_dpp v22, v21, v21 row_ror:8 row_mask:0xf bank_mask:0xc")
    A("v_add_f32 v20, v22, v50")
    rbf(20, 20)
    if diag and diag[1] == "ack":
        A("s_mov_b32 exec_lo, s71"); A("s_mov_b32 exec_hi, s71")
        A(f"buffer_store_short_d16_hi v20, v{TC+25}, s[44:47], 0 offen")
        A("s_waitcnt vmcnt(0)")
        A("s_memrealtime s[86:87]")
    if diag:
        A("s_waitcnt lgkmcnt(0)")
        A("s_sub_u32 s84, s86, s84"); A(f"s_mul_i32 s84, s84, {diag[2]}"); A("s_add_u32 s84, s84, 6000"); A("s_min_u32 s84, s84, 100000")
        A.label("L_dg1")
        A("s_memrealtime s[82:83]"); A("s_waitcnt lgkmcnt(0)")
        A("s_sub_u32 s82, s82, s80"); A("s_cmp_lt_u32 s82, s84"); A("s_cbranch_scc1 L_dg1")
    A("s_mov_b32 exec_lo, s71"); A("s_mov_b32 exec_hi, s71")
    A(f"buffer_store_short_d16_hi v20, v{TC+25}, s[44:47], 0 offen")
    A(".warm_off")
    A("s_branch L_end")
    A.label("L_cs")
    A("v_and_b32 v4, 3, v1"); A("v_mul_u32_u24 v4, 0x5555, v4")
    for r in range(20, 32): A(f"v_mov_b32 v{r}, 0")
    A("v_mov_b32 v32, 1.0")
    A("s_waitcnt vmcnt(0)")
    for r in range(4): A(f"v_mov_b32_dpp v{28+r}, v32 quad_perm:[0,0,0,0] row_mask:0xf bank_mask:{'0x5' if r % 2 == 0 else '0xa'}")
    for j in range(4):
        for v in range(2):
            b = WGU + 8 * (4 * v + j)
            A(f"v_smfmac_f32_16x16x64_bf16 v[{20+4*v}:{23+4*v}], v[28:31], v[{b}:{b+7}], v4")
    A("s_mov_b32 exec_hi, 0")
    A(f"ds_write_b128 v{TC+11}, v[20:23] offset:{L_RED2}")
    A("s_not_b64 exec, exec")
    A(f"ds_write_b128 v{TC+11}, v[24:27] offset:{L_RED2}")
    A("s_mov_b64 exec, -1")
    A("s_branch L_csr")
    for (lab, back) in post:
        A.label(lab); spin(back)
    for (name, text) in post2:
        A.label(f"{name}_g"); A(text + " sc1"); A(f"s_branch {name}_j")
    A.label("L_end")
    if prof:
        A("s_waitcnt vmcnt(0)")
        stamp(10)
        A("s_mov_b64 exec, -1")
        A("s_waitcnt lgkmcnt(0)")
        for i in range(11): A(f"v_writelane_b32 v20, s{80+2*i}, {i}")
        A("v_writelane_b32 v20, s64, 11")
        A("s_getreg_b32 s71, hwreg(HW_REG_XCC_ID)"); A("v_writelane_b32 v20, s71, 12")
        A("s_lshl_b32 s71, s2, 3"); A("s_add_u32 s71, s71, s3"); A("s_lshl_b32 s71, s71, 6"); A(f"s_add_u32 s71, s71, {PROF}")
        A("v_lshlrev_b32 v21, 2, v1")
        A("s_mov_b64 exec, 0xffff")
        A("buffer_store_dword v20, v21, s[36:39], s71 offen")
    A.label("L_exit")
    A("s_endpgm")
    body = A.finish()
    nv = max(A.maxv + 1, 136)
    txt = HEADER + f"; @launch grid=(256,1,1) block=(512,1,1) lds={L_END}\n"
    txt += DOC
    txt += f'.amdgcn_target "amdgcn-amd-amdhsa--gfx950"\n.text\n.globl {KNAME}\n.p2align 8\n.type {KNAME},@function\n{KNAME}:\n'
    txt += body
    txt += "; padding: instruction prefetch and the code read at L_pcref stay inside .text\n.fill 512, 4, 0xbf800000\n"
    txt += f'.section .rodata,"a"\n.p2align 6\n.amdhsa_kernel {KNAME}\n  .amdhsa_next_free_vgpr {nv}\n  .amdhsa_next_free_sgpr 102\n'
    txt += f"  .amdhsa_accum_offset {(nv+3)//4*4}\n  .amdhsa_group_segment_fixed_size 0\n  .amdhsa_kernarg_size 96\n  .amdhsa_user_sgpr_count 2\n"
    txt += "  .amdhsa_user_sgpr_kernarg_segment_ptr 1\n  .amdhsa_system_sgpr_workgroup_id_x 1\n  .amdhsa_float_denorm_mode_32 3\n.end_amdhsa_kernel\n"
    return txt

if __name__ == "__main__":
    import argparse
    p = argparse.ArgumentParser(); p.add_argument("-o"); p.add_argument("kv", nargs="*")
    a = p.parse_args()
    kw = {k: eval(v) for k, v in (x.split("=") for x in a.kv)}
    open(a.o, "w").write(gen(**kw))
```

```python
import sys, struct
sys.path.insert(0, "gen")
from asmlib import Asm

KNAME = "sequential_preLN__gqa_block_cached__glu_gated_bilinear__decode_kernel"
HEADER = open("sequential_preLN__gqa_block_cached__glu_gated_bilinear__decode.s.ref").read().split("; Override launch")[0]

DOC = """; ---------------------------------------------------------------------------------------------
; ---------------------------------------------------------------------------------------------
"""
XBUF, QBUF, OBUF, HBUF, YBUF, CBUF, MLBUF, WS_END = 0x800, 0x1000, 0x10000, 0xAC000, 0xB0000, 0xD0000, 0x140000, 0x180000
PROF = 0x100000
L_OM, L_ML, L_MX, L_QF, L_TK, L_ST, L_RED, L_RED2, L_HL, L_TB, L_WD, L_S, L_END = 0, 0x4000, 0x4100, 0x4600, 0x4A00, 0x4B00, 0x5000, 0x7000, 0x4C00, 0x9000, 0x9800, 0x19800, 0x21800
DPPF = "row_mask:0xf bank_mask:0xf"
SPIN = 1 << 20
L_MX2 = 0x4200

def gen(NX=4, prof=False, S0=104, offT=48, offF=24, offQ=12, thr1=8, slp1=4, qslp=4, LA=2, t8=128, t4=48, t1=0, b0=8,
        cstride=256, kf='nt', vf='nt', wf='nt', mlsh=5, cut=0, local=True, pretouch=True, tT=64, diag=0, codepf=True, outpf=False, h2pre=False, opre=None, osf='sc1', ew=8, ewx=0, PS=0, pgap=0, flat2=True, flat3=True, skipoob=True, hw=-2, yw=0, stx=True, noround=0, trace=False, tlbpf=0, tS=0, sm=8, XT=0, W=0, qprof=False, qhold=True, X2=2, NXT=1, wpf=False, wf2=None, wsplit=False, warm=0, wwave=7, contig=False, spread=False, rot=0, perm=None, h1t=0, h1f='sc1', wmap=0, eo=1, aw=8, gupf=False, wopf=False, early=True, dv=False, t2=0, cpf0=False):
    A = Asm()
    if warm: A.warm = (warm, 'L_wret')
    CM = {'L_ring': 'prefetch K units of the static range (q is not needed yet)', 'L_qprod': 'q producers: LayerNorm(x), 64 columns of x @ wq, 64 rows per wave', 'L_w0b': "wave 0: LDS counters / chunk table, wait for this head's q", 'L_k': 'phase K: two 16-key chunks per ticket, scores (log2 domain) to LDS', 'L_v': 'phase V: P = exp2(z - max), O += P @ V', 'L_loop': 'phase C: K and V of one pool chunk, online softmax', 'L_first': 'first pass: scores of the prefetched extra units', 'L_setup': 'one-time address constants; tail workgroups also clear their slots and load weights', 'L_dyn': 'pool hand-out: LDS table refilled in batches from the pool counter', 'L_done': "merge the 8 waves' partials and publish them", 'L_xchk': 'tail workgroups: placement check', 'L_h1pre': 'gather the 32 partials of two heads, combine, apply wo', 'L_h2': 'gather partial sums of h, gate/up, LayerNorm statistics, w_down', 'L_fin': 'gather partial outputs, residual, store', 'L_cs': 'column sums of the gate/up slice'}
    _lab = A.label
    def label(name):
        if name in CM: A.lines.append("; ---- " + CM[name])
        _lab(name)
    A.label = label
    RA, RX = 56, 88
    WO, WGU = 88, 152
    WDR = [72, 80, 244, 40]
    FS = [232, 6, 252]
    TC = 216
    OOB = 0x1000000
    D0 = (4096 - 32 * S0 + 8 * offQ + 4 * offT) // 4
    assert offF % 4 == 0
    D1 = D0 - offF // 4
    assert LA + D0 + 64 + 64 <= 512
    seen = {}
    def stamp(i):
        if prof: A(f"s_memrealtime s[{80+2*i}:{81+2*i}]")
        seen[i] = seen.get(i, 0) + 1
        if diag:
            if (i, seen[i]) == (0, 1): A("s_memrealtime s[80:81]")
            if diag[0] == (i, seen[i]): A("s_memrealtime s[84:85]")
            if diag[1] == (i, seen[i]): A("s_memrealtime s[86:87]")
    def rr4(a, b, c, d):
        A(f"v_permlane32_swap_b32 v{a}, v{b}")
        A(f"v_permlane32_swap_b32 v{c}, v{d}")
        A(f"v_add_f32 v{a}, v{a}, v{b}")
        A(f"v_add_f32 v{c}, v{c}, v{d}")
        A(f"v_permlane16_swap_b32 v{a}, v{c}")
        A(f"v_add_f32 v{a}, v{a}, v{c}")
    def rows_all(x, t, op):
        A(f"v_mov_b32 v{t}, v{x}")
        A(f"v_permlane32_swap_b32 v{x}, v{t}")
        A(f"{op} v{x}, v{x}, v{t}")
        A(f"v_mov_b32 v{t}, v{x}")
        A(f"v_permlane16_swap_b32 v{x}, v{t}")
        A(f"{op} v{x}, v{x}, v{t}")
    def dpp(op, d, s, o, ctl): A(f"{op}_dpp v{d}, v{s}, v{o} {ctl} {DPPF}")
    def quad_all(x, op):
        dpp(op, x, x, x, "quad_perm:[1,0,3,2]"); dpp(op, x, x, x, "quad_perm:[2,3,0,1]")
    def wave_all(x, t, op):
        quad_all(x, op); dpp(op, x, x, x, "row_ror:8"); dpp(op, x, x, x, "row_ror:4"); rows_all(x, t, op)
    def rbf(d, s): A(f"v_cvt_pk_bf16_f32 v{d}, 0, v{s}")
    def ln_fin(mean, var):
        rbf(var, var)
        rbf(mean, mean)
        A(f"v_add_f32 v{var}, 0x37280000, v{var}")
        rbf(var, var)
        A(f"v_sqrt_f32 v{var}, v{var}")
        rbf(var, var)
        A(f"v_rcp_f32 v{var}, v{var}")
    def ln_stats(vals, mean, rinv, t):
        A(f"v_add_f32 v{mean}, v{vals[0]}, v{vals[1]}")
        A(f"v_add_f32 v{t}, v{vals[2]}, v{vals[3]}")
        A(f"v_add_f32 v{rinv}, v{vals[4]}, v{vals[5]}")
        A(f"v_add_f32 v{mean}, v{mean}, v{t}")
        A(f"v_add_f32 v{t}, v{vals[6]}, v{vals[7]}")
        A(f"v_add_f32 v{rinv}, v{rinv}, v{t}")
        A(f"v_add_f32 v{mean}, v{mean}, v{rinv}")
        wave_all(mean, t, "v_add_f32")
        A(f"v_mul_f32 v{mean}, 0x3b000000, v{mean}")
        for v in vals: A(f"v_sub_f32 v{v}, v{v}, v{mean}")
        A(f"v_mul_f32 v{rinv}, v{vals[0]}, v{vals[0]}")
        A(f"v_mul_f32 v{t}, v{vals[1]}, v{vals[1]}")
        for k in range(2, 8, 2):
            A(f"v_fmac_f32 v{rinv}, v{vals[k]}, v{vals[k]}")
            A(f"v_fmac_f32 v{t}, v{vals[k+1]}, v{vals[k+1]}")
        A(f"v_add_f32 v{rinv}, v{rinv}, v{t}")
        wave_all(rinv, t, "v_add_f32")
        A(f"v_mul_f32 v{rinv}, 0x3b000000, v{rinv}")
        ln_fin(mean, rinv)
    def srd(d, lo, hi, n):
        A(f"s_mov_b32 s{d}, s{lo}"); A(f"s_mov_b32 s{d+1}, s{hi}"); A(f"s_mov_b32 s{d+2}, {hex(n)}"); A(f"s_mov_b32 s{d+3}, 0x20000")
    def spin(label, slp=0):
        A("s_sub_u32 s72, s72, 1")
        A("s_cbranch_scc1 L_end")
        if slp: A(f"s_sleep {slp}")
        A(f"s_branch {label}")
    MREG = [4, 6, 8, 14, 62]
    def gather(name, groups, init_masks=None, check_first=False):
        ng = len(groups)
        for j in range(ng):
            m = -1 if init_masks is None else init_masks[j]; M = MREG[j]
            if m == -1: A(f"s_mov_b64 s[{M}:{M+1}], -1")
            else: A(f"s_mov_b32 s{M}, {hex(m & 0xffffffff)}"); A(f"s_mov_b32 s{M+1}, {hex(m >> 32)}")
        if check_first: A(f"s_branch {name}_chk")
        A.label(f"{name}_rnd")
        for j, g in enumerate(groups):
            M = MREG[j]
            A(f"s_mov_b64 exec, s[{M}:{M+1}]")
            A(f"s_cbranch_execz {name}_i{j}")
            for (r, va, so, imm) in g:
                A(f"buffer_load_dwordx4 v[{r}:{r+3}], v{va}, s[36:39], s{so} offen offset:{imm} sc1")
            A.label(f"{name}_i{j}")
        A.label(f"{name}_chk")
        A("s_mov_b64 s[12:13], 0")
        A("s_waitcnt vmcnt(0)")
        for j, g in enumerate(groups):
            M = MREG[j]
            A(f"s_mov_b64 exec, s[{M}:{M+1}]")
            A(f"s_cbranch_execz {name}_c{j}")
            regs = [r + k for (r, _, _, _) in g for k in range(4)]
            for k, r in enumerate(regs): A(f"v_xor_b32 v{r}, s{53+(k&3)}, v{r}")
            A(f"v_or3_b32 v55, v{regs[0]}, v{regs[1]}, v{regs[2]}")
            rest = regs[3:]
            while len(rest) >= 2:
                A(f"v_or3_b32 v55, v55, v{rest[0]}, v{rest[1]}"); rest = rest[2:]
            A(f"v_or_b32 v55, v55, v{rest[0]}")
            A("v_and_b32 v55, 0xff, v55")
            A(f"v_cmp_ne_u32 s[{M}:{M+1}], 0, v55")
            A(f"s_or_b64 s[12:13], s[12:13], s[{M}:{M+1}]")
            A.label(f"{name}_c{j}")
        A("s_mov_b64 exec, -1")
        A("s_cmp_eq_u64 s[12:13], 0")
        A(f"s_cbranch_scc1 {name}_ok")
        spin(f"{name}_rnd")
        A.label(f"{name}_ok")
    def gatherp(name, groups, raws):
        ng = len(groups)
        for j in range(ng): A(f"s_mov_b64 s[{MREG[j]}:{MREG[j]+1}], -1")
        NL = sum(len(g) for g in groups)
        def issue(rb):
            n = 0
            for j, g in enumerate(groups):
                A(f"s_or_b64 exec, s[{MREG[j]}:{MREG[j]+1}], 1")
                for (r, va, so, imm) in g:
                    A(f"buffer_load_dwordx4 v[{rb+4*n}:{rb+4*n+3}], v{va}, s[36:39], s{so} offen offset:{imm} sc1")
                    n += 1
        for rb in raws: issue(rb)
        A.label(f"{name}_rnd")
        for k, rb in enumerate(raws):
            A("s_mov_b64 s[12:13], 0")
            A(f"s_waitcnt vmcnt({(len(raws)-1)*NL})")
            n = 0
            for j, g in enumerate(groups):
                M = MREG[j]
                A(f"s_mov_b64 exec, s[{M}:{M+1}]")
                A(f"s_cbranch_execz {name}_c{k}_{j}")
                regs = []
                for (r, _, _, _) in g:
                    for e in range(4):
                        A(f"v_xor_b32 v{r+e}, s{53+e}, v{rb+4*n+e}"); regs.append(r + e)
                    n += 1
                A(f"v_or3_b32 v55, v{regs[0]}, v{regs[1]}, v{regs[2]}")
                A(f"v_or_b32 v55, v55, v{regs[3]}")
                A("v_and_b32 v55, 0xff, v55")
                A(f"v_cmp_ne_u32 s[{M}:{M+1}], 0, v55")
                A(f"s_or_b64 s[12:13], s[12:13], s[{M}:{M+1}]")
                A.label(f"{name}_c{k}_{j}")
            A("s_cmp_eq_u64 s[12:13], 0")
            A(f"s_cbranch_scc1 {name}_ok")
            if pgap: A(f"s_sleep {pgap}")
            issue(rb)
        spin(f"{name}_rnd")
        A.label(f"{name}_ok")
        A("s_mov_b64 exec, -1")
    def gatherf(name, loads, last_half=False):
        A.label(f"{name}_rnd")
        for k, (r, va, so, imm) in enumerate(loads):
            if last_half and k == len(loads) - 1:
                for e in range(4): A(f"v_mov_b32 v{r+e}, s{53+e}")
                A("s_mov_b32 exec_hi, 0")
            A(f"buffer_load_dwordx4 v[{r}:{r+3}], v{va}, s[36:39], s{so} offen offset:{imm} sc1")
        if last_half: A("s_mov_b32 exec_hi, -1")
        n = len(loads)
        for k, (r, _, _, _) in enumerate(loads):
            A(f"s_waitcnt vmcnt({n-1-k})")
            for e in range(4): A(f"v_xor_b32 v{r+e}, s{53+e}, v{r+e}")
            if k == 0: A(f"v_or_b32 v55, v{r}, v{r+1}")
            else: A(f"v_or3_b32 v55, v55, v{r}, v{r+1}")
            A(f"v_or3_b32 v55, v55, v{r+2}, v{r+3}")
        A("v_and_b32 v55, 0xff, v55")
        A("v_cmp_ne_u32 vcc, 0, v55")
        A(f"s_cbranch_vccnz {name}_re")
        post.append((f"{name}_re", f"{name}_rnd"))
    def gathers(name, va, so):
        A.label(f"{name}_rnd")
        A(f"buffer_load_dwordx4 v[20:23], v{va}, s[36:39], s{so} offen sc1")
        A(f"buffer_load_dwordx4 v[24:27], v{va}, s[36:39], s{so+1} offen sc1")
        for r in range(4): A(f"v_mov_b32 v{28+r}, 0")
        A("s_waitcnt vmcnt(1)")
        A("v_pk_max_u16 v55, v20, v21"); A("v_pk_max_u16 v53, v22, v23"); A("v_pk_max_u16 v55, v55, v53")
        A("s_waitcnt vmcnt(0)")
        A("v_smfmac_f32_16x16x64_bf16 v[28:31], v[68:71], v[20:27], v4")
        for r in range(24, 28): A(f"v_pk_max_u16 v55, v55, v{r}")
        A("v_pk_max_u16 v55, v55, v55 op_sel:[1,0] op_sel_hi:[0,1]")
        A("v_cmp_eq_u32 vcc, -1, v55")
        A(f"s_cbranch_vccnz {name}_re")
        post.append((f"{name}_re", f"{name}_rnd"))
    post = []; post2 = []
    def lstore(name, text):
        A(f"s_cbranch_scc0 {name}_g")
        A(text)
        A.label(f"{name}_j")
        post2.append((name, text))
    thr = [None]
    def throttle():
        if thr[0] is not None:
            if thr[0] >= W: A(f"s_waitcnt vmcnt({W-1})")
            thr[0] += 1
    def issueK(base, so):
        for j in range(4):
            r = base + 4 * j
            throttle()
            A(f"buffer_load_dwordx4 v[{r}:{r+3}], v2, s[28:31], s{so} offen offset:{1024*j} {kf}")
    def issueV(base, so):
        for j in range(4):
            r = base + 16 + 4 * j
            throttle()
            A(f"buffer_load_dwordx4 v[{r}:{r+3}], v3, s[32:35], s{so} offen offset:{1024*j} {vf}")
    def common_setup():
        A("s_mov_b32 s60, 0x22222222"); A("s_mov_b32 s61, 0x22222222")
        A("s_mov_b32 s62, 0x44444444"); A("s_mov_b32 s63, 0x44444444")
        A("s_mov_b32 s64, 0x88888888"); A("s_mov_b32 s65, 0x88888888")
        A("s_mov_b32 s74, 0x3db504f3"); A("s_mov_b32 s75, 0x3fb8aa3b")
        A(f"s_mov_b32 s72, {SPIN}")
        A("v_mov_b32 v44, 0xffff"); A("v_mov_b32 v45, 0xffff0000")
        A("v_mov_b32 v4, 0"); A("v_mov_b32 v5, 0")
        A("v_cmp_eq_u32 vcc, 0, v47")
        A("v_cndmask_b32 v4, v4, v44, vcc")
        A("v_cndmask_b32 v4, v4, v45, s[60:61]")
        A("v_cndmask_b32 v5, v5, v44, s[62:63]")
        A("v_cndmask_b32 v5, v5, v45, s[64:65]")
        for r in range(10, 18): A(f"v_mov_b32 v{r}, 0")
        A("v_mov_b32 v18, 0xff7fffff"); A("v_mov_b32 v19, 0")
    def k32masks(b):
        A("v_bfe_u32 v51, v1, 2, 1"); A("v_cmp_eq_u32 vcc, 0, v51")
        A(f"v_cndmask_b32 v{b}, 0, v4, vcc"); A(f"v_cndmask_b32 v{b+1}, 0, v5, vcc")
        A(f"v_cndmask_b32 v{b+2}, v4, 0, vcc"); A(f"v_cndmask_b32 v{b+3}, v5, 0, vcc")
    def tags():
        A("s_add_u32 s52, s52, 0x9e3779b9")
        A("s_and_b32 s53, s52, 0xff"); A("s_bfe_u32 s54, s52, 0x80008"); A("s_bfe_u32 s55, s52, 0x80010"); A("s_lshr_b32 s56, s52, 24")
        A("s_and_b32 s57, s52, 0xffff"); A("s_lshr_b32 s58, s52, 16")
    def sum4x4():
        A("v_pk_add_f32 v[20:21], v[20:21], v[24:25]"); A("v_pk_add_f32 v[22:23], v[22:23], v[26:27]")
        A("v_pk_add_f32 v[28:29], v[28:29], v[32:33]"); A("v_pk_add_f32 v[30:31], v[30:31], v[34:35]")
        A("v_pk_add_f32 v[20:21], v[20:21], v[28:29]"); A("v_pk_add_f32 v[22:23], v[22:23], v[30:31]")
        rr4(20, 21, 22, 23)
    def sum2x4():
        A("v_pk_add_f32 v[20:21], v[20:21], v[24:25]"); A("v_pk_add_f32 v[22:23], v[22:23], v[26:27]")
        rr4(20, 21, 22, 23)
    def tr():
        A("s_memrealtime s[96:97]"); A("s_mov_b32 m0, s98"); A("s_waitcnt lgkmcnt(0)"); A("v_writelane_b32 v244, s96, m0"); A("s_add_u32 s98, s98, 1")
    uid = [0]
    def ld4(base, va, srd_, so, fl):
        if rot:
            A(f"s_add_u32 s9, s{so}, s8"); A("s_and_b32 s9, s9, 0xffffff"); so = 9
        for j in range(4):
            r = base + 4 * j
            throttle()
            A(f"buffer_load_dwordx4 v[{r}:{r+3}], v{va}, s[{srd_}:{srd_+3}], s{so} offen offset:{1024*j} {fl}")
    def draw():
        A("s_mov_b64 exec, 1")
        A("ds_add_rtn_u32 v54, v52, v53")
        A("s_mov_b64 exec, -1")
    def qk(KB):
        for j in range(4):
            A(f"v_mfma_f32_16x16x32_bf16 v[{20+4*j}:{23+4*j}], v[{KB+4*j}:{KB+4*j+3}], v[6:9], 0")
    def extract():
        D = lambda j, r: 20 + 4 * (j & 3) + r
        for rho in range(4): A(f"v_cndmask_b32 v{44+rho}, v{D(rho,0)}, v{D(rho+1,1)}, s[60:61]")
        for rho in range(4): A(f"v_cndmask_b32 v{44+rho}, v{44+rho}, v{D(rho+2,2)}, s[62:63]")
        for rho in (1, 2, 3, 0): A(f"v_cndmask_b32 v{44+rho}, v{44+rho}, v{D(rho+3,3)}, s[64:65]")
        for rho in range(1, 4):
            qp = ",".join(str((q - rho) & 3) for q in range(4))
            dpp("v_add_f32", 44, 44 + rho, 44, f"quad_perm:[{qp}]")
        rbf(44, 44)
        A("v_mul_f32 v44, s74, v44")
        rbf(44, 44)
        A("v_mul_f32 v44, s75, v44")
    def keep(off):
        A(f"ds_write_b32 v48, v44 offset:{off}")
        A("v_max_f32 v18, v18, v44")
    def pfrag(z):
        A(f"v_sub_f32 v44, v{z}, v18")
        A("v_exp_f32 v44, v44")
        A("v_cvt_pk_bf16_f32 v45, v44, v44")
        A("v_add_f32 v19, v19, v44")
        for j in range(4):
            dpp("v_and_b32", 36 + 2 * j, 45, 4, f"quad_perm:[{j},{j},{j},{j}]")
            dpp("v_and_b32", 37 + 2 * j, 45, 5, f"quad_perm:[{j},{j},{j},{j}]")
    def pv(VB):
        for j in range(4):
            A(f"v_mfma_f32_16x16x16_bf16 v[10:13], v[{36+2*j}:{37+2*j}], v[{VB+4*j}:{VB+4*j+1}], v[10:13]")
            A(f"v_mfma_f32_16x16x16_bf16 v[14:17], v[{36+2*j}:{37+2*j}], v[{VB+4*j+2}:{VB+4*j+3}], v[14:17]")
    def unitK(base, so):
        ld4(base, 2, 28, so, kf); ld4(base + 16, 244, 28, so, kf)

    A("s_cmp_ge_u32 s2, 256")
    A("s_cbranch_scc1 L_exit")
    A("s_load_dwordx16 s[4:19], s[0:1], 0")
    A("s_load_dwordx8 s[20:27], s[0:1], 64")
    stamp(0)
    if XT: A(f"s_xor_b32 s2, s2, {XT}")
    A("v_and_b32 v1, 63, v0")
    A("v_lshrrev_b32 v44, 6, v0")
    A("v_lshlrev_b32 v3, 4, v1")
    A("v_readfirstlane_b32 s3, v44")
    A("v_bfe_u32 v45, v1, 2, 2")
    A("v_lshrrev_b32 v46, 4, v1")
    A("v_and_b32 v47, 3, v1")
    A("v_lshlrev_b32 v2, 8, v45")
    A("v_lshl_add_u32 v2, v46, 6, v2")
    A("v_lshl_add_u32 v2, v47, 4, v2")
    A("v_add_u32 v244, 4096, v2")
    A("s_lshr_b32 s77, s2, 3"); A("s_and_b32 s76, s77, 7"); A("s_and_b32 s73, s2, 7"); A("s_lshr_b32 s78, s2, 6")
    A("s_lshl3_add_u32 s79, s78, s73")
    A("s_cmp_ge_u32 s76, 4"); A(f"s_cselect_b32 s67, {D0-D1}, 0"); A(f"s_sub_u32 s67, {D0}, s67")
    assert S0 - offT - offQ - LA >= 2 * (8 + 7 * NXT) and S0 - offQ - LA >= 2 * (8 + 7 * NX) and offT + offQ <= 64
    assert (S0 - LA) % 2 == 0 and offT % 2 == 0 and offQ % 2 == 0 and S0 * 256 <= L_END - L_S
    A(f"s_mul_i32 s59, s78, {8*S0-offT-2*offQ}"); A(f"s_mul_i32 s71, s73, {S0}"); A("s_add_u32 s59, s59, s71")
    if spread: A("s_mul_i32 s71, s78, s67"); A("s_add_u32 s59, s59, s71")
    A("s_cmp_ge_u32 s77, 28"); A(f"s_cselect_b32 s68, {offT-offF+offQ}, {offT+offQ}")
    A("s_cmp_eq_u32 s73, 0"); A("s_cselect_b32 s71, 0, s68"); A("s_cselect_b32 s70, s68, 0"); A("s_sub_u32 s59, s59, s71")
    A(f"s_cmp_gt_u32 s73, {X2}"); A(f"s_cselect_b32 s71, {offQ}, 0"); A("s_sub_u32 s59, s59, s71")
    A(f"s_cmp_eq_u32 s73, {X2}"); A(f"s_cselect_b32 s70, {offQ}, s70"); A("s_cselect_b32 s65, 1, 0")
    A(f"s_sub_u32 s70, {S0-LA}, s70")
    A("s_lshl_b32 s59, s59, 12"); A("s_lshl_b32 s70, s70, 12")
    if contig:
        A("s_cmp_eq_u32 s73, 0"); A(f"s_cselect_b32 s71, {NXT}, {NX}"); A("s_max_u32 s66, s3, 1"); A("s_sub_u32 s66, s66, 1"); A("s_mul_i32 s66, s66, s71"); A("s_add_u32 s66, s66, s3")
        A("s_lshl_b32 s66, s66, 13"); A("s_add_u32 s66, s66, s59")
    else:
        A("s_lshl_b32 s66, s3, 13"); A("s_add_u32 s66, s66, s59")
    XS = 1 if contig else 7
    A("s_lshl_b32 s71, s76, 24")
    A(f"s_mov_b32 s30, {OOB}"); A("s_mov_b32 s31, 0x20000"); A(f"s_mov_b32 s34, {OOB}"); A("s_mov_b32 s35, 0x20000")
    A(f"s_cmp_lg_u32 s70, {(S0-LA)*4096}")
    A("s_cbranch_scc1 L_qprod")
    A("s_waitcnt lgkmcnt(0)")
    A("s_add_u32 s28, s6, s71"); A("s_addc_u32 s29, s7, 0")
    A("s_add_u32 s32, s8, s71"); A("s_addc_u32 s33, s9, 0")
    if rot: A(f"s_mul_i32 s8, s76, {rot*4096}")
    A("s_load_dword s52, s[26:27], 0")
    A("s_cmp_eq_u32 s3, 0")
    A("s_cbranch_scc1 L_w0")
    if wpf:
        A(f"s_cmp_gt_u32 s73, {X2}"); A("s_subb_u32 s73, s73, 1"); A("s_mul_i32 s68, s77, 6"); A("s_add_u32 s73, s73, s68")
        A("s_mul_i32 s73, s73, 7"); A("s_add_u32 s73, s73, s3"); A("s_sub_u32 s73, s73, 1"); A("s_lshl_b32 s73, s73, 10")
        A("v_add_u32 v48, s73, v3")
        for k in range(1, 4): A(f"v_add_u32 v{48+k}, {k*1344*1024}, v48")
        n = 0
        for (lo, size) in ((12, 4 << 20), (16, 512 * 3584), (18, 512 * 3584), (20, 1792 * 1024)):
            d = 40 + 4 * (n & 1); n += 1
            srd(d, lo, lo + 1, size)
            for k in range(4 if lo == 12 else 2):
                A(f"buffer_load_dwordx4 v[{RA}:{RA+3}], v{48+k}, s[{d}:{d+3}], 0 offen")
    A.label("L_ring")
    if W: thr[0] = 0
    unitK(RA, 66)
    A(f"s_add_u32 s68, s66, {XS*8192}")
    for k in range(NX):
        if k == NXT:
            A("s_and_b32 s71, s2, 7"); A("s_cbranch_scc0 L_ringe")
        unitK(RX + 32 * k, 68)
        if k < NX - 1: A(f"s_add_u32 s68, s68, {XS*8192}")
    A.label("L_ringe")
    thr[0] = None
    srd(48, 4, 5, 1024)
    srd(36, 26, 27, WS_END)
    common_setup()
    A("s_waitcnt lgkmcnt(0)")
    tags()
    stamp(1)
    A("s_barrier")
    A("s_branch L_qj")
    A.label("L_qprod")
    A("v_lshrrev_b32 v44, 3, v1"); A("v_and_b32 v45, 7, v1")
    A("v_lshlrev_b32 v50, 16, v44")
    A("v_lshl_add_u32 v50, v45, 4, v50")
    A("v_lshlrev_b32 v51, 4, v44")
    A("s_lshl1_add_u32 s69, s78, s65"); A("s_lshl3_add_u32 s69, s76, s69")
    A("s_lshl_b32 s68, s69, 7"); A("s_lshl_b32 s73, s3, 19"); A("s_add_u32 s68, s68, s73")
    A("s_lshl_b32 s73, s3, 7")
    A("s_mov_b32 s50, 1024"); A("s_mov_b32 s51, 0x20000"); A(f"s_mov_b32 s42, {4<<20}"); A("s_mov_b32 s43, 0x20000")
    for i in range(1, 8): A(f"v_add_u32 v{35+i}, {8192*i}, v50")
    A("s_waitcnt lgkmcnt(0)")
    A("s_mov_b32 s48, s4"); A("s_mov_b32 s49, s5"); A("s_mov_b32 s40, s10"); A("s_mov_b32 s41, s11")
    A("buffer_load_dwordx4 v[52:55], v3, s[48:51], 0 offen")
    A("buffer_load_dwordx4 v[32:35], v51, s[48:51], s73 offen")
    for i in range(8):
        va = 50 if i == 0 else 35 + i
        A(f"buffer_load_dwordx4 v[{RA+4*i}:{RA+4*i+3}], v{va}, s[40:43], s68 offen {wf}")
    A("s_load_dword s52, s[26:27], 0")
    A("s_add_u32 s28, s6, s71"); A("s_addc_u32 s29, s7, 0")
    A("s_add_u32 s32, s8, s71"); A("s_addc_u32 s33, s9, 0")
    if rot: A(f"s_mul_i32 s8, s76, {rot*4096}")
    A("s_cmp_lg_u32 s3, 0"); A("s_cbranch_scc1 L_nz")
    A("s_cmp_lg_u32 s65, 0"); A("s_cbranch_scc1 L_nz")
    A(f"s_mul_i32 s73, s77, {cstride}"); A(f"s_add_u32 s73, s73, {CBUF}")
    A("v_mov_b32 v49, s73"); A("v_mov_b32 v48, 0")
    A("s_mov_b64 exec, 1")
    A("global_store_dword v49, v48, s[26:27] sc1")
    A("s_mov_b64 exec, -1")
    A.label("L_nz")
    A("v_lshrrev_b32 v49, 5, v1"); A("v_and_b32 v44, 1, v46")
    A("v_lshlrev_b32 v48, 8, v49"); A("v_lshl_add_u32 v48, v45, 5, v48"); A("v_lshl_add_u32 v48, v44, 4, v48")
    A("s_lshl_b32 s73, s3, 9"); A("v_add_u32 v48, s73, v48")
    common_setup()
    k32masks(6)
    if qprof: A("s_memrealtime s[90:91]")
    A("s_waitcnt vmcnt(8)")
    if qprof: A("s_memrealtime s[92:93]")
    for k in range(4):
        A(f"v_lshlrev_b32 v{36+2*k}, 16, v{52+k}")
        A(f"v_and_b32 v{37+2*k}, 0xffff0000, v{52+k}")
    for k in range(4):
        A(f"v_lshlrev_b32 v{20+2*k}, 16, v{32+k}")
        A(f"v_and_b32 v{21+2*k}, 0xffff0000, v{32+k}")
    ln_stats(list(range(36, 44)), 44, 45, 51)
    for k in range(8): A(f"v_sub_f32 v{20+k}, v{20+k}, v44")
    for k in range(8): rbf(20 + k, 20 + k)
    for k in range(8): A(f"v_mul_f32 v{20+k}, v{20+k}, v45")
    for k in range(8): A(f"v_cvt_pk_bf16_f32 v{20+k}, v{20+k}, v{20+k}")
    for i in range(8):
        for r in range(4): A(f"v_and_b32 v{RX+4*i+r}, v{20+i}, v{6+r}")
    A("s_waitcnt vmcnt(0)")
    if qprof: A("s_memrealtime s[98:99]")
    for i in range(8):
        c = "0" if i == 0 else "v[28:31]"
        A(f"v_mfma_f32_16x16x32_bf16 v[28:31], v[{RX+4*i}:{RX+4*i+3}], v[{RA+4*i}:{RA+4*i+3}], {c}")
    A("s_mov_b32 exec_lo, 0x00ff00ff"); A("s_mov_b32 exec_hi, 0xff00ff00")
    A(f"ds_write_b128 v48, v[28:31] offset:{L_RED}")
    A("s_mov_b64 exec, -1")
    A("s_waitcnt lgkmcnt(0)")
    A("s_barrier")
    A("s_cmp_lg_u32 s3, 0")
    A("s_cbranch_scc1 L_ringb" if qhold else "s_cbranch_scc1 L_ring")
    A("s_setprio 3")
    A("v_and_b32 v50, 15, v1"); A("v_lshlrev_b32 v49, 10, v46"); A("v_lshl_add_u32 v49, v50, 4, v49")
    for k in range(4): A(f"ds_read_b128 v[{20+4*k}:{23+4*k}], v49 offset:{L_RED+256*k}")
    srd(36, 26, 27, WS_END)
    tags()
    A("v_and_b32 v45, 1, v46"); A("v_lshlrev_b32 v45, 1, v45"); A("v_lshrrev_b32 v44, 1, v46"); A("v_or_b32 v45, v45, v44")
    A("v_lshl_add_u32 v45, v50, 2, v45"); A("v_lshlrev_b32 v45, 2, v45")
    A("v_mov_b32 v49, s57"); A("v_mov_b32 v51, s58")
    A("v_cmp_eq_u32 vcc, 0, v44")
    A("v_cndmask_b32 v49, v51, v49, vcc")
    A("s_lshl_b32 s71, s69, 8"); A(f"s_add_u32 s71, s71, {QBUF}")
    A("s_waitcnt lgkmcnt(0)")
    sum4x4()
    rbf(20, 20)
    A("v_or_b32 v20, v20, v49")
    A("buffer_store_dword v20, v45, s[36:39], s71 offen sc1")
    stamp(2)
    if qhold: A("s_barrier")
    if qprof: A("s_waitcnt vmcnt(0)"); A("s_memrealtime s[96:97]")
    A("s_branch L_w0b")
    if qhold:
        A.label("L_ringb")
        A("s_barrier")
        A("s_branch L_ring")
    A.label("L_w0")
    A("s_setprio 3")
    srd(48, 4, 5, 1024)
    srd(36, 26, 27, WS_END)
    common_setup()
    A("s_waitcnt lgkmcnt(0)")
    tags()
    A.label("L_w0b")
    if cpf0:
        A("s_getpc_b64 s[14:15]")
        A.label("L_pc0")
        A("s_min_u32 s71, s77, 22"); A("s_lshl_b32 s71, s71, 9"); A("s_add_u32 s14, s14, s71"); A("s_addc_u32 s15, s15, 0")
        A("v_lshlrev_b32 v48, 3, v1")
        A("global_load_dwordx2 v[30:31], v48, s[14:15]")
    A("s_and_b32 s71, s2, 7"); A(f"s_cselect_b32 s71, {8+7*NX}, {8+7*NXT}"); A("s_lshl_b32 s71, s71, 13")
    A(f"v_mov_b32 v52, {L_TK}"); A("v_mov_b32 v48, s71")
    A("ds_write_b32 v52, v48")
    for r in range(4): A(f"v_mov_b32 v{24+r}, -1")
    A("s_lshl_b32 s71, s76, 15"); A("s_lshl_b32 s73, s79, 10"); A("s_add_u32 s71, s71, s73"); A(f"s_add_u32 s71, s71, {OBUF}")
    A("buffer_store_dwordx4 v[24:27], v3, s[36:39], s71 offen sc1")
    A(f"ds_write_b128 v3, v[24:27] offset:{L_TB}")
    A(f"ds_write_b128 v3, v[24:27] offset:{L_TB+1024}")
    A("s_add_u32 s73, s59, s70")
    A("v_lshlrev_b32 v28, 12, v1"); A("v_add_u32 v28, s73, v28"); A("v_lshlrev_b32 v29, 2, v1")
    A("v_cmp_eq_u32 vcc, 0, v1"); A("v_addc_co_u32 v28, vcc, 0, v28, vcc")
    A(f"s_mov_b64 exec, {(1 << LA) - 1}")
    A(f"ds_write_b32 v29, v28 offset:{L_TB}")
    A("s_mov_b64 exec, -1")
    A("v_lshlrev_b32 v44, 1, v2")
    A("s_lshl_b32 s71, s76, 11"); A(f"s_add_u32 s71, s71, {QBUF}")
    A("s_add_u32 s14, s26, s71"); A("s_addc_u32 s15, s27, 0")
    A.label("L_qhint")
    for k in range(8): A(f"s_load_dword s{40+k}, s[14:15], {256*k} glc")
    A("s_waitcnt lgkmcnt(0)")
    for k in range(8): A(f"s_xor_b32 s{40+k}, s{40+k}, s57")
    for k in range(1, 8): A(f"s_or_b32 s40, s40, s{40+k}")
    A("s_and_b32 s40, s40, 0xffff")
    A("s_cbranch_scc0 L_qpoll")
    spin("L_qhint", qslp)
    A.label("L_qpoll")
    if qprof: A("s_memrealtime s[94:95]")
    A("buffer_load_dwordx4 v[20:23], v44, s[36:39], s71 offen sc1")
    A("buffer_load_dwordx4 v[24:27], v44, s[36:39], s71 offen offset:16 sc1")
    A("s_mov_b32 s73, 0x07060302")
    A("s_waitcnt vmcnt(0)")
    for e in range(8): A(f"v_xor_b32 v{20+e}, s{57+(e&1)}, v{20+e}")
    A("v_or3_b32 v45, v20, v21, v22"); A("v_or3_b32 v45, v45, v23, v24"); A("v_or3_b32 v45, v45, v25, v26"); A("v_or_b32 v45, v45, v27")
    A("v_and_b32 v45, 0xffff, v45")
    A("v_cmp_ne_u32 vcc, 0, v45")
    A("s_cbranch_vccz L_q_ok")
    spin("L_qpoll")
    A.label("L_q_ok")
    for k in range(4): A(f"v_perm_b32 v{6+k}, v{21+2*k}, v{20+2*k}, s73")
    A(f"ds_write_b128 v3, v[6:9] offset:{L_QF}")
    A("s_waitcnt lgkmcnt(0)")
    stamp(1)
    A("s_barrier")
    unitK(RA, 66)
    A("s_setprio 0")
    A.label("L_qj")
    A(f"ds_read_b128 v[6:9], v3 offset:{L_QF}")
    A(f"v_mov_b32 v52, {L_TK}"); A("v_mov_b32 v53, 8192")
    A("s_mov_b32 s69, 3"); A("s_mov_b32 s11, 0"); A("s_lshl_b32 s10, s70, 1")
    A("v_add_u32 v245, 4096, v3")
    A("s_lshr_b32 s71, s59, 4"); A(f"s_sub_u32 s71, {L_S}, s71"); A("v_lshl_add_u32 v246, v1, 2, s71")
    if trace: A("s_mov_b32 s98, 0"); A("v_mov_b32 v244, 0")
    A(f"s_mul_i32 s58, s77, {cstride}"); A(f"s_add_u32 s58, s58, {CBUF}")
    if spread:
        A(f"s_add_u32 s57, s67, {8*S0-offT-2*offQ}"); A("s_add_u32 s71, s78, 1"); A("s_mul_i32 s57, s57, s71")
        A("s_cmp_eq_u32 s78, 3"); A("s_cselect_b32 s57, 4096, s57"); A("s_sub_u32 s57, s57, s67"); A("s_lshl_b32 s57, s57, 12")
    else:
        A("s_sub_u32 s57, 4, s78"); A("s_mul_i32 s57, s57, s67"); A("s_sub_u32 s57, 4096, s57"); A("s_lshl_b32 s57, s57, 12")
    if ew < 8:
        A(f"s_sub_u32 s101, s67, {ewx}"); A("s_lshl_b32 s101, s101, 12"); A("s_add_u32 s101, s101, s57")
        A(f"s_cmp_ge_u32 s3, {ew}"); A("s_cselect_b32 s101, s101, -1")
    stamp(3)
    if aw < 8:
        A(f"s_cmp_lt_u32 s3, {aw}")
        A("s_cbranch_scc1 L_k")
        A("s_mov_b32 s11, 5")
        A("s_lshr_b32 s73, s66, 4"); A("v_add_u32 v48, s73, v246")
        A("s_waitcnt vmcnt(0) lgkmcnt(0)")
        for hf in range(2):
            qk(RA + 16 * hf); extract(); keep(256 * hf)
        A("s_branch L_first")
    A.label("L_k")
    draw()
    A("s_lshr_b32 s73, s66, 4"); A("v_add_u32 v48, s73, v246")
    A("s_waitcnt vmcnt(4) lgkmcnt(0)")
    A("v_readfirstlane_b32 s71, v54")
    qk(RA)
    A("s_add_u32 s66, s71, s59")
    A("s_cmp_ge_u32 s71, s70")
    A("s_cbranch_scc1 L_k2v0")
    ld4(RA, 2, 28, 66, kf)
    A.label("L_k0r")
    extract(); keep(0)
    A("s_waitcnt vmcnt(4)")
    qk(RA + 16)
    A("s_cmp_lg_u32 s11, 0")
    A("s_cbranch_scc1 L_k2v1")
    ld4(RA + 16, 244, 28, 66, kf)
    A.label("L_k1r")
    extract(); keep(256)
    A("s_cmp_eq_u32 s69, 3")
    A("s_cbranch_scc1 L_first")
    A.label("L_kn")
    A("s_cmp_eq_u32 s11, 0")
    A("s_cbranch_scc1 L_k")
    quad_all(18, "v_max_f32")
    rows_all(18, 49, "v_max_f32")
    A(f"ds_write_b32 v{TC+2}, v18 offset:{L_MX2}")
    if wsplit:
        A("s_cmp_lg_u32 s69, 0")
        A("s_cbranch_scc1 L_setup2")
        A.label("L_s2r")
    A(f"v_and_b32 v49, 0x60, v{TC+2}")
    A("s_waitcnt lgkmcnt(0)")
    A("s_barrier")
    A(f"ds_read_b128 v[20:23], v49 offset:{L_MX2}")
    A(f"ds_read_b128 v[24:27], v49 offset:{L_MX2+16}")
    A("s_waitcnt lgkmcnt(0)")
    A("v_max3_f32 v18, v20, v21, v22"); A("v_max3_f32 v18, v18, v23, v24"); A("v_max3_f32 v18, v18, v25, v26"); A("v_max_f32 v18, v18, v27")
    if warm:
        A(f"s_cmp_lg_u32 s3, {wwave}")
        A("s_cbranch_scc1 L_v")
        A("s_mov_b32 s11, 4")
        A("s_mov_b64 exec, 0")
        A("s_branch L_wp0")
        A.label("L_wret")
        A("s_cmp_lg_u32 s11, 4")
        A("s_cbranch_scc1 L_exit")
        A("s_mov_b32 s11, 1")
        A("s_mov_b64 exec, -1")
    if aw < 8:
        A("s_cmp_eq_u32 s11, 5")
        A("s_cbranch_scc1 L_done")
    A.label("L_v")
    draw()
    A("s_lshr_b32 s73, s66, 4"); A("v_add_u32 v48, s73, v246")
    A("ds_read2_b32 v[20:21], v48 offset0:0 offset1:64")
    A("s_waitcnt lgkmcnt(0)")
    A("v_readfirstlane_b32 s71, v54")
    pfrag(20)
    A("s_waitcnt vmcnt(4)")
    pv(RA)
    A("s_add_u32 s66, s71, s59"); A("s_sub_u32 s66, s66, s70")
    A("s_cmp_ge_u32 s71, s10")
    A("s_cbranch_scc1 L_v2c")
    ld4(RA, 3, 32, 66, vf)
    pfrag(21)
    A("s_waitcnt vmcnt(4)")
    pv(RA + 16)
    ld4(RA + 16, 245, 32, 66, vf)
    A("s_branch L_v")
    A.label("L_k2v0")
    A("s_sub_u32 s66, s66, s70"); A("s_mov_b32 s11, 1")
    ld4(RA, 3, 32, 66, vf)
    A("s_branch L_k0r")
    A.label("L_k2v1")
    ld4(RA + 16, 245, 32, 66, vf)
    A("s_branch L_k1r")
    A.label("L_v2c")
    A("s_mov_b32 s11, 2")
    A("s_branch L_dyn")
    A.label("L_vc0")
    A("s_mov_b32 s11, 3")
    ld4(RA, 2, 28, 66, kf)
    pfrag(21)
    A("s_waitcnt vmcnt(4)")
    pv(RA + 16)
    ld4(RA + 16, 3, 32, 66, vf)
    A("s_cmp_ge_u32 s66, s30")
    A("s_cbranch_scc1 L_done")
    def softmax(tag):
        extract()
        A("v_cmp_gt_f32 vcc, v44, v18")
        A(f"s_cbranch_vccz L_nors{tag}")
        A("v_max_f32 v45, v44, v18")
        quad_all(45, "v_max_f32")
        rows_all(45, 46, "v_max_f32")
        A("v_sub_f32 v46, v18, v45")
        A("v_exp_f32 v46, v46")
        A("v_mov_b32 v18, v45")
        A("v_mul_f32 v19, v19, v46")
        for h in range(4): A(f"v_mov_b32_dpp v47, v46 row_newbcast:{4*h} row_mask:{hex(1<<h)} bank_mask:0xf")
        for r in range(10, 18): A(f"v_mul_f32 v{r}, v{r}, v47")
        A.label(f"L_nors{tag}")
        pfrag(44)
    def cbody(tag, mode, vcur, vnext, last):
        A.label(f"L_loop{tag}")
        draw()
        A(f"s_mov_b32 s11, {mode}")
        A("s_waitcnt lgkmcnt(0)")
        A("v_readfirstlane_b32 s71, v54")
        A("s_branch L_dyn")
        A.label(f"L_gox{tag}")
        A("s_waitcnt vmcnt(4)")
        qk(RA)
        A(f"s_branch L_goy{tag}")
        A.label(f"L_go{tag}")
        A("s_waitcnt vmcnt(4)")
        qk(RA)
        ld4(RA, 2, 28, 66, kf)
        if vnext != vcur: ld4(vnext, 3, 32, 66, vf)
        A.label(f"L_goy{tag}")
        A("s_nop 4")
        softmax(tag)
        A("s_cmp_ge_u32 s66, s30")
        A(f"s_cbranch_scc1 {last}")
        A(f"s_waitcnt vmcnt({4 if vnext == vcur else 8})")
        pv(vcur)
        if vnext == vcur: ld4(vcur, 3, 32, 66, vf)
    if dv:
        A("s_cmp_eq_u32 s69, 0")
        A("s_cbranch_scc1 L_loopa")
    cbody("", 3, RA + 16, RA + 16, "L_last")
    A("s_branch L_loop")
    if dv:
        cbody("a", 6, RA + 16, RX, "L_last")
        cbody("b", 7, RX, RA + 16, "L_lastb")
        A("s_branch L_loopa")
    A.label("L_first")
    A("s_mov_b32 s69, 0")
    A("s_cmp_eq_u32 s3, 0")
    A("s_cbranch_scc1 L_setup")
    A("s_waitcnt vmcnt(8)")
    for k in range(NX):
        if k == NXT:
            A("s_and_b32 s71, s2, 7"); A("s_cbranch_scc0 L_setup")
        for hf in range(2):
            qk(RX + 32 * k + 16 * hf); extract(); keep((XS + XS * k) * 512 + 256 * hf)
    A.label("L_setup")
    A("v_lshrrev_b32 v46, 4, v1"); A("v_and_b32 v47, 3, v1"); A("v_bfe_u32 v45, v1, 2, 2"); A("v_and_b32 v50, 15, v1")
    A("v_and_b32 v48, 1, v46"); A("v_lshlrev_b32 v48, 1, v48"); A("v_lshrrev_b32 v49, 1, v46"); A("v_or_b32 v48, v48, v49")
    A("s_lshl_b32 s71, s3, 11"); A(f"v_lshlrev_b32 v{TC}, 5, v1"); A(f"v_add_u32 v{TC}, s71, v{TC}")
    A("s_lshl_b32 s71, s3, 3"); A(f"v_lshlrev_b32 v{TC+1}, 6, v45"); A(f"v_add_u32 v{TC+1}, s71, v{TC+1}")
    A(f"v_lshrrev_b32 v{TC+2}, 1, v{TC+1}")
    A("s_lshl_b32 s71, s3, 8"); A(f"v_lshlrev_b32 v{TC+3}, 12, v46"); A(f"v_lshl_add_u32 v{TC+3}, v50, 4, v{TC+3}"); A(f"v_add_u32 v{TC+3}, s71, v{TC+3}")
    A("s_lshr_b32 s71, s3, 1"); A("s_lshl_b32 s73, s71, 6"); A(f"v_lshlrev_b32 v{TC+4}, 4, v46"); A(f"v_add_u32 v{TC+4}, s73, v{TC+4}")
    A("s_lshl_b32 s73, s71, 5"); A(f"v_mov_b32 v{TC+5}, s73")
    A(f"v_lshl_add_u32 v{TC+6}, v50, 2, v48"); A(f"v_lshlrev_b32 v{TC+6}, 1, v{TC+6}")
    A("s_lshl_b32 s0, s76, 15"); A("s_lshl_b32 s73, s79, 10"); A("s_add_u32 s0, s0, s73")
    A("s_lshl_b32 s73, s3, 7"); A("s_add_u32 s0, s0, s73"); A(f"s_add_u32 s0, s0, {OBUF}")
    A("s_lshr_b32 s73, s3, 1"); A("s_lshl2_add_u32 s1, s76, s73"); A("s_lshl_b32 s1, s1, 5"); A("s_add_u32 s1, s1, s79")
    A(f"s_lshl_b32 s1, s1, {mlsh}"); A(f"s_add_u32 s1, s1, {MLBUF}")
    A(f"v_lshlrev_b32 v{TC+10}, 1, v1")
    if opre is not None:
        A(f"buffer_load_dword v44, v{TC+10}, s[36:39], s0 offen {opre}")
        A("s_mov_b64 exec, 1")
        A(f"buffer_load_dword v45, v3, s[36:39], s1 offen {opre}")
        A("s_mov_b64 exec, -1")
        A("s_waitcnt vmcnt(0)")
    if tlbpf:
        A("s_cmp_lg_u32 s3, 0"); A("s_cbranch_scc1 L_notlb")
        A(f"v_lshlrev_b32 v44, {tlbpf}, v1")
        A(f"s_mov_b64 exec, {(1 << ((1 << (20 - tlbpf)) + 1)) - 1}")
        A("buffer_load_dword v245, v44, s[28:31], s57 offen nt")
        A("buffer_load_dword v246, v44, s[32:35], s57 offen nt")
        A("s_mov_b64 exec, -1")
        A.label("L_notlb")
    A("s_and_b32 s71, s2, 7")
    A("s_cbranch_scc1 L_kn")
    A("s_mov_b32 s69, 2")
    A("s_getreg_b32 s78, hwreg(HW_REG_XCC_ID, 0, 4)"); A("s_lshl_b32 s78, s78, 8")
    A("s_cmp_lg_u32 s3, 0"); A("s_cbranch_scc1 L_nox")
    for r in range(4): A(f"v_mov_b32 v{24+r}, -1")
    A("s_cmp_ge_u32 s77, 28"); A("s_cselect_b32 s71, 0, -1")
    for r in range(4): A(f"v_mov_b32 v{28+r}, s71")
    A("s_lshl_b32 s71, s77, 11"); A(f"s_add_u32 s71, s71, {YBUF}")
    A("buffer_store_dwordx4 v[28:31], v3, s[36:39], s71 offen sc1")
    A("buffer_store_dwordx4 v[28:31], v3, s[36:39], s71 offen offset:1024 sc1")
    A("s_lshl_b32 s71, s77, 9"); A(f"s_add_u32 s71, s71, {HBUF}")
    A("s_mov_b32 exec_hi, 0")
    A("buffer_store_dwordx4 v[24:27], v3, s[36:39], s71 offen sc1")
    A("s_mov_b32 exec_hi, -1")
    A("s_waitcnt vmcnt(0)")
    A("s_or_b32 s71, s78, s53")
    A("v_mov_b32 v20, s71"); A("v_mov_b32 v21, s54"); A("v_mov_b32 v22, s55"); A("v_mov_b32 v23, s56")

    A("s_lshl_b32 s71, s77, 4"); A(f"s_add_u32 s71, s71, {XBUF}")
    A("s_mov_b64 exec, 1")
    A("buffer_store_dwordx4 v[20:23], v3, s[36:39], s71 offen sc1")
    A("s_mov_b64 exec, -1")
    A.label("L_nox")
    if gupf:
        A("s_lshl3_add_u32 s71, s77, s3"); A("s_mul_i32 s71, s71, 7168"); A("s_add_u32 s73, s71, 4096")
        for d, lo in ((40, 16), (44, 18)):
            srd(d, lo, lo + 1, 512 * 3584)
            for k in range(7):
                A(f"buffer_load_dwordx4 v[{WGU}:{WGU+3}], v3, s[{d}:{d+3}], s{71 if k < 4 else 73} offen offset:{1024*(k&3)}")
    srd(40, 12, 13, 4 << 20)
    A("s_lshr_b32 s68, s77, 1")
    A("s_lshl_b32 s71, s68, 18"); A("s_lshr_b32 s73, s3, 1"); A("s_lshl_b32 s73, s73, 16"); A("s_add_u32 s71, s71, s73")
    A("s_and_b32 s73, s3, 1"); A("s_lshl_b32 s73, s73, 10"); A("s_add_u32 s71, s71, s73")
    A("s_and_b32 s73, s77, 1"); A("s_lshl_b32 s73, s73, 9"); A("s_add_u32 s71, s71, s73")
    A("v_and_b32 v45, 1, v46"); A("v_lshlrev_b32 v45, 15, v45"); A("v_lshl_add_u32 v45, v49, 13, v45")
    A("v_lshlrev_b32 v44, 4, v50"); A("v_add_u32 v45, v45, v44"); A("v_lshl_add_u32 v44, v48, 11, v44")
    for jh in range(2):
        for half in range(2):
            for jl in range(2):
                for c2 in range(2):
                    r = WO + 8 * (4 * c2 + 2 * jh + jl) + 4 * half
                    A(f"buffer_load_dwordx4 v[{r}:{r+3}], v45, s[40:43], s71 offen offset:{2048*jl+256*c2} {wf}")
            if (jh, half) != (1, 1): A(f"s_add_u32 s71, s71, {4096 if half == 0 else 16384-4096}")
    A("v_and_b32 v51, 7, v1"); A("v_bfe_u32 v49, v1, 3, 1")
    A(f"v_lshl_add_u32 v{TC+25}, v48, 1, v49"); A(f"v_lshl_add_u32 v{TC+25}, v51, 3, v{TC+25}")
    A("s_lshl_b32 s71, s3, 6"); A(f"v_add_lshl_u32 v{TC+25}, v{TC+25}, s71, 1")
    A(f"buffer_load_ushort v{TC+13}, v{TC+25}, s[48:51], 0 offen")
    A("v_and_b32 v51, 7, v1"); A("v_and_b32 v45, 1, v46"); A("v_lshrrev_b32 v49, 5, v1")
    A(f"v_lshrrev_b32 v{TC+9}, 2, v1")
    A(f"v_lshlrev_b32 v{TC+8}, 11, v{TC+9}"); A(f"v_lshl_add_u32 v{TC+8}, v47, 4, v{TC+8}")
    A(f"v_and_b32 v{TC+7}, 1, v1"); A(f"v_lshl_add_u32 v{TC+9}, v{TC+9}, 1, v{TC+7}"); A(f"v_lshlrev_b32 v{TC+9}, {mlsh}, v{TC+9}")
    A(f"v_lshlrev_b32 v{TC+24}, 4, v45"); A(f"v_lshl_add_u32 v{TC+24}, v50, 5, v{TC+24}")
    A(f"v_lshl_add_u32 v{TC+11}, v49, 9, v{TC+24}"); A("s_lshl_b32 s71, s3, 10"); A(f"v_add_u32 v{TC+11}, s71, v{TC+11}")
    A(f"v_lshrrev_b32 v{TC+24}, 1, v{TC+24}")
    A(f"v_lshrrev_b32 v{TC+14}, 3, v1"); A(f"v_lshlrev_b32 v{TC+14}, 10, v{TC+14}"); A(f"v_lshl_add_u32 v{TC+14}, v51, 4, v{TC+14}")
    A(f"v_lshrrev_b32 v{TC+12}, 3, v1"); A(f"v_lshlrev_b32 v{TC+12}, 10, v{TC+12}"); A(f"v_lshl_add_u32 v{TC+12}, v51, 4, v{TC+12}"); A("s_lshl_b32 s71, s3, 7"); A(f"v_add_u32 v{TC+12}, s71, v{TC+12}")
    A("s_lshl_b32 s71, s3, 4"); A(f"v_lshlrev_b32 v{TC+20}, 3, v49"); A(f"v_add_u32 v{TC+20}, s71, v{TC+20}"); A(f"v_lshlrev_b32 v{TC+21}, 4, v51")
    A("v_bfe_u32 v49, v1, 3, 1")
    A(f"v_lshlrev_b32 v{TC+23}, 11, v46"); A(f"v_lshl_add_u32 v{TC+23}, v49, 8, v{TC+23}"); A(f"v_lshl_add_u32 v{TC+23}, v51, 4, v{TC+23}")
    A("s_lshr_b32 s71, s3, 2"); A("s_lshl_b32 s71, s71, 7"); A(f"v_add_u32 v{TC+23}, s71, v{TC+23}")
    A("s_lshl_b32 s71, s3, 13"); A(f"s_add_u32 s71, s71, {L_WD}"); A(f"v_add_u32 v{TC+26}, s71, v3")
    A("s_mov_b32 m0, s71")
    A(f"v_lshrrev_b32 v{TC+22}, 1, v1"); A(f"v_lshlrev_b32 v{TC+22}, 10, v{TC+22}"); A("v_and_b32 v45, 1, v1"); A(f"v_lshl_add_u32 v{TC+22}, v45, 4, v{TC+22}")
    srd(44, 22, 23, 1024)
    if wsplit:
        A("s_branch L_kn")
        A.label("L_setup2")
        A("v_lshrrev_b32 v46, 4, v1"); A("v_and_b32 v50, 15, v1"); A("v_and_b32 v51, 7, v1")
        A("v_and_b32 v48, 1, v46"); A("v_lshlrev_b32 v48, 1, v48"); A("v_lshrrev_b32 v49, 1, v46"); A("v_or_b32 v48, v48, v49")
        A("v_lshlrev_b32 v44, 4, v50"); A("v_lshl_add_u32 v44, v48, 11, v44"); A("v_bfe_u32 v49, v1, 3, 1")
    A("s_cmp_ge_u32 s77, 28")
    A("s_cbranch_scc1 L_suj")
    A("s_mov_b32 s69, 1")
    A("s_lshl_b32 s71, s3, 6"); A("v_lshl_add_u32 v45, v48, 2, s71")
    A("v_mul_u32_u24 v45, 3584, v45"); A("v_lshl_add_u32 v45, v51, 4, v45"); A("s_lshl_b32 s71, s77, 7"); A("v_add_u32 v45, s71, v45")
    A("v_cmp_eq_u32 vcc, 0, v49")
    A("v_mov_b32 v20, s16"); A("v_mov_b32 v21, s18"); A("v_cndmask_b32 v20, v21, v20, vcc")
    A("v_mov_b32 v21, s17"); A("v_mov_b32 v22, s19"); A("v_cndmask_b32 v21, v22, v21, vcc")
    A("v_add_co_u32 v20, vcc, v20, v45"); A("v_addc_co_u32 v21, vcc, 0, v21, vcc")
    srd(40, 20, 21, 1792 * 1024)
    A("s_lshl_b32 s71, s77, 16"); A("s_lshr_b32 s73, s3, 2"); A("s_lshl_b32 s73, s73, 15"); A("s_add_u32 s71, s71, s73")
    A("s_and_b32 s73, s3, 3"); A("s_lshl_b32 s73, s73, 8"); A("s_add_u32 s71, s71, s73")
    for i in range(8):
        A(f"buffer_load_dwordx4 v44, s[40:43], s71 offen {wf} lds")
        if i < 7: A(f"s_add_u32 s71, s71, {1024 if i % 2 == 0 else 7168}"); A("s_add_u32 m0, m0, 1024")
    if gupf: A("s_waitcnt vmcnt(24)")
    for j in range(4):
        for half in range(2):
            for v in range(2):
                r = WGU + 8 * (4 * v + j) + 4 * half
                A(f"global_load_dwordx4 v[{r}:{r+3}], v[20:21], off offset:{3584*v} {'' if gupf else wf}")
            if (j, half) != (3, 1): A(f"v_add_co_u32 v20, vcc, {(2 if half == 0 else 14)*3584}, v20"); A("v_addc_co_u32 v21, vcc, 0, v21, vcc")
    A.label("L_suj")
    A("s_lshl_b32 s22, s77, 5"); A(f"s_add_u32 s22, s22, {YBUF}")
    A("s_add_u32 s23, s22, 32768")
    A("s_lshl_b32 s24, s3, 7"); A(f"s_add_u32 s24, s24, {HBUF}"); A("s_add_u32 s25, s24, 8192")
    A("s_lshr_b32 s16, s68, 1"); A("s_lshl_b32 s16, s16, 15"); A("s_and_b32 s71, s68, 1"); A("s_lshl_b32 s71, s71, 9"); A("s_add_u32 s16, s16, s71")
    A("s_lshl_b32 s71, s3, 6"); A("s_add_u32 s16, s16, s71"); A(f"s_add_u32 s16, s16, {OBUF}")
    A("s_lshr_b32 s71, s3, 2"); A("s_lshl1_add_u32 s20, s68, s71"); A(f"s_lshl_b32 s20, s20, {5+mlsh}"); A(f"s_add_u32 s20, s20, {MLBUF}")
    A("s_lshl_b32 s21, s77, 9"); A("s_lshl_b32 s73, s3, 6"); A("s_add_u32 s21, s21, s73"); A(f"s_add_u32 s21, s21, {HBUF}")
    A("s_lshl_b32 s18, s77, 11"); A("s_lshl_b32 s71, s3, 8"); A("s_add_u32 s18, s18, s71"); A(f"s_add_u32 s18, s18, {YBUF}")
    A("s_lshr_b32 s68, s77, 2")
    A("s_branch L_s2r" if wsplit else "s_branch L_kn")

    A.label("L_dyn")
    A("s_sub_u32 s73, s71, s10"); A("s_lshr_b32 s73, s73, 11")
    A("v_mov_b32 v48, s73")
    A.label("L_dynw")
    A(f"ds_read_b32 v49, v48 offset:{L_TB}")
    A("s_waitcnt lgkmcnt(0)")
    A("v_readfirstlane_b32 s66, v49")
    A("s_cmp_lg_u32 s66, -1")
    A("s_cbranch_scc1 L_dyng")
    spin("L_dynw")
    A.label("L_dyng")
    if t1:
        A("s_cmp_eq_u32 s66, 2")
        A("s_cbranch_scc1 L_self")
    if skipoob:
        A("s_cmp_ge_u32 s66, s30")
        A("s_cbranch_scc1 L_dretx")
    if perm is None:
        A("s_bitcmp1_b32 s66, 0")
        A("s_cbranch_scc0 L_dret")
        A("s_and_b32 s66, s66, -2")
        A("s_max_u32 s71, s66, s57"); A("s_sub_u32 s71, s71, s57"); A("s_lshr_b32 s71, s71, 12"); A("s_sub_u32 s71, s67, s71")
    else:
        A("s_and_b32 s71, s66, 0xfff")
        A("s_and_b32 s66, s66, 0xfffff000")
        A("s_bitcmp1_b32 s71, 0")
        A("s_cbranch_scc0 L_dret")
        A("s_lshr_b32 s71, s71, 1"); A("s_sub_u32 s71, s67, s71")
    if tT:
        if tS:
            A(f"s_mul_i32 s14, s73, {sm}"); A("s_lshr_b32 s14, s14, 2"); A("s_add_u32 s14, s14, s71")
            A("s_cmp_lt_u32 s14, s67"); A(f"s_cselect_b32 s15, {tS}, 0")
            A("s_and_b32 s14, s2, 7"); A("s_cmp_eq_u32 s14, 2"); A("s_cselect_b32 s15, 0, s15")
            A("s_cmp_lg_u32 s14, 0"); A(f"s_cselect_b32 s14, s15, {tT}")
        else:
            A("s_and_b32 s14, s2, 7"); A(f"s_cselect_b32 s14, 0, {tT}")
        A("s_cmp_gt_u32 s71, s14")
        A("s_cbranch_scc1 L_dynt")
        A("v_lshl_add_u32 v48, v1, 2, v48")
        A("v_mov_b32 v51, s30")
        A(f"ds_write_b32 v48, v51 offset:{L_TB+4*LA}")
        A("s_branch L_dret")
        A.label("L_dynt")
    if t2:
        assert LA == 1
        A(f"s_cmp_gt_u32 s71, {t2}"); A("s_cselect_b32 s15, 2, 1")
        A(f"s_cmp_gt_u32 s71, {t4}"); A("s_cselect_b32 s15, 4, s15")
    else:
        A(f"s_cmp_gt_u32 s71, {t4}"); A("s_cselect_b32 s15, 4, 2")
    A(f"s_cmp_gt_u32 s71, {t8}"); A(f"s_cselect_b32 s15, {b0}, s15")
    A("s_mov_b32 s14, s15")
    A("s_atomic_add s14, s[26:27], s58 glc")
    A("v_lshl_add_u32 v48, v1, 2, v48")
    A(f"s_sub_u32 s73, s15, {LA}")
    A("s_waitcnt lgkmcnt(0)")
    A("v_add_u32 v49, s14, v1")
    if perm is None:
        A("v_lshlrev_b32 v50, 12, v49"); A("v_add_u32 v50, s57, v50")
    else:
        lg = perm
        A(f"v_lshrrev_b32 v50, {lg}, v49"); A("v_bfrev_b32 v50, v50"); A(f"v_lshrrev_b32 v50, 24, v50")
        A(f"v_and_or_b32 v50, v49, {(1 << lg) - 1}, v50")
        A("v_cmp_gt_u32 vcc, 0x100, v49"); A("v_cndmask_b32 v50, v49, v50, vcc")
        A("v_lshlrev_b32 v50, 12, v50"); A("v_add_u32 v50, s57, v50"); A("v_lshl_add_u32 v50, v49, 1, v50")
    A("s_add_u32 s14, s14, s15")
    A("s_cmp_ge_u32 s14, s67")
    A("s_cbranch_scc1 L_dynx")
    if t1:
        A(f"s_add_u32 s14, s14, {t1}")
        A("s_cmp_ge_u32 s14, s67")
        A("s_cbranch_scc1 L_dyns")
    A("v_cmp_eq_u32 vcc, s73, v1"); A("v_addc_co_u32 v50, vcc, 0, v50, vcc")
    A("v_cmp_gt_u32 vcc, s15, v1")
    A("s_mov_b64 exec, vcc")
    A(f"ds_write_b32 v48, v50 offset:{L_TB+4*LA}")
    A("s_mov_b64 exec, -1")
    A("s_branch L_dret")
    A.label("L_dynx")
    A("v_mov_b32 v51, s30")
    A("v_cmp_gt_u32 vcc, s67, v49")
    A("v_cndmask_b32 v50, v51, v50, vcc")
    A(f"ds_write_b32 v48, v50 offset:{L_TB+4*LA}")
    A("s_branch L_dret")
    if t1:
        A.label("L_dyns")
        A("v_cmp_gt_u32 vcc, s15, v1")
        A("v_cndmask_b32 v50, 2, v50, vcc")
        A(f"ds_write_b32 v48, v50 offset:{L_TB+4*LA}")
        A("s_branch L_dret")
        A.label("L_self")
        A("s_mov_b32 s14, 1")
        A("s_atomic_add s14, s[26:27], s58 glc")
        A("v_lshl_add_u32 v48, v1, 2, v48")
        A("v_mov_b32 v51, s30")
        A("s_waitcnt lgkmcnt(0)")
        A("s_lshl_b32 s66, s14, 12"); A("s_add_u32 s66, s66, s57")
        A("s_cmp_lt_u32 s14, s67")
        A("s_cbranch_scc1 L_dret")
        A("s_mov_b32 s66, s30")
        A(f"ds_write_b32 v48, v51 offset:{L_TB+4}")
        A("s_branch L_dret")

    for sfx in ("", "x"):
        A.label(f"L_dret{sfx}")
        for mode, tag in ([(6, "a"), (7, "b")] if dv else []) + [(3, "")]:
            A(f"s_cmp_eq_u32 s11, {mode}")
            A(f"s_cbranch_scc1 L_go{sfx}{tag}")
        A("s_branch L_vc0")
    def lred():
        quad_all(19, "v_add_f32")
        A(f"ds_write_b32 v{TC+2}, v18 offset:{L_MX}")
        rows_all(19, 49, "v_add_f32")
        A(f"ds_write_b64 v{TC+1}, v[18:19] offset:{L_ML}")
    A.label("L_done")
    lred()
    if skipoob:
        A("s_branch L_done2")
        if dv:
            A.label("L_lastb")
            lred()
            A("s_waitcnt vmcnt(0)")
            pv(RX)
            A("s_branch L_done2")
        A.label("L_last")
        A(".warm_on")
        lred()
        A("s_waitcnt vmcnt(0)")
        if trace: tr()
        VB = RA + 16
        for j in range(4):
            A(f"v_mfma_f32_16x16x16_bf16 v[10:13], v[{36+2*j}:{37+2*j}], v[{VB+4*j}:{VB+4*j+1}], v[10:13]")
            A(f"v_mfma_f32_16x16x16_bf16 v[14:17], v[{36+2*j}:{37+2*j}], v[{VB+4*j+2}:{VB+4*j+3}], v[14:17]")
        A.label("L_done2")
    stamp(4)
    if trace:
        A("s_lshl_b32 s71, s2, 3"); A("s_add_u32 s71, s71, s3"); A("s_lshl_b32 s71, s71, 8"); A("s_add_u32 s71, s71, 0x200000")
        A("v_lshlrev_b32 v48, 2, v1"); A("v_add_u32 v48, s71, v48")
        A("global_store_dword v48, v244, s[26:27]")
    if cut == 1: A("s_branch L_end")
    A("s_mov_b32 s73, 0xffffff00"); A("s_mov_b32 s60, 0xfffefffe")
    A("v_mov_b32 v47, s53"); A("v_mov_b32 v48, s54"); A("v_mov_b32 v39, s56")
    A(f"ds_write_b128 v{TC}, v[10:13] offset:{L_OM}")
    A(f"ds_write_b128 v{TC}, v[14:17] offset:{L_OM+16}")
    A("s_cmp_eq_u32 s69, 1")
    A("s_cbranch_scc1 L_cs")
    A.label("L_csr")
    A("s_waitcnt lgkmcnt(0)")
    A("s_barrier")
    stamp(5)
    A(f"ds_read_b128 v[20:23], v{TC+5} offset:{L_MX}")
    A(f"ds_read_b128 v[24:27], v{TC+5} offset:{L_MX+16}")
    A(f"ds_read_b128 v[28:31], v{TC+4} offset:{L_ML}")
    A(f"ds_read_b128 v[10:13], v{TC+3} offset:{L_OM}")
    A(f"ds_read_b128 v[14:17], v{TC+3} offset:{L_OM+2048}")
    A("s_waitcnt lgkmcnt(3)")
    A("v_max3_f32 v36, v20, v21, v22"); A("v_max3_f32 v37, v23, v24, v25"); A("v_max3_f32 v36, v36, v26, v27"); A("v_max_f32 v36, v36, v37")
    A("s_waitcnt lgkmcnt(2)")
    A("v_sub_f32 v28, v28, v36"); A("v_sub_f32 v30, v30, v36")
    A("v_exp_f32 v28, v28"); A("v_exp_f32 v30, v30")
    A("v_lshl_or_b32 v38, v36, 24, s55")
    A("v_mul_f32 v37, v28, v29")
    A("v_fmac_f32 v37, v30, v31")
    A("s_waitcnt lgkmcnt(0)")
    A("v_mov_b32 v49, v37")
    for r in range(4): A(f"v_mul_f32 v{10+r}, v{10+r}, v28")
    A("v_permlane32_swap_b32 v37, v49")
    for r in range(2): A(f"v_fmac_f32 v{10+r}, v{14+r}, v30")
    A("v_add_f32 v37, v37, v49")
    for r in range(2, 4): A(f"v_fmac_f32 v{10+r}, v{14+r}, v30")
    A("v_mov_b32 v49, v37")
    A("v_permlane32_swap_b32 v10, v11")
    A("v_permlane32_swap_b32 v12, v13")
    A("v_add_f32 v10, v10, v11")
    A("v_add_f32 v12, v12, v13")
    A("v_permlane16_swap_b32 v37, v49")
    A("v_add_f32 v37, v37, v49")
    A("v_permlane16_swap_b32 v10, v12")
    A("v_add_f32 v10, v10, v12")
    rbf(10, 10)
    A("v_min_u32 v10, s60, v10")
    A(f"buffer_store_short_d16_hi v10, v{TC+10}, s[36:39], s0 offen {osf}")
    A("s_bitcmp1_b32 s3, 0")
    A("s_cbranch_scc1 L_mj")
    A("v_and_or_b32 v37, v37, s73, v48"); A("v_and_or_b32 v36, v36, s73, v47")
    A("s_mov_b64 exec, 1")
    A(f"buffer_store_dwordx4 v[36:39], v3, s[36:39], s1 offen {osf}")
    A("s_mov_b64 exec, -1")
    A(".warm_off")
    A.label("L_mj")
    stamp(6)
    A("s_cmp_eq_u32 s69, 0")
    A("s_cbranch_scc1 L_end")
    A("v_and_b32 v54, 0x1f0, v3")
    A(f"buffer_load_dwordx4 v[40:43], v54, s[36:39], 0 offen offset:{XBUF} sc1")
    if codepf:
        A("s_getpc_b64 s[12:13]")
        A.label("L_pcref")
        A("s_lshl_b32 s71, s3, 9"); A("s_add_u32 s12, s12, s71"); A("s_addc_u32 s13, s13, 0")
        A(f"v_lshlrev_b32 v48, 3, v1")
        A("global_load_dwordx2 v[44:45], v48, s[12:13]")
    if outpf:
        A("buffer_load_dword v44, v3, s[44:47], 0 offen")
    if pretouch:
        A("s_lshl_b32 s71, s3, 5"); A("s_add_u32 s71, s71, s77")
        A("s_cmp_ge_u32 s71, 80")
        A("s_cbranch_scc1 L_nopt")
        A("s_lshl_b32 s71, s71, 10"); A(f"s_add_u32 s71, s71, {HBUF}")
        A("buffer_load_dwordx4 v[44:47], v3, s[36:39], s71 offen sc1")
        A.label("L_nopt")
    OB = RA
    for k in range(4): A(f"ds_read_b128 v[{20+4*k}:{23+4*k}], v{TC+23} offset:{L_RED2+512*k}")
    A("s_waitcnt lgkmcnt(0)")
    sum4x4()
    A("v_mov_b32 v51, v20")
    A("s_waitcnt vmcnt(0)")
    A.label("L_xchk")
    for k in range(4): A(f"v_xor_b32 v{40+k}, s{53+k}, v{40+k}")
    A("v_or3_b32 v55, v41, v42, v43")
    A("v_and_b32 v53, 0xff, v40"); A("v_or_b32 v55, v55, v53")
    A("v_cmp_ne_u32 vcc, 0, v55")
    A("s_cbranch_vccz L_xok")
    A(f"buffer_load_dwordx4 v[40:43], v54, s[36:39], 0 offen offset:{XBUF} sc1")
    A("s_waitcnt vmcnt(0)")
    spin("L_xchk")
    A.label("L_xok")
    A("v_cmp_ne_u32 vcc, s78, v40")
    A("s_mov_b32 s64, 0")
    if local:
        A("s_cbranch_vccnz L_xg")
        A("s_mov_b32 s64, 1")
        A.label("L_xg")
    A(f"v_lshlrev_b32 v{TC+13}, 16, v{TC+13}")
    for i in range(8):
        r = WDR[i >> 1] + 4 * (i & 1)
        A(f"ds_read_b128 v[{r}:{r+3}], v{TC+26} offset:{1024*i}")
    for F in FS:
        for r in range(4): A(f"v_mov_b32 v{F+r}, 0")
    for r in range(10, 18): A(f"v_mov_b32 v{r}, 0")
    A("v_and_b32 v4, 3, v1"); A("v_mul_u32_u24 v4, 0x5555, v4")
    for r in list(range(64, 72)) + list(range(TC, TC + 4)) + list(range(36, 40)): A(f"v_mov_b32 v{r}, 0")
    A("v_mov_b32 v52, 1.0")
    for r in range(4): A(f"v_mov_b32_dpp v{68+r}, v52 quad_perm:[0,0,0,0] row_mask:0xf bank_mask:{'0x5' if r % 2 == 0 else '0xa'}")
    OG = [(OB + 4 * j, TC + 8, 16 + (j >> 1), 2048 * (j & 1)) for j in range(4)]
    A.label("L_h1pre")
    A(f"buffer_load_dword v23, v{TC+9}, s[36:39], s20 offen offset:12 sc1")
    A("s_waitcnt vmcnt(0)")
    A("v_cmp_eq_u32 vcc, s56, v23")
    A("s_bcnt1_i32_b64 s71, vcc")
    A(f"s_cmp_ge_u32 s71, {2*thr1}")
    A("s_cbranch_scc1 L_h1go")
    spin("L_h1pre", slp1)
    A.label("L_h1go")
    for r in range(24, 32): A(f"v_mov_b32 v{r}, 0")
    A.label("L_h1_rnd")
    A(f"buffer_load_dwordx4 v[20:23], v{TC+9}, s[36:39], s20 offen sc1")
    A(f"buffer_load_dwordx4 v[{OB}:{OB+3}], v{TC+8}, s[36:39], s16 offen sc1")
    A(f"buffer_load_dwordx4 v[{OB+4}:{OB+7}], v{TC+8}, s[36:39], s16 offen offset:1024 sc1")
    A("s_waitcnt vmcnt(2)")
    for e in range(4): A(f"v_xor_b32 v{20+e}, s{53+e}, v{20+e}")
    A("v_or3_b32 v55, v20, v21, v22"); A("v_or_b32 v55, v55, v23"); A("v_and_b32 v55, 0xff, v55")
    A("v_cmp_ne_u32 vcc, 0, v55" if eo else "v_cmp_ne_u32 s[4:5], 0, v55")
    A("v_or_b32_sdwa v20, v20, v22 dst_sel:DWORD dst_unused:UNUSED_PAD src0_sel:DWORD src1_sel:BYTE_3")
    if eo == 2: A("s_cbranch_vccnz L_h1_re")
    A("s_waitcnt vmcnt(0)")
    if eo == 1: A("s_cbranch_vccnz L_h1_re")
    A(f"v_pk_max_u16 v55, v{OB}, v{OB+1}")
    dpp("v_max_f32", 22, 20, 20, "quad_perm:[1,0,3,2]")
    A(f"v_pk_max_u16 v53, v{OB+2}, v{OB+3}"); A(f"v_pk_max_u16 v55, v55, v{OB+4}")
    dpp("v_max_f32", 22, 22, 22, "row_ror:8")
    A(f"v_pk_max_u16 v53, v53, v{OB+5}"); A(f"v_pk_max_u16 v55, v55, v{OB+6}")
    dpp("v_max_f32", 22, 22, 22, "row_ror:4")
    A("v_mov_b32 v23, v22")
    A(f"v_pk_max_u16 v53, v53, v{OB+7}"); A("v_pk_max_u16 v55, v55, v53")
    A("v_permlane32_swap_b32 v22, v23")
    A("v_max_f32 v22, v22, v23")
    A("v_mov_b32 v23, v22")
    A("v_pk_max_u16 v55, v55, v55 op_sel:[1,0] op_sel_hi:[0,1]")
    A("v_cmp_eq_u32 vcc, -1, v55")
    A("v_permlane16_swap_b32 v22, v23")
    if eo: A("s_cbranch_vccnz L_h1_re")
    else:
        A("s_or_b64 vcc, vcc, s[4:5]")
        A("s_cbranch_scc1 L_h1_re")
    post.append(("L_h1_re", "L_h1_rnd"))
    stamp(7)
    A("v_max_f32 v22, v22, v23")
    A("v_sub_f32 v20, v20, v22")
    A("v_exp_f32 v20, v20")
    rbf(22, 20)
    A("v_cvt_pk_bf16_f32 v23, v20, 0")
    A("v_mul_f32 v21, v22, v21")
    fm = [f"v_dot2c_f32_bf16_dpp v{24+2*r+h}, v{22 if h else 23}, v{OB+4*j+r} quad_perm:[{j},{j},{j},{j}] {DPPF}" for j in range(2) for r in range(4) for h in (1, 0)]
    lr = [f"v_add_f32_dpp v21, v21, v21 {c} {DPPF}" for c in ("quad_perm:[1,0,3,2]", "row_ror:8", "row_ror:4")]
    lr += ["v_mov_b32 v20, v21", "v_permlane32_swap_b32 v21, v20", "v_add_f32 v21, v21, v20\nv_mov_b32 v20, v21", "v_permlane16_swap_b32 v21, v20", "v_add_f32 v21, v21, v20"]
    for k in range(len(fm)):
        A(fm[k])
        if k % 2 == 1 and lr: A(lr.pop(0))
    assert not lr
    A("v_permlane32_swap_b32 v24, v25")
    A("v_permlane32_swap_b32 v26, v27")
    A("v_rcp_f32 v21, v21")
    A("v_permlane32_swap_b32 v28, v29")
    A("v_permlane32_swap_b32 v30, v31")
    A("v_add_f32 v24, v24, v25"); A("v_add_f32 v26, v26, v27"); A("v_add_f32 v28, v28, v29"); A("v_add_f32 v30, v30, v31")
    A("v_permlane16_swap_b32 v24, v26")
    A("v_permlane16_swap_b32 v28, v30")
    A("v_add_f32 v24, v24, v26"); A("v_add_f32 v28, v28, v30")
    dpp("v_add_f32", 24, 24, 24, "row_ror:4"); dpp("v_add_f32", 28, 28, 28, "row_ror:4")
    A("v_add_f32_dpp v20, v24, v24 row_ror:8 row_mask:0xf bank_mask:0x5")
    A("v_add_f32_dpp v20, v28, v28 row_ror:8 row_mask:0xf bank_mask:0xa")
    A("v_mul_f32 v20, v20, v21")
    rbf(20, 20)
    def frag(j, src):
        F = FS[j % 3]
        for r in range(4):
            A(f"v_mov_b32_dpp v{F+r}, v{src} row_newbcast:{2*j+(r>>1)} row_mask:0xf bank_mask:{'0x5' if r % 2 == 0 else '0xa'}")
        return F
    def frag2(j):
        F = FS[j % 3]
        for r in range(4):
            q = 2 * j + (r >> 1); second = r & 1
            src, p = (20, q & 3) if (q >> 2) == second else (21, 3 - (q & 3))
            A(f"v_mov_b32_dpp v{F+r}, v{src} quad_perm:[{p},{p},{p},{p}] row_mask:0xf bank_mask:{'0xa' if second else '0x5'}")
        return F
    def gemv16(W, red, pair=True):
        fr = frag2 if pair else (lambda i: frag(i, 20))
        if pair: A(f"v_mov_b32_dpp v21, v20 row_half_mirror {DPPF}")
        Fs = {0: fr(0)}
        for j in range(4):
            if j < 3: Fs[j + 1] = fr(j + 1)
            for v in range(2):
                acc = 10 + 4 * v; b = W + 8 * (4 * v + j)
                A(f"v_smfmac_f32_16x16x64_bf16 v[{acc}:{acc+3}], v[{Fs[j]}:{Fs[j]+3}], v[{b}:{b+7}], v4")
        A("s_mov_b32 exec_hi, 0")
        A(f"ds_write_b128 v{TC+11}, v[10:13] offset:{red}")
        A("s_not_b64 exec, exec")
        A(f"ds_write_b128 v{TC+11}, v[14:17] offset:{red}")
        A("s_mov_b64 exec, -1")
        A("s_waitcnt lgkmcnt(0)")
        A("s_barrier")
    gemv16(WO, L_RED, pair=False)
    A(f"ds_read_b128 v[20:23], v{TC+12} offset:{L_RED}")
    A("s_cmp_eq_u32 s64, 1")
    A("s_waitcnt lgkmcnt(0)")
    rr4(20, 21, 22, 23)
    dpp("v_add_f32", 20, 20, 20, "row_ror:8")
    A("s_mov_b32 exec_lo, 0x00ff00ff"); A("s_mov_b32 exec_hi, 0x00ff00ff")
    rbf(52, 20)
    A("v_min_u32 v52, s60, v52")
    lstore("L_hs", f"buffer_store_short_d16_hi v52, v{TC+6}, s[36:39], s21 offen")
    A("s_mov_b64 exec, -1")
    stamp(8)
    if hw == -1: A("s_waitcnt vmcnt(0)")
    elif hw == -2: A("s_barrier")
    elif hw: A(f"s_sleep {hw}")
    A.label("L_h2")
    A("s_cmp_lg_u32 s69, 2")
    A("s_cbranch_scc1 L_h2f")
    A("s_cmp_lg_u32 s3, 7")
    A("s_cbranch_scc1 L_end")
    A.label("L_h2f")
    gathers("L_h2", TC + 14, 24)
    stamp(2)
    for r in range(4): A(f"v_add_f32_dpp v20, v{28+r}, v{28+r} row_ror:8 row_mask:{'0x3' if r < 2 else '0xc'} bank_mask:{'0xc' if r & 1 else '0x3'}")
    A(f"v_add_f32 v20, v20, v{TC+13}")
    rbf(20, 20)
    A("s_cmp_eq_u32 s69, 2")
    A("v_mov_b32 v50, v20")
    A("s_cbranch_scc1 L_fin0")
    A("v_readfirstlane_b32 s71, v20")
    A(f"v_mov_b32_dpp v21, v20 row_half_mirror {DPPF}")
    st = ["v_subrev_f32 v25, s71, v20\nv_mov_b32 v24, s71\nv_mul_f32 v26, v25, v25", "v_permlane32_swap_b32 v25, v26\nv_add_f32 v25, v25, v26"]
    st += [f"v_add_f32_dpp v25, v25, v25 {c} {DPPF}" for c in ("quad_perm:[1,0,3,2]", "quad_perm:[2,3,0,1]", "row_ror:8")]
    st += [f"v_add_f32_dpp v25, v25, v25 row_ror:4 {DPPF}\nv_mov_b32 v26, v25", "v_permlane16_swap_b32 v25, v26\nv_add_f32 v25, v25, v26"]
    A(st.pop(0))
    Fs = {0: frag2(0)}
    A(st.pop(0))
    for j in range(4):
        if j < 3: Fs[j + 1] = frag2(j + 1); A(st.pop(0))
        for v in range(2):
            acc = (TC, 36)[v]; b = WGU + 8 * (4 * v + j)
            A(f"v_smfmac_f32_16x16x64_bf16 v[{acc}:{acc+3}], v[{Fs[j]}:{Fs[j]+3}], v[{b}:{b+7}], v4")
        if j >= 2: A(st.pop(0))
    assert not st
    A("s_mov_b32 exec_lo, 1"); A("s_mov_b32 exec_hi, 1")
    A(f"ds_write_b64 v{TC+20}, v[24:25] offset:{L_ST}")
    A("s_mov_b32 exec_lo, -1"); A("s_mov_b32 exec_hi, 0")
    A(f"ds_write_b128 v{TC+11}, v[{TC}:{TC+3}] offset:{L_RED2}")
    A("s_not_b64 exec, exec")
    A(f"ds_write_b128 v{TC+11}, v[36:39] offset:{L_RED2}")
    A("s_mov_b64 exec, -1")
    A("s_waitcnt lgkmcnt(0)")
    A("s_barrier")
    stamp(3)
    A(f"ds_read_b128 v[60:63], v{TC+21} offset:{L_ST}")
    for k in range(4): A(f"ds_read_b128 v[{20+4*k}:{23+4*k}], v{TC+23} offset:{L_RED2+512*k}")
    A("s_waitcnt lgkmcnt(4)")
    A("v_readfirstlane_b32 s71, v60")
    A("v_subrev_f32 v60, s71, v60")
    A("v_fmamk_f32 v59, v60, 0x42800000, v61")
    A("v_add_f32 v61, v61, v59")
    A("v_fma_f32 v62, v60, v61, v63")
    A("s_waitcnt lgkmcnt(0)")
    c3 = ("quad_perm:[1,0,3,2]", "quad_perm:[2,3,0,1]", "row_half_mirror")
    pk = ["v_pk_add_f32 v[20:21], v[20:21], v[24:25]", "v_pk_add_f32 v[22:23], v[22:23], v[26:27]", "v_pk_add_f32 v[28:29], v[28:29], v[32:33]",
          "v_pk_add_f32 v[30:31], v[30:31], v[34:35]", "v_pk_add_f32 v[20:21], v[20:21], v[28:29]", "v_pk_add_f32 v[22:23], v[22:23], v[30:31]"]
    for k in range(3):
        A(pk[2 * k]); dpp("v_add_f32", 59, 59, 59, c3[k]); A(pk[2 * k + 1]); dpp("v_add_f32", 62, 62, 62, c3[k])
    A("v_mul_f32 v59, 0x3b000000, v59")
    A("v_permlane32_swap_b32 v20, v21")
    A("v_permlane32_swap_b32 v22, v23")
    A("v_mul_f32 v62, 0x3b000000, v62")
    A("v_add_f32 v20, v20, v21")
    A("v_add_f32 v22, v22, v23")
    A("v_fma_f32 v62, -v59, v59, v62")
    A("v_max_f32 v62, 0, v62")
    A("v_permlane16_swap_b32 v20, v22")
    A("v_add_f32 v62, 0x3727c5ac, v62")
    A("v_add_f32 v59, s71, v59")
    A("v_rsq_f32 v62, v62")
    A("v_add_f32 v20, v20, v22")
    A("v_fma_f32 v20, -v59, v51, v20")
    A("v_mul_f32 v20, v20, v62")
    dpp("v_mul_f32", 21, 20, 20, "row_ror:8")
    rbf(21, 21)
    Fs = {0: frag(0, 21)}
    for j in range(4):
        if j < 3: Fs[j + 1] = frag(j + 1, 21)
        A(f"v_smfmac_f32_16x16x64_bf16 v[64:67], v[{Fs[j]}:{Fs[j]+3}], v[{WDR[j]}:{WDR[j]+7}], v4")
    A("s_mov_b32 exec_hi, 0")
    A("s_cmp_eq_u32 s64, 1")
    A("v_cvt_pk_bf16_f32 v56, v64, v65"); A("v_cvt_pk_bf16_f32 v57, v66, v67")
    A("v_pk_min_u16 v56, s60, v56"); A("v_pk_min_u16 v57, s60, v57")
    lstore("L_ys", f"buffer_store_dwordx2 v[56:57], v{TC+24}, s[36:39], s18 offen")
    stamp(9)
    A("s_cmp_lg_u32 s3, s68")
    A("s_cbranch_scc1 L_end")
    A("s_mov_b64 exec, -1")
    if yw == -1: A("s_waitcnt vmcnt(0)")
    elif yw: A(f"s_sleep {yw}")
    A("s_branch L_fin")
    A.label("L_fin0")
    A("s_cmp_lg_u32 s77, 28"); A("s_cbranch_scc1 L_fin")
    A("s_mov_b64 exec, 1")
    A("v_mov_b32 v48, s52")
    A("buffer_store_dword v48, v3, s[36:39], 0 offen sc1")
    A("s_mov_b64 exec, -1")
    A.label("L_fin")
    A("s_and_b32 s71, s77, 3"); A("s_lshl_b32 s71, s71, 1"); A("s_lshl_b32 s71, 0x03030303, s71")
    gathers("L_h3", TC + 22, 22)
    stamp(5)
    for r in range(4): A(f"v_add_f32_dpp v{20+(r&1)}, v{28+r}, v{28+r} quad_perm:[2,3,0,1] row_mask:{'0x3' if r < 2 else '0xc'} bank_mask:0xf")
    dpp("v_add_f32", 20, 20, 20, "row_ror:4"); dpp("v_add_f32", 21, 21, 21, "row_ror:4")
    A("v_add_f32_dpp v22, v20, v20 row_ror:8 row_mask:0xf bank_mask:0x3")
    A("v_add_f32_dpp v22, v21, v21 row_ror:8 row_mask:0xf bank_mask:0xc")
    A("v_add_f32 v20, v22, v50")
    rbf(20, 20)
    if diag and diag[1] == "ack":
        A("s_mov_b32 exec_lo, s71"); A("s_mov_b32 exec_hi, s71")
        A(f"buffer_store_short_d16_hi v20, v{TC+25}, s[44:47], 0 offen")
        A("s_waitcnt vmcnt(0)")
        A("s_memrealtime s[86:87]")
    if diag:
        A("s_waitcnt lgkmcnt(0)")
        A("s_sub_u32 s84, s86, s84"); A(f"s_mul_i32 s84, s84, {diag[2]}"); A("s_add_u32 s84, s84, 6000"); A("s_min_u32 s84, s84, 100000")
        A.label("L_dg1")
        A("s_memrealtime s[82:83]"); A("s_waitcnt lgkmcnt(0)")
        A("s_sub_u32 s82, s82, s80"); A("s_cmp_lt_u32 s82, s84"); A("s_cbranch_scc1 L_dg1")
    A("s_mov_b32 exec_lo, s71"); A("s_mov_b32 exec_hi, s71")
    A(f"buffer_store_short_d16_hi v20, v{TC+25}, s[44:47], 0 offen")
    A(".warm_off")
    A("s_branch L_end")
    A.label("L_cs")
    A("v_and_b32 v4, 3, v1"); A("v_mul_u32_u24 v4, 0x5555, v4")
    for r in range(20, 32): A(f"v_mov_b32 v{r}, 0")
    A("v_mov_b32 v32, 1.0")
    A("s_waitcnt vmcnt(0)")
    for r in range(4): A(f"v_mov_b32_dpp v{28+r}, v32 quad_perm:[0,0,0,0] row_mask:0xf bank_mask:{'0x5' if r % 2 == 0 else '0xa'}")
    for j in range(4):
        for v in range(2):
            b = WGU + 8 * (4 * v + j)
            A(f"v_smfmac_f32_16x16x64_bf16 v[{20+4*v}:{23+4*v}], v[28:31], v[{b}:{b+7}], v4")
    A("s_mov_b32 exec_hi, 0")
    A(f"ds_write_b128 v{TC+11}, v[20:23] offset:{L_RED2}")
    A("s_not_b64 exec, exec")
    A(f"ds_write_b128 v{TC+11}, v[24:27] offset:{L_RED2}")
    A("s_mov_b64 exec, -1")
    A("s_branch L_csr")
    for (lab, back) in post:
        A.label(lab); spin(back)
    for (name, text) in post2:
        A.label(f"{name}_g"); A(text + " sc1"); A(f"s_branch {name}_j")
    A.label("L_end")
    if prof:
        A("s_waitcnt vmcnt(0)")
        stamp(10)
        A("s_mov_b64 exec, -1")
        A("s_waitcnt lgkmcnt(0)")
        for i in range(11): A(f"v_writelane_b32 v20, s{80+2*i}, {i}")
        A("v_writelane_b32 v20, s64, 11")
        A("s_getreg_b32 s71, hwreg(HW_REG_XCC_ID)"); A("v_writelane_b32 v20, s71, 12")
        A("s_lshl_b32 s71, s2, 3"); A("s_add_u32 s71, s71, s3"); A("s_lshl_b32 s71, s71, 6"); A(f"s_add_u32 s71, s71, {PROF}")
        A("v_lshlrev_b32 v21, 2, v1")
        A("s_mov_b64 exec, 0xffff")
        A("buffer_store_dword v20, v21, s[36:39], s71 offen")
    A.label("L_exit")
    A("s_endpgm")
    body = A.finish()
    nv = max(A.maxv + 1, 136)
    txt = HEADER + f"; @launch grid=(256,1,1) block=(512,1,1) lds={L_END}\n"
    txt += DOC
    txt += f'.amdgcn_target "amdgcn-amd-amdhsa--gfx950"\n.text\n.globl {KNAME}\n.p2align 8\n.type {KNAME},@function\n{KNAME}:\n'
    txt += body
    txt += "; padding: instruction prefetch and the code read at L_pcref stay inside .text\n.fill 512, 4, 0xbf800000\n"
    txt += f'.section .rodata,"a"\n.p2align 6\n.amdhsa_kernel {KNAME}\n  .amdhsa_next_free_vgpr {nv}\n  .amdhsa_next_free_sgpr 102\n'
    txt += f"  .amdhsa_accum_offset {(nv+3)//4*4}\n  .amdhsa_group_segment_fixed_size 0\n  .amdhsa_kernarg_size 96\n  .amdhsa_user_sgpr_count 2\n"
    txt += "  .amdhsa_user_sgpr_kernarg_segment_ptr 1\n  .amdhsa_system_sgpr_workgroup_id_x 1\n  .amdhsa_float_denorm_mode_32 3\n.end_amdhsa_kernel\n"
    return txt

if __name__ == "__main__":
    import argparse
    p = argparse.ArgumentParser(); p.add_argument("-o"); p.add_argument("kv", nargs="*")
    a = p.parse_args()
    kw = {k: eval(v) for k, v in (x.split("=") for x in a.kv)}
    open(a.o, "w").write(gen(**kw))
```
